```python
import torch

def _softmax(x, axis=-1):
    return torch.softmax(x, dim=axis)
def _gelu(x):
    return torch.nn.functional.gelu(x, approximate="tanh")
def _silu(x):
    return torch.nn.functional.silu(x)
def _sigmoid(x):
    return torch.sigmoid(x)
def _layernorm(x, axis=-1, eps=1e-5):
    m = x.mean(dim=axis, keepdim=True)
    v = x.var(dim=axis, keepdim=True, unbiased=False)
    return (x - m) / torch.sqrt(v + eps)
def _scatter_add(tgt, idx, src, axis=0):
    return tgt.clone().index_add_(axis, idx, src)
def _segment_sum(src, seg, n):
    out = torch.zeros((n,) + src.shape[1:], dtype=src.dtype)
    return out.index_add_(0, seg, src)
def _pad(x, pw):
    flat = tuple(v for pair in reversed(pw) for v in pair)
    return torch.nn.functional.pad(x, flat)

kernel_name = 'gated_mix__softmax_full_mha__dense_activation_mish__prompt'

def setup_inputs():

    _w = (lambda a: (lambda t: t.to(torch.bfloat16) if t.is_floating_point() else t)(torch.as_tensor(a)))
    def _A_setup():
        B, S, D = 1, 2048, 640
        return {
            "x": _w((lambda *s: torch.randn(*s, dtype=torch.bfloat16) * 0.05)(B, S, D)),
            "wqkv": _w((lambda *s: torch.randn(*s, dtype=torch.bfloat16) * 0.8)(D, 3 * D)),
            "wo": _w((lambda *s: torch.randn(*s, dtype=torch.bfloat16) * 0.05)(D, D)),
        }
    _A_in = _A_setup()

    def _B_setup():
        B, S, D, F = 1, 2048, 640, 1536
        return {
            "x": _w((lambda *s: torch.randn(*s, dtype=torch.bfloat16) * 0.05)(B, S, D)),
            "w1": _w((lambda *s: torch.randn(*s, dtype=torch.bfloat16) * 12.8)(D, F) * (D ** -0.5)),
            "b1": _w((lambda *s: torch.randn(*s, dtype=torch.bfloat16) * 0.2)(F)),
            "w2": _w((lambda *s: torch.randn(*s, dtype=torch.bfloat16) * 0.2)(F, D) * (F ** -0.5)),
        }
    _B_in = _B_setup()

    return {
        "A_x": _A_in["x"],
        "A_wqkv": _A_in["wqkv"],
        "A_wo": _A_in["wo"],
        "B_x": _B_in["x"],
        "B_w1": _B_in["w1"],
        "B_b1": _B_in["b1"],
        "B_w2": _B_in["w2"],
        "gate_w": _w((lambda *s: torch.randn(*s, dtype=torch.bfloat16) * 0.05)(640) * 16.0),
    }

def reference(A_x, A_wqkv, A_wo, B_x, B_w1, B_b1, B_w2, gate_w):
    def _A_ref(x, wqkv, wo):
        B, S, D = x.shape
        H = 32; Dh = D // H
        qkv = (lambda x, *d: x.permute(*d))((x @ wqkv).reshape(B, S, 3, H, Dh), 2, 0, 3, 1, 4)
        q, k, v = qkv[0], qkv[1], qkv[2]
        scale = Dh ** -0.5
        scores = torch.einsum("bhqd,bhkd->bhqk", q, k) * scale
        p = _softmax(scores, axis=-1)
        o = torch.einsum("bhqk,bhkd->bhqd", p, v)
        return (lambda x, *d: x.permute(*d))(o, 0, 2, 1, 3).reshape(B, S, D) @ wo

    def _B_ref(x, w1, b1, w2):
        h = torch.einsum("bsd,df->bsf", x, w1) + b1
        sp = torch.log1p(torch.exp(-torch.abs(h))) + torch.where(h > 0, h, torch.zeros_like(h))
        act = h * torch.tanh(sp)
        return torch.einsum("bsf,fd->bsd", act, w2)

    x = A_x
    g = _sigmoid((x * gate_w).sum(-1, keepdims=True))
    a = _A_ref(x, A_wqkv, A_wo)
    b = _B_ref(x, B_w1, B_b1, B_w2)
    return g * a + (1 - g) * b
```

```python
class Asm:
    def __init__(self):
        self.lines = []
        self._uid = 0
    def __call__(self, s):
        for l in s.strip("\n").split("\n"):
            l = l.strip()
            if not l:
                continue
            if l.endswith(":") or l.startswith(".") or l.startswith(";"):
                self.lines.append(l)
            else:
                self.lines.append("    " + l)
    def c(self, s):
        self.lines.append("    ; " + s)
    def label(self, base):
        self._uid += 1
        return f"L{base}_{self._uid}"
    def text(self):
        return "\n".join(self.lines) + "\n"

def vr(a, n=1):
    return f"v{a}" if n == 1 else f"v[{a}:{a+n-1}]"
def sr(a, n=1):
    return f"s{a}" if n == 1 else f"s[{a}:{a+n-1}]"

def srd(A, d, ptr, nbytes):
    A(f"s_mov_b32 s{d}, s{ptr}")
    A(f"s_and_b32 s{d+1}, s{ptr+1}, 0xffff")
    A(f"s_mov_b32 s{d+2}, {nbytes}")
    A(f"s_mov_b32 s{d+3}, 0x00020000")

def kdesc(name, vgpr, sgpr=102, accum=None):
    accum = accum if accum is not None else ((vgpr + 3) // 4) * 4
    return f""".section .rodata,"a"
.p2align 6
.amdhsa_kernel {name}
  .amdhsa_next_free_vgpr {vgpr}
  .amdhsa_next_free_sgpr {sgpr}
  .amdhsa_accum_offset {accum}
  .amdhsa_group_segment_fixed_size 0
  .amdhsa_kernarg_size 88
  .amdhsa_user_sgpr_count 2
  .amdhsa_user_sgpr_kernarg_segment_ptr 1
  .amdhsa_system_sgpr_workgroup_id_x 1
.end_amdhsa_kernel
.text
"""
def khead(name):
    return f""".text
.globl {name}
.p2align 8
.type {name},@function
{name}:
"""
```

```python
S = 2048; D = 640; H = 32; DH = 20; F = 1536
X_BYTES = S * D * 2
WQKV_BYTES = D * 3 * D * 2
WO_BYTES = D * D * 2
W1_BYTES = D * F * 2
W2_BYTES = F * D * 2
B1_BYTES = F * 2
GW_BYTES = D * 2
OUT_BYTES = S * D * 2

QF_OFF = 0
HSQ = 64 * 1280
KV_OFF = 0x280000
VH = 352
VT = 4 * VH
CH = 21504
HSK = 8 * CH
VPART = 8 * 1280
ACT_OFF = 0x800000
OF_OFF = 0xE00000
BP_OFF = 0x1100000
WF_OFF = 0x1100000
WF_CG = 68*5*1024
OFLAG_OFF = 0x1480000
WOF_OFF = 0x1500000
G_OFF = 0x1400000
WS_RECORDS = 0x2000000

import math
QSCALE = math.log2(math.e) / math.sqrt(DH)
LOG2E = math.log2(math.e)

import struct
def f32bits(x):
    return struct.unpack("<I", struct.pack("<f", x))[0]
```

```python
from asm import *
from common import *

NAME = "k1_kernel"
NJOBS = 432

def gen_k1():
    A = Asm()
    A(khead(NAME))
    A(f"""
    s_cmp_ge_u32 s2, {NJOBS}
    s_cbranch_scc1 Lk1_end
    s_load_dwordx4 s[4:7], s[0:1], 0       ; A_x, wqkv
    s_load_dwordx4 s[8:11], s[0:1], 24     ; B_x, w1
    s_load_dwordx2 s[12:13], s[0:1], 40    ; b1
    s_load_dwordx2 s[14:15], s[0:1], 80    ; ws
    v_lshrrev_b32 v1, 6, v0
    v_and_b32 v2, 63, v0                   ; lane
    s_and_b32 s41, s2, 7
    v_readfirstlane_b32 s32, v1
    s_lshr_b32 s42, s2, 3
    s_mul_i32 s41, s41, 54
    s_add_u32 s41, s41, s42                ; J
    ; rg = J / 108 ; t = J % 108
    s_mul_i32 s42, s41, 607
    s_lshr_b32 s42, s42, 16                ; rg
    s_mul_i32 s43, s42, 108
    s_sub_u32 s43, s41, s43                ; t
    s_lshr_b32 s44, s43, 2                 ; cb 0..26
    s_and_b32 s43, s43, 3
    s_lshl_b32 s34, s42, 2
    s_add_u32 s34, s34, s43                ; rb
    s_cmp_lt_u32 s44, 12
    s_cbranch_scc1 Lk1_isF
    s_sub_u32 s44, s44, 12                 ; q 0..14
    s_mul_i32 s45, s44, 52                 ; q/5 = (q*52)>>8 for q<15
    s_lshr_b32 s45, s45, 8
    s_add_u32 s33, s45, 1                  ; type 1=Q 2=K 3=V
    s_mul_i32 s45, s45, 5
    s_sub_u32 s35, s44, s45                ; cbl 0..4
    s_lshl_b32 s46, s44, 8
    s_mov_b32 s36, 3840
    s_waitcnt lgkmcnt(0)
    """)
    srd(A, 16, 4, X_BYTES)
    srd(A, 20, 6, WQKV_BYTES)
    A(f"""
    s_branch Lk1_common
Lk1_isF:
    s_mov_b32 s33, 0
    s_mov_b32 s35, s44
    s_lshl_b32 s46, s44, 8
    s_mov_b32 s36, 3072
    s_waitcnt lgkmcnt(0)
    """)
    srd(A, 16, 4, X_BYTES)
    srd(A, 20, 10, W1_BYTES)
    A("Lk1_common:")
    srd(A, 24, 14, WS_RECORDS)
    srd(A, 28, 12, B1_BYTES)
    A(f"""
    v_lshrrev_b32 v3, 3, v2                ; rr
    v_mul_u32_u24 v3, 1280, v3
    v_and_b32 v13, 7, v2                   ; p
    v_lshrrev_b32 v14, 4, v2               ; lane>>4
    v_xor_b32 v15, v13, v14
    v_lshl_add_u32 v10, v15, 4, v3         ; even
    v_xor_b32 v15, 4, v15
    v_lshl_add_u32 v11, v15, 4, v3         ; odd
    v_and_b32 v13, 15, v2
    v_lshlrev_b32 v15, 2, v14
    v_xor_b32 v13, v13, v15
    v_mul_lo_u32 v15, v14, s36
    v_lshl_add_u32 v12, v13, 4, v15
    ; soffsets
    s_lshl_b32 s37, s34, 7                 ; rb*128
    s_lshl_b32 s41, s32, 5                 ; w*32 rows
    s_add_u32 s37, s37, s41
    s_mul_i32 s37, s37, 1280
    s_lshl_b32 s41, s32, 4                 ; w*16 k-rows
    s_mul_i32 s41, s41, s36
    s_add_u32 s38, s41, s46
    s_lshl_b32 s39, s36, 6                 ; 64*WS
    s_lshl_b32 s47, s36, 2                 ; 4*WS
    s_lshl_b32 s42, s32, 12
    s_add_u32 s43, s42, 16384
    """)
    def dma(slot):
        for j in range(4):
            A(f"s_add_u32 m0, s42, {slot*32768 + j*1024}")
            A(f"s_add_u32 s48, s37, {j*10240}")
            A(f"buffer_load_dwordx4 v{10 + (j & 1)}, s[16:19], s48 offen lds")
        A(f"s_mov_b32 s48, s38")
        for j in range(4):
            A(f"s_add_u32 m0, s43, {slot*32768 + j*1024}")
            if j: A(f"s_add_u32 s48, s48, s47")
            else: A("s_nop 0")
            A(f"buffer_load_dwordx4 v12, s[20:23], s48 offen lds")
        A(f"s_add_u32 s37, s37, 128")
        A(f"s_add_u32 s38, s38, s39")
    def dma_list(slot):
        g = []
        for j in range(4):
            g.append([f"s_add_u32 m0, s42, {slot*32768 + j*1024}", f"s_add_u32 s48, s37, {j*10240}",
                      f"buffer_load_dwordx4 v{10 + (j & 1)}, s[16:19], s48 offen lds"])
        for j in range(4):
            g.append([f"s_add_u32 m0, s43, {slot*32768 + j*1024}",
                      ("s_add_u32 s48, s48, s47" if j else "s_mov_b32 s48, s38"),
                      f"buffer_load_dwordx4 v12, s[20:23], s48 offen lds"])
        g.append(["s_add_u32 s37, s37, 128", "s_add_u32 s38, s38, s39"])
        return g

    A(f"""
    s_cmp_eq_u32 s33, 0
    s_cbranch_scc0 Lk1_nobias
    s_and_b32 s41, s32, 1
    s_lshl_b32 s41, s41, 7                 ; (w&1)*64 cols *2B
    s_add_u32 s41, s41, s46                ; + cbl*256
    v_lshrrev_b32 v3, 5, v2
    v_lshlrev_b32 v3, 4, v3                ; hf*16
    buffer_load_dwordx4 v[48:51], v3, s[28:31], s41 offen
    buffer_load_dwordx4 v[52:55], v3, s[28:31], s41 offen offset:32
    buffer_load_dwordx4 v[56:59], v3, s[28:31], s41 offen offset:64
    buffer_load_dwordx4 v[60:63], v3, s[28:31], s41 offen offset:96
Lk1_nobias:
    """)
    dma(0)
    dma(1)
    A(f"""
    v_and_b32 v3, 31, v2                   ; token
    v_lshrrev_b32 v13, 5, v2               ; hf
    v_bfe_u32 v14, v2, 1, 3                ; (token>>1)&7
    v_xor_b32 v14, v13, v14
    v_lshlrev_b32 v14, 4, v14
    v_lshl_add_u32 v14, v3, 7, v14         ; token*128 + ...
    s_lshr_b32 s41, s32, 1
    s_lshl_b32 s41, s41, 13                ; (w>>1)*8192
    v_add_u32 v4, s41, v14
    v_xor_b32 v5, 32, v4
    v_xor_b32 v6, 64, v4
    v_xor_b32 v7, 96, v4
    v_bfe_u32 v14, v2, 2, 2                ; r
    v_lshl_add_u32 v15, v13, 3, v14        ; 8hf + r
    v_lshlrev_b32 v15, 8, v15              ; *256
    v_bfe_u32 v3, v2, 4, 1                 ; colhalf
    v_lshl_add_u32 v15, v3, 5, v15
    v_and_b32 v3, 3, v2                    ; c
    s_cmp_eq_u32 s33, 0
    s_cbranch_scc0 Lk1_noperm
    v_lshrrev_b32 v1, 1, v3
    v_and_b32 v3, 1, v3
    v_lshl_or_b32 v3, v3, 1, v1            ; perm(c)
Lk1_noperm:
    v_lshl_add_u32 v15, v3, 3, v15
    v_add_u32 v15, 16384, v15
    s_and_b32 s41, s32, 1
    s_lshl_b32 s41, s41, 1
    v_xor_b32 v3, s41, v14                 ; ct ^ r
    v_lshl_add_u32 v8, v3, 6, v15
    v_xor_b32 v3, 1, v3
    v_lshl_add_u32 v9, v3, 6, v15
    """)
    A(f"""
    s_cmp_eq_u32 s33, 0
    s_cbranch_scc1 Lk1_biasinit
    """)
    for i in range(64):
        A(f"v_mov_b32 v{64+i}, 0")
    A("s_branch Lk1_initdone")
    A("Lk1_biasinit:")
    A("s_waitcnt vmcnt(16)")
    for ct in range(2):
        for m in range(8):
            src = 48 + 8*ct + m
            d = 64 + 16*ct + 2*m
            A(f"v_lshlrev_b32 v{d}, 16, v{src}")
            A(f"v_and_b32 v{d+1}, 0xffff0000, v{src}")
        for m in range(16):
            A(f"v_mov_b32 v{64+32+16*ct+m}, v{64+16*ct+m}")
    A("Lk1_initdone:")

    def reads(slot, ks, fs):
        b = 16 + 16*fs
        o = slot*32768
        return [
            f"ds_read_b128 v[{b}:{b+3}], v{4+ks} offset:{o}",
            f"ds_read_b64_tr_b16 v[{b+8}:{b+9}], v8 offset:{o + ks*4096}",
            f"ds_read_b64_tr_b16 v[{b+10}:{b+11}], v8 offset:{o + ks*4096 + 1024}",
            f"ds_read_b128 v[{b+4}:{b+7}], v{4+ks} offset:{o + 4096}",
            f"ds_read_b64_tr_b16 v[{b+12}:{b+13}], v9 offset:{o + ks*4096}",
            f"ds_read_b64_tr_b16 v[{b+14}:{b+15}], v9 offset:{o + ks*4096 + 1024}",
        ]
    def mfmas(fs, normal):
        b = 16 + 16*fs
        out = []
        for rt in range(2):
            for ct in range(2):
                d = 64 + 16*(2*rt + ct)
                x = f"v[{b+4*rt}:{b+4*rt+3}]"; w = f"v[{b+8+4*ct}:{b+8+4*ct+3}]"
                a_, b_ = (x, w) if normal else (w, x)
                out.append(f"v_mfma_f32_32x32x16_bf16 v[{d}:{d+15}], {a_}, {b_}, v[{d}:{d+15}]")
        return out

    def mainloop(tag, normal):
        A(f"s_waitcnt vmcnt(8)")
        A("s_barrier")
        for l in reads(0, 0, 0): A(l)
        A(f"s_mov_b32 s40, 0")
        A(f"L{tag}_loop:")
        for slot in range(2):
            for ks in range(3):
                fs = ks & 1
                for l in reads(slot, ks+1, fs ^ 1): A(l)
                A("s_waitcnt lgkmcnt(6)")
                for l in mfmas(fs, normal): A(l)
            A("s_waitcnt vmcnt(0) lgkmcnt(0)")
            A("s_barrier")
            m = mfmas(1, normal)
            rd = reads(slot ^ 1, 0, 0)
            A(m[0])
            for l in rd: A(l)
            skip = A.label("skipdma")
            A(f"s_cmp_lt_u32 s40, 4")
            A(f"s_cbranch_scc0 {skip}")
            g = dma_list(slot)
            A(m[1])
            for grp in g[0:3]:
                for l in grp: A(l)
            A(m[2])
            for grp in g[3:6]:
                for l in grp: A(l)
            A(m[3])
            for grp in g[6:]:
                for l in grp: A(l)
            done = A.label("dmadone")
            A(f"s_branch {done}")
            A(f"{skip}:")
            A(m[1]); A(m[2]); A(m[3])
            A(f"{done}:")
        A(f"s_add_u32 s40, s40, 1")
        A(f"s_cmp_lt_u32 s40, 5")
        A(f"s_cbranch_scc1 L{tag}_loop")

    A("s_cmp_eq_u32 s33, 3")
    A("s_cbranch_scc1 Lk1_mainV")
    mainloop("k1T", False)
    A("s_branch Lk1_epi")
    A("Lk1_mainV:")
    mainloop("k1N", True)
    A("s_waitcnt lgkmcnt(0)")
    A("s_nop 15")
    A("s_branch Lk1_epiV")
    A("Lk1_epi:")
    A("s_waitcnt lgkmcnt(0)")
    A("s_nop 15")
    A("s_cmp_eq_u32 s33, 0")
    A("s_cbranch_scc1 Lk1_epiF")

    A(f"""
    s_lshr_b32 s41, s32, 1
    s_lshl_b32 s41, s41, 1
    s_lshl_b32 s44, s34, 2
    s_add_u32 s44, s44, s41                ; T (rt'=0)
    s_cmp_eq_u32 s33, 1
    s_cbranch_scc0 Lk1_isK
    s_mul_i32 s45, s44, 1280
    s_add_u32 s45, s45, {QF_OFF}
    s_mov_b32 s49, {HSQ}
    s_mov_b32 s50, {f32bits(QSCALE):#x}
    s_branch Lk1_qk
Lk1_isK:
    s_lshr_b32 s45, s44, 3
    s_mul_i32 s45, s45, {CH}
    s_and_b32 s41, s44, 7
    s_mul_i32 s41, s41, 1280
    s_add_u32 s45, s45, s41
    s_add_u32 s45, s45, {KV_OFF}
    s_mov_b32 s49, {HSK}
    s_mov_b32 s50, 1.0
Lk1_qk:
    s_and_b32 s41, s32, 1
    s_lshl_b32 s41, s41, 4
    s_lshl_b32 s51, s35, 5
    s_add_u32 s51, s51, s41
    v_lshrrev_b32 v13, 5, v2               ; hf
    v_and_b32 v3, 31, v2                   ; token
    v_lshlrev_b32 v14, 4, v3               ; token*16
    v_lshlrev_b32 v15, 3, v3
    v_add_u32 v15, 1024, v15               ; 1024 + token*8
    s_mov_b32 s51, s51
    v_mov_b32 v1, s50
    """)
    for ct in range(2):
        for a in range(4):
            A(f"""
            v_add_u32 v16, {8*ct + 2*a}, v13
            v_add_u32 v16, s51, v16
            v_mul_u32_u24 v17, 205, v16
            v_lshrrev_b32 v17, 10, v17             ; h = G/5
            v_mul_u32_u24 v18, 5, v17
            v_sub_u32 v18, v16, v18                ; j
            v_lshrrev_b32 v19, 1, v18
            v_lshlrev_b32 v19, 9, v19              ; (j>>1)*512
            v_and_b32 v20, 1, v18
            v_lshl_add_u32 v19, v20, 3, v19        ; + (j&1)*8
            v_add_u32 v19, v19, v14                ; + token*16
            v_cmp_eq_u32 vcc, 4, v18
            v_mul_lo_u32 v17, v17, s49
            s_nop 0
            v_cndmask_b32 v19, v19, v15, vcc
            v_add_u32 v19, v19, v17
            """)
            for rt in range(2):
                r = 64 + 16*(2*rt + ct) + 4*a
                t = 24 + 2*rt
                A(f"""
                v_mul_f32 v{r}, v1, v{r}
                v_mul_f32 v{r+1}, v1, v{r+1}
                v_mul_f32 v{r+2}, v1, v{r+2}
                v_mul_f32 v{r+3}, v1, v{r+3}
                v_cvt_pk_bf16_f32 v{t}, v{r}, v{r+1}
                v_cvt_pk_bf16_f32 v{t+1}, v{r+2}, v{r+3}
                buffer_store_dwordx2 v[{t}:{t+1}], v19, s[24:27], s45 offen offset:{rt*1280}
                """)
            A("s_nop 1")
    A("s_branch Lk1_end")

    A("Lk1_epiV:")
    A(f"""
    s_lshr_b32 s41, s32, 1
    s_lshl_b32 s41, s41, 1
    s_lshl_b32 s44, s34, 2
    s_add_u32 s44, s44, s41                ; T (rt'=0)
    s_lshr_b32 s45, s44, 3
    s_mul_i32 s45, s45, {CH}
    s_and_b32 s41, s44, 7
    s_mul_i32 s41, s41, 1344
    s_add_u32 s45, s45, s41
    s_add_u32 s45, s45, {KV_OFF + VPART}
    s_and_b32 s41, s32, 1
    s_lshl_b32 s41, s41, 6
    s_lshl_b32 s51, s35, 7
    s_add_u32 s51, s51, s41
    v_and_b32 v3, 31, v2
    v_lshrrev_b32 v13, 5, v2               ; hf
    v_mul_u32_u24 v14, 336, v13            ; hf*336
    s_mov_b32 s49, {HSK}
    v_mov_b32 v28, 0x3f803f80
    v_mov_b32 v29, 0x3f803f80
    v_mov_b32 v30, 0x3f803f80
    v_mov_b32 v31, 0x3f803f80
    """)
    for ct in range(2):
        A(f"""
        v_add_u32 v16, {32*ct}, v3
        v_add_u32 v16, s51, v16                ; c
        v_mul_u32_u24 v17, 3277, v16
        v_lshrrev_b32 v17, 16, v17             ; h
        v_mul_u32_u24 v18, 20, v17
        v_sub_u32 v18, v16, v18                ; dh
        v_mul_lo_u32 v17, v17, s49
        v_lshl_add_u32 v19, v18, 4, v17
        v_add_u32 v19, v19, v14                ; addr
        """)
        for rt in range(2):
            for j in range(2):
                r = 64 + 16*(2*rt + ct) + 8*j
                t = 32 + 4*(2*rt + j)
                for m in range(4):
                    A(f"v_cvt_pk_bf16_f32 v{t+m}, v{r+2*m}, v{r+2*m+1}")
                A(f"buffer_store_dwordx4 v[{t}:{t+3}], v19, s[24:27], s45 offen offset:{rt*1344 + j*672}")
        A(f"""
        v_cmp_eq_u32 vcc, 0, v18
        s_and_saveexec_b64 s[52:53], vcc
        s_cbranch_execz Lk1_noones{ct}
        buffer_store_dwordx4 v[28:31], v19, s[24:27], s45 offen offset:320
        buffer_store_dwordx4 v[28:31], v19, s[24:27], s45 offen offset:{320+672}
        buffer_store_dwordx4 v[28:31], v19, s[24:27], s45 offen offset:{320+1344}
        buffer_store_dwordx4 v[28:31], v19, s[24:27], s45 offen offset:{320+1344+672}
Lk1_noones{ct}:
        s_mov_b64 exec, s[52:53]
        """)
    A("s_branch Lk1_end")

    A("Lk1_epiF:")
    A(f"""
    s_lshr_b32 s41, s32, 1
    s_lshl_b32 s41, s41, 1
    s_lshl_b32 s44, s34, 2
    s_add_u32 s44, s44, s41                ; T (rt'=0)
    s_mul_i32 s45, s44, {96*1024}
    s_and_b32 s41, s32, 1
    s_lshl_b32 s41, s41, 2
    s_lshl_b32 s51, s35, 3
    s_add_u32 s41, s41, s51
    s_lshl_b32 s41, s41, 10
    s_add_u32 s45, s45, s41
    s_add_u32 s45, s45, {ACT_OFF}
    s_add_u32 s46, s45, {96*1024}          ; rt'=1
    v_lshlrev_b32 v13, 4, v2               ; lane*16
    s_mov_b32 s54, {f32bits(LOG2E):#x}
    s_mov_b32 s55, s54
    v_mov_b32 v2, 2.0
    v_mov_b32 v3, 2.0
    """)
    def mish8(r, t0):
        for p in range(4):
            A(f"v_pk_mul_f32 v[{t0+2*p}:{t0+2*p+1}], v[{r+2*p}:{r+2*p+1}], s[54:55]")
        for i in range(8):
            A(f"v_exp_f32 v{t0+i}, v{t0+i}")
        for p in range(4):
            A(f"v_pk_add_f32 v[{t0+8+2*p}:{t0+8+2*p+1}], v[{t0+2*p}:{t0+2*p+1}], v[2:3]")
        for p in range(4):
            A(f"v_pk_fma_f32 v[{t0+2*p}:{t0+2*p+1}], v[{t0+2*p}:{t0+2*p+1}], v[{t0+8+2*p}:{t0+8+2*p+1}], v[2:3]")
        for i in range(8):
            A(f"v_rcp_f32 v{t0+i}, v{t0+i}")
        A("s_nop 0")
        for p in range(4):
            A(f"v_pk_fma_f32 v[{t0+2*p}:{t0+2*p+1}], v[{t0+2*p}:{t0+2*p+1}], -2.0, 1.0 op_sel_hi:[1,0,0]")
        for p in range(4):
            A(f"v_pk_mul_f32 v[{r+2*p}:{r+2*p+1}], v[{r+2*p}:{r+2*p+1}], v[{t0+2*p}:{t0+2*p+1}]")
    k = 0
    for rt in range(2):
        for ct in range(2):
            for j in range(2):
                r = 64 + 16*(2*rt + ct) + 8*j
                mish8(r, 16)
                t = 32 + 4*(k & 3); k += 1
                for m in range(4):
                    A(f"v_cvt_pk_bf16_f32 v{t+m}, v{r+2*m}, v{r+2*m+1}")
                so = "s45" if rt == 0 else "s46"
                A(f"buffer_store_dwordx4 v[{t}:{t+3}], v13, s[24:27], {so} offen offset:{(2*ct + j)*1024}")
    A("Lk1_end:")
    A("s_endpgm")
    return A.text(), kdesc(NAME, 128), f"; @launch kernel={NAME} grid=({NJOBS},1,1) block=(256,1,1) lds=65536"
```

```python
from asm import *
from common import *

NAME = "k2_kernel"
SLOT = 24576

S_ = [16, 32]
P_ = 48
QM = 56
O_ = 64
QA = 80
QB = 84
KF = 88
KT = 92
V0 = 96
V1 = 100

def mf(d, a, b, c):
    cs = "0" if c is None else f"v[{c}:{c+15}]"
    return f"v_mfma_f32_32x32x16_bf16 v[{d}:{d+15}], v[{a}:{a+3}], v[{b}:{b+3}], {cs}"

def gen_k2(prio=True):
    A = Asm()
    A(khead(NAME))
    A(f"""
    s_cmp_ge_u32 s2, 256
    s_cbranch_scc1 Lk2_end
    s_load_dwordx2 s[4:5], s[0:1], 80
    v_lshrrev_b32 v9, 6, v0
    v_and_b32 v1, 63, v0                   ; lane
    s_and_b32 s20, s2, 7
    v_readfirstlane_b32 s12, v9            ; wave
    s_lshr_b32 s21, s2, 3
    s_and_b32 s22, s21, 3
    s_lshl_b32 s13, s20, 2
    s_add_u32 s13, s13, s22                ; h
    s_lshr_b32 s14, s21, 2                 ; qb
    s_lshl_b32 s15, s14, 3
    s_add_u32 s15, s15, s12                ; T
    s_mul_i32 s16, s13, {HSK}
    s_add_u32 s16, s16, {KV_OFF}
    s_mul_i32 s23, s13, {HSQ}
    s_mul_i32 s24, s15, 1280
    s_add_u32 s23, s23, s24
    s_add_u32 s23, s23, {QF_OFF}
    v_lshlrev_b32 v8, 4, v1                ; lane*16
    v_and_b32 v9, 31, v1
    v_lshrrev_b32 v10, 5, v1               ; hf
    v_lshlrev_b32 v11, 3, v9
    v_add_u32 v11, 1024, v11               ; 1024 + token*8
    s_waitcnt lgkmcnt(0)
    """)
    srd(A, 8, 4, WS_RECORDS)
    A(f"""
    buffer_load_dwordx4 v[{QM}:{QM+3}], v8, s[8:11], s23 offen
    buffer_load_dwordx2 v[12:13], v11, s[8:11], s23 offen
    s_mul_i32 s25, s12, 3072
    s_add_u32 s17, s16, s25
    """)
    def dma(slot_expr_is_sgpr, slot):
        for j in range(3):
            if slot_expr_is_sgpr:
                A(f"s_add_u32 m0, {slot}, {j*1024}")
            else:
                A(f"s_add_u32 m0, s25, {slot + j*1024}")
            A(f"s_add_u32 s26, s17, {j*1024}")
            A(f"buffer_load_dwordx4 v8, s[8:11], s26 offen lds")
        A(f"s_add_u32 s17, s17, {CH}")
    dma(False, 0)
    dma(False, SLOT)
    A(f"""
    v_cmp_gt_u32 s[28:29], 32, v1          ; lanes < 32
    v_mov_b32 v5, v8
    v_mul_u32_u24 v6, 1280, v10
    v_add_u32 v6, v6, v11
    v_mul_u32_u24 v7, 336, v10
    v_lshl_add_u32 v7, v9, 4, v7
    v_add_u32 v7, {VPART}, v7
    v_mov_b32 v2, v5
    v_mov_b32 v3, v6
    v_mov_b32 v4, v7
    v_mov_b32 v{KT+2}, 0x00003f80          ; (1.0, 0)
    v_mov_b32 v{KT+3}, 0
    v_mov_b32 v{V1}, 0
    v_mov_b32 v{V1+1}, 0
    v_mov_b32 v{V1+2}, 0
    v_mov_b32 v{V1+3}, 0
    """)
    for i in range(4): A(f"v_mov_b32 v{P_+4+i}, 0")
    for i in range(16): A(f"v_mov_b32 v{O_+i}, 0")
    A(f"""
    s_waitcnt vmcnt(6)
    v_cndmask_b32 v{QA}, 0, v12, s[28:29]
    v_cndmask_b32 v{QA+1}, 0, v13, s[28:29]
    v_mov_b32 v{QA+2}, 0
    v_mov_b32 v{QA+3}, 0
    v_cndmask_b32 v{QB}, v12, 0, s[28:29]
    v_cndmask_b32 v{QB+1}, v13, 0, s[28:29]
    v_mov_b32 v{QB+2}, 0
    v_mov_b32 v{QB+3}, 0
    s_waitcnt vmcnt(3)
    s_barrier
    ds_read_b128 v[{KF}:{KF+3}], v2
    ds_read_b64 v[{KT}:{KT+1}], v3
    ds_read_b128 v[{V0}:{V0+3}], v4
    s_waitcnt lgkmcnt(0)
    {mf(S_[0], KF, QM, None)}
    {mf(S_[0], KT, QA, S_[0])}
    s_nop 15
    """)
    s = S_[0]
    A(f"v_max3_f32 v9, v{s}, v{s+1}, v{s+2}")
    for i in range(3, 15, 2):
        A(f"v_max3_f32 v9, v9, v{s+i}, v{s+i+1}")
    A(f"v_max_f32 v9, v9, v{s+15}")
    A(f"""
    v_mov_b32 v10, v9
    s_nop 1
    v_permlane32_swap_b32 v9, v10
    s_nop 1
    v_max_f32 v9, v9, v10
    v_sub_f32 v9, 0, v9                    ; -m
    v_cvt_pk_bf16_f32 v9, v9, 0            ; (bf16(-m), 0)
    s_nop 0
    v_cndmask_b32 v{QA+2}, 0, v9, s[28:29]
    v_cndmask_b32 v{QB+2}, v9, 0, s[28:29]
    s_nop 1
    {mf(S_[0], KF, QM, None)}
    {mf(S_[0], KT, QA, S_[0])}
    ds_read_b128 v[{KF}:{KF+3}], v2 offset:1280
    s_mov_b32 s18, 0
    s_mov_b32 s19, {SLOT}
    s_mov_b32 s27, {2*SLOT}
    """)
    if prio:
        A("""
        s_cmp_ge_u32 s12, 4
        s_cbranch_scc0 Lk2_noprio
        s_setprio 1
Lk2_noprio:
        """)
    A("Lk2_loop:")
    for t in range(8):
        sc = S_[t & 1]; sn = S_[(t + 1) & 1]
        if t == 6:
            skip = A.label("k2skip")
            A(f"""
            s_waitcnt vmcnt(0)
            s_barrier
            v_add_u32 v2, s19, v5
            v_add_u32 v3, s19, v6
            s_cmp_lt_u32 s18, 6
            s_cbranch_scc0 {skip}
            s_add_u32 s30, s27, s25
            """)
            dma(True, "s30")
            A(f"{skip}:")
        koff = ((t + 2) & 7) * 1280
        A("s_waitcnt lgkmcnt(0)")
        A(mf(sn, KF, QM, None))
        A(f"ds_read_b128 v[{KF}:{KF+3}], v2 offset:{koff}")
        for i in range(4): A(f"v_exp_f32 v{sc+i}, v{sc+i}")
        A(mf(O_, V1, P_+4, O_))
        A(f"ds_read_b128 v[{V1}:{V1+3}], v4 offset:{t*1344 + 672}")
        if t == 7:
            A("v_add_u32 v4, s19, v7")
        A(f"v_cvt_pk_bf16_f32 v{P_}, v{sc}, v{sc+1}")
        A(f"v_exp_f32 v{sc+4}, v{sc+4}")
        A(f"v_cvt_pk_bf16_f32 v{P_+1}, v{sc+2}, v{sc+3}")
        for i in (5, 6, 7): A(f"v_exp_f32 v{sc+i}, v{sc+i}")
        A(mf(sn, KT, QB if ((t + 1) & 1) else QA, sn))
        if (t + 1) & 1:
            A(f"ds_read_b64 v[{KT}:{KT+1}], v3 offset:{koff}")
        A(f"v_cvt_pk_bf16_f32 v{P_+2}, v{sc+4}, v{sc+5}")
        A(f"v_exp_f32 v{sc+8}, v{sc+8}")
        A(f"v_cvt_pk_bf16_f32 v{P_+3}, v{sc+6}, v{sc+7}")
        A(f"v_exp_f32 v{sc+9}, v{sc+9}")
        A(f"v_exp_f32 v{sc+10}, v{sc+10}")
        A(mf(O_, V0, P_, O_))
        A(f"ds_read_b128 v[{V0}:{V0+3}], v4 offset:{((t+1)&7)*1344}")
        for i in (11, 12, 13): A(f"v_exp_f32 v{sc+i}, v{sc+i}")
        A(f"v_cvt_pk_bf16_f32 v{P_+4}, v{sc+8}, v{sc+9}")
        A(f"v_exp_f32 v{sc+14}, v{sc+14}")
        A(f"v_cvt_pk_bf16_f32 v{P_+5}, v{sc+10}, v{sc+11}")
        A(f"v_exp_f32 v{sc+15}, v{sc+15}")
        A(f"v_cvt_pk_bf16_f32 v{P_+6}, v{sc+12}, v{sc+13}")
        A(f"v_cvt_pk_bf16_f32 v{P_+7}, v{sc+14}, v{sc+15}")
    A(f"""
    s_mov_b32 s19, s27
    s_add_u32 s27, s27, {SLOT}
    s_cmp_ge_u32 s27, {3*SLOT}
    s_cselect_b32 s27, 0, s27
    s_add_u32 s18, s18, 1
    s_cmp_lt_u32 s18, 8
    s_cbranch_scc1 Lk2_loop
    s_waitcnt lgkmcnt(0)
    {mf(O_, V1, P_+4, O_)}
    s_mov_b32 s31, 0
    s_nop 15
Lk2_fin:
    v_mov_b32 v9, v{O_+8}
    v_mov_b32 v10, v{O_+8}
    s_nop 1
    v_permlane32_swap_b32 v9, v10
    s_nop 1
    v_mul_f32 v11, 0, v{O_}
    """)
    for i in range(1, 8): A(f"v_fma_f32 v11, v{O_+i}, 0, v11")
    A(f"v_mul_f32 v12, 0, v{O_+8}")
    for i in range(9, 12): A(f"v_fma_f32 v12, v{O_+i}, 0, v12")
    A(f"""
    v_cndmask_b32 v12, 0, v12, s[28:29]
    v_add_f32 v11, v11, v12
    v_add_f32 v11, v11, v10
    v_mov_b32 v13, 0x53800000              ; 2^40
    v_cmp_nlt_f32 vcc, v11, v13            ; !(l < 2^40)
    s_cmp_eq_u32 s31, 0
    s_cbranch_scc0 Lk2_store
    s_cbranch_vccnz Lk2_fallback
Lk2_store:
    v_rcp_f32 v10, v10
    s_mul_i32 s20, s13, 5
    s_mul_i32 s21, s15, 40960
    s_add_u32 s21, s21, {OF_OFF}
    v_lshrrev_b32 v11, 5, v1               ; hf
    v_and_b32 v12, 31, v1
    v_lshlrev_b32 v12, 4, v12              ; token*16
    v_add_u32 v11, s20, v11                ; G (a=0)
    """)
    for a in range(3):
        r = O_ + 4*a
        A(f"""
        v_add_u32 v13, {2*a}, v11
        v_lshrrev_b32 v14, 2, v13
        v_lshlrev_b32 v14, 10, v14
        v_bfe_u32 v15, v13, 1, 1
        v_lshl_add_u32 v14, v15, 9, v14
        v_and_b32 v15, 1, v13
        v_lshl_add_u32 v14, v15, 3, v14
        v_add_u32 v14, v14, v12
        v_mul_f32 v{r}, v{r}, v10
        v_mul_f32 v{r+1}, v{r+1}, v10
        v_mul_f32 v{r+2}, v{r+2}, v10
        v_mul_f32 v{r+3}, v{r+3}, v10
        v_cvt_pk_bf16_f32 v{r}, v{r}, v{r+1}
        v_cvt_pk_bf16_f32 v{r+1}, v{r+2}, v{r+3}
        """)
        if a == 2:
            A("s_mov_b64 exec, s[28:29]")
        A(f"buffer_store_dwordx2 v[{r}:{r+1}], v14, s[8:11], s21 offen")
    A("s_endpgm")

    A(f"""
Lk2_fallback:
    s_mov_b32 s31, 1
    v_mov_b32 v{QA+2}, 0
    v_and_b32 v9, 31, v1
    v_lshrrev_b32 v10, 5, v1
    v_lshlrev_b32 v11, 3, v9
    v_add_u32 v11, 1024, v11
    v_mul_u32_u24 v12, 336, v10
    v_lshl_add_u32 v12, v9, 4, v12
    v_add_u32 v12, {VPART}, v12
    v_mov_b32 v14, 0xff800000
    s_mov_b32 s18, 0
Lk2_fb1:
    s_lshr_b32 s20, s18, 3
    s_mul_i32 s20, s20, {CH}
    s_and_b32 s21, s18, 7
    s_mul_i32 s21, s21, 1280
    s_add_u32 s20, s20, s21
    s_add_u32 s20, s20, s16
    buffer_load_dwordx4 v[{KF}:{KF+3}], v8, s[8:11], s20 offen
    buffer_load_dwordx2 v[{KT}:{KT+1}], v11, s[8:11], s20 offen
    s_waitcnt vmcnt(0)
    {mf(S_[0], KF, QM, None)}
    {mf(S_[0], KT, QA, S_[0])}
    s_nop 15
    """)
    for i in range(0, 16, 2):
        A(f"v_max3_f32 v14, v14, v{s+i}, v{s+i+1}")
    A(f"""
    s_add_u32 s18, s18, 1
    s_cmp_lt_u32 s18, 64
    s_cbranch_scc1 Lk2_fb1
    v_mov_b32 v15, v14
    s_nop 1
    v_permlane32_swap_b32 v14, v15
    s_nop 1
    v_max_f32 v14, v14, v15
    """)
    for i in range(16): A(f"v_mov_b32 v{O_+i}, 0")
    A(f"""
    s_mov_b32 s18, 0
Lk2_fb2:
    s_lshr_b32 s20, s18, 3
    s_mul_i32 s20, s20, {CH}
    s_and_b32 s21, s18, 7
    s_mul_i32 s22, s21, 1344
    s_add_u32 s22, s22, s20
    s_add_u32 s22, s22, s16
    s_mul_i32 s21, s21, 1280
    s_add_u32 s20, s20, s21
    s_add_u32 s20, s20, s16
    buffer_load_dwordx4 v[{KF}:{KF+3}], v8, s[8:11], s20 offen
    buffer_load_dwordx2 v[{KT}:{KT+1}], v11, s[8:11], s20 offen
    buffer_load_dwordx4 v[{V0}:{V0+3}], v12, s[8:11], s22 offen
    buffer_load_dwordx4 v[{V1}:{V1+3}], v12, s[8:11], s22 offen offset:672
    s_waitcnt vmcnt(0)
    {mf(S_[0], KF, QM, None)}
    {mf(S_[0], KT, QA, S_[0])}
    s_nop 15
    """)
    for i in range(16): A(f"v_sub_f32 v{s+i}, v{s+i}, v14")
    for i in range(16): A(f"v_exp_f32 v{s+i}, v{s+i}")
    A("s_nop 0")
    for i in range(8): A(f"v_cvt_pk_bf16_f32 v{P_+i}, v{s+2*i}, v{s+2*i+1}")
    A(f"""
    s_nop 1
    {mf(O_, V0, P_, O_)}
    {mf(O_, V1, P_+4, O_)}
    s_add_u32 s18, s18, 1
    s_cmp_lt_u32 s18, 64
    s_cbranch_scc1 Lk2_fb2
    s_nop 15
    s_branch Lk2_fin
Lk2_end:
    s_endpgm
    """)
    return A.text(), kdesc(NAME, 104), f"; @launch kernel={NAME} grid=(256,1,1) block=(512,1,1) lds={3*SLOT}"
```

```python
from asm import *
from common import *

NAME = "k3_kernel"
NSL = 4
RING = NSL * 5120

ACC_A = 96
ACC_B = 176
WF = [16, 36]
BF = 56
DV = 72
TRA = 77
LA = 78
ZACC = 80

def gen_k3():
    A = Asm()
    A(khead(NAME))
    A(f"""
    s_cmp_ge_u32 s2, 256
    s_cbranch_scc1 Lk3_end
    s_load_dwordx2 s[4:5], s[0:1], 0       ; A_x
    s_load_dwordx2 s[6:7], s[0:1], 16      ; wo
    s_load_dwordx4 s[8:11], s[0:1], 48     ; w2, gate_w
    s_load_dwordx2 s[12:13], s[0:1], 64    ; out
    s_load_dwordx2 s[14:15], s[0:1], 80    ; ws
    v_lshrrev_b32 v2, 6, v0
    v_and_b32 v1, 63, v0                   ; lane
    s_and_b32 s41, s2, 7
    v_readfirstlane_b32 s40, v2            ; wave
    s_lshr_b32 s42, s2, 3
    s_and_b32 s43, s41, 3                  ; cg
    s_lshr_b32 s41, s41, 2
    s_lshl_b32 s41, s41, 5
    s_add_u32 s44, s41, s42                ; T
    s_waitcnt lgkmcnt(0)
    """)
    srd(A, 16, 4, X_BYTES)
    srd(A, 20, 6, WO_BYTES)
    srd(A, 24, 8, W2_BYTES)
    srd(A, 28, 10, GW_BYTES)
    srd(A, 32, 12, OUT_BYTES)
    srd(A, 36, 14, WS_RECORDS)
    A(f"""
    v_lshlrev_b32 v{LA}, 4, v1
    v_and_b32 v3, 31, v1                   ; token
    v_lshrrev_b32 v4, 5, v1                ; hf
    """)
    A(f"""
    s_lshl_b32 s45, s44, 5                 ; T*32
    v_add_u32 v5, s45, v3
    v_mul_u32_u24 v5, 1280, v5
    v_lshl_add_u32 v5, v4, 4, v5
    v_lshlrev_b32 v6, 4, v4                ; hf*16
    s_mul_i32 s46, s40, 320                ; w*160*2 bytes
    """)
    for ks in range(10):
        A(f"buffer_load_dwordx4 v[{ACC_B+4*ks}:{ACC_B+4*ks+3}], v5, s[16:19], s46 offen offset:{ks*32}")
    for ks in range(10):
        A(f"buffer_load_dwordx4 v[{ACC_B+40+4*ks}:{ACC_B+40+4*ks+3}], v6, s[28:31], s46 offen offset:{ks*32}")
    for q in range(5):
        A(f"""
        v_add_u32 v7, {64*q}, v1
        v_mul_u32_u24 v8, 3277, v7
        v_lshrrev_b32 v8, 16, v8               ; row
        v_mul_u32_u24 v9, 20, v8
        v_sub_u32 v9, v7, v9                   ; chunk
        v_mul_u32_u24 v8, 1280, v8
        v_lshl_add_u32 v{DV+q}, v9, 4, v8
        """)
    A(f"""
    v_bfe_u32 v7, v1, 2, 2                 ; r
    v_lshl_add_u32 v7, v4, 3, v7           ; 8hf + r
    v_mul_u32_u24 v7, 320, v7
    v_bfe_u32 v8, v1, 4, 1
    v_lshl_add_u32 v7, v8, 5, v7
    v_and_b32 v8, 3, v1
    v_lshrrev_b32 v9, 1, v8
    v_and_b32 v8, 1, v8
    v_lshl_or_b32 v8, v8, 1, v9            ; perm(c)
    v_lshl_add_u32 v7, v8, 3, v7
    s_mul_i32 s47, s40, {RING}
    v_add_u32 v{TRA}, s47, v7
    s_mul_i32 s48, s43, 320
    s_mul_i32 s49, s40, {160*1280}
    s_add_u32 s49, s49, s48
    s_mul_i32 s50, s40, {384*1280}
    s_add_u32 s50, s50, s48                ; w2 soffset
    s_mul_i32 s51, s44, 40960
    s_mul_i32 s52, s40, 10240
    s_add_u32 s51, s51, s52
    s_add_u32 s51, s51, {OF_OFF}
    s_mul_i32 s52, s44, {96*1024}
    s_mul_i32 s53, s40, {24*1024}
    s_add_u32 s52, s52, s53
    s_add_u32 s52, s52, {ACT_OFF}
    """)
    NK = 34
    def issue(k):
        sl = k % NSL
        if k < 10:
            wsrd, wso, bso, kk = "s[20:23]", "s49", "s51", k
        else:
            wsrd, wso, bso, kk = "s[24:27]", "s50", "s52", k - 10
        A(f"s_add_u32 s54, {wso}, {kk*16*1280}")
        for q in range(5):
            A(f"s_add_u32 m0, s47, {sl*5120 + q*1024}")
            A("s_nop 0")
            A(f"buffer_load_dwordx4 v{DV+q}, {wsrd}, s54 offen lds")
        A(f"s_add_u32 s55, {bso}, {kk*1024}")
        A(f"buffer_load_dwordx4 v[{BF+4*sl}:{BF+4*sl+3}], v{LA}, s[36:39], s55 offen")
    def trreads(k):
        sl = k % NSL
        b = WF[k & 1]
        for ct in range(5):
            A(f"ds_read_b64_tr_b16 v[{b+4*ct}:{b+4*ct+1}], v{TRA} offset:{sl*5120 + ct*64}")
            A(f"ds_read_b64_tr_b16 v[{b+4*ct+2}:{b+4*ct+3}], v{TRA} offset:{sl*5120 + 1280 + ct*64}")
    for k in range(3): issue(k)
    A("s_waitcnt vmcnt(18)")
    for ks in range(10):
        c = "0" if ks == 0 else f"v[{ZACC}:{ZACC+15}]"
        A(f"v_mfma_f32_32x32x16_bf16 v[{ZACC}:{ZACC+15}], v[{ACC_B+40+4*ks}:{ACC_B+40+4*ks+3}], v[{ACC_B+4*ks}:{ACC_B+4*ks+3}], {c}")
    for i in range(80): A(f"v_mov_b32 v{ACC_A+i}, 0")
    for i in range(80): A(f"v_mov_b32 v{ACC_B+i}, 0")
    A(f"""
    s_lshl_b32 s56, s40, 8
    s_add_u32 s56, s56, {4*RING}
    v_lshlrev_b32 v7, 2, v1
    v_add_u32 v7, s56, v7
    ds_write_b32 v7, v{ZACC}
    """)
    A("s_waitcnt vmcnt(12)")
    trreads(0)
    for k in range(NK):
        if k + 3 < NK: issue(k + 3)
        if k + 1 < NK:
            n = 6 * (min(k + 3, NK - 1) - (k + 1))
            A(f"s_waitcnt vmcnt({n})")
            trreads(k + 1)
            A("s_waitcnt lgkmcnt(10)")
        else:
            A("s_waitcnt lgkmcnt(0)")
        acc = ACC_A if k < 10 else ACC_B
        b = WF[k & 1]
        sl = k % NSL
        for ct in range(5):
            d = acc + 16*ct
            A(f"v_mfma_f32_32x32x16_bf16 v[{d}:{d+15}], v[{b+4*ct}:{b+4*ct+3}], v[{BF+4*sl}:{BF+4*sl+3}], v[{d}:{d+15}]")
    A(f"""
    s_barrier
    v_lshlrev_b32 v7, 2, v1
    v_add_u32 v7, {4*RING}, v7
    ds_read_b32 v8, v7
    ds_read_b32 v9, v7 offset:256
    ds_read_b32 v10, v7 offset:512
    ds_read_b32 v11, v7 offset:768
    s_waitcnt lgkmcnt(0)
    v_add_f32 v8, v8, v9
    v_add_f32 v10, v10, v11
    v_add_f32 v8, v8, v10
    v_mul_f32 v8, {f32bits(-LOG2E):#x}, v8
    v_exp_f32 v8, v8
    s_nop 0
    v_add_f32 v8, 1.0, v8
    v_rcp_f32 v8, v8                       ; g
    s_nop 7
    """)
    A(f"""
    s_mul_i32 s56, s40, 20480
    v_add_u32 v7, s56, v{LA}
    """)
    for g4 in range(20):
        for i in range(4):
            a_ = ACC_A + 4*g4 + i; b_ = ACC_B + 4*g4 + i
            A(f"v_sub_f32 v{a_}, v{a_}, v{b_}")
            A(f"v_fma_f32 v{a_}, v8, v{a_}, v{b_}")
        A(f"ds_write_b128 v7, v[{ACC_A+4*g4}:{ACC_A+4*g4+3}] offset:{g4*1024}")
    A(f"""
    s_waitcnt lgkmcnt(0)
    s_barrier
    v_add_u32 v5, s45, v3
    v_mul_u32_u24 v5, 1280, v5
    v_lshl_add_u32 v5, v4, 4, v5
    """)
    for it in range(3):
        skip = None
        if it == 2:
            skip = A.label("k3skip")
            A(f"s_cmp_lt_u32 s40, 2")
            A(f"s_cbranch_scc0 {skip}")
        A(f"""
        s_add_u32 s56, s40, {4*it}             ; G8
        s_lshl_b32 s57, s56, 11                ; G8*2048
        v_add_u32 v7, s57, v{LA}
        """)
        for p in range(4):
            A(f"ds_read_b128 v[{16+8*p}:{19+8*p}], v7 offset:{p*20480}")
            A(f"ds_read_b128 v[{20+8*p}:{23+8*p}], v7 offset:{p*20480 + 1024}")
        A("s_waitcnt lgkmcnt(0)")
        for i in range(8):
            A(f"v_add_f32 v{16+i}, v{16+i}, v{24+i}")
            A(f"v_add_f32 v{32+i}, v{32+i}, v{40+i}")
        for i in range(8):
            A(f"v_add_f32 v{16+i}, v{16+i}, v{32+i}")
        for m in range(4):
            A(f"v_cvt_pk_bf16_f32 v{48+4*it+m}, v{16+2*m}, v{17+2*m}")
        A(f"""
        s_lshl_b32 s57, s56, 5                 ; G8*16 cols*2B
        s_add_u32 s57, s57, s48                ; + cg*320
        buffer_store_dwordx4 v[{48+4*it}:{51+4*it}], v5, s[32:35], s57 offen
        """)
        if skip: A(f"{skip}:")
    A("Lk3_end:")
    A("s_endpgm")
    lds = 4*RING + 1024
    return A.text(), kdesc(NAME, 256), f"; @launch kernel={NAME} grid=(256,1,1) block=(256,1,1) lds={lds}"
```

```python
import sys, os
sys.path.insert(0, os.path.dirname(os.path.abspath(__file__)))
from k1 import gen_k1
from k2 import gen_k2
from k3 import gen_k3

HEADER = open("gated_mix__softmax_full_mha__dense_activation_mish__prompt.s.ref").read().split("; Override launch")[0]

def build(parts):
    launches = [p[2] for p in parts]
    s = HEADER + "\n".join(launches) + "\n"
    s += '.amdgcn_target "amdgcn-amd-amdhsa--gfx950"\n'
    for t, d, _ in parts:
        s += t + d
    return s

if __name__ == "__main__":
    out = sys.argv[1] if len(sys.argv) > 1 else "gated_mix__softmax_full_mha__dense_activation_mish__prompt.s"
    s = build([gen_k1(), gen_k2(), gen_k3()])
    open(out, "w").write(s)
    print("wrote", out, len(s))
```

```python
class Asm:
    def __init__(self):
        self.lines = []
        self._uid = 0
    def __call__(self, s):
        for l in s.strip("\n").split("\n"):
            l = l.strip()
            if not l:
                continue
            if l.endswith(":") or l.startswith(".") or l.startswith(";"):
                self.lines.append(l)
            else:
                self.lines.append("    " + l)
    def c(self, s):
        self.lines.append("    ; " + s)
    def label(self, base):
        self._uid += 1
        return f"L{base}_{self._uid}"
    def text(self):
        return "\n".join(self.lines) + "\n"

def vr(a, n=1):
    return f"v{a}" if n == 1 else f"v[{a}:{a+n-1}]"
def sr(a, n=1):
    return f"s{a}" if n == 1 else f"s[{a}:{a+n-1}]"

def srd(A, d, ptr, nbytes):
    A(f"s_mov_b32 s{d}, s{ptr}")
    A(f"s_and_b32 s{d+1}, s{ptr+1}, 0xffff")
    A(f"s_mov_b32 s{d+2}, {nbytes}")
    A(f"s_mov_b32 s{d+3}, 0x00020000")

def kdesc(name, vgpr, sgpr=102, accum=None):
    accum = accum if accum is not None else ((vgpr + 3) // 4) * 4
    return f""".section .rodata,"a"
.p2align 6
.amdhsa_kernel {name}
  .amdhsa_next_free_vgpr {vgpr}
  .amdhsa_next_free_sgpr {sgpr}
  .amdhsa_accum_offset {accum}
  .amdhsa_group_segment_fixed_size 0
  .amdhsa_kernarg_size 88
  .amdhsa_user_sgpr_count 2
  .amdhsa_user_sgpr_kernarg_segment_ptr 1
  .amdhsa_system_sgpr_workgroup_id_x 1
.end_amdhsa_kernel
.text
"""
def khead(name):
    return f""".text
.globl {name}
.p2align 8
.type {name},@function
{name}:
"""

DBG_OFF = 0x1800000
def prof_start(A):
    A("s_memtime s[92:93]")
    A("s_memrealtime s[94:95]")
def prof_end(A, kidx, wsrd, wave_sgpr, tmpv=(120, 121, 122, 123, 124), extra=None):
    a, b, c, d, e = tmpv
    lab = A.label("prof")
    A(f"""
    s_waitcnt lgkmcnt(0)
    s_memtime s[96:97]
    s_memrealtime s[98:99]
    s_waitcnt lgkmcnt(0)
    s_sub_u32 s96, s96, s92
    s_sub_u32 s98, s98, s94
    s_lshl_b32 s97, s2, 4
    s_add_u32 s97, s97, s{wave_sgpr}
    s_lshl_b32 s97, s97, 4
    s_add_u32 s97, s97, {DBG_OFF + kidx*0x20000}
    v_mov_b32 v{a}, s94
    v_mov_b32 v{b}, s96
    v_mov_b32 v{c}, s98
    v_mov_b32 v{d}, {extra if extra else 0}
    v_mov_b32 v{e}, 0
    s_mov_b64 exec, 1
    buffer_store_dwordx4 v[{a}:{d}], v{e}, s[{wsrd}:{wsrd+3}], s97 offen
    """)

def stamp(A, i):
    A("s_memtime s[88:89]")
    A("s_waitcnt lgkmcnt(0)")
    A(f"s_sub_u32 s{70+i}, s88, s92")
def dump_stamps(A, kidx, wsrd, wave_sgpr, n, tmp=16):
    A(f"""
    s_lshl_b32 s97, s2, 4
    s_add_u32 s97, s97, s{wave_sgpr}
    s_lshl_b32 s97, s97, 6
    s_add_u32 s97, s97, {DBG_OFF + 0x100000 + kidx*0x40000}
    v_mov_b32 v{tmp}, 0
    s_mov_b64 exec, 1
    """)
    for i in range(n):
        A(f"v_mov_b32 v{tmp+1}, s{70+i}")
        A(f"buffer_store_dword v{tmp+1}, v{tmp}, s[{wsrd}:{wsrd+3}], s97 offen offset:{4*i}")
        A("s_nop 1")

def wl_stamp(A, vreg, idx):
    A("s_memtime s[88:89]")
    A("s_waitcnt lgkmcnt(0)")
    A("s_sub_u32 s88, s88, s92")
    if isinstance(idx, int):
        A(f"v_writelane_b32 v{vreg}, s88, {idx}")
    else:
        A(f"s_mov_b32 m0, {idx}")
        A("s_nop 0")
        A(f"v_writelane_b32 v{vreg}, s88, m0")
def wl_dump(A, vreg, kidx, wsrd, wave_sgpr, tmp):
    A(f"""
    s_lshl_b32 s97, s2, 4
    s_add_u32 s97, s97, s{wave_sgpr}
    s_lshl_b32 s97, s97, 6
    s_add_u32 s97, s97, {DBG_OFF + 0x100000 + kidx*0x40000}
    s_mov_b64 exec, 0xffff
    v_mbcnt_lo_u32_b32 v{tmp}, -1, 0
    v_lshlrev_b32 v{tmp}, 2, v{tmp}
    buffer_store_dword v{vreg}, v{tmp}, s[{wsrd}:{wsrd+3}], s97 offen
    s_mov_b64 exec, -1
    """)

def touch(A, items, vz, vd0):
    for i, (srd_, off) in enumerate(items):
        if isinstance(off, int):
            if off == 0:
                A(f"buffer_load_dword v{vd0}, v{vz}, s[{srd_}:{srd_+3}], 0 offen")
            else:
                A(f"s_mov_b32 s99, {off}")
                A(f"buffer_load_dword v{vd0}, v{vz}, s[{srd_}:{srd_+3}], s99 offen")
        else:
            A(f"buffer_load_dword v{vd0}, v{vz}, s[{srd_}:{srd_+3}], {off} offen")
```

```python
from asm import *
from common import *

NAME = "k1_kernel"
SLOT = 45056
XO, WQO, W1O = 0, 16384, 32768
GATE_LDS = 3 * SLOT
LDS_BYTES = 3 * SLOT + 1280 + 256

def gen_k1(prof=False, mode=0, pf=0, rot=2, tlb=1, tl=0):
    ROT = rot
    A0 = Asm()
    class F:
        def __init__(s): s.inloop = False
        def __call__(s, l):
            for x in l.strip("\n").split("\n"):
                xs = x.strip()
                if s.inloop:
                    if mode == 1 and xs.startswith("buffer_load") : continue
                    if mode == 2 and (xs.startswith("v_mfma") or xs.startswith("ds_read")): continue
                    if mode == 3 and xs.startswith("v_mfma"): continue
                    if mode in (4, 6) and xs.startswith("s_barrier"): continue
                    if mode == 6 and xs.startswith("buffer_load"): continue
                    if mode == 5 and xs.startswith("ds_read"): continue
                    if mode == 7 and (xs.startswith("buffer_load") or xs.startswith("ds_read")): continue
                    if mode == 8 and (xs.startswith("buffer_load") or xs.startswith("ds_read") or xs.startswith("s_barrier")): continue
                    if mode == 10 and (xs.startswith("buffer_load") or xs.startswith("ds_read") or xs.startswith("s_barrier") or xs.startswith("s_add_u32 m0") or xs.startswith("s_add_u32 s48") or xs.startswith("s_nop 0") or xs.startswith("v_add_u32")): continue
                if xs.endswith("_loop:"): s.inloop = True
                if xs.startswith("s_cbranch_scc1") and xs.endswith("g_loop"): s.inloop = False
                A0(x)
        def label(s, b): return A0.label(b)
        def text(s): return A0.text()
    A = F()
    A(khead(NAME))
    A(f"""
    s_cmp_ge_u32 s2, 256
    s_cbranch_scc1 Lk1_exit
    """)
    if prof: prof_start(A)
    if tl: tl_start(A, 0)
    A(f"""
    s_load_dwordx4 s[4:7], s[0:1], 0       ; A_x, wqkv
    s_load_dwordx4 s[8:11], s[0:1], 32     ; w1, b1
    s_load_dwordx2 s[12:13], s[0:1], 56    ; gate_w
    s_load_dwordx2 s[14:15], s[0:1], 80    ; ws
    v_lshrrev_b32 v1, 6, v0
    v_and_b32 v2, 63, v0                   ; lane
    s_and_b32 s41, s2, 7                   ; xcd
    v_readfirstlane_b32 s32, v1
    s_lshr_b32 s42, s2, 3                  ; i
    s_and_b32 s43, s41, 1
    s_lshl_b32 s43, s43, 3
    s_and_b32 s44, s42, 7
    s_add_u32 s34, s43, s44                ; rb
    s_lshr_b32 s43, s41, 1
    s_lshl_b32 s43, s43, 2
    s_lshr_b32 s44, s42, 3
    s_add_u32 s35, s43, s44                ; cgp
    s_mul_i32 s45, s35, 52
    s_lshr_b32 s45, s45, 8                 ; cgp/5
    s_add_u32 s33, s45, 1
    s_mul_i32 s45, s45, 5
    s_sub_u32 s46, s35, s45                ; cbl (0..4)
    s_cmp_eq_u32 s35, 15
    s_cselect_b32 s33, 0, s33
    v_lshrrev_b32 v3, 3, v2
    v_mul_u32_u24 v3, 1280, v3
    v_and_b32 v13, 7, v2
    v_lshrrev_b32 v14, 4, v2               ; lane>>4
    v_xor_b32 v15, v13, v14
    v_lshl_add_u32 v10, v15, 4, v3         ; even u
    v_xor_b32 v15, 4, v15
    v_lshl_add_u32 v11, v15, 4, v3         ; odd u
    s_lshl_b32 s37, s34, 7                 ; rb*128
    s_lshl_b32 s41, s32, 4                 ; w*16 rows
    s_add_u32 s37, s37, s41
    s_mul_i32 s37, s37, 1280
    s_lshl_b32 s42, s32, 11
    s_lshr_b32 s57, s2, 3                  ; i
    s_and_b32 s78, s57, 7
    s_lshr_b32 s57, s57, 3
    s_lshl_b32 s57, s57, 1
    s_add_u32 s78, s78, s57
    s_mul_i32 s78, s78, {1 if ROT else 0}
    s_mov_b32 s56, 0
    s_mov_b32 s69, 0
    s_mov_b32 s58, s37
    s_mov_b32 s79, 0
    """)
    if ROT == 2:
        A("""
        s_cmp_ge_u32 s78, 10
        s_cselect_b32 s57, 10, 0
        s_sub_u32 s78, s78, s57
        s_mov_b32 s79, s78
        s_mov_b32 s69, s78
        s_lshl_b32 s57, s79, 7
        s_add_u32 s37, s58, s57
        """)
    A(f"""
    s_waitcnt lgkmcnt(0)
    """)
    if prof:
        A("s_memtime s[88:89]")
        A("s_waitcnt lgkmcnt(0)")
        A("s_sub_u32 s87, s88, s92")
    srd(A, 16, 4, X_BYTES)
    srd(A, 24, 14, WS_RECORDS)
    srd(A, 60, 6, WQKV_BYTES)
    srd(A, 64, 8, W1_BYTES)
    if tlb:
        A("s_cmp_eq_u32 s32, 0")
        A("s_cbranch_scc0 Lk1_notouch")
        srd(A, 28, 10, B1_BYTES)
        A("v_mov_b32 v3, 0")
        MB2 = 2 << 20
        touch(A, [(16, "s37"), (60, 0), (60, MB2), (64, 0), (28, 0)] + [(24, k*MB2) for k in range(7)] + [(24, G_OFF)], 3, 1)
        A("Lk1_notouch:")
    A(f"""
    s_cmp_ge_u32 s32, 8
    s_cbranch_scc1 Lk1_H
    s_cmp_ge_u32 s32, 4
    s_cbranch_scc1 Lk1_R
    """)

    def adv_group(ws):
        if ROT == 2:
            g = ["s_add_u32 s79, s79, 1", "s_cmp_eq_u32 s79, 10", "s_cselect_b32 s79, 0, s79", "s_lshl_b32 s57, s79, 7", "s_add_u32 s37, s58, s57"]
        else:
            g = ["s_add_u32 s56, s56, 1", "s_add_u32 s57, s56, s78", "s_sub_u32 s57, s57, 2", "s_and_b32 s57, s57, 7", "s_add_u32 s57, s57, 2",
                 "s_cmp_lt_u32 s56, 2", "s_cselect_b32 s79, s56, s57", "s_lshl_b32 s57, s79, 7", "s_add_u32 s37, s58, s57"]
        if ws:
            g += [f"s_mul_i32 s57, s79, {ws}", "s_add_u32 s38, s59, s57"]
        return g

    def x_dma(slot_sgpr):
        g = []
        for j in range(2):
            g.append([f"s_add_u32 m0, {slot_sgpr}, {j*1024}", f"s_add_u32 s48, s37, {j*10240}",
                      f"buffer_load_dwordx4 v{10 + j}, s[16:19], s48 offen lds"])
        return g

    def xfrag_addr(rowbase_expr_sgpr):
        A(f"""
        v_and_b32 v3, 31, v2                   ; token
        v_lshrrev_b32 v13, 5, v2               ; hf
        v_bfe_u32 v14, v2, 1, 3
        v_xor_b32 v14, v13, v14
        v_lshlrev_b32 v14, 4, v14
        v_lshl_add_u32 v14, v3, 7, v14
        v_add_u32 v56, {rowbase_expr_sgpr}, v14
        v_xor_b32 v57, 32, v56
        v_xor_b32 v58, 64, v56
        v_xor_b32 v59, 96, v56
        """)

    def set_slot(nw, sgpr):
        out = [f"v_add_u32 v{4+k}, {sgpr}, v{56+k}" for k in range(4)]
        out += [f"v_add_u32 v{8+k}, {sgpr}, v{60+k}" for k in range(nw)]
        return out

    def interleave(ms, others):
        n = len(ms)
        per = (len(others) + n - 1) // n
        k = 0
        for i, m in enumerate(ms):
            A(m)
            for grp in others[k:k+per]:
                for l in grp: A(l)
            k += per

    def kstep(ms, rd, extra, wait=True, skip_last=False):
        if wait: A("s_waitcnt lgkmcnt(0)")
        n = len(ms) - (1 if skip_last else 0)
        A(ms[0])
        for grp in rd:
            for l in grp: A(l)
        slots = max(1, n - 1)
        per = (len(extra) + slots - 1) // slots if extra else 0
        k = 0
        for i in range(1, n):
            A(ms[i])
            for grp in extra[k:k+per]:
                for l in grp: A(l)
            k += per
        for grp in extra[k:]:
            for l in grp: A(l)

    def loop(tag, nown, reads, mfmas, dma_groups, nw):
        A(f"s_waitcnt vmcnt({nown})")
        A("s_barrier")
        if prof:
            A("s_memtime s[90:91]")
            A("s_waitcnt lgkmcnt(0)")
            A("s_sub_u32 s90, s90, s92")
        for l in set_slot(nw, "0"): A(l)
        for l in reads(0, 0): A(l)
        A(f"s_mov_b32 s50, {SLOT}")
        A.inloop = True
        g = dma_groups()
        adv = g[-1]; g = g[:-1]
        parts = [[], [], [], []]
        for i, grp in enumerate(g): parts[i * 4 // len(g)].append(grp)
        R = lambda ks, fs: [[l] for l in reads(ks, fs)]
        rot = [["s_mov_b32 s51, s50", f"s_add_u32 s50, s50, {SLOT}", f"s_cmp_ge_u32 s50, {3*SLOT}", "s_cselect_b32 s50, 0, s50",
                "s_add_u32 s52, s51, s42", "s_add_u32 s53, s51, s43"]]
        A(f"s_add_u32 s52, s42, {2*SLOT}")
        A(f"s_add_u32 s53, s43, {2*SLOT}")
        kstep(mfmas(0), R(1, 1), parts[0] + parts[1])
        kstep(mfmas(1), R(2, 0), parts[2])
        kstep(mfmas(0), R(3, 1), parts[3] + [adv] + [["s_mov_b32 s52, s42", "s_mov_b32 s53, s43", "s_mov_b32 s40, 0"]], skip_last=True)
        def section(dma, vm, final=False):
            A(mfmas(0)[-1])
            A(f"s_waitcnt vmcnt({vm}) lgkmcnt(0)")
            A("s_barrier")
            if final:
                for m in mfmas(1): A(m)
                return
            rd = R(0, 0)
            rd[0] = set_slot(nw, "s50") + rd[0]
            P_ = parts if dma else [[], [], [], []]
            kstep(mfmas(1), rd, P_[0], wait=False)
            kstep(mfmas(0), R(1, 1), P_[1])
            kstep(mfmas(1), R(2, 0), P_[2])
            tail = (P_[3] + [adv] if dma else []) + rot
            if dma: tail = tail + [["s_add_u32 s40, s40, 1", "s_cmp_lt_u32 s40, 7"]]
            kstep(mfmas(0), R(3, 1), tail, skip_last=True)
        A(f"L{tag}_loop:")
        section(True, nown)
        A(f"s_cbranch_scc1 L{tag}_loop")
        section(False, nown)
        section(False, 0)
        section(False, 0, final=True)
        A.inloop = False
        A("s_nop 15")
        if prof:
            A("s_memtime s[88:89]")
            A("s_waitcnt lgkmcnt(0)")
            A("s_sub_u32 s91, s88, s92")

    A(f"""
    s_cmp_eq_u32 s33, 0
    s_cbranch_scc1 Lk1_gate
    """)
    srd(A, 20, 6, WQKV_BYTES)
    A(f"""
    s_mov_b32 s36, 3840
    v_and_b32 v13, 15, v2
    v_lshlrev_b32 v15, 2, v14
    v_xor_b32 v13, v13, v15
    v_mul_u32_u24 v15, 3840, v14
    v_lshl_add_u32 v12, v13, 4, v15
    s_mul_i32 s38, s32, {16*3840}          ; w*16 k-rows
    s_lshl_b32 s41, s35, 8                 ; cgp*128*2
    s_add_u32 s59, s38, s41
    s_mul_i32 s57, s79, {64*3840}
    s_add_u32 s38, s59, s57
    s_lshl_b32 s43, s32, 12
    s_add_u32 s43, s43, {WQO}
    """)
    def p_dma():
        g = x_dma("s52")
        for j in range(4):
            g.append([f"s_add_u32 m0, s53, {j*1024}",
                      (f"s_add_u32 s48, s38, {j*4*3840}"),
                      f"buffer_load_dwordx4 v12, s[20:23], s48 offen lds"])
        g.append(adv_group(64*3840))
        return g
    def stage_issue(st, dmaf):
        A(f"s_add_u32 s52, s42, {st*SLOT}")
        A(f"s_add_u32 s53, s43, {st*SLOT}")
        for grp in dmaf():
            for l in grp: A(l)
    if prof: wl_stamp(A, 63, 0)
    stage_issue(0, p_dma)
    if prof: wl_stamp(A, 63, 1)
    A("s_barrier")
    if prof: wl_stamp(A, 63, 2)
    LATE_P = True
    A("s_lshr_b32 s41, s32, 1")
    A("s_lshl_b32 s41, s41, 13")
    xfrag_addr("s41")
    A(f"""
    v_bfe_u32 v14, v2, 2, 2                ; r
    v_lshl_add_u32 v15, v13, 3, v14
    v_lshlrev_b32 v15, 8, v15
    v_bfe_u32 v3, v2, 4, 1
    v_lshl_add_u32 v15, v3, 5, v15
    v_and_b32 v3, 3, v2
    v_lshl_add_u32 v15, v3, 3, v15
    v_add_u32 v15, {WQO}, v15
    s_and_b32 s41, s32, 1
    s_lshl_b32 s41, s41, 1
    v_xor_b32 v3, s41, v14                 ; ct ^ r
    v_lshl_add_u32 v60, v3, 6, v15
    v_xor_b32 v3, 1, v3
    v_lshl_add_u32 v61, v3, 6, v15
    """)
    if prof: wl_stamp(A, 63, 3)
    stage_issue(1, p_dma)
    if prof: wl_stamp(A, 63, 4)
    for i in range(64): A(f"v_mov_b32 v{64+i}, 0")
    def p_reads(ks, fs):
        b = 16 + 16*fs
        return [
            f"ds_read_b128 v[{b}:{b+3}], v{4+ks}",
            f"ds_read_b64_tr_b16 v[{b+8}:{b+9}], v8 offset:{ks*4096}",
            f"ds_read_b64_tr_b16 v[{b+10}:{b+11}], v8 offset:{ks*4096 + 1024}",
            f"ds_read_b128 v[{b+4}:{b+7}], v{4+ks} offset:4096",
            f"ds_read_b64_tr_b16 v[{b+12}:{b+13}], v9 offset:{ks*4096}",
            f"ds_read_b64_tr_b16 v[{b+14}:{b+15}], v9 offset:{ks*4096 + 1024}",
        ]
    def p_mfmas(normal):
        def f(fs):
            b = 16 + 16*fs
            out = []
            for rt in range(2):
                for ct in range(2):
                    d = 64 + 16*(2*rt + ct)
                    x = f"v[{b+4*rt}:{b+4*rt+3}]"; w = f"v[{b+8+4*ct}:{b+8+4*ct+3}]"
                    a_, b_ = (x, w) if normal else (w, x)
                    out.append(f"v_mfma_f32_32x32x16_bf16 v[{d}:{d+15}], {a_}, {b_}, v[{d}:{d+15}]")
            return out
        return f
    A(f"""
    s_lshr_b32 s41, s32, 1
    s_lshl_b32 s41, s41, 1
    s_lshl_b32 s44, s34, 2
    s_add_u32 s44, s44, s41                ; T (rt'=0)
    s_cmp_eq_u32 s33, 3
    s_cbranch_scc1 Lk1_mainV
    s_cmp_eq_u32 s33, 1
    s_cbranch_scc0 Lk1_isK
    s_mul_i32 s68, s44, 1280
    s_add_u32 s68, s68, {QF_OFF}
    s_mov_b32 s49, {HSQ}
    s_mov_b32 s70, {f32bits(QSCALE):#x}
    s_branch Lk1_qk
Lk1_isK:
    s_lshr_b32 s68, s44, 3
    s_mul_i32 s68, s68, {CH}
    s_and_b32 s41, s44, 7
    s_mul_i32 s41, s41, 1280
    s_add_u32 s68, s68, s41
    s_add_u32 s68, s68, {KV_OFF}
    s_mov_b32 s49, {HSK}
    s_mov_b32 s70, 1.0
Lk1_qk:
    s_mov_b32 s71, s70
    s_and_b32 s41, s32, 1
    s_lshl_b32 s41, s41, 4
    s_lshl_b32 s55, s46, 5
    s_add_u32 s55, s55, s41                ; G0 base
    v_lshrrev_b32 v13, 5, v2               ; hf
    v_and_b32 v3, 31, v2                   ; token
    v_lshlrev_b32 v14, 4, v3
    v_lshlrev_b32 v15, 3, v3
    v_add_u32 v15, 1024, v15
    """)
    for ct in range(2):
        for a in range(4):
            d = 48 + 4*ct + a
            A(f"""
            v_add_u32 v16, {8*ct + 2*a}, v13
            v_add_u32 v16, s55, v16
            v_mul_u32_u24 v17, 205, v16
            v_lshrrev_b32 v17, 10, v17             ; h = G/5
            v_mul_u32_u24 v18, 5, v17
            v_sub_u32 v18, v16, v18                ; j
            v_lshrrev_b32 v19, 1, v18
            v_lshlrev_b32 v19, 9, v19
            v_and_b32 v20, 1, v18
            v_lshl_add_u32 v19, v20, 3, v19
            v_add_u32 v19, v19, v14
            v_cmp_eq_u32 vcc, 4, v18
            v_mul_lo_u32 v17, v17, s49
            s_nop 0
            v_cndmask_b32 v19, v19, v15, vcc
            v_add_u32 v{d}, v19, v17
            """)
    loop("k1T", 6, p_reads, p_mfmas(False), p_dma, 2)
    for ct in range(2):
        for a in range(4):
            for rt in range(2):
                r = 64 + 16*(2*rt + ct) + 4*a
                t = 16 + 2*((2*(4*ct + a) + rt) & 7)
                A(f"""
                v_pk_mul_f32 v[{r}:{r+1}], v[{r}:{r+1}], s[70:71]
                v_pk_mul_f32 v[{r+2}:{r+3}], v[{r+2}:{r+3}], s[70:71]
                v_cvt_pk_bf16_f32 v{t}, v{r}, v{r+1}
                v_cvt_pk_bf16_f32 v{t+1}, v{r+2}, v{r+3}
                buffer_store_dwordx2 v[{t}:{t+1}], v{48 + 4*ct + a}, s[24:27], s68 offen offset:{rt*1280}
                """)
    A("s_branch Lk1_end")
    A("Lk1_mainV:")
    A(f"""
    s_lshr_b32 s68, s44, 3
    s_mul_i32 s68, s68, {CH}
    s_and_b32 s41, s44, 7
    s_mul_i32 s41, s41, {VT}
    s_add_u32 s68, s68, s41
    s_add_u32 s68, s68, {KV_OFF + VPART}
    s_and_b32 s41, s32, 1
    s_lshl_b32 s41, s41, 6
    s_lshl_b32 s55, s46, 7
    s_add_u32 s55, s55, s41
    v_and_b32 v3, 31, v2
    v_lshrrev_b32 v13, 5, v2               ; hf
    v_mul_u32_u24 v14, {VH}, v13
    s_mov_b32 s49, {HSK}
    """)
    for ct in range(2):
        A(f"""
        v_add_u32 v16, {32*ct}, v3
        v_add_u32 v16, s55, v16                ; c
        v_mul_u32_u24 v17, 3277, v16
        v_lshrrev_b32 v17, 16, v17             ; h
        v_mul_u32_u24 v18, 20, v17
        v_sub_u32 v18, v16, v18                ; dh
        v_mul_lo_u32 v17, v17, s49
        v_lshl_add_u32 v19, v18, 4, v17
        v_add_u32 v{48+ct}, v19, v14
        v_cmp_eq_u32 s[{72+2*ct}:{73+2*ct}], 0, v18
        """)
    loop("k1N", 6, p_reads, p_mfmas(True), p_dma, 2)
    A(f"""
    v_mov_b32 v28, 0x3f803f80
    v_mov_b32 v29, 0x3f803f80
    v_mov_b32 v30, 0x3f803f80
    v_mov_b32 v31, 0x3f803f80
    v_mov_b32 v52, 0
    v_mov_b32 v53, 0
    v_mov_b32 v54, 0
    v_mov_b32 v55, 0
    """)
    for ct in range(2):
        for rt in range(2):
            for j in range(2):
                r = 64 + 16*(2*rt + ct) + 8*j
                t = 32 + 4*(2*rt + j)
                for m in range(4):
                    A(f"v_cvt_pk_bf16_f32 v{t+m}, v{r+2*m}, v{r+2*m+1}")
                A(f"buffer_store_dwordx4 v[{t}:{t+3}], v{48+ct}, s[24:27], s68 offen offset:{rt*VT + j*2*VH}")
        A(f"""
        s_mov_b64 exec, s[{72+2*ct}:{73+2*ct}]
        s_cbranch_execz Lk1_noones{ct}
        """)
        for rt in range(2):
            for j in range(2):
                A(f"buffer_store_dwordx4 v[28:31], v{48+ct}, s[24:27], s68 offen offset:{320 + rt*VT + j*2*VH}")
                A(f"buffer_store_dwordx4 v[52:55], v{48+ct}, s[24:27], s68 offen offset:{336 + rt*VT + j*2*VH}")
        A(f"""
Lk1_noones{ct}:
        s_mov_b64 exec, -1
        """)
    A("s_branch Lk1_end")

    A("Lk1_gate:")
    srd(A, 28, 12, GW_BYTES)
    A(f"""
    s_mul_i32 s41, s32, 320
    s_add_u32 m0, s41, {GATE_LDS}
    v_lshlrev_b32 v12, 4, v2
    v_cmp_gt_u32 vcc, 20, v2
    s_and_saveexec_b64 s[76:77], vcc
    buffer_load_dwordx4 v12, s[28:31], s41 offen lds
    s_mov_b64 exec, s[76:77]
    """)
    def g_dma():
        g = x_dma("s52")
        g.append(adv_group(0))
        return g
    for st in range(2):
        A(f"s_add_u32 s52, s42, {st*SLOT}")
        for grp in g_dma():
            for l in grp: A(l)
        if st == 0: A("s_barrier")
    A("s_lshl_b32 s41, s32, 12")
    xfrag_addr("s41")
    A(f"""
    v_lshlrev_b32 v9, 4, v13               ; hf*16
    v_add_u32 v62, {GATE_LDS}, v9
    s_lshl_b32 s57, s69, 7
    v_add_u32 v9, s57, v62
    v_mov_b32 v60, 0
    s_mov_b32 s43, 0
    """)
    for i in range(16): A(f"v_mov_b32 v{64+i}, 0")
    def g_reads(ks, fs):
        b = 16 + 16*fs
        out = [f"ds_read_b128 v[{b}:{b+3}], v{4+ks}", f"ds_read_b128 v[{b+4}:{b+7}], v9 offset:{ks*32}"]
        if ks == 3:
            if ROT == 2:
                out += ["s_add_u32 s69, s69, 1", "s_cmp_eq_u32 s69, 10", "s_cselect_b32 s69, 0, s69", "s_lshl_b32 s57, s69, 7", "v_add_u32 v9, s57, v62"]
            else:
                out += ["s_add_u32 s69, s69, 1", "s_add_u32 s57, s69, s78", "s_sub_u32 s57, s57, 2", "s_and_b32 s57, s57, 7", "s_add_u32 s57, s57, 2",
                        "s_cmp_lt_u32 s69, 2", "s_cselect_b32 s57, s69, s57", "s_lshl_b32 s57, s57, 7", "v_add_u32 v9, s57, v62"]
        return out
    def g_mfmas(fs):
        b = 16 + 16*fs
        return [f"v_mfma_f32_32x32x16_bf16 v[64:79], v[{b+4}:{b+7}], v[{b}:{b+3}], v[64:79]"]
    A(f"s_waitcnt vmcnt(2)")
    A("s_barrier")
    A(f"s_add_u32 s52, s42, {2*SLOT}")
    for grp in g_dma():
        for l in grp: A(l)
    if prof:
        A("s_mov_b32 s90, 0")
    for l in set_slot(0, "0"): A(l)
    for l in g_reads(0, 0): A(l)
    A("s_mov_b32 s40, 0")
    A(f"s_mov_b32 s50, {SLOT}")
    A("s_mov_b32 s51, 0")
    A("Lk1g_loop:")
    for ks in range(3):
        fs = ks & 1
        for l in g_reads(ks + 1, fs ^ 1): A(l)
        A("s_waitcnt lgkmcnt(2)")
        for l in g_mfmas(fs): A(l)
    A(f"""
    s_cmp_lt_u32 s40, 8
    s_cbranch_scc1 Lk1g_a
    s_waitcnt vmcnt(0)
Lk1g_a:
    s_waitcnt vmcnt(2) lgkmcnt(0)
    s_barrier
    """)
    for l in set_slot(0, "s50"): A(l)
    for l in g_mfmas(1): A(l)
    for l in g_reads(0, 0): A(l)
    A(f"""
    s_cmp_lt_u32 s40, 7
    s_cbranch_scc0 Lk1g_b
    s_add_u32 s52, s51, s42
    """)
    for grp in g_dma():
        for l in grp: A(l)
    A(f"""
Lk1g_b:
    s_mov_b32 s51, s50
    s_add_u32 s50, s50, {SLOT}
    s_cmp_ge_u32 s50, {3*SLOT}
    s_cselect_b32 s50, 0, s50
    s_add_u32 s40, s40, 1
    s_cmp_lt_u32 s40, 10
    s_cbranch_scc1 Lk1g_loop
    s_waitcnt lgkmcnt(0)
    s_nop 15
    v_mul_f32 v16, {f32bits(-LOG2E):#x}, v64
    v_exp_f32 v16, v16
    s_nop 0
    v_add_f32 v16, 1.0, v16
    v_rcp_f32 v16, v16
    s_lshl_b32 s44, s34, 2
    s_add_u32 s44, s44, s32                ; T
    s_lshl_b32 s44, s44, 7                 ; *32*4 bytes
    s_add_u32 s44, s44, {G_OFF}
    v_lshlrev_b32 v17, 2, v2
    v_cmp_gt_u32 vcc, 32, v2
    s_and_saveexec_b64 s[76:77], vcc
    buffer_store_dword v16, v17, s[24:27], s44 offen
    s_mov_b64 exec, s[76:77]
    s_branch Lk1_end
    """)

    A("Lk1_R:")
    if prof:
        A("v_writelane_b32 v61, s87, 8")
        wl_stamp(A, 61, 9)
    srd(A, 20, 8, W1_BYTES)
    srd(A, 28, 10, B1_BYTES)
    A(f"""
    s_sub_u32 s47, s32, 4
    s_mul_i32 s41, s35, 192
    v_lshrrev_b32 v3, 5, v2
    v_lshlrev_b32 v3, 4, v3
    """)
    if prof: wl_stamp(A, 61, 12)
    A(f"""
    buffer_load_dwordx4 v[112:115], v3, s[28:31], s41 offen
    """)
    if prof: wl_stamp(A, 61, 13)
    A(f"""
    buffer_load_dwordx4 v[116:119], v3, s[28:31], s41 offen offset:32
    buffer_load_dwordx4 v[120:123], v3, s[28:31], s41 offen offset:64
    buffer_load_dwordx4 v[124:127], v3, s[28:31], s41 offen offset:96
    buffer_load_dwordx4 v[48:51], v3, s[28:31], s41 offen offset:128
    buffer_load_dwordx4 v[52:55], v3, s[28:31], s41 offen offset:160
    """)
    if prof: wl_stamp(A, 61, 14)
    for j, reg in enumerate((12, 62, 63)):
        A(f"""
        s_mul_i32 s41, s47, 192
        s_add_u32 s41, s41, {64*j}
        v_add_u32 v13, s41, v2                 ; t
        v_mul_u32_u24 v14, 5462, v13
        v_lshrrev_b32 v14, 16, v14             ; t/12
        v_mul_u32_u24 v15, 12, v14
        v_sub_u32 v15, v13, v15
        v_mul_u32_u24 v14, 3072, v14
        v_lshl_add_u32 v{reg}, v15, 4, v14
        """)
    A(f"""
    s_mul_i32 s59, s35, 192
    s_mul_i32 s57, s79, {64*3072}
    s_add_u32 s38, s59, s57
    s_mul_i32 s43, s47, 3072
    s_add_u32 s43, s43, {W1O}
    """)
    def r_dma():
        g = x_dma("s52")
        for j, reg in enumerate((12, 62, 63)):
            g.append([f"s_add_u32 m0, s53, {j*1024}", "s_nop 0",
                      f"buffer_load_dwordx4 v{reg}, s[20:23], s38 offen lds"])
        g.append(adv_group(64*3072))
        return g
    def r_stage(st):
        A(f"s_add_u32 s52, s42, {st*SLOT}")
        A(f"s_add_u32 s53, s43, {st*SLOT}")
        for grp in r_dma():
            for l in grp: A(l)
    if prof: wl_stamp(A, 61, 0)
    r_stage(0)
    if prof: wl_stamp(A, 61, 1)
    A("s_barrier")
    A("s_lshl_b32 s41, s47, 12")
    xfrag_addr("s41")
    A(f"""
    v_bfe_u32 v14, v2, 2, 2
    v_lshl_add_u32 v15, v13, 3, v14
    v_mul_u32_u24 v15, 192, v15
    v_bfe_u32 v3, v2, 4, 1
    v_lshl_add_u32 v15, v3, 5, v15
    v_and_b32 v3, 3, v2
    v_lshrrev_b32 v1, 1, v3
    v_and_b32 v3, 1, v3
    v_lshl_or_b32 v3, v3, 1, v1
    v_lshl_add_u32 v15, v3, 3, v15
    v_add_u32 v60, {W1O}, v15
    """)
    if prof: wl_stamp(A, 61, 2)
    r_stage(1)
    if prof: wl_stamp(A, 61, 3)
    A("s_waitcnt vmcnt(10)")
    if prof:
        wl_stamp(A, 61, 4)
    bsrc = [112, 116, 120, 124, 48, 52]
    for ct in range(3):
        for half in range(2):
            for m in range(4):
                src = bsrc[2*ct + half] + m
                d = 64 + 16*ct + 8*half + 2*m
                A(f"v_lshlrev_b32 v{d}, 16, v{src}")
                A(f"v_and_b32 v{d+1}, 0xffff0000, v{src}")
    def r_reads(ks, fs):
        b = 16 + 16*fs
        out = [f"ds_read_b128 v[{b}:{b+3}], v{4+ks}"]
        for ct in range(3):
            out.append(f"ds_read_b64_tr_b16 v[{b+4+4*ct}:{b+5+4*ct}], v8 offset:{ks*16*192 + ct*64}")
            out.append(f"ds_read_b64_tr_b16 v[{b+6+4*ct}:{b+7+4*ct}], v8 offset:{ks*16*192 + 4*192 + ct*64}")
        return out
    def r_mfmas(fs):
        b = 16 + 16*fs
        return [f"v_mfma_f32_32x32x16_bf16 v[{64+16*ct}:{64+16*ct+15}], v[{b+4+4*ct}:{b+7+4*ct}], v[{b}:{b+3}], v[{64+16*ct}:{64+16*ct+15}]" for ct in range(3)]
    loop("k1R", 5, r_reads, r_mfmas, r_dma, 1)
    A(f"""
    s_lshl_b32 s44, s34, 2
    s_add_u32 s44, s44, s47                ; T
    s_mul_i32 s45, s44, {96*1024}
    s_mul_i32 s41, s35, {6*1024}
    s_add_u32 s45, s45, s41
    s_add_u32 s45, s45, {ACT_OFF}
    s_add_u32 s46, s45, 4096
    v_lshlrev_b32 v13, 4, v2               ; lane*16
    s_mov_b32 s54, {f32bits(LOG2E):#x}
    s_mov_b32 s55, s54
    v_mov_b32 v2, 2.0
    v_mov_b32 v3, 2.0
    """)
    def mish8(r, t0):
        for p in range(4):
            A(f"v_pk_mul_f32 v[{t0+2*p}:{t0+2*p+1}], v[{r+2*p}:{r+2*p+1}], s[54:55]")
        for i in range(8):
            A(f"v_exp_f32 v{t0+i}, v{t0+i}")
        for p in range(4):
            A(f"v_pk_add_f32 v[{t0+8+2*p}:{t0+8+2*p+1}], v[{t0+2*p}:{t0+2*p+1}], v[2:3]")
        for p in range(4):
            A(f"v_pk_fma_f32 v[{t0+2*p}:{t0+2*p+1}], v[{t0+2*p}:{t0+2*p+1}], v[{t0+8+2*p}:{t0+8+2*p+1}], v[2:3]")
        for i in range(8):
            A(f"v_rcp_f32 v{t0+i}, v{t0+i}")
        A("s_nop 0")
        for p in range(4):
            A(f"v_pk_fma_f32 v[{t0+2*p}:{t0+2*p+1}], v[{t0+2*p}:{t0+2*p+1}], -2.0, 1.0 op_sel_hi:[1,0,0]")
        for p in range(4):
            A(f"v_pk_mul_f32 v[{r+2*p}:{r+2*p+1}], v[{r+2*p}:{r+2*p+1}], v[{t0+2*p}:{t0+2*p+1}]")
    k = 0
    for ct in range(3):
        for j in range(2):
            r = 64 + 16*ct + 8*j
            mish8(r, 16)
            t = 32 + 4*(k & 3); k += 1
            for m in range(4):
                A(f"v_cvt_pk_bf16_f32 v{t+m}, v{r+2*m}, v{r+2*m+1}")
            o = (2*ct + j)*1024
            so, o = ("s45", o) if o < 4096 else ("s46", o - 4096)
            A(f"buffer_store_dwordx4 v[{t}:{t+3}], v13, s[24:27], {so} offen offset:{o}")
    A("s_branch Lk1_end")
    A("Lk1_H:")
    if pf:
        A(f"""
        s_and_b32 s41, s2, 7
        s_and_b32 s43, s41, 1                  ; rh
        s_lshr_b32 s44, s41, 1                 ; cq
        s_lshr_b32 s45, s2, 3                  ; i
        v_mov_b32 v13, 0x7ffffff0
        s_lshl_b32 s46, s43, 10
        s_lshl_b32 s47, s45, 5
        s_add_u32 s46, s46, s47
        v_add_u32 v3, s46, v2
        v_mul_u32_u24 v3, 1280, v3
        v_cmp_gt_u32 vcc, 32, v2
        s_nop 1
        v_cndmask_b32 v4, v13, v3, vcc
        v_lshrrev_b32 v3, 3, v2
        s_lshl_b32 s47, s45, 1
        v_add_u32 v3, s47, v3
        v_mul_u32_u24 v3, 3840, v3
        v_and_b32 v5, 7, v2
        v_lshlrev_b32 v5, 7, v5
        s_lshl_b32 s48, s44, 10
        v_add_u32 v5, s48, v5
        v_cmp_gt_u32 vcc, 3840, v5
        v_add_u32 v5, v5, v3
        v_cmp_gt_u32 s[50:51], 16, v2
        s_and_b64 vcc, vcc, s[50:51]
        s_nop 1
        v_cndmask_b32 v5, v13, v5, vcc
        ; W1: lanes<12: (2i + lane/6)*3072 + cq*768 + (lane%6)*128
        v_cmp_lt_u32 vcc, 5, v2
        v_mov_b32 v6, 0
        v_mov_b32 v7, 1
        v_cndmask_b32 v3, v6, v7, vcc
        v_mul_u32_u24 v6, 6, v3
        v_sub_u32 v6, v2, v6
        v_lshlrev_b32 v6, 7, v6
        v_add_u32 v3, s47, v3
        v_mul_u32_u24 v3, 3072, v3
        v_add_u32 v6, v6, v3
        s_mul_i32 s48, s44, 768
        v_add_u32 v6, s48, v6
        v_cmp_gt_u32 vcc, 12, v2
        s_nop 1
        v_cndmask_b32 v6, v13, v6, vcc
        s_barrier
        """)
        for st in range(1, 10):
            A(f"s_mov_b32 s46, {st*128}")
            A(f"buffer_load_dword v{16+3*st}, v4, s[16:19], s46 offen")
            A(f"s_mov_b32 s47, {st*64*3840}")
            A(f"buffer_load_dword v{17+3*st}, v5, s[60:63], s47 offen")
            A(f"s_mov_b32 s48, {st*64*3072}")
            A(f"buffer_load_dword v{18+3*st}, v6, s[64:67], s48 offen")
    for i in range(11): A("s_barrier")
    A("s_endpgm")
    A("Lk1_end:")
    if prof:
        A("s_memtime s[88:89]")
        A("s_waitcnt lgkmcnt(0)")
        A("s_sub_u32 s88, s88, s92")
        A("s_cmp_ge_u32 s32, 4")
        A("s_cbranch_scc1 Lk1_dbgR")
        A("v_mov_b32 v61, v63")
        A("Lk1_dbgR:")
        A("v_writelane_b32 v61, s88, 11")
        A("v_writelane_b32 v61, s91, 10")
        A(f"""
        s_lshl_b32 s97, s2, 4
        s_add_u32 s97, s97, s32
        s_lshl_b32 s97, s97, 6
        s_add_u32 s97, s97, {DBG_OFF + 0x100000}
        v_and_b32 v4, 63, v0
        v_lshlrev_b32 v4, 2, v4
        v_cmp_gt_u32 vcc, 16, v0
        v_and_b32 v5, 63, v0
        v_cmp_gt_u32 vcc, 16, v5
        s_and_saveexec_b64 s[56:57], vcc
        buffer_store_dword v61, v4, s[24:27], s97 offen
        s_mov_b64 exec, s[56:57]
        """)
        prof_end(A, 0, 24, 32, tmpv=(4, 5, 6, 7, 8), extra="s90")
    if tl: tl2_record(A, 0, 24, 32)
    A("Lk1_exit:")
    A("s_endpgm")
    return A.text(), kdesc(NAME, 128), f"; @launch kernel={NAME} grid=(256,1,1) block=({576 if pf else 512},1,1) lds={LDS_BYTES}"
```

```python
from asm import *
from common import *

NAME = "k2_kernel"
SLOT = 24576

S_ = [16, 32]
P_ = 48
QM = 56
O_ = 64
QA = 80
QB = 84
KF = 88
KT = 92
V0 = 96
V1 = 100

def mf(d, a, b, c):
    cs = "0" if c is None else f"v[{c}:{c+15}]"
    return f"v_mfma_f32_32x32x16_bf16 v[{d}:{d+15}], v[{a}:{a+3}], v[{b}:{b+3}], {cs}"

NSL = 4
RING = NSL * 5120
SH_ACC = 80
SH_WF = [16, 36]
SH_BF = 56
SH_DV = 72
SH_TRA = 77
SH_LA = 78

def gen_shadow(A_, prof, shprio=3, shmode=0):
    class G:
        def __call__(s, l):
            for x in l.strip("\n").split("\n"):
                xs = x.strip()
                if shmode == 1 and xs.startswith("v_mfma"): continue
                if shmode == 2 and (xs.startswith("buffer_load_dwordx4") or xs.startswith("ds_read_b64_tr")): continue
                if shmode == 3 and xs.startswith("ds_read_b64_tr"): continue
                if shmode == 4 and (xs.startswith("v_mfma") or xs.startswith("ds_read_b64_tr")): continue
                A_(x)
        def label(s, b): return A_.label(b)
    A = G()
    base = 3 * SLOT
    A(f"""
Lk2_shadow:
    s_setprio {shprio}
    s_sub_u32 s40, s12, 8                  ; w
    s_and_b32 s41, s2, 7
    s_lshr_b32 s42, s2, 3
    s_lshr_b32 s43, s41, 1
    s_lshl_b32 s43, s43, 4
    s_lshr_b32 s44, s42, 1
    s_add_u32 s44, s44, s43                ; T
    s_and_b32 s43, s41, 1
    s_lshl_b32 s43, s43, 1
    s_and_b32 s42, s42, 1
    s_add_u32 s43, s43, s42                ; cg
    s_mul_i32 s48, s43, 320
    v_lshlrev_b32 v{SH_LA}, 4, v1
    v_and_b32 v3, 31, v1                   ; token
    v_lshrrev_b32 v4, 5, v1                ; hf
    """)
    for q in range(5):
        A(f"""
        v_add_u32 v7, {64*q}, v1
        v_mul_u32_u24 v8, 3277, v7
        v_lshrrev_b32 v8, 16, v8
        v_mul_u32_u24 v9, 20, v8
        v_sub_u32 v9, v7, v9
        v_mul_u32_u24 v8, 1280, v8
        v_lshl_add_u32 v{SH_DV+q}, v9, 4, v8
        """)
    A(f"""
    v_bfe_u32 v7, v1, 2, 2
    v_lshl_add_u32 v7, v4, 3, v7
    v_mul_u32_u24 v7, 320, v7
    v_bfe_u32 v8, v1, 4, 1
    v_lshl_add_u32 v7, v8, 5, v7
    v_and_b32 v8, 3, v1
    v_lshrrev_b32 v9, 1, v8
    v_and_b32 v8, 1, v8
    v_lshl_or_b32 v8, v8, 1, v9
    v_lshl_add_u32 v7, v8, 3, v7
    s_mul_i32 s47, s40, {RING}
    s_add_u32 s47, s47, {base}
    v_add_u32 v{SH_TRA}, s47, v7
    s_mul_i32 s50, s40, {384*1280}
    s_add_u32 s50, s50, s48                ; w2 soffset
    s_mul_i32 s52, s44, {96*1024}
    s_mul_i32 s53, s40, {24*1024}
    s_add_u32 s52, s52, s53
    s_add_u32 s52, s52, {ACT_OFF}
    s_waitcnt lgkmcnt(0)
    """)
    srd(A, 8, 4, WS_RECORDS)
    srd(A, 24, 6, W2_BYTES)
    srd(A, 28, 62, WO_BYTES) if False else None
    A("s_load_dwordx2 s[30:31], s[0:1], 16")
    A("s_waitcnt lgkmcnt(0)")
    A("s_mov_b32 s28, s30")
    A("s_and_b32 s29, s31, 0xffff")
    A(f"s_mov_b32 s30, {WO_BYTES}")
    A("s_mov_b32 s31, 0x00020000")
    NK = 24
    def issue(k):
        sl = k % NSL
        A(f"s_add_u32 s54, s50, {k*16*1280}")
        for q in range(5):
            A(f"s_add_u32 m0, s47, {sl*5120 + q*1024}")
            A("s_nop 0")
            A(f"buffer_load_dwordx4 v{SH_DV+q}, s[24:27], s54 offen lds")
        A(f"s_add_u32 s55, s52, {k*1024}")
        A(f"buffer_load_dwordx4 v[{SH_BF+4*sl}:{SH_BF+4*sl+3}], v{SH_LA}, s[8:11], s55 offen")
    def trreads(k):
        sl = k % NSL
        b = SH_WF[k & 1]
        for ct in range(5):
            A(f"ds_read_b64_tr_b16 v[{b+4*ct}:{b+4*ct+1}], v{SH_TRA} offset:{sl*5120 + ct*64}")
            A(f"ds_read_b64_tr_b16 v[{b+4*ct+2}:{b+4*ct+3}], v{SH_TRA} offset:{sl*5120 + 1280 + ct*64}")
    for i in range(80): A(f"v_mov_b32 v{SH_ACC+i}, 0")
    A("s_barrier")
    skipwo = A.label("skipwo")
    A(f"""
    s_lshl_b32 s56, s2, 2
    s_add_u32 s56, s56, s40                ; j
    s_cmp_ge_u32 s56, 800
    s_cbranch_scc1 {skipwo}
    s_mul_i32 s57, s56, 656
    s_lshr_b32 s57, s57, 16                ; cg8 = j/100
    s_mul_i32 s58, s57, 100
    s_sub_u32 s58, s56, s58                ; r
    s_mul_i32 s59, s58, 205
    s_lshr_b32 s59, s59, 10                ; ks = r/5
    s_mul_i32 s60, s59, 5
    s_sub_u32 s60, s58, s60                ; ct
    s_mul_i32 s61, s57, 160
    s_lshl_b32 s62, s60, 5
    s_add_u32 s61, s61, s62
    s_mul_i32 s62, s59, {32*1280}
    s_add_u32 s61, s61, s62
    v_and_b32 v7, 15, v1
    v_lshrrev_b32 v8, 4, v1                ; g
    v_mul_u32_u24 v8, {4*1280}, v8
    v_lshl_add_u32 v7, v7, 1, v8           ; g*4 rows + i*2
    """)
    for j in range(8):
        roff = (j if j < 4 else 16 + j - 4) * 1280
        A(f"s_add_u32 s62, s61, {roff}")
        A(f"buffer_load_ushort v{16+j}, v7, s[28:31], s62 offen")
    A("s_waitcnt vmcnt(0)")
    for m in range(4):
        A(f"v_lshl_or_b32 v{24+m}, v{17+2*m}, 16, v{16+2*m}")
    A(f"""
    s_lshl_b32 s62, s56, 10
    s_add_u32 s62, s62, {WOF_OFF}
    buffer_store_dwordx4 v[24:27], v{SH_LA}, s[8:11], s62 offen
    {skipwo}:
    """)
    for k in range(3): issue(k)
    extra = 1
    sched = [0, 3, 4, 3, 4, 3, 4, 3]
    bounds = []
    acc = 0
    for n in sched:
        acc += n; bounds.append(acc)
    if prof: wl_stamp(A, 165, 0)
    A("s_barrier")
    if prof: wl_stamp(A, 165, 1)
    nb = [2]
    A("s_waitcnt vmcnt(12)")
    trreads(0)
    for k in range(NK):
        if k + 3 < NK: issue(k + 3)
        if k + 1 < NK:
            n = 6 * (min(k + 3, NK - 1) - (k + 1))
            A(f"s_waitcnt vmcnt({n})")
            trreads(k + 1)
            A("s_waitcnt lgkmcnt(10)")
        else:
            A("s_waitcnt lgkmcnt(0)")
        b = SH_WF[k & 1]; sl = k % NSL
        for ct in range(5):
            d = SH_ACC + 16*ct
            A(f"v_mfma_f32_32x32x16_bf16 v[{d}:{d+15}], v[{b+4*ct}:{b+4*ct+3}], v[{SH_BF+4*sl}:{SH_BF+4*sl+3}], v[{d}:{d+15}]")
        if (k + 1) in bounds and k + 1 < NK:
            if prof: wl_stamp(A, 165, nb[0])
            A("s_barrier")
            if prof: wl_stamp(A, 165, nb[0] + 1)
            nb[0] += 2
    A("s_nop 15")
    A(f"v_add_u32 v7, s47, v{SH_LA}")
    for g4 in range(20):
        A(f"ds_write_b128 v7, v[{SH_ACC+4*g4}:{SH_ACC+4*g4+3}] offset:{g4*1024}")
    A("s_waitcnt lgkmcnt(0)")
    if prof: wl_stamp(A, 165, 14)
    A("s_barrier")
    if prof: wl_stamp(A, 165, 15)
    A(f"""
    s_mul_i32 s45, s44, {2*8*2560}
    s_add_u32 s58, s45, {BP_OFF}
    v_lshrrev_b32 v5, 4, v3
    v_mul_u32_u24 v5, {8*2560}, v5
    v_and_b32 v6, 15, v3
    v_lshl_add_u32 v5, v6, 3, v5
    s_mul_i32 s59, s43, 40                 ; cg*160/4
    """)
    for it in range(3):
        skip = None
        if it == 2:
            skip = A.label("shskip")
            A(f"s_cmp_lt_u32 s40, 2")
            A(f"s_cbranch_scc0 {skip}")
        A(f"""
        s_add_u32 s56, s40, {4*it}             ; G8
        s_lshl_b32 s57, s56, 11
        s_add_u32 s57, s57, {base}
        v_add_u32 v7, s57, v{SH_LA}
        """)
        for p in range(4):
            A(f"ds_read_b128 v[{16+8*p}:{19+8*p}], v7 offset:{p*RING}")
            A(f"ds_read_b128 v[{20+8*p}:{23+8*p}], v7 offset:{p*RING + 1024}")
        A("s_waitcnt lgkmcnt(0)")
        for i in range(8):
            A(f"v_add_f32 v{16+i}, v{16+i}, v{24+i}")
            A(f"v_add_f32 v{32+i}, v{32+i}, v{40+i}")
        for i in range(8):
            A(f"v_add_f32 v{16+i}, v{16+i}, v{32+i}")
        for m in range(4):
            A(f"v_cvt_pk_bf16_f32 v{48+4*it+m}, v{16+2*m}, v{17+2*m}")
        A(f"""
        s_lshl_b32 s57, s56, 2
        s_add_u32 s57, s57, s59
        v_lshl_add_u32 v8, v4, 1, s57          ; G4 (e=0)
        """)
        for e in range(2):
            A(f"""
            v_add_u32 v9, {e}, v8
            v_mul_u32_u24 v10, 3277, v9
            v_lshrrev_b32 v10, 16, v10             ; cg8
            v_mul_u32_u24 v11, 20, v10
            v_sub_u32 v11, v9, v11                 ; rem
            v_mul_u32_u24 v10, 2560, v10
            v_lshrrev_b32 v12, 2, v11
            v_lshl_add_u32 v10, v12, 9, v10
            v_and_b32 v12, 3, v11
            v_lshl_add_u32 v10, v12, 7, v10
            v_add_u32 v10, v10, v5
            buffer_store_dwordx2 v[{48+4*it+2*e}:{48+4*it+2*e+1}], v10, s[8:11], s58 offen
            """)
        if skip: A(f"{skip}:")
    if prof:
        A("s_mov_b32 s90, 0")
        wl_dump(A, 165, 1, 8, 12, 21)
        prof_end(A, 1, 8, 12, tmpv=(16, 17, 18, 19, 20), extra="s90")
    A("s_endpgm")

def gen_k2(prio=True, prof=False, exp_mode=0, shadow=True, shprio=0, pa=1, pb=2, shmode=0, tl=0):
    A = Asm()
    A(khead(NAME))
    A(f"""
    s_cmp_ge_u32 s2, 256
    s_cbranch_scc1 Lk2_end
    """)
    if prof: prof_start(A)
    if tl: tl_start(A, 1)
    A(f"""
    s_load_dwordx2 s[4:5], s[0:1], 80
    s_load_dwordx2 s[6:7], s[0:1], 48      ; w2
    v_lshrrev_b32 v9, 6, v0
    v_and_b32 v1, 63, v0                   ; lane
    s_and_b32 s20, s2, 7
    v_readfirstlane_b32 s12, v9            ; wave
    s_lshr_b32 s21, s2, 3
    s_and_b32 s22, s21, 3
    s_lshl_b32 s13, s20, 2
    s_add_u32 s13, s13, s22                ; h
    s_lshr_b32 s14, s21, 2                 ; qb
    s_lshl_b32 s15, s14, 3
    s_add_u32 s15, s15, s12                ; T
    s_cmp_ge_u32 s12, 8
    s_cbranch_scc1 Lk2_shadow
    s_mul_i32 s16, s13, {HSK}
    s_add_u32 s16, s16, {KV_OFF}
    s_mul_i32 s23, s13, {HSQ}
    s_mul_i32 s24, s15, 1280
    s_add_u32 s23, s23, s24
    s_add_u32 s23, s23, {QF_OFF}
    v_lshlrev_b32 v8, 4, v1                ; lane*16
    v_and_b32 v9, 31, v1
    v_lshrrev_b32 v10, 5, v1               ; hf
    v_lshlrev_b32 v11, 3, v9
    v_add_u32 v11, 1024, v11               ; 1024 + token*8
    s_waitcnt lgkmcnt(0)
    """)
    srd(A, 8, 4, WS_RECORDS)
    A(f"""
    buffer_load_dwordx4 v[{QM}:{QM+3}], v8, s[8:11], s23 offen
    buffer_load_dwordx2 v[12:13], v11, s[8:11], s23 offen
    s_mul_i32 s25, s12, 3072
    s_add_u32 s17, s16, s25
    """)
    def dma(slot_expr_is_sgpr, slot):
        for j in range(3):
            if slot_expr_is_sgpr:
                A(f"s_add_u32 m0, {slot}, {j*1024}")
            else:
                A(f"s_add_u32 m0, s25, {slot + j*1024}")
            A(f"s_add_u32 s26, s17, {j*1024}")
            A(f"buffer_load_dwordx4 v8, s[8:11], s26 offen lds")
        A(f"s_add_u32 s17, s17, {CH}")
    dma(False, 0)
    dma(False, SLOT)
    A(f"""
    v_cmp_gt_u32 s[28:29], 32, v1          ; lanes < 32
    v_mov_b32 v5, v8
    v_mul_u32_u24 v6, 1280, v10
    v_add_u32 v6, v6, v11
    v_mul_u32_u24 v7, {VH}, v10
    v_min_u32 v14, 21, v9
    v_lshl_add_u32 v7, v14, 4, v7
    v_add_u32 v7, {VPART}, v7
    v_mov_b32 v2, v5
    v_mov_b32 v3, v6
    v_mov_b32 v4, v7
    v_mov_b32 v{KT+2}, 0x00003f80          ; (1.0, 0)
    v_mov_b32 v{KT+3}, 0
    v_mov_b32 v{V1}, 0
    v_mov_b32 v{V1+1}, 0
    v_mov_b32 v{V1+2}, 0
    v_mov_b32 v{V1+3}, 0
    """)
    for i in range(4): A(f"v_mov_b32 v{P_+4+i}, 0")
    for i in range(16): A(f"v_mov_b32 v{O_+i}, 0")
    A(f"""
    s_waitcnt vmcnt(6)
    v_cndmask_b32 v{QA}, 0, v12, s[28:29]
    v_cndmask_b32 v{QA+1}, 0, v13, s[28:29]
    v_mov_b32 v{QA+2}, 0
    v_mov_b32 v{QA+3}, 0
    v_cndmask_b32 v{QB}, v12, 0, s[28:29]
    v_cndmask_b32 v{QB+1}, v13, 0, s[28:29]
    v_mov_b32 v{QB+2}, 0
    v_mov_b32 v{QB+3}, 0
    s_waitcnt vmcnt(3)
    s_barrier
    ds_read_b128 v[{KF}:{KF+3}], v2
    ds_read_b64 v[{KT}:{KT+1}], v3
    ds_read_b128 v[{V0}:{V0+3}], v4
    s_waitcnt lgkmcnt(0)
    {mf(S_[0], KF, QM, None)}
    {mf(S_[0], KT, QA, S_[0])}
    s_nop 15
    """)
    s = S_[0]
    A(f"v_max3_f32 v9, v{s}, v{s+1}, v{s+2}")
    for i in range(3, 15, 2):
        A(f"v_max3_f32 v9, v9, v{s+i}, v{s+i+1}")
    A(f"v_max_f32 v9, v9, v{s+15}")
    A(f"""
    v_mov_b32 v10, v9
    s_nop 1
    v_permlane32_swap_b32 v9, v10
    s_nop 1
    v_max_f32 v9, v9, v10
    v_sub_f32 v9, 0, v9                    ; -m
    v_cvt_pk_bf16_f32 v9, v9, 0            ; (bf16(-m), 0)
    s_nop 0
    v_cndmask_b32 v{QA+2}, 0, v9, s[28:29]
    v_cndmask_b32 v{QB+2}, v9, 0, s[28:29]
    s_nop 1
    {mf(S_[0], KF, QM, None)}
    {mf(S_[0], KT, QA, S_[0])}
    ds_read_b128 v[{KF}:{KF+3}], v2 offset:1280
    s_mov_b32 s18, 0
    s_mov_b32 s19, {SLOT}
    s_mov_b32 s27, {2*SLOT}
    """)
    if prio:
        A(f"""
        s_setprio {pa}
        s_cmp_ge_u32 s12, 4
        s_cbranch_scc0 Lk2_noprio
        s_setprio {pb}
Lk2_noprio:
        """)
    if prof:
        A("s_memtime s[90:91]")
        A("s_waitcnt lgkmcnt(0)")
        A("s_sub_u32 s90, s90, s92")
    class F:
        def __init__(self, A): self.A = A
        def __call__(self, l):
            ls = l.strip()
            if exp_mode == 2 and ls.startswith("v_mfma"): return
            if exp_mode == 3 and (ls.startswith("v_exp") or ls.startswith("v_cvt")): return
            if exp_mode == 4 and ls.startswith("ds_read"): return
            if exp_mode == 5 and ls.startswith("v_cvt"): return
            if exp_mode == 6 and ls.startswith("v_mfma") and f"v[{O_}:" in ls: return
            if exp_mode == 7 and ls.startswith("v_mfma") and f"v[{O_}:" not in ls: return
            if exp_mode == 1 and ls.startswith("ds_read_b128") and (f"v[{V0}:" in ls or f"v[{V1}:" in ls):
                self.A("s_mov_b64 exec, s[34:35]"); self.A(l); self.A("s_mov_b64 exec, -1"); return
            self.A(l)
        def label(self, b): return self.A.label(b)
    if exp_mode == 1:
        A("v_and_b32 v9, 31, v1")
        A("v_cmp_gt_u32 s[34:35], 21, v9")
        for i in range(4): A(f"v_mov_b32 v{V0+i}, 0")
        A("s_nop 4")
    A("Lk2_loop:")
    A0 = A
    A = F(A0)
    for t in range(8):
        sc = S_[t & 1]; sn = S_[(t + 1) & 1]
        if t == 6:
            skip = A.label("k2skip")
            A("s_waitcnt vmcnt(0)")
            if prof:
                A0("s_lshl_b32 s87, s18, 1")
                wl_stamp(A0, 110, "s87")
            A("s_barrier")
            if prof:
                A0("s_add_u32 s87, s87, 1")
                wl_stamp(A0, 110, "s87")
            A(f"""
            v_add_u32 v2, s19, v5
            v_add_u32 v3, s19, v6
            s_cmp_lt_u32 s18, 6
            s_cbranch_scc0 {skip}
            s_add_u32 s30, s27, s25
            """)
            dma(True, "s30")
            A(f"{skip}:")
        koff = ((t + 2) & 7) * 1280
        A("s_waitcnt lgkmcnt(0)")
        A(mf(sn, KF, QM, None))
        A(f"ds_read_b128 v[{KF}:{KF+3}], v2 offset:{koff}")
        for i in range(4): A(f"v_exp_f32 v{sc+i}, v{sc+i}")
        A(mf(O_, V1, P_+4, O_))
        A(f"ds_read_b128 v[{V1}:{V1+3}], v4 offset:{t*VT + 2*VH}")
        if t == 7:
            A("v_add_u32 v4, s19, v7")
        A(f"v_cvt_pk_bf16_f32 v{P_}, v{sc}, v{sc+1}")
        A(f"v_exp_f32 v{sc+4}, v{sc+4}")
        A(f"v_cvt_pk_bf16_f32 v{P_+1}, v{sc+2}, v{sc+3}")
        for i in (5, 6, 7): A(f"v_exp_f32 v{sc+i}, v{sc+i}")
        A(mf(sn, KT, QB if ((t + 1) & 1) else QA, sn))
        if (t + 1) & 1:
            A(f"ds_read_b64 v[{KT}:{KT+1}], v3 offset:{koff}")
        A(f"v_cvt_pk_bf16_f32 v{P_+2}, v{sc+4}, v{sc+5}")
        A(f"v_exp_f32 v{sc+8}, v{sc+8}")
        A(f"v_cvt_pk_bf16_f32 v{P_+3}, v{sc+6}, v{sc+7}")
        A(f"v_exp_f32 v{sc+9}, v{sc+9}")
        A(f"v_exp_f32 v{sc+10}, v{sc+10}")
        A(mf(O_, V0, P_, O_))
        A(f"ds_read_b128 v[{V0}:{V0+3}], v4 offset:{((t+1)&7)*VT}")
        for i in (11, 12, 13): A(f"v_exp_f32 v{sc+i}, v{sc+i}")
        A(f"v_cvt_pk_bf16_f32 v{P_+4}, v{sc+8}, v{sc+9}")
        A(f"v_exp_f32 v{sc+14}, v{sc+14}")
        A(f"v_cvt_pk_bf16_f32 v{P_+5}, v{sc+10}, v{sc+11}")
        A(f"v_exp_f32 v{sc+15}, v{sc+15}")
        A(f"v_cvt_pk_bf16_f32 v{P_+6}, v{sc+12}, v{sc+13}")
        A(f"v_cvt_pk_bf16_f32 v{P_+7}, v{sc+14}, v{sc+15}")
    A = A0
    A(f"""
    s_mov_b32 s19, s27
    s_add_u32 s27, s27, {SLOT}
    s_cmp_ge_u32 s27, {3*SLOT}
    s_cselect_b32 s27, 0, s27
    s_add_u32 s18, s18, 1
    s_cmp_lt_u32 s18, 8
    s_cbranch_scc1 Lk2_loop
    s_waitcnt lgkmcnt(0)
    {mf(O_, V1, P_+4, O_)}
    s_mov_b32 s31, 0
    s_nop 15
Lk2_fin:
    v_mov_b32 v9, v{O_+8}
    v_mov_b32 v10, v{O_+8}
    s_nop 1
    v_permlane32_swap_b32 v9, v10
    s_nop 1
    v_mul_f32 v11, 0, v{O_}
    """)
    for i in range(1, 8): A(f"v_fma_f32 v11, v{O_+i}, 0, v11")
    A(f"v_mul_f32 v12, 0, v{O_+8}")
    for i in range(9, 12): A(f"v_fma_f32 v12, v{O_+i}, 0, v12")
    A(f"""
    v_cndmask_b32 v12, 0, v12, s[28:29]
    v_add_f32 v11, v11, v12
    v_add_f32 v11, v11, v10
    v_mov_b32 v13, 0x53800000              ; 2^40
    v_cmp_nlt_f32 vcc, v11, v13            ; !(l < 2^40)
    s_cmp_eq_u32 s31, 0
    s_cbranch_scc0 Lk2_store
    s_cbranch_vccnz Lk2_fallback
Lk2_store:
    v_rcp_f32 v10, v10
    s_mul_i32 s20, s13, 5
    s_mul_i32 s21, s15, 40960
    s_add_u32 s21, s21, {OF_OFF}
    v_lshrrev_b32 v11, 5, v1               ; hf
    v_and_b32 v12, 15, v1
    v_lshlrev_b32 v12, 4, v12              ; token16*16
    v_bfe_u32 v13, v1, 4, 1                ; q>>4
    v_mul_u32_u24 v13, 20480, v13
    v_add_u32 v12, v12, v13
    v_add_u32 v11, s20, v11                ; G (a=0)
    """)
    for a in range(3):
        r = O_ + 4*a
        A(f"""
        v_add_u32 v13, {2*a}, v11
        v_lshrrev_b32 v14, 3, v13
        v_lshlrev_b32 v14, 10, v14
        v_and_b32 v15, 3, v13
        v_lshl_add_u32 v14, v15, 8, v14
        v_bfe_u32 v15, v13, 2, 1
        v_lshl_add_u32 v14, v15, 3, v14
        v_add_u32 v14, v14, v12
        v_mul_f32 v{r}, v{r}, v10
        v_mul_f32 v{r+1}, v{r+1}, v10
        v_mul_f32 v{r+2}, v{r+2}, v10
        v_mul_f32 v{r+3}, v{r+3}, v10
        v_cvt_pk_bf16_f32 v{r}, v{r}, v{r+1}
        v_cvt_pk_bf16_f32 v{r+1}, v{r+2}, v{r+3}
        """)
        if a == 2:
            A("s_mov_b64 exec, s[28:29]")
        A(f"buffer_store_dwordx2 v[{r}:{r+1}], v14, s[8:11], s21 offen")
    if prof:
        A("s_mov_b64 exec, -1")
        wl_dump(A, 110, 1, 8, 12, 21)
        prof_end(A, 1, 8, 12, tmpv=(16, 17, 18, 19, 20), extra="s90")
    if tl: tl_end(A, 1)
    A("s_endpgm")

    A(f"""
Lk2_fallback:
    s_mov_b32 s31, 1
    v_mov_b32 v{QA+2}, 0
    v_and_b32 v9, 31, v1
    v_lshrrev_b32 v10, 5, v1
    v_lshlrev_b32 v11, 3, v9
    v_add_u32 v11, 1024, v11
    v_mul_u32_u24 v12, {VH}, v10
    v_min_u32 v13, 21, v9
    v_lshl_add_u32 v12, v13, 4, v12
    v_add_u32 v12, {VPART}, v12
    v_mov_b32 v14, 0xff800000
    s_mov_b32 s18, 0
Lk2_fb1:
    s_lshr_b32 s20, s18, 3
    s_mul_i32 s20, s20, {CH}
    s_and_b32 s21, s18, 7
    s_mul_i32 s21, s21, 1280
    s_add_u32 s20, s20, s21
    s_add_u32 s20, s20, s16
    buffer_load_dwordx4 v[{KF}:{KF+3}], v8, s[8:11], s20 offen
    buffer_load_dwordx2 v[{KT}:{KT+1}], v11, s[8:11], s20 offen
    s_waitcnt vmcnt(0)
    {mf(S_[0], KF, QM, None)}
    {mf(S_[0], KT, QA, S_[0])}
    s_nop 15
    """)
    for i in range(0, 16, 2):
        A(f"v_max3_f32 v14, v14, v{s+i}, v{s+i+1}")
    A(f"""
    s_add_u32 s18, s18, 1
    s_cmp_lt_u32 s18, 64
    s_cbranch_scc1 Lk2_fb1
    v_mov_b32 v15, v14
    s_nop 1
    v_permlane32_swap_b32 v14, v15
    s_nop 1
    v_max_f32 v14, v14, v15
    """)
    for i in range(16): A(f"v_mov_b32 v{O_+i}, 0")
    A(f"""
    s_mov_b32 s18, 0
Lk2_fb2:
    s_lshr_b32 s20, s18, 3
    s_mul_i32 s20, s20, {CH}
    s_and_b32 s21, s18, 7
    s_mul_i32 s22, s21, {VT}
    s_add_u32 s22, s22, s20
    s_add_u32 s22, s22, s16
    s_mul_i32 s21, s21, 1280
    s_add_u32 s20, s20, s21
    s_add_u32 s20, s20, s16
    buffer_load_dwordx4 v[{KF}:{KF+3}], v8, s[8:11], s20 offen
    buffer_load_dwordx2 v[{KT}:{KT+1}], v11, s[8:11], s20 offen
    buffer_load_dwordx4 v[{V0}:{V0+3}], v12, s[8:11], s22 offen
    buffer_load_dwordx4 v[{V1}:{V1+3}], v12, s[8:11], s22 offen offset:{2*VH}
    s_waitcnt vmcnt(0)
    {mf(S_[0], KF, QM, None)}
    {mf(S_[0], KT, QA, S_[0])}
    s_nop 15
    """)
    for i in range(16): A(f"v_sub_f32 v{s+i}, v{s+i}, v14")
    for i in range(16): A(f"v_exp_f32 v{s+i}, v{s+i}")
    A("s_nop 0")
    for i in range(8): A(f"v_cvt_pk_bf16_f32 v{P_+i}, v{s+2*i}, v{s+2*i+1}")
    A(f"""
    s_nop 1
    {mf(O_, V0, P_, O_)}
    {mf(O_, V1, P_+4, O_)}
    s_add_u32 s18, s18, 1
    s_cmp_lt_u32 s18, 64
    s_cbranch_scc1 Lk2_fb2
    s_nop 15
    s_branch Lk2_fin
Lk2_end:
    s_endpgm
    """)
    if shadow: gen_shadow(A, prof, shprio, shmode)
    else: A("Lk2_shadow:\ns_endpgm")
    return A.text(), kdesc(NAME, 168 if shadow else 112), f"; @launch kernel={NAME} grid=(256,1,1) block=({768 if shadow else 512},1,1) lds={3*SLOT + (4*RING if shadow else 0)}"
```

```python
from asm import *
from common import *

NAME = "k3_kernel"
ACC = 8
WF = 28
OFR = 108
TRA = 188
BV = 190
GV = 200
PH = 20480

def gen_k3(prof=False, tl=0):
    A = Asm()
    A(khead(NAME))
    A(f"""
    s_cmp_ge_u32 s2, 256
    s_cbranch_scc1 Lk3_exit
    """)
    if prof: prof_start(A)
    if tl: tl_start(A, 2)
    A(f"""
    s_load_dwordx2 s[12:13], s[0:1], 64    ; out
    s_load_dwordx2 s[14:15], s[0:1], 80    ; ws
    v_lshrrev_b32 v2, 6, v0
    v_and_b32 v1, 63, v0                   ; lane
    s_and_b32 s41, s2, 7
    v_readfirstlane_b32 s40, v2            ; wave
    s_lshr_b32 s42, s2, 3                  ; i
    s_lshr_b32 s43, s41, 1
    s_lshl_b32 s43, s43, 3
    s_and_b32 s44, s42, 7
    s_add_u32 s44, s44, s43                ; rbk
    s_and_b32 s43, s41, 1
    s_lshl_b32 s43, s43, 2
    s_lshr_b32 s42, s42, 3
    s_add_u32 s43, s43, s42                ; cg8
    s_mul_i32 s48, s43, 160
    v_lshlrev_b32 v201, 4, v1              ; lane*16
    s_lshl_b32 s46, s44, 2
    s_add_u32 s46, s46, s40                ; T16
    s_mul_i32 s51, s46, 20480
    s_add_u32 s51, s51, {OF_OFF}
    s_mul_i32 s47, s40, 5120
    s_mul_i32 s49, s43, 102400
    s_add_u32 s49, s49, s47
    s_add_u32 s49, s49, {WOF_OFF}
    v_and_b32 v3, 15, v1
    v_lshrrev_b32 v4, 4, v1                ; g
    s_lshl_b32 s45, s46, 4
    v_add_u32 v5, s45, v3
    v_lshlrev_b32 v6, 2, v5                ; token*4
    v_mul_u32_u24 v5, 1280, v5
    v_lshl_add_u32 v5, v4, 3, v5
    s_lshl_b32 s56, s46, 3
    s_add_u32 s56, s56, s43
    s_mul_i32 s56, s56, 2560
    s_add_u32 s56, s56, {BP_OFF}
    v_lshlrev_b32 v7, 3, v1
    s_mov_b32 s57, {G_OFF}
    v_lshlrev_b32 v{TRA}, 4, v1
    s_waitcnt lgkmcnt(0)
    """)
    if prof: stamp(A, 0)
    srd(A, 32, 12, OUT_BYTES)
    srd_ws(A, 36, 14, WS_RECORDS)
    def issue_groups(p):
        g = []
        for j in range(5):
            g.append([f"s_add_u32 m0, s47, {p*PH + j*1024}", f"s_add_u32 s55, s49, {p*PH + j*1024}",
                      f"buffer_load_dwordx4 v201, s[36:39], s55 offen lds"])
        for k in range(4):
            ks = 4*p + k
            g.append([f"s_add_u32 s55, s51, {ks*1024}",
                      f"buffer_load_dwordx4 v[{OFR+4*ks}:{OFR+4*ks+3}], v201, s[36:39], s55 offen"])
        if p == 4:
            for ct in range(5):
                g.append([f"buffer_load_dwordx2 v[{BV+2*ct}:{BV+2*ct+1}], v7, s[36:39], s56 offen offset:{ct*512}"])
            g.append([f"buffer_load_dword v{GV}, v6, s[36:39], s57 offen"])
        return g
    def issue(p):
        for grp in issue_groups(p):
            for l in grp: A(l)
    issue(0)
    issue(1)
    for i in range(20): A(f"v_mov_b32 v{ACC+i}, 0")
    if prof: stamp(A, 1)
    for p in range(5):
        if p + 1 <= 4:
            n = 9 + (6 if p + 1 == 4 else 0)
        else:
            n = 6
        A(f"s_waitcnt vmcnt({n})")
        if prof: stamp(A, 2 + 2*p)
        A("s_barrier")
        if prof: stamp(A, 3 + 2*p)
        if p > 0:
            A(f"v_add_u32 v{TRA}, {PH}, v{TRA}")
        for k in range(4):
            for ct in range(5):
                f = WF + 4*(5*k + ct)
                A(f"ds_read_b128 v[{f}:{f+3}], v{TRA} offset:{k*5120 + ct*1024}")
        g = issue_groups(p + 2) if p + 2 <= 4 else []
        per = (len(g) + 3) // 4
        for k in range(4):
            A(f"s_waitcnt lgkmcnt({5*(3-k)})")
            for ct in range(5):
                f = WF + 4*(5*k + ct)
                ks = 4*p + k
                A(f"v_mfma_f32_16x16x32_bf16 v[{ACC+4*ct}:{ACC+4*ct+3}], v[{f}:{f+3}], v[{OFR+4*ks}:{OFR+4*ks+3}], v[{ACC+4*ct}:{ACC+4*ct+3}]")
            for grp in g[k*per:(k+1)*per]:
                for l in grp: A(l)
    A("s_waitcnt vmcnt(0)")
    A("s_nop 7")
    for ct in range(5):
        r = ACC + 4*ct; bv = BV + 2*ct
        A(f"""
        v_lshlrev_b32 v28, 16, v{bv}
        v_and_b32 v29, 0xffff0000, v{bv}
        v_lshlrev_b32 v30, 16, v{bv+1}
        v_and_b32 v31, 0xffff0000, v{bv+1}
        v_sub_f32 v{r}, v{r}, v28
        v_sub_f32 v{r+1}, v{r+1}, v29
        v_sub_f32 v{r+2}, v{r+2}, v30
        v_sub_f32 v{r+3}, v{r+3}, v31
        v_fma_f32 v{r}, v{GV}, v{r}, v28
        v_fma_f32 v{r+1}, v{GV}, v{r+1}, v29
        v_fma_f32 v{r+2}, v{GV}, v{r+2}, v30
        v_fma_f32 v{r+3}, v{GV}, v{r+3}, v31
        v_cvt_pk_bf16_f32 v{bv}, v{r}, v{r+1}
        v_cvt_pk_bf16_f32 v{bv+1}, v{r+2}, v{r+3}
        buffer_store_dwordx2 v[{bv}:{bv+1}], v5, s[32:35], s48 offen offset:{ct*32}
        """)
    if prof:
        stamp(A, 12)
        dump_stamps(A, 2, 36, 40, 13, tmp=40)
        A("s_mov_b64 exec, -1")
        A("s_mov_b32 s90, 0")
        prof_end(A, 2, 36, 40, tmpv=(28, 29, 30, 31, 32), extra="s90")
    if tl:
        tl2_record(A, 2, 36, 40)
        if tl > 1: tl2_delay(A, [('span',0),('gap',0),('span',1),('gap',1),('zero',0),('tot',0)][tl-2], 36, 40)
    A("Lk3_exit:")
    A("s_endpgm")
    return A.text(), kdesc(NAME, 208), f"; @launch kernel={NAME} grid=(256,1,1) block=(256,1,1) lds={5*PH}"
```

```python
import sys, os
sys.path.insert(0, os.path.dirname(os.path.abspath(__file__)))
from k1 import gen_k1
from k2 import gen_k2
from k3 import gen_k3

HEADER = open("gated_mix__softmax_full_mha__dense_activation_mish__prompt.s.ref").read().split("; Override launch")[0]

def build(parts):
    launches = [p[2] for p in parts]
    s = HEADER + "\n".join(launches) + "\n"
    s += '.amdgcn_target "amdgcn-amd-amdhsa--gfx950"\n'
    for t, d, _ in parts:
        s += t + d
    return s

if __name__ == "__main__":
    out = sys.argv[1] if len(sys.argv) > 1 and not sys.argv[1].startswith("--") else "gated_mix__softmax_full_mha__dense_activation_mish__prompt.s"
    prof = "--prof" in sys.argv
    em = 0
    k1opts = {}
    for a in sys.argv:
        if a.startswith('--k1:'):
            k, v = a[5:].split('='); k1opts[k] = int(v)
    k2opts = {}
    for a in sys.argv:
        if a.startswith('--k2:'):
            k, v = a[5:].split('='); k2opts[k] = int(v)
    for a in sys.argv:
        if a.startswith("--em="): em = int(a[5:])
    m1 = 0
    for a in sys.argv:
        if a.startswith("--m1="): m1 = int(a[5:])
    s = build([gen_k1(prof=prof, mode=m1, **k1opts), gen_k2(prof=prof, exp_mode=em, **k2opts), gen_k3(prof=prof)])
    if "--k3twice" in sys.argv:
        lines = s.split("\n")
        i = [k for k, l in enumerate(lines) if l.startswith("; @launch kernel=k3")][0]
        lines.insert(i, lines[i])
        s = "\n".join(lines)
    open(out, "w").write(s)
    print("wrote", out, len(s))
```

```python
import sys, os
sys.path.insert(0, os.path.dirname(os.path.abspath(__file__)))
from k1 import gen_k1
from k2 import gen_k2
from k3 import gen_k3

HEADER = open("gated_mix__softmax_full_mha__dense_activation_mish__prompt.s.ref").read().split("; Override launch")[0]

def build(parts):
    launches = [p[2] for p in parts]
    s = HEADER + "\n".join(launches) + "\n"
    s += '.amdgcn_target "amdgcn-amd-amdhsa--gfx950"\n'
    for t, d, _ in parts:
        s += t + d
    return s

if __name__ == "__main__":
    out = sys.argv[1] if len(sys.argv) > 1 and not sys.argv[1].startswith("--") else "gated_mix__softmax_full_mha__dense_activation_mish__prompt.s"
    prof = "--prof" in sys.argv
    tl = 0
    for a in sys.argv:
        if a.startswith("--tl="): tl = int(a[5:])
    em = 0
    import asm
    for a in sys.argv:
        if a.startswith('--wsbase='): asm.WS_BASE = int(a[9:], 0)
    k1opts = {}
    for a in sys.argv:
        if a.startswith('--k1:'):
            k, v = a[5:].split('='); k1opts[k] = int(v)
    k2opts = {}
    for a in sys.argv:
        if a.startswith('--k2:'):
            k, v = a[5:].split('='); k2opts[k] = int(v)
    for a in sys.argv:
        if a.startswith("--em="): em = int(a[5:])
    m1 = 0
    for a in sys.argv:
        if a.startswith("--m1="): m1 = int(a[5:])
    if tl: k1opts['tl'] = 1; k2opts['tl'] = 1
    s = build([gen_k1(prof=prof, mode=m1, **k1opts), gen_k2(prof=prof, exp_mode=em, **k2opts), gen_k3(prof=prof, tl=tl)])
    for a in sys.argv:
        if a.startswith("--order="):
            order = a[8:].split(",")
            lines = s.split("\n")
            L = {l.split("kernel=")[1].split("_kernel")[0]: l for l in lines if l.startswith("; @launch kernel=")}
            idx = [k for k, l in enumerate(lines) if l.startswith("; @launch kernel=")]
            if "k0" in order:
                L["k0"] = "; @launch kernel=k0_kernel grid=(256,1,1) block=(64,1,1) lds=0"
                from asm import khead, kdesc
                s += khead("k0_kernel") + "    s_endpgm\n" + kdesc("k0_kernel", 8)
                lines = s.split("\n")
            lines = lines[:idx[0]] + [L[o] for o in order] + lines[idx[-1]+1:]
            s = "\n".join(lines)
    if "--k3twice" in sys.argv:
        lines = s.split("\n")
        i = [k for k, l in enumerate(lines) if l.startswith("; @launch kernel=k3")][0]
        lines.insert(i, lines[i])
        s = "\n".join(lines)
    open(out, "w").write(s)
    print("wrote", out, len(s))
```

```python
class Asm:
    def __init__(self):
        self.lines = []
        self._uid = 0
    def __call__(self, s):
        for l in s.strip("\n").split("\n"):
            l = l.strip()
            if not l:
                continue
            if l.endswith(":") or l.startswith(".") or l.startswith(";"):
                self.lines.append(l)
            else:
                self.lines.append("    " + l)
    def c(self, s):
        self.lines.append("    ; " + s)
    def label(self, base):
        self._uid += 1
        return f"L{base}_{self._uid}"
    def text(self):
        return "\n".join(self.lines) + "\n"

def vr(a, n=1):
    return f"v{a}" if n == 1 else f"v[{a}:{a+n-1}]"
def sr(a, n=1):
    return f"s{a}" if n == 1 else f"s[{a}:{a+n-1}]"

def srd(A, d, ptr, nbytes):
    A(f"s_mov_b32 s{d}, s{ptr}")
    A(f"s_and_b32 s{d+1}, s{ptr+1}, 0xffff")
    A(f"s_mov_b32 s{d+2}, {nbytes}")
    A(f"s_mov_b32 s{d+3}, 0x00020000")

def kdesc(name, vgpr, sgpr=102, accum=None):
    accum = accum if accum is not None else ((vgpr + 3) // 4) * 4
    return f""".section .rodata,"a"
.p2align 6
.amdhsa_kernel {name}
  .amdhsa_next_free_vgpr {vgpr}
  .amdhsa_next_free_sgpr {sgpr}
  .amdhsa_accum_offset {accum}
  .amdhsa_group_segment_fixed_size 0
  .amdhsa_kernarg_size 88
  .amdhsa_user_sgpr_count 2
  .amdhsa_user_sgpr_kernarg_segment_ptr 1
  .amdhsa_system_sgpr_workgroup_id_x 1
.end_amdhsa_kernel
.text
"""
def khead(name):
    return f""".text
.globl {name}
.p2align 8
.type {name},@function
{name}:
"""

DBG_OFF = 0x1800000
def prof_start(A):
    A("s_memtime s[92:93]")
    A("s_memrealtime s[94:95]")
def prof_end(A, kidx, wsrd, wave_sgpr, tmpv=(120, 121, 122, 123, 124), extra=None):
    a, b, c, d, e = tmpv
    lab = A.label("prof")
    A(f"""
    s_waitcnt lgkmcnt(0)
    s_memtime s[96:97]
    s_memrealtime s[98:99]
    s_waitcnt lgkmcnt(0)
    s_sub_u32 s96, s96, s92
    s_sub_u32 s98, s98, s94
    s_lshl_b32 s97, s2, 4
    s_add_u32 s97, s97, s{wave_sgpr}
    s_lshl_b32 s97, s97, 4
    s_add_u32 s97, s97, {DBG_OFF + kidx*0x20000}
    v_mov_b32 v{a}, s94
    v_mov_b32 v{b}, s96
    v_mov_b32 v{c}, s98
    v_mov_b32 v{d}, {extra if extra else 0}
    v_mov_b32 v{e}, 0
    s_mov_b64 exec, 1
    buffer_store_dwordx4 v[{a}:{d}], v{e}, s[{wsrd}:{wsrd+3}], s97 offen
    """)

def stamp(A, i):
    A("s_memtime s[88:89]")
    A("s_waitcnt lgkmcnt(0)")
    A(f"s_sub_u32 s{70+i}, s88, s92")
def dump_stamps(A, kidx, wsrd, wave_sgpr, n, tmp=16):
    A(f"""
    s_lshl_b32 s97, s2, 4
    s_add_u32 s97, s97, s{wave_sgpr}
    s_lshl_b32 s97, s97, 6
    s_add_u32 s97, s97, {DBG_OFF + 0x100000 + kidx*0x40000}
    v_mov_b32 v{tmp}, 0
    s_mov_b64 exec, 1
    """)
    for i in range(n):
        A(f"v_mov_b32 v{tmp+1}, s{70+i}")
        A(f"buffer_store_dword v{tmp+1}, v{tmp}, s[{wsrd}:{wsrd+3}], s97 offen offset:{4*i}")
        A("s_nop 1")

def wl_stamp(A, vreg, idx):
    A("s_memtime s[88:89]")
    A("s_waitcnt lgkmcnt(0)")
    A("s_sub_u32 s88, s88, s92")
    if isinstance(idx, int):
        A(f"v_writelane_b32 v{vreg}, s88, {idx}")
    else:
        A(f"s_mov_b32 m0, {idx}")
        A("s_nop 0")
        A(f"v_writelane_b32 v{vreg}, s88, m0")
def wl_dump(A, vreg, kidx, wsrd, wave_sgpr, tmp):
    A(f"""
    s_lshl_b32 s97, s2, 4
    s_add_u32 s97, s97, s{wave_sgpr}
    s_lshl_b32 s97, s97, 6
    s_add_u32 s97, s97, {DBG_OFF + 0x100000 + kidx*0x40000}
    s_mov_b64 exec, 0xffff
    v_mbcnt_lo_u32_b32 v{tmp}, -1, 0
    v_lshlrev_b32 v{tmp}, 2, v{tmp}
    buffer_store_dword v{vreg}, v{tmp}, s[{wsrd}:{wsrd+3}], s97 offen
    s_mov_b64 exec, -1
    """)

def touch(A, items, vz, vd0):
    for i, (srd_, off) in enumerate(items):
        if isinstance(off, int):
            if off == 0:
                A(f"buffer_load_dword v{vd0}, v{vz}, s[{srd_}:{srd_+3}], 0 offen")
            else:
                A(f"s_mov_b32 s99, {off}")
                A(f"buffer_load_dword v{vd0}, v{vz}, s[{srd_}:{srd_+3}], s99 offen")
        else:
            A(f"buffer_load_dword v{vd0}, v{vz}, s[{srd_}:{srd_+3}], {off} offen")

def tl_start(A, kidx):
    A("s_memrealtime s[84:85]")
def tl_end(A, kidx, tmpv=(2, 3, 4)):
    a, b, c = tmpv
    lab = A.label("tl")
    A(f"""
    s_load_dwordx2 s[80:81], s[0:1], 72
    s_memrealtime s[82:83]
    s_waitcnt lgkmcnt(0)
    s_sub_u32 s80, s80, {512*kidx}
    s_subb_u32 s81, s81, 0
    s_mov_b64 exec, 1
    v_mov_b32 v{a}, 0
    v_mov_b32 v{b}, s82
    global_atomic_umax v{a}, v{b}, s[80:81] offset:{8*kidx+4}
    v_mov_b32 v{c}, s84
    v_not_b32 v{c}, v{c}
    global_atomic_umax v{a}, v{c}, s[80:81] offset:{8*kidx}
    s_waitcnt vmcnt(0)
    """)
```

```python
from asm import *
from common import *

NAME = "k2_kernel"
SLOT = 24576

S_ = [16, 32]
P_ = 48
QM = 56
O_ = 64
QA = 80
QB = 84
KF = 88
KT = 92
V0 = 96
V1 = 100

def mf(d, a, b, c):
    cs = "0" if c is None else f"v[{c}:{c+15}]"
    return f"v_mfma_f32_32x32x16_bf16 v[{d}:{d+15}], v[{a}:{a+3}], v[{b}:{b+3}], {cs}"

NSL = 4
RING = NSL * 5120
SH_ACC = 80
SH_WF = [16, 36]
SH_BF = 56
SH_DV = 72
SH_TRA = 77
SH_LA = 78

def gen_shadow(A_, prof, shprio=3, shmode=0):
    class G:
        def __call__(s, l):
            for x in l.strip("\n").split("\n"):
                xs = x.strip()
                if shmode == 1 and xs.startswith("v_mfma"): continue
                if shmode == 2 and (xs.startswith("buffer_load_dwordx4") or xs.startswith("ds_read_b64_tr")): continue
                if shmode == 3 and xs.startswith("ds_read_b64_tr"): continue
                if shmode == 4 and (xs.startswith("v_mfma") or xs.startswith("ds_read_b64_tr")): continue
                A_(x)
        def label(s, b): return A_.label(b)
    A = G()
    base = 3 * SLOT
    A(f"""
Lk2_shadow:
    s_setprio {shprio}
    s_sub_u32 s40, s12, 8                  ; w
    s_and_b32 s41, s2, 7
    s_lshr_b32 s42, s2, 3
    s_lshr_b32 s43, s41, 1
    s_lshl_b32 s43, s43, 4
    s_lshr_b32 s44, s42, 1
    s_add_u32 s44, s44, s43                ; T
    s_and_b32 s43, s41, 1
    s_lshl_b32 s43, s43, 1
    s_and_b32 s42, s42, 1
    s_add_u32 s43, s43, s42                ; cg
    s_mul_i32 s48, s43, 320
    v_lshlrev_b32 v{SH_LA}, 4, v1
    v_and_b32 v3, 31, v1                   ; token
    v_lshrrev_b32 v4, 5, v1                ; hf
    """)
    for q in range(5):
        A(f"""
        v_add_u32 v7, {64*q}, v1
        v_mul_u32_u24 v8, 3277, v7
        v_lshrrev_b32 v8, 16, v8
        v_mul_u32_u24 v9, 20, v8
        v_sub_u32 v9, v7, v9
        v_mul_u32_u24 v8, 1280, v8
        v_lshl_add_u32 v{SH_DV+q}, v9, 4, v8
        """)
    A(f"""
    v_bfe_u32 v7, v1, 2, 2
    v_lshl_add_u32 v7, v4, 3, v7
    v_mul_u32_u24 v7, 320, v7
    v_bfe_u32 v8, v1, 4, 1
    v_lshl_add_u32 v7, v8, 5, v7
    v_and_b32 v8, 3, v1
    v_lshrrev_b32 v9, 1, v8
    v_and_b32 v8, 1, v8
    v_lshl_or_b32 v8, v8, 1, v9
    v_lshl_add_u32 v7, v8, 3, v7
    s_mul_i32 s47, s40, {RING}
    s_add_u32 s47, s47, {base}
    v_add_u32 v{SH_TRA}, s47, v7
    s_mul_i32 s50, s40, {384*1280}
    s_add_u32 s50, s50, s48                ; w2 soffset
    s_mul_i32 s52, s44, {96*1024}
    s_mul_i32 s53, s40, {24*1024}
    s_add_u32 s52, s52, s53
    s_add_u32 s52, s52, {ACT_OFF}
    s_waitcnt lgkmcnt(0)
    """)
    srd_ws(A, 8, 4, WS_RECORDS)
    srd(A, 24, 6, W2_BYTES)
    srd(A, 28, 62, WO_BYTES) if False else None
    A("s_load_dwordx2 s[30:31], s[0:1], 16")
    A("s_waitcnt lgkmcnt(0)")
    A("s_mov_b32 s28, s30")
    A("s_and_b32 s29, s31, 0xffff")
    A(f"s_mov_b32 s30, {WO_BYTES}")
    A("s_mov_b32 s31, 0x00020000")
    NK = 24
    def issue(k):
        sl = k % NSL
        A(f"s_add_u32 s54, s50, {k*16*1280}")
        for q in range(5):
            A(f"s_add_u32 m0, s47, {sl*5120 + q*1024}")
            A("s_nop 0")
            A(f"buffer_load_dwordx4 v{SH_DV+q}, s[24:27], s54 offen lds")
        A(f"s_add_u32 s55, s52, {k*1024}")
        A(f"buffer_load_dwordx4 v[{SH_BF+4*sl}:{SH_BF+4*sl+3}], v{SH_LA}, s[8:11], s55 offen")
    def trreads(k):
        sl = k % NSL
        b = SH_WF[k & 1]
        for ct in range(5):
            A(f"ds_read_b64_tr_b16 v[{b+4*ct}:{b+4*ct+1}], v{SH_TRA} offset:{sl*5120 + ct*64}")
            A(f"ds_read_b64_tr_b16 v[{b+4*ct+2}:{b+4*ct+3}], v{SH_TRA} offset:{sl*5120 + 1280 + ct*64}")
    for i in range(80): A(f"v_mov_b32 v{SH_ACC+i}, 0")
    A("s_barrier")
    skipwo = A.label("skipwo")
    A(f"""
    s_lshl_b32 s56, s2, 2
    s_add_u32 s56, s56, s40                ; j
    s_cmp_ge_u32 s56, 800
    s_cbranch_scc1 {skipwo}
    s_mul_i32 s57, s56, 656
    s_lshr_b32 s57, s57, 16                ; cg8 = j/100
    s_mul_i32 s58, s57, 100
    s_sub_u32 s58, s56, s58                ; r
    s_mul_i32 s59, s58, 205
    s_lshr_b32 s59, s59, 10                ; ks = r/5
    s_mul_i32 s60, s59, 5
    s_sub_u32 s60, s58, s60                ; ct
    s_mul_i32 s61, s57, 160
    s_lshl_b32 s62, s60, 5
    s_add_u32 s61, s61, s62
    s_mul_i32 s62, s59, {32*1280}
    s_add_u32 s61, s61, s62
    v_and_b32 v7, 15, v1
    v_lshrrev_b32 v8, 4, v1                ; g
    v_mul_u32_u24 v8, {4*1280}, v8
    v_lshl_add_u32 v7, v7, 1, v8           ; g*4 rows + i*2
    """)
    for j in range(8):
        roff = (j if j < 4 else 16 + j - 4) * 1280
        A(f"s_add_u32 s62, s61, {roff}")
        A(f"buffer_load_ushort v{16+j}, v7, s[28:31], s62 offen")
    A("s_waitcnt vmcnt(0)")
    for m in range(4):
        A(f"v_lshl_or_b32 v{24+m}, v{17+2*m}, 16, v{16+2*m}")
    A(f"""
    s_lshl_b32 s62, s56, 10
    s_add_u32 s62, s62, {WOF_OFF}
    buffer_store_dwordx4 v[24:27], v{SH_LA}, s[8:11], s62 offen
    {skipwo}:
    """)
    for k in range(3): issue(k)
    extra = 1
    sched = [0, 3, 4, 3, 4, 3, 4, 3]
    bounds = []
    acc = 0
    for n in sched:
        acc += n; bounds.append(acc)
    if prof: wl_stamp(A, 165, 0)
    A("s_barrier")
    if prof: wl_stamp(A, 165, 1)
    nb = [2]
    A("s_waitcnt vmcnt(12)")
    trreads(0)
    for k in range(NK):
        if k + 3 < NK: issue(k + 3)
        if k + 1 < NK:
            n = 6 * (min(k + 3, NK - 1) - (k + 1))
            A(f"s_waitcnt vmcnt({n})")
            trreads(k + 1)
            A("s_waitcnt lgkmcnt(10)")
        else:
            A("s_waitcnt lgkmcnt(0)")
        b = SH_WF[k & 1]; sl = k % NSL
        for ct in range(5):
            d = SH_ACC + 16*ct
            A(f"v_mfma_f32_32x32x16_bf16 v[{d}:{d+15}], v[{b+4*ct}:{b+4*ct+3}], v[{SH_BF+4*sl}:{SH_BF+4*sl+3}], v[{d}:{d+15}]")
        if (k + 1) in bounds and k + 1 < NK:
            if prof: wl_stamp(A, 165, nb[0])
            A("s_barrier")
            if prof: wl_stamp(A, 165, nb[0] + 1)
            nb[0] += 2
    A("s_nop 15")
    A(f"v_add_u32 v7, s47, v{SH_LA}")
    for g4 in range(20):
        A(f"ds_write_b128 v7, v[{SH_ACC+4*g4}:{SH_ACC+4*g4+3}] offset:{g4*1024}")
    A("s_waitcnt lgkmcnt(0)")
    if prof: wl_stamp(A, 165, 14)
    A("s_barrier")
    if prof: wl_stamp(A, 165, 15)
    A(f"""
    s_mul_i32 s45, s44, {2*8*2560}
    s_add_u32 s58, s45, {BP_OFF}
    v_lshrrev_b32 v5, 4, v3
    v_mul_u32_u24 v5, {8*2560}, v5
    v_and_b32 v6, 15, v3
    v_lshl_add_u32 v5, v6, 3, v5
    s_mul_i32 s59, s43, 40                 ; cg*160/4
    """)
    for it in range(3):
        skip = None
        if it == 2:
            skip = A.label("shskip")
            A(f"s_cmp_lt_u32 s40, 2")
            A(f"s_cbranch_scc0 {skip}")
        A(f"""
        s_add_u32 s56, s40, {4*it}             ; G8
        s_lshl_b32 s57, s56, 11
        s_add_u32 s57, s57, {base}
        v_add_u32 v7, s57, v{SH_LA}
        """)
        for p in range(4):
            A(f"ds_read_b128 v[{16+8*p}:{19+8*p}], v7 offset:{p*RING}")
            A(f"ds_read_b128 v[{20+8*p}:{23+8*p}], v7 offset:{p*RING + 1024}")
        A("s_waitcnt lgkmcnt(0)")
        for i in range(8):
            A(f"v_add_f32 v{16+i}, v{16+i}, v{24+i}")
            A(f"v_add_f32 v{32+i}, v{32+i}, v{40+i}")
        for i in range(8):
            A(f"v_add_f32 v{16+i}, v{16+i}, v{32+i}")
        for m in range(4):
            A(f"v_cvt_pk_bf16_f32 v{48+4*it+m}, v{16+2*m}, v{17+2*m}")
        A(f"""
        s_lshl_b32 s57, s56, 2
        s_add_u32 s57, s57, s59
        v_lshl_add_u32 v8, v4, 1, s57          ; G4 (e=0)
        """)
        for e in range(2):
            A(f"""
            v_add_u32 v9, {e}, v8
            v_mul_u32_u24 v10, 3277, v9
            v_lshrrev_b32 v10, 16, v10             ; cg8
            v_mul_u32_u24 v11, 20, v10
            v_sub_u32 v11, v9, v11                 ; rem
            v_mul_u32_u24 v10, 2560, v10
            v_lshrrev_b32 v12, 2, v11
            v_lshl_add_u32 v10, v12, 9, v10
            v_and_b32 v12, 3, v11
            v_lshl_add_u32 v10, v12, 7, v10
            v_add_u32 v10, v10, v5
            buffer_store_dwordx2 v[{48+4*it+2*e}:{48+4*it+2*e+1}], v10, s[8:11], s58 offen
            """)
        if skip: A(f"{skip}:")
    if prof:
        A("s_mov_b32 s90, 0")
        wl_dump(A, 165, 1, 8, 12, 21)
        prof_end(A, 1, 8, 12, tmpv=(16, 17, 18, 19, 20), extra="s90")
    A("s_endpgm")

def gen_k2(prio=True, prof=False, exp_mode=0, shadow=True, shprio=0, pa=1, pb=2, shmode=0, tl=0, dyn=0, sw=7, ahi=3, alo=1, nofb=0):
    A = Asm()
    A(khead(NAME))
    A(f"""
    s_cmp_ge_u32 s2, 256
    s_cbranch_scc1 Lk2_end
    """)
    if prof: prof_start(A)
    if tl: tl_start(A, 1)
    A(f"""
    s_load_dwordx2 s[4:5], s[0:1], 80
    s_load_dwordx2 s[6:7], s[0:1], 48      ; w2
    v_lshrrev_b32 v9, 6, v0
    v_and_b32 v1, 63, v0                   ; lane
    s_and_b32 s20, s2, 7
    v_readfirstlane_b32 s12, v9            ; wave
    s_lshr_b32 s21, s2, 3
    s_and_b32 s22, s21, 3
    s_lshl_b32 s13, s20, 2
    s_add_u32 s13, s13, s22                ; h
    s_lshr_b32 s14, s21, 2                 ; qb
    s_lshl_b32 s15, s14, 3
    s_add_u32 s15, s15, s12                ; T
    s_cmp_ge_u32 s12, 8
    s_cbranch_scc1 Lk2_shadow
    s_mul_i32 s16, s13, {HSK}
    s_add_u32 s16, s16, {KV_OFF}
    s_mul_i32 s23, s13, {HSQ}
    s_mul_i32 s24, s15, 1280
    s_add_u32 s23, s23, s24
    s_add_u32 s23, s23, {QF_OFF}
    v_lshlrev_b32 v8, 4, v1                ; lane*16
    v_and_b32 v9, 31, v1
    v_lshrrev_b32 v10, 5, v1               ; hf
    v_lshlrev_b32 v11, 3, v9
    v_add_u32 v11, 1024, v11               ; 1024 + token*8
    s_waitcnt lgkmcnt(0)
    """)
    srd_ws(A, 8, 4, WS_RECORDS)
    A(f"""
    buffer_load_dwordx4 v[{QM}:{QM+3}], v8, s[8:11], s23 offen
    buffer_load_dwordx2 v[12:13], v11, s[8:11], s23 offen
    s_mul_i32 s25, s12, 3072
    s_add_u32 s17, s16, s25
    """)
    def dma(slot_expr_is_sgpr, slot):
        for j in range(3):
            if slot_expr_is_sgpr:
                A(f"s_add_u32 m0, {slot}, {j*1024}")
            else:
                A(f"s_add_u32 m0, s25, {slot + j*1024}")
            A(f"s_add_u32 s26, s17, {j*1024}")
            A(f"buffer_load_dwordx4 v8, s[8:11], s26 offen lds")
        A(f"s_add_u32 s17, s17, {CH}")
    dma(False, 0)
    dma(False, SLOT)
    A(f"""
    v_cmp_gt_u32 s[28:29], 32, v1          ; lanes < 32
    v_mov_b32 v5, v8
    v_mul_u32_u24 v6, 1280, v10
    v_add_u32 v6, v6, v11
    v_mul_u32_u24 v7, {VH}, v10
    v_min_u32 v14, 21, v9
    v_lshl_add_u32 v7, v14, 4, v7
    v_add_u32 v7, {VPART}, v7
    v_mov_b32 v2, v5
    v_mov_b32 v3, v6
    v_mov_b32 v4, v7
    v_mov_b32 v{KT+2}, 0x00003f80          ; (1.0, 0)
    v_mov_b32 v{KT+3}, 0
    v_mov_b32 v{V1}, 0
    v_mov_b32 v{V1+1}, 0
    v_mov_b32 v{V1+2}, 0
    v_mov_b32 v{V1+3}, 0
    """)
    for i in range(4): A(f"v_mov_b32 v{P_+4+i}, 0")
    for i in range(16): A(f"v_mov_b32 v{O_+i}, 0")
    A(f"""
    s_waitcnt vmcnt(6)
    v_cndmask_b32 v{QA}, 0, v12, s[28:29]
    v_cndmask_b32 v{QA+1}, 0, v13, s[28:29]
    v_mov_b32 v{QA+2}, 0
    v_mov_b32 v{QA+3}, 0
    v_cndmask_b32 v{QB}, v12, 0, s[28:29]
    v_cndmask_b32 v{QB+1}, v13, 0, s[28:29]
    v_mov_b32 v{QB+2}, 0
    v_mov_b32 v{QB+3}, 0
    s_waitcnt vmcnt(3)
    s_barrier
    ds_read_b128 v[{KF}:{KF+3}], v2
    ds_read_b64 v[{KT}:{KT+1}], v3
    ds_read_b128 v[{V0}:{V0+3}], v4
    s_waitcnt lgkmcnt(0)
    {mf(S_[0], KF, QM, None)}
    {mf(S_[0], KT, QA, S_[0])}
    s_nop 15
    """)
    s = S_[0]
    A(f"v_max3_f32 v9, v{s}, v{s+1}, v{s+2}")
    for i in range(3, 15, 2):
        A(f"v_max3_f32 v9, v9, v{s+i}, v{s+i+1}")
    A(f"v_max_f32 v9, v9, v{s+15}")
    A(f"""
    v_mov_b32 v10, v9
    s_nop 1
    v_permlane32_swap_b32 v9, v10
    s_nop 1
    v_max_f32 v9, v9, v10
    v_sub_f32 v9, 0, v9                    ; -m
    v_cvt_pk_bf16_f32 v9, v9, 0            ; (bf16(-m), 0)
    s_nop 0
    v_cndmask_b32 v{QA+2}, 0, v9, s[28:29]
    v_cndmask_b32 v{QB+2}, v9, 0, s[28:29]
    s_nop 1
    {mf(S_[0], KF, QM, None)}
    {mf(S_[0], KT, QA, S_[0])}
    ds_read_b128 v[{KF}:{KF+3}], v2 offset:1280
    s_mov_b32 s18, 0
    s_mov_b32 s19, {SLOT}
    s_mov_b32 s27, {2*SLOT}
    """)
    if prio:
        A(f"""
        s_setprio {pa}
        s_cmp_ge_u32 s12, 4
        s_cbranch_scc0 Lk2_noprio
        s_setprio {pb}
Lk2_noprio:
        """)
    if prof:
        A("s_memtime s[90:91]")
        A("s_waitcnt lgkmcnt(0)")
        A("s_sub_u32 s90, s90, s92")
    class F:
        def __init__(self, A): self.A = A
        def __call__(self, l):
            ls = l.strip()
            if exp_mode == 2 and ls.startswith("v_mfma"): return
            if exp_mode == 3 and (ls.startswith("v_exp") or ls.startswith("v_cvt")): return
            if exp_mode == 4 and ls.startswith("ds_read"): return
            if exp_mode == 5 and ls.startswith("v_cvt"): return
            if exp_mode == 6 and ls.startswith("v_mfma") and f"v[{O_}:" in ls: return
            if exp_mode == 7 and ls.startswith("v_mfma") and f"v[{O_}:" not in ls: return
            if exp_mode == 8 and (ls.startswith("s_barrier") or ls.startswith("buffer_load")): return
            if exp_mode == 9 and (ls.startswith("s_barrier") or ls.startswith("buffer_load") or ls.startswith("ds_read")): return
            if exp_mode == 10 and (ls.startswith("s_barrier") or ls.startswith("buffer_load") or ls.startswith("ds_read") or ls.startswith("s_waitcnt")): return
            if exp_mode == 11 and (ls.startswith("s_barrier") or ls.startswith("buffer_load") or ls.startswith("v_mfma")): return
            if exp_mode == 1 and ls.startswith("ds_read_b128") and (f"v[{V0}:" in ls or f"v[{V1}:" in ls):
                self.A("s_mov_b64 exec, s[34:35]"); self.A(l); self.A("s_mov_b64 exec, -1"); return
            self.A(l)
        def label(self, b): return self.A.label(b)
    if exp_mode == 1:
        A("v_and_b32 v9, 31, v1")
        A("v_cmp_gt_u32 s[34:35], 21, v9")
        for i in range(4): A(f"v_mov_b32 v{V0+i}, 0")
        A("s_nop 4")
    A("Lk2_loop:")
    A0 = A
    A = F(A0)
    for t in range(8):
        sc = S_[t & 1]; sn = S_[(t + 1) & 1]
        if t == 6:
            skip = A.label("k2skip")
            A("s_waitcnt vmcnt(0)")
            if prof:
                A0("s_lshl_b32 s87, s18, 1")
                wl_stamp(A0, 110, "s87")
            A("s_barrier")
            if prof:
                A0("s_add_u32 s87, s87, 1")
                wl_stamp(A0, 110, "s87")
            A(f"""
            v_add_u32 v2, s19, v5
            v_add_u32 v3, s19, v6
            s_cmp_lt_u32 s18, 6
            s_cbranch_scc0 {skip}
            s_add_u32 s30, s27, s25
            """)
            dma(True, "s30")
            A(f"{skip}:")
        if dyn and t in (0, sw):
            lab = A.label("dp")
            A("s_cmp_lt_u32 s12, 4")
            A(f"s_cbranch_scc0 {lab}")
            A(f"s_setprio {ahi if t == 0 else alo}")
            A(f"{lab}:")
        koff = ((t + 2) & 7) * 1280
        A("s_waitcnt lgkmcnt(0)")
        A(mf(sn, KF, QM, None))
        A(f"ds_read_b128 v[{KF}:{KF+3}], v2 offset:{koff}")
        for i in range(4): A(f"v_exp_f32 v{sc+i}, v{sc+i}")
        A(mf(O_, V1, P_+4, O_))
        A(f"ds_read_b128 v[{V1}:{V1+3}], v4 offset:{t*VT + 2*VH}")
        if t == 7:
            A("v_add_u32 v4, s19, v7")
        A(f"v_cvt_pk_bf16_f32 v{P_}, v{sc}, v{sc+1}")
        A(f"v_exp_f32 v{sc+4}, v{sc+4}")
        A(f"v_cvt_pk_bf16_f32 v{P_+1}, v{sc+2}, v{sc+3}")
        for i in (5, 6, 7): A(f"v_exp_f32 v{sc+i}, v{sc+i}")
        A(mf(sn, KT, QB if ((t + 1) & 1) else QA, sn))
        if (t + 1) & 1:
            A(f"ds_read_b64 v[{KT}:{KT+1}], v3 offset:{koff}")
        A(f"v_cvt_pk_bf16_f32 v{P_+2}, v{sc+4}, v{sc+5}")
        A(f"v_exp_f32 v{sc+8}, v{sc+8}")
        A(f"v_cvt_pk_bf16_f32 v{P_+3}, v{sc+6}, v{sc+7}")
        A(f"v_exp_f32 v{sc+9}, v{sc+9}")
        A(f"v_exp_f32 v{sc+10}, v{sc+10}")
        A(mf(O_, V0, P_, O_))
        A(f"ds_read_b128 v[{V0}:{V0+3}], v4 offset:{((t+1)&7)*VT}")
        for i in (11, 12, 13): A(f"v_exp_f32 v{sc+i}, v{sc+i}")
        A(f"v_cvt_pk_bf16_f32 v{P_+4}, v{sc+8}, v{sc+9}")
        A(f"v_exp_f32 v{sc+14}, v{sc+14}")
        A(f"v_cvt_pk_bf16_f32 v{P_+5}, v{sc+10}, v{sc+11}")
        A(f"v_exp_f32 v{sc+15}, v{sc+15}")
        A(f"v_cvt_pk_bf16_f32 v{P_+6}, v{sc+12}, v{sc+13}")
        A(f"v_cvt_pk_bf16_f32 v{P_+7}, v{sc+14}, v{sc+15}")
    A = A0
    A(f"""
    s_mov_b32 s19, s27
    s_add_u32 s27, s27, {SLOT}
    s_cmp_ge_u32 s27, {3*SLOT}
    s_cselect_b32 s27, 0, s27
    s_add_u32 s18, s18, 1
    s_cmp_lt_u32 s18, 8
    s_cbranch_scc1 Lk2_loop
    s_waitcnt lgkmcnt(0)
    {mf(O_, V1, P_+4, O_)}
    s_mov_b32 s31, 0
    s_nop 15
Lk2_fin:
    v_mov_b32 v9, v{O_+8}
    v_mov_b32 v10, v{O_+8}
    s_nop 1
    v_permlane32_swap_b32 v9, v10
    s_nop 1
    v_mul_f32 v11, 0, v{O_}
    """)
    for i in range(1, 8): A(f"v_fma_f32 v11, v{O_+i}, 0, v11")
    A(f"v_mul_f32 v12, 0, v{O_+8}")
    for i in range(9, 12): A(f"v_fma_f32 v12, v{O_+i}, 0, v12")
    A(f"""
    v_cndmask_b32 v12, 0, v12, s[28:29]
    v_add_f32 v11, v11, v12
    v_add_f32 v11, v11, v10
    v_mov_b32 v13, 0x53800000              ; 2^40
    v_cmp_nlt_f32 vcc, v11, v13            ; !(l < 2^40)
    s_cmp_eq_u32 s31, 0
    s_cbranch_scc0 Lk2_store
    {"" if nofb else "s_cbranch_vccnz Lk2_fallback"}
Lk2_store:
    v_rcp_f32 v10, v10
    s_mul_i32 s20, s13, 5
    s_mul_i32 s21, s15, 40960
    s_add_u32 s21, s21, {OF_OFF}
    v_lshrrev_b32 v11, 5, v1               ; hf
    v_and_b32 v12, 15, v1
    v_lshlrev_b32 v12, 4, v12              ; token16*16
    v_bfe_u32 v13, v1, 4, 1                ; q>>4
    v_mul_u32_u24 v13, 20480, v13
    v_add_u32 v12, v12, v13
    v_add_u32 v11, s20, v11                ; G (a=0)
    """)
    for a in range(3):
        r = O_ + 4*a
        A(f"""
        v_add_u32 v13, {2*a}, v11
        v_lshrrev_b32 v14, 3, v13
        v_lshlrev_b32 v14, 10, v14
        v_and_b32 v15, 3, v13
        v_lshl_add_u32 v14, v15, 8, v14
        v_bfe_u32 v15, v13, 2, 1
        v_lshl_add_u32 v14, v15, 3, v14
        v_add_u32 v14, v14, v12
        v_mul_f32 v{r}, v{r}, v10
        v_mul_f32 v{r+1}, v{r+1}, v10
        v_mul_f32 v{r+2}, v{r+2}, v10
        v_mul_f32 v{r+3}, v{r+3}, v10
        v_cvt_pk_bf16_f32 v{r}, v{r}, v{r+1}
        v_cvt_pk_bf16_f32 v{r+1}, v{r+2}, v{r+3}
        """)
        if a == 2:
            A("s_mov_b64 exec, s[28:29]")
        A(f"buffer_store_dwordx2 v[{r}:{r+1}], v14, s[8:11], s21 offen")
    if prof:
        A("s_mov_b64 exec, -1")
        wl_dump(A, 110, 1, 8, 12, 21)
        prof_end(A, 1, 8, 12, tmpv=(16, 17, 18, 19, 20), extra="s90")
    if tl: tl2_record(A, 1, 8, 12)
    A("s_endpgm")

    A(f"""
Lk2_fallback:
    s_mov_b32 s31, 1
    v_mov_b32 v{QA+2}, 0
    v_and_b32 v9, 31, v1
    v_lshrrev_b32 v10, 5, v1
    v_lshlrev_b32 v11, 3, v9
    v_add_u32 v11, 1024, v11
    v_mul_u32_u24 v12, {VH}, v10
    v_min_u32 v13, 21, v9
    v_lshl_add_u32 v12, v13, 4, v12
    v_add_u32 v12, {VPART}, v12
    v_mov_b32 v14, 0xff800000
    s_mov_b32 s18, 0
Lk2_fb1:
    s_lshr_b32 s20, s18, 3
    s_mul_i32 s20, s20, {CH}
    s_and_b32 s21, s18, 7
    s_mul_i32 s21, s21, 1280
    s_add_u32 s20, s20, s21
    s_add_u32 s20, s20, s16
    buffer_load_dwordx4 v[{KF}:{KF+3}], v8, s[8:11], s20 offen
    buffer_load_dwordx2 v[{KT}:{KT+1}], v11, s[8:11], s20 offen
    s_waitcnt vmcnt(0)
    {mf(S_[0], KF, QM, None)}
    {mf(S_[0], KT, QA, S_[0])}
    s_nop 15
    """)
    for i in range(0, 16, 2):
        A(f"v_max3_f32 v14, v14, v{s+i}, v{s+i+1}")
    A(f"""
    s_add_u32 s18, s18, 1
    s_cmp_lt_u32 s18, 64
    s_cbranch_scc1 Lk2_fb1
    v_mov_b32 v15, v14
    s_nop 1
    v_permlane32_swap_b32 v14, v15
    s_nop 1
    v_max_f32 v14, v14, v15
    """)
    for i in range(16): A(f"v_mov_b32 v{O_+i}, 0")
    A(f"""
    s_mov_b32 s18, 0
Lk2_fb2:
    s_lshr_b32 s20, s18, 3
    s_mul_i32 s20, s20, {CH}
    s_and_b32 s21, s18, 7
    s_mul_i32 s22, s21, {VT}
    s_add_u32 s22, s22, s20
    s_add_u32 s22, s22, s16
    s_mul_i32 s21, s21, 1280
    s_add_u32 s20, s20, s21
    s_add_u32 s20, s20, s16
    buffer_load_dwordx4 v[{KF}:{KF+3}], v8, s[8:11], s20 offen
    buffer_load_dwordx2 v[{KT}:{KT+1}], v11, s[8:11], s20 offen
    buffer_load_dwordx4 v[{V0}:{V0+3}], v12, s[8:11], s22 offen
    buffer_load_dwordx4 v[{V1}:{V1+3}], v12, s[8:11], s22 offen offset:{2*VH}
    s_waitcnt vmcnt(0)
    {mf(S_[0], KF, QM, None)}
    {mf(S_[0], KT, QA, S_[0])}
    s_nop 15
    """)
    for i in range(16): A(f"v_sub_f32 v{s+i}, v{s+i}, v14")
    for i in range(16): A(f"v_exp_f32 v{s+i}, v{s+i}")
    A("s_nop 0")
    for i in range(8): A(f"v_cvt_pk_bf16_f32 v{P_+i}, v{s+2*i}, v{s+2*i+1}")
    A(f"""
    s_nop 1
    {mf(O_, V0, P_, O_)}
    {mf(O_, V1, P_+4, O_)}
    s_add_u32 s18, s18, 1
    s_cmp_lt_u32 s18, 64
    s_cbranch_scc1 Lk2_fb2
    s_nop 15
    s_branch Lk2_fin
Lk2_end:
    s_endpgm
    """)
    if shadow: gen_shadow(A, prof, shprio, shmode)
    else: A("Lk2_shadow:\ns_endpgm")
    return A.text(), kdesc(NAME, 168 if shadow else 112), f"; @launch kernel={NAME} grid=(256,1,1) block=({768 if shadow else 512},1,1) lds={3*SLOT + (4*RING if shadow else 0)}"
```

```python
class Asm:
    def __init__(self):
        self.lines = []
        self._uid = 0
    def __call__(self, s):
        for l in s.strip("\n").split("\n"):
            l = l.strip()
            if not l:
                continue
            if l.endswith(":") or l.startswith(".") or l.startswith(";"):
                self.lines.append(l)
            else:
                self.lines.append("    " + l)
    def c(self, s):
        self.lines.append("    ; " + s)
    def label(self, base):
        self._uid += 1
        return f"L{base}_{self._uid}"
    def text(self):
        return "\n".join(self.lines) + "\n"

def vr(a, n=1):
    return f"v{a}" if n == 1 else f"v[{a}:{a+n-1}]"
def sr(a, n=1):
    return f"s{a}" if n == 1 else f"s[{a}:{a+n-1}]"

def srd(A, d, ptr, nbytes):
    A(f"s_mov_b32 s{d}, s{ptr}")
    A(f"s_and_b32 s{d+1}, s{ptr+1}, 0xffff")
    A(f"s_mov_b32 s{d+2}, {nbytes}")
    A(f"s_mov_b32 s{d+3}, 0x00020000")

def kdesc(name, vgpr, sgpr=102, accum=None):
    accum = accum if accum is not None else ((vgpr + 3) // 4) * 4
    return f""".section .rodata,"a"
.p2align 6
.amdhsa_kernel {name}
  .amdhsa_next_free_vgpr {vgpr}
  .amdhsa_next_free_sgpr {sgpr}
  .amdhsa_accum_offset {accum}
  .amdhsa_group_segment_fixed_size 0
  .amdhsa_kernarg_size 88
  .amdhsa_user_sgpr_count 2
  .amdhsa_user_sgpr_kernarg_segment_ptr 1
  .amdhsa_system_sgpr_workgroup_id_x 1
.end_amdhsa_kernel
.text
"""
def khead(name):
    return f""".text
.globl {name}
.p2align 8
.type {name},@function
{name}:
"""

DBG_OFF = 0x1800000
def prof_start(A):
    A("s_memtime s[92:93]")
    A("s_memrealtime s[94:95]")
def prof_end(A, kidx, wsrd, wave_sgpr, tmpv=(120, 121, 122, 123, 124), extra=None):
    a, b, c, d, e = tmpv
    lab = A.label("prof")
    A(f"""
    s_waitcnt lgkmcnt(0)
    s_memtime s[96:97]
    s_memrealtime s[98:99]
    s_waitcnt lgkmcnt(0)
    s_sub_u32 s96, s96, s92
    s_sub_u32 s98, s98, s94
    s_lshl_b32 s97, s2, 4
    s_add_u32 s97, s97, s{wave_sgpr}
    s_lshl_b32 s97, s97, 4
    s_add_u32 s97, s97, {DBG_OFF + kidx*0x20000}
    v_mov_b32 v{a}, s94
    v_mov_b32 v{b}, s96
    v_mov_b32 v{c}, s98
    v_mov_b32 v{d}, {extra if extra else 0}
    v_mov_b32 v{e}, 0
    s_mov_b64 exec, 1
    buffer_store_dwordx4 v[{a}:{d}], v{e}, s[{wsrd}:{wsrd+3}], s97 offen
    """)

def stamp(A, i):
    A("s_memtime s[88:89]")
    A("s_waitcnt lgkmcnt(0)")
    A(f"s_sub_u32 s{70+i}, s88, s92")
def dump_stamps(A, kidx, wsrd, wave_sgpr, n, tmp=16):
    A(f"""
    s_lshl_b32 s97, s2, 4
    s_add_u32 s97, s97, s{wave_sgpr}
    s_lshl_b32 s97, s97, 6
    s_add_u32 s97, s97, {DBG_OFF + 0x100000 + kidx*0x40000}
    v_mov_b32 v{tmp}, 0
    s_mov_b64 exec, 1
    """)
    for i in range(n):
        A(f"v_mov_b32 v{tmp+1}, s{70+i}")
        A(f"buffer_store_dword v{tmp+1}, v{tmp}, s[{wsrd}:{wsrd+3}], s97 offen offset:{4*i}")
        A("s_nop 1")

def wl_stamp(A, vreg, idx):
    A("s_memtime s[88:89]")
    A("s_waitcnt lgkmcnt(0)")
    A("s_sub_u32 s88, s88, s92")
    if isinstance(idx, int):
        A(f"v_writelane_b32 v{vreg}, s88, {idx}")
    else:
        A(f"s_mov_b32 m0, {idx}")
        A("s_nop 0")
        A(f"v_writelane_b32 v{vreg}, s88, m0")
def wl_dump(A, vreg, kidx, wsrd, wave_sgpr, tmp):
    A(f"""
    s_lshl_b32 s97, s2, 4
    s_add_u32 s97, s97, s{wave_sgpr}
    s_lshl_b32 s97, s97, 6
    s_add_u32 s97, s97, {DBG_OFF + 0x100000 + kidx*0x40000}
    s_mov_b64 exec, 0xffff
    v_mbcnt_lo_u32_b32 v{tmp}, -1, 0
    v_lshlrev_b32 v{tmp}, 2, v{tmp}
    buffer_store_dword v{vreg}, v{tmp}, s[{wsrd}:{wsrd+3}], s97 offen
    s_mov_b64 exec, -1
    """)

def touch(A, items, vz, vd0):
    for i, (srd_, off) in enumerate(items):
        if isinstance(off, int):
            if off == 0:
                A(f"buffer_load_dword v{vd0}, v{vz}, s[{srd_}:{srd_+3}], 0 offen")
            else:
                A(f"s_mov_b32 s99, {off}")
                A(f"buffer_load_dword v{vd0}, v{vz}, s[{srd_}:{srd_+3}], s99 offen")
        else:
            A(f"buffer_load_dword v{vd0}, v{vz}, s[{srd_}:{srd_+3}], {off} offen")

def tl_start(A, kidx):
    A("s_memrealtime s[84:85]")
def tl_end(A, kidx, tmpv=(2, 3, 4)):
    a, b, c = tmpv
    lab = A.label("tl")
    A(f"""
    s_load_dwordx2 s[80:81], s[0:1], 72
    s_memrealtime s[82:83]
    s_waitcnt lgkmcnt(0)
    s_sub_u32 s80, s80, {512*kidx}
    s_subb_u32 s81, s81, 0
    s_mov_b64 exec, 1
    v_mov_b32 v{a}, 0
    v_mov_b32 v{b}, s82
    global_atomic_umax v{a}, v{b}, s[80:81] offset:{8*kidx+4}
    v_mov_b32 v{c}, s84
    v_not_b32 v{c}, v{c}
    global_atomic_umax v{a}, v{c}, s[80:81] offset:{8*kidx}
    s_waitcnt vmcnt(0)
    """)

TL_OFF = DBG_OFF + 0x300000
def tl2_record(A, kidx, wsrd, wave_sgpr):
    lab = A.label(f"tl2k{kidx}")
    A(f"""
    s_cmp_eq_u32 s{wave_sgpr}, 0
    s_cbranch_scc0 {lab}
    s_memrealtime s[82:83]
    s_waitcnt lgkmcnt(0)
    s_mov_b64 exec, 1
    v_mov_b32 v2, s84
    v_mov_b32 v3, s82
    v_mov_b32 v4, 0
    s_lshl_b32 s80, s2, 3
    s_add_u32 s80, s80, {TL_OFF + kidx*4096}
    buffer_store_dwordx2 v[2:3], v4, s[{wsrd}:{wsrd+3}], s80 offen
    {lab}:
    """)
def tl2_delay(A, which, wsrd, wave_sgpr):
    lab = A.label("tl2d")
    kind, k = which
    A(f"""
    s_cmp_eq_u32 s2, 0
    s_cbranch_scc0 {lab}
    s_cmp_eq_u32 s{wave_sgpr}, 0
    s_cbranch_scc0 {lab}
    s_mov_b64 exec, -1
    v_and_b32 v2, 63, v0
    v_lshlrev_b32 v2, 5, v2
    s_mov_b32 s80, {TL_OFF + k*4096}
    buffer_load_dwordx4 v[4:7], v2, s[{wsrd}:{wsrd+3}], s80 offen sc1
    buffer_load_dwordx4 v[8:11], v2, s[{wsrd}:{wsrd+3}], s80 offen offset:16 sc1
    s_mov_b32 s80, {TL_OFF + (k+1)*4096}
    buffer_load_dwordx4 v[12:15], v2, s[{wsrd}:{wsrd+3}], s80 offen sc1
    buffer_load_dwordx4 v[16:19], v2, s[{wsrd}:{wsrd+3}], s80 offen offset:16 sc1
    s_waitcnt vmcnt(0)
    v_min_u32 v4, v4, v6
    v_min_u32 v8, v8, v10
    v_min_u32 v4, v4, v8
    v_max_u32 v5, v5, v7
    v_max_u32 v9, v9, v11
    v_max_u32 v5, v5, v9
    v_min_u32 v12, v12, v14
    v_min_u32 v16, v16, v18
    v_min_u32 v12, v12, v16
    s_mov_b32 s81, -1
    s_mov_b32 s82, 0
    s_mov_b32 s83, -1
    s_mov_b32 s86, 0
    {lab}_l:
    s_nop 3
    v_readlane_b32 s87, v4, s86
    s_nop 3
    s_min_u32 s81, s81, s87
    v_readlane_b32 s87, v5, s86
    s_nop 3
    s_max_u32 s82, s82, s87
    v_readlane_b32 s87, v12, s86
    s_nop 3
    s_min_u32 s83, s83, s87
    s_add_u32 s86, s86, 1
    s_cmp_lt_u32 s86, 64
    s_cbranch_scc1 {lab}_l
    """)
    if kind == "span": A("s_sub_u32 s81, s82, s81")
    else: A("s_sub_u32 s81, s83, s82")
    A(f"""
    s_memrealtime s[82:83]
    s_waitcnt lgkmcnt(0)
    s_add_u32 s81, s81, s82
    {lab}_w:
    s_memrealtime s[82:83]
    s_waitcnt lgkmcnt(0)
    s_sub_u32 s87, s82, s81
    s_cmp_lt_i32 s87, 0
    s_cbranch_scc1 {lab}_w
    {lab}:
    """)
```

```python
class Asm:
    def __init__(self):
        self.lines = []
        self._uid = 0
    def __call__(self, s):
        for l in s.strip("\n").split("\n"):
            l = l.strip()
            if not l:
                continue
            if l.endswith(":") or l.startswith(".") or l.startswith(";"):
                self.lines.append(l)
            else:
                self.lines.append("    " + l)
    def c(self, s):
        self.lines.append("    ; " + s)
    def label(self, base):
        self._uid += 1
        return f"L{base}_{self._uid}"
    def text(self):
        return "\n".join(self.lines) + "\n"

def vr(a, n=1):
    return f"v{a}" if n == 1 else f"v[{a}:{a+n-1}]"
def sr(a, n=1):
    return f"s{a}" if n == 1 else f"s[{a}:{a+n-1}]"

WS_BASE = 0
def srd_ws(A, d, ptr, nbytes):
    import asm
    if asm.WS_BASE:
        A(f"s_add_u32 s{d}, s{ptr}, {asm.WS_BASE}")
        A(f"s_addc_u32 s{d+1}, s{ptr+1}, 0")
        A(f"s_and_b32 s{d+1}, s{d+1}, 0xffff")
        A(f"s_mov_b32 s{d+2}, {nbytes}")
        A(f"s_mov_b32 s{d+3}, 0x00020000")
    else:
        srd(A, d, ptr, nbytes)

def srd(A, d, ptr, nbytes):
    A(f"s_mov_b32 s{d}, s{ptr}")
    A(f"s_and_b32 s{d+1}, s{ptr+1}, 0xffff")
    A(f"s_mov_b32 s{d+2}, {nbytes}")
    A(f"s_mov_b32 s{d+3}, 0x00020000")

def kdesc(name, vgpr, sgpr=102, accum=None):
    accum = accum if accum is not None else ((vgpr + 3) // 4) * 4
    return f""".section .rodata,"a"
.p2align 6
.amdhsa_kernel {name}
  .amdhsa_next_free_vgpr {vgpr}
  .amdhsa_next_free_sgpr {sgpr}
  .amdhsa_accum_offset {accum}
  .amdhsa_group_segment_fixed_size 0
  .amdhsa_kernarg_size 88
  .amdhsa_user_sgpr_count 2
  .amdhsa_user_sgpr_kernarg_segment_ptr 1
  .amdhsa_system_sgpr_workgroup_id_x 1
.end_amdhsa_kernel
.text
"""
def khead(name):
    return f""".text
.globl {name}
.p2align 8
.type {name},@function
{name}:
"""

DBG_OFF = 0x1800000
def prof_start(A):
    A("s_memtime s[92:93]")
    A("s_memrealtime s[94:95]")
def prof_end(A, kidx, wsrd, wave_sgpr, tmpv=(120, 121, 122, 123, 124), extra=None):
    a, b, c, d, e = tmpv
    lab = A.label("prof")
    A(f"""
    s_waitcnt lgkmcnt(0)
    s_memtime s[96:97]
    s_memrealtime s[98:99]
    s_waitcnt lgkmcnt(0)
    s_sub_u32 s96, s96, s92
    s_sub_u32 s98, s98, s94
    s_lshl_b32 s97, s2, 4
    s_add_u32 s97, s97, s{wave_sgpr}
    s_lshl_b32 s97, s97, 4
    s_add_u32 s97, s97, {DBG_OFF + kidx*0x20000}
    v_mov_b32 v{a}, s94
    v_mov_b32 v{b}, s96
    v_mov_b32 v{c}, s98
    v_mov_b32 v{d}, {extra if extra else 0}
    v_mov_b32 v{e}, 0
    s_mov_b64 exec, 1
    buffer_store_dwordx4 v[{a}:{d}], v{e}, s[{wsrd}:{wsrd+3}], s97 offen
    """)

def stamp(A, i):
    A("s_memtime s[88:89]")
    A("s_waitcnt lgkmcnt(0)")
    A(f"s_sub_u32 s{70+i}, s88, s92")
def dump_stamps(A, kidx, wsrd, wave_sgpr, n, tmp=16):
    A(f"""
    s_lshl_b32 s97, s2, 4
    s_add_u32 s97, s97, s{wave_sgpr}
    s_lshl_b32 s97, s97, 6
    s_add_u32 s97, s97, {DBG_OFF + 0x100000 + kidx*0x40000}
    v_mov_b32 v{tmp}, 0
    s_mov_b64 exec, 1
    """)
    for i in range(n):
        A(f"v_mov_b32 v{tmp+1}, s{70+i}")
        A(f"buffer_store_dword v{tmp+1}, v{tmp}, s[{wsrd}:{wsrd+3}], s97 offen offset:{4*i}")
        A("s_nop 1")

def wl_stamp(A, vreg, idx):
    A("s_memtime s[88:89]")
    A("s_waitcnt lgkmcnt(0)")
    A("s_sub_u32 s88, s88, s92")
    if isinstance(idx, int):
        A(f"v_writelane_b32 v{vreg}, s88, {idx}")
    else:
        A(f"s_mov_b32 m0, {idx}")
        A("s_nop 0")
        A(f"v_writelane_b32 v{vreg}, s88, m0")
def wl_dump(A, vreg, kidx, wsrd, wave_sgpr, tmp):
    A(f"""
    s_lshl_b32 s97, s2, 4
    s_add_u32 s97, s97, s{wave_sgpr}
    s_lshl_b32 s97, s97, 6
    s_add_u32 s97, s97, {DBG_OFF + 0x100000 + kidx*0x40000}
    s_mov_b64 exec, 0xffff
    v_mbcnt_lo_u32_b32 v{tmp}, -1, 0
    v_lshlrev_b32 v{tmp}, 2, v{tmp}
    buffer_store_dword v{vreg}, v{tmp}, s[{wsrd}:{wsrd+3}], s97 offen
    s_mov_b64 exec, -1
    """)

def touch(A, items, vz, vd0):
    for i, (srd_, off) in enumerate(items):
        if isinstance(off, int):
            if off == 0:
                A(f"buffer_load_dword v{vd0}, v{vz}, s[{srd_}:{srd_+3}], 0 offen")
            else:
                A(f"s_mov_b32 s99, {off}")
                A(f"buffer_load_dword v{vd0}, v{vz}, s[{srd_}:{srd_+3}], s99 offen")
        else:
            A(f"buffer_load_dword v{vd0}, v{vz}, s[{srd_}:{srd_+3}], {off} offen")

def tl_start(A, kidx):
    A("s_memrealtime s[84:85]")
def tl_end(A, kidx, tmpv=(2, 3, 4)):
    a, b, c = tmpv
    lab = A.label("tl")
    A(f"""
    s_load_dwordx2 s[80:81], s[0:1], 72
    s_memrealtime s[82:83]
    s_waitcnt lgkmcnt(0)
    s_sub_u32 s80, s80, {512*kidx}
    s_subb_u32 s81, s81, 0
    s_mov_b64 exec, 1
    v_mov_b32 v{a}, 0
    v_mov_b32 v{b}, s82
    global_atomic_umax v{a}, v{b}, s[80:81] offset:{8*kidx+4}
    v_mov_b32 v{c}, s84
    v_not_b32 v{c}, v{c}
    global_atomic_umax v{a}, v{c}, s[80:81] offset:{8*kidx}
    s_waitcnt vmcnt(0)
    """)

TL_OFF = DBG_OFF + 0x300000
def tl2_record(A, kidx, wsrd, wave_sgpr):
    lab = A.label(f"tl2k{kidx}")
    A(f"""
    s_cmp_eq_u32 s{wave_sgpr}, 0
    s_cbranch_scc0 {lab}
    s_memrealtime s[82:83]
    s_waitcnt lgkmcnt(0)
    s_mov_b64 exec, 1
    v_mov_b32 v2, s84
    v_mov_b32 v3, s82
    v_mov_b32 v4, 0
    s_lshl_b32 s80, s2, 3
    s_add_u32 s80, s80, {TL_OFF + kidx*4096}
    buffer_store_dwordx2 v[2:3], v4, s[{wsrd}:{wsrd+3}], s80 offen
    {lab}:
    """)
def tl2_delay(A, which, wsrd, wave_sgpr):
    lab = A.label("tl2d")
    kind, k = which
    A(f"""
    s_cmp_eq_u32 s2, 0
    s_cbranch_scc0 {lab}
    s_cmp_eq_u32 s{wave_sgpr}, 0
    s_cbranch_scc0 {lab}
    s_mov_b64 exec, -1
    v_and_b32 v2, 63, v0
    v_lshlrev_b32 v2, 5, v2
    s_mov_b32 s80, {TL_OFF + k*4096}
    buffer_load_dwordx4 v[4:7], v2, s[{wsrd}:{wsrd+3}], s80 offen sc1
    buffer_load_dwordx4 v[8:11], v2, s[{wsrd}:{wsrd+3}], s80 offen offset:16 sc1
    s_mov_b32 s80, {TL_OFF + (k+1)*4096}
    buffer_load_dwordx4 v[12:15], v2, s[{wsrd}:{wsrd+3}], s80 offen sc1
    buffer_load_dwordx4 v[16:19], v2, s[{wsrd}:{wsrd+3}], s80 offen offset:16 sc1
    s_waitcnt vmcnt(0)
    v_min_u32 v4, v4, v6
    v_min_u32 v8, v8, v10
    v_min_u32 v4, v4, v8
    v_max_u32 v5, v5, v7
    v_max_u32 v9, v9, v11
    v_max_u32 v5, v5, v9
    v_min_u32 v12, v12, v14
    v_min_u32 v16, v16, v18
    v_min_u32 v12, v12, v16
    s_mov_b32 s81, -1
    s_mov_b32 s82, 0
    s_mov_b32 s83, -1
    s_mov_b32 s86, 0
    {lab}_l:
    s_nop 3
    v_readlane_b32 s87, v4, s86
    s_nop 3
    s_min_u32 s81, s81, s87
    v_readlane_b32 s87, v5, s86
    s_nop 3
    s_max_u32 s82, s82, s87
    v_readlane_b32 s87, v12, s86
    s_nop 3
    s_min_u32 s83, s83, s87
    s_add_u32 s86, s86, 1
    s_cmp_lt_u32 s86, 64
    s_cbranch_scc1 {lab}_l
    """)
    if kind == "span": A("s_sub_u32 s81, s82, s81")
    elif kind == "zero": A("s_mov_b32 s81, 0")
    elif kind == "tot":
        A("s_sub_u32 s81, s84, s81")
    else: A("s_sub_u32 s81, s83, s82")
    A(f"""
    s_memrealtime s[82:83]
    s_waitcnt lgkmcnt(0)
    s_add_u32 s81, s81, s82
    {lab}_w:
    s_memrealtime s[82:83]
    s_waitcnt lgkmcnt(0)
    s_sub_u32 s87, s82, s81
    s_cmp_lt_i32 s87, 0
    s_cbranch_scc1 {lab}_w
    {lab}:
    """)
```

```python
from asm import *
from common import *

NAME = "k1_kernel"
SLOT = 45056
XO, WQO, W1O = 0, 16384, 32768
GATE_LDS = 3 * SLOT
LDS_BYTES = 3 * SLOT + 1280 + 256

def gen_k1(prof=False, mode=0, pf=0, rot=2, tlb=1, tl=0, sc=0):
    SC = {0: '', 1: ' sc1', 2: ' nt', 3: ' sc0 sc1'}[sc & 3]
    SCQ = SC if sc & 4 else ''
    ROT = rot
    A0 = Asm()
    class F:
        def __init__(s): s.inloop = False
        def __call__(s, l):
            for x in l.strip("\n").split("\n"):
                xs = x.strip()
                if s.inloop:
                    if mode == 1 and xs.startswith("buffer_load") : continue
                    if mode == 2 and (xs.startswith("v_mfma") or xs.startswith("ds_read")): continue
                    if mode == 3 and xs.startswith("v_mfma"): continue
                    if mode in (4, 6) and xs.startswith("s_barrier"): continue
                    if mode == 6 and xs.startswith("buffer_load"): continue
                    if mode == 5 and xs.startswith("ds_read"): continue
                    if mode == 7 and (xs.startswith("buffer_load") or xs.startswith("ds_read")): continue
                    if mode == 8 and (xs.startswith("buffer_load") or xs.startswith("ds_read") or xs.startswith("s_barrier")): continue
                    if mode == 10 and (xs.startswith("buffer_load") or xs.startswith("ds_read") or xs.startswith("s_barrier") or xs.startswith("s_add_u32 m0") or xs.startswith("s_add_u32 s48") or xs.startswith("s_nop 0") or xs.startswith("v_add_u32")): continue
                if xs.endswith("_loop:"): s.inloop = True
                if xs.startswith("s_cbranch_scc1") and xs.endswith("g_loop"): s.inloop = False
                A0(x)
        def label(s, b): return A0.label(b)
        def text(s): return A0.text()
    A = F()
    A(khead(NAME))
    A(f"""
    s_cmp_ge_u32 s2, 256
    s_cbranch_scc1 Lk1_exit
    """)
    if prof: prof_start(A)
    if tl: tl_start(A, 0)
    A(f"""
    s_load_dwordx4 s[4:7], s[0:1], 0       ; A_x, wqkv
    s_load_dwordx4 s[8:11], s[0:1], 32     ; w1, b1
    s_load_dwordx2 s[12:13], s[0:1], 56    ; gate_w
    s_load_dwordx2 s[14:15], s[0:1], 80    ; ws
    v_lshrrev_b32 v1, 6, v0
    v_and_b32 v2, 63, v0                   ; lane
    s_and_b32 s41, s2, 7                   ; xcd
    v_readfirstlane_b32 s32, v1
    s_lshr_b32 s42, s2, 3                  ; i
    s_and_b32 s43, s41, 1
    s_lshl_b32 s43, s43, 3
    s_and_b32 s44, s42, 7
    s_add_u32 s34, s43, s44                ; rb
    s_lshr_b32 s43, s41, 1
    s_lshl_b32 s43, s43, 2
    s_lshr_b32 s44, s42, 3
    s_add_u32 s35, s43, s44                ; cgp
    s_mul_i32 s45, s35, 52
    s_lshr_b32 s45, s45, 8                 ; cgp/5
    s_add_u32 s33, s45, 1
    s_mul_i32 s45, s45, 5
    s_sub_u32 s46, s35, s45                ; cbl (0..4)
    s_cmp_eq_u32 s35, 15
    s_cselect_b32 s33, 0, s33
    v_lshrrev_b32 v3, 3, v2
    v_mul_u32_u24 v3, 1280, v3
    v_and_b32 v13, 7, v2
    v_lshrrev_b32 v14, 4, v2               ; lane>>4
    v_xor_b32 v15, v13, v14
    v_lshl_add_u32 v10, v15, 4, v3         ; even u
    v_xor_b32 v15, 4, v15
    v_lshl_add_u32 v11, v15, 4, v3         ; odd u
    s_lshl_b32 s37, s34, 7                 ; rb*128
    s_lshl_b32 s41, s32, 4                 ; w*16 rows
    s_add_u32 s37, s37, s41
    s_mul_i32 s37, s37, 1280
    s_lshl_b32 s42, s32, 11
    s_lshr_b32 s57, s2, 3                  ; i
    s_and_b32 s78, s57, 7
    s_lshr_b32 s57, s57, 3
    s_lshl_b32 s57, s57, 1
    s_add_u32 s78, s78, s57
    s_mul_i32 s78, s78, {1 if ROT else 0}
    s_mov_b32 s56, 0
    s_mov_b32 s69, 0
    s_mov_b32 s58, s37
    s_mov_b32 s79, 0
    """)
    if ROT == 2:
        A("""
        s_cmp_ge_u32 s78, 10
        s_cselect_b32 s57, 10, 0
        s_sub_u32 s78, s78, s57
        s_mov_b32 s79, s78
        s_mov_b32 s69, s78
        s_lshl_b32 s57, s79, 7
        s_add_u32 s37, s58, s57
        """)
    A(f"""
    s_waitcnt lgkmcnt(0)
    """)
    if prof:
        A("s_memtime s[88:89]")
        A("s_waitcnt lgkmcnt(0)")
        A("s_sub_u32 s87, s88, s92")
    srd(A, 16, 4, X_BYTES)
    srd_ws(A, 24, 14, WS_RECORDS)
    srd(A, 60, 6, WQKV_BYTES)
    srd(A, 64, 8, W1_BYTES)
    if tlb:
        A("s_cmp_eq_u32 s32, 0")
        A("s_cbranch_scc0 Lk1_notouch")
        srd(A, 28, 10, B1_BYTES)
        A("v_mov_b32 v3, 0")
        MB2 = 2 << 20
        touch(A, [(16, "s37"), (60, 0), (60, MB2), (64, 0), (28, 0)] + [(24, k*MB2) for k in range(7)] + [(24, G_OFF)], 3, 1)
        A("Lk1_notouch:")
    A(f"""
    s_cmp_ge_u32 s32, 8
    s_cbranch_scc1 Lk1_H
    s_cmp_ge_u32 s32, 4
    s_cbranch_scc1 Lk1_R
    """)

    def adv_group(ws):
        if ROT == 2:
            g = ["s_add_u32 s79, s79, 1", "s_cmp_eq_u32 s79, 10", "s_cselect_b32 s79, 0, s79", "s_lshl_b32 s57, s79, 7", "s_add_u32 s37, s58, s57"]
        else:
            g = ["s_add_u32 s56, s56, 1", "s_add_u32 s57, s56, s78", "s_sub_u32 s57, s57, 2", "s_and_b32 s57, s57, 7", "s_add_u32 s57, s57, 2",
                 "s_cmp_lt_u32 s56, 2", "s_cselect_b32 s79, s56, s57", "s_lshl_b32 s57, s79, 7", "s_add_u32 s37, s58, s57"]
        if ws:
            g += [f"s_mul_i32 s57, s79, {ws}", "s_add_u32 s38, s59, s57"]
        return g

    def x_dma(slot_sgpr):
        g = []
        for j in range(2):
            g.append([f"s_add_u32 m0, {slot_sgpr}, {j*1024}", f"s_add_u32 s48, s37, {j*10240}",
                      f"buffer_load_dwordx4 v{10 + j}, s[16:19], s48 offen lds"])
        return g

    def xfrag_addr(rowbase_expr_sgpr):
        A(f"""
        v_and_b32 v3, 31, v2                   ; token
        v_lshrrev_b32 v13, 5, v2               ; hf
        v_bfe_u32 v14, v2, 1, 3
        v_xor_b32 v14, v13, v14
        v_lshlrev_b32 v14, 4, v14
        v_lshl_add_u32 v14, v3, 7, v14
        v_add_u32 v56, {rowbase_expr_sgpr}, v14
        v_xor_b32 v57, 32, v56
        v_xor_b32 v58, 64, v56
        v_xor_b32 v59, 96, v56
        """)

    def set_slot(nw, sgpr):
        out = [f"v_add_u32 v{4+k}, {sgpr}, v{56+k}" for k in range(4)]
        out += [f"v_add_u32 v{8+k}, {sgpr}, v{60+k}" for k in range(nw)]
        return out

    def interleave(ms, others):
        n = len(ms)
        per = (len(others) + n - 1) // n
        k = 0
        for i, m in enumerate(ms):
            A(m)
            for grp in others[k:k+per]:
                for l in grp: A(l)
            k += per

    def kstep(ms, rd, extra, wait=True, skip_last=False):
        if wait: A("s_waitcnt lgkmcnt(0)")
        n = len(ms) - (1 if skip_last else 0)
        A(ms[0])
        for grp in rd:
            for l in grp: A(l)
        slots = max(1, n - 1)
        per = (len(extra) + slots - 1) // slots if extra else 0
        k = 0
        for i in range(1, n):
            A(ms[i])
            for grp in extra[k:k+per]:
                for l in grp: A(l)
            k += per
        for grp in extra[k:]:
            for l in grp: A(l)

    def loop(tag, nown, reads, mfmas, dma_groups, nw):
        A(f"s_waitcnt vmcnt({nown})")
        A("s_barrier")
        if prof:
            A("s_memtime s[90:91]")
            A("s_waitcnt lgkmcnt(0)")
            A("s_sub_u32 s90, s90, s92")
        for l in set_slot(nw, "0"): A(l)
        for l in reads(0, 0): A(l)
        A(f"s_mov_b32 s50, {SLOT}")
        A.inloop = True
        g = dma_groups()
        adv = g[-1]; g = g[:-1]
        parts = [[], [], [], []]
        for i, grp in enumerate(g): parts[i * 4 // len(g)].append(grp)
        R = lambda ks, fs: [[l] for l in reads(ks, fs)]
        rot = [["s_mov_b32 s51, s50", f"s_add_u32 s50, s50, {SLOT}", f"s_cmp_ge_u32 s50, {3*SLOT}", "s_cselect_b32 s50, 0, s50",
                "s_add_u32 s52, s51, s42", "s_add_u32 s53, s51, s43"]]
        A(f"s_add_u32 s52, s42, {2*SLOT}")
        A(f"s_add_u32 s53, s43, {2*SLOT}")
        kstep(mfmas(0), R(1, 1), parts[0] + parts[1])
        kstep(mfmas(1), R(2, 0), parts[2])
        kstep(mfmas(0), R(3, 1), parts[3] + [adv] + [["s_mov_b32 s52, s42", "s_mov_b32 s53, s43", "s_mov_b32 s40, 0"]], skip_last=True)
        def section(dma, vm, final=False):
            A(mfmas(0)[-1])
            A(f"s_waitcnt vmcnt({vm}) lgkmcnt(0)")
            A("s_barrier")
            if final:
                for m in mfmas(1): A(m)
                return
            rd = R(0, 0)
            rd[0] = set_slot(nw, "s50") + rd[0]
            P_ = parts if dma else [[], [], [], []]
            kstep(mfmas(1), rd, P_[0], wait=False)
            kstep(mfmas(0), R(1, 1), P_[1])
            kstep(mfmas(1), R(2, 0), P_[2])
            tail = (P_[3] + [adv] if dma else []) + rot
            if dma: tail = tail + [["s_add_u32 s40, s40, 1", "s_cmp_lt_u32 s40, 7"]]
            kstep(mfmas(0), R(3, 1), tail, skip_last=True)
        A(f"L{tag}_loop:")
        section(True, nown)
        A(f"s_cbranch_scc1 L{tag}_loop")
        section(False, nown)
        section(False, 0)
        section(False, 0, final=True)
        A.inloop = False
        A("s_nop 15")
        if prof:
            A("s_memtime s[88:89]")
            A("s_waitcnt lgkmcnt(0)")
            A("s_sub_u32 s91, s88, s92")

    A(f"""
    s_cmp_eq_u32 s33, 0
    s_cbranch_scc1 Lk1_gate
    """)
    srd(A, 20, 6, WQKV_BYTES)
    A(f"""
    s_mov_b32 s36, 3840
    v_and_b32 v13, 15, v2
    v_lshlrev_b32 v15, 2, v14
    v_xor_b32 v13, v13, v15
    v_mul_u32_u24 v15, 3840, v14
    v_lshl_add_u32 v12, v13, 4, v15
    s_mul_i32 s38, s32, {16*3840}          ; w*16 k-rows
    s_lshl_b32 s41, s35, 8                 ; cgp*128*2
    s_add_u32 s59, s38, s41
    s_mul_i32 s57, s79, {64*3840}
    s_add_u32 s38, s59, s57
    s_lshl_b32 s43, s32, 12
    s_add_u32 s43, s43, {WQO}
    """)
    def p_dma():
        g = x_dma("s52")
        for j in range(4):
            g.append([f"s_add_u32 m0, s53, {j*1024}",
                      (f"s_add_u32 s48, s38, {j*4*3840}"),
                      f"buffer_load_dwordx4 v12, s[20:23], s48 offen lds"])
        g.append(adv_group(64*3840))
        return g
    def stage_issue(st, dmaf):
        A(f"s_add_u32 s52, s42, {st*SLOT}")
        A(f"s_add_u32 s53, s43, {st*SLOT}")
        for grp in dmaf():
            for l in grp: A(l)
    if prof: wl_stamp(A, 63, 0)
    stage_issue(0, p_dma)
    if prof: wl_stamp(A, 63, 1)
    A("s_barrier")
    if prof: wl_stamp(A, 63, 2)
    LATE_P = True
    A("s_lshr_b32 s41, s32, 1")
    A("s_lshl_b32 s41, s41, 13")
    xfrag_addr("s41")
    A(f"""
    v_bfe_u32 v14, v2, 2, 2                ; r
    v_lshl_add_u32 v15, v13, 3, v14
    v_lshlrev_b32 v15, 8, v15
    v_bfe_u32 v3, v2, 4, 1
    v_lshl_add_u32 v15, v3, 5, v15
    v_and_b32 v3, 3, v2
    v_lshl_add_u32 v15, v3, 3, v15
    v_add_u32 v15, {WQO}, v15
    s_and_b32 s41, s32, 1
    s_lshl_b32 s41, s41, 1
    v_xor_b32 v3, s41, v14                 ; ct ^ r
    v_lshl_add_u32 v60, v3, 6, v15
    v_xor_b32 v3, 1, v3
    v_lshl_add_u32 v61, v3, 6, v15
    """)
    if prof: wl_stamp(A, 63, 3)
    stage_issue(1, p_dma)
    if prof: wl_stamp(A, 63, 4)
    for i in range(64): A(f"v_mov_b32 v{64+i}, 0")
    def p_reads(ks, fs):
        b = 16 + 16*fs
        return [
            f"ds_read_b128 v[{b}:{b+3}], v{4+ks}",
            f"ds_read_b64_tr_b16 v[{b+8}:{b+9}], v8 offset:{ks*4096}",
            f"ds_read_b64_tr_b16 v[{b+10}:{b+11}], v8 offset:{ks*4096 + 1024}",
            f"ds_read_b128 v[{b+4}:{b+7}], v{4+ks} offset:4096",
            f"ds_read_b64_tr_b16 v[{b+12}:{b+13}], v9 offset:{ks*4096}",
            f"ds_read_b64_tr_b16 v[{b+14}:{b+15}], v9 offset:{ks*4096 + 1024}",
        ]
    def p_mfmas(normal):
        def f(fs):
            b = 16 + 16*fs
            out = []
            for rt in range(2):
                for ct in range(2):
                    d = 64 + 16*(2*rt + ct)
                    x = f"v[{b+4*rt}:{b+4*rt+3}]"; w = f"v[{b+8+4*ct}:{b+8+4*ct+3}]"
                    a_, b_ = (x, w) if normal else (w, x)
                    out.append(f"v_mfma_f32_32x32x16_bf16 v[{d}:{d+15}], {a_}, {b_}, v[{d}:{d+15}]")
            return out
        return f
    A(f"""
    s_lshr_b32 s41, s32, 1
    s_lshl_b32 s41, s41, 1
    s_lshl_b32 s44, s34, 2
    s_add_u32 s44, s44, s41                ; T (rt'=0)
    s_cmp_eq_u32 s33, 3
    s_cbranch_scc1 Lk1_mainV
    s_cmp_eq_u32 s33, 1
    s_cbranch_scc0 Lk1_isK
    s_mul_i32 s68, s44, 1280
    s_add_u32 s68, s68, {QF_OFF}
    s_mov_b32 s49, {HSQ}
    s_mov_b32 s70, {f32bits(QSCALE):#x}
    s_branch Lk1_qk
Lk1_isK:
    s_lshr_b32 s68, s44, 3
    s_mul_i32 s68, s68, {CH}
    s_and_b32 s41, s44, 7
    s_mul_i32 s41, s41, 1280
    s_add_u32 s68, s68, s41
    s_add_u32 s68, s68, {KV_OFF}
    s_mov_b32 s49, {HSK}
    s_mov_b32 s70, 1.0
Lk1_qk:
    s_mov_b32 s71, s70
    s_and_b32 s41, s32, 1
    s_lshl_b32 s41, s41, 4
    s_lshl_b32 s55, s46, 5
    s_add_u32 s55, s55, s41                ; G0 base
    v_lshrrev_b32 v13, 5, v2               ; hf
    v_and_b32 v3, 31, v2                   ; token
    v_lshlrev_b32 v14, 4, v3
    v_lshlrev_b32 v15, 3, v3
    v_add_u32 v15, 1024, v15
    """)
    for ct in range(2):
        for a in range(4):
            d = 48 + 4*ct + a
            A(f"""
            v_add_u32 v16, {8*ct + 2*a}, v13
            v_add_u32 v16, s55, v16
            v_mul_u32_u24 v17, 205, v16
            v_lshrrev_b32 v17, 10, v17             ; h = G/5
            v_mul_u32_u24 v18, 5, v17
            v_sub_u32 v18, v16, v18                ; j
            v_lshrrev_b32 v19, 1, v18
            v_lshlrev_b32 v19, 9, v19
            v_and_b32 v20, 1, v18
            v_lshl_add_u32 v19, v20, 3, v19
            v_add_u32 v19, v19, v14
            v_cmp_eq_u32 vcc, 4, v18
            v_mul_lo_u32 v17, v17, s49
            s_nop 0
            v_cndmask_b32 v19, v19, v15, vcc
            v_add_u32 v{d}, v19, v17
            """)
    loop("k1T", 6, p_reads, p_mfmas(False), p_dma, 2)
    for ct in range(2):
        for a in range(4):
            for rt in range(2):
                r = 64 + 16*(2*rt + ct) + 4*a
                t = 16 + 2*((2*(4*ct + a) + rt) & 7)
                A(f"""
                v_pk_mul_f32 v[{r}:{r+1}], v[{r}:{r+1}], s[70:71]
                v_pk_mul_f32 v[{r+2}:{r+3}], v[{r+2}:{r+3}], s[70:71]
                v_cvt_pk_bf16_f32 v{t}, v{r}, v{r+1}
                v_cvt_pk_bf16_f32 v{t+1}, v{r+2}, v{r+3}
                buffer_store_dwordx2 v[{t}:{t+1}], v{48 + 4*ct + a}, s[24:27], s68 offen offset:{rt*1280}{SCQ}
                """)
    A("s_branch Lk1_end")
    A("Lk1_mainV:")
    A(f"""
    s_lshr_b32 s68, s44, 3
    s_mul_i32 s68, s68, {CH}
    s_and_b32 s41, s44, 7
    s_mul_i32 s41, s41, {VT}
    s_add_u32 s68, s68, s41
    s_add_u32 s68, s68, {KV_OFF + VPART}
    s_and_b32 s41, s32, 1
    s_lshl_b32 s41, s41, 6
    s_lshl_b32 s55, s46, 7
    s_add_u32 s55, s55, s41
    v_and_b32 v3, 31, v2
    v_lshrrev_b32 v13, 5, v2               ; hf
    v_mul_u32_u24 v14, {VH}, v13
    s_mov_b32 s49, {HSK}
    """)
    for ct in range(2):
        A(f"""
        v_add_u32 v16, {32*ct}, v3
        v_add_u32 v16, s55, v16                ; c
        v_mul_u32_u24 v17, 3277, v16
        v_lshrrev_b32 v17, 16, v17             ; h
        v_mul_u32_u24 v18, 20, v17
        v_sub_u32 v18, v16, v18                ; dh
        v_mul_lo_u32 v17, v17, s49
        v_lshl_add_u32 v19, v18, 4, v17
        v_add_u32 v{48+ct}, v19, v14
        v_cmp_eq_u32 s[{72+2*ct}:{73+2*ct}], 0, v18
        """)
    loop("k1N", 6, p_reads, p_mfmas(True), p_dma, 2)
    A(f"""
    v_mov_b32 v28, 0x3f803f80
    v_mov_b32 v29, 0x3f803f80
    v_mov_b32 v30, 0x3f803f80
    v_mov_b32 v31, 0x3f803f80
    v_mov_b32 v52, 0
    v_mov_b32 v53, 0
    v_mov_b32 v54, 0
    v_mov_b32 v55, 0
    """)
    for ct in range(2):
        for rt in range(2):
            for j in range(2):
                r = 64 + 16*(2*rt + ct) + 8*j
                t = 32 + 4*(2*rt + j)
                for m in range(4):
                    A(f"v_cvt_pk_bf16_f32 v{t+m}, v{r+2*m}, v{r+2*m+1}")
                A(f"buffer_store_dwordx4 v[{t}:{t+3}], v{48+ct}, s[24:27], s68 offen offset:{rt*VT + j*2*VH}{SC}")
        A(f"""
        s_mov_b64 exec, s[{72+2*ct}:{73+2*ct}]
        s_cbranch_execz Lk1_noones{ct}
        """)
        for rt in range(2):
            for j in range(2):
                A(f"buffer_store_dwordx4 v[28:31], v{48+ct}, s[24:27], s68 offen offset:{320 + rt*VT + j*2*VH}")
                A(f"buffer_store_dwordx4 v[52:55], v{48+ct}, s[24:27], s68 offen offset:{336 + rt*VT + j*2*VH}")
        A(f"""
Lk1_noones{ct}:
        s_mov_b64 exec, -1
        """)
    A("s_branch Lk1_end")

    A("Lk1_gate:")
    srd(A, 28, 12, GW_BYTES)
    A(f"""
    s_mul_i32 s41, s32, 320
    s_add_u32 m0, s41, {GATE_LDS}
    v_lshlrev_b32 v12, 4, v2
    v_cmp_gt_u32 vcc, 20, v2
    s_and_saveexec_b64 s[76:77], vcc
    buffer_load_dwordx4 v12, s[28:31], s41 offen lds
    s_mov_b64 exec, s[76:77]
    """)
    def g_dma():
        g = x_dma("s52")
        g.append(adv_group(0))
        return g
    for st in range(2):
        A(f"s_add_u32 s52, s42, {st*SLOT}")
        for grp in g_dma():
            for l in grp: A(l)
        if st == 0: A("s_barrier")
    A("s_lshl_b32 s41, s32, 12")
    xfrag_addr("s41")
    A(f"""
    v_lshlrev_b32 v9, 4, v13               ; hf*16
    v_add_u32 v62, {GATE_LDS}, v9
    s_lshl_b32 s57, s69, 7
    v_add_u32 v9, s57, v62
    v_mov_b32 v60, 0
    s_mov_b32 s43, 0
    """)
    for i in range(16): A(f"v_mov_b32 v{64+i}, 0")
    def g_reads(ks, fs):
        b = 16 + 16*fs
        out = [f"ds_read_b128 v[{b}:{b+3}], v{4+ks}", f"ds_read_b128 v[{b+4}:{b+7}], v9 offset:{ks*32}"]
        if ks == 3:
            if ROT == 2:
                out += ["s_add_u32 s69, s69, 1", "s_cmp_eq_u32 s69, 10", "s_cselect_b32 s69, 0, s69", "s_lshl_b32 s57, s69, 7", "v_add_u32 v9, s57, v62"]
            else:
                out += ["s_add_u32 s69, s69, 1", "s_add_u32 s57, s69, s78", "s_sub_u32 s57, s57, 2", "s_and_b32 s57, s57, 7", "s_add_u32 s57, s57, 2",
                        "s_cmp_lt_u32 s69, 2", "s_cselect_b32 s57, s69, s57", "s_lshl_b32 s57, s57, 7", "v_add_u32 v9, s57, v62"]
        return out
    def g_mfmas(fs):
        b = 16 + 16*fs
        return [f"v_mfma_f32_32x32x16_bf16 v[64:79], v[{b+4}:{b+7}], v[{b}:{b+3}], v[64:79]"]
    A(f"s_waitcnt vmcnt(2)")
    A("s_barrier")
    A(f"s_add_u32 s52, s42, {2*SLOT}")
    for grp in g_dma():
        for l in grp: A(l)
    if prof:
        A("s_mov_b32 s90, 0")
    for l in set_slot(0, "0"): A(l)
    for l in g_reads(0, 0): A(l)
    A("s_mov_b32 s40, 0")
    A(f"s_mov_b32 s50, {SLOT}")
    A("s_mov_b32 s51, 0")
    A("Lk1g_loop:")
    for ks in range(3):
        fs = ks & 1
        for l in g_reads(ks + 1, fs ^ 1): A(l)
        A("s_waitcnt lgkmcnt(2)")
        for l in g_mfmas(fs): A(l)
    A(f"""
    s_cmp_lt_u32 s40, 8
    s_cbranch_scc1 Lk1g_a
    s_waitcnt vmcnt(0)
Lk1g_a:
    s_waitcnt vmcnt(2) lgkmcnt(0)
    s_barrier
    """)
    for l in set_slot(0, "s50"): A(l)
    for l in g_mfmas(1): A(l)
    for l in g_reads(0, 0): A(l)
    A(f"""
    s_cmp_lt_u32 s40, 7
    s_cbranch_scc0 Lk1g_b
    s_add_u32 s52, s51, s42
    """)
    for grp in g_dma():
        for l in grp: A(l)
    A(f"""
Lk1g_b:
    s_mov_b32 s51, s50
    s_add_u32 s50, s50, {SLOT}
    s_cmp_ge_u32 s50, {3*SLOT}
    s_cselect_b32 s50, 0, s50
    s_add_u32 s40, s40, 1
    s_cmp_lt_u32 s40, 10
    s_cbranch_scc1 Lk1g_loop
    s_waitcnt lgkmcnt(0)
    s_nop 15
    v_mul_f32 v16, {f32bits(-LOG2E):#x}, v64
    v_exp_f32 v16, v16
    s_nop 0
    v_add_f32 v16, 1.0, v16
    v_rcp_f32 v16, v16
    s_lshl_b32 s44, s34, 2
    s_add_u32 s44, s44, s32                ; T
    s_lshl_b32 s44, s44, 7                 ; *32*4 bytes
    s_add_u32 s44, s44, {G_OFF}
    v_lshlrev_b32 v17, 2, v2
    v_cmp_gt_u32 vcc, 32, v2
    s_and_saveexec_b64 s[76:77], vcc
    buffer_store_dword v16, v17, s[24:27], s44 offen
    s_mov_b64 exec, s[76:77]
    s_branch Lk1_end
    """)

    A("Lk1_R:")
    if prof:
        A("v_writelane_b32 v61, s87, 8")
        wl_stamp(A, 61, 9)
    srd(A, 20, 8, W1_BYTES)
    srd(A, 28, 10, B1_BYTES)
    A(f"""
    s_sub_u32 s47, s32, 4
    s_mul_i32 s41, s35, 192
    v_lshrrev_b32 v3, 5, v2
    v_lshlrev_b32 v3, 4, v3
    """)
    if prof: wl_stamp(A, 61, 12)
    A(f"""
    buffer_load_dwordx4 v[112:115], v3, s[28:31], s41 offen
    """)
    if prof: wl_stamp(A, 61, 13)
    A(f"""
    buffer_load_dwordx4 v[116:119], v3, s[28:31], s41 offen offset:32
    buffer_load_dwordx4 v[120:123], v3, s[28:31], s41 offen offset:64
    buffer_load_dwordx4 v[124:127], v3, s[28:31], s41 offen offset:96
    buffer_load_dwordx4 v[48:51], v3, s[28:31], s41 offen offset:128
    buffer_load_dwordx4 v[52:55], v3, s[28:31], s41 offen offset:160
    """)
    if prof: wl_stamp(A, 61, 14)
    for j, reg in enumerate((12, 62, 63)):
        A(f"""
        s_mul_i32 s41, s47, 192
        s_add_u32 s41, s41, {64*j}
        v_add_u32 v13, s41, v2                 ; t
        v_mul_u32_u24 v14, 5462, v13
        v_lshrrev_b32 v14, 16, v14             ; t/12
        v_mul_u32_u24 v15, 12, v14
        v_sub_u32 v15, v13, v15
        v_mul_u32_u24 v14, 3072, v14
        v_lshl_add_u32 v{reg}, v15, 4, v14
        """)
    A(f"""
    s_mul_i32 s59, s35, 192
    s_mul_i32 s57, s79, {64*3072}
    s_add_u32 s38, s59, s57
    s_mul_i32 s43, s47, 3072
    s_add_u32 s43, s43, {W1O}
    """)
    def r_dma():
        g = x_dma("s52")
        for j, reg in enumerate((12, 62, 63)):
            g.append([f"s_add_u32 m0, s53, {j*1024}", "s_nop 0",
                      f"buffer_load_dwordx4 v{reg}, s[20:23], s38 offen lds"])
        g.append(adv_group(64*3072))
        return g
    def r_stage(st):
        A(f"s_add_u32 s52, s42, {st*SLOT}")
        A(f"s_add_u32 s53, s43, {st*SLOT}")
        for grp in r_dma():
            for l in grp: A(l)
    if prof: wl_stamp(A, 61, 0)
    r_stage(0)
    if prof: wl_stamp(A, 61, 1)
    A("s_barrier")
    A("s_lshl_b32 s41, s47, 12")
    xfrag_addr("s41")
    A(f"""
    v_bfe_u32 v14, v2, 2, 2
    v_lshl_add_u32 v15, v13, 3, v14
    v_mul_u32_u24 v15, 192, v15
    v_bfe_u32 v3, v2, 4, 1
    v_lshl_add_u32 v15, v3, 5, v15
    v_and_b32 v3, 3, v2
    v_lshrrev_b32 v1, 1, v3
    v_and_b32 v3, 1, v3
    v_lshl_or_b32 v3, v3, 1, v1
    v_lshl_add_u32 v15, v3, 3, v15
    v_add_u32 v60, {W1O}, v15
    """)
    if prof: wl_stamp(A, 61, 2)
    r_stage(1)
    if prof: wl_stamp(A, 61, 3)
    A("s_waitcnt vmcnt(10)")
    if prof:
        wl_stamp(A, 61, 4)
    bsrc = [112, 116, 120, 124, 48, 52]
    for ct in range(3):
        for half in range(2):
            for m in range(4):
                src = bsrc[2*ct + half] + m
                d = 64 + 16*ct + 8*half + 2*m
                A(f"v_lshlrev_b32 v{d}, 16, v{src}")
                A(f"v_and_b32 v{d+1}, 0xffff0000, v{src}")
    def r_reads(ks, fs):
        b = 16 + 16*fs
        out = [f"ds_read_b128 v[{b}:{b+3}], v{4+ks}"]
        for ct in range(3):
            out.append(f"ds_read_b64_tr_b16 v[{b+4+4*ct}:{b+5+4*ct}], v8 offset:{ks*16*192 + ct*64}")
            out.append(f"ds_read_b64_tr_b16 v[{b+6+4*ct}:{b+7+4*ct}], v8 offset:{ks*16*192 + 4*192 + ct*64}")
        return out
    def r_mfmas(fs):
        b = 16 + 16*fs
        return [f"v_mfma_f32_32x32x16_bf16 v[{64+16*ct}:{64+16*ct+15}], v[{b+4+4*ct}:{b+7+4*ct}], v[{b}:{b+3}], v[{64+16*ct}:{64+16*ct+15}]" for ct in range(3)]
    loop("k1R", 5, r_reads, r_mfmas, r_dma, 1)
    A(f"""
    s_lshl_b32 s44, s34, 2
    s_add_u32 s44, s44, s47                ; T
    s_mul_i32 s45, s44, {96*1024}
    s_mul_i32 s41, s35, {6*1024}
    s_add_u32 s45, s45, s41
    s_add_u32 s45, s45, {ACT_OFF}
    s_add_u32 s46, s45, 4096
    v_lshlrev_b32 v13, 4, v2               ; lane*16
    s_mov_b32 s54, {f32bits(LOG2E):#x}
    s_mov_b32 s55, s54
    v_mov_b32 v2, 2.0
    v_mov_b32 v3, 2.0
    """)
    def mish8(r, t0):
        for p in range(4):
            A(f"v_pk_mul_f32 v[{t0+2*p}:{t0+2*p+1}], v[{r+2*p}:{r+2*p+1}], s[54:55]")
        for i in range(8):
            A(f"v_exp_f32 v{t0+i}, v{t0+i}")
        for p in range(4):
            A(f"v_pk_add_f32 v[{t0+8+2*p}:{t0+8+2*p+1}], v[{t0+2*p}:{t0+2*p+1}], v[2:3]")
        for p in range(4):
            A(f"v_pk_fma_f32 v[{t0+2*p}:{t0+2*p+1}], v[{t0+2*p}:{t0+2*p+1}], v[{t0+8+2*p}:{t0+8+2*p+1}], v[2:3]")
        for i in range(8):
            A(f"v_rcp_f32 v{t0+i}, v{t0+i}")
        A("s_nop 0")
        for p in range(4):
            A(f"v_pk_fma_f32 v[{t0+2*p}:{t0+2*p+1}], v[{t0+2*p}:{t0+2*p+1}], -2.0, 1.0 op_sel_hi:[1,0,0]")
        for p in range(4):
            A(f"v_pk_mul_f32 v[{r+2*p}:{r+2*p+1}], v[{r+2*p}:{r+2*p+1}], v[{t0+2*p}:{t0+2*p+1}]")
    k = 0
    for ct in range(3):
        for j in range(2):
            r = 64 + 16*ct + 8*j
            mish8(r, 16)
            t = 32 + 4*(k & 3); k += 1
            for m in range(4):
                A(f"v_cvt_pk_bf16_f32 v{t+m}, v{r+2*m}, v{r+2*m+1}")
            o = (2*ct + j)*1024
            so, o = ("s45", o) if o < 4096 else ("s46", o - 4096)
            A(f"buffer_store_dwordx4 v[{t}:{t+3}], v13, s[24:27], {so} offen offset:{o}{SC}")
    A("s_branch Lk1_end")
    A("Lk1_H:")
    if pf:
        A(f"""
        s_and_b32 s41, s2, 7
        s_and_b32 s43, s41, 1                  ; rh
        s_lshr_b32 s44, s41, 1                 ; cq
        s_lshr_b32 s45, s2, 3                  ; i
        v_mov_b32 v13, 0x7ffffff0
        s_lshl_b32 s46, s43, 10
        s_lshl_b32 s47, s45, 5
        s_add_u32 s46, s46, s47
        v_add_u32 v3, s46, v2
        v_mul_u32_u24 v3, 1280, v3
        v_cmp_gt_u32 vcc, 32, v2
        s_nop 1
        v_cndmask_b32 v4, v13, v3, vcc
        v_lshrrev_b32 v3, 3, v2
        s_lshl_b32 s47, s45, 1
        v_add_u32 v3, s47, v3
        v_mul_u32_u24 v3, 3840, v3
        v_and_b32 v5, 7, v2
        v_lshlrev_b32 v5, 7, v5
        s_lshl_b32 s48, s44, 10
        v_add_u32 v5, s48, v5
        v_cmp_gt_u32 vcc, 3840, v5
        v_add_u32 v5, v5, v3
        v_cmp_gt_u32 s[50:51], 16, v2
        s_and_b64 vcc, vcc, s[50:51]
        s_nop 1
        v_cndmask_b32 v5, v13, v5, vcc
        ; W1: lanes<12: (2i + lane/6)*3072 + cq*768 + (lane%6)*128
        v_cmp_lt_u32 vcc, 5, v2
        v_mov_b32 v6, 0
        v_mov_b32 v7, 1
        v_cndmask_b32 v3, v6, v7, vcc
        v_mul_u32_u24 v6, 6, v3
        v_sub_u32 v6, v2, v6
        v_lshlrev_b32 v6, 7, v6
        v_add_u32 v3, s47, v3
        v_mul_u32_u24 v3, 3072, v3
        v_add_u32 v6, v6, v3
        s_mul_i32 s48, s44, 768
        v_add_u32 v6, s48, v6
        v_cmp_gt_u32 vcc, 12, v2
        s_nop 1
        v_cndmask_b32 v6, v13, v6, vcc
        s_barrier
        """)
        for st in range(1, 10):
            A(f"s_mov_b32 s46, {st*128}")
            A(f"buffer_load_dword v{16+3*st}, v4, s[16:19], s46 offen")
            A(f"s_mov_b32 s47, {st*64*3840}")
            A(f"buffer_load_dword v{17+3*st}, v5, s[60:63], s47 offen")
            A(f"s_mov_b32 s48, {st*64*3072}")
            A(f"buffer_load_dword v{18+3*st}, v6, s[64:67], s48 offen")
    for i in range(11): A("s_barrier")
    A("s_endpgm")
    A("Lk1_end:")
    if prof:
        A("s_memtime s[88:89]")
        A("s_waitcnt lgkmcnt(0)")
        A("s_sub_u32 s88, s88, s92")
        A("s_cmp_ge_u32 s32, 4")
        A("s_cbranch_scc1 Lk1_dbgR")
        A("v_mov_b32 v61, v63")
        A("Lk1_dbgR:")
        A("v_writelane_b32 v61, s88, 11")
        A("v_writelane_b32 v61, s91, 10")
        A(f"""
        s_lshl_b32 s97, s2, 4
        s_add_u32 s97, s97, s32
        s_lshl_b32 s97, s97, 6
        s_add_u32 s97, s97, {DBG_OFF + 0x100000}
        v_and_b32 v4, 63, v0
        v_lshlrev_b32 v4, 2, v4
        v_cmp_gt_u32 vcc, 16, v0
        v_and_b32 v5, 63, v0
        v_cmp_gt_u32 vcc, 16, v5
        s_and_saveexec_b64 s[56:57], vcc
        buffer_store_dword v61, v4, s[24:27], s97 offen
        s_mov_b64 exec, s[56:57]
        """)
        prof_end(A, 0, 24, 32, tmpv=(4, 5, 6, 7, 8), extra="s90")
    if tl: tl2_record(A, 0, 24, 32)
    A("Lk1_exit:")
    A("s_endpgm")
    return A.text(), kdesc(NAME, 128), f"; @launch kernel={NAME} grid=(256,1,1) block=({576 if pf else 512},1,1) lds={LDS_BYTES}"
```

```python
from asm import *
from common import *

NAME = "k1_kernel"
SLOT = 45056
XO, WQO, W1O = 0, 16384, 32768
GATE_LDS = 3 * SLOT
LDS_BYTES = 3 * SLOT + 1280 + 256

def gen_k1(prof=False, mode=0, pf=0, rot=2, tlb=1, tl=0, sc=0, cpf=1):
    SC = {0: '', 1: ' sc1', 2: ' nt', 3: ' sc0 sc1'}[sc & 3]
    SCQ = SC if sc & 4 else ''
    ROT = rot
    A0 = Asm()
    class F:
        def __init__(s): s.inloop = False
        def __call__(s, l):
            for x in l.strip("\n").split("\n"):
                xs = x.strip()
                if s.inloop:
                    if mode == 1 and xs.startswith("buffer_load") : continue
                    if mode == 2 and (xs.startswith("v_mfma") or xs.startswith("ds_read")): continue
                    if mode == 3 and xs.startswith("v_mfma"): continue
                    if mode in (4, 6) and xs.startswith("s_barrier"): continue
                    if mode == 6 and xs.startswith("buffer_load"): continue
                    if mode == 5 and xs.startswith("ds_read"): continue
                    if mode == 7 and (xs.startswith("buffer_load") or xs.startswith("ds_read")): continue
                    if mode == 8 and (xs.startswith("buffer_load") or xs.startswith("ds_read") or xs.startswith("s_barrier")): continue
                    if mode == 10 and (xs.startswith("buffer_load") or xs.startswith("ds_read") or xs.startswith("s_barrier") or xs.startswith("s_add_u32 m0") or xs.startswith("s_add_u32 s48") or xs.startswith("s_nop 0") or xs.startswith("v_add_u32")): continue
                if xs.endswith("_loop:"): s.inloop = True
                if xs.startswith("s_cbranch_scc1") and xs.endswith("g_loop"): s.inloop = False
                A0(x)
        def label(s, b): return A0.label(b)
        def text(s): return A0.text()
    A = F()
    A(khead(NAME))
    A(f"""
    s_cmp_ge_u32 s2, 256
    s_cbranch_scc1 Lk1_exit
    """)
    if prof: prof_start(A)
    if tl: tl_start(A, 0)
    if cpf:
        A(f"""
        s_getpc_b64 s[80:81]
Lk1_pc:
        s_sub_u32 s80, s80, Lk1_pc - k1_kernel
        s_subb_u32 s81, s81, 0
        s_lshr_b32 s82, s2, 3
        s_mul_i32 s82, s82, (Lcode_end - k1_kernel + 4095) / 4096
        v_and_b32 v61, 63, v0
        v_add_u32 v61, s82, v61
        v_min_u32 v61, (Lcode_end - k1_kernel - 4) / 128, v61
        v_lshlrev_b32 v61, 7, v61
        v_lshrrev_b32 v60, 6, v0
        v_and_b32 v59, 63, v0
        v_cmp_gt_u32 vcc, (Lcode_end - k1_kernel + 4095) / 4096, v59
        v_cmp_eq_u32 s[82:83], 7, v60
        s_and_b64 vcc, vcc, s[82:83]
        s_and_saveexec_b64 s[82:83], vcc
        s_cbranch_execz Lk1_nocpf
        global_load_dword v61, v61, s[80:81]
Lk1_nocpf:
        s_mov_b64 exec, s[82:83]
        """)
    A(f"""
    s_load_dwordx4 s[4:7], s[0:1], 0       ; A_x, wqkv
    s_load_dwordx4 s[8:11], s[0:1], 32     ; w1, b1
    s_load_dwordx2 s[12:13], s[0:1], 56    ; gate_w
    s_load_dwordx2 s[14:15], s[0:1], 80    ; ws
    v_lshrrev_b32 v1, 6, v0
    v_and_b32 v2, 63, v0                   ; lane
    s_and_b32 s41, s2, 7                   ; xcd
    v_readfirstlane_b32 s32, v1
    s_lshr_b32 s42, s2, 3                  ; i
    s_and_b32 s43, s41, 1
    s_lshl_b32 s43, s43, 3
    s_and_b32 s44, s42, 7
    s_add_u32 s34, s43, s44                ; rb
    s_lshr_b32 s43, s41, 1
    s_lshl_b32 s43, s43, 2
    s_lshr_b32 s44, s42, 3
    s_add_u32 s35, s43, s44                ; cgp
    s_mul_i32 s45, s35, 52
    s_lshr_b32 s45, s45, 8                 ; cgp/5
    s_add_u32 s33, s45, 1
    s_mul_i32 s45, s45, 5
    s_sub_u32 s46, s35, s45                ; cbl (0..4)
    s_cmp_eq_u32 s35, 15
    s_cselect_b32 s33, 0, s33
    v_lshrrev_b32 v3, 3, v2
    v_mul_u32_u24 v3, 1280, v3
    v_and_b32 v13, 7, v2
    v_lshrrev_b32 v14, 4, v2               ; lane>>4
    v_xor_b32 v15, v13, v14
    v_lshl_add_u32 v10, v15, 4, v3         ; even u
    v_xor_b32 v15, 4, v15
    v_lshl_add_u32 v11, v15, 4, v3         ; odd u
    s_lshl_b32 s37, s34, 7                 ; rb*128
    s_lshl_b32 s41, s32, 4                 ; w*16 rows
    s_add_u32 s37, s37, s41
    s_mul_i32 s37, s37, 1280
    s_lshl_b32 s42, s32, 11
    s_lshr_b32 s57, s2, 3                  ; i
    s_and_b32 s78, s57, 7
    s_lshr_b32 s57, s57, 3
    s_lshl_b32 s57, s57, 1
    s_add_u32 s78, s78, s57
    s_mul_i32 s78, s78, {1 if ROT else 0}
    s_mov_b32 s56, 0
    s_mov_b32 s69, 0
    s_mov_b32 s58, s37
    s_mov_b32 s79, 0
    """)
    if ROT == 2:
        A("""
        s_cmp_ge_u32 s78, 10
        s_cselect_b32 s57, 10, 0
        s_sub_u32 s78, s78, s57
        s_mov_b32 s79, s78
        s_mov_b32 s69, s78
        s_lshl_b32 s57, s79, 7
        s_add_u32 s37, s58, s57
        """)
    A(f"""
    s_waitcnt lgkmcnt(0)
    """)
    if prof:
        A("s_memtime s[88:89]")
        A("s_waitcnt lgkmcnt(0)")
        A("s_sub_u32 s87, s88, s92")
    srd(A, 16, 4, X_BYTES)
    srd_ws(A, 24, 14, WS_RECORDS)
    srd(A, 60, 6, WQKV_BYTES)
    srd(A, 64, 8, W1_BYTES)
    if tlb:
        A("s_cmp_eq_u32 s32, 0")
        A("s_cbranch_scc0 Lk1_notouch")
        srd(A, 28, 10, B1_BYTES)
        A("v_mov_b32 v3, 0")
        MB2 = 2 << 20
        touch(A, [(16, "s37"), (60, 0), (60, MB2), (64, 0), (28, 0)] + [(24, k*MB2) for k in range(7)] + [(24, G_OFF)], 3, 1)
        A("Lk1_notouch:")
    A(f"""
    s_cmp_ge_u32 s32, 8
    s_cbranch_scc1 Lk1_H
    s_cmp_ge_u32 s32, 4
    s_cbranch_scc1 Lk1_R
    """)

    def adv_group(ws):
        if ROT == 2:
            g = ["s_add_u32 s79, s79, 1", "s_cmp_eq_u32 s79, 10", "s_cselect_b32 s79, 0, s79", "s_lshl_b32 s57, s79, 7", "s_add_u32 s37, s58, s57"]
        else:
            g = ["s_add_u32 s56, s56, 1", "s_add_u32 s57, s56, s78", "s_sub_u32 s57, s57, 2", "s_and_b32 s57, s57, 7", "s_add_u32 s57, s57, 2",
                 "s_cmp_lt_u32 s56, 2", "s_cselect_b32 s79, s56, s57", "s_lshl_b32 s57, s79, 7", "s_add_u32 s37, s58, s57"]
        if ws:
            g += [f"s_mul_i32 s57, s79, {ws}", "s_add_u32 s38, s59, s57"]
        return g

    def x_dma(slot_sgpr):
        g = []
        for j in range(2):
            g.append([f"s_add_u32 m0, {slot_sgpr}, {j*1024}", f"s_add_u32 s48, s37, {j*10240}",
                      f"buffer_load_dwordx4 v{10 + j}, s[16:19], s48 offen lds"])
        return g

    def xfrag_addr(rowbase_expr_sgpr):
        A(f"""
        v_and_b32 v3, 31, v2                   ; token
        v_lshrrev_b32 v13, 5, v2               ; hf
        v_bfe_u32 v14, v2, 1, 3
        v_xor_b32 v14, v13, v14
        v_lshlrev_b32 v14, 4, v14
        v_lshl_add_u32 v14, v3, 7, v14
        v_add_u32 v56, {rowbase_expr_sgpr}, v14
        v_xor_b32 v57, 32, v56
        v_xor_b32 v58, 64, v56
        v_xor_b32 v59, 96, v56
        """)

    def set_slot(nw, sgpr):
        out = [f"v_add_u32 v{4+k}, {sgpr}, v{56+k}" for k in range(4)]
        out += [f"v_add_u32 v{8+k}, {sgpr}, v{60+k}" for k in range(nw)]
        return out

    def interleave(ms, others):
        n = len(ms)
        per = (len(others) + n - 1) // n
        k = 0
        for i, m in enumerate(ms):
            A(m)
            for grp in others[k:k+per]:
                for l in grp: A(l)
            k += per

    def kstep(ms, rd, extra, wait=True, skip_last=False):
        if wait: A("s_waitcnt lgkmcnt(0)")
        n = len(ms) - (1 if skip_last else 0)
        A(ms[0])
        for grp in rd:
            for l in grp: A(l)
        slots = max(1, n - 1)
        per = (len(extra) + slots - 1) // slots if extra else 0
        k = 0
        for i in range(1, n):
            A(ms[i])
            for grp in extra[k:k+per]:
                for l in grp: A(l)
            k += per
        for grp in extra[k:]:
            for l in grp: A(l)

    def loop(tag, nown, reads, mfmas, dma_groups, nw):
        A(f"s_waitcnt vmcnt({nown})")
        A("s_barrier")
        if prof:
            A("s_memtime s[90:91]")
            A("s_waitcnt lgkmcnt(0)")
            A("s_sub_u32 s90, s90, s92")
        for l in set_slot(nw, "0"): A(l)
        for l in reads(0, 0): A(l)
        A(f"s_mov_b32 s50, {SLOT}")
        A.inloop = True
        g = dma_groups()
        adv = g[-1]; g = g[:-1]
        parts = [[], [], [], []]
        for i, grp in enumerate(g): parts[i * 4 // len(g)].append(grp)
        R = lambda ks, fs: [[l] for l in reads(ks, fs)]
        rot = [["s_mov_b32 s51, s50", f"s_add_u32 s50, s50, {SLOT}", f"s_cmp_ge_u32 s50, {3*SLOT}", "s_cselect_b32 s50, 0, s50",
                "s_add_u32 s52, s51, s42", "s_add_u32 s53, s51, s43"]]
        A(f"s_add_u32 s52, s42, {2*SLOT}")
        A(f"s_add_u32 s53, s43, {2*SLOT}")
        kstep(mfmas(0), R(1, 1), parts[0] + parts[1])
        kstep(mfmas(1), R(2, 0), parts[2])
        kstep(mfmas(0), R(3, 1), parts[3] + [adv] + [["s_mov_b32 s52, s42", "s_mov_b32 s53, s43", "s_mov_b32 s40, 0"]], skip_last=True)
        def section(dma, vm, final=False):
            A(mfmas(0)[-1])
            A(f"s_waitcnt vmcnt({vm}) lgkmcnt(0)")
            A("s_barrier")
            if final:
                for m in mfmas(1): A(m)
                return
            rd = R(0, 0)
            rd[0] = set_slot(nw, "s50") + rd[0]
            P_ = parts if dma else [[], [], [], []]
            kstep(mfmas(1), rd, P_[0], wait=False)
            kstep(mfmas(0), R(1, 1), P_[1])
            kstep(mfmas(1), R(2, 0), P_[2])
            tail = (P_[3] + [adv] if dma else []) + rot
            if dma: tail = tail + [["s_add_u32 s40, s40, 1", "s_cmp_lt_u32 s40, 7"]]
            kstep(mfmas(0), R(3, 1), tail, skip_last=True)
        A(f"L{tag}_loop:")
        section(True, nown)
        A(f"s_cbranch_scc1 L{tag}_loop")
        section(False, nown)
        section(False, 0)
        section(False, 0, final=True)
        A.inloop = False
        A("s_nop 15")
        if prof:
            A("s_memtime s[88:89]")
            A("s_waitcnt lgkmcnt(0)")
            A("s_sub_u32 s91, s88, s92")

    A(f"""
    s_cmp_eq_u32 s33, 0
    s_cbranch_scc1 Lk1_gate
    """)
    srd(A, 20, 6, WQKV_BYTES)
    A(f"""
    s_mov_b32 s36, 3840
    v_and_b32 v13, 15, v2
    v_lshlrev_b32 v15, 2, v14
    v_xor_b32 v13, v13, v15
    v_mul_u32_u24 v15, 3840, v14
    v_lshl_add_u32 v12, v13, 4, v15
    s_mul_i32 s38, s32, {16*3840}          ; w*16 k-rows
    s_lshl_b32 s41, s35, 8                 ; cgp*128*2
    s_add_u32 s59, s38, s41
    s_mul_i32 s57, s79, {64*3840}
    s_add_u32 s38, s59, s57
    s_lshl_b32 s43, s32, 12
    s_add_u32 s43, s43, {WQO}
    """)
    def p_dma():
        g = x_dma("s52")
        for j in range(4):
            g.append([f"s_add_u32 m0, s53, {j*1024}",
                      (f"s_add_u32 s48, s38, {j*4*3840}"),
                      f"buffer_load_dwordx4 v12, s[20:23], s48 offen lds"])
        g.append(adv_group(64*3840))
        return g
    def stage_issue(st, dmaf):
        A(f"s_add_u32 s52, s42, {st*SLOT}")
        A(f"s_add_u32 s53, s43, {st*SLOT}")
        for grp in dmaf():
            for l in grp: A(l)
    if prof: wl_stamp(A, 63, 0)
    stage_issue(0, p_dma)
    if prof: wl_stamp(A, 63, 1)
    A("s_barrier")
    if prof: wl_stamp(A, 63, 2)
    LATE_P = True
    A("s_lshr_b32 s41, s32, 1")
    A("s_lshl_b32 s41, s41, 13")
    xfrag_addr("s41")
    A(f"""
    v_bfe_u32 v14, v2, 2, 2                ; r
    v_lshl_add_u32 v15, v13, 3, v14
    v_lshlrev_b32 v15, 8, v15
    v_bfe_u32 v3, v2, 4, 1
    v_lshl_add_u32 v15, v3, 5, v15
    v_and_b32 v3, 3, v2
    v_lshl_add_u32 v15, v3, 3, v15
    v_add_u32 v15, {WQO}, v15
    s_and_b32 s41, s32, 1
    s_lshl_b32 s41, s41, 1
    v_xor_b32 v3, s41, v14                 ; ct ^ r
    v_lshl_add_u32 v60, v3, 6, v15
    v_xor_b32 v3, 1, v3
    v_lshl_add_u32 v61, v3, 6, v15
    """)
    if prof: wl_stamp(A, 63, 3)
    stage_issue(1, p_dma)
    if prof: wl_stamp(A, 63, 4)
    for i in range(64): A(f"v_mov_b32 v{64+i}, 0")
    def p_reads(ks, fs):
        b = 16 + 16*fs
        return [
            f"ds_read_b128 v[{b}:{b+3}], v{4+ks}",
            f"ds_read_b64_tr_b16 v[{b+8}:{b+9}], v8 offset:{ks*4096}",
            f"ds_read_b64_tr_b16 v[{b+10}:{b+11}], v8 offset:{ks*4096 + 1024}",
            f"ds_read_b128 v[{b+4}:{b+7}], v{4+ks} offset:4096",
            f"ds_read_b64_tr_b16 v[{b+12}:{b+13}], v9 offset:{ks*4096}",
            f"ds_read_b64_tr_b16 v[{b+14}:{b+15}], v9 offset:{ks*4096 + 1024}",
        ]
    def p_mfmas(normal):
        def f(fs):
            b = 16 + 16*fs
            out = []
            for rt in range(2):
                for ct in range(2):
                    d = 64 + 16*(2*rt + ct)
                    x = f"v[{b+4*rt}:{b+4*rt+3}]"; w = f"v[{b+8+4*ct}:{b+8+4*ct+3}]"
                    a_, b_ = (x, w) if normal else (w, x)
                    out.append(f"v_mfma_f32_32x32x16_bf16 v[{d}:{d+15}], {a_}, {b_}, v[{d}:{d+15}]")
            return out
        return f
    A(f"""
    s_lshr_b32 s41, s32, 1
    s_lshl_b32 s41, s41, 1
    s_lshl_b32 s44, s34, 2
    s_add_u32 s44, s44, s41                ; T (rt'=0)
    s_cmp_eq_u32 s33, 3
    s_cbranch_scc1 Lk1_mainV
    s_cmp_eq_u32 s33, 1
    s_cbranch_scc0 Lk1_isK
    s_mul_i32 s68, s44, 1280
    s_add_u32 s68, s68, {QF_OFF}
    s_mov_b32 s49, {HSQ}
    s_mov_b32 s70, {f32bits(QSCALE):#x}
    s_branch Lk1_qk
Lk1_isK:
    s_lshr_b32 s68, s44, 3
    s_mul_i32 s68, s68, {CH}
    s_and_b32 s41, s44, 7
    s_mul_i32 s41, s41, 1280
    s_add_u32 s68, s68, s41
    s_add_u32 s68, s68, {KV_OFF}
    s_mov_b32 s49, {HSK}
    s_mov_b32 s70, 1.0
Lk1_qk:
    s_mov_b32 s71, s70
    s_and_b32 s41, s32, 1
    s_lshl_b32 s41, s41, 4
    s_lshl_b32 s55, s46, 5
    s_add_u32 s55, s55, s41                ; G0 base
    v_lshrrev_b32 v13, 5, v2               ; hf
    v_and_b32 v3, 31, v2                   ; token
    v_lshlrev_b32 v14, 4, v3
    v_lshlrev_b32 v15, 3, v3
    v_add_u32 v15, 1024, v15
    """)
    for ct in range(2):
        for a in range(4):
            d = 48 + 4*ct + a
            A(f"""
            v_add_u32 v16, {8*ct + 2*a}, v13
            v_add_u32 v16, s55, v16
            v_mul_u32_u24 v17, 205, v16
            v_lshrrev_b32 v17, 10, v17             ; h = G/5
            v_mul_u32_u24 v18, 5, v17
            v_sub_u32 v18, v16, v18                ; j
            v_lshrrev_b32 v19, 1, v18
            v_lshlrev_b32 v19, 9, v19
            v_and_b32 v20, 1, v18
            v_lshl_add_u32 v19, v20, 3, v19
            v_add_u32 v19, v19, v14
            v_cmp_eq_u32 vcc, 4, v18
            v_mul_lo_u32 v17, v17, s49
            s_nop 0
            v_cndmask_b32 v19, v19, v15, vcc
            v_add_u32 v{d}, v19, v17
            """)
    loop("k1T", 6, p_reads, p_mfmas(False), p_dma, 2)
    for ct in range(2):
        for a in range(4):
            for rt in range(2):
                r = 64 + 16*(2*rt + ct) + 4*a
                t = 16 + 2*((2*(4*ct + a) + rt) & 7)
                A(f"""
                v_pk_mul_f32 v[{r}:{r+1}], v[{r}:{r+1}], s[70:71]
                v_pk_mul_f32 v[{r+2}:{r+3}], v[{r+2}:{r+3}], s[70:71]
                v_cvt_pk_bf16_f32 v{t}, v{r}, v{r+1}
                v_cvt_pk_bf16_f32 v{t+1}, v{r+2}, v{r+3}
                buffer_store_dwordx2 v[{t}:{t+1}], v{48 + 4*ct + a}, s[24:27], s68 offen offset:{rt*1280}{SCQ}
                """)
    A("s_branch Lk1_end")
    A("Lk1_mainV:")
    A(f"""
    s_lshr_b32 s68, s44, 3
    s_mul_i32 s68, s68, {CH}
    s_and_b32 s41, s44, 7
    s_mul_i32 s41, s41, {VT}
    s_add_u32 s68, s68, s41
    s_add_u32 s68, s68, {KV_OFF + VPART}
    s_and_b32 s41, s32, 1
    s_lshl_b32 s41, s41, 6
    s_lshl_b32 s55, s46, 7
    s_add_u32 s55, s55, s41
    v_and_b32 v3, 31, v2
    v_lshrrev_b32 v13, 5, v2               ; hf
    v_mul_u32_u24 v14, {VH}, v13
    s_mov_b32 s49, {HSK}
    """)
    for ct in range(2):
        A(f"""
        v_add_u32 v16, {32*ct}, v3
        v_add_u32 v16, s55, v16                ; c
        v_mul_u32_u24 v17, 3277, v16
        v_lshrrev_b32 v17, 16, v17             ; h
        v_mul_u32_u24 v18, 20, v17
        v_sub_u32 v18, v16, v18                ; dh
        v_mul_lo_u32 v17, v17, s49
        v_lshl_add_u32 v19, v18, 4, v17
        v_add_u32 v{48+ct}, v19, v14
        v_cmp_eq_u32 s[{72+2*ct}:{73+2*ct}], 0, v18
        """)
    loop("k1N", 6, p_reads, p_mfmas(True), p_dma, 2)
    A(f"""
    v_mov_b32 v28, 0x3f803f80
    v_mov_b32 v29, 0x3f803f80
    v_mov_b32 v30, 0x3f803f80
    v_mov_b32 v31, 0x3f803f80
    v_mov_b32 v52, 0
    v_mov_b32 v53, 0
    v_mov_b32 v54, 0
    v_mov_b32 v55, 0
    """)
    for ct in range(2):
        for rt in range(2):
            for j in range(2):
                r = 64 + 16*(2*rt + ct) + 8*j
                t = 32 + 4*(2*rt + j)
                for m in range(4):
                    A(f"v_cvt_pk_bf16_f32 v{t+m}, v{r+2*m}, v{r+2*m+1}")
                A(f"buffer_store_dwordx4 v[{t}:{t+3}], v{48+ct}, s[24:27], s68 offen offset:{rt*VT + j*2*VH}{SC}")
        A(f"""
        s_mov_b64 exec, s[{72+2*ct}:{73+2*ct}]
        s_cbranch_execz Lk1_noones{ct}
        """)
        for rt in range(2):
            for j in range(2):
                A(f"buffer_store_dwordx4 v[28:31], v{48+ct}, s[24:27], s68 offen offset:{320 + rt*VT + j*2*VH}")
                A(f"buffer_store_dwordx4 v[52:55], v{48+ct}, s[24:27], s68 offen offset:{336 + rt*VT + j*2*VH}")
        A(f"""
Lk1_noones{ct}:
        s_mov_b64 exec, -1
        """)
    A("s_branch Lk1_end")

    A("Lk1_gate:")
    srd(A, 28, 12, GW_BYTES)
    A(f"""
    s_mul_i32 s41, s32, 320
    s_add_u32 m0, s41, {GATE_LDS}
    v_lshlrev_b32 v12, 4, v2
    v_cmp_gt_u32 vcc, 20, v2
    s_and_saveexec_b64 s[76:77], vcc
    buffer_load_dwordx4 v12, s[28:31], s41 offen lds
    s_mov_b64 exec, s[76:77]
    """)
    def g_dma():
        g = x_dma("s52")
        g.append(adv_group(0))
        return g
    for st in range(2):
        A(f"s_add_u32 s52, s42, {st*SLOT}")
        for grp in g_dma():
            for l in grp: A(l)
        if st == 0: A("s_barrier")
    A("s_lshl_b32 s41, s32, 12")
    xfrag_addr("s41")
    A(f"""
    v_lshlrev_b32 v9, 4, v13               ; hf*16
    v_add_u32 v62, {GATE_LDS}, v9
    s_lshl_b32 s57, s69, 7
    v_add_u32 v9, s57, v62
    v_mov_b32 v60, 0
    s_mov_b32 s43, 0
    """)
    for i in range(16): A(f"v_mov_b32 v{64+i}, 0")
    def g_reads(ks, fs):
        b = 16 + 16*fs
        out = [f"ds_read_b128 v[{b}:{b+3}], v{4+ks}", f"ds_read_b128 v[{b+4}:{b+7}], v9 offset:{ks*32}"]
        if ks == 3:
            if ROT == 2:
                out += ["s_add_u32 s69, s69, 1", "s_cmp_eq_u32 s69, 10", "s_cselect_b32 s69, 0, s69", "s_lshl_b32 s57, s69, 7", "v_add_u32 v9, s57, v62"]
            else:
                out += ["s_add_u32 s69, s69, 1", "s_add_u32 s57, s69, s78", "s_sub_u32 s57, s57, 2", "s_and_b32 s57, s57, 7", "s_add_u32 s57, s57, 2",
                        "s_cmp_lt_u32 s69, 2", "s_cselect_b32 s57, s69, s57", "s_lshl_b32 s57, s57, 7", "v_add_u32 v9, s57, v62"]
        return out
    def g_mfmas(fs):
        b = 16 + 16*fs
        return [f"v_mfma_f32_32x32x16_bf16 v[64:79], v[{b+4}:{b+7}], v[{b}:{b+3}], v[64:79]"]
    A(f"s_waitcnt vmcnt(2)")
    A("s_barrier")
    A(f"s_add_u32 s52, s42, {2*SLOT}")
    for grp in g_dma():
        for l in grp: A(l)
    if prof:
        A("s_mov_b32 s90, 0")
    for l in set_slot(0, "0"): A(l)
    for l in g_reads(0, 0): A(l)
    A("s_mov_b32 s40, 0")
    A(f"s_mov_b32 s50, {SLOT}")
    A("s_mov_b32 s51, 0")
    A("Lk1g_loop:")
    for ks in range(3):
        fs = ks & 1
        for l in g_reads(ks + 1, fs ^ 1): A(l)
        A("s_waitcnt lgkmcnt(2)")
        for l in g_mfmas(fs): A(l)
    A(f"""
    s_cmp_lt_u32 s40, 8
    s_cbranch_scc1 Lk1g_a
    s_waitcnt vmcnt(0)
Lk1g_a:
    s_waitcnt vmcnt(2) lgkmcnt(0)
    s_barrier
    """)
    for l in set_slot(0, "s50"): A(l)
    for l in g_mfmas(1): A(l)
    for l in g_reads(0, 0): A(l)
    A(f"""
    s_cmp_lt_u32 s40, 7
    s_cbranch_scc0 Lk1g_b
    s_add_u32 s52, s51, s42
    """)
    for grp in g_dma():
        for l in grp: A(l)
    A(f"""
Lk1g_b:
    s_mov_b32 s51, s50
    s_add_u32 s50, s50, {SLOT}
    s_cmp_ge_u32 s50, {3*SLOT}
    s_cselect_b32 s50, 0, s50
    s_add_u32 s40, s40, 1
    s_cmp_lt_u32 s40, 10
    s_cbranch_scc1 Lk1g_loop
    s_waitcnt lgkmcnt(0)
    s_nop 15
    v_mul_f32 v16, {f32bits(-LOG2E):#x}, v64
    v_exp_f32 v16, v16
    s_nop 0
    v_add_f32 v16, 1.0, v16
    v_rcp_f32 v16, v16
    s_lshl_b32 s44, s34, 2
    s_add_u32 s44, s44, s32                ; T
    s_lshl_b32 s44, s44, 7                 ; *32*4 bytes
    s_add_u32 s44, s44, {G_OFF}
    v_lshlrev_b32 v17, 2, v2
    v_cmp_gt_u32 vcc, 32, v2
    s_and_saveexec_b64 s[76:77], vcc
    buffer_store_dword v16, v17, s[24:27], s44 offen
    s_mov_b64 exec, s[76:77]
    s_branch Lk1_end
    """)

    A("Lk1_R:")
    if prof:
        A("v_writelane_b32 v61, s87, 8")
        wl_stamp(A, 61, 9)
    srd(A, 20, 8, W1_BYTES)
    srd(A, 28, 10, B1_BYTES)
    A(f"""
    s_sub_u32 s47, s32, 4
    s_mul_i32 s41, s35, 192
    v_lshrrev_b32 v3, 5, v2
    v_lshlrev_b32 v3, 4, v3
    """)
    if prof: wl_stamp(A, 61, 12)
    A(f"""
    buffer_load_dwordx4 v[112:115], v3, s[28:31], s41 offen
    """)
    if prof: wl_stamp(A, 61, 13)
    A(f"""
    buffer_load_dwordx4 v[116:119], v3, s[28:31], s41 offen offset:32
    buffer_load_dwordx4 v[120:123], v3, s[28:31], s41 offen offset:64
    buffer_load_dwordx4 v[124:127], v3, s[28:31], s41 offen offset:96
    buffer_load_dwordx4 v[48:51], v3, s[28:31], s41 offen offset:128
    buffer_load_dwordx4 v[52:55], v3, s[28:31], s41 offen offset:160
    """)
    if prof: wl_stamp(A, 61, 14)
    for j, reg in enumerate((12, 62, 63)):
        A(f"""
        s_mul_i32 s41, s47, 192
        s_add_u32 s41, s41, {64*j}
        v_add_u32 v13, s41, v2                 ; t
        v_mul_u32_u24 v14, 5462, v13
        v_lshrrev_b32 v14, 16, v14             ; t/12
        v_mul_u32_u24 v15, 12, v14
        v_sub_u32 v15, v13, v15
        v_mul_u32_u24 v14, 3072, v14
        v_lshl_add_u32 v{reg}, v15, 4, v14
        """)
    A(f"""
    s_mul_i32 s59, s35, 192
    s_mul_i32 s57, s79, {64*3072}
    s_add_u32 s38, s59, s57
    s_mul_i32 s43, s47, 3072
    s_add_u32 s43, s43, {W1O}
    """)
    def r_dma():
        g = x_dma("s52")
        for j, reg in enumerate((12, 62, 63)):
            g.append([f"s_add_u32 m0, s53, {j*1024}", "s_nop 0",
                      f"buffer_load_dwordx4 v{reg}, s[20:23], s38 offen lds"])
        g.append(adv_group(64*3072))
        return g
    def r_stage(st):
        A(f"s_add_u32 s52, s42, {st*SLOT}")
        A(f"s_add_u32 s53, s43, {st*SLOT}")
        for grp in r_dma():
            for l in grp: A(l)
    if prof: wl_stamp(A, 61, 0)
    r_stage(0)
    if prof: wl_stamp(A, 61, 1)
    A("s_barrier")
    A("s_lshl_b32 s41, s47, 12")
    xfrag_addr("s41")
    A(f"""
    v_bfe_u32 v14, v2, 2, 2
    v_lshl_add_u32 v15, v13, 3, v14
    v_mul_u32_u24 v15, 192, v15
    v_bfe_u32 v3, v2, 4, 1
    v_lshl_add_u32 v15, v3, 5, v15
    v_and_b32 v3, 3, v2
    v_lshrrev_b32 v1, 1, v3
    v_and_b32 v3, 1, v3
    v_lshl_or_b32 v3, v3, 1, v1
    v_lshl_add_u32 v15, v3, 3, v15
    v_add_u32 v60, {W1O}, v15
    """)
    if prof: wl_stamp(A, 61, 2)
    r_stage(1)
    if prof: wl_stamp(A, 61, 3)
    A("s_waitcnt vmcnt(10)")
    if prof:
        wl_stamp(A, 61, 4)
    bsrc = [112, 116, 120, 124, 48, 52]
    for ct in range(3):
        for half in range(2):
            for m in range(4):
                src = bsrc[2*ct + half] + m
                d = 64 + 16*ct + 8*half + 2*m
                A(f"v_lshlrev_b32 v{d}, 16, v{src}")
                A(f"v_and_b32 v{d+1}, 0xffff0000, v{src}")
    def r_reads(ks, fs):
        b = 16 + 16*fs
        out = [f"ds_read_b128 v[{b}:{b+3}], v{4+ks}"]
        for ct in range(3):
            out.append(f"ds_read_b64_tr_b16 v[{b+4+4*ct}:{b+5+4*ct}], v8 offset:{ks*16*192 + ct*64}")
            out.append(f"ds_read_b64_tr_b16 v[{b+6+4*ct}:{b+7+4*ct}], v8 offset:{ks*16*192 + 4*192 + ct*64}")
        return out
    def r_mfmas(fs):
        b = 16 + 16*fs
        return [f"v_mfma_f32_32x32x16_bf16 v[{64+16*ct}:{64+16*ct+15}], v[{b+4+4*ct}:{b+7+4*ct}], v[{b}:{b+3}], v[{64+16*ct}:{64+16*ct+15}]" for ct in range(3)]
    loop("k1R", 5, r_reads, r_mfmas, r_dma, 1)
    A(f"""
    s_lshl_b32 s44, s34, 2
    s_add_u32 s44, s44, s47                ; T
    s_mul_i32 s45, s44, {96*1024}
    s_mul_i32 s41, s35, {6*1024}
    s_add_u32 s45, s45, s41
    s_add_u32 s45, s45, {ACT_OFF}
    s_add_u32 s46, s45, 4096
    v_lshlrev_b32 v13, 4, v2               ; lane*16
    s_mov_b32 s54, {f32bits(LOG2E):#x}
    s_mov_b32 s55, s54
    v_mov_b32 v2, 2.0
    v_mov_b32 v3, 2.0
    """)
    def mish8(r, t0):
        for p in range(4):
            A(f"v_pk_mul_f32 v[{t0+2*p}:{t0+2*p+1}], v[{r+2*p}:{r+2*p+1}], s[54:55]")
        for i in range(8):
            A(f"v_exp_f32 v{t0+i}, v{t0+i}")
        for p in range(4):
            A(f"v_pk_add_f32 v[{t0+8+2*p}:{t0+8+2*p+1}], v[{t0+2*p}:{t0+2*p+1}], v[2:3]")
        for p in range(4):
            A(f"v_pk_fma_f32 v[{t0+2*p}:{t0+2*p+1}], v[{t0+2*p}:{t0+2*p+1}], v[{t0+8+2*p}:{t0+8+2*p+1}], v[2:3]")
        for i in range(8):
            A(f"v_rcp_f32 v{t0+i}, v{t0+i}")
        A("s_nop 0")
        for p in range(4):
            A(f"v_pk_fma_f32 v[{t0+2*p}:{t0+2*p+1}], v[{t0+2*p}:{t0+2*p+1}], -2.0, 1.0 op_sel_hi:[1,0,0]")
        for p in range(4):
            A(f"v_pk_mul_f32 v[{r+2*p}:{r+2*p+1}], v[{r+2*p}:{r+2*p+1}], v[{t0+2*p}:{t0+2*p+1}]")
    k = 0
    for ct in range(3):
        for j in range(2):
            r = 64 + 16*ct + 8*j
            mish8(r, 16)
            t = 32 + 4*(k & 3); k += 1
            for m in range(4):
                A(f"v_cvt_pk_bf16_f32 v{t+m}, v{r+2*m}, v{r+2*m+1}")
            o = (2*ct + j)*1024
            so, o = ("s45", o) if o < 4096 else ("s46", o - 4096)
            A(f"buffer_store_dwordx4 v[{t}:{t+3}], v13, s[24:27], {so} offen offset:{o}{SC}")
    A("s_branch Lk1_end")
    A("Lk1_H:")
    if pf:
        A(f"""
        s_and_b32 s41, s2, 7
        s_and_b32 s43, s41, 1                  ; rh
        s_lshr_b32 s44, s41, 1                 ; cq
        s_lshr_b32 s45, s2, 3                  ; i
        v_mov_b32 v13, 0x7ffffff0
        s_lshl_b32 s46, s43, 10
        s_lshl_b32 s47, s45, 5
        s_add_u32 s46, s46, s47
        v_add_u32 v3, s46, v2
        v_mul_u32_u24 v3, 1280, v3
        v_cmp_gt_u32 vcc, 32, v2
        s_nop 1
        v_cndmask_b32 v4, v13, v3, vcc
        v_lshrrev_b32 v3, 3, v2
        s_lshl_b32 s47, s45, 1
        v_add_u32 v3, s47, v3
        v_mul_u32_u24 v3, 3840, v3
        v_and_b32 v5, 7, v2
        v_lshlrev_b32 v5, 7, v5
        s_lshl_b32 s48, s44, 10
        v_add_u32 v5, s48, v5
        v_cmp_gt_u32 vcc, 3840, v5
        v_add_u32 v5, v5, v3
        v_cmp_gt_u32 s[50:51], 16, v2
        s_and_b64 vcc, vcc, s[50:51]
        s_nop 1
        v_cndmask_b32 v5, v13, v5, vcc
        ; W1: lanes<12: (2i + lane/6)*3072 + cq*768 + (lane%6)*128
        v_cmp_lt_u32 vcc, 5, v2
        v_mov_b32 v6, 0
        v_mov_b32 v7, 1
        v_cndmask_b32 v3, v6, v7, vcc
        v_mul_u32_u24 v6, 6, v3
        v_sub_u32 v6, v2, v6
        v_lshlrev_b32 v6, 7, v6
        v_add_u32 v3, s47, v3
        v_mul_u32_u24 v3, 3072, v3
        v_add_u32 v6, v6, v3
        s_mul_i32 s48, s44, 768
        v_add_u32 v6, s48, v6
        v_cmp_gt_u32 vcc, 12, v2
        s_nop 1
        v_cndmask_b32 v6, v13, v6, vcc
        s_barrier
        """)
        for st in range(1, 10):
            A(f"s_mov_b32 s46, {st*128}")
            A(f"buffer_load_dword v{16+3*st}, v4, s[16:19], s46 offen")
            A(f"s_mov_b32 s47, {st*64*3840}")
            A(f"buffer_load_dword v{17+3*st}, v5, s[60:63], s47 offen")
            A(f"s_mov_b32 s48, {st*64*3072}")
            A(f"buffer_load_dword v{18+3*st}, v6, s[64:67], s48 offen")
    for i in range(11): A("s_barrier")
    A("s_endpgm")
    A("Lk1_end:")
    if prof:
        A("s_memtime s[88:89]")
        A("s_waitcnt lgkmcnt(0)")
        A("s_sub_u32 s88, s88, s92")
        A("s_cmp_ge_u32 s32, 4")
        A("s_cbranch_scc1 Lk1_dbgR")
        A("v_mov_b32 v61, v63")
        A("Lk1_dbgR:")
        A("v_writelane_b32 v61, s88, 11")
        A("v_writelane_b32 v61, s91, 10")
        A(f"""
        s_lshl_b32 s97, s2, 4
        s_add_u32 s97, s97, s32
        s_lshl_b32 s97, s97, 6
        s_add_u32 s97, s97, {DBG_OFF + 0x100000}
        v_and_b32 v4, 63, v0
        v_lshlrev_b32 v4, 2, v4
        v_cmp_gt_u32 vcc, 16, v0
        v_and_b32 v5, 63, v0
        v_cmp_gt_u32 vcc, 16, v5
        s_and_saveexec_b64 s[56:57], vcc
        buffer_store_dword v61, v4, s[24:27], s97 offen
        s_mov_b64 exec, s[56:57]
        """)
        prof_end(A, 0, 24, 32, tmpv=(4, 5, 6, 7, 8), extra="s90")
    if tl: tl2_record(A, 0, 24, 32)
    A("Lk1_exit:")
    A("s_endpgm")
    return A.text(), kdesc(NAME, 128), f"; @launch kernel={NAME} grid=(256,1,1) block=({576 if pf else 512},1,1) lds={LDS_BYTES}"
```

```python
import sys, os
sys.path.insert(0, os.path.dirname(os.path.abspath(__file__)))
from k1 import gen_k1
from k2 import gen_k2
from k3 import gen_k3

HEADER = open("gated_mix__softmax_full_mha__dense_activation_mish__prompt.s.ref").read().split("; Override launch")[0]

def build(parts):
    launches = [p[2] for p in parts]
    s = HEADER + "\n".join(launches) + "\n"
    s += '.amdgcn_target "amdgcn-amd-amdhsa--gfx950"\n'
    for t, d, _ in parts:
        s += t
    s += "Lcode_end:\n    s_endpgm\n"
    for t, d, _ in parts:
        s += d.replace(".text\n", "")
    return s

if __name__ == "__main__":
    out = sys.argv[1] if len(sys.argv) > 1 and not sys.argv[1].startswith("--") else "gated_mix__softmax_full_mha__dense_activation_mish__prompt.s"
    prof = "--prof" in sys.argv
    tl = 0
    for a in sys.argv:
        if a.startswith("--tl="): tl = int(a[5:])
    em = 0
    import asm
    for a in sys.argv:
        if a.startswith('--wsbase='): asm.WS_BASE = int(a[9:], 0)
    k1opts = {}
    for a in sys.argv:
        if a.startswith('--k1:'):
            k, v = a[5:].split('='); k1opts[k] = int(v)
    k2opts = {}
    for a in sys.argv:
        if a.startswith('--k2:'):
            k, v = a[5:].split('='); k2opts[k] = int(v)
    for a in sys.argv:
        if a.startswith("--em="): em = int(a[5:])
    m1 = 0
    for a in sys.argv:
        if a.startswith("--m1="): m1 = int(a[5:])
    if tl: k1opts['tl'] = 1; k2opts['tl'] = 1
    s = build([gen_k1(prof=prof, mode=m1, **k1opts), gen_k2(prof=prof, exp_mode=em, **k2opts)])
    for a in sys.argv:
        if a.startswith("--order="):
            order = a[8:].split(",")
            lines = s.split("\n")
            L = {l.split("kernel=")[1].split("_kernel")[0]: l for l in lines if l.startswith("; @launch kernel=")}
            idx = [k for k, l in enumerate(lines) if l.startswith("; @launch kernel=")]
            if "k0" in order:
                L["k0"] = "; @launch kernel=k0_kernel grid=(256,1,1) block=(64,1,1) lds=0"
                from asm import khead, kdesc
                s += khead("k0_kernel") + "    s_endpgm\n" + kdesc("k0_kernel", 8)
                lines = s.split("\n")
            lines = lines[:idx[0]] + [L[o] for o in order] + lines[idx[-1]+1:]
            s = "\n".join(lines)
    if "--k3twice" in sys.argv:
        lines = s.split("\n")
        i = [k for k, l in enumerate(lines) if l.startswith("; @launch kernel=k3")][0]
        lines.insert(i, lines[i])
        s = "\n".join(lines)
    open(out, "w").write(s)
    print("wrote", out, len(s))
```

```python
from asm import *
from common import *
from k2 import vslot

NAME = "k1_kernel"
SLOT = 45056
XO, WQO, W1O = 0, 16384, 32768
GATE_LDS = 3 * SLOT
LDS_BYTES = 3 * SLOT + 1280 + 256

def gen_k1(prof=False, mode=0, pf=0, rot=2, tlb=1, tl=0, sc=0, cpf=1):
    SC = {0: '', 1: ' sc1', 2: ' nt', 3: ' sc0 sc1'}[sc & 3]
    SCQ = SC if sc & 4 else ''
    ROT = rot
    A0 = Asm()
    class F:
        def __init__(s): s.inloop = False
        def __call__(s, l):
            for x in l.strip("\n").split("\n"):
                xs = x.strip()
                if s.inloop:
                    if mode == 1 and xs.startswith("buffer_load") : continue
                    if mode == 2 and (xs.startswith("v_mfma") or xs.startswith("ds_read")): continue
                    if mode == 3 and xs.startswith("v_mfma"): continue
                    if mode in (4, 6) and xs.startswith("s_barrier"): continue
                    if mode == 6 and xs.startswith("buffer_load"): continue
                    if mode == 5 and xs.startswith("ds_read"): continue
                    if mode == 7 and (xs.startswith("buffer_load") or xs.startswith("ds_read")): continue
                    if mode == 8 and (xs.startswith("buffer_load") or xs.startswith("ds_read") or xs.startswith("s_barrier")): continue
                    if mode == 10 and (xs.startswith("buffer_load") or xs.startswith("ds_read") or xs.startswith("s_barrier") or xs.startswith("s_add_u32 m0") or xs.startswith("s_add_u32 s48") or xs.startswith("s_nop 0") or xs.startswith("v_add_u32")): continue
                if xs.endswith("_loop:"): s.inloop = True
                if xs.startswith("s_cbranch_scc1") and xs.endswith("g_loop"): s.inloop = False
                A0(x)
        def label(s, b): return A0.label(b)
        def text(s): return A0.text()
    A = F()
    A(khead(NAME))
    A(f"""
    s_cmp_ge_u32 s2, 256
    s_cbranch_scc1 Lk1_exit
    """)
    if prof: prof_start(A)
    if tl: tl_start(A, 0)
    if cpf:
        A(f"""
        s_getpc_b64 s[80:81]
Lk1_pc:
        s_sub_u32 s80, s80, Lk1_pc - k1_kernel
        s_subb_u32 s81, s81, 0
        s_lshr_b32 s82, s2, 3
        s_mul_i32 s82, s82, (Lcode_end - k1_kernel + 4095) / 4096
        v_and_b32 v61, 63, v0
        v_add_u32 v61, s82, v61
        v_min_u32 v61, (Lcode_end - k1_kernel - 4) / 128, v61
        v_lshlrev_b32 v61, 7, v61
        v_lshrrev_b32 v60, 6, v0
        v_and_b32 v59, 63, v0
        v_cmp_gt_u32 vcc, (Lcode_end - k1_kernel + 4095) / 4096, v59
        v_cmp_eq_u32 s[82:83], 7, v60
        s_and_b64 vcc, vcc, s[82:83]
        s_and_saveexec_b64 s[82:83], vcc
        s_cbranch_execz Lk1_nocpf
        global_load_dword v61, v61, s[80:81]
Lk1_nocpf:
        s_mov_b64 exec, s[82:83]
        """)
    A(f"""
    s_load_dwordx4 s[4:7], s[0:1], 0       ; A_x, wqkv
    s_load_dwordx4 s[8:11], s[0:1], 32     ; w1, b1
    s_load_dwordx2 s[12:13], s[0:1], 56    ; gate_w
    s_load_dwordx2 s[14:15], s[0:1], 80    ; ws
    v_lshrrev_b32 v1, 6, v0
    v_and_b32 v2, 63, v0                   ; lane
    s_and_b32 s41, s2, 7                   ; xcd
    v_readfirstlane_b32 s32, v1
    s_lshr_b32 s42, s2, 3                  ; i
    s_and_b32 s43, s41, 1
    s_lshl_b32 s43, s43, 3
    s_and_b32 s44, s42, 7
    s_add_u32 s34, s43, s44                ; rb
    s_lshr_b32 s43, s41, 1
    s_lshl_b32 s43, s43, 2
    s_lshr_b32 s44, s42, 3
    s_add_u32 s35, s43, s44                ; cgp
    s_mul_i32 s45, s35, 52
    s_lshr_b32 s45, s45, 8                 ; cgp/5
    s_add_u32 s33, s45, 1
    s_mul_i32 s45, s45, 5
    s_sub_u32 s46, s35, s45                ; cbl (0..4)
    s_cmp_eq_u32 s35, 15
    s_cselect_b32 s33, 0, s33
    v_lshrrev_b32 v3, 3, v2
    v_mul_u32_u24 v3, 1280, v3
    v_and_b32 v13, 7, v2
    v_lshrrev_b32 v14, 4, v2               ; lane>>4
    v_xor_b32 v15, v13, v14
    v_lshl_add_u32 v10, v15, 4, v3         ; even u
    v_xor_b32 v15, 4, v15
    v_lshl_add_u32 v11, v15, 4, v3         ; odd u
    s_lshl_b32 s37, s34, 7                 ; rb*128
    s_lshl_b32 s41, s32, 4                 ; w*16 rows
    s_add_u32 s37, s37, s41
    s_mul_i32 s37, s37, 1280
    s_lshl_b32 s42, s32, 11
    s_lshr_b32 s57, s2, 3                  ; i
    s_and_b32 s78, s57, 7
    s_lshr_b32 s57, s57, 3
    s_lshl_b32 s57, s57, 1
    s_add_u32 s78, s78, s57
    s_mul_i32 s78, s78, {1 if ROT else 0}
    s_mov_b32 s56, 0
    s_mov_b32 s69, 0
    s_mov_b32 s58, s37
    s_mov_b32 s79, 0
    """)
    if ROT == 2:
        A("""
        s_cmp_ge_u32 s78, 10
        s_cselect_b32 s57, 10, 0
        s_sub_u32 s78, s78, s57
        s_mov_b32 s79, s78
        s_mov_b32 s69, s78
        s_lshl_b32 s57, s79, 7
        s_add_u32 s37, s58, s57
        """)
    A(f"""
    s_waitcnt lgkmcnt(0)
    """)
    if prof:
        A("s_memtime s[88:89]")
        A("s_waitcnt lgkmcnt(0)")
        A("s_sub_u32 s87, s88, s92")
    srd(A, 16, 4, X_BYTES)
    srd_ws(A, 24, 14, WS_RECORDS)
    srd(A, 60, 6, WQKV_BYTES)
    srd(A, 64, 8, W1_BYTES)
    if tlb:
        A("s_cmp_eq_u32 s32, 0")
        A("s_cbranch_scc0 Lk1_notouch")
        srd(A, 28, 10, B1_BYTES)
        A("v_mov_b32 v3, 0")
        MB2 = 2 << 20
        touch(A, [(16, "s37"), (60, 0), (60, MB2), (64, 0), (28, 0)] + [(24, k*MB2) for k in range(7)] + [(24, G_OFF)], 3, 1)
        A("Lk1_notouch:")
    A(f"""
    s_cmp_ge_u32 s32, 8
    s_cbranch_scc1 Lk1_H
    s_cmp_ge_u32 s32, 4
    s_cbranch_scc1 Lk1_R
    """)

    def adv_group(ws):
        if ROT == 2:
            g = ["s_add_u32 s79, s79, 1", "s_cmp_eq_u32 s79, 10", "s_cselect_b32 s79, 0, s79", "s_lshl_b32 s57, s79, 7", "s_add_u32 s37, s58, s57"]
        else:
            g = ["s_add_u32 s56, s56, 1", "s_add_u32 s57, s56, s78", "s_sub_u32 s57, s57, 2", "s_and_b32 s57, s57, 7", "s_add_u32 s57, s57, 2",
                 "s_cmp_lt_u32 s56, 2", "s_cselect_b32 s79, s56, s57", "s_lshl_b32 s57, s79, 7", "s_add_u32 s37, s58, s57"]
        if ws:
            g += [f"s_mul_i32 s57, s79, {ws}", "s_add_u32 s38, s59, s57"]
        return g

    def x_dma(slot_sgpr):
        g = []
        for j in range(2):
            g.append([f"s_add_u32 m0, {slot_sgpr}, {j*1024}", f"s_add_u32 s48, s37, {j*10240}",
                      f"buffer_load_dwordx4 v{10 + j}, s[16:19], s48 offen lds"])
        return g

    def xfrag_addr(rowbase_expr_sgpr):
        A(f"""
        v_and_b32 v3, 31, v2                   ; token
        v_lshrrev_b32 v13, 5, v2               ; hf
        v_bfe_u32 v14, v2, 1, 3
        v_xor_b32 v14, v13, v14
        v_lshlrev_b32 v14, 4, v14
        v_lshl_add_u32 v14, v3, 7, v14
        v_add_u32 v56, {rowbase_expr_sgpr}, v14
        v_xor_b32 v57, 32, v56
        v_xor_b32 v58, 64, v56
        v_xor_b32 v59, 96, v56
        """)

    def set_slot(nw, sgpr):
        out = [f"v_add_u32 v{4+k}, {sgpr}, v{56+k}" for k in range(4)]
        out += [f"v_add_u32 v{8+k}, {sgpr}, v{60+k}" for k in range(nw)]
        return out

    def interleave(ms, others):
        n = len(ms)
        per = (len(others) + n - 1) // n
        k = 0
        for i, m in enumerate(ms):
            A(m)
            for grp in others[k:k+per]:
                for l in grp: A(l)
            k += per

    def kstep(ms, rd, extra, wait=True, skip_last=False):
        if wait: A("s_waitcnt lgkmcnt(0)")
        n = len(ms) - (1 if skip_last else 0)
        A(ms[0])
        for grp in rd:
            for l in grp: A(l)
        slots = max(1, n - 1)
        per = (len(extra) + slots - 1) // slots if extra else 0
        k = 0
        for i in range(1, n):
            A(ms[i])
            for grp in extra[k:k+per]:
                for l in grp: A(l)
            k += per
        for grp in extra[k:]:
            for l in grp: A(l)

    def loop(tag, nown, reads, mfmas, dma_groups, nw):
        A(f"s_waitcnt vmcnt({nown})")
        A("s_barrier")
        if prof:
            A("s_memtime s[90:91]")
            A("s_waitcnt lgkmcnt(0)")
            A("s_sub_u32 s90, s90, s92")
        for l in set_slot(nw, "0"): A(l)
        for l in reads(0, 0): A(l)
        A(f"s_mov_b32 s50, {SLOT}")
        A.inloop = True
        g = dma_groups()
        adv = g[-1]; g = g[:-1]
        parts = [[], [], [], []]
        for i, grp in enumerate(g): parts[i * 4 // len(g)].append(grp)
        R = lambda ks, fs: [[l] for l in reads(ks, fs)]
        rot = [["s_mov_b32 s51, s50", f"s_add_u32 s50, s50, {SLOT}", f"s_cmp_ge_u32 s50, {3*SLOT}", "s_cselect_b32 s50, 0, s50",
                "s_add_u32 s52, s51, s42", "s_add_u32 s53, s51, s43"]]
        A(f"s_add_u32 s52, s42, {2*SLOT}")
        A(f"s_add_u32 s53, s43, {2*SLOT}")
        kstep(mfmas(0), R(1, 1), parts[0] + parts[1])
        kstep(mfmas(1), R(2, 0), parts[2])
        kstep(mfmas(0), R(3, 1), parts[3] + [adv] + [["s_mov_b32 s52, s42", "s_mov_b32 s53, s43", "s_mov_b32 s40, 0"]], skip_last=True)
        def section(dma, vm, final=False):
            A(mfmas(0)[-1])
            A(f"s_waitcnt vmcnt({vm}) lgkmcnt(0)")
            A("s_barrier")
            if final:
                for m in mfmas(1): A(m)
                return
            rd = R(0, 0)
            rd[0] = set_slot(nw, "s50") + rd[0]
            P_ = parts if dma else [[], [], [], []]
            kstep(mfmas(1), rd, P_[0], wait=False)
            kstep(mfmas(0), R(1, 1), P_[1])
            kstep(mfmas(1), R(2, 0), P_[2])
            tail = (P_[3] + [adv] if dma else []) + rot
            if dma: tail = tail + [["s_add_u32 s40, s40, 1", "s_cmp_lt_u32 s40, 7"]]
            kstep(mfmas(0), R(3, 1), tail, skip_last=True)
        A(f"L{tag}_loop:")
        section(True, nown)
        A(f"s_cbranch_scc1 L{tag}_loop")
        section(False, nown)
        section(False, 0)
        section(False, 0, final=True)
        A.inloop = False
        A("s_nop 15")
        if prof:
            A("s_memtime s[88:89]")
            A("s_waitcnt lgkmcnt(0)")
            A("s_sub_u32 s91, s88, s92")

    A(f"""
    s_cmp_eq_u32 s33, 0
    s_cbranch_scc1 Lk1_gate
    """)
    srd(A, 20, 6, WQKV_BYTES)
    A(f"""
    s_mov_b32 s36, 3840
    v_and_b32 v13, 15, v2
    v_lshlrev_b32 v15, 2, v14
    v_xor_b32 v13, v13, v15
    v_mul_u32_u24 v15, 3840, v14
    v_lshl_add_u32 v12, v13, 4, v15
    s_mul_i32 s38, s32, {16*3840}          ; w*16 k-rows
    s_lshl_b32 s41, s35, 8                 ; cgp*128*2
    s_add_u32 s59, s38, s41
    s_mul_i32 s57, s79, {64*3840}
    s_add_u32 s38, s59, s57
    s_lshl_b32 s43, s32, 12
    s_add_u32 s43, s43, {WQO}
    """)
    def p_dma():
        g = x_dma("s52")
        for j in range(4):
            g.append([f"s_add_u32 m0, s53, {j*1024}",
                      (f"s_add_u32 s48, s38, {j*4*3840}"),
                      f"buffer_load_dwordx4 v12, s[20:23], s48 offen lds"])
        g.append(adv_group(64*3840))
        return g
    def stage_issue(st, dmaf):
        A(f"s_add_u32 s52, s42, {st*SLOT}")
        A(f"s_add_u32 s53, s43, {st*SLOT}")
        for grp in dmaf():
            for l in grp: A(l)
    if prof: wl_stamp(A, 63, 0)
    stage_issue(0, p_dma)
    if prof: wl_stamp(A, 63, 1)
    A("s_barrier")
    if prof: wl_stamp(A, 63, 2)
    LATE_P = True
    A("s_lshr_b32 s41, s32, 1")
    A("s_lshl_b32 s41, s41, 13")
    xfrag_addr("s41")
    A(f"""
    v_bfe_u32 v14, v2, 2, 2                ; r
    v_lshl_add_u32 v15, v13, 3, v14
    v_lshlrev_b32 v15, 8, v15
    v_bfe_u32 v3, v2, 4, 1
    v_lshl_add_u32 v15, v3, 5, v15
    v_and_b32 v3, 3, v2
    v_lshl_add_u32 v15, v3, 3, v15
    v_add_u32 v15, {WQO}, v15
    s_and_b32 s41, s32, 1
    s_lshl_b32 s41, s41, 1
    v_xor_b32 v3, s41, v14                 ; ct ^ r
    v_lshl_add_u32 v60, v3, 6, v15
    v_xor_b32 v3, 1, v3
    v_lshl_add_u32 v61, v3, 6, v15
    """)
    if prof: wl_stamp(A, 63, 3)
    stage_issue(1, p_dma)
    if prof: wl_stamp(A, 63, 4)
    for i in range(64): A(f"v_mov_b32 v{64+i}, 0")
    def p_reads(ks, fs):
        b = 16 + 16*fs
        return [
            f"ds_read_b128 v[{b}:{b+3}], v{4+ks}",
            f"ds_read_b64_tr_b16 v[{b+8}:{b+9}], v8 offset:{ks*4096}",
            f"ds_read_b64_tr_b16 v[{b+10}:{b+11}], v8 offset:{ks*4096 + 1024}",
            f"ds_read_b128 v[{b+4}:{b+7}], v{4+ks} offset:4096",
            f"ds_read_b64_tr_b16 v[{b+12}:{b+13}], v9 offset:{ks*4096}",
            f"ds_read_b64_tr_b16 v[{b+14}:{b+15}], v9 offset:{ks*4096 + 1024}",
        ]
    def p_mfmas(normal):
        def f(fs):
            b = 16 + 16*fs
            out = []
            for rt in range(2):
                for ct in range(2):
                    d = 64 + 16*(2*rt + ct)
                    x = f"v[{b+4*rt}:{b+4*rt+3}]"; w = f"v[{b+8+4*ct}:{b+8+4*ct+3}]"
                    a_, b_ = (x, w) if normal else (w, x)
                    out.append(f"v_mfma_f32_32x32x16_bf16 v[{d}:{d+15}], {a_}, {b_}, v[{d}:{d+15}]")
            return out
        return f
    A(f"""
    s_lshr_b32 s41, s32, 1
    s_lshl_b32 s41, s41, 1
    s_lshl_b32 s44, s34, 2
    s_add_u32 s44, s44, s41                ; T (rt'=0)
    s_cmp_eq_u32 s33, 3
    s_cbranch_scc1 Lk1_mainV
    s_cmp_eq_u32 s33, 1
    s_cbranch_scc0 Lk1_isK
    s_mul_i32 s68, s44, 1280
    s_add_u32 s68, s68, {QF_OFF}
    s_mov_b32 s49, {HSQ}
    s_mov_b32 s70, {f32bits(QSCALE):#x}
    s_branch Lk1_qk
Lk1_isK:
    s_lshr_b32 s68, s44, 3
    s_mul_i32 s68, s68, {CH}
    s_and_b32 s41, s44, 7
    s_mul_i32 s41, s41, 1280
    s_add_u32 s68, s68, s41
    s_add_u32 s68, s68, {KV_OFF}
    s_mov_b32 s49, {HSK}
    s_mov_b32 s70, 1.0
Lk1_qk:
    s_mov_b32 s71, s70
    s_and_b32 s41, s32, 1
    s_lshl_b32 s41, s41, 4
    s_lshl_b32 s55, s46, 5
    s_add_u32 s55, s55, s41                ; G0 base
    v_lshrrev_b32 v13, 5, v2               ; hf
    v_and_b32 v3, 31, v2                   ; token
    v_lshlrev_b32 v14, 4, v3
    v_lshlrev_b32 v15, 3, v3
    v_add_u32 v15, 1024, v15
    """)
    for ct in range(2):
        for a in range(4):
            d = 48 + 4*ct + a
            A(f"""
            v_add_u32 v16, {8*ct + 2*a}, v13
            v_add_u32 v16, s55, v16
            v_mul_u32_u24 v17, 205, v16
            v_lshrrev_b32 v17, 10, v17             ; h = G/5
            v_mul_u32_u24 v18, 5, v17
            v_sub_u32 v18, v16, v18                ; j
            v_lshrrev_b32 v19, 1, v18
            v_lshlrev_b32 v19, 9, v19
            v_and_b32 v20, 1, v18
            v_lshl_add_u32 v19, v20, 3, v19
            v_add_u32 v19, v19, v14
            v_cmp_eq_u32 vcc, 4, v18
            v_mul_lo_u32 v17, v17, s49
            s_nop 0
            v_cndmask_b32 v19, v19, v15, vcc
            v_add_u32 v{d}, v19, v17
            """)
    loop("k1T", 6, p_reads, p_mfmas(False), p_dma, 2)
    for ct in range(2):
        for a in range(4):
            for rt in range(2):
                r = 64 + 16*(2*rt + ct) + 4*a
                t = 16 + 2*((2*(4*ct + a) + rt) & 7)
                A(f"""
                v_pk_mul_f32 v[{r}:{r+1}], v[{r}:{r+1}], s[70:71]
                v_pk_mul_f32 v[{r+2}:{r+3}], v[{r+2}:{r+3}], s[70:71]
                v_cvt_pk_bf16_f32 v{t}, v{r}, v{r+1}
                v_cvt_pk_bf16_f32 v{t+1}, v{r+2}, v{r+3}
                buffer_store_dwordx2 v[{t}:{t+1}], v{48 + 4*ct + a}, s[24:27], s68 offen offset:{rt*1280}{SCQ}
                """)
    A("s_branch Lk1_end")
    A("Lk1_mainV:")
    A(f"""
    s_lshr_b32 s68, s44, 3
    s_mul_i32 s68, s68, {CH}
    s_and_b32 s41, s44, 7
    s_mul_i32 s41, s41, {VT}
    s_add_u32 s68, s68, s41
    s_add_u32 s68, s68, {KV_OFF + VPART}
    s_and_b32 s41, s32, 1
    s_lshl_b32 s41, s41, 6
    s_lshl_b32 s55, s46, 7
    s_add_u32 s55, s55, s41
    v_and_b32 v3, 31, v2
    v_lshrrev_b32 v13, 5, v2               ; hf
    v_mul_u32_u24 v14, {VH}, v13
    s_mov_b32 s49, {HSK}
    """)
    for ct in range(2):
        A(f"""
        v_add_u32 v16, {32*ct}, v3
        v_add_u32 v16, s55, v16                ; c
        v_mul_u32_u24 v17, 3277, v16
        v_lshrrev_b32 v17, 16, v17             ; h
        v_mul_u32_u24 v18, 20, v17
        v_sub_u32 v18, v16, v18                ; dh
        v_mul_lo_u32 v17, v17, s49
        v_cmp_eq_u32 s[{72+2*ct}:{73+2*ct}], 0, v18
        """)
        vslot(A, 18, 20, 21)
        A(f"""
        v_lshl_add_u32 v19, v20, 4, v17
        v_add_u32 v{48+ct}, v19, v14
        """)
    loop("k1N", 6, p_reads, p_mfmas(True), p_dma, 2)
    A(f"""
    v_mov_b32 v28, 0x3f803f80
    v_mov_b32 v29, 0x3f803f80
    v_mov_b32 v30, 0x3f803f80
    v_mov_b32 v31, 0x3f803f80
    v_mov_b32 v52, 0
    v_mov_b32 v53, 0
    v_mov_b32 v54, 0
    v_mov_b32 v55, 0
    """)
    for ct in range(2):
        for rt in range(2):
            for j in range(2):
                r = 64 + 16*(2*rt + ct) + 8*j
                t = 32 + 4*(2*rt + j)
                for m in range(4):
                    A(f"v_cvt_pk_bf16_f32 v{t+m}, v{r+2*m}, v{r+2*m+1}")
                A(f"buffer_store_dwordx4 v[{t}:{t+3}], v{48+ct}, s[24:27], s68 offen offset:{rt*VT + j*2*VH}{SC}")
        A(f"""
        s_mov_b64 exec, s[{72+2*ct}:{73+2*ct}]
        s_cbranch_execz Lk1_noones{ct}
        """)
        for rt in range(2):
            for j in range(2):
                A(f"buffer_store_dwordx4 v[28:31], v{48+ct}, s[24:27], s68 offen offset:{128 + rt*VT + j*2*VH}")
                A(f"buffer_store_dwordx4 v[52:55], v{48+ct}, s[24:27], s68 offen offset:{240 + rt*VT + j*2*VH}")
        A(f"""
Lk1_noones{ct}:
        s_mov_b64 exec, -1
        """)
    A("s_branch Lk1_end")

    A("Lk1_gate:")
    srd(A, 28, 12, GW_BYTES)
    A(f"""
    s_mul_i32 s41, s32, 320
    s_add_u32 m0, s41, {GATE_LDS}
    v_lshlrev_b32 v12, 4, v2
    v_cmp_gt_u32 vcc, 20, v2
    s_and_saveexec_b64 s[76:77], vcc
    buffer_load_dwordx4 v12, s[28:31], s41 offen lds
    s_mov_b64 exec, s[76:77]
    """)
    def g_dma():
        g = x_dma("s52")
        g.append(adv_group(0))
        return g
    for st in range(2):
        A(f"s_add_u32 s52, s42, {st*SLOT}")
        for grp in g_dma():
            for l in grp: A(l)
        if st == 0: A("s_barrier")
    A("s_lshl_b32 s41, s32, 12")
    xfrag_addr("s41")
    A(f"""
    v_lshlrev_b32 v9, 4, v13               ; hf*16
    v_add_u32 v62, {GATE_LDS}, v9
    s_lshl_b32 s57, s69, 7
    v_add_u32 v9, s57, v62
    v_mov_b32 v60, 0
    s_mov_b32 s43, 0
    """)
    for i in range(16): A(f"v_mov_b32 v{64+i}, 0")
    def g_reads(ks, fs):
        b = 16 + 16*fs
        out = [f"ds_read_b128 v[{b}:{b+3}], v{4+ks}", f"ds_read_b128 v[{b+4}:{b+7}], v9 offset:{ks*32}"]
        if ks == 3:
            if ROT == 2:
                out += ["s_add_u32 s69, s69, 1", "s_cmp_eq_u32 s69, 10", "s_cselect_b32 s69, 0, s69", "s_lshl_b32 s57, s69, 7", "v_add_u32 v9, s57, v62"]
            else:
                out += ["s_add_u32 s69, s69, 1", "s_add_u32 s57, s69, s78", "s_sub_u32 s57, s57, 2", "s_and_b32 s57, s57, 7", "s_add_u32 s57, s57, 2",
                        "s_cmp_lt_u32 s69, 2", "s_cselect_b32 s57, s69, s57", "s_lshl_b32 s57, s57, 7", "v_add_u32 v9, s57, v62"]
        return out
    def g_mfmas(fs):
        b = 16 + 16*fs
        return [f"v_mfma_f32_32x32x16_bf16 v[64:79], v[{b+4}:{b+7}], v[{b}:{b+3}], v[64:79]"]
    A(f"s_waitcnt vmcnt(2)")
    A("s_barrier")
    A(f"s_add_u32 s52, s42, {2*SLOT}")
    for grp in g_dma():
        for l in grp: A(l)
    if prof:
        A("s_mov_b32 s90, 0")
    for l in set_slot(0, "0"): A(l)
    for l in g_reads(0, 0): A(l)
    A("s_mov_b32 s40, 0")
    A(f"s_mov_b32 s50, {SLOT}")
    A("s_mov_b32 s51, 0")
    A("Lk1g_loop:")
    for ks in range(3):
        fs = ks & 1
        for l in g_reads(ks + 1, fs ^ 1): A(l)
        A("s_waitcnt lgkmcnt(2)")
        for l in g_mfmas(fs): A(l)
    A(f"""
    s_cmp_lt_u32 s40, 8
    s_cbranch_scc1 Lk1g_a
    s_waitcnt vmcnt(0)
Lk1g_a:
    s_waitcnt vmcnt(2) lgkmcnt(0)
    s_barrier
    """)
    for l in set_slot(0, "s50"): A(l)
    for l in g_mfmas(1): A(l)
    for l in g_reads(0, 0): A(l)
    A(f"""
    s_cmp_lt_u32 s40, 7
    s_cbranch_scc0 Lk1g_b
    s_add_u32 s52, s51, s42
    """)
    for grp in g_dma():
        for l in grp: A(l)
    A(f"""
Lk1g_b:
    s_mov_b32 s51, s50
    s_add_u32 s50, s50, {SLOT}
    s_cmp_ge_u32 s50, {3*SLOT}
    s_cselect_b32 s50, 0, s50
    s_add_u32 s40, s40, 1
    s_cmp_lt_u32 s40, 10
    s_cbranch_scc1 Lk1g_loop
    s_waitcnt lgkmcnt(0)
    s_nop 15
    v_mul_f32 v16, {f32bits(-LOG2E):#x}, v64
    v_exp_f32 v16, v16
    s_nop 0
    v_add_f32 v16, 1.0, v16
    v_rcp_f32 v16, v16
    s_lshl_b32 s44, s34, 2
    s_add_u32 s44, s44, s32                ; T
    s_lshl_b32 s44, s44, 7                 ; *32*4 bytes
    s_add_u32 s44, s44, {G_OFF}
    v_lshlrev_b32 v17, 2, v2
    v_cmp_gt_u32 vcc, 32, v2
    s_and_saveexec_b64 s[76:77], vcc
    buffer_store_dword v16, v17, s[24:27], s44 offen
    s_mov_b64 exec, s[76:77]
    s_branch Lk1_end
    """)

    A("Lk1_R:")
    if prof:
        A("v_writelane_b32 v61, s87, 8")
        wl_stamp(A, 61, 9)
    srd(A, 20, 8, W1_BYTES)
    srd(A, 28, 10, B1_BYTES)
    A(f"""
    s_sub_u32 s47, s32, 4
    s_mul_i32 s41, s35, 192
    v_lshrrev_b32 v3, 5, v2
    v_lshlrev_b32 v3, 4, v3
    """)
    if prof: wl_stamp(A, 61, 12)
    A(f"""
    buffer_load_dwordx4 v[112:115], v3, s[28:31], s41 offen
    """)
    if prof: wl_stamp(A, 61, 13)
    A(f"""
    buffer_load_dwordx4 v[116:119], v3, s[28:31], s41 offen offset:32
    buffer_load_dwordx4 v[120:123], v3, s[28:31], s41 offen offset:64
    buffer_load_dwordx4 v[124:127], v3, s[28:31], s41 offen offset:96
    buffer_load_dwordx4 v[48:51], v3, s[28:31], s41 offen offset:128
    buffer_load_dwordx4 v[52:55], v3, s[28:31], s41 offen offset:160
    """)
    if prof: wl_stamp(A, 61, 14)
    for j, reg in enumerate((12, 62, 63)):
        A(f"""
        s_mul_i32 s41, s47, 192
        s_add_u32 s41, s41, {64*j}
        v_add_u32 v13, s41, v2                 ; t
        v_mul_u32_u24 v14, 5462, v13
        v_lshrrev_b32 v14, 16, v14             ; t/12
        v_mul_u32_u24 v15, 12, v14
        v_sub_u32 v15, v13, v15
        v_mul_u32_u24 v14, 3072, v14
        v_lshl_add_u32 v{reg}, v15, 4, v14
        """)
    A(f"""
    s_mul_i32 s59, s35, 192
    s_mul_i32 s57, s79, {64*3072}
    s_add_u32 s38, s59, s57
    s_mul_i32 s43, s47, 3072
    s_add_u32 s43, s43, {W1O}
    """)
    def r_dma():
        g = x_dma("s52")
        for j, reg in enumerate((12, 62, 63)):
            g.append([f"s_add_u32 m0, s53, {j*1024}", "s_nop 0",
                      f"buffer_load_dwordx4 v{reg}, s[20:23], s38 offen lds"])
        g.append(adv_group(64*3072))
        return g
    def r_stage(st):
        A(f"s_add_u32 s52, s42, {st*SLOT}")
        A(f"s_add_u32 s53, s43, {st*SLOT}")
        for grp in r_dma():
            for l in grp: A(l)
    if prof: wl_stamp(A, 61, 0)
    r_stage(0)
    if prof: wl_stamp(A, 61, 1)
    A("s_barrier")
    A("s_lshl_b32 s41, s47, 12")
    xfrag_addr("s41")
    A(f"""
    v_bfe_u32 v14, v2, 2, 2
    v_lshl_add_u32 v15, v13, 3, v14
    v_mul_u32_u24 v15, 192, v15
    v_bfe_u32 v3, v2, 4, 1
    v_lshl_add_u32 v15, v3, 5, v15
    v_and_b32 v3, 3, v2
    v_lshrrev_b32 v1, 1, v3
    v_and_b32 v3, 1, v3
    v_lshl_or_b32 v3, v3, 1, v1
    v_lshl_add_u32 v15, v3, 3, v15
    v_add_u32 v60, {W1O}, v15
    """)
    if prof: wl_stamp(A, 61, 2)
    r_stage(1)
    if prof: wl_stamp(A, 61, 3)
    A("s_waitcnt vmcnt(10)")
    if prof:
        wl_stamp(A, 61, 4)
    bsrc = [112, 116, 120, 124, 48, 52]
    for ct in range(3):
        for half in range(2):
            for m in range(4):
                src = bsrc[2*ct + half] + m
                d = 64 + 16*ct + 8*half + 2*m
                A(f"v_lshlrev_b32 v{d}, 16, v{src}")
                A(f"v_and_b32 v{d+1}, 0xffff0000, v{src}")
    def r_reads(ks, fs):
        b = 16 + 16*fs
        out = [f"ds_read_b128 v[{b}:{b+3}], v{4+ks}"]
        for ct in range(3):
            out.append(f"ds_read_b64_tr_b16 v[{b+4+4*ct}:{b+5+4*ct}], v8 offset:{ks*16*192 + ct*64}")
            out.append(f"ds_read_b64_tr_b16 v[{b+6+4*ct}:{b+7+4*ct}], v8 offset:{ks*16*192 + 4*192 + ct*64}")
        return out
    def r_mfmas(fs):
        b = 16 + 16*fs
        return [f"v_mfma_f32_32x32x16_bf16 v[{64+16*ct}:{64+16*ct+15}], v[{b+4+4*ct}:{b+7+4*ct}], v[{b}:{b+3}], v[{64+16*ct}:{64+16*ct+15}]" for ct in range(3)]
    loop("k1R", 5, r_reads, r_mfmas, r_dma, 1)
    A(f"""
    s_lshl_b32 s44, s34, 2
    s_add_u32 s44, s44, s47                ; T
    s_mul_i32 s45, s44, {96*1024}
    s_mul_i32 s41, s35, {6*1024}
    s_add_u32 s45, s45, s41
    s_add_u32 s45, s45, {ACT_OFF}
    s_add_u32 s46, s45, 4096
    v_lshlrev_b32 v13, 4, v2               ; lane*16
    s_mov_b32 s54, {f32bits(LOG2E):#x}
    s_mov_b32 s55, s54
    v_mov_b32 v2, 2.0
    v_mov_b32 v3, 2.0
    """)
    def mish8(r, t0):
        for p in range(4):
            A(f"v_pk_mul_f32 v[{t0+2*p}:{t0+2*p+1}], v[{r+2*p}:{r+2*p+1}], s[54:55]")
        for i in range(8):
            A(f"v_exp_f32 v{t0+i}, v{t0+i}")
        for p in range(4):
            A(f"v_pk_add_f32 v[{t0+8+2*p}:{t0+8+2*p+1}], v[{t0+2*p}:{t0+2*p+1}], v[2:3]")
        for p in range(4):
            A(f"v_pk_fma_f32 v[{t0+2*p}:{t0+2*p+1}], v[{t0+2*p}:{t0+2*p+1}], v[{t0+8+2*p}:{t0+8+2*p+1}], v[2:3]")
        for i in range(8):
            A(f"v_rcp_f32 v{t0+i}, v{t0+i}")
        A("s_nop 0")
        for p in range(4):
            A(f"v_pk_fma_f32 v[{t0+2*p}:{t0+2*p+1}], v[{t0+2*p}:{t0+2*p+1}], -2.0, 1.0 op_sel_hi:[1,0,0]")
        for p in range(4):
            A(f"v_pk_mul_f32 v[{r+2*p}:{r+2*p+1}], v[{r+2*p}:{r+2*p+1}], v[{t0+2*p}:{t0+2*p+1}]")
    k = 0
    for ct in range(3):
        for j in range(2):
            r = 64 + 16*ct + 8*j
            mish8(r, 16)
            t = 32 + 4*(k & 3); k += 1
            for m in range(4):
                A(f"v_cvt_pk_bf16_f32 v{t+m}, v{r+2*m}, v{r+2*m+1}")
            o = (2*ct + j)*1024
            so, o = ("s45", o) if o < 4096 else ("s46", o - 4096)
            A(f"buffer_store_dwordx4 v[{t}:{t+3}], v13, s[24:27], {so} offen offset:{o}{SC}")
    A("s_branch Lk1_end")
    A("Lk1_H:")
    if pf:
        A(f"""
        s_and_b32 s41, s2, 7
        s_and_b32 s43, s41, 1                  ; rh
        s_lshr_b32 s44, s41, 1                 ; cq
        s_lshr_b32 s45, s2, 3                  ; i
        v_mov_b32 v13, 0x7ffffff0
        s_lshl_b32 s46, s43, 10
        s_lshl_b32 s47, s45, 5
        s_add_u32 s46, s46, s47
        v_add_u32 v3, s46, v2
        v_mul_u32_u24 v3, 1280, v3
        v_cmp_gt_u32 vcc, 32, v2
        s_nop 1
        v_cndmask_b32 v4, v13, v3, vcc
        v_lshrrev_b32 v3, 3, v2
        s_lshl_b32 s47, s45, 1
        v_add_u32 v3, s47, v3
        v_mul_u32_u24 v3, 3840, v3
        v_and_b32 v5, 7, v2
        v_lshlrev_b32 v5, 7, v5
        s_lshl_b32 s48, s44, 10
        v_add_u32 v5, s48, v5
        v_cmp_gt_u32 vcc, 3840, v5
        v_add_u32 v5, v5, v3
        v_cmp_gt_u32 s[50:51], 16, v2
        s_and_b64 vcc, vcc, s[50:51]
        s_nop 1
        v_cndmask_b32 v5, v13, v5, vcc
        ; W1: lanes<12: (2i + lane/6)*3072 + cq*768 + (lane%6)*128
        v_cmp_lt_u32 vcc, 5, v2
        v_mov_b32 v6, 0
        v_mov_b32 v7, 1
        v_cndmask_b32 v3, v6, v7, vcc
        v_mul_u32_u24 v6, 6, v3
        v_sub_u32 v6, v2, v6
        v_lshlrev_b32 v6, 7, v6
        v_add_u32 v3, s47, v3
        v_mul_u32_u24 v3, 3072, v3
        v_add_u32 v6, v6, v3
        s_mul_i32 s48, s44, 768
        v_add_u32 v6, s48, v6
        v_cmp_gt_u32 vcc, 12, v2
        s_nop 1
        v_cndmask_b32 v6, v13, v6, vcc
        s_barrier
        """)
        for st in range(1, 10):
            A(f"s_mov_b32 s46, {st*128}")
            A(f"buffer_load_dword v{16+3*st}, v4, s[16:19], s46 offen")
            A(f"s_mov_b32 s47, {st*64*3840}")
            A(f"buffer_load_dword v{17+3*st}, v5, s[60:63], s47 offen")
            A(f"s_mov_b32 s48, {st*64*3072}")
            A(f"buffer_load_dword v{18+3*st}, v6, s[64:67], s48 offen")
    for i in range(11): A("s_barrier")
    A("s_endpgm")
    A("Lk1_end:")
    if prof:
        A("s_memtime s[88:89]")
        A("s_waitcnt lgkmcnt(0)")
        A("s_sub_u32 s88, s88, s92")
        A("s_cmp_ge_u32 s32, 4")
        A("s_cbranch_scc1 Lk1_dbgR")
        A("v_mov_b32 v61, v63")
        A("Lk1_dbgR:")
        A("v_writelane_b32 v61, s88, 11")
        A("v_writelane_b32 v61, s91, 10")
        A(f"""
        s_lshl_b32 s97, s2, 4
        s_add_u32 s97, s97, s32
        s_lshl_b32 s97, s97, 6
        s_add_u32 s97, s97, {DBG_OFF + 0x100000}
        v_and_b32 v4, 63, v0
        v_lshlrev_b32 v4, 2, v4
        v_cmp_gt_u32 vcc, 16, v0
        v_and_b32 v5, 63, v0
        v_cmp_gt_u32 vcc, 16, v5
        s_and_saveexec_b64 s[56:57], vcc
        buffer_store_dword v61, v4, s[24:27], s97 offen
        s_mov_b64 exec, s[56:57]
        """)
        prof_end(A, 0, 24, 32, tmpv=(4, 5, 6, 7, 8), extra="s90")
    if tl: tl2_record(A, 0, 24, 32)
    A("Lk1_exit:")
    A("s_endpgm")
    return A.text(), kdesc(NAME, 128), f"; @launch kernel={NAME} grid=(256,1,1) block=({576 if pf else 512},1,1) lds={LDS_BYTES}"
```

```python
from asm import *
from common import *

NAME = "k2_kernel"
SLOT = 24576
NSL = 4
RING = NSL * 5120
SH_BASE = 3 * SLOT
FLAG = SH_BASE + 4 * RING
LDS_BYTES = FLAG + 128

X_ = [16, 48]
P_ = 80
O_ = 88
C_ = 104
QM = 120
QT = 124
KF = [126, 130]
KT = 134
V0 = 136
V1 = 140
FL = 144

def mf(d, a, b, c):
    cs = "0" if c is None else f"v[{c}:{c+15}]"
    return f"v_mfma_f32_32x32x16_bf16 v[{d}:{d+15}], v[{a}:{a+3}], v[{b}:{b+3}], {cs}"
def mf2b(d, a, b, c):
    cs = "0" if c is None else f"v[{c}:{c+31}]"
    return f"v_mfma_f32_32x32x4_2b_bf16 v[{d}:{d+31}], v[{a}:{a+1}], v[{b}:{b+1}], {cs}"

SH_ACC = 80
SH_WF = [16, 36]
SH_BF = 56
SH_DV = 72
SH_TRA = 77
SH_LA = 78

def gen_shadow(A, prof, shprio):
    base = SH_BASE
    A(f"""
Lk2_shadow:
    s_setprio {shprio}
    s_load_dwordx2 s[30:31], s[0:1], 16    ; wo
    s_sub_u32 s40, s12, 8                  ; w
    s_and_b32 s41, s2, 7
    s_lshr_b32 s42, s2, 3
    s_lshr_b32 s43, s41, 1
    s_lshl_b32 s43, s43, 4
    s_lshr_b32 s44, s42, 1
    s_add_u32 s44, s44, s43                ; T
    s_and_b32 s43, s41, 1
    s_lshl_b32 s43, s43, 1
    s_and_b32 s42, s42, 1
    s_add_u32 s43, s43, s42                ; cg
    s_mul_i32 s48, s43, 320
    v_lshlrev_b32 v{SH_LA}, 4, v1
    v_and_b32 v3, 31, v1                   ; token
    v_lshrrev_b32 v4, 5, v1                ; hf
    """)
    for q in range(5):
        A(f"""
        v_add_u32 v7, {64*q}, v1
        v_mul_u32_u24 v8, 3277, v7
        v_lshrrev_b32 v8, 16, v8
        v_mul_u32_u24 v9, 20, v8
        v_sub_u32 v9, v7, v9
        v_mul_u32_u24 v8, 1280, v8
        v_lshl_add_u32 v{SH_DV+q}, v9, 4, v8
        """)
    A(f"""
    v_bfe_u32 v7, v1, 2, 2
    v_lshl_add_u32 v7, v4, 3, v7
    v_mul_u32_u24 v7, 320, v7
    v_bfe_u32 v8, v1, 4, 1
    v_lshl_add_u32 v7, v8, 5, v7
    v_and_b32 v8, 3, v1
    v_lshrrev_b32 v9, 1, v8
    v_and_b32 v8, 1, v8
    v_lshl_or_b32 v8, v8, 1, v9
    v_lshl_add_u32 v7, v8, 3, v7
    s_mul_i32 s47, s40, {RING}
    s_add_u32 s47, s47, {base}
    v_add_u32 v{SH_TRA}, s47, v7
    s_mul_i32 s50, s40, {384*1280}
    s_add_u32 s50, s50, s48                ; w2 soffset
    s_mul_i32 s52, s44, {96*1024}
    s_mul_i32 s53, s40, {24*1024}
    s_add_u32 s52, s52, s53
    s_add_u32 s52, s52, {ACT_OFF}
    s_waitcnt lgkmcnt(0)
    """)
    srd_ws(A, 8, 4, WS_RECORDS)
    srd(A, 24, 6, W2_BYTES)
    A("s_mov_b32 s28, s30")
    A("s_and_b32 s29, s31, 0xffff")
    A(f"s_mov_b32 s30, {WO_BYTES}")
    A("s_mov_b32 s31, 0x00020000")
    NK = 24
    def issue(k):
        sl = k % NSL
        A(f"s_add_u32 s54, s50, {k*16*1280}")
        for q in range(5):
            A(f"s_add_u32 m0, s47, {sl*5120 + q*1024}")
            A("s_nop 0")
            A(f"buffer_load_dwordx4 v{SH_DV+q}, s[24:27], s54 offen lds")
        A(f"s_add_u32 s55, s52, {k*1024}")
        A(f"buffer_load_dwordx4 v[{SH_BF+4*sl}:{SH_BF+4*sl+3}], v{SH_LA}, s[8:11], s55 offen")
    def trreads(k):
        sl = k % NSL
        b = SH_WF[k & 1]
        out = []
        for ct in range(5):
            out.append(f"ds_read_b64_tr_b16 v[{b+4*ct}:{b+4*ct+1}], v{SH_TRA} offset:{sl*5120 + ct*64}")
            out.append(f"ds_read_b64_tr_b16 v[{b+4*ct+2}:{b+4*ct+3}], v{SH_TRA} offset:{sl*5120 + 1280 + ct*64}")
        return out
    for i in range(80): A(f"v_mov_b32 v{SH_ACC+i}, 0")
    A("s_barrier")
    skipwo = A.label("skipwo")
    A(f"""
    s_lshl_b32 s56, s2, 2
    s_add_u32 s56, s56, s40                ; j
    s_cmp_ge_u32 s56, 800
    s_cbranch_scc1 {skipwo}
    s_mul_i32 s57, s56, 656
    s_lshr_b32 s57, s57, 16                ; cg8 = j/100
    s_mul_i32 s58, s57, 100
    s_sub_u32 s58, s56, s58                ; r
    s_mul_i32 s59, s58, 205
    s_lshr_b32 s59, s59, 10                ; ks = r/5
    s_mul_i32 s60, s59, 5
    s_sub_u32 s60, s58, s60                ; ct
    s_mul_i32 s61, s57, 160
    s_lshl_b32 s62, s60, 5
    s_add_u32 s61, s61, s62
    s_mul_i32 s62, s59, {32*1280}
    s_add_u32 s61, s61, s62
    v_and_b32 v7, 15, v1
    v_lshrrev_b32 v8, 4, v1                ; g
    v_mul_u32_u24 v8, {4*1280}, v8
    v_lshl_add_u32 v7, v7, 1, v8           ; g*4 rows + i*2
    """)
    for j in range(8):
        roff = (j if j < 4 else 16 + j - 4) * 1280
        A(f"s_add_u32 s62, s61, {roff}")
        A(f"buffer_load_ushort v{16+j}, v7, s[28:31], s62 offen")
    A("s_waitcnt vmcnt(0)")
    for m in range(4):
        A(f"v_lshl_or_b32 v{24+m}, v{17+2*m}, 16, v{16+2*m}")
    A(f"""
    s_lshl_b32 s62, s56, 10
    s_add_u32 s62, s62, {WOF_OFF}
    buffer_store_dwordx4 v[24:27], v{SH_LA}, s[8:11], s62 offen
    {skipwo}:
    """)
    for k in range(3): issue(k)
    A("s_waitcnt vmcnt(12)")
    for l in trreads(0): A(l)
    for k in range(NK):
        if k + 3 < NK: issue(k + 3)
        b = SH_WF[k & 1]; sl = k % NSL
        ms = [f"v_mfma_f32_32x32x16_bf16 v[{SH_ACC+16*ct}:{SH_ACC+16*ct+15}], v[{b+4*ct}:{b+4*ct+3}], v[{SH_BF+4*sl}:{SH_BF+4*sl+3}], v[{SH_ACC+16*ct}:{SH_ACC+16*ct+15}]" for ct in range(5)]
        if k + 1 < NK:
            n = 6 * (min(k + 3, NK - 1) - (k + 1))
            A(f"s_waitcnt vmcnt({n}) lgkmcnt(0)")
            rd = trreads(k + 1)
            for ct in range(5):
                A(ms[ct]); A(rd[2*ct]); A(rd[2*ct + 1])
        else:
            A("s_waitcnt lgkmcnt(0)")
            for m in ms: A(m)
    A("s_nop 15")
    A(f"v_add_u32 v7, s47, v{SH_LA}")
    for g4 in range(20):
        A(f"ds_write_b128 v7, v[{SH_ACC+4*g4}:{SH_ACC+4*g4+3}] offset:{g4*1024}")
    spin = A.label("shspin")
    A(f"""
    s_waitcnt lgkmcnt(0)
    s_lshl_b32 s56, s40, 2
    s_add_u32 s56, s56, {FLAG + 64}
    v_mov_b32 v7, s56
    v_mov_b32 v8, 1
    ds_write_b32 v7, v8
    v_and_b32 v7, 3, v1
    v_lshlrev_b32 v7, 2, v7
    v_add_u32 v7, {FLAG + 64}, v7
    {spin}:
    ds_read_b32 v8, v7
    s_waitcnt lgkmcnt(0)
    v_cmp_eq_u32 vcc, 1, v8
    s_nop 1
    s_cmp_eq_u64 vcc, exec
    s_cbranch_scc1 {spin}_done
    s_sleep 2
    s_branch {spin}
    {spin}_done:
    s_mul_i32 s45, s44, {2*8*2560}
    s_add_u32 s58, s45, {BP_OFF}
    v_lshrrev_b32 v5, 4, v3
    v_mul_u32_u24 v5, {8*2560}, v5
    v_and_b32 v6, 15, v3
    v_lshl_add_u32 v5, v6, 3, v5
    s_mul_i32 s59, s43, 40                 ; cg*160/4
    """)
    for it in range(3):
        skip = None
        if it == 2:
            skip = A.label("shskip")
            A(f"s_cmp_lt_u32 s40, 2")
            A(f"s_cbranch_scc0 {skip}")
        A(f"""
        s_add_u32 s56, s40, {4*it}             ; G8
        s_lshl_b32 s57, s56, 11
        s_add_u32 s57, s57, {base}
        v_add_u32 v7, s57, v{SH_LA}
        """)
        for p in range(4):
            A(f"ds_read_b128 v[{16+8*p}:{19+8*p}], v7 offset:{p*RING}")
            A(f"ds_read_b128 v[{20+8*p}:{23+8*p}], v7 offset:{p*RING + 1024}")
        A("s_waitcnt lgkmcnt(0)")
        for i in range(8):
            A(f"v_add_f32 v{16+i}, v{16+i}, v{24+i}")
            A(f"v_add_f32 v{32+i}, v{32+i}, v{40+i}")
        for i in range(8):
            A(f"v_add_f32 v{16+i}, v{16+i}, v{32+i}")
        for m in range(4):
            A(f"v_cvt_pk_bf16_f32 v{48+4*it+m}, v{16+2*m}, v{17+2*m}")
        A(f"""
        s_lshl_b32 s57, s56, 2
        s_add_u32 s57, s57, s59
        v_lshl_add_u32 v8, v4, 1, s57          ; G4 (e=0)
        """)
        for e in range(2):
            A(f"""
            v_add_u32 v9, {e}, v8
            v_mul_u32_u24 v10, 3277, v9
            v_lshrrev_b32 v10, 16, v10             ; cg8
            v_mul_u32_u24 v11, 20, v10
            v_sub_u32 v11, v9, v11                 ; rem
            v_mul_u32_u24 v10, 2560, v10
            v_lshrrev_b32 v12, 2, v11
            v_lshl_add_u32 v10, v12, 9, v10
            v_and_b32 v12, 3, v11
            v_lshl_add_u32 v10, v12, 7, v10
            v_add_u32 v10, v10, v5
            buffer_store_dwordx2 v[{48+4*it+2*e}:{48+4*it+2*e+1}], v10, s[8:11], s58 offen
            """)
        if skip: A(f"{skip}:")
    if prof:
        A("s_mov_b32 s90, 0")
        prof_end(A, 1, 8, 12, tmpv=(16, 17, 18, 19, 20), extra="s90")
    A("s_endpgm")

def vslot(A, row, dst, t1):
    A(f"""
    v_mov_b32 v{dst}, v{row}
    v_add_u32 v{t1}, 12, v{row}
    v_cmp_lt_u32 vcc, 3, v{row}
    s_nop 1
    v_cndmask_b32 v{dst}, v{dst}, v{t1}, vcc
    v_subrev_u32 v{t1}, 1, v{row}
    v_cmp_lt_u32 vcc, 9, v{row}
    s_nop 1
    v_cndmask_b32 v{dst}, v{dst}, v{t1}, vcc
    v_subrev_u32 v{t1}, 8, v{row}
    v_cmp_lt_u32 vcc, 11, v{row}
    s_nop 1
    v_cndmask_b32 v{dst}, v{dst}, v{t1}, vcc
    v_subrev_u32 v{t1}, 5, v{row}
    v_cmp_lt_u32 vcc, 15, v{row}
    s_nop 1
    v_cndmask_b32 v{dst}, v{dst}, v{t1}, vcc
    v_cmp_lt_u32 vcc, 19, v{row}
    s_nop 1
    v_cndmask_b32 v{dst}, v{dst}, 8, vcc
    v_cmp_lt_u32 vcc, 20, v{row}
    s_nop 1
    v_cndmask_b32 v{dst}, v{dst}, 15, vcc
    """)

def gen_k2(prof=False, exp_mode=0, shadow=True, shprio=0, pa=1, pb=2, tl=0, nofb=0, lstamp=0, desc=3):
    A = Asm()
    A(khead(NAME))
    A(f"""
    s_cmp_ge_u32 s2, 256
    s_cbranch_scc1 Lk2_end
    """)
    if prof: prof_start(A)
    if tl: tl_start(A, 1)
    A(f"""
    s_load_dwordx2 s[4:5], s[0:1], 80
    s_load_dwordx2 s[6:7], s[0:1], 48      ; w2
    v_lshrrev_b32 v9, 6, v0
    v_and_b32 v1, 63, v0                   ; lane
    s_and_b32 s20, s2, 7
    v_readfirstlane_b32 s12, v9            ; wave
    s_lshr_b32 s21, s2, 3
    s_and_b32 s22, s21, 3
    s_lshl_b32 s13, s20, 2
    s_add_u32 s13, s13, s22                ; h
    s_lshr_b32 s14, s21, 2                 ; qb
    s_lshl_b32 s15, s14, 3
    s_add_u32 s15, s15, s12                ; T
    s_cmp_ge_u32 s12, 8
    s_cbranch_scc1 Lk2_shadow
    s_mul_i32 s16, s13, {HSK}
    s_add_u32 s16, s16, {KV_OFF}
    s_mul_i32 s23, s13, {HSQ}
    s_mul_i32 s24, s15, 1280
    s_add_u32 s23, s23, s24
    s_add_u32 s23, s23, {QF_OFF}
    v_lshlrev_b32 v8, 4, v1                ; lane*16
    v_and_b32 v9, 31, v1
    v_lshrrev_b32 v10, 5, v1               ; hf
    v_lshlrev_b32 v11, 3, v9
    v_add_u32 v11, 1024, v11               ; 1024 + token*8
    s_mul_i32 s25, s12, 3072
    s_add_u32 s17, s16, s25
    s_waitcnt lgkmcnt(0)
    """)
    srd_ws(A, 8, 4, WS_RECORDS)
    def dma_groups(slot_sgpr, slot_imm=0):
        g = []
        for j in range(3):
            m0 = f"s_add_u32 m0, {slot_sgpr}, {slot_imm + j*1024}"
            g.append([m0, f"s_add_u32 s26, s17, {j*1024}", f"buffer_load_dwordx4 v8, s[8:11], s26 offen lds"])
        g.append([f"s_add_u32 s17, s17, {CH}"])
        return g
    for grp in dma_groups("s25", 0):
        for l in grp: A(l)
    A(f"""
    buffer_load_dwordx4 v[{QM}:{QM+3}], v8, s[8:11], s23 offen
    buffer_load_dwordx2 v[{QT}:{QT+1}], v11, s[8:11], s23 offen
    """)
    for grp in dma_groups("s25", SLOT):
        for l in grp: A(l)
    A(f"""
    v_cmp_gt_u32 s[28:29], 32, v1          ; lanes < 32
    v_mov_b32 v5, v8
    v_mul_u32_u24 v6, 1280, v10
    v_add_u32 v6, v6, v11
    """)
    vslot(A, 9, 14, 15)
    A(f"""
    v_mul_u32_u24 v7, {VH}, v10
    v_lshl_add_u32 v7, v14, 4, v7
    v_add_u32 v7, {VPART}, v7
    v_mov_b32 v2, v5
    v_mov_b32 v3, v6
    v_mov_b32 v4, v7
    v_lshlrev_b32 v12, 2, v1
    v_add_u32 v12, {FLAG}, v12
    v_mov_b32 v13, 0
    s_cmp_eq_u32 s12, 0
    s_cbranch_scc0 Lk2_noclr
    s_mov_b64 exec, s[28:29]
    ds_write_b32 v12, v13
    s_mov_b64 exec, -1
Lk2_noclr:
    v_and_b32 v12, 7, v1
    v_lshlrev_b32 v12, 2, v12
    v_add_u32 v12, {FLAG}, v12             ; v12: full[lane&7] ; +32: free[lane&7]
    s_lshl_b32 s33, s12, 2
    s_add_u32 s33, s33, {FLAG}
    v_mov_b32 v13, s33                     ; v13: own full word ; +32 own free word
    """)
    for i in range(4): A(f"v_mov_b32 v{V1+i}, 0")
    for i in range(4): A(f"v_mov_b32 v{P_+4+i}, 0")
    for i in range(16): A(f"v_mov_b32 v{O_+i}, 0")
    X0 = X_[0]
    A(f"""
    s_waitcnt vmcnt(3) lgkmcnt(0)
    s_barrier
    ds_read_b128 v[{KF[0]}:{KF[0]+3}], v2
    ds_read_b128 v[{KF[1]}:{KF[1]+3}], v2 offset:1280
    ds_read_b64 v[{KT}:{KT+1}], v3
    ds_read_b128 v[{V0}:{V0+3}], v4
    s_waitcnt lgkmcnt(0)
    {mf(X0, KF[0], QM, None)}
    {mf(X0+16, KF[1], QM, None)}
    s_nop 11
    {mf2b(X0, KT, QT, X0)}
    s_nop 15
    s_nop 7
    """)
    A(f"v_max3_f32 v9, v{X0}, v{X0+1}, v{X0+2}")
    for i in range(3, 31, 2):
        A(f"v_max3_f32 v9, v9, v{X0+i}, v{X0+i+1}")
    A(f"v_max_f32 v9, v9, v{X0+31}")
    A(f"""
    v_mov_b32 v10, v9
    s_nop 1
    v_permlane32_swap_b32 v9, v10
    s_nop 1
    v_max_f32 v9, v9, v10
    """)
    for i in range(16): A(f"v_sub_f32 v{C_+i}, 0, v9")
    for i in range(32): A(f"v_sub_f32 v{X0+i}, v{X0+i}, v9")
    A(f"""
    ds_read_b128 v[{KF[0]}:{KF[0]+3}], v2 offset:{2*1280}
    ds_read_b128 v[{KF[1]}:{KF[1]+3}], v2 offset:{3*1280}
    ds_read_b64 v[{KT}:{KT+1}], v3 offset:{2*1280}
    s_mov_b32 s18, 0
    s_mov_b32 s19, {SLOT}
    s_mov_b32 s27, {2*SLOT}
    s_setprio {pa}
    s_cmp_ge_u32 s12, 4
    s_cbranch_scc0 Lk2_noprio
    s_setprio {pb}
Lk2_noprio:
    """)
    if prof:
        A("s_memtime s[90:91]")
        A("s_waitcnt lgkmcnt(0)")
        A("s_sub_u32 s90, s90, s92")
    A0 = A
    class F:
        def __call__(self, l):
            for x in l.strip("\n").split("\n"):
                ls = x.strip()
                if exp_mode == 2 and ls.startswith("v_mfma"): continue
                if exp_mode == 3 and (ls.startswith("v_exp") or ls.startswith("v_cvt")): continue
                if exp_mode == 4 and (ls.startswith("ds_read_b128") or ls.startswith("ds_read_b64")): continue
                if exp_mode == 5 and ls.startswith("v_mfma_f32_32x32x4"): continue
                if exp_mode == 6 and (ls.startswith("ds_read_b128") or ls.startswith("ds_read_b64") or ls.startswith("v_mfma")): continue
                if exp_mode == 7 and ls.startswith("buffer_load"): continue
                A0(x)
        def label(self, b): return A0.label(b)
    if lstamp: wl_stamp(A, 150, 0)
    A("Lk2_loop:")
    A = F()
    def check(reg, need_sgpr, tag):
        lab = A.label(tag)
        off = 32 if tag == "free" else 0
        A(f"""
        v_cmp_le_u32 vcc, {need_sgpr}, v{reg}
        s_cmp_eq_u64 vcc, exec
        s_cbranch_scc1 {lab}
        {lab}_s:
        s_sleep 1
        ds_read_b32 v{reg}, v12 offset:{off}
        s_waitcnt lgkmcnt(0)
        v_cmp_le_u32 vcc, {need_sgpr}, v{reg}
        s_cmp_eq_u64 vcc, exec
        s_cbranch_scc0 {lab}_s
        {lab}:
        """)
    def tile(sc, first, pr, t):
        sn = X_[(pr + 1) & 1]
        kt = (2*pr + 4) & 7
        E = lambda i: f"v_exp_f32 v{sc+i}, v{sc+i}"
        C = lambda p, a: f"v_cvt_pk_bf16_f32 v{P_+p}, v{sc+a}, v{sc+a+1}"
        pre = []
        if desc == 1 and t % 2 == 0: A(f"s_setprio {3 - t // 2}")
        if desc == 2 and t % 2 == 0: A(f"s_setprio {max(1, 3 - t // 2) if t < 6 else 1}")
        if desc == 3: A(f"s_setprio {3 - (t % 4)}")
        if desc in (4, 5): A(f"s_setprio {3 - 2*(t % 2)}")
        if desc == 6: A(f"s_setprio {[3,3,2,2,1,1,0,0][t]}") if t % 2 == 0 else None
        if desc == 7: A(f"s_setprio {[3,2,1,0,0,1,2,3][t]}")
        if desc == 8: A(f"s_setprio {[3,2,2,1,1,0,0,0][t]}")
        A("s_waitcnt lgkmcnt(0)")
        if t == 0:
            A(f"""
            s_waitcnt vmcnt(0)
            s_add_u32 s31, s18, 2
            v_mov_b32 v{FL}, s31
            v_mov_b32 v{FL+1}, s18
            ds_write_b32 v13, v{FL}
            ds_write_b32 v13, v{FL+1} offset:32
            """)
        if t == 4:
            nofull = A.label("nofull")
            A("s_cmp_lt_u32 s18, 7")
            A(f"s_cbranch_scc0 {nofull}")
            A("s_add_u32 s31, s18, 2")
            check(FL + 1, "s31", "full")
            A(f"{nofull}:")
            A("v_add_u32 v2, s19, v5")
            A("v_add_u32 v3, s19, v6")
        if first:
            A(mf(sn, KF[0], QM, C_))
            A(f"ds_read_b128 v[{KF[0]}:{KF[0]+3}], v2 offset:{kt*1280}")
        else:
            A(mf2b(sn, KT, QT, sn))
            A(f"ds_read_b64 v[{KT}:{KT+1}], v3 offset:{kt*1280}")
        if t == 1: A(f"ds_read_b32 v{FL}, v12 offset:32")
        if t == 3: A(f"ds_read_b32 v{FL+1}, v12")
        for i in range(4): A(E(i))
        A(mf(O_, V1, P_+4, O_))
        A(f"ds_read_b128 v[{V1}:{V1+3}], v4 offset:{t*VT + 2*VH}")
        if t == 7:
            A("v_add_u32 v4, s19, v7")
        dg = []
        if t == 2:
            skip = A.label("k2skip")
            A(f"s_cmp_lt_u32 s18, 6")
            A(f"s_cbranch_scc0 {skip}")
            check(FL, "s18", "free")
            A("s_add_u32 s30, s27, s25")
            for grp in dma_groups("s30"):
                for l in grp: A(l)
            A(f"{skip}:")
        A(C(0, 0)); A(E(4)); A(C(1, 2))
        for i in (5, 6, 7): A(E(i))
        if desc == 4: A(f"s_setprio {2 - 2*(t % 2)}")
        if first:
            A(mf(sn + 16, KF[1], QM, C_))
            A(f"ds_read_b128 v[{KF[1]}:{KF[1]+3}], v2 offset:{(kt+1)*1280}")
        A(C(2, 4)); A(E(8)); A(C(3, 6)); A(E(9)); A(E(10))
        A(mf(O_, V0, P_, O_))
        A(f"ds_read_b128 v[{V0}:{V0+3}], v4 offset:{((t+1)&7)*VT}")
        for i in (11, 12, 13): A(E(i))
        A(C(4, 8)); A(E(14)); A(C(5, 10)); A(E(15)); A(C(6, 12)); A(C(7, 14))
    for pr in range(4):
        cur = X_[pr & 1]
        tile(cur, True, pr, 2*pr)
        tile(cur + 16, False, pr, 2*pr + 1)
    A = A0
    A(f"""
    s_mov_b32 s19, s27
    s_add_u32 s27, s27, {SLOT}
    s_cmp_ge_u32 s27, {3*SLOT}
    s_cselect_b32 s27, 0, s27
    s_add_u32 s18, s18, 1
    s_cmp_lt_u32 s18, 8
    s_cbranch_scc1 Lk2_loop
    """)
    if lstamp: wl_stamp(A, 150, 1)
    A(f"""
    s_waitcnt lgkmcnt(0)
    {mf(O_, V1, P_+4, O_)}
    s_mov_b32 s31, 0
    s_nop 15
Lk2_fin:
    v_mov_b32 v9, v{O_+8}
    v_mov_b32 v10, v{O_+8}
    s_nop 1
    v_permlane32_swap_b32 v9, v10
    s_nop 1
    v_mul_f32 v11, 0, v{O_}
    """)
    for i in range(1, 8): A(f"v_fma_f32 v11, v{O_+i}, 0, v11")
    A(f"v_mul_f32 v14, 0, v{O_+8}")
    for i in range(9, 12): A(f"v_fma_f32 v14, v{O_+i}, 0, v14")
    A(f"""
    v_cndmask_b32 v14, 0, v14, s[28:29]
    v_add_f32 v11, v11, v14
    v_add_f32 v11, v11, v10
    v_mov_b32 v15, 0x53800000              ; 2^40
    v_cmp_nlt_f32 vcc, v11, v15            ; !(l < 2^40)
    s_cmp_eq_u32 s31, 0
    s_cbranch_scc0 Lk2_store
    {"" if nofb else "s_cbranch_vccnz Lk2_fallback"}
Lk2_store:
    v_rcp_f32 v10, v10
    s_mul_i32 s20, s13, 5
    s_mul_i32 s21, s15, 40960
    s_add_u32 s21, s21, {OF_OFF}
    v_lshrrev_b32 v11, 5, v1               ; hf
    v_and_b32 v14, 15, v1
    v_lshlrev_b32 v14, 4, v14              ; token16*16
    v_bfe_u32 v15, v1, 4, 1                ; q>>4
    v_mul_u32_u24 v15, 20480, v15
    v_add_u32 v14, v14, v15
    v_add_u32 v11, s20, v11                ; G (a=0)
    """)
    for a in range(3):
        r = O_ + 4*a
        A(f"""
        v_add_u32 v16, {2*a}, v11
        v_lshrrev_b32 v17, 3, v16
        v_lshlrev_b32 v17, 10, v17
        v_and_b32 v18, 3, v16
        v_lshl_add_u32 v17, v18, 8, v17
        v_bfe_u32 v18, v16, 2, 1
        v_lshl_add_u32 v17, v18, 3, v17
        v_add_u32 v17, v17, v14
        v_mul_f32 v{r}, v{r}, v10
        v_mul_f32 v{r+1}, v{r+1}, v10
        v_mul_f32 v{r+2}, v{r+2}, v10
        v_mul_f32 v{r+3}, v{r+3}, v10
        v_cvt_pk_bf16_f32 v{r}, v{r}, v{r+1}
        v_cvt_pk_bf16_f32 v{r+1}, v{r+2}, v{r+3}
        """)
        if a == 2:
            A("s_mov_b64 exec, s[28:29]")
        A(f"buffer_store_dwordx2 v[{r}:{r+1}], v17, s[8:11], s21 offen")
    if prof:
        A("s_mov_b64 exec, -1")
        if lstamp: wl_dump(A, 150, 1, 8, 12, 21)
        prof_end(A, 1, 8, 12, tmpv=(16, 17, 18, 19, 20), extra="s90")
    if tl: tl2_record(A, 1, 8, 12)
    A("s_endpgm")

    s = X0
    A(f"""
Lk2_fallback:
    s_mov_b32 s31, 1
    v_and_b32 v9, 31, v1
    v_lshlrev_b32 v11, 3, v9
    v_add_u32 v11, 1024, v11
    v_mov_b32 v14, 0xff800000
    s_mov_b32 s18, 0
Lk2_fb1:
    s_lshr_b32 s20, s18, 3
    s_mul_i32 s20, s20, {CH}
    s_and_b32 s21, s18, 7
    s_mul_i32 s21, s21, 1280
    s_add_u32 s20, s20, s21
    s_add_u32 s20, s20, s16
    buffer_load_dwordx4 v[{KF[0]}:{KF[0]+3}], v8, s[8:11], s20 offen
    buffer_load_dwordx2 v[{KT}:{KT+1}], v11, s[8:11], s20 offen
    s_waitcnt vmcnt(0)
    {mf(s, KF[0], QM, None)}
    {mf(s+16, KF[0], QM, None)}
    s_nop 11
    {mf2b(s, KT, QT, s)}
    s_nop 15
    s_nop 7
    """)
    for i in range(0, 16, 2):
        A(f"v_max3_f32 v14, v14, v{s+i}, v{s+i+1}")
    A(f"""
    s_add_u32 s18, s18, 1
    s_cmp_lt_u32 s18, 64
    s_cbranch_scc1 Lk2_fb1
    v_mov_b32 v15, v14
    s_nop 1
    v_permlane32_swap_b32 v14, v15
    s_nop 1
    v_max_f32 v14, v14, v15
    """)
    for i in range(16): A(f"v_mov_b32 v{O_+i}, 0")
    A(f"""
    s_mov_b32 s18, 0
Lk2_fb2:
    s_lshr_b32 s20, s18, 3
    s_mul_i32 s20, s20, {CH}
    s_and_b32 s21, s18, 7
    s_mul_i32 s22, s21, {VT}
    s_add_u32 s22, s22, s20
    s_add_u32 s22, s22, s16
    s_mul_i32 s21, s21, 1280
    s_add_u32 s20, s20, s21
    s_add_u32 s20, s20, s16
    buffer_load_dwordx4 v[{KF[0]}:{KF[0]+3}], v8, s[8:11], s20 offen
    buffer_load_dwordx2 v[{KT}:{KT+1}], v11, s[8:11], s20 offen
    buffer_load_dwordx4 v[{V0}:{V0+3}], v7, s[8:11], s22 offen
    buffer_load_dwordx4 v[{V1}:{V1+3}], v7, s[8:11], s22 offen offset:{2*VH}
    s_waitcnt vmcnt(0)
    {mf(s, KF[0], QM, None)}
    {mf(s+16, KF[0], QM, None)}
    s_nop 11
    {mf2b(s, KT, QT, s)}
    s_nop 15
    s_nop 7
    """)
    for i in range(16): A(f"v_sub_f32 v{s+i}, v{s+i}, v14")
    for i in range(16): A(f"v_exp_f32 v{s+i}, v{s+i}")
    A("s_nop 0")
    for i in range(8): A(f"v_cvt_pk_bf16_f32 v{P_+i}, v{s+2*i}, v{s+2*i+1}")
    A(f"""
    s_nop 1
    {mf(O_, V0, P_, O_)}
    {mf(O_, V1, P_+4, O_)}
    s_add_u32 s18, s18, 1
    s_cmp_lt_u32 s18, 64
    s_cbranch_scc1 Lk2_fb2
    s_nop 15
    s_branch Lk2_fin
Lk2_end:
    s_endpgm
    """)
    if shadow: gen_shadow(A, prof, shprio)
    else: A("Lk2_shadow:\ns_barrier\ns_endpgm")
    return A.text(), kdesc(NAME, 168), f"; @launch kernel={NAME} grid=(256,1,1) block=(768,1,1) lds={LDS_BYTES}"
```

```python
from asm import *
from common import *
from k2 import vslot

NAME = "k1_kernel"
SLOT = 45056
XO, WQO, W1O = 0, 16384, 32768
GATE_LDS = 3 * SLOT
LDS_BYTES = 3 * SLOT + 1280 + 256

def gen_k1(prof=False, mode=0, pf=0, rot=2, tlb=1, tl=0, sc=0, cpf=1):
    SC = {0: '', 1: ' sc1', 2: ' nt', 3: ' sc0 sc1'}[sc & 3]
    SCQ = SC if sc & 4 else ''
    ROT = rot
    A0 = Asm()
    class F:
        def __init__(s): s.inloop = False
        def __call__(s, l):
            for x in l.strip("\n").split("\n"):
                xs = x.strip()
                if s.inloop:
                    if mode == 1 and xs.startswith("buffer_load") : continue
                    if mode == 2 and (xs.startswith("v_mfma") or xs.startswith("ds_read")): continue
                    if mode == 3 and xs.startswith("v_mfma"): continue
                    if mode in (4, 6) and xs.startswith("s_barrier"): continue
                    if mode == 6 and xs.startswith("buffer_load"): continue
                    if mode == 5 and xs.startswith("ds_read"): continue
                    if mode == 7 and (xs.startswith("buffer_load") or xs.startswith("ds_read")): continue
                    if mode == 8 and (xs.startswith("buffer_load") or xs.startswith("ds_read") or xs.startswith("s_barrier")): continue
                    if mode == 10 and (xs.startswith("buffer_load") or xs.startswith("ds_read") or xs.startswith("s_barrier") or xs.startswith("s_add_u32 m0") or xs.startswith("s_add_u32 s48") or xs.startswith("s_nop 0") or xs.startswith("v_add_u32")): continue
                if xs.endswith("_loop:"): s.inloop = True
                if xs.startswith("s_cbranch_scc1") and xs.endswith("g_loop"): s.inloop = False
                A0(x)
        def label(s, b): return A0.label(b)
        def text(s): return A0.text()
    A = F()
    A(khead(NAME))
    A(f"""
    s_cmp_ge_u32 s2, 256
    s_cbranch_scc1 Lk1_exit
    """)
    if prof: prof_start(A)
    if tl: tl_start(A, 0)
    if cpf:
        A(f"""
        s_getpc_b64 s[80:81]
Lk1_pc:
        s_sub_u32 s80, s80, Lk1_pc - k1_kernel
        s_subb_u32 s81, s81, 0
        s_lshr_b32 s82, s2, 3
        s_mul_i32 s82, s82, (Lcode_end - k1_kernel + 4095) / 4096
        v_and_b32 v61, 63, v0
        v_add_u32 v61, s82, v61
        v_min_u32 v61, (Lcode_end - k1_kernel - 4) / 128, v61
        v_lshlrev_b32 v61, 7, v61
        v_lshrrev_b32 v60, 6, v0
        v_and_b32 v59, 63, v0
        v_cmp_gt_u32 vcc, (Lcode_end - k1_kernel + 4095) / 4096, v59
        v_cmp_eq_u32 s[82:83], 7, v60
        s_and_b64 vcc, vcc, s[82:83]
        s_and_saveexec_b64 s[82:83], vcc
        s_cbranch_execz Lk1_nocpf
        global_load_dword v61, v61, s[80:81]
Lk1_nocpf:
        s_mov_b64 exec, s[82:83]
        """)
    A(f"""
    s_load_dwordx2 s[80:81], s[0:1], 48    ; w2
    s_load_dwordx2 s[82:83], s[0:1], 16    ; wo
    s_load_dwordx4 s[4:7], s[0:1], 0       ; A_x, wqkv
    s_load_dwordx4 s[8:11], s[0:1], 32     ; w1, b1
    s_load_dwordx2 s[12:13], s[0:1], 56    ; gate_w
    s_load_dwordx2 s[14:15], s[0:1], 80    ; ws
    v_lshrrev_b32 v1, 6, v0
    v_and_b32 v2, 63, v0                   ; lane
    s_and_b32 s41, s2, 7                   ; xcd
    v_readfirstlane_b32 s32, v1
    s_lshr_b32 s42, s2, 3                  ; i
    s_and_b32 s43, s41, 1
    s_lshl_b32 s43, s43, 3
    s_and_b32 s44, s42, 7
    s_add_u32 s34, s43, s44                ; rb
    s_lshr_b32 s43, s41, 1
    s_lshl_b32 s43, s43, 2
    s_lshr_b32 s44, s42, 3
    s_add_u32 s35, s43, s44                ; cgp
    s_mul_i32 s45, s35, 52
    s_lshr_b32 s45, s45, 8                 ; cgp/5
    s_add_u32 s33, s45, 1
    s_mul_i32 s45, s45, 5
    s_sub_u32 s46, s35, s45                ; cbl (0..4)
    s_cmp_eq_u32 s35, 15
    s_cselect_b32 s33, 0, s33
    v_lshrrev_b32 v3, 3, v2
    v_mul_u32_u24 v3, 1280, v3
    v_and_b32 v13, 7, v2
    v_lshrrev_b32 v14, 4, v2               ; lane>>4
    v_xor_b32 v15, v13, v14
    v_lshl_add_u32 v10, v15, 4, v3         ; even u
    v_xor_b32 v15, 4, v15
    v_lshl_add_u32 v11, v15, 4, v3         ; odd u
    s_lshl_b32 s37, s34, 7                 ; rb*128
    s_lshl_b32 s41, s32, 4                 ; w*16 rows
    s_add_u32 s37, s37, s41
    s_mul_i32 s37, s37, 1280
    s_lshl_b32 s42, s32, 11
    s_lshr_b32 s57, s2, 3                  ; i
    s_and_b32 s78, s57, 7
    s_lshr_b32 s57, s57, 3
    s_lshl_b32 s57, s57, 1
    s_add_u32 s78, s78, s57
    s_mul_i32 s78, s78, {1 if ROT else 0}
    s_mov_b32 s56, 0
    s_mov_b32 s69, 0
    s_mov_b32 s58, s37
    s_mov_b32 s79, 0
    """)
    if ROT == 2:
        A("""
        s_cmp_ge_u32 s78, 10
        s_cselect_b32 s57, 10, 0
        s_sub_u32 s78, s78, s57
        s_mov_b32 s79, s78
        s_mov_b32 s69, s78
        s_lshl_b32 s57, s79, 7
        s_add_u32 s37, s58, s57
        """)
    A(f"""
    s_waitcnt lgkmcnt(0)
    """)
    if prof:
        A("s_memtime s[88:89]")
        A("s_waitcnt lgkmcnt(0)")
        A("s_sub_u32 s87, s88, s92")
    srd(A, 16, 4, X_BYTES)
    srd_ws(A, 24, 14, WS_RECORDS)
    srd(A, 60, 6, WQKV_BYTES)
    srd(A, 64, 8, W1_BYTES)
    A(f"""
    s_cmp_eq_u32 s32, 7
    s_cbranch_scc0 Lk1_noflag
    s_lshl_b32 s41, s2, 2
    s_add_u32 s41, s41, {OFLAG_OFF}
    v_mov_b32 v3, 0
    s_mov_b64 exec, 1
    buffer_store_dword v3, v3, s[24:27], s41 offen
    s_mov_b64 exec, -1
Lk1_noflag:
    """)
    if tlb:
        A("s_cmp_eq_u32 s32, 0")
        A("s_cbranch_scc0 Lk1_notouch")
        srd(A, 28, 10, B1_BYTES)
        A("v_mov_b32 v3, 0")
        MB2 = 2 << 20
        touch(A, [(16, "s37"), (60, 0), (60, MB2), (64, 0), (28, 0)] + [(24, k*MB2) for k in range(7)] + [(24, G_OFF)], 3, 1)
        A("Lk1_notouch:")
    A(f"""
    s_cmp_ge_u32 s32, 8
    s_cbranch_scc1 Lk1_H
    s_cmp_ge_u32 s32, 4
    s_cbranch_scc1 Lk1_R
    """)

    def adv_group(ws):
        if ROT == 2:
            g = ["s_add_u32 s79, s79, 1", "s_cmp_eq_u32 s79, 10", "s_cselect_b32 s79, 0, s79", "s_lshl_b32 s57, s79, 7", "s_add_u32 s37, s58, s57"]
        else:
            g = ["s_add_u32 s56, s56, 1", "s_add_u32 s57, s56, s78", "s_sub_u32 s57, s57, 2", "s_and_b32 s57, s57, 7", "s_add_u32 s57, s57, 2",
                 "s_cmp_lt_u32 s56, 2", "s_cselect_b32 s79, s56, s57", "s_lshl_b32 s57, s79, 7", "s_add_u32 s37, s58, s57"]
        if ws:
            g += [f"s_mul_i32 s57, s79, {ws}", "s_add_u32 s38, s59, s57"]
        return g

    def x_dma(slot_sgpr):
        g = []
        for j in range(2):
            g.append([f"s_add_u32 m0, {slot_sgpr}, {j*1024}", f"s_add_u32 s48, s37, {j*10240}",
                      f"buffer_load_dwordx4 v{10 + j}, s[16:19], s48 offen lds"])
        return g

    def xfrag_addr(rowbase_expr_sgpr):
        A(f"""
        v_and_b32 v3, 31, v2                   ; token
        v_lshrrev_b32 v13, 5, v2               ; hf
        v_bfe_u32 v14, v2, 1, 3
        v_xor_b32 v14, v13, v14
        v_lshlrev_b32 v14, 4, v14
        v_lshl_add_u32 v14, v3, 7, v14
        v_add_u32 v56, {rowbase_expr_sgpr}, v14
        v_xor_b32 v57, 32, v56
        v_xor_b32 v58, 64, v56
        v_xor_b32 v59, 96, v56
        """)

    def set_slot(nw, sgpr):
        out = [f"v_add_u32 v{4+k}, {sgpr}, v{56+k}" for k in range(4)]
        out += [f"v_add_u32 v{8+k}, {sgpr}, v{60+k}" for k in range(nw)]
        return out

    def interleave(ms, others):
        n = len(ms)
        per = (len(others) + n - 1) // n
        k = 0
        for i, m in enumerate(ms):
            A(m)
            for grp in others[k:k+per]:
                for l in grp: A(l)
            k += per

    def unit_finish(tag):
        A(f"""
        s_waitcnt vmcnt(0)
        s_cmp_eq_u32 s77, 0xffff
        s_cbranch_scc1 Lk1_nounit{tag}
        v_lshrrev_b32 v16, 4, v2               ; g
        v_bfe_u32 v17, v2, 2, 2                ; r
        v_lshl_add_u32 v16, v16, 3, v17        ; 8g + r
        v_lshlrev_b32 v16, 7, v16              ; *128
        v_and_b32 v17, 3, v2
        v_lshl_add_u32 v16, v17, 3, v16        ; + c4*8
        v_add_u32 v16, s76, v16
        v_lshlrev_b32 v17, 4, v2               ; lane*16
        """)
        for cc in range(4):
            A(f"ds_read_b64_tr_b16 v[{20+4*cc}:{21+4*cc}], v16 offset:{cc*32}")
            A(f"ds_read_b64_tr_b16 v[{22+4*cc}:{23+4*cc}], v16 offset:{cc*32 + 512}")
        A("s_waitcnt lgkmcnt(0)")
        for cc in range(4):
            A(f"""
            s_add_u32 s41, s77, {cc}               ; c
            s_mul_i32 s45, s41, 205
            s_lshr_b32 s45, s45, 10                ; cg8 = c/5
            s_mul_i32 s47, s45, 5
            s_sub_u32 s47, s41, s47                ; ct
            s_mul_i32 s45, s45, {WF_CG}
            s_lshl_b32 s47, s47, 10
            s_add_u32 s45, s45, s47
            s_add_u32 s45, s45, s101
            s_add_u32 s45, s45, {WF_OFF}
            buffer_store_dwordx4 v[{20+4*cc}:{23+4*cc}], v17, s[24:27], s45 offen
            """)
        A(f"Lk1_nounit{tag}:")

    def kstep(ms, rd, extra, wait=True, skip_last=False):
        if wait: A("s_waitcnt lgkmcnt(0)")
        n = len(ms) - (1 if skip_last else 0)
        A(ms[0])
        for grp in rd:
            for l in grp: A(l)
        slots = max(1, n - 1)
        per = (len(extra) + slots - 1) // slots if extra else 0
        k = 0
        for i in range(1, n):
            A(ms[i])
            for grp in extra[k:k+per]:
                for l in grp: A(l)
            k += per
        for grp in extra[k:]:
            for l in grp: A(l)

    def loop(tag, nown, reads, mfmas, dma_groups, nw, unit=False):
        A(f"s_waitcnt vmcnt({nown})")
        A("s_barrier")
        if prof:
            A("s_memtime s[90:91]")
            A("s_waitcnt lgkmcnt(0)")
            A("s_sub_u32 s90, s90, s92")
        for l in set_slot(nw, "0"): A(l)
        for l in reads(0, 0): A(l)
        A(f"s_mov_b32 s50, {SLOT}")
        A.inloop = True
        g = dma_groups()
        adv = g[-1]; g = g[:-1]
        parts = [[], [], [], []]
        for i, grp in enumerate(g): parts[i * 4 // len(g)].append(grp)
        R = lambda ks, fs: [[l] for l in reads(ks, fs)]
        rot = [["s_mov_b32 s51, s50", f"s_add_u32 s50, s50, {SLOT}", f"s_cmp_ge_u32 s50, {3*SLOT}", "s_cselect_b32 s50, 0, s50",
                "s_add_u32 s52, s51, s42", "s_add_u32 s53, s51, s43"]]
        A(f"s_add_u32 s52, s42, {2*SLOT}")
        A(f"s_add_u32 s53, s43, {2*SLOT}")
        kstep(mfmas(0), R(1, 1), parts[0] + parts[1])
        kstep(mfmas(1), R(2, 0), parts[2])
        kstep(mfmas(0), R(3, 1), parts[3] + [adv] + [["s_mov_b32 s52, s42", "s_mov_b32 s53, s43", "s_mov_b32 s40, 0"]], skip_last=True)
        def section(dma, vm, final=False, ug=None):
            A(mfmas(0)[-1])
            A(f"s_waitcnt vmcnt({vm}) lgkmcnt(0)")
            A("s_barrier")
            if final:
                for m in mfmas(1): A(m)
                return
            rd = R(0, 0)
            rd[0] = set_slot(nw, "s50") + rd[0]
            P_ = parts if dma else [[], [], [], []]
            kstep(mfmas(1), rd, P_[0], wait=False)
            kstep(mfmas(0), R(1, 1), P_[1] + (ug or []))
            kstep(mfmas(1), R(2, 0), P_[2])
            tail = (P_[3] + [adv] if dma else []) + rot
            if dma: tail = tail + [["s_add_u32 s40, s40, 1", "s_cmp_lt_u32 s40, 7"]]
            kstep(mfmas(0), R(3, 1), tail, skip_last=True)
        A(f"L{tag}_loop:")
        section(True, nown)
        A(f"s_cbranch_scc1 L{tag}_loop")
        ug = []
        if unit:
            for j in range(4):
                ug.append([f"s_add_u32 m0, s76, {j*1024}", f"s_add_u32 s48, s100, {j*8*1280}", f"buffer_load_dwordx4 v62, s[96:99], s48 offen lds"])
            A("s_lshl_b32 s76, s32, 12")
            A("s_add_u32 s76, s76, s51")
        section(False, nown, ug=ug)
        section(False, 4 if unit else 0)
        section(False, 4 if unit else 0, final=True)
        A.inloop = False
        A("s_nop 15")
        if prof:
            A("s_memtime s[88:89]")
            A("s_waitcnt lgkmcnt(0)")
            A("s_sub_u32 s91, s88, s92")

    A(f"""
    s_cmp_eq_u32 s33, 0
    s_cbranch_scc1 Lk1_gate
    """)
    srd(A, 20, 6, WQKV_BYTES)
    A(f"""
    s_mov_b32 s36, 3840
    v_and_b32 v13, 15, v2
    v_lshlrev_b32 v15, 2, v14
    v_xor_b32 v13, v13, v15
    v_mul_u32_u24 v15, 3840, v14
    v_lshl_add_u32 v12, v13, 4, v15
    s_mul_i32 s38, s32, {16*3840}          ; w*16 k-rows
    s_lshl_b32 s41, s35, 8                 ; cgp*128*2
    s_add_u32 s59, s38, s41
    s_mul_i32 s57, s79, {64*3840}
    s_add_u32 s38, s59, s57
    s_lshl_b32 s43, s32, 12
    s_add_u32 s43, s43, {WQO}
    """)
    def p_dma():
        g = x_dma("s52")
        for j in range(4):
            g.append([f"s_add_u32 m0, s53, {j*1024}",
                      (f"s_add_u32 s48, s38, {j*4*3840}"),
                      f"buffer_load_dwordx4 v12, s[20:23], s48 offen lds"])
        g.append(adv_group(64*3840))
        return g
    def stage_issue(st, dmaf):
        A(f"s_add_u32 s52, s42, {st*SLOT}")
        A(f"s_add_u32 s53, s43, {st*SLOT}")
        for grp in dmaf():
            for l in grp: A(l)
    if prof: wl_stamp(A, 63, 0)
    stage_issue(0, p_dma)
    if prof: wl_stamp(A, 63, 1)
    A("s_barrier")
    if prof: wl_stamp(A, 63, 2)
    LATE_P = True
    A("s_lshr_b32 s41, s32, 1")
    A("s_lshl_b32 s41, s41, 13")
    xfrag_addr("s41")
    A(f"""
    v_bfe_u32 v14, v2, 2, 2                ; r
    v_lshl_add_u32 v15, v13, 3, v14
    v_lshlrev_b32 v15, 8, v15
    v_bfe_u32 v3, v2, 4, 1
    v_lshl_add_u32 v15, v3, 5, v15
    v_and_b32 v3, 3, v2
    v_lshl_add_u32 v15, v3, 3, v15
    v_add_u32 v15, {WQO}, v15
    s_and_b32 s41, s32, 1
    s_lshl_b32 s41, s41, 1
    v_xor_b32 v3, s41, v14                 ; ct ^ r
    v_lshl_add_u32 v60, v3, 6, v15
    v_xor_b32 v3, 1, v3
    v_lshl_add_u32 v61, v3, 6, v15
    """)
    if prof: wl_stamp(A, 63, 3)
    stage_issue(1, p_dma)
    if prof: wl_stamp(A, 63, 4)
    for i in range(64): A(f"v_mov_b32 v{64+i}, 0")
    def p_reads(ks, fs):
        b = 16 + 16*fs
        return [
            f"ds_read_b128 v[{b}:{b+3}], v{4+ks}",
            f"ds_read_b64_tr_b16 v[{b+8}:{b+9}], v8 offset:{ks*4096}",
            f"ds_read_b64_tr_b16 v[{b+10}:{b+11}], v8 offset:{ks*4096 + 1024}",
            f"ds_read_b128 v[{b+4}:{b+7}], v{4+ks} offset:4096",
            f"ds_read_b64_tr_b16 v[{b+12}:{b+13}], v9 offset:{ks*4096}",
            f"ds_read_b64_tr_b16 v[{b+14}:{b+15}], v9 offset:{ks*4096 + 1024}",
        ]
    def p_mfmas(normal):
        def f(fs):
            b = 16 + 16*fs
            out = []
            for rt in range(2):
                for ct in range(2):
                    d = 64 + 16*(2*rt + ct)
                    x = f"v[{b+4*rt}:{b+4*rt+3}]"; w = f"v[{b+8+4*ct}:{b+8+4*ct+3}]"
                    a_, b_ = (x, w) if normal else (w, x)
                    out.append(f"v_mfma_f32_32x32x16_bf16 v[{d}:{d+15}], {a_}, {b_}, v[{d}:{d+15}]")
            return out
        return f
    A(f"""
    s_mul_i32 s41, s34, 15
    s_add_u32 s41, s41, s35
    s_lshl_b32 s41, s41, 2
    s_add_u32 s41, s41, s32                ; idx
    s_mul_i32 s45, s41, 6554
    s_lshr_b32 s45, s45, 16                ; ksg
    s_mul_i32 s47, s45, 10
    s_sub_u32 s47, s41, s47                ; blk
    s_cmp_lt_u32 s45, 48
    s_cselect_b32 s96, s80, s82
    s_cselect_b32 s97, s81, s83
    s_mov_b32 s98, {W2_BYTES}
    s_cselect_b32 s98, s98, {WO_BYTES}
    s_cselect_b32 s100, 0, 48
    s_and_b32 s97, s97, 0xffff
    s_mov_b32 s99, 0x00020000
    s_sub_u32 s100, s45, s100
    s_mul_i32 s100, s100, {32*1280}
    s_lshl_b32 s101, s47, 7
    s_add_u32 s100, s100, s101
    s_lshl_b32 s77, s47, 2                 ; c0 = 4*blk
    s_mul_i32 s101, s45, 5120
    s_cmp_lt_u32 s41, 680
    s_cselect_b32 s100, s100, 0x7ff00000
    s_cselect_b32 s77, s77, 0xffff
    v_lshrrev_b32 v62, 3, v2
    v_mul_u32_u24 v62, 1280, v62
    v_and_b32 v3, 7, v2
    v_lshl_add_u32 v62, v3, 4, v62
    """)
    A(f"""
    s_lshr_b32 s41, s32, 1
    s_lshl_b32 s41, s41, 1
    s_lshl_b32 s44, s34, 2
    s_add_u32 s44, s44, s41                ; T (rt'=0)
    s_cmp_eq_u32 s33, 3
    s_cbranch_scc1 Lk1_mainV
    s_cmp_eq_u32 s33, 1
    s_cbranch_scc0 Lk1_isK
    s_mul_i32 s68, s44, 1280
    s_add_u32 s68, s68, {QF_OFF}
    s_mov_b32 s49, {HSQ}
    s_mov_b32 s70, {f32bits(QSCALE):#x}
    s_branch Lk1_qk
Lk1_isK:
    s_lshr_b32 s68, s44, 3
    s_mul_i32 s68, s68, {CH}
    s_and_b32 s41, s44, 7
    s_mul_i32 s41, s41, 1280
    s_add_u32 s68, s68, s41
    s_add_u32 s68, s68, {KV_OFF}
    s_mov_b32 s49, {HSK}
    s_mov_b32 s70, 1.0
Lk1_qk:
    s_mov_b32 s71, s70
    s_and_b32 s41, s32, 1
    s_lshl_b32 s41, s41, 4
    s_lshl_b32 s55, s46, 5
    s_add_u32 s55, s55, s41                ; G0 base
    v_lshrrev_b32 v13, 5, v2               ; hf
    v_and_b32 v3, 31, v2                   ; token
    v_lshlrev_b32 v14, 4, v3
    v_lshlrev_b32 v15, 3, v3
    v_add_u32 v15, 1024, v15
    """)
    for ct in range(2):
        for a in range(4):
            d = 48 + 4*ct + a
            A(f"""
            v_add_u32 v16, {8*ct + 2*a}, v13
            v_add_u32 v16, s55, v16
            v_mul_u32_u24 v17, 205, v16
            v_lshrrev_b32 v17, 10, v17             ; h = G/5
            v_mul_u32_u24 v18, 5, v17
            v_sub_u32 v18, v16, v18                ; j
            v_lshrrev_b32 v19, 1, v18
            v_lshlrev_b32 v19, 9, v19
            v_and_b32 v20, 1, v18
            v_lshl_add_u32 v19, v20, 3, v19
            v_add_u32 v19, v19, v14
            v_cmp_eq_u32 vcc, 4, v18
            v_mul_lo_u32 v17, v17, s49
            s_nop 0
            v_cndmask_b32 v19, v19, v15, vcc
            v_add_u32 v{d}, v19, v17
            """)
    loop("k1T", 6, p_reads, p_mfmas(False), p_dma, 2, unit=True)
    unit_finish("T")
    for ct in range(2):
        for a in range(4):
            for rt in range(2):
                r = 64 + 16*(2*rt + ct) + 4*a
                t = 16 + 2*((2*(4*ct + a) + rt) & 7)
                A(f"""
                v_pk_mul_f32 v[{r}:{r+1}], v[{r}:{r+1}], s[70:71]
                v_pk_mul_f32 v[{r+2}:{r+3}], v[{r+2}:{r+3}], s[70:71]
                v_cvt_pk_bf16_f32 v{t}, v{r}, v{r+1}
                v_cvt_pk_bf16_f32 v{t+1}, v{r+2}, v{r+3}
                buffer_store_dwordx2 v[{t}:{t+1}], v{48 + 4*ct + a}, s[24:27], s68 offen offset:{rt*1280}{SCQ}
                """)
    A("s_branch Lk1_end")
    A("Lk1_mainV:")
    A(f"""
    s_lshr_b32 s68, s44, 3
    s_mul_i32 s68, s68, {CH}
    s_and_b32 s41, s44, 7
    s_mul_i32 s41, s41, {VT}
    s_add_u32 s68, s68, s41
    s_add_u32 s68, s68, {KV_OFF + VPART}
    s_and_b32 s41, s32, 1
    s_lshl_b32 s41, s41, 6
    s_lshl_b32 s55, s46, 7
    s_add_u32 s55, s55, s41
    v_and_b32 v3, 31, v2
    v_lshrrev_b32 v13, 5, v2               ; hf
    v_mul_u32_u24 v14, {VH}, v13
    s_mov_b32 s49, {HSK}
    """)
    for ct in range(2):
        A(f"""
        v_add_u32 v16, {32*ct}, v3
        v_add_u32 v16, s55, v16                ; c
        v_mul_u32_u24 v17, 3277, v16
        v_lshrrev_b32 v17, 16, v17             ; h
        v_mul_u32_u24 v18, 20, v17
        v_sub_u32 v18, v16, v18                ; dh
        v_mul_lo_u32 v17, v17, s49
        v_cmp_eq_u32 s[{72+2*ct}:{73+2*ct}], 0, v18
        """)
        vslot(A, 18, 20, 21)
        A(f"""
        v_lshl_add_u32 v19, v20, 4, v17
        v_add_u32 v{48+ct}, v19, v14
        """)
    loop("k1N", 6, p_reads, p_mfmas(True), p_dma, 2, unit=True)
    unit_finish("N")
    A(f"""
    v_mov_b32 v28, 0x3f803f80
    v_mov_b32 v29, 0x3f803f80
    v_mov_b32 v30, 0x3f803f80
    v_mov_b32 v31, 0x3f803f80
    v_mov_b32 v52, 0
    v_mov_b32 v53, 0
    v_mov_b32 v54, 0
    v_mov_b32 v55, 0
    """)
    for ct in range(2):
        for rt in range(2):
            for j in range(2):
                r = 64 + 16*(2*rt + ct) + 8*j
                t = 32 + 4*(2*rt + j)
                for m in range(4):
                    A(f"v_cvt_pk_bf16_f32 v{t+m}, v{r+2*m}, v{r+2*m+1}")
                A(f"buffer_store_dwordx4 v[{t}:{t+3}], v{48+ct}, s[24:27], s68 offen offset:{rt*VT + j*2*VH}{SC}")
        A(f"""
        s_mov_b64 exec, s[{72+2*ct}:{73+2*ct}]
        s_cbranch_execz Lk1_noones{ct}
        """)
        for rt in range(2):
            for j in range(2):
                A(f"buffer_store_dwordx4 v[28:31], v{48+ct}, s[24:27], s68 offen offset:{128 + rt*VT + j*2*VH}")
                A(f"buffer_store_dwordx4 v[52:55], v{48+ct}, s[24:27], s68 offen offset:{240 + rt*VT + j*2*VH}")
        A(f"""
Lk1_noones{ct}:
        s_mov_b64 exec, -1
        """)
    A("s_branch Lk1_end")

    A("Lk1_gate:")
    srd(A, 28, 12, GW_BYTES)
    A(f"""
    s_mul_i32 s41, s32, 320
    s_add_u32 m0, s41, {GATE_LDS}
    v_lshlrev_b32 v12, 4, v2
    v_cmp_gt_u32 vcc, 20, v2
    s_and_saveexec_b64 s[76:77], vcc
    buffer_load_dwordx4 v12, s[28:31], s41 offen lds
    s_mov_b64 exec, s[76:77]
    """)
    def g_dma():
        g = x_dma("s52")
        g.append(adv_group(0))
        return g
    for st in range(2):
        A(f"s_add_u32 s52, s42, {st*SLOT}")
        for grp in g_dma():
            for l in grp: A(l)
        if st == 0: A("s_barrier")
    A("s_lshl_b32 s41, s32, 12")
    xfrag_addr("s41")
    A(f"""
    v_lshlrev_b32 v9, 4, v13               ; hf*16
    v_add_u32 v62, {GATE_LDS}, v9
    s_lshl_b32 s57, s69, 7
    v_add_u32 v9, s57, v62
    v_mov_b32 v60, 0
    s_mov_b32 s43, 0
    """)
    for i in range(16): A(f"v_mov_b32 v{64+i}, 0")
    def g_reads(ks, fs):
        b = 16 + 16*fs
        out = [f"ds_read_b128 v[{b}:{b+3}], v{4+ks}", f"ds_read_b128 v[{b+4}:{b+7}], v9 offset:{ks*32}"]
        if ks == 3:
            if ROT == 2:
                out += ["s_add_u32 s69, s69, 1", "s_cmp_eq_u32 s69, 10", "s_cselect_b32 s69, 0, s69", "s_lshl_b32 s57, s69, 7", "v_add_u32 v9, s57, v62"]
            else:
                out += ["s_add_u32 s69, s69, 1", "s_add_u32 s57, s69, s78", "s_sub_u32 s57, s57, 2", "s_and_b32 s57, s57, 7", "s_add_u32 s57, s57, 2",
                        "s_cmp_lt_u32 s69, 2", "s_cselect_b32 s57, s69, s57", "s_lshl_b32 s57, s57, 7", "v_add_u32 v9, s57, v62"]
        return out
    def g_mfmas(fs):
        b = 16 + 16*fs
        return [f"v_mfma_f32_32x32x16_bf16 v[64:79], v[{b+4}:{b+7}], v[{b}:{b+3}], v[64:79]"]
    A(f"s_waitcnt vmcnt(2)")
    A("s_barrier")
    A(f"s_add_u32 s52, s42, {2*SLOT}")
    for grp in g_dma():
        for l in grp: A(l)
    if prof:
        A("s_mov_b32 s90, 0")
    for l in set_slot(0, "0"): A(l)
    for l in g_reads(0, 0): A(l)
    A("s_mov_b32 s40, 0")
    A(f"s_mov_b32 s50, {SLOT}")
    A("s_mov_b32 s51, 0")
    A("Lk1g_loop:")
    for ks in range(3):
        fs = ks & 1
        for l in g_reads(ks + 1, fs ^ 1): A(l)
        A("s_waitcnt lgkmcnt(2)")
        for l in g_mfmas(fs): A(l)
    A(f"""
    s_cmp_lt_u32 s40, 8
    s_cbranch_scc1 Lk1g_a
    s_waitcnt vmcnt(0)
Lk1g_a:
    s_waitcnt vmcnt(2) lgkmcnt(0)
    s_barrier
    """)
    for l in set_slot(0, "s50"): A(l)
    for l in g_mfmas(1): A(l)
    for l in g_reads(0, 0): A(l)
    A(f"""
    s_cmp_lt_u32 s40, 7
    s_cbranch_scc0 Lk1g_b
    s_add_u32 s52, s51, s42
    """)
    for grp in g_dma():
        for l in grp: A(l)
    A(f"""
Lk1g_b:
    s_mov_b32 s51, s50
    s_add_u32 s50, s50, {SLOT}
    s_cmp_ge_u32 s50, {3*SLOT}
    s_cselect_b32 s50, 0, s50
    s_add_u32 s40, s40, 1
    s_cmp_lt_u32 s40, 10
    s_cbranch_scc1 Lk1g_loop
    s_waitcnt lgkmcnt(0)
    s_nop 15
    v_mul_f32 v16, {f32bits(-LOG2E):#x}, v64
    v_exp_f32 v16, v16
    s_nop 0
    v_add_f32 v16, 1.0, v16
    v_rcp_f32 v16, v16
    s_lshl_b32 s44, s34, 2
    s_add_u32 s44, s44, s32                ; T
    s_lshl_b32 s44, s44, 7                 ; *32*4 bytes
    s_add_u32 s44, s44, {G_OFF}
    v_lshlrev_b32 v17, 2, v2
    v_cmp_gt_u32 vcc, 32, v2
    s_and_saveexec_b64 s[76:77], vcc
    buffer_store_dword v16, v17, s[24:27], s44 offen
    s_mov_b64 exec, s[76:77]
    s_branch Lk1_end
    """)

    A("Lk1_R:")
    if prof:
        A("v_writelane_b32 v61, s87, 8")
        wl_stamp(A, 61, 9)
    srd(A, 20, 8, W1_BYTES)
    srd(A, 28, 10, B1_BYTES)
    A(f"""
    s_sub_u32 s47, s32, 4
    s_mul_i32 s41, s35, 192
    v_lshrrev_b32 v3, 5, v2
    v_lshlrev_b32 v3, 4, v3
    """)
    if prof: wl_stamp(A, 61, 12)
    A(f"""
    buffer_load_dwordx4 v[112:115], v3, s[28:31], s41 offen
    """)
    if prof: wl_stamp(A, 61, 13)
    A(f"""
    buffer_load_dwordx4 v[116:119], v3, s[28:31], s41 offen offset:32
    buffer_load_dwordx4 v[120:123], v3, s[28:31], s41 offen offset:64
    buffer_load_dwordx4 v[124:127], v3, s[28:31], s41 offen offset:96
    buffer_load_dwordx4 v[48:51], v3, s[28:31], s41 offen offset:128
    buffer_load_dwordx4 v[52:55], v3, s[28:31], s41 offen offset:160
    """)
    if prof: wl_stamp(A, 61, 14)
    for j, reg in enumerate((12, 62, 63)):
        A(f"""
        s_mul_i32 s41, s47, 192
        s_add_u32 s41, s41, {64*j}
        v_add_u32 v13, s41, v2                 ; t
        v_mul_u32_u24 v14, 5462, v13
        v_lshrrev_b32 v14, 16, v14             ; t/12
        v_mul_u32_u24 v15, 12, v14
        v_sub_u32 v15, v13, v15
        v_mul_u32_u24 v14, 3072, v14
        v_lshl_add_u32 v{reg}, v15, 4, v14
        """)
    A(f"""
    s_mul_i32 s59, s35, 192
    s_mul_i32 s57, s79, {64*3072}
    s_add_u32 s38, s59, s57
    s_mul_i32 s43, s47, 3072
    s_add_u32 s43, s43, {W1O}
    """)
    def r_dma():
        g = x_dma("s52")
        for j, reg in enumerate((12, 62, 63)):
            g.append([f"s_add_u32 m0, s53, {j*1024}", "s_nop 0",
                      f"buffer_load_dwordx4 v{reg}, s[20:23], s38 offen lds"])
        g.append(adv_group(64*3072))
        return g
    def r_stage(st):
        A(f"s_add_u32 s52, s42, {st*SLOT}")
        A(f"s_add_u32 s53, s43, {st*SLOT}")
        for grp in r_dma():
            for l in grp: A(l)
    if prof: wl_stamp(A, 61, 0)
    r_stage(0)
    if prof: wl_stamp(A, 61, 1)
    A("s_barrier")
    A("s_lshl_b32 s41, s47, 12")
    xfrag_addr("s41")
    A(f"""
    v_bfe_u32 v14, v2, 2, 2
    v_lshl_add_u32 v15, v13, 3, v14
    v_mul_u32_u24 v15, 192, v15
    v_bfe_u32 v3, v2, 4, 1
    v_lshl_add_u32 v15, v3, 5, v15
    v_and_b32 v3, 3, v2
    v_lshrrev_b32 v1, 1, v3
    v_and_b32 v3, 1, v3
    v_lshl_or_b32 v3, v3, 1, v1
    v_lshl_add_u32 v15, v3, 3, v15
    v_add_u32 v60, {W1O}, v15
    """)
    if prof: wl_stamp(A, 61, 2)
    r_stage(1)
    if prof: wl_stamp(A, 61, 3)
    A("s_waitcnt vmcnt(10)")
    if prof:
        wl_stamp(A, 61, 4)
    bsrc = [112, 116, 120, 124, 48, 52]
    for ct in range(3):
        for half in range(2):
            for m in range(4):
                src = bsrc[2*ct + half] + m
                d = 64 + 16*ct + 8*half + 2*m
                A(f"v_lshlrev_b32 v{d}, 16, v{src}")
                A(f"v_and_b32 v{d+1}, 0xffff0000, v{src}")
    def r_reads(ks, fs):
        b = 16 + 16*fs
        out = [f"ds_read_b128 v[{b}:{b+3}], v{4+ks}"]
        for ct in range(3):
            out.append(f"ds_read_b64_tr_b16 v[{b+4+4*ct}:{b+5+4*ct}], v8 offset:{ks*16*192 + ct*64}")
            out.append(f"ds_read_b64_tr_b16 v[{b+6+4*ct}:{b+7+4*ct}], v8 offset:{ks*16*192 + 4*192 + ct*64}")
        return out
    def r_mfmas(fs):
        b = 16 + 16*fs
        return [f"v_mfma_f32_32x32x16_bf16 v[{64+16*ct}:{64+16*ct+15}], v[{b+4+4*ct}:{b+7+4*ct}], v[{b}:{b+3}], v[{64+16*ct}:{64+16*ct+15}]" for ct in range(3)]
    loop("k1R", 5, r_reads, r_mfmas, r_dma, 1)
    A("s_setprio 2")
    A(f"""
    s_lshl_b32 s44, s34, 2
    s_add_u32 s44, s44, s47                ; T
    s_mul_i32 s45, s44, {2*48*1024}
    s_mul_i32 s41, s35, {3*1024}
    s_add_u32 s45, s45, s41
    s_add_u32 s45, s45, {ACT_OFF}
    v_bfe_u32 v13, v2, 4, 1                ; token>>4
    v_mul_u32_u24 v13, {48*1024}, v13
    v_lshrrev_b32 v14, 5, v2               ; hf
    v_lshl_add_u32 v13, v14, 8, v13
    v_and_b32 v14, 15, v2
    v_lshl_add_u32 v13, v14, 4, v13
    s_mov_b32 s54, {f32bits(LOG2E):#x}
    s_mov_b32 s55, s54
    v_mov_b32 v2, 2.0
    v_mov_b32 v3, 2.0
    """)
    def mish8(r, t0):
        for p in range(4):
            A(f"v_pk_mul_f32 v[{t0+2*p}:{t0+2*p+1}], v[{r+2*p}:{r+2*p+1}], s[54:55]")
        for i in range(8):
            A(f"v_exp_f32 v{t0+i}, v{t0+i}")
        for p in range(4):
            A(f"v_pk_add_f32 v[{t0+8+2*p}:{t0+8+2*p+1}], v[{t0+2*p}:{t0+2*p+1}], v[2:3]")
        for p in range(4):
            A(f"v_pk_fma_f32 v[{t0+2*p}:{t0+2*p+1}], v[{t0+2*p}:{t0+2*p+1}], v[{t0+8+2*p}:{t0+8+2*p+1}], v[2:3]")
        for i in range(8):
            A(f"v_rcp_f32 v{t0+i}, v{t0+i}")
        A("s_nop 0")
        for p in range(4):
            A(f"v_pk_fma_f32 v[{t0+2*p}:{t0+2*p+1}], v[{t0+2*p}:{t0+2*p+1}], -2.0, 1.0 op_sel_hi:[1,0,0]")
        for p in range(4):
            A(f"v_pk_mul_f32 v[{r+2*p}:{r+2*p+1}], v[{r+2*p}:{r+2*p+1}], v[{t0+2*p}:{t0+2*p+1}]")
    k = 0
    for ct in range(3):
        for j in range(2):
            r = 64 + 16*ct + 8*j
            mish8(r, 16)
            t = 32 + 4*(k & 3); k += 1
            for m in range(4):
                A(f"v_cvt_pk_bf16_f32 v{t+m}, v{r+2*m}, v{r+2*m+1}")
            so, o = "s45", ct*1024 + j*512
            A(f"buffer_store_dwordx4 v[{t}:{t+3}], v13, s[24:27], {so} offen offset:{o}{SC}")
    A("s_branch Lk1_end")
    A("Lk1_H:")
    if pf:
        A(f"""
        s_and_b32 s41, s2, 7
        s_and_b32 s43, s41, 1                  ; rh
        s_lshr_b32 s44, s41, 1                 ; cq
        s_lshr_b32 s45, s2, 3                  ; i
        v_mov_b32 v13, 0x7ffffff0
        s_lshl_b32 s46, s43, 10
        s_lshl_b32 s47, s45, 5
        s_add_u32 s46, s46, s47
        v_add_u32 v3, s46, v2
        v_mul_u32_u24 v3, 1280, v3
        v_cmp_gt_u32 vcc, 32, v2
        s_nop 1
        v_cndmask_b32 v4, v13, v3, vcc
        v_lshrrev_b32 v3, 3, v2
        s_lshl_b32 s47, s45, 1
        v_add_u32 v3, s47, v3
        v_mul_u32_u24 v3, 3840, v3
        v_and_b32 v5, 7, v2
        v_lshlrev_b32 v5, 7, v5
        s_lshl_b32 s48, s44, 10
        v_add_u32 v5, s48, v5
        v_cmp_gt_u32 vcc, 3840, v5
        v_add_u32 v5, v5, v3
        v_cmp_gt_u32 s[50:51], 16, v2
        s_and_b64 vcc, vcc, s[50:51]
        s_nop 1
        v_cndmask_b32 v5, v13, v5, vcc
        ; W1: lanes<12: (2i + lane/6)*3072 + cq*768 + (lane%6)*128
        v_cmp_lt_u32 vcc, 5, v2
        v_mov_b32 v6, 0
        v_mov_b32 v7, 1
        v_cndmask_b32 v3, v6, v7, vcc
        v_mul_u32_u24 v6, 6, v3
        v_sub_u32 v6, v2, v6
        v_lshlrev_b32 v6, 7, v6
        v_add_u32 v3, s47, v3
        v_mul_u32_u24 v3, 3072, v3
        v_add_u32 v6, v6, v3
        s_mul_i32 s48, s44, 768
        v_add_u32 v6, s48, v6
        v_cmp_gt_u32 vcc, 12, v2
        s_nop 1
        v_cndmask_b32 v6, v13, v6, vcc
        s_barrier
        """)
        for st in range(1, 10):
            A(f"s_mov_b32 s46, {st*128}")
            A(f"buffer_load_dword v{16+3*st}, v4, s[16:19], s46 offen")
            A(f"s_mov_b32 s47, {st*64*3840}")
            A(f"buffer_load_dword v{17+3*st}, v5, s[60:63], s47 offen")
            A(f"s_mov_b32 s48, {st*64*3072}")
            A(f"buffer_load_dword v{18+3*st}, v6, s[64:67], s48 offen")
    for i in range(11): A("s_barrier")
    A("s_endpgm")
    A("Lk1_end:")
    if prof:
        A("s_memtime s[88:89]")
        A("s_waitcnt lgkmcnt(0)")
        A("s_sub_u32 s88, s88, s92")
        A("s_cmp_ge_u32 s32, 4")
        A("s_cbranch_scc1 Lk1_dbgR")
        A("v_mov_b32 v61, v63")
        A("Lk1_dbgR:")
        A("v_writelane_b32 v61, s88, 11")
        A("v_writelane_b32 v61, s91, 10")
        A(f"""
        s_lshl_b32 s97, s2, 4
        s_add_u32 s97, s97, s32
        s_lshl_b32 s97, s97, 6
        s_add_u32 s97, s97, {DBG_OFF + 0x100000}
        v_and_b32 v4, 63, v0
        v_lshlrev_b32 v4, 2, v4
        v_cmp_gt_u32 vcc, 16, v0
        v_and_b32 v5, 63, v0
        v_cmp_gt_u32 vcc, 16, v5
        s_and_saveexec_b64 s[56:57], vcc
        buffer_store_dword v61, v4, s[24:27], s97 offen
        s_mov_b64 exec, s[56:57]
        """)
        prof_end(A, 0, 24, 32, tmpv=(4, 5, 6, 7, 8), extra="s90")
    if tl: tl2_record(A, 0, 24, 32)
    A("Lk1_exit:")
    A("s_endpgm")
    return A.text(), kdesc(NAME, 128), f"; @launch kernel={NAME} grid=(256,1,1) block=({576 if pf else 512},1,1) lds={LDS_BYTES}"
```

```python
from asm import *
from common import *
from k2_shadow import gen_shadow

NAME = "k2_kernel"
SLOT = 24576
SH_BASE = 3 * SLOT
FLAG = SH_BASE + 4 * 20480
LDS_BYTES = FLAG + 128

X_ = [16, 48]
P_ = 80
O_ = 88
C_ = 104
QM = 120
QT = 124
KF = [126, 130]
KT = 134
V0 = 136
V1 = 140
FL = 144

def mf(d, a, b, c):
    cs = "0" if c is None else f"v[{c}:{c+15}]"
    return f"v_mfma_f32_32x32x16_bf16 v[{d}:{d+15}], v[{a}:{a+3}], v[{b}:{b+3}], {cs}"
def mf2b(d, a, b, c):
    cs = "0" if c is None else f"v[{c}:{c+31}]"
    return f"v_mfma_f32_32x32x4_2b_bf16 v[{d}:{d+31}], v[{a}:{a+1}], v[{b}:{b+1}], {cs}"

def vslot(A, row, dst, t1):
    A(f"""
    v_mov_b32 v{dst}, v{row}
    v_add_u32 v{t1}, 12, v{row}
    v_cmp_lt_u32 vcc, 3, v{row}
    s_nop 1
    v_cndmask_b32 v{dst}, v{dst}, v{t1}, vcc
    v_subrev_u32 v{t1}, 1, v{row}
    v_cmp_lt_u32 vcc, 9, v{row}
    s_nop 1
    v_cndmask_b32 v{dst}, v{dst}, v{t1}, vcc
    v_subrev_u32 v{t1}, 8, v{row}
    v_cmp_lt_u32 vcc, 11, v{row}
    s_nop 1
    v_cndmask_b32 v{dst}, v{dst}, v{t1}, vcc
    v_subrev_u32 v{t1}, 5, v{row}
    v_cmp_lt_u32 vcc, 15, v{row}
    s_nop 1
    v_cndmask_b32 v{dst}, v{dst}, v{t1}, vcc
    v_cmp_lt_u32 vcc, 19, v{row}
    s_nop 1
    v_cndmask_b32 v{dst}, v{dst}, 8, vcc
    v_cmp_lt_u32 vcc, 20, v{row}
    s_nop 1
    v_cndmask_b32 v{dst}, v{dst}, 15, vcc
    """)

def gen_k2(prof=False, exp_mode=0, shadow=True, shprio=0, pa=1, pb=2, tl=0, nofb=0, lstamp=0, desc=3):
    A = Asm()
    A(khead(NAME))
    A(f"""
    s_cmp_ge_u32 s2, 256
    s_cbranch_scc1 Lk2_end
    """)
    if prof: prof_start(A)
    if tl: tl_start(A, 1)
    A(f"""
    s_load_dwordx2 s[4:5], s[0:1], 80
    s_load_dwordx2 s[6:7], s[0:1], 48      ; w2
    v_lshrrev_b32 v9, 6, v0
    v_and_b32 v1, 63, v0                   ; lane
    s_and_b32 s20, s2, 7
    v_readfirstlane_b32 s12, v9            ; wave
    s_lshr_b32 s21, s2, 3
    s_and_b32 s22, s21, 3
    s_lshl_b32 s13, s20, 2
    s_add_u32 s13, s13, s22                ; h
    s_lshr_b32 s14, s21, 2                 ; qb
    s_lshl_b32 s15, s14, 3
    s_add_u32 s15, s15, s12                ; T
    s_cmp_ge_u32 s12, 8
    s_cbranch_scc1 Lk2_shadow
    s_mul_i32 s16, s13, {HSK}
    s_add_u32 s16, s16, {KV_OFF}
    s_mul_i32 s23, s13, {HSQ}
    s_mul_i32 s24, s15, 1280
    s_add_u32 s23, s23, s24
    s_add_u32 s23, s23, {QF_OFF}
    v_lshlrev_b32 v8, 4, v1                ; lane*16
    v_and_b32 v9, 31, v1
    v_lshrrev_b32 v10, 5, v1               ; hf
    v_lshlrev_b32 v11, 3, v9
    v_add_u32 v11, 1024, v11               ; 1024 + token*8
    s_mul_i32 s25, s12, 3072
    s_add_u32 s17, s16, s25
    s_waitcnt lgkmcnt(0)
    """)
    srd_ws(A, 8, 4, WS_RECORDS)
    def dma_groups(slot_sgpr, slot_imm=0):
        g = []
        for j in range(3):
            m0 = f"s_add_u32 m0, {slot_sgpr}, {slot_imm + j*1024}"
            g.append([m0, f"s_add_u32 s26, s17, {j*1024}", f"buffer_load_dwordx4 v8, s[8:11], s26 offen lds"])
        g.append([f"s_add_u32 s17, s17, {CH}"])
        return g
    for grp in dma_groups("s25", 0):
        for l in grp: A(l)
    A(f"""
    buffer_load_dwordx4 v[{QM}:{QM+3}], v8, s[8:11], s23 offen
    buffer_load_dwordx2 v[{QT}:{QT+1}], v11, s[8:11], s23 offen
    """)
    for grp in dma_groups("s25", SLOT):
        for l in grp: A(l)
    A(f"""
    v_cmp_gt_u32 s[28:29], 32, v1          ; lanes < 32
    v_mov_b32 v5, v8
    v_mul_u32_u24 v6, 1280, v10
    v_add_u32 v6, v6, v11
    """)
    vslot(A, 9, 14, 15)
    A(f"""
    v_mul_u32_u24 v7, {VH}, v10
    v_lshl_add_u32 v7, v14, 4, v7
    v_add_u32 v7, {VPART}, v7
    v_mov_b32 v2, v5
    v_mov_b32 v3, v6
    v_mov_b32 v4, v7
    v_lshlrev_b32 v12, 2, v1
    v_add_u32 v12, {FLAG}, v12
    v_mov_b32 v13, 0
    s_cmp_eq_u32 s12, 0
    s_cbranch_scc0 Lk2_noclr
    s_mov_b64 exec, s[28:29]
    ds_write_b32 v12, v13
    s_mov_b64 exec, -1
Lk2_noclr:
    v_and_b32 v12, 7, v1
    v_lshlrev_b32 v12, 2, v12
    v_add_u32 v12, {FLAG}, v12             ; v12: full[lane&7] ; +32: free[lane&7]
    s_lshl_b32 s33, s12, 2
    s_add_u32 s33, s33, {FLAG}
    v_mov_b32 v13, s33                     ; v13: own full word ; +32 own free word
    """)
    for i in range(4): A(f"v_mov_b32 v{V1+i}, 0")
    for i in range(4): A(f"v_mov_b32 v{P_+4+i}, 0")
    for i in range(16): A(f"v_mov_b32 v{O_+i}, 0")
    X0 = X_[0]
    A(f"""
    s_waitcnt vmcnt(3) lgkmcnt(0)
    s_barrier
    ds_read_b128 v[{KF[0]}:{KF[0]+3}], v2
    ds_read_b128 v[{KF[1]}:{KF[1]+3}], v2 offset:1280
    ds_read_b64 v[{KT}:{KT+1}], v3
    ds_read_b128 v[{V0}:{V0+3}], v4
    s_waitcnt lgkmcnt(0)
    {mf(X0, KF[0], QM, None)}
    {mf(X0+16, KF[1], QM, None)}
    s_nop 11
    {mf2b(X0, KT, QT, X0)}
    s_nop 15
    s_nop 7
    """)
    A(f"v_max3_f32 v9, v{X0}, v{X0+1}, v{X0+2}")
    for i in range(3, 31, 2):
        A(f"v_max3_f32 v9, v9, v{X0+i}, v{X0+i+1}")
    A(f"v_max_f32 v9, v9, v{X0+31}")
    A(f"""
    v_mov_b32 v10, v9
    s_nop 1
    v_permlane32_swap_b32 v9, v10
    s_nop 1
    v_max_f32 v9, v9, v10
    """)
    for i in range(16): A(f"v_sub_f32 v{C_+i}, 0, v9")
    for i in range(32): A(f"v_sub_f32 v{X0+i}, v{X0+i}, v9")
    A(f"""
    ds_read_b128 v[{KF[0]}:{KF[0]+3}], v2 offset:{2*1280}
    ds_read_b128 v[{KF[1]}:{KF[1]+3}], v2 offset:{3*1280}
    ds_read_b64 v[{KT}:{KT+1}], v3 offset:{2*1280}
    s_mov_b32 s18, 0
    s_mov_b32 s19, {SLOT}
    s_mov_b32 s27, {2*SLOT}
    s_setprio {pa}
    s_cmp_ge_u32 s12, 4
    s_cbranch_scc0 Lk2_noprio
    s_setprio {pb}
Lk2_noprio:
    """)
    if prof:
        A("s_memtime s[90:91]")
        A("s_waitcnt lgkmcnt(0)")
        A("s_sub_u32 s90, s90, s92")
    A0 = A
    class F:
        def __call__(self, l):
            for x in l.strip("\n").split("\n"):
                ls = x.strip()
                if exp_mode == 2 and ls.startswith("v_mfma"): continue
                if exp_mode == 3 and (ls.startswith("v_exp") or ls.startswith("v_cvt")): continue
                if exp_mode == 4 and (ls.startswith("ds_read_b128") or ls.startswith("ds_read_b64")): continue
                if exp_mode == 5 and ls.startswith("v_mfma_f32_32x32x4"): continue
                if exp_mode == 6 and (ls.startswith("ds_read_b128") or ls.startswith("ds_read_b64") or ls.startswith("v_mfma")): continue
                if exp_mode == 7 and ls.startswith("buffer_load"): continue
                A0(x)
        def label(self, b): return A0.label(b)
    if lstamp: wl_stamp(A, 150, 0)
    A("Lk2_loop:")
    A = F()
    def check(reg, need_sgpr, tag):
        lab = A.label(tag)
        off = 32 if tag == "free" else 0
        A(f"""
        v_cmp_le_u32 vcc, {need_sgpr}, v{reg}
        s_cmp_eq_u64 vcc, exec
        s_cbranch_scc1 {lab}
        s_mov_b32 s34, 0x40000
        {lab}_s:
        s_sub_u32 s34, s34, 1
        s_cbranch_scc1 {lab}
        s_sleep 1
        ds_read_b32 v{reg}, v12 offset:{off}
        s_waitcnt lgkmcnt(0)
        v_cmp_le_u32 vcc, {need_sgpr}, v{reg}
        s_cmp_eq_u64 vcc, exec
        s_cbranch_scc0 {lab}_s
        {lab}:
        """)
    def tile(sc, first, pr, t):
        sn = X_[(pr + 1) & 1]
        kt = (2*pr + 4) & 7
        E = lambda i: f"v_exp_f32 v{sc+i}, v{sc+i}"
        C = lambda p, a: f"v_cvt_pk_bf16_f32 v{P_+p}, v{sc+a}, v{sc+a+1}"
        pre = []
        if desc == 1 and t % 2 == 0: A(f"s_setprio {3 - t // 2}")
        if desc == 2 and t % 2 == 0: A(f"s_setprio {max(1, 3 - t // 2) if t < 6 else 1}")
        if desc == 3: A(f"s_setprio {3 - (t % 4)}")
        if desc in (4, 5): A(f"s_setprio {3 - 2*(t % 2)}")
        if desc == 6: A(f"s_setprio {[3,3,2,2,1,1,0,0][t]}") if t % 2 == 0 else None
        if desc == 7: A(f"s_setprio {[3,2,1,0,0,1,2,3][t]}")
        if desc == 8: A(f"s_setprio {[3,2,2,1,1,0,0,0][t]}")
        A("s_waitcnt lgkmcnt(0)")
        if t == 0:
            A(f"""
            s_waitcnt vmcnt(0)
            s_add_u32 s31, s18, 2
            v_mov_b32 v{FL}, s31
            v_mov_b32 v{FL+1}, s18
            ds_write_b32 v13, v{FL}
            ds_write_b32 v13, v{FL+1} offset:32
            """)
        if t == 4:
            nofull = A.label("nofull")
            A("s_cmp_lt_u32 s18, 7")
            A(f"s_cbranch_scc0 {nofull}")
            A("s_add_u32 s31, s18, 2")
            check(FL + 1, "s31", "full")
            A(f"{nofull}:")
            A("v_add_u32 v2, s19, v5")
            A("v_add_u32 v3, s19, v6")
        if first:
            A(mf(sn, KF[0], QM, C_))
            A(f"ds_read_b128 v[{KF[0]}:{KF[0]+3}], v2 offset:{kt*1280}")
        else:
            A(mf2b(sn, KT, QT, sn))
            A(f"ds_read_b64 v[{KT}:{KT+1}], v3 offset:{kt*1280}")
        if t == 1: A(f"ds_read_b32 v{FL}, v12 offset:32")
        if t == 3: A(f"ds_read_b32 v{FL+1}, v12")
        for i in range(4): A(E(i))
        A(mf(O_, V1, P_+4, O_))
        A(f"ds_read_b128 v[{V1}:{V1+3}], v4 offset:{t*VT + 2*VH}")
        if t == 7:
            A("v_add_u32 v4, s19, v7")
        dg = []
        if t == 2:
            skip = A.label("k2skip")
            A(f"s_cmp_lt_u32 s18, 6")
            A(f"s_cbranch_scc0 {skip}")
            check(FL, "s18", "free")
            A("s_add_u32 s30, s27, s25")
            for grp in dma_groups("s30"):
                for l in grp: A(l)
            A(f"{skip}:")
        A(C(0, 0)); A(E(4)); A(C(1, 2))
        for i in (5, 6, 7): A(E(i))
        if desc == 4: A(f"s_setprio {2 - 2*(t % 2)}")
        if first:
            A(mf(sn + 16, KF[1], QM, C_))
            A(f"ds_read_b128 v[{KF[1]}:{KF[1]+3}], v2 offset:{(kt+1)*1280}")
        A(C(2, 4)); A(E(8)); A(C(3, 6)); A(E(9)); A(E(10))
        A(mf(O_, V0, P_, O_))
        A(f"ds_read_b128 v[{V0}:{V0+3}], v4 offset:{((t+1)&7)*VT}")
        for i in (11, 12, 13): A(E(i))
        A(C(4, 8)); A(E(14)); A(C(5, 10)); A(E(15)); A(C(6, 12)); A(C(7, 14))
    for pr in range(4):
        cur = X_[pr & 1]
        tile(cur, True, pr, 2*pr)
        tile(cur + 16, False, pr, 2*pr + 1)
    A = A0
    A(f"""
    s_mov_b32 s19, s27
    s_add_u32 s27, s27, {SLOT}
    s_cmp_ge_u32 s27, {3*SLOT}
    s_cselect_b32 s27, 0, s27
    s_add_u32 s18, s18, 1
    s_cmp_lt_u32 s18, 8
    s_cbranch_scc1 Lk2_loop
    """)
    if lstamp: wl_stamp(A, 150, 1)
    A(f"""
    s_waitcnt lgkmcnt(0)
    {mf(O_, V1, P_+4, O_)}
    s_mov_b32 s31, 0
    s_nop 15
Lk2_fin:
    v_mov_b32 v9, v{O_+8}
    v_mov_b32 v10, v{O_+8}
    s_nop 1
    v_permlane32_swap_b32 v9, v10
    s_nop 1
    v_mul_f32 v11, 0, v{O_}
    """)
    for i in range(1, 8): A(f"v_fma_f32 v11, v{O_+i}, 0, v11")
    A(f"v_mul_f32 v14, 0, v{O_+8}")
    for i in range(9, 12): A(f"v_fma_f32 v14, v{O_+i}, 0, v14")
    A(f"""
    v_cndmask_b32 v14, 0, v14, s[28:29]
    v_add_f32 v11, v11, v14
    v_add_f32 v11, v11, v10
    v_mov_b32 v15, 0x53800000              ; 2^40
    v_cmp_nlt_f32 vcc, v11, v15            ; !(l < 2^40)
    s_cmp_eq_u32 s31, 0
    s_cbranch_scc0 Lk2_store
    {"" if nofb else "s_cbranch_vccnz Lk2_fallback"}
Lk2_store:
    v_rcp_f32 v10, v10
    s_mul_i32 s20, s13, 5
    s_mul_i32 s21, s15, 40960
    s_add_u32 s21, s21, {OF_OFF}
    v_lshrrev_b32 v11, 5, v1               ; hf
    v_and_b32 v14, 15, v1
    v_lshlrev_b32 v14, 4, v14              ; token16*16
    v_bfe_u32 v15, v1, 4, 1                ; q>>4
    v_mul_u32_u24 v15, 20480, v15
    v_add_u32 v14, v14, v15
    v_add_u32 v11, s20, v11                ; G (a=0)
    """)
    for a in range(3):
        r = O_ + 4*a
        A(f"""
        v_add_u32 v16, {2*a}, v11
        v_lshrrev_b32 v17, 3, v16
        v_lshlrev_b32 v17, 10, v17
        v_bfe_u32 v18, v16, 1, 2
        v_lshl_add_u32 v17, v18, 8, v17
        v_and_b32 v18, 1, v16
        v_lshl_add_u32 v17, v18, 3, v17
        v_add_u32 v17, v17, v14
        v_mul_f32 v{r}, v{r}, v10
        v_mul_f32 v{r+1}, v{r+1}, v10
        v_mul_f32 v{r+2}, v{r+2}, v10
        v_mul_f32 v{r+3}, v{r+3}, v10
        v_cvt_pk_bf16_f32 v{r}, v{r}, v{r+1}
        v_cvt_pk_bf16_f32 v{r+1}, v{r+2}, v{r+3}
        """)
        if a == 2:
            A("s_mov_b64 exec, s[28:29]")
        A(f"buffer_store_dwordx2 v[{r}:{r+1}], v17, s[8:11], s21 offen sc1")
    A("s_mov_b64 exec, -1")
    A("s_waitcnt vmcnt(0)")
    A("s_barrier")
    if prof:
        A("s_mov_b64 exec, -1")
        if lstamp: wl_dump(A, 150, 1, 8, 12, 21)
        prof_end(A, 1, 8, 12, tmpv=(16, 17, 18, 19, 20), extra="s90")
    if tl: tl2_record(A, 1, 8, 12)
    A("s_endpgm")

    s = X0
    A(f"""
Lk2_fallback:
    s_mov_b32 s31, 1
    v_and_b32 v9, 31, v1
    v_lshlrev_b32 v11, 3, v9
    v_add_u32 v11, 1024, v11
    v_mov_b32 v14, 0xff800000
    s_mov_b32 s18, 0
Lk2_fb1:
    s_lshr_b32 s20, s18, 3
    s_mul_i32 s20, s20, {CH}
    s_and_b32 s21, s18, 7
    s_mul_i32 s21, s21, 1280
    s_add_u32 s20, s20, s21
    s_add_u32 s20, s20, s16
    buffer_load_dwordx4 v[{KF[0]}:{KF[0]+3}], v8, s[8:11], s20 offen
    buffer_load_dwordx2 v[{KT}:{KT+1}], v11, s[8:11], s20 offen
    s_waitcnt vmcnt(0)
    {mf(s, KF[0], QM, None)}
    {mf(s+16, KF[0], QM, None)}
    s_nop 11
    {mf2b(s, KT, QT, s)}
    s_nop 15
    s_nop 7
    """)
    for i in range(0, 16, 2):
        A(f"v_max3_f32 v14, v14, v{s+i}, v{s+i+1}")
    A(f"""
    s_add_u32 s18, s18, 1
    s_cmp_lt_u32 s18, 64
    s_cbranch_scc1 Lk2_fb1
    v_mov_b32 v15, v14
    s_nop 1
    v_permlane32_swap_b32 v14, v15
    s_nop 1
    v_max_f32 v14, v14, v15
    """)
    for i in range(16): A(f"v_mov_b32 v{O_+i}, 0")
    A(f"""
    s_mov_b32 s18, 0
Lk2_fb2:
    s_lshr_b32 s20, s18, 3
    s_mul_i32 s20, s20, {CH}
    s_and_b32 s21, s18, 7
    s_mul_i32 s22, s21, {VT}
    s_add_u32 s22, s22, s20
    s_add_u32 s22, s22, s16
    s_mul_i32 s21, s21, 1280
    s_add_u32 s20, s20, s21
    s_add_u32 s20, s20, s16
    buffer_load_dwordx4 v[{KF[0]}:{KF[0]+3}], v8, s[8:11], s20 offen
    buffer_load_dwordx2 v[{KT}:{KT+1}], v11, s[8:11], s20 offen
    buffer_load_dwordx4 v[{V0}:{V0+3}], v7, s[8:11], s22 offen
    buffer_load_dwordx4 v[{V1}:{V1+3}], v7, s[8:11], s22 offen offset:{2*VH}
    s_waitcnt vmcnt(0)
    {mf(s, KF[0], QM, None)}
    {mf(s+16, KF[0], QM, None)}
    s_nop 11
    {mf2b(s, KT, QT, s)}
    s_nop 15
    s_nop 7
    """)
    for i in range(16): A(f"v_sub_f32 v{s+i}, v{s+i}, v14")
    for i in range(16): A(f"v_exp_f32 v{s+i}, v{s+i}")
    A("s_nop 0")
    for i in range(8): A(f"v_cvt_pk_bf16_f32 v{P_+i}, v{s+2*i}, v{s+2*i+1}")
    A(f"""
    s_nop 1
    {mf(O_, V0, P_, O_)}
    {mf(O_, V1, P_+4, O_)}
    s_add_u32 s18, s18, 1
    s_cmp_lt_u32 s18, 64
    s_cbranch_scc1 Lk2_fb2
    s_nop 15
    s_branch Lk2_fin
Lk2_end:
    s_endpgm
    """)
    if shadow: gen_shadow(A, prof, shprio, SH_BASE, FLAG)
    else: A("Lk2_shadow:\ns_barrier\ns_barrier\ns_endpgm")
    return A.text(), kdesc(NAME, 168), f"; @launch kernel={NAME} grid=(256,1,1) block=(768,1,1) lds={LDS_BYTES}"
```

```python
from asm import *
from common import *

ACC_B = 8
ACC_A = 28
WF = [48, 68]
BF = 88
PH = 20480
NPH = 17

def gen_shadow(A, prof, shprio, SH_BASE, FLAG, scl=" sc1", POLL_SLEEP=4):
    A(f"""
Lk2_shadow:
    s_setprio {shprio}
    s_load_dwordx2 s[30:31], s[0:1], 64    ; out
    s_sub_u32 s40, s12, 8                  ; w
    s_lshr_b32 s41, s13, 3
    s_lshl_b32 s44, s14, 2
    s_add_u32 s44, s44, s41                ; rbk
    s_and_b32 s43, s13, 7                  ; cg8
    s_lshl_b32 s46, s44, 2
    s_add_u32 s46, s46, s40                ; T16
    s_mul_i32 s47, s40, 5120
    s_mul_i32 s49, s43, {WF_CG}
    s_add_u32 s49, s49, s47
    s_add_u32 s49, s49, {WF_OFF}
    s_add_u32 s47, s47, {SH_BASE}
    s_mul_i32 s51, s46, {48*1024}
    s_add_u32 s51, s51, {ACT_OFF}
    s_mul_i32 s52, s46, 20480
    s_add_u32 s52, s52, {OF_OFF}
    v_lshlrev_b32 v2, 4, v1                ; lane*16
    v_add_u32 v3, {SH_BASE}, v2
    v_add_u32 v0, {SH_BASE + 3*PH}, v2
    v_and_b32 v4, 3, v1
    v_lshlrev_b32 v4, 2, v4
    v_add_u32 v4, {FLAG + 64}, v4          ; prog[lane&3]
    s_lshl_b32 s53, s40, 2
    s_add_u32 s53, s53, {FLAG + 64}
    v_mov_b32 v5, s53
    s_waitcnt lgkmcnt(0)
    """)
    srd_ws(A, 8, 4, WS_RECORDS)
    srd(A, 24, 30, OUT_BYTES)
    for i in range(40): A(f"v_mov_b32 v{ACC_B+i}, 0")
    A("s_barrier")
    def issue(q):
        g = []
        if q >= NPH: return g
        sl = q % 4
        for j in range(5):
            g.append([f"s_add_u32 m0, s47, {sl*PH + j*1024}", f"s_add_u32 s55, s49, {q*PH + j*1024}",
                      f"buffer_load_dwordx4 v2, s[8:11], s55 offen lds"])
        if q < 12:
            for k in range(4):
                b = BF + 16*sl + 4*k
                g.append([f"s_add_u32 s55, s51, {(4*q + k)*1024}", f"buffer_load_dwordx4 v[{b}:{b+3}], v2, s[8:11], s55 offen"])
        return g
    def nops(q):
        return 0 if q >= NPH else (9 if q < 12 else 5)
    def emit(g):
        for grp in g:
            for l in grp: A(l)
    def sync(p, n):
        lab = A.label("shs")
        A(f"""
        s_waitcnt vmcnt({n}) lgkmcnt(0)
        v_mov_b32 v6, {p + 1}
        ds_write_b32 v5, v6
        s_mov_b32 s60, 0x40000
        {lab}:
        ds_read_b32 v7, v4
        s_waitcnt lgkmcnt(0)
        v_cmp_le_u32 vcc, {p + 1}, v7
        s_cmp_eq_u64 vcc, exec
        s_cbranch_scc1 {lab}_ok
        s_sleep 2
        s_sub_u32 s60, s60, 1
        s_cbranch_scc0 {lab}
        {lab}_ok:
        """)
    def compute(p, g):
        sl = p % 4
        acc = ACC_B if p < 12 else ACC_A
        base, so = ("v3", sl*PH) if sl < 3 else ("v0", 0)
        def rd(k, fs):
            return [f"ds_read_b128 v[{WF[fs]+4*ct}:{WF[fs]+4*ct+3}], {base} offset:{so + k*5120 + ct*1024}" for ct in range(5)]
        def bfrag(k):
            return (BF + 16*sl + 4*k) if p < 12 else (BF + 4*(4*(p - 12) + k))
        per = (len(g) + 3) // 4
        for l in rd(0, 0): A(l)
        for k in range(4):
            if k < 3:
                for l in rd(k + 1, (k + 1) & 1): A(l)
                A("s_waitcnt lgkmcnt(5)")
            else:
                A("s_waitcnt lgkmcnt(0)")
            b = bfrag(k)
            for ct in range(5):
                A(f"v_mfma_f32_16x16x32_bf16 v[{acc+4*ct}:{acc+4*ct+3}], v[{WF[k&1]+4*ct}:{WF[k&1]+4*ct+3}], v[{b}:{b+3}], v[{acc+4*ct}:{acc+4*ct+3}]")
            emit(g[k*per:(k+1)*per])
    for q in range(3): emit(issue(q))
    for p in range(12):
        sync(p, nops(p + 1) + nops(p + 2))
        compute(p, issue(p + 3))
    if prof: stamp(A, 0)
    A("s_waitcnt vmcnt(0)")
    A("s_barrier")
    if prof: stamp(A, 1)
    A(f"""
    s_setprio 3
    s_cmp_eq_u32 s40, 1
    s_cbranch_scc0 Lsh_nopub
    s_lshl_b32 s56, s14, 5
    s_add_u32 s57, s56, s13                ; qb*32 + h
    s_lshl_b32 s57, s57, 2
    s_add_u32 s57, s57, {OFLAG_OFF}
    v_mov_b32 v7, 1
    v_mov_b32 v48, 0
    s_mov_b64 exec, 1
    buffer_store_dword v7, v48, s[8:11], s57 offen sc1
    s_mov_b64 exec, -1
Lsh_nopub:
    s_cmp_eq_u32 s40, 0
    s_cbranch_scc1 Lsh_poller
    """)
    A("s_sub_u32 s54, s40, 1")
    A(f"s_mul_i32 s61, s43, {WF_CG}")
    A(f"s_add_u32 s61, s61, {WF_OFF + 15*PH}")
    for j in range(14):
        lab = None
        if j == 13:
            lab = A.label("w13")
            A("s_cmp_eq_u32 s54, 0")
            A(f"s_cbranch_scc0 {lab}")
        A(f"s_add_u32 s55, s54, {3*j}")
        A("s_lshl_b32 s55, s55, 10")
        A("s_mov_b32 m0, s55")
        A("s_add_u32 s55, s55, s61")
        A(f"buffer_load_dwordx4 v2, s[8:11], s55 offen lds")
        if lab: A(f"{lab}:")
    A(f"""
    s_branch Lsh_g
Lsh_poller:
    s_lshl_b32 s56, s14, 7
    s_add_u32 s56, s56, {OFLAG_OFF}
    v_and_b32 v4, 31, v1
    v_lshlrev_b32 v4, 2, v4
    s_mov_b32 s60, 0x40000
Lsh_poll:
    buffer_load_dword v7, v4, s[8:11], s56 offen sc1
    s_waitcnt vmcnt(0)
    """)
    if prof:
        A("s_cmp_eq_u32 s60, 0x40000")
        A("s_cbranch_scc0 Lsh_np")
        stamp(A, 6)
        A("Lsh_np:")
    A(f"""
    v_cmp_eq_u32 vcc, 1, v7
    s_cmp_eq_u64 vcc, exec
    s_cbranch_scc1 Lsh_g
    s_sleep {POLL_SLEEP}
    s_sub_u32 s60, s60, 1
    s_cbranch_scc0 Lsh_poll
Lsh_g:
    """)
    if prof:
        stamp(A, 7)
        A("s_sub_u32 s78, 0x40000, s60")
    A(f"""
    v_and_b32 v49, 15, v1
    s_lshl_b32 s45, s46, 4
    v_add_u32 v49, s45, v49
    v_lshlrev_b32 v50, 2, v49
    s_mov_b32 s58, {G_OFF}
    buffer_load_dword v6, v50, s[8:11], s58 offen
    v_lshrrev_b32 v48, 4, v1               ; lane>>4
    v_mul_u32_u24 v7, 1280, v49
    v_lshl_add_u32 v5, v48, 3, v7
    s_waitcnt vmcnt(1)
    s_barrier
    """)
    if prof: stamp(A, 2)
    def oload(k):
        return [f"s_add_u32 s55, s52, {k*1024}", f"buffer_load_dwordx4 v[{BF+4*k}:{BF+4*k+3}], v2, s[8:11], s55 offen{scl}"]
    PRE = 8
    for k in range(PRE):
        for l in oload(k): A(l)
    if prof: stamp(A, 3)
    def wrd(ks, fs):
        p = 12 + ks // 4; k = ks % 4
        if p < 15: base, so = "v3", (p % 4)*PH
        else: base, so = "v2", (p - 15)*PH
        return [f"ds_read_b128 v[{WF[fs]+4*ct}:{WF[fs]+4*ct+3}], {base} offset:{so + k*5120 + ct*1024}" for ct in range(5)]
    for l in wrd(0, 0): A(l)
    for ks in range(20):
        if ks + PRE < 20:
            for l in oload(ks + PRE): A(l)
        issued = min(20, ks + PRE + 1)
        if ks < 19:
            for l in wrd(ks + 1, (ks + 1) & 1): A(l)
            A(f"s_waitcnt vmcnt({issued - 1 - ks}) lgkmcnt(5)")
        else:
            A("s_waitcnt vmcnt(0) lgkmcnt(0)")
        b = BF + 4*ks
        for ct in range(5):
            A(f"v_mfma_f32_16x16x32_bf16 v[{ACC_A+4*ct}:{ACC_A+4*ct+3}], v[{WF[ks&1]+4*ct}:{WF[ks&1]+4*ct+3}], v[{b}:{b+3}], v[{ACC_A+4*ct}:{ACC_A+4*ct+3}]")
    if prof: stamp(A, 4)
    A("s_nop 7")
    A("s_mul_i32 s48, s43, 160")
    for ct in range(5):
        b = ACC_B + 4*ct; a = ACC_A + 4*ct
        for i in range(4):
            A(f"v_sub_f32 v{a+i}, v{a+i}, v{b+i}")
        for i in range(4):
            A(f"v_fma_f32 v{a+i}, v6, v{a+i}, v{b+i}")
        A(f"v_cvt_pk_bf16_f32 v{48+2*ct}, v{a}, v{a+1}")
        A(f"v_cvt_pk_bf16_f32 v{49+2*ct}, v{a+2}, v{a+3}")
        A(f"buffer_store_dwordx2 v[{48+2*ct}:{49+2*ct}], v5, s[24:27], s48 offen offset:{ct*32}")
    if prof:
        stamp(A, 5)
        dump_stamps(A, 1, 8, 12, 9, tmp=50)
        A("s_mov_b64 exec, -1")
        A("s_mov_b32 s90, 0")
        prof_end(A, 1, 8, 12, tmpv=(16, 17, 18, 19, 20), extra="s90")
    A("s_endpgm")
```

```python
from asm import *
from common import *
from k2 import vslot

NAME = "k1_kernel"
SLOT = 45056
XO, WQO, W1O = 0, 16384, 32768
GATE_LDS = 3 * SLOT
UNIT_LDS = 3 * SLOT + 1536
LDS_BYTES = UNIT_LDS + 4096

def gen_k1(prof=False, mode=0, pf=1, rot=0, tlb=1, tl=0, sc=0, cpf=1, wfsc=1):
    SC = {0: '', 1: ' sc1', 2: ' nt', 3: ' sc0 sc1'}[sc & 3]
    SCQ = SC if sc & 4 else ''
    SCW = ' sc1' if wfsc else ''
    ROT = rot
    A0 = Asm()
    class F:
        def __init__(s): s.inloop = False
        def __call__(s, l):
            for x in l.strip("\n").split("\n"):
                xs = x.strip()
                if s.inloop:
                    if mode == 1 and xs.startswith("buffer_load") : continue
                    if mode == 2 and (xs.startswith("v_mfma") or xs.startswith("ds_read")): continue
                    if mode == 3 and xs.startswith("v_mfma"): continue
                    if mode in (4, 6) and xs.startswith("s_barrier"): continue
                    if mode == 6 and xs.startswith("buffer_load"): continue
                    if mode == 5 and xs.startswith("ds_read"): continue
                    if mode == 7 and (xs.startswith("buffer_load") or xs.startswith("ds_read")): continue
                    if mode == 8 and (xs.startswith("buffer_load") or xs.startswith("ds_read") or xs.startswith("s_barrier")): continue
                    if mode == 10 and (xs.startswith("buffer_load") or xs.startswith("ds_read") or xs.startswith("s_barrier") or xs.startswith("s_add_u32 m0") or xs.startswith("s_add_u32 s48") or xs.startswith("s_nop 0") or xs.startswith("v_add_u32")): continue
                if xs.endswith("_loop:"): s.inloop = True
                if xs.startswith("s_cbranch_scc1") and xs.endswith("g_loop"): s.inloop = False
                A0(x)
        def label(s, b): return A0.label(b)
        def text(s): return A0.text()
    A = F()
    A(khead(NAME))
    A(f"""
    s_cmp_ge_u32 s2, 256
    s_cbranch_scc1 Lk1_exit
    """)
    if prof: prof_start(A)
    if tl: tl_start(A, 0)
    if cpf:
        A(f"""
        s_getpc_b64 s[80:81]
Lk1_pc:
        s_sub_u32 s80, s80, Lk1_pc - k1_kernel
        s_subb_u32 s81, s81, 0
        s_lshr_b32 s82, s2, 3
        s_mul_i32 s82, s82, (Lcode_end - k1_kernel + 4095) / 4096
        v_and_b32 v61, 63, v0
        v_add_u32 v61, s82, v61
        v_min_u32 v61, (Lcode_end - k1_kernel - 4) / 128, v61
        v_lshlrev_b32 v61, 7, v61
        v_lshrrev_b32 v60, 6, v0
        v_and_b32 v59, 63, v0
        v_cmp_gt_u32 vcc, (Lcode_end - k1_kernel + 4095) / 4096, v59
        v_cmp_eq_u32 s[82:83], 7, v60
        s_and_b64 vcc, vcc, s[82:83]
        s_and_saveexec_b64 s[82:83], vcc
        s_cbranch_execz Lk1_nocpf
        global_load_dword v61, v61, s[80:81]
Lk1_nocpf:
        s_mov_b64 exec, s[82:83]
        """)
    A(f"""
    s_load_dwordx2 s[80:81], s[0:1], 48    ; w2
    s_load_dwordx2 s[82:83], s[0:1], 16    ; wo
    s_load_dwordx4 s[4:7], s[0:1], 0       ; A_x, wqkv
    s_load_dwordx4 s[8:11], s[0:1], 32     ; w1, b1
    s_load_dwordx2 s[12:13], s[0:1], 56    ; gate_w
    s_load_dwordx2 s[14:15], s[0:1], 80    ; ws
    v_lshrrev_b32 v1, 6, v0
    v_and_b32 v2, 63, v0                   ; lane
    s_and_b32 s41, s2, 7                   ; xcd
    v_readfirstlane_b32 s32, v1
    s_lshr_b32 s42, s2, 3                  ; i
    s_and_b32 s43, s41, 1
    s_lshl_b32 s43, s43, 3
    s_and_b32 s44, s42, 7
    s_add_u32 s34, s43, s44                ; rb
    s_lshr_b32 s43, s41, 1
    s_lshl_b32 s43, s43, 2
    s_lshr_b32 s44, s42, 3
    s_add_u32 s35, s43, s44                ; cgp
    s_mul_i32 s45, s35, 52
    s_lshr_b32 s45, s45, 8                 ; cgp/5
    s_add_u32 s33, s45, 1
    s_mul_i32 s45, s45, 5
    s_sub_u32 s46, s35, s45                ; cbl (0..4)
    s_cmp_eq_u32 s35, 15
    s_cselect_b32 s33, 0, s33
    v_lshrrev_b32 v3, 3, v2
    v_mul_u32_u24 v3, 1280, v3
    v_and_b32 v13, 7, v2
    v_lshrrev_b32 v14, 4, v2               ; lane>>4
    v_xor_b32 v15, v13, v14
    v_lshl_add_u32 v10, v15, 4, v3         ; even u
    v_xor_b32 v15, 4, v15
    v_lshl_add_u32 v11, v15, 4, v3         ; odd u
    s_lshl_b32 s37, s34, 7                 ; rb*128
    s_lshl_b32 s41, s32, 4                 ; w*16 rows
    s_add_u32 s37, s37, s41
    s_mul_i32 s37, s37, 1280
    s_lshl_b32 s42, s32, 11
    s_lshr_b32 s57, s2, 3                  ; i
    s_and_b32 s78, s57, 7
    s_lshr_b32 s57, s57, 3
    s_lshl_b32 s57, s57, 1
    s_add_u32 s78, s78, s57
    s_mul_i32 s78, s78, {1 if ROT else 0}
    s_mov_b32 s56, 0
    s_mov_b32 s69, 0
    s_mov_b32 s58, s37
    s_mov_b32 s79, 0
    """)
    if ROT == 2:
        A("""
        s_cmp_ge_u32 s78, 10
        s_cselect_b32 s57, 10, 0
        s_sub_u32 s78, s78, s57
        s_mov_b32 s79, s78
        s_mov_b32 s69, s78
        s_lshl_b32 s57, s79, 7
        s_add_u32 s37, s58, s57
        """)
    A(f"""
    s_waitcnt lgkmcnt(0)
    """)
    if prof:
        A("s_memtime s[88:89]")
        A("s_waitcnt lgkmcnt(0)")
        A("s_sub_u32 s87, s88, s92")
    srd(A, 16, 4, X_BYTES)
    srd_ws(A, 24, 14, WS_RECORDS)
    srd(A, 60, 6, WQKV_BYTES)
    srd(A, 64, 8, W1_BYTES)
    A(f"""
    s_cmp_eq_u32 s32, 7
    s_cbranch_scc0 Lk1_noflag
    s_lshl_b32 s41, s2, 2
    s_add_u32 s41, s41, {OFLAG_OFF}
    v_mov_b32 v3, 0
    s_mov_b64 exec, 1
    buffer_store_dword v3, v3, s[24:27], s41 offen
    s_mov_b64 exec, -1
Lk1_noflag:
    """)
    if tlb:
        A("s_cmp_eq_u32 s32, 0")
        A("s_cbranch_scc0 Lk1_notouch")
        srd(A, 28, 10, B1_BYTES)
        A("v_mov_b32 v3, 0")
        MB2 = 2 << 20
        touch(A, [(16, "s37"), (60, 0), (60, MB2), (64, 0), (28, 0)] + [(24, k*MB2) for k in range(7)] + [(24, G_OFF)], 3, 1)
        A("Lk1_notouch:")
    A(f"""
    s_cmp_ge_u32 s32, 8
    s_cbranch_scc1 Lk1_H
    s_cmp_ge_u32 s32, 4
    s_cbranch_scc1 Lk1_R
    """)

    def adv_group(ws):
        if ROT == 2:
            g = ["s_add_u32 s79, s79, 1", "s_cmp_eq_u32 s79, 10", "s_cselect_b32 s79, 0, s79", "s_lshl_b32 s57, s79, 7", "s_add_u32 s37, s58, s57"]
        else:
            g = ["s_add_u32 s56, s56, 1", "s_add_u32 s57, s56, s78", "s_sub_u32 s57, s57, 2", "s_and_b32 s57, s57, 7", "s_add_u32 s57, s57, 2",
                 "s_cmp_lt_u32 s56, 2", "s_cselect_b32 s79, s56, s57", "s_lshl_b32 s57, s79, 7", "s_add_u32 s37, s58, s57"]
        if ws:
            g += [f"s_mul_i32 s57, s79, {ws}", "s_add_u32 s38, s59, s57"]
        return g

    def x_dma(slot_sgpr):
        g = []
        for j in range(2):
            g.append([f"s_add_u32 m0, {slot_sgpr}, {j*1024}", f"s_add_u32 s48, s37, {j*10240}",
                      f"buffer_load_dwordx4 v{10 + j}, s[16:19], s48 offen lds"])
        return g

    def xfrag_addr(rowbase_expr_sgpr):
        A(f"""
        v_and_b32 v3, 31, v2                   ; token
        v_lshrrev_b32 v13, 5, v2               ; hf
        v_bfe_u32 v14, v2, 1, 3
        v_xor_b32 v14, v13, v14
        v_lshlrev_b32 v14, 4, v14
        v_lshl_add_u32 v14, v3, 7, v14
        v_add_u32 v56, {rowbase_expr_sgpr}, v14
        v_xor_b32 v57, 32, v56
        v_xor_b32 v58, 64, v56
        v_xor_b32 v59, 96, v56
        """)

    def set_slot(nw, sgpr):
        out = [f"v_add_u32 v{4+k}, {sgpr}, v{56+k}" for k in range(4)]
        out += [f"v_add_u32 v{8+k}, {sgpr}, v{60+k}" for k in range(nw)]
        return out

    def interleave(ms, others):
        n = len(ms)
        per = (len(others) + n - 1) // n
        k = 0
        for i, m in enumerate(ms):
            A(m)
            for grp in others[k:k+per]:
                for l in grp: A(l)
            k += per

    def kstep(ms, rd, extra, wait=True, skip_last=False):
        if wait: A("s_waitcnt lgkmcnt(0)")
        n = len(ms) - (1 if skip_last else 0)
        A(ms[0])
        for grp in rd:
            for l in grp: A(l)
        slots = max(1, n - 1)
        per = (len(extra) + slots - 1) // slots if extra else 0
        k = 0
        for i in range(1, n):
            A(ms[i])
            for grp in extra[k:k+per]:
                for l in grp: A(l)
            k += per
        for grp in extra[k:]:
            for l in grp: A(l)

    def loop(tag, nown, reads, mfmas, dma_groups, nw, unit=False):
        A(f"s_waitcnt vmcnt({nown})")
        A("s_barrier")
        if prof:
            A("s_memtime s[90:91]")
            A("s_waitcnt lgkmcnt(0)")
            A("s_sub_u32 s90, s90, s92")
        for l in set_slot(nw, "0"): A(l)
        for l in reads(0, 0): A(l)
        A(f"s_mov_b32 s50, {SLOT}")
        A.inloop = True
        g = dma_groups()
        adv = g[-1]; g = g[:-1]
        parts = [[], [], [], []]
        for i, grp in enumerate(g): parts[i * 4 // len(g)].append(grp)
        R = lambda ks, fs: [[l] for l in reads(ks, fs)]
        rot = [["s_mov_b32 s51, s50", f"s_add_u32 s50, s50, {SLOT}", f"s_cmp_ge_u32 s50, {3*SLOT}", "s_cselect_b32 s50, 0, s50",
                "s_add_u32 s52, s51, s42", "s_add_u32 s53, s51, s43"]]
        A(f"s_add_u32 s52, s42, {2*SLOT}")
        A(f"s_add_u32 s53, s43, {2*SLOT}")
        kstep(mfmas(0), R(1, 1), parts[0] + parts[1])
        kstep(mfmas(1), R(2, 0), parts[2])
        kstep(mfmas(0), R(3, 1), parts[3] + [adv] + [["s_mov_b32 s52, s42", "s_mov_b32 s53, s43", "s_mov_b32 s40, 0"]], skip_last=True)
        def section(dma, vm, final=False, ug=None):
            A(mfmas(0)[-1])
            A(f"s_waitcnt vmcnt({vm}) lgkmcnt(0)")
            A("s_barrier")
            if final:
                for m in mfmas(1): A(m)
                return
            rd = R(0, 0)
            rd[0] = set_slot(nw, "s50") + rd[0]
            P_ = parts if dma else [[], [], [], []]
            kstep(mfmas(1), rd, P_[0], wait=False)
            kstep(mfmas(0), R(1, 1), P_[1] + (ug or []))
            kstep(mfmas(1), R(2, 0), P_[2])
            tail = (P_[3] + [adv] if dma else []) + rot
            if dma: tail = tail + [["s_add_u32 s40, s40, 1", "s_cmp_lt_u32 s40, 7"]]
            kstep(mfmas(0), R(3, 1), tail, skip_last=True)
        A(f"L{tag}_loop:")
        section(True, nown)
        A(f"s_cbranch_scc1 L{tag}_loop")
        ug = []
        if unit:
            for j in range(4):
                ug.append([f"s_add_u32 m0, s76, {j*1024}", f"s_add_u32 s48, s100, {j*8*1280}", f"buffer_load_dwordx4 v62, s[96:99], s48 offen lds"])
            A("s_lshl_b32 s76, s32, 12")
            A("s_add_u32 s76, s76, s51")
        section(False, nown, ug=ug)
        section(False, 4 if unit else 0)
        section(False, 4 if unit else 0, final=True)
        A.inloop = False
        A("s_nop 15")
        if prof:
            A("s_memtime s[88:89]")
            A("s_waitcnt lgkmcnt(0)")
            A("s_sub_u32 s91, s88, s92")

    A(f"""
    s_cmp_eq_u32 s33, 0
    s_cbranch_scc1 Lk1_gate
    """)
    srd(A, 20, 6, WQKV_BYTES)
    A(f"""
    s_mov_b32 s36, 3840
    v_and_b32 v13, 15, v2
    v_lshlrev_b32 v15, 2, v14
    v_xor_b32 v13, v13, v15
    v_mul_u32_u24 v15, 3840, v14
    v_lshl_add_u32 v12, v13, 4, v15
    s_mul_i32 s38, s32, {16*3840}          ; w*16 k-rows
    s_lshl_b32 s41, s35, 8                 ; cgp*128*2
    s_add_u32 s59, s38, s41
    s_mul_i32 s57, s79, {64*3840}
    s_add_u32 s38, s59, s57
    s_lshl_b32 s43, s32, 12
    s_add_u32 s43, s43, {WQO}
    """)
    def p_dma():
        g = x_dma("s52")
        for j in range(4):
            g.append([f"s_add_u32 m0, s53, {j*1024}",
                      (f"s_add_u32 s48, s38, {j*4*3840}"),
                      f"buffer_load_dwordx4 v12, s[20:23], s48 offen lds"])
        g.append(adv_group(64*3840))
        return g
    def stage_issue(st, dmaf):
        A(f"s_add_u32 s52, s42, {st*SLOT}")
        A(f"s_add_u32 s53, s43, {st*SLOT}")
        for grp in dmaf():
            for l in grp: A(l)
    if prof: wl_stamp(A, 63, 0)
    stage_issue(0, p_dma)
    if prof: wl_stamp(A, 63, 1)
    A("s_barrier")
    if prof: wl_stamp(A, 63, 2)
    LATE_P = True
    A("s_lshr_b32 s41, s32, 1")
    A("s_lshl_b32 s41, s41, 13")
    xfrag_addr("s41")
    A(f"""
    v_bfe_u32 v14, v2, 2, 2                ; r
    v_lshl_add_u32 v15, v13, 3, v14
    v_lshlrev_b32 v15, 8, v15
    v_bfe_u32 v3, v2, 4, 1
    v_lshl_add_u32 v15, v3, 5, v15
    v_and_b32 v3, 3, v2
    v_lshl_add_u32 v15, v3, 3, v15
    v_add_u32 v15, {WQO}, v15
    s_and_b32 s41, s32, 1
    s_lshl_b32 s41, s41, 1
    v_xor_b32 v3, s41, v14                 ; ct ^ r
    v_lshl_add_u32 v60, v3, 6, v15
    v_xor_b32 v3, 1, v3
    v_lshl_add_u32 v61, v3, 6, v15
    """)
    if prof: wl_stamp(A, 63, 3)
    stage_issue(1, p_dma)
    if prof: wl_stamp(A, 63, 4)
    for i in range(64): A(f"v_mov_b32 v{64+i}, 0")
    def p_reads(ks, fs):
        b = 16 + 16*fs
        return [
            f"ds_read_b128 v[{b}:{b+3}], v{4+ks}",
            f"ds_read_b64_tr_b16 v[{b+8}:{b+9}], v8 offset:{ks*4096}",
            f"ds_read_b64_tr_b16 v[{b+10}:{b+11}], v8 offset:{ks*4096 + 1024}",
            f"ds_read_b128 v[{b+4}:{b+7}], v{4+ks} offset:4096",
            f"ds_read_b64_tr_b16 v[{b+12}:{b+13}], v9 offset:{ks*4096}",
            f"ds_read_b64_tr_b16 v[{b+14}:{b+15}], v9 offset:{ks*4096 + 1024}",
        ]
    def p_mfmas(normal):
        def f(fs):
            b = 16 + 16*fs
            out = []
            for rt in range(2):
                for ct in range(2):
                    d = 64 + 16*(2*rt + ct)
                    x = f"v[{b+4*rt}:{b+4*rt+3}]"; w = f"v[{b+8+4*ct}:{b+8+4*ct+3}]"
                    a_, b_ = (x, w) if normal else (w, x)
                    out.append(f"v_mfma_f32_32x32x16_bf16 v[{d}:{d+15}], {a_}, {b_}, v[{d}:{d+15}]")
            return out
        return f
    A(f"""
    s_lshr_b32 s41, s32, 1
    s_lshl_b32 s41, s41, 1
    s_lshl_b32 s44, s34, 2
    s_add_u32 s44, s44, s41                ; T (rt'=0)
    s_cmp_eq_u32 s33, 3
    s_cbranch_scc1 Lk1_mainV
    s_cmp_eq_u32 s33, 1
    s_cbranch_scc0 Lk1_isK
    s_mul_i32 s68, s44, 1280
    s_add_u32 s68, s68, {QF_OFF}
    s_mov_b32 s49, {HSQ}
    s_mov_b32 s70, {f32bits(QSCALE):#x}
    s_branch Lk1_qk
Lk1_isK:
    s_lshr_b32 s68, s44, 3
    s_mul_i32 s68, s68, {CH}
    s_and_b32 s41, s44, 7
    s_mul_i32 s41, s41, 1280
    s_add_u32 s68, s68, s41
    s_add_u32 s68, s68, {KV_OFF}
    s_mov_b32 s49, {HSK}
    s_mov_b32 s70, 1.0
Lk1_qk:
    s_mov_b32 s71, s70
    s_and_b32 s41, s32, 1
    s_lshl_b32 s41, s41, 4
    s_lshl_b32 s55, s46, 5
    s_add_u32 s55, s55, s41                ; G0 base
    v_lshrrev_b32 v13, 5, v2               ; hf
    v_and_b32 v3, 31, v2                   ; token
    v_lshlrev_b32 v14, 4, v3
    v_lshlrev_b32 v15, 3, v3
    v_add_u32 v15, 1024, v15
    """)
    for ct in range(2):
        for a in range(4):
            d = 48 + 4*ct + a
            A(f"""
            v_add_u32 v16, {8*ct + 2*a}, v13
            v_add_u32 v16, s55, v16
            v_mul_u32_u24 v17, 205, v16
            v_lshrrev_b32 v17, 10, v17             ; h = G/5
            v_mul_u32_u24 v18, 5, v17
            v_sub_u32 v18, v16, v18                ; j
            v_lshrrev_b32 v19, 1, v18
            v_lshlrev_b32 v19, 9, v19
            v_and_b32 v20, 1, v18
            v_lshl_add_u32 v19, v20, 3, v19
            v_add_u32 v19, v19, v14
            v_cmp_eq_u32 vcc, 4, v18
            v_mul_lo_u32 v17, v17, s49
            s_nop 0
            v_cndmask_b32 v19, v19, v15, vcc
            v_add_u32 v{d}, v19, v17
            """)
    loop("k1T", 6, p_reads, p_mfmas(False), p_dma, 2)
    for ct in range(2):
        for a in range(4):
            for rt in range(2):
                r = 64 + 16*(2*rt + ct) + 4*a
                t = 16 + 2*((2*(4*ct + a) + rt) & 7)
                A(f"""
                v_pk_mul_f32 v[{r}:{r+1}], v[{r}:{r+1}], s[70:71]
                v_pk_mul_f32 v[{r+2}:{r+3}], v[{r+2}:{r+3}], s[70:71]
                v_cvt_pk_bf16_f32 v{t}, v{r}, v{r+1}
                v_cvt_pk_bf16_f32 v{t+1}, v{r+2}, v{r+3}
                buffer_store_dwordx2 v[{t}:{t+1}], v{48 + 4*ct + a}, s[24:27], s68 offen offset:{rt*1280}{SCQ}
                """)
    A("s_branch Lk1_end")
    A("Lk1_mainV:")
    A(f"""
    s_lshr_b32 s68, s44, 3
    s_mul_i32 s68, s68, {CH}
    s_and_b32 s41, s44, 7
    s_mul_i32 s41, s41, {VT}
    s_add_u32 s68, s68, s41
    s_add_u32 s68, s68, {KV_OFF + VPART}
    s_and_b32 s41, s32, 1
    s_lshl_b32 s41, s41, 6
    s_lshl_b32 s55, s46, 7
    s_add_u32 s55, s55, s41
    v_and_b32 v3, 31, v2
    v_lshrrev_b32 v13, 5, v2               ; hf
    v_mul_u32_u24 v14, {VH}, v13
    s_mov_b32 s49, {HSK}
    """)
    for ct in range(2):
        A(f"""
        v_add_u32 v16, {32*ct}, v3
        v_add_u32 v16, s55, v16                ; c
        v_mul_u32_u24 v17, 3277, v16
        v_lshrrev_b32 v17, 16, v17             ; h
        v_mul_u32_u24 v18, 20, v17
        v_sub_u32 v18, v16, v18                ; dh
        v_mul_lo_u32 v17, v17, s49
        v_cmp_eq_u32 s[{72+2*ct}:{73+2*ct}], 0, v18
        """)
        vslot(A, 18, 20, 21)
        A(f"""
        v_lshl_add_u32 v19, v20, 4, v17
        v_add_u32 v{48+ct}, v19, v14
        """)
    loop("k1N", 6, p_reads, p_mfmas(True), p_dma, 2)
    A(f"""
    v_mov_b32 v28, 0x3f803f80
    v_mov_b32 v29, 0x3f803f80
    v_mov_b32 v30, 0x3f803f80
    v_mov_b32 v31, 0x3f803f80
    v_mov_b32 v52, 0
    v_mov_b32 v53, 0
    v_mov_b32 v54, 0
    v_mov_b32 v55, 0
    """)
    for ct in range(2):
        for rt in range(2):
            for j in range(2):
                r = 64 + 16*(2*rt + ct) + 8*j
                t = 32 + 4*(2*rt + j)
                for m in range(4):
                    A(f"v_cvt_pk_bf16_f32 v{t+m}, v{r+2*m}, v{r+2*m+1}")
                A(f"buffer_store_dwordx4 v[{t}:{t+3}], v{48+ct}, s[24:27], s68 offen offset:{rt*VT + j*2*VH}{SC}")
        A(f"""
        s_mov_b64 exec, s[{72+2*ct}:{73+2*ct}]
        s_cbranch_execz Lk1_noones{ct}
        """)
        for rt in range(2):
            for j in range(2):
                A(f"buffer_store_dwordx4 v[28:31], v{48+ct}, s[24:27], s68 offen offset:{128 + rt*VT + j*2*VH}")
                A(f"buffer_store_dwordx4 v[52:55], v{48+ct}, s[24:27], s68 offen offset:{240 + rt*VT + j*2*VH}")
        A(f"""
Lk1_noones{ct}:
        s_mov_b64 exec, -1
        """)
    A("s_branch Lk1_end")

    A("Lk1_gate:")
    srd(A, 28, 12, GW_BYTES)
    A(f"""
    s_mul_i32 s41, s32, 320
    s_add_u32 m0, s41, {GATE_LDS}
    v_lshlrev_b32 v12, 4, v2
    v_cmp_gt_u32 vcc, 20, v2
    s_and_saveexec_b64 s[76:77], vcc
    buffer_load_dwordx4 v12, s[28:31], s41 offen lds
    s_mov_b64 exec, s[76:77]
    """)
    def g_dma():
        g = x_dma("s52")
        g.append(adv_group(0))
        return g
    for st in range(2):
        A(f"s_add_u32 s52, s42, {st*SLOT}")
        for grp in g_dma():
            for l in grp: A(l)
        if st == 0: A("s_barrier")
    A("s_lshl_b32 s41, s32, 12")
    xfrag_addr("s41")
    A(f"""
    v_lshlrev_b32 v9, 4, v13               ; hf*16
    v_add_u32 v62, {GATE_LDS}, v9
    s_lshl_b32 s57, s69, 7
    v_add_u32 v9, s57, v62
    v_mov_b32 v60, 0
    s_mov_b32 s43, 0
    """)
    for i in range(16): A(f"v_mov_b32 v{64+i}, 0")
    def g_reads(ks, fs):
        b = 16 + 16*fs
        out = [f"ds_read_b128 v[{b}:{b+3}], v{4+ks}", f"ds_read_b128 v[{b+4}:{b+7}], v9 offset:{ks*32}"]
        if ks == 3:
            if ROT == 2:
                out += ["s_add_u32 s69, s69, 1", "s_cmp_eq_u32 s69, 10", "s_cselect_b32 s69, 0, s69", "s_lshl_b32 s57, s69, 7", "v_add_u32 v9, s57, v62"]
            else:
                out += ["s_add_u32 s69, s69, 1", "s_add_u32 s57, s69, s78", "s_sub_u32 s57, s57, 2", "s_and_b32 s57, s57, 7", "s_add_u32 s57, s57, 2",
                        "s_cmp_lt_u32 s69, 2", "s_cselect_b32 s57, s69, s57", "s_lshl_b32 s57, s57, 7", "v_add_u32 v9, s57, v62"]
        return out
    def g_mfmas(fs):
        b = 16 + 16*fs
        return [f"v_mfma_f32_32x32x16_bf16 v[64:79], v[{b+4}:{b+7}], v[{b}:{b+3}], v[64:79]"]
    A(f"s_waitcnt vmcnt(2)")
    A("s_barrier")
    A(f"s_add_u32 s52, s42, {2*SLOT}")
    for grp in g_dma():
        for l in grp: A(l)
    if prof:
        A("s_mov_b32 s90, 0")
    for l in set_slot(0, "0"): A(l)
    for l in g_reads(0, 0): A(l)
    A("s_mov_b32 s40, 0")
    A(f"s_mov_b32 s50, {SLOT}")
    A("s_mov_b32 s51, 0")
    A("Lk1g_loop:")
    for ks in range(3):
        fs = ks & 1
        for l in g_reads(ks + 1, fs ^ 1): A(l)
        A("s_waitcnt lgkmcnt(2)")
        for l in g_mfmas(fs): A(l)
    A(f"""
    s_cmp_lt_u32 s40, 8
    s_cbranch_scc1 Lk1g_a
    s_waitcnt vmcnt(0)
Lk1g_a:
    s_waitcnt vmcnt(2) lgkmcnt(0)
    s_barrier
    """)
    for l in set_slot(0, "s50"): A(l)
    for l in g_mfmas(1): A(l)
    for l in g_reads(0, 0): A(l)
    A(f"""
    s_cmp_lt_u32 s40, 7
    s_cbranch_scc0 Lk1g_b
    s_add_u32 s52, s51, s42
    """)
    for grp in g_dma():
        for l in grp: A(l)
    A(f"""
Lk1g_b:
    s_mov_b32 s51, s50
    s_add_u32 s50, s50, {SLOT}
    s_cmp_ge_u32 s50, {3*SLOT}
    s_cselect_b32 s50, 0, s50
    s_add_u32 s40, s40, 1
    s_cmp_lt_u32 s40, 10
    s_cbranch_scc1 Lk1g_loop
    s_waitcnt lgkmcnt(0)
    s_nop 15
    v_mul_f32 v16, {f32bits(-LOG2E):#x}, v64
    v_exp_f32 v16, v16
    s_nop 0
    v_add_f32 v16, 1.0, v16
    v_rcp_f32 v16, v16
    s_lshl_b32 s44, s34, 2
    s_add_u32 s44, s44, s32                ; T
    s_lshl_b32 s44, s44, 7                 ; *32*4 bytes
    s_add_u32 s44, s44, {G_OFF}
    v_lshlrev_b32 v17, 2, v2
    v_cmp_gt_u32 vcc, 32, v2
    s_and_saveexec_b64 s[76:77], vcc
    buffer_store_dword v16, v17, s[24:27], s44 offen
    s_mov_b64 exec, s[76:77]
    s_branch Lk1_end
    """)

    A("Lk1_R:")
    if prof:
        A("v_writelane_b32 v61, s87, 8")
        wl_stamp(A, 61, 9)
    srd(A, 20, 8, W1_BYTES)
    srd(A, 28, 10, B1_BYTES)
    A(f"""
    s_sub_u32 s47, s32, 4
    s_mul_i32 s41, s35, 192
    v_lshrrev_b32 v3, 5, v2
    v_lshlrev_b32 v3, 4, v3
    """)
    if prof: wl_stamp(A, 61, 12)
    A(f"""
    buffer_load_dwordx4 v[112:115], v3, s[28:31], s41 offen
    """)
    if prof: wl_stamp(A, 61, 13)
    A(f"""
    buffer_load_dwordx4 v[116:119], v3, s[28:31], s41 offen offset:32
    buffer_load_dwordx4 v[120:123], v3, s[28:31], s41 offen offset:64
    buffer_load_dwordx4 v[124:127], v3, s[28:31], s41 offen offset:96
    buffer_load_dwordx4 v[48:51], v3, s[28:31], s41 offen offset:128
    buffer_load_dwordx4 v[52:55], v3, s[28:31], s41 offen offset:160
    """)
    if prof: wl_stamp(A, 61, 14)
    for j, reg in enumerate((12, 62, 63)):
        A(f"""
        s_mul_i32 s41, s47, 192
        s_add_u32 s41, s41, {64*j}
        v_add_u32 v13, s41, v2                 ; t
        v_mul_u32_u24 v14, 5462, v13
        v_lshrrev_b32 v14, 16, v14             ; t/12
        v_mul_u32_u24 v15, 12, v14
        v_sub_u32 v15, v13, v15
        v_mul_u32_u24 v14, 3072, v14
        v_lshl_add_u32 v{reg}, v15, 4, v14
        """)
    A(f"""
    s_mul_i32 s59, s35, 192
    s_mul_i32 s57, s79, {64*3072}
    s_add_u32 s38, s59, s57
    s_mul_i32 s43, s47, 3072
    s_add_u32 s43, s43, {W1O}
    """)
    def r_dma():
        g = x_dma("s52")
        for j, reg in enumerate((12, 62, 63)):
            g.append([f"s_add_u32 m0, s53, {j*1024}", "s_nop 0",
                      f"buffer_load_dwordx4 v{reg}, s[20:23], s38 offen lds"])
        g.append(adv_group(64*3072))
        return g
    def r_stage(st):
        A(f"s_add_u32 s52, s42, {st*SLOT}")
        A(f"s_add_u32 s53, s43, {st*SLOT}")
        for grp in r_dma():
            for l in grp: A(l)
    if prof: wl_stamp(A, 61, 0)
    r_stage(0)
    if prof: wl_stamp(A, 61, 1)
    A("s_barrier")
    A("s_lshl_b32 s41, s47, 12")
    xfrag_addr("s41")
    A(f"""
    v_bfe_u32 v14, v2, 2, 2
    v_lshl_add_u32 v15, v13, 3, v14
    v_mul_u32_u24 v15, 192, v15
    v_bfe_u32 v3, v2, 4, 1
    v_lshl_add_u32 v15, v3, 5, v15
    v_and_b32 v3, 3, v2
    v_lshrrev_b32 v1, 1, v3
    v_and_b32 v3, 1, v3
    v_lshl_or_b32 v3, v3, 1, v1
    v_lshl_add_u32 v15, v3, 3, v15
    v_add_u32 v60, {W1O}, v15
    """)
    if prof: wl_stamp(A, 61, 2)
    r_stage(1)
    if prof: wl_stamp(A, 61, 3)
    A("s_waitcnt vmcnt(10)")
    if prof:
        wl_stamp(A, 61, 4)
    bsrc = [112, 116, 120, 124, 48, 52]
    for ct in range(3):
        for half in range(2):
            for m in range(4):
                src = bsrc[2*ct + half] + m
                d = 64 + 16*ct + 8*half + 2*m
                A(f"v_lshlrev_b32 v{d}, 16, v{src}")
                A(f"v_and_b32 v{d+1}, 0xffff0000, v{src}")
    def r_reads(ks, fs):
        b = 16 + 16*fs
        out = [f"ds_read_b128 v[{b}:{b+3}], v{4+ks}"]
        for ct in range(3):
            out.append(f"ds_read_b64_tr_b16 v[{b+4+4*ct}:{b+5+4*ct}], v8 offset:{ks*16*192 + ct*64}")
            out.append(f"ds_read_b64_tr_b16 v[{b+6+4*ct}:{b+7+4*ct}], v8 offset:{ks*16*192 + 4*192 + ct*64}")
        return out
    def r_mfmas(fs):
        b = 16 + 16*fs
        return [f"v_mfma_f32_32x32x16_bf16 v[{64+16*ct}:{64+16*ct+15}], v[{b+4+4*ct}:{b+7+4*ct}], v[{b}:{b+3}], v[{64+16*ct}:{64+16*ct+15}]" for ct in range(3)]
    loop("k1R", 5, r_reads, r_mfmas, r_dma, 1)
    A("s_setprio 2")
    A(f"""
    s_lshl_b32 s44, s34, 2
    s_add_u32 s44, s44, s47                ; T
    s_mul_i32 s45, s44, {2*48*1024}
    s_mul_i32 s41, s35, {3*1024}
    s_add_u32 s45, s45, s41
    s_add_u32 s45, s45, {ACT_OFF}
    v_bfe_u32 v13, v2, 4, 1                ; token>>4
    v_mul_u32_u24 v13, {48*1024}, v13
    v_lshrrev_b32 v14, 5, v2               ; hf
    v_lshl_add_u32 v13, v14, 8, v13
    v_and_b32 v14, 15, v2
    v_lshl_add_u32 v13, v14, 4, v13
    s_mov_b32 s54, {f32bits(LOG2E):#x}
    s_mov_b32 s55, s54
    v_mov_b32 v2, 2.0
    v_mov_b32 v3, 2.0
    """)
    def mish8(r, t0):
        for p in range(4):
            A(f"v_pk_mul_f32 v[{t0+2*p}:{t0+2*p+1}], v[{r+2*p}:{r+2*p+1}], s[54:55]")
        for i in range(8):
            A(f"v_exp_f32 v{t0+i}, v{t0+i}")
        for p in range(4):
            A(f"v_pk_add_f32 v[{t0+8+2*p}:{t0+8+2*p+1}], v[{t0+2*p}:{t0+2*p+1}], v[2:3]")
        for p in range(4):
            A(f"v_pk_fma_f32 v[{t0+2*p}:{t0+2*p+1}], v[{t0+2*p}:{t0+2*p+1}], v[{t0+8+2*p}:{t0+8+2*p+1}], v[2:3]")
        for i in range(8):
            A(f"v_rcp_f32 v{t0+i}, v{t0+i}")
        A("s_nop 0")
        for p in range(4):
            A(f"v_pk_fma_f32 v[{t0+2*p}:{t0+2*p+1}], v[{t0+2*p}:{t0+2*p+1}], -2.0, 1.0 op_sel_hi:[1,0,0]")
        for p in range(4):
            A(f"v_pk_mul_f32 v[{r+2*p}:{r+2*p+1}], v[{r+2*p}:{r+2*p+1}], v[{t0+2*p}:{t0+2*p+1}]")
    k = 0
    for ct in range(3):
        for j in range(2):
            r = 64 + 16*ct + 8*j
            mish8(r, 16)
            t = 32 + 4*(k & 3); k += 1
            for m in range(4):
                A(f"v_cvt_pk_bf16_f32 v{t+m}, v{r+2*m}, v{r+2*m+1}")
            so, o = "s45", ct*1024 + j*512
            A(f"buffer_store_dwordx4 v[{t}:{t+3}], v13, s[24:27], {so} offen offset:{o}{SC}")
    A("s_branch Lk1_end")
    A("Lk1_H:")
    if True:
        A(f"""
        s_and_b32 s41, s2, 7
        s_and_b32 s43, s41, 1                  ; rh
        s_lshr_b32 s44, s41, 1                 ; cq
        s_lshr_b32 s45, s2, 3                  ; i
        v_mov_b32 v13, 0x7ffffff0
        s_lshl_b32 s46, s43, 10
        s_lshl_b32 s47, s45, 5
        s_add_u32 s46, s46, s47
        v_add_u32 v3, s46, v2
        v_mul_u32_u24 v3, 1280, v3
        v_cmp_gt_u32 vcc, 32, v2
        s_nop 1
        v_cndmask_b32 v4, v13, v3, vcc
        v_lshrrev_b32 v3, 3, v2
        s_lshl_b32 s47, s45, 1
        v_add_u32 v3, s47, v3
        v_mul_u32_u24 v3, 3840, v3
        v_and_b32 v5, 7, v2
        v_lshlrev_b32 v5, 7, v5
        s_lshl_b32 s48, s44, 10
        v_add_u32 v5, s48, v5
        v_cmp_gt_u32 vcc, 3840, v5
        v_add_u32 v5, v5, v3
        v_cmp_gt_u32 s[50:51], 16, v2
        s_and_b64 vcc, vcc, s[50:51]
        s_nop 1
        v_cndmask_b32 v5, v13, v5, vcc
        ; W1: lanes<12: (2i + lane/6)*3072 + cq*768 + (lane%6)*128
        v_cmp_lt_u32 vcc, 5, v2
        v_mov_b32 v6, 0
        v_mov_b32 v7, 1
        v_cndmask_b32 v3, v6, v7, vcc
        v_mul_u32_u24 v6, 6, v3
        v_sub_u32 v6, v2, v6
        v_lshlrev_b32 v6, 7, v6
        v_add_u32 v3, s47, v3
        v_mul_u32_u24 v3, 3072, v3
        v_add_u32 v6, v6, v3
        s_mul_i32 s48, s44, 768
        v_add_u32 v6, s48, v6
        v_cmp_gt_u32 vcc, 12, v2
        s_nop 1
        v_cndmask_b32 v6, v13, v6, vcc
        s_barrier
        """)
        def PF(st):
            A(f"s_mov_b32 s46, {st*128}")
            A(f"buffer_load_dword v16, v4, s[16:19], s46 offen")
            A(f"s_mov_b32 s47, {st*64*3840}")
            A(f"buffer_load_dword v17, v5, s[60:63], s47 offen")
            A(f"s_mov_b32 s48, {st*64*3072}")
            A(f"buffer_load_dword v18, v6, s[64:67], s48 offen")
        def unit_start(u):
            A(f"""
            s_add_u32 s41, s2, {256*u}
            s_mul_i32 s45, s41, 6554
            s_lshr_b32 s45, s45, 16                ; ksg
            s_mul_i32 s47, s45, 10
            s_sub_u32 s47, s41, s47                ; blk
            s_cmp_lt_u32 s45, 48
            s_cselect_b32 s96, s80, s82
            s_cselect_b32 s97, s81, s83
            s_mov_b32 s98, {W2_BYTES}
            s_cselect_b32 s98, s98, {WO_BYTES}
            s_cselect_b32 s100, 0, 48
            s_and_b32 s97, s97, 0xffff
            s_mov_b32 s99, 0x00020000
            s_sub_u32 s100, s45, s100
            s_mul_i32 s100, s100, {32*1280}
            s_lshl_b32 s101, s47, 7
            s_add_u32 s100, s100, s101
            s_lshl_b32 s77, s47, 2                 ; c0
            s_mul_i32 s101, s45, 5120
            s_cmp_lt_u32 s41, 680
            s_cselect_b32 s76, 1, 0
            s_cbranch_scc0 Lk1_us{u}
            """)
            for j in range(4):
                A(f"s_mov_b32 m0, {UNIT_LDS + j*1024}")
                A(f"s_add_u32 s48, s100, {j*8*1280}")
                A(f"buffer_load_dwordx4 v8, s[96:99], s48 offen lds")
            A(f"Lk1_us{u}:")
        def unit_finish(u):
            A(f"""
            s_cmp_eq_u32 s76, 1
            s_cbranch_scc0 Lk1_uf{u}
            s_waitcnt vmcnt(0)
            """)
            for cc in range(4):
                A(f"ds_read_b64_tr_b16 v[{20+4*cc}:{21+4*cc}], v9 offset:{cc*32}")
                A(f"ds_read_b64_tr_b16 v[{22+4*cc}:{23+4*cc}], v9 offset:{cc*32 + 512}")
            A("s_waitcnt lgkmcnt(0)")
            for cc in range(4):
                A(f"""
                s_add_u32 s41, s77, {cc}               ; c
                s_mul_i32 s45, s41, 205
                s_lshr_b32 s45, s45, 10                ; cg8 = c/5
                s_mul_i32 s47, s45, 5
                s_sub_u32 s47, s41, s47                ; ct
                s_mul_i32 s45, s45, {WF_CG}
                s_lshl_b32 s47, s47, 10
                s_add_u32 s45, s45, s47
                s_add_u32 s45, s45, s101
                s_add_u32 s45, s45, {WF_OFF}
                buffer_store_dwordx4 v[{20+4*cc}:{23+4*cc}], v10, s[24:27], s45 offen{SCW}
                """)
            A(f"Lk1_uf{u}:")
        A(f"""
        v_lshrrev_b32 v8, 3, v2
        v_mul_u32_u24 v8, 1280, v8
        v_and_b32 v3, 7, v2
        v_lshl_add_u32 v8, v3, 4, v8
        v_lshrrev_b32 v9, 4, v2
        v_bfe_u32 v3, v2, 2, 2
        v_lshl_add_u32 v9, v9, 3, v3
        v_lshlrev_b32 v9, 7, v9
        v_and_b32 v3, 3, v2
        v_lshl_add_u32 v9, v3, 3, v9
        v_add_u32 v9, {UNIT_LDS}, v9
        v_lshlrev_b32 v10, 4, v2
        """)
        if pf == 1:
            PF(2); PF(3)
        A("s_barrier")
        for k in range(6):
            if pf == 1: PF(4 + k)
            A("s_barrier")
        unit_start(0)
        A("s_barrier")
        unit_finish(0); unit_start(1)
        A("s_barrier")
        unit_finish(1); unit_start(2)
        A("s_barrier")
        unit_finish(2)
        A("s_barrier")
    A("s_endpgm")
    A("Lk1_end:")
    if prof:
        A("s_memtime s[88:89]")
        A("s_waitcnt lgkmcnt(0)")
        A("s_sub_u32 s88, s88, s92")
        A("s_cmp_ge_u32 s32, 4")
        A("s_cbranch_scc1 Lk1_dbgR")
        A("v_mov_b32 v61, v63")
        A("Lk1_dbgR:")
        A("v_writelane_b32 v61, s88, 11")
        A("v_writelane_b32 v61, s91, 10")
        A(f"""
        s_lshl_b32 s97, s2, 4
        s_add_u32 s97, s97, s32
        s_lshl_b32 s97, s97, 6
        s_add_u32 s97, s97, {DBG_OFF + 0x100000}
        v_and_b32 v4, 63, v0
        v_lshlrev_b32 v4, 2, v4
        v_cmp_gt_u32 vcc, 16, v0
        v_and_b32 v5, 63, v0
        v_cmp_gt_u32 vcc, 16, v5
        s_and_saveexec_b64 s[56:57], vcc
        buffer_store_dword v61, v4, s[24:27], s97 offen
        s_mov_b64 exec, s[56:57]
        """)
        prof_end(A, 0, 24, 32, tmpv=(4, 5, 6, 7, 8), extra="s90")
    if tl: tl2_record(A, 0, 24, 32)
    A("Lk1_exit:")
    A("s_endpgm")
    return A.text(), kdesc(NAME, 128), f"; @launch kernel={NAME} grid=(256,1,1) block=(576,1,1) lds={LDS_BYTES}"
```

```python
from asm import *
from common import *
from k2_shadow import gen_shadow

NAME = "k2_kernel"
SLOT = 24576
SH_BASE = 3 * SLOT
FLAG = SH_BASE + 4 * 20480
LDS_BYTES = FLAG + 128

X_ = [16, 48]
P_ = 80
O_ = 88
C_ = 104
QM = 120
QT = 124
KF = [126, 130]
KT = 134
V0 = 136
V1 = 140
FL = 144

def mf(d, a, b, c):
    cs = "0" if c is None else f"v[{c}:{c+15}]"
    return f"v_mfma_f32_32x32x16_bf16 v[{d}:{d+15}], v[{a}:{a+3}], v[{b}:{b+3}], {cs}"
def mf2b(d, a, b, c):
    cs = "0" if c is None else f"v[{c}:{c+31}]"
    return f"v_mfma_f32_32x32x4_2b_bf16 v[{d}:{d+31}], v[{a}:{a+1}], v[{b}:{b+1}], {cs}"

def vslot(A, row, dst, t1):
    A(f"""
    v_mov_b32 v{dst}, v{row}
    v_add_u32 v{t1}, 12, v{row}
    v_cmp_lt_u32 vcc, 3, v{row}
    s_nop 1
    v_cndmask_b32 v{dst}, v{dst}, v{t1}, vcc
    v_subrev_u32 v{t1}, 1, v{row}
    v_cmp_lt_u32 vcc, 9, v{row}
    s_nop 1
    v_cndmask_b32 v{dst}, v{dst}, v{t1}, vcc
    v_subrev_u32 v{t1}, 8, v{row}
    v_cmp_lt_u32 vcc, 11, v{row}
    s_nop 1
    v_cndmask_b32 v{dst}, v{dst}, v{t1}, vcc
    v_subrev_u32 v{t1}, 5, v{row}
    v_cmp_lt_u32 vcc, 15, v{row}
    s_nop 1
    v_cndmask_b32 v{dst}, v{dst}, v{t1}, vcc
    v_cmp_lt_u32 vcc, 19, v{row}
    s_nop 1
    v_cndmask_b32 v{dst}, v{dst}, 8, vcc
    v_cmp_lt_u32 vcc, 20, v{row}
    s_nop 1
    v_cndmask_b32 v{dst}, v{dst}, 15, vcc
    """)

def gen_k2(prof=False, exp_mode=0, shadow=True, shprio=0, pa=1, pb=2, tl=0, nofb=0, lstamp=0, desc=3, na=10):
    A = Asm()
    A(khead(NAME))
    A(f"""
    s_cmp_ge_u32 s2, 256
    s_cbranch_scc1 Lk2_end
    """)
    if prof: prof_start(A)
    if tl: tl_start(A, 1)
    A(f"""
    s_load_dwordx2 s[4:5], s[0:1], 80
    s_load_dwordx2 s[6:7], s[0:1], 48      ; w2
    v_lshrrev_b32 v9, 6, v0
    v_and_b32 v1, 63, v0                   ; lane
    s_and_b32 s20, s2, 7
    v_readfirstlane_b32 s12, v9            ; wave
    s_lshr_b32 s21, s2, 3
    s_and_b32 s22, s21, 3
    s_lshl_b32 s13, s20, 2
    s_add_u32 s13, s13, s22                ; h
    s_lshr_b32 s14, s21, 2                 ; qb
    s_lshl_b32 s15, s14, 3
    s_add_u32 s15, s15, s12                ; T
    s_cmp_ge_u32 s12, 8
    s_cbranch_scc1 Lk2_shadow
    s_mul_i32 s16, s13, {HSK}
    s_add_u32 s16, s16, {KV_OFF}
    s_mul_i32 s23, s13, {HSQ}
    s_mul_i32 s24, s15, 1280
    s_add_u32 s23, s23, s24
    s_add_u32 s23, s23, {QF_OFF}
    v_lshlrev_b32 v8, 4, v1                ; lane*16
    v_and_b32 v9, 31, v1
    v_lshrrev_b32 v10, 5, v1               ; hf
    v_lshlrev_b32 v11, 3, v9
    v_add_u32 v11, 1024, v11               ; 1024 + token*8
    s_mul_i32 s25, s12, 3072
    s_add_u32 s17, s16, s25
    s_waitcnt lgkmcnt(0)
    """)
    srd_ws(A, 8, 4, WS_RECORDS)
    def dma_groups(slot_sgpr, slot_imm=0):
        g = []
        for j in range(3):
            m0 = f"s_add_u32 m0, {slot_sgpr}, {slot_imm + j*1024}"
            g.append([m0, f"s_add_u32 s26, s17, {j*1024}", f"buffer_load_dwordx4 v8, s[8:11], s26 offen lds"])
        g.append([f"s_add_u32 s17, s17, {CH}"])
        return g
    for grp in dma_groups("s25", 0):
        for l in grp: A(l)
    A(f"""
    buffer_load_dwordx4 v[{QM}:{QM+3}], v8, s[8:11], s23 offen
    buffer_load_dwordx2 v[{QT}:{QT+1}], v11, s[8:11], s23 offen
    """)
    for grp in dma_groups("s25", SLOT):
        for l in grp: A(l)
    A(f"""
    v_cmp_gt_u32 s[28:29], 32, v1          ; lanes < 32
    v_mov_b32 v5, v8
    v_mul_u32_u24 v6, 1280, v10
    v_add_u32 v6, v6, v11
    """)
    vslot(A, 9, 14, 15)
    A(f"""
    v_mul_u32_u24 v7, {VH}, v10
    v_lshl_add_u32 v7, v14, 4, v7
    v_add_u32 v7, {VPART}, v7
    v_mov_b32 v2, v5
    v_mov_b32 v3, v6
    v_mov_b32 v4, v7
    v_lshlrev_b32 v12, 2, v1
    v_add_u32 v12, {FLAG}, v12
    v_mov_b32 v13, 0
    s_cmp_eq_u32 s12, 0
    s_cbranch_scc0 Lk2_noclr
    s_mov_b64 exec, s[28:29]
    ds_write_b32 v12, v13
    s_mov_b64 exec, -1
Lk2_noclr:
    v_and_b32 v12, 7, v1
    v_lshlrev_b32 v12, 2, v12
    v_add_u32 v12, {FLAG}, v12             ; v12: full[lane&7] ; +32: free[lane&7]
    s_lshl_b32 s33, s12, 2
    s_add_u32 s33, s33, {FLAG}
    v_mov_b32 v13, s33                     ; v13: own full word ; +32 own free word
    """)
    for i in range(4): A(f"v_mov_b32 v{V1+i}, 0")
    for i in range(4): A(f"v_mov_b32 v{P_+4+i}, 0")
    for i in range(16): A(f"v_mov_b32 v{O_+i}, 0")
    X0 = X_[0]
    A(f"""
    s_waitcnt vmcnt(3) lgkmcnt(0)
    s_barrier
    ds_read_b128 v[{KF[0]}:{KF[0]+3}], v2
    ds_read_b128 v[{KF[1]}:{KF[1]+3}], v2 offset:1280
    ds_read_b64 v[{KT}:{KT+1}], v3
    ds_read_b128 v[{V0}:{V0+3}], v4
    s_waitcnt lgkmcnt(0)
    {mf(X0, KF[0], QM, None)}
    {mf(X0+16, KF[1], QM, None)}
    s_nop 11
    {mf2b(X0, KT, QT, X0)}
    s_nop 15
    s_nop 7
    """)
    A(f"v_max3_f32 v9, v{X0}, v{X0+1}, v{X0+2}")
    for i in range(3, 31, 2):
        A(f"v_max3_f32 v9, v9, v{X0+i}, v{X0+i+1}")
    A(f"v_max_f32 v9, v9, v{X0+31}")
    A(f"""
    v_mov_b32 v10, v9
    s_nop 1
    v_permlane32_swap_b32 v9, v10
    s_nop 1
    v_max_f32 v9, v9, v10
    """)
    for i in range(16): A(f"v_sub_f32 v{C_+i}, 0, v9")
    for i in range(32): A(f"v_sub_f32 v{X0+i}, v{X0+i}, v9")
    A(f"""
    ds_read_b128 v[{KF[0]}:{KF[0]+3}], v2 offset:{2*1280}
    ds_read_b128 v[{KF[1]}:{KF[1]+3}], v2 offset:{3*1280}
    ds_read_b64 v[{KT}:{KT+1}], v3 offset:{2*1280}
    s_mov_b32 s18, 0
    s_mov_b32 s19, {SLOT}
    s_mov_b32 s27, {2*SLOT}
    s_setprio {pa}
    s_cmp_ge_u32 s12, 4
    s_cbranch_scc0 Lk2_noprio
    s_setprio {pb}
Lk2_noprio:
    """)
    if prof:
        A("s_memtime s[90:91]")
        A("s_waitcnt lgkmcnt(0)")
        A("s_sub_u32 s90, s90, s92")
    A0 = A
    class F:
        def __call__(self, l):
            for x in l.strip("\n").split("\n"):
                ls = x.strip()
                if exp_mode == 2 and ls.startswith("v_mfma"): continue
                if exp_mode == 3 and (ls.startswith("v_exp") or ls.startswith("v_cvt")): continue
                if exp_mode == 4 and (ls.startswith("ds_read_b128") or ls.startswith("ds_read_b64")): continue
                if exp_mode == 5 and ls.startswith("v_mfma_f32_32x32x4"): continue
                if exp_mode == 6 and (ls.startswith("ds_read_b128") or ls.startswith("ds_read_b64") or ls.startswith("v_mfma")): continue
                if exp_mode == 7 and ls.startswith("buffer_load"): continue
                A0(x)
        def label(self, b): return A0.label(b)
    if lstamp: wl_stamp(A, 150, 0)
    A("Lk2_loop:")
    A = F()
    def check(reg, need_sgpr, tag):
        lab = A.label(tag)
        off = 32 if tag == "free" else 0
        A(f"""
        v_cmp_le_u32 vcc, {need_sgpr}, v{reg}
        s_cmp_eq_u64 vcc, exec
        s_cbranch_scc1 {lab}
        s_mov_b32 s34, 0x40000
        {lab}_s:
        s_sub_u32 s34, s34, 1
        s_cbranch_scc1 {lab}
        s_sleep 1
        ds_read_b32 v{reg}, v12 offset:{off}
        s_waitcnt lgkmcnt(0)
        v_cmp_le_u32 vcc, {need_sgpr}, v{reg}
        s_cmp_eq_u64 vcc, exec
        s_cbranch_scc0 {lab}_s
        {lab}:
        """)
    def tile(sc, first, pr, t):
        sn = X_[(pr + 1) & 1]
        kt = (2*pr + 4) & 7
        E = lambda i: f"v_exp_f32 v{sc+i}, v{sc+i}"
        C = lambda p, a: f"v_cvt_pk_bf16_f32 v{P_+p}, v{sc+a}, v{sc+a+1}"
        pre = []
        if desc == 1 and t % 2 == 0: A(f"s_setprio {3 - t // 2}")
        if desc == 2 and t % 2 == 0: A(f"s_setprio {max(1, 3 - t // 2) if t < 6 else 1}")
        if desc == 3: A(f"s_setprio {3 - (t % 4)}")
        if desc in (4, 5): A(f"s_setprio {3 - 2*(t % 2)}")
        if desc == 6: A(f"s_setprio {[3,3,2,2,1,1,0,0][t]}") if t % 2 == 0 else None
        if desc == 7: A(f"s_setprio {[3,2,1,0,0,1,2,3][t]}")
        if desc == 8: A(f"s_setprio {[3,2,2,1,1,0,0,0][t]}")
        A("s_waitcnt lgkmcnt(0)")
        if t == 0:
            A(f"""
            s_waitcnt vmcnt(0)
            s_add_u32 s31, s18, 2
            v_mov_b32 v{FL}, s31
            v_mov_b32 v{FL+1}, s18
            ds_write_b32 v13, v{FL}
            ds_write_b32 v13, v{FL+1} offset:32
            """)
        if t == 4:
            nofull = A.label("nofull")
            A("s_cmp_lt_u32 s18, 7")
            A(f"s_cbranch_scc0 {nofull}")
            A("s_add_u32 s31, s18, 2")
            check(FL + 1, "s31", "full")
            A(f"{nofull}:")
            A("v_add_u32 v2, s19, v5")
            A("v_add_u32 v3, s19, v6")
        if first:
            A(mf(sn, KF[0], QM, C_))
            A(f"ds_read_b128 v[{KF[0]}:{KF[0]+3}], v2 offset:{kt*1280}")
        else:
            A(mf2b(sn, KT, QT, sn))
            A(f"ds_read_b64 v[{KT}:{KT+1}], v3 offset:{kt*1280}")
        if t == 1: A(f"ds_read_b32 v{FL}, v12 offset:32")
        if t == 3: A(f"ds_read_b32 v{FL+1}, v12")
        for i in range(4): A(E(i))
        A(mf(O_, V1, P_+4, O_))
        A(f"ds_read_b128 v[{V1}:{V1+3}], v4 offset:{t*VT + 2*VH}")
        if t == 7:
            A("v_add_u32 v4, s19, v7")
        dg = []
        if t == 2:
            skip = A.label("k2skip")
            A(f"s_cmp_lt_u32 s18, 6")
            A(f"s_cbranch_scc0 {skip}")
            check(FL, "s18", "free")
            A("s_add_u32 s30, s27, s25")
            for grp in dma_groups("s30"):
                for l in grp: A(l)
            A(f"{skip}:")
        A(C(0, 0)); A(E(4)); A(C(1, 2))
        for i in (5, 6, 7): A(E(i))
        if desc == 4: A(f"s_setprio {2 - 2*(t % 2)}")
        if first:
            A(mf(sn + 16, KF[1], QM, C_))
            A(f"ds_read_b128 v[{KF[1]}:{KF[1]+3}], v2 offset:{(kt+1)*1280}")
        A(C(2, 4)); A(E(8)); A(C(3, 6)); A(E(9)); A(E(10))
        A(mf(O_, V0, P_, O_))
        A(f"ds_read_b128 v[{V0}:{V0+3}], v4 offset:{((t+1)&7)*VT}")
        for i in (11, 12, 13): A(E(i))
        A(C(4, 8)); A(E(14)); A(C(5, 10)); A(E(15)); A(C(6, 12)); A(C(7, 14))
    for pr in range(4):
        cur = X_[pr & 1]
        tile(cur, True, pr, 2*pr)
        tile(cur + 16, False, pr, 2*pr + 1)
    A = A0
    A(f"""
    s_mov_b32 s19, s27
    s_add_u32 s27, s27, {SLOT}
    s_cmp_ge_u32 s27, {3*SLOT}
    s_cselect_b32 s27, 0, s27
    s_add_u32 s18, s18, 1
    s_cmp_lt_u32 s18, 8
    s_cbranch_scc1 Lk2_loop
    """)
    if lstamp: wl_stamp(A, 150, 1)
    A(f"""
    s_waitcnt lgkmcnt(0)
    {mf(O_, V1, P_+4, O_)}
    s_mov_b32 s31, 0
    s_nop 15
Lk2_fin:
    v_mov_b32 v9, v{O_+8}
    v_mov_b32 v10, v{O_+8}
    s_nop 1
    v_permlane32_swap_b32 v9, v10
    s_nop 1
    v_mul_f32 v11, 0, v{O_}
    """)
    for i in range(1, 8): A(f"v_fma_f32 v11, v{O_+i}, 0, v11")
    A(f"v_mul_f32 v14, 0, v{O_+8}")
    for i in range(9, 12): A(f"v_fma_f32 v14, v{O_+i}, 0, v14")
    A(f"""
    v_cndmask_b32 v14, 0, v14, s[28:29]
    v_add_f32 v11, v11, v14
    v_add_f32 v11, v11, v10
    v_mov_b32 v15, 0x53800000              ; 2^40
    v_cmp_nlt_f32 vcc, v11, v15            ; !(l < 2^40)
    s_cmp_eq_u32 s31, 0
    s_cbranch_scc0 Lk2_store
    {"" if nofb else "s_cbranch_vccnz Lk2_fallback"}
Lk2_store:
    v_rcp_f32 v10, v10
    s_mul_i32 s20, s13, 5
    s_mul_i32 s21, s15, 40960
    s_add_u32 s21, s21, {OF_OFF}
    v_lshrrev_b32 v11, 5, v1               ; hf
    v_and_b32 v14, 15, v1
    v_lshlrev_b32 v14, 4, v14              ; token16*16
    v_bfe_u32 v15, v1, 4, 1                ; q>>4
    v_mul_u32_u24 v15, 20480, v15
    v_add_u32 v14, v14, v15
    v_add_u32 v11, s20, v11                ; G (a=0)
    """)
    for a in range(3):
        r = O_ + 4*a
        A(f"""
        v_add_u32 v16, {2*a}, v11
        v_lshrrev_b32 v17, 3, v16
        v_lshlrev_b32 v17, 10, v17
        v_bfe_u32 v18, v16, 1, 2
        v_lshl_add_u32 v17, v18, 8, v17
        v_and_b32 v18, 1, v16
        v_lshl_add_u32 v17, v18, 3, v17
        v_add_u32 v17, v17, v14
        v_mul_f32 v{r}, v{r}, v10
        v_mul_f32 v{r+1}, v{r+1}, v10
        v_mul_f32 v{r+2}, v{r+2}, v10
        v_mul_f32 v{r+3}, v{r+3}, v10
        v_cvt_pk_bf16_f32 v{r}, v{r}, v{r+1}
        v_cvt_pk_bf16_f32 v{r+1}, v{r+2}, v{r+3}
        """)
        if a == 2:
            A("s_mov_b64 exec, s[28:29]")
        A(f"buffer_store_dwordx2 v[{r}:{r+1}], v17, s[8:11], s21 offen sc1")
    A("s_mov_b64 exec, -1")
    A("s_waitcnt vmcnt(0)")
    A("s_barrier")
    A(f"""
    s_cmp_eq_u32 s12, 0
    s_cbranch_scc0 Lk2_nopub
    s_lshl_b32 s20, s14, 5
    s_add_u32 s20, s20, s13                ; qb*32 + h
    s_lshl_b32 s20, s20, 2
    s_add_u32 s20, s20, {OFLAG_OFF}
    v_mov_b32 v16, 1
    v_mov_b32 v17, 0
    s_mov_b64 exec, 1
    buffer_store_dword v16, v17, s[8:11], s20 offen sc1
    s_mov_b64 exec, -1
Lk2_nopub:
    """)
    if prof:
        A("s_mov_b64 exec, -1")
        if lstamp: wl_dump(A, 150, 1, 8, 12, 21)
        prof_end(A, 1, 8, 12, tmpv=(16, 17, 18, 19, 20), extra="s90")
    if tl: tl2_record(A, 1, 8, 12)
    A("s_endpgm")

    s = X0
    A(f"""
Lk2_fallback:
    s_mov_b32 s31, 1
    v_and_b32 v9, 31, v1
    v_lshlrev_b32 v11, 3, v9
    v_add_u32 v11, 1024, v11
    v_mov_b32 v14, 0xff800000
    s_mov_b32 s18, 0
Lk2_fb1:
    s_lshr_b32 s20, s18, 3
    s_mul_i32 s20, s20, {CH}
    s_and_b32 s21, s18, 7
    s_mul_i32 s21, s21, 1280
    s_add_u32 s20, s20, s21
    s_add_u32 s20, s20, s16
    buffer_load_dwordx4 v[{KF[0]}:{KF[0]+3}], v8, s[8:11], s20 offen
    buffer_load_dwordx2 v[{KT}:{KT+1}], v11, s[8:11], s20 offen
    s_waitcnt vmcnt(0)
    {mf(s, KF[0], QM, None)}
    {mf(s+16, KF[0], QM, None)}
    s_nop 11
    {mf2b(s, KT, QT, s)}
    s_nop 15
    s_nop 7
    """)
    for i in range(0, 16, 2):
        A(f"v_max3_f32 v14, v14, v{s+i}, v{s+i+1}")
    A(f"""
    s_add_u32 s18, s18, 1
    s_cmp_lt_u32 s18, 64
    s_cbranch_scc1 Lk2_fb1
    v_mov_b32 v15, v14
    s_nop 1
    v_permlane32_swap_b32 v14, v15
    s_nop 1
    v_max_f32 v14, v14, v15
    """)
    for i in range(16): A(f"v_mov_b32 v{O_+i}, 0")
    A(f"""
    s_mov_b32 s18, 0
Lk2_fb2:
    s_lshr_b32 s20, s18, 3
    s_mul_i32 s20, s20, {CH}
    s_and_b32 s21, s18, 7
    s_mul_i32 s22, s21, {VT}
    s_add_u32 s22, s22, s20
    s_add_u32 s22, s22, s16
    s_mul_i32 s21, s21, 1280
    s_add_u32 s20, s20, s21
    s_add_u32 s20, s20, s16
    buffer_load_dwordx4 v[{KF[0]}:{KF[0]+3}], v8, s[8:11], s20 offen
    buffer_load_dwordx2 v[{KT}:{KT+1}], v11, s[8:11], s20 offen
    buffer_load_dwordx4 v[{V0}:{V0+3}], v7, s[8:11], s22 offen
    buffer_load_dwordx4 v[{V1}:{V1+3}], v7, s[8:11], s22 offen offset:{2*VH}
    s_waitcnt vmcnt(0)
    {mf(s, KF[0], QM, None)}
    {mf(s+16, KF[0], QM, None)}
    s_nop 11
    {mf2b(s, KT, QT, s)}
    s_nop 15
    s_nop 7
    """)
    for i in range(16): A(f"v_sub_f32 v{s+i}, v{s+i}, v14")
    for i in range(16): A(f"v_exp_f32 v{s+i}, v{s+i}")
    A("s_nop 0")
    for i in range(8): A(f"v_cvt_pk_bf16_f32 v{P_+i}, v{s+2*i}, v{s+2*i+1}")
    A(f"""
    s_nop 1
    {mf(O_, V0, P_, O_)}
    {mf(O_, V1, P_+4, O_)}
    s_add_u32 s18, s18, 1
    s_cmp_lt_u32 s18, 64
    s_cbranch_scc1 Lk2_fb2
    s_nop 15
    s_branch Lk2_fin
Lk2_end:
    s_endpgm
    """)
    if shadow: gen_shadow(A, prof, shprio, SH_BASE, FLAG, NA=na)
    else: A("Lk2_shadow:\ns_barrier\ns_barrier\ns_endpgm")
    return A.text(), kdesc(NAME, 168), f"; @launch kernel={NAME} grid=(256,1,1) block=(768,1,1) lds={LDS_BYTES}"
```

```python
from asm import *
from common import *

ACC_B = 8
ACC_A = 28
WF = [48, 68]
BF = 88
PH = 20480
NPH = 17

def gen_shadow(A, prof, shprio, SH_BASE, FLAG, scl=" sc1", POLL_SLEEP=4, NA=8):
    A(f"""
Lk2_shadow:
    s_setprio {shprio}
    s_load_dwordx2 s[30:31], s[0:1], 64    ; out
    s_sub_u32 s40, s12, 8                  ; w
    s_lshr_b32 s41, s13, 3
    s_lshl_b32 s44, s14, 2
    s_add_u32 s44, s44, s41                ; rbk
    s_and_b32 s43, s13, 7                  ; cg8
    s_lshl_b32 s46, s44, 2
    s_add_u32 s46, s46, s40                ; T16
    s_mul_i32 s47, s40, 5120
    s_mul_i32 s49, s43, {WF_CG}
    s_add_u32 s49, s49, s47
    s_add_u32 s49, s49, {WF_OFF}
    s_add_u32 s47, s47, {SH_BASE}
    s_mul_i32 s51, s46, {48*1024}
    s_add_u32 s51, s51, {ACT_OFF}
    s_mul_i32 s52, s46, 20480
    s_add_u32 s52, s52, {OF_OFF}
    v_lshlrev_b32 v2, 4, v1                ; lane*16
    v_add_u32 v3, {SH_BASE}, v2
    v_add_u32 v0, {SH_BASE + 3*PH}, v2
    v_and_b32 v4, 3, v1
    v_lshlrev_b32 v4, 2, v4
    v_add_u32 v4, {FLAG + 64}, v4          ; prog[lane&3]
    s_lshl_b32 s53, s40, 2
    s_add_u32 s53, s53, {FLAG + 64}
    v_mov_b32 v5, s53
    s_waitcnt lgkmcnt(0)
    """)
    srd_ws(A, 8, 4, WS_RECORDS)
    srd(A, 24, 30, OUT_BYTES)
    for i in range(40): A(f"v_mov_b32 v{ACC_B+i}, 0")
    A("s_barrier")
    def issue(q):
        g = []
        if q >= NPH: return g
        sl = q % 4
        for j in range(5):
            g.append([f"s_add_u32 m0, s47, {sl*PH + j*1024}", f"s_add_u32 s55, s49, {q*PH + j*1024}",
                      f"buffer_load_dwordx4 v2, s[8:11], s55 offen lds"])
        if q < 12:
            for k in range(4):
                b = BF + 16*sl + 4*k
                g.append([f"s_add_u32 s55, s51, {(4*q + k)*1024}", f"buffer_load_dwordx4 v[{b}:{b+3}], v2, s[8:11], s55 offen"])
        return g
    def nops(q):
        return 0 if q >= NPH else (9 if q < 12 else 5)
    def emit(g):
        for grp in g:
            for l in grp: A(l)
    def sync(p, n):
        lab = A.label("shs")
        A(f"""
        s_waitcnt vmcnt({n}) lgkmcnt(0)
        v_mov_b32 v6, {p + 1}
        ds_write_b32 v5, v6
        s_mov_b32 s60, 0x40000
        {lab}:
        ds_read_b32 v7, v4
        s_waitcnt lgkmcnt(0)
        v_cmp_le_u32 vcc, {p + 1}, v7
        s_cmp_eq_u64 vcc, exec
        s_cbranch_scc1 {lab}_ok
        s_sleep 2
        s_sub_u32 s60, s60, 1
        s_cbranch_scc0 {lab}
        {lab}_ok:
        """)
    def compute(p, g):
        sl = p % 4
        acc = ACC_B if p < 12 else ACC_A
        base, so = ("v3", sl*PH) if sl < 3 else ("v0", 0)
        def rd(k, fs):
            return [f"ds_read_b128 v[{WF[fs]+4*ct}:{WF[fs]+4*ct+3}], {base} offset:{so + k*5120 + ct*1024}" for ct in range(5)]
        def bfrag(k):
            return (BF + 16*sl + 4*k) if p < 12 else (BF + 4*(4*(p - 12) + k))
        per = (len(g) + 3) // 4
        for l in rd(0, 0): A(l)
        for k in range(4):
            if k < 3:
                for l in rd(k + 1, (k + 1) & 1): A(l)
                A("s_waitcnt lgkmcnt(5)")
            else:
                A("s_waitcnt lgkmcnt(0)")
            b = bfrag(k)
            for ct in range(5):
                A(f"v_mfma_f32_16x16x32_bf16 v[{acc+4*ct}:{acc+4*ct+3}], v[{WF[k&1]+4*ct}:{WF[k&1]+4*ct+3}], v[{b}:{b+3}], v[{acc+4*ct}:{acc+4*ct+3}]")
            emit(g[k*per:(k+1)*per])
    for q in range(3): emit(issue(q))
    for p in range(NA):
        sync(p, nops(p + 1) + nops(p + 2))
        compute(p, issue(p + 3))
    if prof: stamp(A, 0)
    A("s_waitcnt lgkmcnt(0)")
    A("s_barrier")
    if prof: stamp(A, 1)
    A("s_setprio 3")
    for p in range(NA, 12):
        A(f"s_waitcnt vmcnt({nops(p + 1) + nops(p + 2)}) lgkmcnt(0)")
        A("s_barrier")
        compute(p, issue(p + 3))
    if prof: stamp(A, 8)
    A(f"""
    s_cmp_eq_u32 s40, 0
    s_cbranch_scc1 Lsh_poller
    """)
    A("s_sub_u32 s54, s40, 1")
    A(f"s_mul_i32 s61, s43, {WF_CG}")
    A(f"s_add_u32 s61, s61, {WF_OFF + 15*PH}")
    for j in range(14):
        lab = None
        if j == 13:
            lab = A.label("w13")
            A("s_cmp_eq_u32 s54, 0")
            A(f"s_cbranch_scc0 {lab}")
        A(f"s_add_u32 s55, s54, {3*j}")
        A("s_lshl_b32 s55, s55, 10")
        A("s_mov_b32 m0, s55")
        A("s_add_u32 s55, s55, s61")
        A(f"buffer_load_dwordx4 v2, s[8:11], s55 offen lds")
        if lab: A(f"{lab}:")
    A(f"""
    s_branch Lsh_g
Lsh_poller:
    s_lshl_b32 s56, s14, 7
    s_add_u32 s56, s56, {OFLAG_OFF}
    v_and_b32 v4, 31, v1
    v_lshlrev_b32 v4, 2, v4
    s_mov_b32 s60, 0x40000
Lsh_poll:
    buffer_load_dword v7, v4, s[8:11], s56 offen sc1
    s_waitcnt vmcnt(0)
    """)
    if prof:
        A("s_cmp_eq_u32 s60, 0x40000")
        A("s_cbranch_scc0 Lsh_np")
        stamp(A, 6)
        A("Lsh_np:")
    A(f"""
    v_cmp_eq_u32 vcc, 1, v7
    s_cmp_eq_u64 vcc, exec
    s_cbranch_scc1 Lsh_g
    s_sleep {POLL_SLEEP}
    s_sub_u32 s60, s60, 1
    s_cbranch_scc0 Lsh_poll
Lsh_g:
    """)
    if prof:
        stamp(A, 7)
    A(f"""
    v_and_b32 v49, 15, v1
    s_lshl_b32 s45, s46, 4
    v_add_u32 v49, s45, v49
    v_lshlrev_b32 v50, 2, v49
    s_mov_b32 s58, {G_OFF}
    buffer_load_dword v6, v50, s[8:11], s58 offen
    v_lshrrev_b32 v48, 4, v1               ; lane>>4
    v_mul_u32_u24 v7, 1280, v49
    v_lshl_add_u32 v5, v48, 3, v7
    s_waitcnt vmcnt(1) lgkmcnt(0)
    s_barrier
    """)
    if prof: stamp(A, 2)
    def oload(k):
        return [f"s_add_u32 s55, s52, {k*1024}", f"buffer_load_dwordx4 v[{BF+4*k}:{BF+4*k+3}], v2, s[8:11], s55 offen{scl}"]
    PRE = 8
    for k in range(PRE):
        for l in oload(k): A(l)
    if prof: stamp(A, 3)
    def wrd(ks, fs):
        p = 12 + ks // 4; k = ks % 4
        if p < 15: base, so = "v3", (p % 4)*PH
        else: base, so = "v2", (p - 15)*PH
        return [f"ds_read_b128 v[{WF[fs]+4*ct}:{WF[fs]+4*ct+3}], {base} offset:{so + k*5120 + ct*1024}" for ct in range(5)]
    for l in wrd(0, 0): A(l)
    for ks in range(20):
        if ks + PRE < 20:
            for l in oload(ks + PRE): A(l)
        issued = min(20, ks + PRE + 1)
        if ks < 19:
            for l in wrd(ks + 1, (ks + 1) & 1): A(l)
            A(f"s_waitcnt vmcnt({issued - 1 - ks}) lgkmcnt(5)")
        else:
            A("s_waitcnt vmcnt(0) lgkmcnt(0)")
        b = BF + 4*ks
        for ct in range(5):
            A(f"v_mfma_f32_16x16x32_bf16 v[{ACC_A+4*ct}:{ACC_A+4*ct+3}], v[{WF[ks&1]+4*ct}:{WF[ks&1]+4*ct+3}], v[{b}:{b+3}], v[{ACC_A+4*ct}:{ACC_A+4*ct+3}]")
    if prof: stamp(A, 4)
    A("s_nop 7")
    A("s_mul_i32 s48, s43, 160")
    for ct in range(5):
        b = ACC_B + 4*ct; a = ACC_A + 4*ct
        for i in range(4):
            A(f"v_sub_f32 v{a+i}, v{a+i}, v{b+i}")
        for i in range(4):
            A(f"v_fma_f32 v{a+i}, v6, v{a+i}, v{b+i}")
        A(f"v_cvt_pk_bf16_f32 v{48+2*ct}, v{a}, v{a+1}")
        A(f"v_cvt_pk_bf16_f32 v{49+2*ct}, v{a+2}, v{a+3}")
        A(f"buffer_store_dwordx2 v[{48+2*ct}:{49+2*ct}], v5, s[24:27], s48 offen offset:{ct*32}")
    if prof:
        stamp(A, 5)
        dump_stamps(A, 1, 8, 12, 9, tmp=50)
        A("s_mov_b64 exec, -1")
        A("s_mov_b32 s90, 0")
        prof_end(A, 1, 8, 12, tmpv=(16, 17, 18, 19, 20), extra="s90")
    A("s_endpgm")
```

```python
class Asm:
    def __init__(self, uid0=0):
        self.lines = []
        self._uid = uid0
    def __call__(self, s):
        for l in s.strip("\n").split("\n"):
            l = l.strip()
            if not l:
                continue
            if l.endswith(":") or l.startswith(".") or l.startswith(";"):
                self.lines.append(l)
            else:
                self.lines.append("    " + l)
    def c(self, s):
        self.lines.append("    ; " + s)
    def label(self, base):
        self._uid += 1
        return f"L{base}_{self._uid}"
    def text(self):
        return "\n".join(self.lines) + "\n"

def vr(a, n=1):
    return f"v{a}" if n == 1 else f"v[{a}:{a+n-1}]"
def sr(a, n=1):
    return f"s{a}" if n == 1 else f"s[{a}:{a+n-1}]"

WS_BASE = 0
def srd_ws(A, d, ptr, nbytes):
    import asm
    if asm.WS_BASE:
        A(f"s_add_u32 s{d}, s{ptr}, {asm.WS_BASE}")
        A(f"s_addc_u32 s{d+1}, s{ptr+1}, 0")
        A(f"s_and_b32 s{d+1}, s{d+1}, 0xffff")
        A(f"s_mov_b32 s{d+2}, {nbytes}")
        A(f"s_mov_b32 s{d+3}, 0x00020000")
    else:
        srd(A, d, ptr, nbytes)

def srd(A, d, ptr, nbytes):
    A(f"s_mov_b32 s{d}, s{ptr}")
    A(f"s_and_b32 s{d+1}, s{ptr+1}, 0xffff")
    A(f"s_mov_b32 s{d+2}, {nbytes}")
    A(f"s_mov_b32 s{d+3}, 0x00020000")

def kdesc(name, vgpr, sgpr=102, accum=None):
    accum = accum if accum is not None else ((vgpr + 3) // 4) * 4
    return f""".section .rodata,"a"
.p2align 6
.amdhsa_kernel {name}
  .amdhsa_next_free_vgpr {vgpr}
  .amdhsa_next_free_sgpr {sgpr}
  .amdhsa_accum_offset {accum}
  .amdhsa_group_segment_fixed_size 0
  .amdhsa_kernarg_size 88
  .amdhsa_user_sgpr_count 2
  .amdhsa_user_sgpr_kernarg_segment_ptr 1
  .amdhsa_system_sgpr_workgroup_id_x 1
.end_amdhsa_kernel
.text
"""
def khead(name):
    return f""".text
.globl {name}
.p2align 8
.type {name},@function
{name}:
"""

DBG_OFF = 0x1800000
def prof_start(A):
    A("s_memtime s[92:93]")
    A("s_memrealtime s[94:95]")
def prof_end(A, kidx, wsrd, wave_sgpr, tmpv=(120, 121, 122, 123, 124), extra=None):
    a, b, c, d, e = tmpv
    lab = A.label("prof")
    A(f"""
    s_waitcnt lgkmcnt(0)
    s_memtime s[96:97]
    s_memrealtime s[98:99]
    s_waitcnt lgkmcnt(0)
    s_sub_u32 s96, s96, s92
    s_sub_u32 s98, s98, s94
    s_lshl_b32 s97, s2, 4
    s_add_u32 s97, s97, s{wave_sgpr}
    s_lshl_b32 s97, s97, 4
    s_add_u32 s97, s97, {DBG_OFF + kidx*0x20000}
    v_mov_b32 v{a}, s94
    v_mov_b32 v{b}, s96
    v_mov_b32 v{c}, s98
    v_mov_b32 v{d}, {extra if extra else 0}
    v_mov_b32 v{e}, 0
    s_mov_b64 exec, 1
    buffer_store_dwordx4 v[{a}:{d}], v{e}, s[{wsrd}:{wsrd+3}], s97 offen
    """)

def stamp(A, i):
    A("s_memtime s[88:89]")
    A("s_waitcnt lgkmcnt(0)")
    A(f"s_sub_u32 s{70+i}, s88, s92")
def dump_stamps(A, kidx, wsrd, wave_sgpr, n, tmp=16):
    A(f"""
    s_lshl_b32 s97, s2, 4
    s_add_u32 s97, s97, s{wave_sgpr}
    s_lshl_b32 s97, s97, 6
    s_add_u32 s97, s97, {DBG_OFF + 0x100000 + kidx*0x40000}
    v_mov_b32 v{tmp}, 0
    s_mov_b64 exec, 1
    """)
    for i in range(n):
        A(f"v_mov_b32 v{tmp+1}, s{70+i}")
        A(f"buffer_store_dword v{tmp+1}, v{tmp}, s[{wsrd}:{wsrd+3}], s97 offen offset:{4*i}")
        A("s_nop 1")

def wl_stamp(A, vreg, idx):
    A("s_memtime s[88:89]")
    A("s_waitcnt lgkmcnt(0)")
    A("s_sub_u32 s88, s88, s92")
    if isinstance(idx, int):
        A(f"v_writelane_b32 v{vreg}, s88, {idx}")
    else:
        A(f"s_mov_b32 m0, {idx}")
        A("s_nop 0")
        A(f"v_writelane_b32 v{vreg}, s88, m0")
def wl_dump(A, vreg, kidx, wsrd, wave_sgpr, tmp):
    A(f"""
    s_lshl_b32 s97, s2, 4
    s_add_u32 s97, s97, s{wave_sgpr}
    s_lshl_b32 s97, s97, 6
    s_add_u32 s97, s97, {DBG_OFF + 0x100000 + kidx*0x40000}
    s_mov_b64 exec, 0xffff
    v_mbcnt_lo_u32_b32 v{tmp}, -1, 0
    v_lshlrev_b32 v{tmp}, 2, v{tmp}
    buffer_store_dword v{vreg}, v{tmp}, s[{wsrd}:{wsrd+3}], s97 offen
    s_mov_b64 exec, -1
    """)

def touch(A, items, vz, vd0):
    for i, (srd_, off) in enumerate(items):
        if isinstance(off, int):
            if off == 0:
                A(f"buffer_load_dword v{vd0}, v{vz}, s[{srd_}:{srd_+3}], 0 offen")
            else:
                A(f"s_mov_b32 s99, {off}")
                A(f"buffer_load_dword v{vd0}, v{vz}, s[{srd_}:{srd_+3}], s99 offen")
        else:
            A(f"buffer_load_dword v{vd0}, v{vz}, s[{srd_}:{srd_+3}], {off} offen")

def tl_start(A, kidx):
    A("s_memrealtime s[84:85]")
def tl_end(A, kidx, tmpv=(2, 3, 4)):
    a, b, c = tmpv
    lab = A.label("tl")
    A(f"""
    s_load_dwordx2 s[80:81], s[0:1], 72
    s_memrealtime s[82:83]
    s_waitcnt lgkmcnt(0)
    s_sub_u32 s80, s80, {512*kidx}
    s_subb_u32 s81, s81, 0
    s_mov_b64 exec, 1
    v_mov_b32 v{a}, 0
    v_mov_b32 v{b}, s82
    global_atomic_umax v{a}, v{b}, s[80:81] offset:{8*kidx+4}
    v_mov_b32 v{c}, s84
    v_not_b32 v{c}, v{c}
    global_atomic_umax v{a}, v{c}, s[80:81] offset:{8*kidx}
    s_waitcnt vmcnt(0)
    """)

TL_OFF = DBG_OFF + 0x300000
def tl2_record(A, kidx, wsrd, wave_sgpr):
    lab = A.label(f"tl2k{kidx}")
    A(f"""
    s_cmp_eq_u32 s{wave_sgpr}, 0
    s_cbranch_scc0 {lab}
    s_memrealtime s[82:83]
    s_waitcnt lgkmcnt(0)
    s_mov_b64 exec, 1
    v_mov_b32 v2, s84
    v_mov_b32 v3, s82
    v_mov_b32 v4, 0
    s_lshl_b32 s80, s2, 3
    s_add_u32 s80, s80, {TL_OFF + kidx*4096}
    buffer_store_dwordx2 v[2:3], v4, s[{wsrd}:{wsrd+3}], s80 offen
    {lab}:
    """)
def tl2_delay(A, which, wsrd, wave_sgpr):
    lab = A.label("tl2d")
    kind, k = which
    A(f"""
    s_cmp_eq_u32 s2, 0
    s_cbranch_scc0 {lab}
    s_cmp_eq_u32 s{wave_sgpr}, 0
    s_cbranch_scc0 {lab}
    s_mov_b64 exec, -1
    v_and_b32 v2, 63, v0
    v_lshlrev_b32 v2, 5, v2
    s_mov_b32 s80, {TL_OFF + k*4096}
    buffer_load_dwordx4 v[4:7], v2, s[{wsrd}:{wsrd+3}], s80 offen sc1
    buffer_load_dwordx4 v[8:11], v2, s[{wsrd}:{wsrd+3}], s80 offen offset:16 sc1
    s_mov_b32 s80, {TL_OFF + (k+1)*4096}
    buffer_load_dwordx4 v[12:15], v2, s[{wsrd}:{wsrd+3}], s80 offen sc1
    buffer_load_dwordx4 v[16:19], v2, s[{wsrd}:{wsrd+3}], s80 offen offset:16 sc1
    s_waitcnt vmcnt(0)
    v_min_u32 v4, v4, v6
    v_min_u32 v8, v8, v10
    v_min_u32 v4, v4, v8
    v_max_u32 v5, v5, v7
    v_max_u32 v9, v9, v11
    v_max_u32 v5, v5, v9
    v_min_u32 v12, v12, v14
    v_min_u32 v16, v16, v18
    v_min_u32 v12, v12, v16
    s_mov_b32 s81, -1
    s_mov_b32 s82, 0
    s_mov_b32 s83, -1
    s_mov_b32 s86, 0
    {lab}_l:
    s_nop 3
    v_readlane_b32 s87, v4, s86
    s_nop 3
    s_min_u32 s81, s81, s87
    v_readlane_b32 s87, v5, s86
    s_nop 3
    s_max_u32 s82, s82, s87
    v_readlane_b32 s87, v12, s86
    s_nop 3
    s_min_u32 s83, s83, s87
    s_add_u32 s86, s86, 1
    s_cmp_lt_u32 s86, 64
    s_cbranch_scc1 {lab}_l
    """)
    if kind == "span": A("s_sub_u32 s81, s82, s81")
    elif kind == "zero": A("s_mov_b32 s81, 0")
    elif kind == "tot":
        A("s_sub_u32 s81, s84, s81")
    else: A("s_sub_u32 s81, s83, s82")
    A(f"""
    s_memrealtime s[82:83]
    s_waitcnt lgkmcnt(0)
    s_add_u32 s81, s81, s82
    {lab}_w:
    s_memrealtime s[82:83]
    s_waitcnt lgkmcnt(0)
    s_sub_u32 s87, s82, s81
    s_cmp_lt_i32 s87, 0
    s_cbranch_scc1 {lab}_w
    {lab}:
    """)

def lds_spin(A, addr, need, nwords, tmp=(2, 3), sleep=1, cnt="s99"):
    a, b = tmp
    lab = A.label("lsp")
    A(f"""
    v_mbcnt_lo_u32_b32 v{a}, -1, 0
    v_mbcnt_hi_u32_b32 v{a}, -1, v{a}
    v_and_b32 v{a}, {nwords - 1}, v{a}
    v_lshlrev_b32 v{a}, 2, v{a}
    v_add_u32 v{a}, {addr}, v{a}
    s_mov_b32 {cnt}, 0x100000
    {lab}:
    ds_read_b32 v{b}, v{a}
    s_waitcnt lgkmcnt(0)
    v_cmp_le_u32 vcc, {need}, v{b}
    s_nop 1
    s_cmp_eq_u64 vcc, exec
    s_cbranch_scc1 {lab}_ok
    s_sleep {sleep}
    s_sub_u32 {cnt}, {cnt}, 1
    s_cbranch_scc0 {lab}
    {lab}_ok:
    """)
def lds_set(A, addr, val, tmp=(2, 3)):
    a, b = tmp
    A(f"""
    v_mov_b32 v{a}, {addr}
    v_mov_b32 v{b}, {val}
    ds_write_b32 v{a}, v{b}
    """)
def get_tag(A, addr, dst_sgpr, tmp=(2, 3)):
    a, b = tmp
    lab = A.label("tag")
    A(f"""
    v_mov_b32 v{a}, {addr}
    s_mov_b32 s99, 0x100000
    {lab}:
    ds_read_b32 v{b}, v{a}
    s_waitcnt lgkmcnt(0)
    v_readfirstlane_b32 {dst_sgpr}, v{b}
    s_nop 3
    s_cmp_lg_u32 {dst_sgpr}, 0
    s_cbranch_scc1 {lab}_ok
    s_sleep 2
    s_sub_u32 s99, s99, 1
    s_cbranch_scc0 {lab}
    {lab}_ok:
    """)
def publish_poll(A, wsrd, off, tag_sgpr, tmp=(2, 3, 4, 5, 6, 7), sleep=4):
    a, b, c, d, e, f = tmp
    lab = A.label("pp")
    A(f"""
    v_mbcnt_lo_u32_b32 v{a}, -1, 0
    v_mbcnt_hi_u32_b32 v{a}, -1, v{a}
    v_lshlrev_b32 v{b}, 10, v{a}
    v_mov_b32 v{c}, {tag_sgpr}
    s_lshl_b32 s98, s2, 2
    s_add_u32 s98, s98, {off}
    s_mov_b64 exec, 0xff
    buffer_store_dword v{c}, v{b}, s[{wsrd}:{wsrd+3}], s98 offen sc1
    s_mov_b64 exec, -1
    v_lshlrev_b32 v{b}, 4, v{a}
    s_and_b32 s98, s2, 7
    s_lshl_b32 s98, s98, 10
    s_add_u32 s98, s98, {off}
    s_mov_b32 s99, 0x40000
    {lab}:
    buffer_load_dwordx4 v[{c}:{f}], v{b}, s[{wsrd}:{wsrd+3}], s98 offen sc1
    s_waitcnt vmcnt(0)
    v_cmp_eq_u32 vcc, {tag_sgpr}, v{c}
    v_cmp_eq_u32 s[96:97], {tag_sgpr}, v{d}
    s_and_b64 vcc, vcc, s[96:97]
    v_cmp_eq_u32 s[96:97], {tag_sgpr}, v{e}
    s_and_b64 vcc, vcc, s[96:97]
    v_cmp_eq_u32 s[96:97], {tag_sgpr}, v{f}
    s_and_b64 vcc, vcc, s[96:97]
    s_cmp_eq_u64 vcc, exec
    s_cbranch_scc1 {lab}_ok
    s_sleep {sleep}
    s_sub_u32 s99, s99, 1
    s_cbranch_scc0 {lab}
    {lab}_ok:
    """)

def publish256(A, wsrd, off, tag_sgpr, tmp=(2, 3, 4)):
    a, b, c = tmp
    A(f"""
    v_mbcnt_lo_u32_b32 v{a}, -1, 0
    v_mbcnt_hi_u32_b32 v{a}, -1, v{a}
    v_lshlrev_b32 v{b}, 10, v{a}
    v_mov_b32 v{c}, {tag_sgpr}
    s_lshl_b32 s98, s2, 2
    s_add_u32 s98, s98, {off}
    s_mov_b64 exec, 0xff
    buffer_store_dword v{c}, v{b}, s[{wsrd}:{wsrd+3}], s98 offen sc1
    s_mov_b64 exec, -1
    """)
def poll256(A, wsrd, off, tag_sgpr, tmp=(2, 3, 4, 5, 6, 7), sleep=8):
    a, b, c, d, e, f = tmp
    lab = A.label("pl")
    A(f"""
    v_mbcnt_lo_u32_b32 v{a}, -1, 0
    v_mbcnt_hi_u32_b32 v{a}, -1, v{a}
    v_lshlrev_b32 v{b}, 4, v{a}
    s_and_b32 s98, s2, 7
    s_lshl_b32 s98, s98, 10
    s_add_u32 s98, s98, {off}
    s_mov_b32 s99, 0x40000
    {lab}:
    buffer_load_dwordx4 v[{c}:{f}], v{b}, s[{wsrd}:{wsrd+3}], s98 offen sc1
    s_waitcnt vmcnt(0)
    v_cmp_eq_u32 vcc, {tag_sgpr}, v{c}
    v_cmp_eq_u32 s[96:97], {tag_sgpr}, v{d}
    s_and_b64 vcc, vcc, s[96:97]
    v_cmp_eq_u32 s[96:97], {tag_sgpr}, v{e}
    s_and_b64 vcc, vcc, s[96:97]
    v_cmp_eq_u32 s[96:97], {tag_sgpr}, v{f}
    s_and_b64 vcc, vcc, s[96:97]
    s_cmp_eq_u64 vcc, exec
    s_cbranch_scc1 {lab}_ok
    s_sleep {sleep}
    s_sub_u32 s99, s99, 1
    s_cbranch_scc0 {lab}
    {lab}_ok:
    """)
```

```python
S = 2048; D = 640; H = 32; DH = 20; F = 1536
X_BYTES = S * D * 2
WQKV_BYTES = D * 3 * D * 2
WO_BYTES = D * D * 2
W1_BYTES = D * F * 2
W2_BYTES = F * D * 2
B1_BYTES = F * 2
GW_BYTES = D * 2
OUT_BYTES = S * D * 2

QF_OFF = 0
HSQ = 64 * 1280
KV_OFF = 0x280000
VH = 352
VT = 4 * VH
CH = 21504
HSK = 8 * CH
VPART = 8 * 1280
ACT_OFF = 0x800000
OF_OFF = 0xE00000
BP_OFF = 0x1100000
WF_OFF = 0x1100000
WF_CG = 68*5*1024
OFLAG_OFF = 0x1480000
WOF_OFF = 0x1500000
G_OFF = 0x1400000
WS_RECORDS = 0x2000000

import math
QSCALE = math.log2(math.e) / math.sqrt(DH)
LOG2E = math.log2(math.e)

import struct
def f32bits(x):
    return struct.unpack("<I", struct.pack("<f", x))[0]

F1A_OFF = 0x1490000
F1B_OFF = 0x1494000
F1W_OFF = 0x1498000
MEGA_FLAG = 3*24576 + 4*20480
LF_FULL, LF_FREE, LF_PROG, LF_PD, LF_RD, LF_HD, LF_GO, LF_GO2, LF_TAG = 0, 32, 64, 80, 96, 112, 116, 120, 124
```

```python
from asm import *
from common import *
from k2 import vslot

NAME = "k1_kernel"
SLOT = 45056
XO, WQO, W1O = 0, 16384, 32768
GATE_LDS = 3 * SLOT
UNIT_LDS = 3 * SLOT + 1536
LDS_BYTES = UNIT_LDS + 4096

def gen_k1(prof=False, mode=0, pf=1, rot=0, tlb=1, tl=0, sc=0, cpf=1, wfsc=1, fused=None, mprof=0):
    SC = {0: '', 1: ' sc1', 2: ' nt', 3: ' sc0 sc1'}[sc & 3]
    SCQ = SC if sc & 4 else ''
    SCW = ' sc1' if wfsc else ''
    KN = fused if fused else NAME
    FL = MEGA_FLAG
    if fused:
        SC = SCQ = SCW = ' sc1'
        tlb = 0
    ROT = rot
    A0 = Asm()
    class F:
        def __init__(s): s.inloop = False
        def __call__(s, l):
            for x in l.strip("\n").split("\n"):
                xs = x.strip()
                if s.inloop:
                    if mode == 1 and xs.startswith("buffer_load") : continue
                    if mode == 2 and (xs.startswith("v_mfma") or xs.startswith("ds_read")): continue
                    if mode == 3 and xs.startswith("v_mfma"): continue
                    if mode in (4, 6) and xs.startswith("s_barrier"): continue
                    if mode == 6 and xs.startswith("buffer_load"): continue
                    if mode == 5 and xs.startswith("ds_read"): continue
                    if mode == 7 and (xs.startswith("buffer_load") or xs.startswith("ds_read")): continue
                    if mode == 8 and (xs.startswith("buffer_load") or xs.startswith("ds_read") or xs.startswith("s_barrier")): continue
                    if mode == 10 and (xs.startswith("buffer_load") or xs.startswith("ds_read") or xs.startswith("s_barrier") or xs.startswith("s_add_u32 m0") or xs.startswith("s_add_u32 s48") or xs.startswith("s_nop 0") or xs.startswith("v_add_u32")): continue
                if xs.endswith("_loop:"): s.inloop = True
                if xs.startswith("s_cbranch_scc1") and xs.endswith("g_loop"): s.inloop = False
                A0(x)
        def label(s, b): return A0.label(b)
        def text(s): return A0.text()
    A = F()
    A(khead(KN))
    A(f"""
    s_cmp_ge_u32 s2, 256
    s_cbranch_scc1 Lk1_exit
    """)
    if prof or mprof: prof_start(A)
    if tl: tl_start(A, 0)
    if cpf:
        A(f"""
        s_getpc_b64 s[80:81]
Lk1_pc:
        s_sub_u32 s80, s80, Lk1_pc - {KN}
        s_subb_u32 s81, s81, 0
        s_lshr_b32 s82, s2, 3
        s_mul_i32 s82, s82, (Lcode_end - {KN} + 4095) / 4096
        v_and_b32 v61, 63, v0
        v_add_u32 v61, s82, v61
        v_min_u32 v61, (Lcode_end - {KN} - 4) / 128, v61
        v_lshlrev_b32 v61, 7, v61
        v_lshrrev_b32 v60, 6, v0
        v_and_b32 v59, 63, v0
        v_cmp_gt_u32 vcc, (Lcode_end - {KN} + 4095) / 4096, v59
        v_cmp_eq_u32 s[82:83], 7, v60
        s_and_b64 vcc, vcc, s[82:83]
        s_and_saveexec_b64 s[82:83], vcc
        s_cbranch_execz Lk1_nocpf
        global_load_dword v61, v61, s[80:81]
Lk1_nocpf:
        s_mov_b64 exec, s[82:83]
        """)
    A(f"""
    s_load_dwordx2 s[80:81], s[0:1], 48    ; w2
    s_load_dwordx2 s[82:83], s[0:1], 16    ; wo
    s_load_dwordx4 s[4:7], s[0:1], 0       ; A_x, wqkv
    s_load_dwordx4 s[8:11], s[0:1], 32     ; w1, b1
    s_load_dwordx2 s[12:13], s[0:1], 56    ; gate_w
    s_load_dwordx2 s[14:15], s[0:1], 80    ; ws
    v_lshrrev_b32 v1, 6, v0
    v_and_b32 v2, 63, v0                   ; lane
    s_and_b32 s41, s2, 7                   ; xcd
    v_readfirstlane_b32 s32, v1
    """)
    if fused:
        A("""
        s_nop 3
        s_mov_b32 s85, s32
        s_sub_u32 s42, s32, 4
        s_add_u32 s43, s32, 4
        s_cmp_ge_u32 s32, 8
        s_cselect_b32 s43, s42, s43
        s_cmp_lt_u32 s32, 4
        s_cselect_b32 s32, s32, s43
        """)
    A(f"""
    s_lshr_b32 s42, s2, 3                  ; i
    s_and_b32 s43, s41, 1
    s_lshl_b32 s43, s43, 3
    s_and_b32 s44, s42, 7
    s_add_u32 s34, s43, s44                ; rb
    s_lshr_b32 s43, s41, 1
    s_lshl_b32 s43, s43, 2
    s_lshr_b32 s44, s42, 3
    s_add_u32 s35, s43, s44                ; cgp
    s_mul_i32 s45, s35, 52
    s_lshr_b32 s45, s45, 8                 ; cgp/5
    s_add_u32 s33, s45, 1
    s_mul_i32 s45, s45, 5
    s_sub_u32 s46, s35, s45                ; cbl (0..4)
    s_cmp_eq_u32 s35, 15
    s_cselect_b32 s33, 0, s33
    v_lshrrev_b32 v3, 3, v2
    v_mul_u32_u24 v3, 1280, v3
    v_and_b32 v13, 7, v2
    v_lshrrev_b32 v14, 4, v2               ; lane>>4
    v_xor_b32 v15, v13, v14
    v_lshl_add_u32 v10, v15, 4, v3         ; even u
    v_xor_b32 v15, 4, v15
    v_lshl_add_u32 v11, v15, 4, v3         ; odd u
    s_lshl_b32 s37, s34, 7                 ; rb*128
    s_lshl_b32 s41, s32, 4                 ; w*16 rows
    s_add_u32 s37, s37, s41
    s_mul_i32 s37, s37, 1280
    s_lshl_b32 s42, s32, 11
    s_lshr_b32 s57, s2, 3                  ; i
    s_and_b32 s78, s57, 7
    s_lshr_b32 s57, s57, 3
    s_lshl_b32 s57, s57, 1
    s_add_u32 s78, s78, s57
    s_mul_i32 s78, s78, {1 if ROT else 0}
    s_mov_b32 s56, 0
    s_mov_b32 s69, 0
    s_mov_b32 s58, s37
    s_mov_b32 s79, 0
    """)
    if ROT == 2:
        A("""
        s_cmp_ge_u32 s78, 10
        s_cselect_b32 s57, 10, 0
        s_sub_u32 s78, s78, s57
        s_mov_b32 s79, s78
        s_mov_b32 s69, s78
        s_lshl_b32 s57, s79, 7
        s_add_u32 s37, s58, s57
        """)
    A(f"""
    s_waitcnt lgkmcnt(0)
    """)
    if prof:
        A("s_memtime s[88:89]")
        A("s_waitcnt lgkmcnt(0)")
        A("s_sub_u32 s87, s88, s92")
    srd(A, 16, 4, X_BYTES)
    srd_ws(A, 24, 14, WS_RECORDS)
    srd(A, 60, 6, WQKV_BYTES)
    srd(A, 64, 8, W1_BYTES)
    if not fused:
        A(f"""
        s_cmp_eq_u32 s32, 7
        s_cbranch_scc0 Lk1_noflag
        s_lshl_b32 s41, s2, 2
        s_add_u32 s41, s41, {OFLAG_OFF}
        v_mov_b32 v3, 0
        s_mov_b64 exec, 1
        buffer_store_dword v3, v3, s[24:27], s41 offen
        s_mov_b64 exec, -1
    Lk1_noflag:
        """)
    if tlb:
        A("s_cmp_eq_u32 s32, 0")
        A("s_cbranch_scc0 Lk1_notouch")
        srd(A, 28, 10, B1_BYTES)
        A("v_mov_b32 v3, 0")
        MB2 = 2 << 20
        touch(A, [(16, "s37"), (60, 0), (60, MB2), (64, 0), (28, 0)] + [(24, k*MB2) for k in range(7)] + [(24, G_OFF)], 3, 1)
        A("Lk1_notouch:")
    A(f"""
    s_cmp_ge_u32 s32, 8
    s_cbranch_scc1 Lk1_H
    s_cmp_ge_u32 s32, 4
    s_cbranch_scc1 Lk1_R
    """)

    def adv_group(ws):
        if ROT == 2:
            g = ["s_add_u32 s79, s79, 1", "s_cmp_eq_u32 s79, 10", "s_cselect_b32 s79, 0, s79", "s_lshl_b32 s57, s79, 7", "s_add_u32 s37, s58, s57"]
        else:
            g = ["s_add_u32 s56, s56, 1", "s_add_u32 s57, s56, s78", "s_sub_u32 s57, s57, 2", "s_and_b32 s57, s57, 7", "s_add_u32 s57, s57, 2",
                 "s_cmp_lt_u32 s56, 2", "s_cselect_b32 s79, s56, s57", "s_lshl_b32 s57, s79, 7", "s_add_u32 s37, s58, s57"]
        if ws:
            g += [f"s_mul_i32 s57, s79, {ws}", "s_add_u32 s38, s59, s57"]
        return g

    def x_dma(slot_sgpr):
        g = []
        for j in range(2):
            g.append([f"s_add_u32 m0, {slot_sgpr}, {j*1024}", f"s_add_u32 s48, s37, {j*10240}",
                      f"buffer_load_dwordx4 v{10 + j}, s[16:19], s48 offen lds"])
        return g

    def xfrag_addr(rowbase_expr_sgpr):
        A(f"""
        v_and_b32 v3, 31, v2                   ; token
        v_lshrrev_b32 v13, 5, v2               ; hf
        v_bfe_u32 v14, v2, 1, 3
        v_xor_b32 v14, v13, v14
        v_lshlrev_b32 v14, 4, v14
        v_lshl_add_u32 v14, v3, 7, v14
        v_add_u32 v56, {rowbase_expr_sgpr}, v14
        v_xor_b32 v57, 32, v56
        v_xor_b32 v58, 64, v56
        v_xor_b32 v59, 96, v56
        """)

    def set_slot(nw, sgpr):
        out = [f"v_add_u32 v{4+k}, {sgpr}, v{56+k}" for k in range(4)]
        out += [f"v_add_u32 v{8+k}, {sgpr}, v{60+k}" for k in range(nw)]
        return out

    def interleave(ms, others):
        n = len(ms)
        per = (len(others) + n - 1) // n
        k = 0
        for i, m in enumerate(ms):
            A(m)
            for grp in others[k:k+per]:
                for l in grp: A(l)
            k += per

    def kstep(ms, rd, extra, wait=True, skip_last=False):
        if wait: A("s_waitcnt lgkmcnt(0)")
        n = len(ms) - (1 if skip_last else 0)
        A(ms[0])
        for grp in rd:
            for l in grp: A(l)
        slots = max(1, n - 1)
        per = (len(extra) + slots - 1) // slots if extra else 0
        k = 0
        for i in range(1, n):
            A(ms[i])
            for grp in extra[k:k+per]:
                for l in grp: A(l)
            k += per
        for grp in extra[k:]:
            for l in grp: A(l)

    def loop(tag, nown, reads, mfmas, dma_groups, nw, unit=False):
        A(f"s_waitcnt vmcnt({nown})")
        A("s_barrier")
        if prof:
            A("s_memtime s[90:91]")
            A("s_waitcnt lgkmcnt(0)")
            A("s_sub_u32 s90, s90, s92")
        for l in set_slot(nw, "0"): A(l)
        for l in reads(0, 0): A(l)
        A(f"s_mov_b32 s50, {SLOT}")
        A.inloop = True
        g = dma_groups()
        adv = g[-1]; g = g[:-1]
        parts = [[], [], [], []]
        for i, grp in enumerate(g): parts[i * 4 // len(g)].append(grp)
        R = lambda ks, fs: [[l] for l in reads(ks, fs)]
        rot = [["s_mov_b32 s51, s50", f"s_add_u32 s50, s50, {SLOT}", f"s_cmp_ge_u32 s50, {3*SLOT}", "s_cselect_b32 s50, 0, s50",
                "s_add_u32 s52, s51, s42", "s_add_u32 s53, s51, s43"]]
        A(f"s_add_u32 s52, s42, {2*SLOT}")
        A(f"s_add_u32 s53, s43, {2*SLOT}")
        kstep(mfmas(0), R(1, 1), parts[0] + parts[1])
        kstep(mfmas(1), R(2, 0), parts[2])
        kstep(mfmas(0), R(3, 1), parts[3] + [adv] + [["s_mov_b32 s52, s42", "s_mov_b32 s53, s43", "s_mov_b32 s40, 0"]], skip_last=True)
        def section(dma, vm, final=False, ug=None):
            A(mfmas(0)[-1])
            A(f"s_waitcnt vmcnt({vm}) lgkmcnt(0)")
            A("s_barrier")
            if final:
                for m in mfmas(1): A(m)
                return
            rd = R(0, 0)
            rd[0] = set_slot(nw, "s50") + rd[0]
            P_ = parts if dma else [[], [], [], []]
            kstep(mfmas(1), rd, P_[0], wait=False)
            kstep(mfmas(0), R(1, 1), P_[1] + (ug or []))
            kstep(mfmas(1), R(2, 0), P_[2])
            tail = (P_[3] + [adv] if dma else []) + rot
            if dma: tail = tail + [["s_add_u32 s40, s40, 1", "s_cmp_lt_u32 s40, 7"]]
            kstep(mfmas(0), R(3, 1), tail, skip_last=True)
        A(f"L{tag}_loop:")
        section(True, nown)
        A(f"s_cbranch_scc1 L{tag}_loop")
        ug = []
        if unit:
            for j in range(4):
                ug.append([f"s_add_u32 m0, s76, {j*1024}", f"s_add_u32 s48, s100, {j*8*1280}", f"buffer_load_dwordx4 v62, s[96:99], s48 offen lds"])
            A("s_lshl_b32 s76, s32, 12")
            A("s_add_u32 s76, s76, s51")
        section(False, nown, ug=ug)
        section(False, 4 if unit else 0)
        section(False, 4 if unit else 0, final=True)
        A.inloop = False
        A("s_nop 15")
        if prof:
            A("s_memtime s[88:89]")
            A("s_waitcnt lgkmcnt(0)")
            A("s_sub_u32 s91, s88, s92")

    A(f"""
    s_cmp_eq_u32 s33, 0
    s_cbranch_scc1 Lk1_gate
    """)
    srd(A, 20, 6, WQKV_BYTES)
    A(f"""
    s_mov_b32 s36, 3840
    v_and_b32 v13, 15, v2
    v_lshlrev_b32 v15, 2, v14
    v_xor_b32 v13, v13, v15
    v_mul_u32_u24 v15, 3840, v14
    v_lshl_add_u32 v12, v13, 4, v15
    s_mul_i32 s38, s32, {16*3840}          ; w*16 k-rows
    s_lshl_b32 s41, s35, 8                 ; cgp*128*2
    s_add_u32 s59, s38, s41
    s_mul_i32 s57, s79, {64*3840}
    s_add_u32 s38, s59, s57
    s_lshl_b32 s43, s32, 12
    s_add_u32 s43, s43, {WQO}
    """)
    def p_dma():
        g = x_dma("s52")
        for j in range(4):
            g.append([f"s_add_u32 m0, s53, {j*1024}",
                      (f"s_add_u32 s48, s38, {j*4*3840}"),
                      f"buffer_load_dwordx4 v12, s[20:23], s48 offen lds"])
        g.append(adv_group(64*3840))
        return g
    def stage_issue(st, dmaf):
        A(f"s_add_u32 s52, s42, {st*SLOT}")
        A(f"s_add_u32 s53, s43, {st*SLOT}")
        for grp in dmaf():
            for l in grp: A(l)
    if prof: wl_stamp(A, 63, 0)
    stage_issue(0, p_dma)
    if prof: wl_stamp(A, 63, 1)
    A("s_barrier")
    if prof: wl_stamp(A, 63, 2)
    LATE_P = True
    A("s_lshr_b32 s41, s32, 1")
    A("s_lshl_b32 s41, s41, 13")
    xfrag_addr("s41")
    A(f"""
    v_bfe_u32 v14, v2, 2, 2                ; r
    v_lshl_add_u32 v15, v13, 3, v14
    v_lshlrev_b32 v15, 8, v15
    v_bfe_u32 v3, v2, 4, 1
    v_lshl_add_u32 v15, v3, 5, v15
    v_and_b32 v3, 3, v2
    v_lshl_add_u32 v15, v3, 3, v15
    v_add_u32 v15, {WQO}, v15
    s_and_b32 s41, s32, 1
    s_lshl_b32 s41, s41, 1
    v_xor_b32 v3, s41, v14                 ; ct ^ r
    v_lshl_add_u32 v60, v3, 6, v15
    v_xor_b32 v3, 1, v3
    v_lshl_add_u32 v61, v3, 6, v15
    """)
    if prof: wl_stamp(A, 63, 3)
    stage_issue(1, p_dma)
    if prof: wl_stamp(A, 63, 4)
    for i in range(64): A(f"v_mov_b32 v{64+i}, 0")
    def p_reads(ks, fs):
        b = 16 + 16*fs
        return [
            f"ds_read_b128 v[{b}:{b+3}], v{4+ks}",
            f"ds_read_b64_tr_b16 v[{b+8}:{b+9}], v8 offset:{ks*4096}",
            f"ds_read_b64_tr_b16 v[{b+10}:{b+11}], v8 offset:{ks*4096 + 1024}",
            f"ds_read_b128 v[{b+4}:{b+7}], v{4+ks} offset:4096",
            f"ds_read_b64_tr_b16 v[{b+12}:{b+13}], v9 offset:{ks*4096}",
            f"ds_read_b64_tr_b16 v[{b+14}:{b+15}], v9 offset:{ks*4096 + 1024}",
        ]
    def p_mfmas(normal):
        def f(fs):
            b = 16 + 16*fs
            out = []
            for rt in range(2):
                for ct in range(2):
                    d = 64 + 16*(2*rt + ct)
                    x = f"v[{b+4*rt}:{b+4*rt+3}]"; w = f"v[{b+8+4*ct}:{b+8+4*ct+3}]"
                    a_, b_ = (x, w) if normal else (w, x)
                    out.append(f"v_mfma_f32_32x32x16_bf16 v[{d}:{d+15}], {a_}, {b_}, v[{d}:{d+15}]")
            return out
        return f
    A(f"""
    s_lshr_b32 s41, s32, 1
    s_lshl_b32 s41, s41, 1
    s_lshl_b32 s44, s34, 2
    s_add_u32 s44, s44, s41                ; T (rt'=0)
    s_cmp_eq_u32 s33, 3
    s_cbranch_scc1 Lk1_mainV
    s_cmp_eq_u32 s33, 1
    s_cbranch_scc0 Lk1_isK
    s_mul_i32 s68, s44, 1280
    s_add_u32 s68, s68, {QF_OFF}
    s_mov_b32 s49, {HSQ}
    s_mov_b32 s70, {f32bits(QSCALE):#x}
    s_branch Lk1_qk
Lk1_isK:
    s_lshr_b32 s68, s44, 3
    s_mul_i32 s68, s68, {CH}
    s_and_b32 s41, s44, 7
    s_mul_i32 s41, s41, 1280
    s_add_u32 s68, s68, s41
    s_add_u32 s68, s68, {KV_OFF}
    s_mov_b32 s49, {HSK}
    s_mov_b32 s70, 1.0
Lk1_qk:
    s_mov_b32 s71, s70
    s_and_b32 s41, s32, 1
    s_lshl_b32 s41, s41, 4
    s_lshl_b32 s55, s46, 5
    s_add_u32 s55, s55, s41                ; G0 base
    v_lshrrev_b32 v13, 5, v2               ; hf
    v_and_b32 v3, 31, v2                   ; token
    v_lshlrev_b32 v14, 4, v3
    v_lshlrev_b32 v15, 3, v3
    v_add_u32 v15, 1024, v15
    """)
    for sl in range(8):
        d = 48 + sl
        A(f"""
        v_add_u32 v16, {2*sl}, v13
        v_add_u32 v16, s55, v16                ; G
        v_mul_u32_u24 v17, 205, v16
        v_lshrrev_b32 v17, 10, v17             ; h = G/5
        v_mul_u32_u24 v18, 5, v17
        v_sub_u32 v18, v16, v18                ; j
        v_mul_lo_u32 v17, v17, s49             ; h*HS
        v_and_b32 v19, 1, v18
        v_lshlrev_b32 v19, 9, v19              ; (j&1)*512
        v_add_u32 v19, v19, v14
        v_cmp_eq_u32 vcc, 4, v18
        v_cmp_gt_u32 s[72:73], 2, v18
        s_nop 0
        v_cndmask_b32 v19, v19, v15, vcc
        """)
        if sl == 0:
            A(f"""
            v_mov_b32 v20, 10
            v_cndmask_b32 v20, v20, 2, vcc
            v_cndmask_b32 v20, v20, 1, s[72:73]
            """)
        else:
            A(f"""
            v_mov_b32 v20, 0
            v_cndmask_b32 v20, v20, 2, vcc
            v_cndmask_b32 v20, v20, {1 if sl < 7 else 2}, s[72:73]
            """)
        A(f"""
        v_add_u32 v19, v19, v17
        v_add_u32 v{d}, v19, v20
        """)
    loop("k1T", 6, p_reads, p_mfmas(False), p_dma, 2)
    for rt in range(2):
        for sl in range(8):
            r = 64 + 16*(2*rt + (sl >> 2)) + 4*(sl & 3)
            t = 16 + 16*rt + 2*sl
            A(f"""
            v_pk_mul_f32 v[{r}:{r+1}], v[{r}:{r+1}], s[70:71]
            v_pk_mul_f32 v[{r+2}:{r+3}], v[{r+2}:{r+3}], s[70:71]
            v_cvt_pk_bf16_f32 v{t}, v{r}, v{r+1}
            v_cvt_pk_bf16_f32 v{t+1}, v{r+2}, v{r+3}
            """)
    for sl in range(8):
        lab = A.label("qk")
        A(f"""
        v_and_b32 v56, 3, v{48+sl}
        v_and_b32 v57, -4, v{48+sl}
        """)
        if sl < 7:
            A(f"""
            v_cmp_eq_u32 vcc, 1, v56
            s_nop 1
            s_mov_b64 exec, vcc
            s_cbranch_execz {lab}_a
            buffer_store_dwordx4 v[{16+2*sl}:{19+2*sl}], v57, s[24:27], s68 offen{SCQ}
            buffer_store_dwordx4 v[{32+2*sl}:{35+2*sl}], v57, s[24:27], s68 offen offset:1280{SCQ}
            {lab}_a:
            s_mov_b64 exec, -1
            """)
        A(f"""
        v_cmp_eq_u32 vcc, 2, v56
        s_nop 1
        s_mov_b64 exec, vcc
        s_cbranch_execz {lab}_b
        buffer_store_dwordx2 v[{16+2*sl}:{17+2*sl}], v57, s[24:27], s68 offen{SCQ}
        buffer_store_dwordx2 v[{32+2*sl}:{33+2*sl}], v57, s[24:27], s68 offen offset:1280{SCQ}
        {lab}_b:
        s_mov_b64 exec, -1
        """)
    A("s_branch Lk1_end")
    A("Lk1_mainV:")
    A(f"""
    s_lshr_b32 s68, s44, 3
    s_mul_i32 s68, s68, {CH}
    s_and_b32 s41, s44, 7
    s_mul_i32 s41, s41, {VT}
    s_add_u32 s68, s68, s41
    s_add_u32 s68, s68, {KV_OFF + VPART}
    s_and_b32 s41, s32, 1
    s_lshl_b32 s41, s41, 6
    s_lshl_b32 s55, s46, 7
    s_add_u32 s55, s55, s41
    v_and_b32 v3, 31, v2
    v_lshrrev_b32 v13, 5, v2               ; hf
    v_mul_u32_u24 v14, {VH}, v13
    s_mov_b32 s49, {HSK}
    """)
    for ct in range(2):
        A(f"""
        v_add_u32 v16, {32*ct}, v3
        v_add_u32 v16, s55, v16                ; c
        v_mul_u32_u24 v17, 3277, v16
        v_lshrrev_b32 v17, 16, v17             ; h
        v_mul_u32_u24 v18, 20, v17
        v_sub_u32 v18, v16, v18                ; dh
        v_mul_lo_u32 v17, v17, s49
        v_cmp_eq_u32 s[{72+2*ct}:{73+2*ct}], 0, v18
        """)
        vslot(A, 18, 20, 21)
        A(f"""
        v_lshl_add_u32 v19, v20, 4, v17
        v_add_u32 v{48+ct}, v19, v14
        """)
    loop("k1N", 6, p_reads, p_mfmas(True), p_dma, 2)
    for ct in range(2):
        for rt in range(2):
            for j in range(2):
                r = 64 + 16*(2*rt + ct) + 8*j
                t = 32 + 4*(2*rt + j)
                for m in range(4):
                    A(f"v_cvt_pk_bf16_f32 v{t+m}, v{r+2*m}, v{r+2*m+1}")
                A(f"buffer_store_dwordx4 v[{t}:{t+3}], v{48+ct}, s[24:27], s68 offen offset:{rt*VT + j*2*VH}{SC}")
    A("s_branch Lk1_end")

    A("Lk1_gate:")
    srd(A, 28, 12, GW_BYTES)
    A(f"""
    s_mul_i32 s41, s32, 320
    s_add_u32 m0, s41, {GATE_LDS}
    v_lshlrev_b32 v12, 4, v2
    v_cmp_gt_u32 vcc, 20, v2
    s_and_saveexec_b64 s[76:77], vcc
    buffer_load_dwordx4 v12, s[28:31], s41 offen lds
    s_mov_b64 exec, s[76:77]
    """)
    def g_dma():
        g = x_dma("s52")
        g.append(adv_group(0))
        return g
    for st in range(2):
        A(f"s_add_u32 s52, s42, {st*SLOT}")
        for grp in g_dma():
            for l in grp: A(l)
        if st == 0: A("s_barrier")
    A("s_lshl_b32 s41, s32, 12")
    xfrag_addr("s41")
    A(f"""
    v_lshlrev_b32 v9, 4, v13               ; hf*16
    v_add_u32 v62, {GATE_LDS}, v9
    s_lshl_b32 s57, s69, 7
    v_add_u32 v9, s57, v62
    v_mov_b32 v60, 0
    s_mov_b32 s43, 0
    """)
    for i in range(16): A(f"v_mov_b32 v{64+i}, 0")
    def g_reads(ks, fs):
        b = 16 + 16*fs
        out = [f"ds_read_b128 v[{b}:{b+3}], v{4+ks}", f"ds_read_b128 v[{b+4}:{b+7}], v9 offset:{ks*32}"]
        if ks == 3:
            if ROT == 2:
                out += ["s_add_u32 s69, s69, 1", "s_cmp_eq_u32 s69, 10", "s_cselect_b32 s69, 0, s69", "s_lshl_b32 s57, s69, 7", "v_add_u32 v9, s57, v62"]
            else:
                out += ["s_add_u32 s69, s69, 1", "s_add_u32 s57, s69, s78", "s_sub_u32 s57, s57, 2", "s_and_b32 s57, s57, 7", "s_add_u32 s57, s57, 2",
                        "s_cmp_lt_u32 s69, 2", "s_cselect_b32 s57, s69, s57", "s_lshl_b32 s57, s57, 7", "v_add_u32 v9, s57, v62"]
        return out
    def g_mfmas(fs):
        b = 16 + 16*fs
        return [f"v_mfma_f32_32x32x16_bf16 v[64:79], v[{b+4}:{b+7}], v[{b}:{b+3}], v[64:79]"]
    A(f"s_waitcnt vmcnt(2)")
    A("s_barrier")
    A(f"s_add_u32 s52, s42, {2*SLOT}")
    for grp in g_dma():
        for l in grp: A(l)
    if prof:
        A("s_mov_b32 s90, 0")
    for l in set_slot(0, "0"): A(l)
    for l in g_reads(0, 0): A(l)
    A("s_mov_b32 s40, 0")
    A(f"s_mov_b32 s50, {SLOT}")
    A("s_mov_b32 s51, 0")
    A("Lk1g_loop:")
    for ks in range(3):
        fs = ks & 1
        for l in g_reads(ks + 1, fs ^ 1): A(l)
        A("s_waitcnt lgkmcnt(2)")
        for l in g_mfmas(fs): A(l)
    A(f"""
    s_cmp_lt_u32 s40, 8
    s_cbranch_scc1 Lk1g_a
    s_waitcnt vmcnt(0)
Lk1g_a:
    s_waitcnt vmcnt(2) lgkmcnt(0)
    s_barrier
    """)
    for l in set_slot(0, "s50"): A(l)
    for l in g_mfmas(1): A(l)
    for l in g_reads(0, 0): A(l)
    A(f"""
    s_cmp_lt_u32 s40, 7
    s_cbranch_scc0 Lk1g_b
    s_add_u32 s52, s51, s42
    """)
    for grp in g_dma():
        for l in grp: A(l)
    A(f"""
Lk1g_b:
    s_mov_b32 s51, s50
    s_add_u32 s50, s50, {SLOT}
    s_cmp_ge_u32 s50, {3*SLOT}
    s_cselect_b32 s50, 0, s50
    s_add_u32 s40, s40, 1
    s_cmp_lt_u32 s40, 10
    s_cbranch_scc1 Lk1g_loop
    s_waitcnt lgkmcnt(0)
    s_nop 15
    v_mul_f32 v16, {f32bits(-LOG2E):#x}, v64
    v_exp_f32 v16, v16
    s_nop 0
    v_add_f32 v16, 1.0, v16
    v_rcp_f32 v16, v16
    s_lshl_b32 s44, s34, 2
    s_add_u32 s44, s44, s32                ; T
    s_lshl_b32 s44, s44, 7                 ; *32*4 bytes
    s_add_u32 s44, s44, {G_OFF}
    v_lshlrev_b32 v17, 2, v2
    v_cmp_gt_u32 vcc, 32, v2
    s_and_saveexec_b64 s[76:77], vcc
    buffer_store_dword v16, v17, s[24:27], s44 offen{SC}
    s_mov_b64 exec, s[76:77]
    s_branch Lk1_end
    """)

    A("Lk1_R:")
    if prof:
        A("v_writelane_b32 v61, s87, 8")
        wl_stamp(A, 61, 9)
    srd(A, 20, 8, W1_BYTES)
    srd(A, 28, 10, B1_BYTES)
    A(f"""
    s_sub_u32 s47, s32, 4
    s_mul_i32 s41, s35, 192
    v_lshrrev_b32 v3, 5, v2
    v_lshlrev_b32 v3, 4, v3
    """)
    if prof: wl_stamp(A, 61, 12)
    A(f"""
    buffer_load_dwordx4 v[112:115], v3, s[28:31], s41 offen
    """)
    if prof: wl_stamp(A, 61, 13)
    A(f"""
    buffer_load_dwordx4 v[116:119], v3, s[28:31], s41 offen offset:32
    buffer_load_dwordx4 v[120:123], v3, s[28:31], s41 offen offset:64
    buffer_load_dwordx4 v[124:127], v3, s[28:31], s41 offen offset:96
    buffer_load_dwordx4 v[48:51], v3, s[28:31], s41 offen offset:128
    buffer_load_dwordx4 v[52:55], v3, s[28:31], s41 offen offset:160
    """)
    if prof: wl_stamp(A, 61, 14)
    for j, reg in enumerate((12, 62, 63)):
        A(f"""
        s_mul_i32 s41, s47, 192
        s_add_u32 s41, s41, {64*j}
        v_add_u32 v13, s41, v2                 ; t
        v_mul_u32_u24 v14, 5462, v13
        v_lshrrev_b32 v14, 16, v14             ; t/12
        v_mul_u32_u24 v15, 12, v14
        v_sub_u32 v15, v13, v15
        v_mul_u32_u24 v14, 3072, v14
        v_lshl_add_u32 v{reg}, v15, 4, v14
        """)
    A(f"""
    s_mul_i32 s59, s35, 192
    s_mul_i32 s57, s79, {64*3072}
    s_add_u32 s38, s59, s57
    s_mul_i32 s43, s47, 3072
    s_add_u32 s43, s43, {W1O}
    """)
    def r_dma():
        g = x_dma("s52")
        for j, reg in enumerate((12, 62, 63)):
            g.append([f"s_add_u32 m0, s53, {j*1024}", "s_nop 0",
                      f"buffer_load_dwordx4 v{reg}, s[20:23], s38 offen lds"])
        g.append(adv_group(64*3072))
        return g
    def r_stage(st):
        A(f"s_add_u32 s52, s42, {st*SLOT}")
        A(f"s_add_u32 s53, s43, {st*SLOT}")
        for grp in r_dma():
            for l in grp: A(l)
    if prof: wl_stamp(A, 61, 0)
    r_stage(0)
    if prof: wl_stamp(A, 61, 1)
    A("s_barrier")
    A("s_lshl_b32 s41, s47, 12")
    xfrag_addr("s41")
    A(f"""
    v_bfe_u32 v14, v2, 2, 2
    v_lshl_add_u32 v15, v13, 3, v14
    v_mul_u32_u24 v15, 192, v15
    v_bfe_u32 v3, v2, 4, 1
    v_lshl_add_u32 v15, v3, 5, v15
    v_and_b32 v3, 3, v2
    v_lshrrev_b32 v1, 1, v3
    v_and_b32 v3, 1, v3
    v_lshl_or_b32 v3, v3, 1, v1
    v_lshl_add_u32 v15, v3, 3, v15
    v_add_u32 v60, {W1O}, v15
    """)
    if prof: wl_stamp(A, 61, 2)
    r_stage(1)
    if prof: wl_stamp(A, 61, 3)
    A("s_waitcnt vmcnt(10)")
    if prof:
        wl_stamp(A, 61, 4)
    bsrc = [112, 116, 120, 124, 48, 52]
    for ct in range(3):
        for half in range(2):
            for m in range(4):
                src = bsrc[2*ct + half] + m
                d = 64 + 16*ct + 8*half + 2*m
                A(f"v_lshlrev_b32 v{d}, 16, v{src}")
                A(f"v_and_b32 v{d+1}, 0xffff0000, v{src}")
    def r_reads(ks, fs):
        b = 16 + 16*fs
        out = [f"ds_read_b128 v[{b}:{b+3}], v{4+ks}"]
        for ct in range(3):
            out.append(f"ds_read_b64_tr_b16 v[{b+4+4*ct}:{b+5+4*ct}], v8 offset:{ks*16*192 + ct*64}")
            out.append(f"ds_read_b64_tr_b16 v[{b+6+4*ct}:{b+7+4*ct}], v8 offset:{ks*16*192 + 4*192 + ct*64}")
        return out
    def r_mfmas(fs):
        b = 16 + 16*fs
        return [f"v_mfma_f32_32x32x16_bf16 v[{64+16*ct}:{64+16*ct+15}], v[{b+4+4*ct}:{b+7+4*ct}], v[{b}:{b+3}], v[{64+16*ct}:{64+16*ct+15}]" for ct in range(3)]
    loop("k1R", 5, r_reads, r_mfmas, r_dma, 1)
    A("s_setprio 2")
    A(f"""
    s_lshl_b32 s44, s34, 2
    s_add_u32 s44, s44, s47                ; T
    s_mul_i32 s45, s44, {2*48*1024}
    s_mul_i32 s41, s35, {3*1024}
    s_add_u32 s45, s45, s41
    s_add_u32 s45, s45, {ACT_OFF}
    v_bfe_u32 v13, v2, 4, 1                ; token>>4
    v_mul_u32_u24 v13, {48*1024}, v13
    v_lshrrev_b32 v14, 5, v2               ; hf
    v_lshl_add_u32 v13, v14, 8, v13
    v_and_b32 v14, 15, v2
    v_lshl_add_u32 v13, v14, 4, v13
    s_mov_b32 s54, {f32bits(LOG2E):#x}
    s_mov_b32 s55, s54
    v_mov_b32 v2, 2.0
    v_mov_b32 v3, 2.0
    """)
    def mish8(r, t0):
        for p in range(4):
            A(f"v_pk_mul_f32 v[{t0+2*p}:{t0+2*p+1}], v[{r+2*p}:{r+2*p+1}], s[54:55]")
        for i in range(8):
            A(f"v_exp_f32 v{t0+i}, v{t0+i}")
        for p in range(4):
            A(f"v_pk_add_f32 v[{t0+8+2*p}:{t0+8+2*p+1}], v[{t0+2*p}:{t0+2*p+1}], v[2:3]")
        for p in range(4):
            A(f"v_pk_fma_f32 v[{t0+2*p}:{t0+2*p+1}], v[{t0+2*p}:{t0+2*p+1}], v[{t0+8+2*p}:{t0+8+2*p+1}], v[2:3]")
        for i in range(8):
            A(f"v_rcp_f32 v{t0+i}, v{t0+i}")
        A("s_nop 0")
        for p in range(4):
            A(f"v_pk_fma_f32 v[{t0+2*p}:{t0+2*p+1}], v[{t0+2*p}:{t0+2*p+1}], -2.0, 1.0 op_sel_hi:[1,0,0]")
        for p in range(4):
            A(f"v_pk_mul_f32 v[{r+2*p}:{r+2*p+1}], v[{r+2*p}:{r+2*p+1}], v[{t0+2*p}:{t0+2*p+1}]")
    k = 0
    for ct in range(3):
        for j in range(2):
            r = 64 + 16*ct + 8*j
            mish8(r, 16)
            t = 32 + 4*k; k += 1
            for m in range(4):
                A(f"v_cvt_pk_bf16_f32 v{t+m}, v{r+2*m}, v{r+2*m+1}")
            if not fused:
                A(f"buffer_store_dwordx4 v[{t}:{t+3}], v13, s[24:27], s45 offen offset:{ct*1024 + j*512}{SC}")
    if fused:
        lds_spin(A, FL + LF_FULL, 1, 8, tmp=(16, 17), sleep=4)
        k = 0
        for ct in range(3):
            for j in range(2):
                t = 32 + 4*k; k += 1
                A(f"buffer_store_dwordx4 v[{t}:{t+3}], v13, s[24:27], s45 offen offset:{ct*1024 + j*512}{SC}")
    A("s_branch Lk1_endR" if fused else "s_branch Lk1_end")
    A("Lk1_H:")
    if fused:
        A(f"""
        s_cmp_eq_u32 s32, 8
        s_cbranch_scc1 Lk1_H0
        s_cmp_eq_u32 s32, 10
        s_cbranch_scc0 Lk1_Hn2
        v_lshlrev_b32 v3, 2, v2
        v_add_u32 v3, {FL}, v3
        v_mov_b32 v4, 0
        v_cmp_gt_u32 vcc, 32, v2
        s_and_saveexec_b64 s[50:51], vcc
        ds_write_b32 v3, v4
        s_mov_b64 exec, s[50:51]
        s_waitcnt lgkmcnt(0)
Lk1_Hn2:
        s_cmp_eq_u32 s32, 9
        s_cbranch_scc0 Lk1_Hplain
        s_load_dwordx2 s[50:51], s[0:1], 72    ; d_debug
        s_waitcnt lgkmcnt(0)
        """)
        srd(A, 52, 50, 256)
        A(f"""
        v_mov_b32 v4, 0
        s_cmp_eq_u32 s2, 0
        s_cbranch_scc0 Lk1_notag0
        s_memrealtime s[50:51]
        s_waitcnt lgkmcnt(0)
        s_or_b32 s50, s50, 1
        v_mov_b32 v3, s50
        s_mov_b64 exec, 1
        buffer_store_dword v3, v4, s[52:55], 0 offen sc1
        s_mov_b64 exec, -1
Lk1_notag0:
        s_barrier
        s_barrier
        s_barrier
        s_mov_b32 s50, 0x40000
Lk1_tagpoll:
        buffer_load_dword v3, v4, s[52:55], 0 offen sc1
        s_waitcnt vmcnt(0)
        v_readfirstlane_b32 s51, v3
        s_nop 3
        s_cmp_lg_u32 s51, 0
        s_cbranch_scc1 Lk1_gottag
        s_sleep 4
        s_sub_u32 s50, s50, 1
        s_cbranch_scc0 Lk1_tagpoll
Lk1_gottag:
        v_mov_b32 v4, {FL + LF_TAG}
        ds_write_b32 v4, v3
        s_waitcnt lgkmcnt(0)
        """)
        for i in range(9): A("s_barrier")
        A("s_branch Lattn_entry")
        A("Lk1_Hplain:")
        for i in range(12): A("s_barrier")
        A("s_branch Lattn_entry")
        A("Lk1_H0:")
    if True:
        A(f"""
        s_and_b32 s41, s2, 7
        s_and_b32 s43, s41, 1                  ; rh
        s_lshr_b32 s44, s41, 1                 ; cq
        s_lshr_b32 s45, s2, 3                  ; i
        v_mov_b32 v13, 0x7ffffff0
        s_lshl_b32 s46, s43, 10
        s_lshl_b32 s47, s45, 5
        s_add_u32 s46, s46, s47
        v_add_u32 v3, s46, v2
        v_mul_u32_u24 v3, 1280, v3
        v_cmp_gt_u32 vcc, 32, v2
        s_nop 1
        v_cndmask_b32 v4, v13, v3, vcc
        v_lshrrev_b32 v3, 3, v2
        s_lshl_b32 s47, s45, 1
        v_add_u32 v3, s47, v3
        v_mul_u32_u24 v3, 3840, v3
        v_and_b32 v5, 7, v2
        v_lshlrev_b32 v5, 7, v5
        s_lshl_b32 s48, s44, 10
        v_add_u32 v5, s48, v5
        v_cmp_gt_u32 vcc, 3840, v5
        v_add_u32 v5, v5, v3
        v_cmp_gt_u32 s[50:51], 16, v2
        s_and_b64 vcc, vcc, s[50:51]
        s_nop 1
        v_cndmask_b32 v5, v13, v5, vcc
        ; W1: lanes<12: (2i + lane/6)*3072 + cq*768 + (lane%6)*128
        v_cmp_lt_u32 vcc, 5, v2
        v_mov_b32 v6, 0
        v_mov_b32 v7, 1
        v_cndmask_b32 v3, v6, v7, vcc
        v_mul_u32_u24 v6, 6, v3
        v_sub_u32 v6, v2, v6
        v_lshlrev_b32 v6, 7, v6
        v_add_u32 v3, s47, v3
        v_mul_u32_u24 v3, 3072, v3
        v_add_u32 v6, v6, v3
        s_mul_i32 s48, s44, 768
        v_add_u32 v6, s48, v6
        v_cmp_gt_u32 vcc, 12, v2
        s_nop 1
        v_cndmask_b32 v6, v13, v6, vcc
        s_barrier
        """)
        def PF(st):
            A(f"s_mov_b32 s46, {st*128}")
            A(f"buffer_load_dword v16, v4, s[16:19], s46 offen")
            A(f"s_mov_b32 s47, {st*64*3840}")
            A(f"buffer_load_dword v17, v5, s[60:63], s47 offen")
            A(f"s_mov_b32 s48, {st*64*3072}")
            A(f"buffer_load_dword v18, v6, s[64:67], s48 offen")
        def unit_start(u):
            A(f"""
            s_add_u32 s41, s2, {256*u}
            s_mul_i32 s45, s41, 6554
            s_lshr_b32 s45, s45, 16                ; ksg
            s_mul_i32 s47, s45, 10
            s_sub_u32 s47, s41, s47                ; blk
            s_cmp_lt_u32 s45, 48
            s_cselect_b32 s96, s80, s82
            s_cselect_b32 s97, s81, s83
            s_mov_b32 s98, {W2_BYTES}
            s_cselect_b32 s98, s98, {WO_BYTES}
            s_cselect_b32 s100, 0, 48
            s_and_b32 s97, s97, 0xffff
            s_mov_b32 s99, 0x00020000
            s_sub_u32 s100, s45, s100
            s_mul_i32 s100, s100, {32*1280}
            s_lshl_b32 s101, s47, 7
            s_add_u32 s100, s100, s101
            s_lshl_b32 s77, s47, 2                 ; c0
            s_mul_i32 s101, s45, 5120
            s_cmp_lt_u32 s41, 680
            s_cselect_b32 s76, 1, 0
            s_cbranch_scc0 Lk1_us{u}
            """)
            for j in range(4):
                A(f"s_mov_b32 m0, {UNIT_LDS + j*1024}")
                A(f"s_add_u32 s48, s100, {j*8*1280}")
                A(f"buffer_load_dwordx4 v8, s[96:99], s48 offen lds")
            A(f"Lk1_us{u}:")
        def unit_finish(u):
            A(f"""
            s_cmp_eq_u32 s76, 1
            s_cbranch_scc0 Lk1_uf{u}
            s_waitcnt vmcnt(0)
            """)
            for cc in range(4):
                A(f"ds_read_b64_tr_b16 v[{20+4*cc}:{21+4*cc}], v9 offset:{cc*32}")
                A(f"ds_read_b64_tr_b16 v[{22+4*cc}:{23+4*cc}], v9 offset:{cc*32 + 512}")
            A("s_waitcnt lgkmcnt(0)")
            for cc in range(4):
                A(f"""
                s_add_u32 s41, s77, {cc}               ; c
                s_mul_i32 s45, s41, 205
                s_lshr_b32 s45, s45, 10                ; cg8 = c/5
                s_mul_i32 s47, s45, 5
                s_sub_u32 s47, s41, s47                ; ct
                s_mul_i32 s45, s45, {WF_CG}
                s_lshl_b32 s47, s47, 10
                s_add_u32 s45, s45, s47
                s_add_u32 s45, s45, s101
                s_add_u32 s45, s45, {WF_OFF}
                buffer_store_dwordx4 v[{20+4*cc}:{23+4*cc}], v10, s[24:27], s45 offen{SCW}
                """)
            A(f"Lk1_uf{u}:")
        A(f"""
        s_lshl_b32 s41, s2, 6
        v_add_u32 v11, s41, v2
        v_lshrrev_b32 v12, 9, v11
        s_mov_b32 s41, {HSK}
        v_mul_lo_u32 v12, v12, s41             ; h*HSK
        v_bfe_u32 v13, v11, 6, 3
        v_mul_u32_u24 v13, {CH}, v13
        v_add_u32 v12, v12, v13
        v_bfe_u32 v13, v11, 3, 3               ; tile&7
        v_mul_u32_u24 v13, {VT}, v13
        v_add_u32 v12, v12, v13
        v_bfe_u32 v13, v11, 1, 2
        v_mul_u32_u24 v13, {VH}, v13
        v_add_u32 v12, v12, v13
        v_and_b32 v13, 1, v11
        v_mul_u32_u24 v14, 112, v13
        v_add_u32 v12, v12, v14
        v_add_u32 v12, {KV_OFF + VPART + 128}, v12
        v_cmp_eq_u32 vcc, 0, v13
        v_mov_b32 v14, 0x3f803f80
        s_nop 0
        v_cndmask_b32 v20, 0, v14, vcc
        v_mov_b32 v21, v20
        v_mov_b32 v22, v20
        v_mov_b32 v23, v20
        buffer_store_dwordx4 v[20:23], v12, s[24:27], 0 offen{SC}
        v_lshrrev_b32 v8, 3, v2
        v_mul_u32_u24 v8, 1280, v8
        v_and_b32 v3, 7, v2
        v_lshl_add_u32 v8, v3, 4, v8
        v_lshrrev_b32 v9, 4, v2
        v_bfe_u32 v3, v2, 2, 2
        v_lshl_add_u32 v9, v9, 3, v3
        v_lshlrev_b32 v9, 7, v9
        v_and_b32 v3, 3, v2
        v_lshl_add_u32 v9, v3, 3, v9
        v_add_u32 v9, {UNIT_LDS}, v9
        v_lshlrev_b32 v10, 4, v2
        """)
        if pf == 1:
            PF(2); PF(3)
        A("s_barrier")
        for k in range(6):
            if pf == 1: PF(4 + k)
            A("s_barrier")
        unit_start(0)
        A("s_barrier")
        unit_finish(0); unit_start(1)
        A("s_barrier")
        unit_finish(1); unit_start(2)
        A("s_barrier")
        unit_finish(2)
        A("s_barrier")
    if fused:
        A("s_waitcnt vmcnt(0)")
        if mprof: wl_stamp(A, 160, 0)
        get_tag(A, FL + LF_TAG, "s50")
        publish256(A, 24, F1W_OFF, "s50")
        A("s_branch Lattn_entry")
    else:
        A("s_endpgm")
    if fused:
        A("Lk1_endR:")
        A("s_waitcnt vmcnt(0)")
        A(f"s_sub_u32 s41, s32, 4")
        A("s_lshl_b32 s41, s41, 2")
        A(f"s_add_u32 s41, s41, {FL + LF_RD}")
        A("v_mov_b32 v4, s41")
        A("v_mov_b32 v5, 1")
        A("ds_write_b32 v4, v5")
        A("s_branch Lshadow_entry")
        A("Lk1_end:")
        if mprof: wl_stamp(A, 160, 1)
        A("s_waitcnt vmcnt(0)")
        if mprof: wl_stamp(A, 160, 2)
        A("s_lshl_b32 s41, s32, 2")
        A(f"s_add_u32 s41, s41, {FL + LF_PD}")
        A("v_mov_b32 v4, s41")
        A("v_mov_b32 v5, 1")
        A("ds_write_b32 v4, v5")
        A("s_branch Lattn_entry")
        A("Lk1_exit:")
        A("s_endpgm")
        return A.text()
    A("Lk1_end:")
    if prof:
        A("s_memtime s[88:89]")
        A("s_waitcnt lgkmcnt(0)")
        A("s_sub_u32 s88, s88, s92")
        A("s_cmp_ge_u32 s32, 4")
        A("s_cbranch_scc1 Lk1_dbgR")
        A("v_mov_b32 v61, v63")
        A("Lk1_dbgR:")
        A("v_writelane_b32 v61, s88, 11")
        A("v_writelane_b32 v61, s91, 10")
        A(f"""
        s_lshl_b32 s97, s2, 4
        s_add_u32 s97, s97, s32
        s_lshl_b32 s97, s97, 6
        s_add_u32 s97, s97, {DBG_OFF + 0x100000}
        v_and_b32 v4, 63, v0
        v_lshlrev_b32 v4, 2, v4
        v_cmp_gt_u32 vcc, 16, v0
        v_and_b32 v5, 63, v0
        v_cmp_gt_u32 vcc, 16, v5
        s_and_saveexec_b64 s[56:57], vcc
        buffer_store_dword v61, v4, s[24:27], s97 offen
        s_mov_b64 exec, s[56:57]
        """)
        prof_end(A, 0, 24, 32, tmpv=(4, 5, 6, 7, 8), extra="s90")
    if tl: tl2_record(A, 0, 24, 32)
    A("Lk1_exit:")
    A("s_endpgm")
    return A.text(), kdesc(NAME, 128), f"; @launch kernel={NAME} grid=(256,1,1) block=(576,1,1) lds={LDS_BYTES}"
```

```python
from asm import *
from common import *
from k2_shadow import gen_shadow

NAME = "k2_kernel"
SLOT = 24576
SH_BASE = 3 * SLOT
FLAG = SH_BASE + 4 * 20480
LDS_BYTES = FLAG + 128

X_ = [16, 48]
P_ = 80
O_ = 88
C_ = 104
QM = 120
QT = 124
KF = [126, 130]
KT = 134
V0 = 136
V1 = 140
FL = 144

def mf(d, a, b, c):
    cs = "0" if c is None else f"v[{c}:{c+15}]"
    return f"v_mfma_f32_32x32x16_bf16 v[{d}:{d+15}], v[{a}:{a+3}], v[{b}:{b+3}], {cs}"
def mf2b(d, a, b, c):
    cs = "0" if c is None else f"v[{c}:{c+31}]"
    return f"v_mfma_f32_32x32x4_2b_bf16 v[{d}:{d+31}], v[{a}:{a+1}], v[{b}:{b+1}], {cs}"

def vslot(A, row, dst, t1):
    A(f"""
    v_mov_b32 v{dst}, v{row}
    v_add_u32 v{t1}, 12, v{row}
    v_cmp_lt_u32 vcc, 3, v{row}
    s_nop 1
    v_cndmask_b32 v{dst}, v{dst}, v{t1}, vcc
    v_subrev_u32 v{t1}, 1, v{row}
    v_cmp_lt_u32 vcc, 9, v{row}
    s_nop 1
    v_cndmask_b32 v{dst}, v{dst}, v{t1}, vcc
    v_subrev_u32 v{t1}, 8, v{row}
    v_cmp_lt_u32 vcc, 11, v{row}
    s_nop 1
    v_cndmask_b32 v{dst}, v{dst}, v{t1}, vcc
    v_subrev_u32 v{t1}, 5, v{row}
    v_cmp_lt_u32 vcc, 15, v{row}
    s_nop 1
    v_cndmask_b32 v{dst}, v{dst}, v{t1}, vcc
    v_cmp_lt_u32 vcc, 19, v{row}
    s_nop 1
    v_cndmask_b32 v{dst}, v{dst}, 8, vcc
    v_cmp_lt_u32 vcc, 20, v{row}
    s_nop 1
    v_cndmask_b32 v{dst}, v{dst}, 15, vcc
    """)

def gen_k2(prof=False, exp_mode=0, shadow=True, shprio=0, pa=1, pb=2, tl=0, nofb=0, lstamp=0, desc=3, na=10, fused=False, mprof=0):
    A = Asm(10000)
    if not fused:
        A(khead(NAME))
        A(f"""
        s_cmp_ge_u32 s2, 256
        s_cbranch_scc1 Lk2_end
        """)
        if prof: prof_start(A)
        if tl: tl_start(A, 1)
    def ids():
        A(f"""
        s_load_dwordx2 s[4:5], s[0:1], 80
        v_lshrrev_b32 v9, 6, v0
        v_and_b32 v1, 63, v0                   ; lane
        s_and_b32 s20, s2, 7
        v_readfirstlane_b32 s12, v9            ; wave
        s_lshr_b32 s21, s2, 3
        s_and_b32 s22, s21, 3
        s_lshl_b32 s13, s20, 2
        s_add_u32 s13, s13, s22                ; h
        s_lshr_b32 s14, s21, 2                 ; qb
        s_lshl_b32 s15, s14, 3
        s_add_u32 s15, s15, s12                ; T
        """)
    if fused:
        A("Lshadow_entry:")
        ids()
        A("s_branch Lk2_shadow")
        A("Lattn_entry:")
        A("s_setprio 0")
        ids()
    else:
        ids()
        A("s_cmp_ge_u32 s12, 8")
        A("s_cbranch_scc1 Lk2_shadow")
    A(f"""
    s_mul_i32 s16, s13, {HSK}
    s_add_u32 s16, s16, {KV_OFF}
    s_mul_i32 s23, s13, {HSQ}
    s_mul_i32 s24, s15, 1280
    s_add_u32 s23, s23, s24
    s_add_u32 s23, s23, {QF_OFF}
    v_lshlrev_b32 v8, 4, v1                ; lane*16
    v_and_b32 v9, 31, v1
    v_lshrrev_b32 v10, 5, v1               ; hf
    v_lshlrev_b32 v11, 3, v9
    v_add_u32 v11, 1024, v11               ; 1024 + token*8
    s_mul_i32 s25, s12, 3072
    s_add_u32 s17, s16, s25
    s_waitcnt lgkmcnt(0)
    """)
    srd_ws(A, 8, 4, WS_RECORDS)
    def dma_groups(slot_sgpr, slot_imm=0):
        g = []
        for j in range(3):
            m0 = f"s_add_u32 m0, {slot_sgpr}, {slot_imm + j*1024}"
            g.append([m0, f"s_add_u32 s26, s17, {j*1024}", f"buffer_load_dwordx4 v8, s[8:11], s26 offen lds"])
        g.append([f"s_add_u32 s17, s17, {CH}"])
        return g
    def first_loads():
        for grp in dma_groups("s25", 0):
            for l in grp: A(l)
        A(f"""
        buffer_load_dwordx4 v[{QM}:{QM+3}], v8, s[8:11], s23 offen
        buffer_load_dwordx2 v[{QT}:{QT+1}], v11, s[8:11], s23 offen
        """)
        for grp in dma_groups("s25", SLOT):
            for l in grp: A(l)
    if not fused: first_loads()
    A(f"""
    v_cmp_gt_u32 s[28:29], 32, v1          ; lanes < 32
    v_mov_b32 v5, v8
    v_mul_u32_u24 v6, 1280, v10
    v_add_u32 v6, v6, v11
    """)
    vslot(A, 9, 14, 15)
    A(f"""
    v_mul_u32_u24 v7, {VH}, v10
    v_lshl_add_u32 v7, v14, 4, v7
    v_add_u32 v7, {VPART}, v7
    v_mov_b32 v2, v5
    v_mov_b32 v3, v6
    v_mov_b32 v4, v7
    """)
    if not fused:
        A(f"""
        v_lshlrev_b32 v12, 2, v1
        v_add_u32 v12, {FLAG}, v12
        v_mov_b32 v13, 0
        s_cmp_eq_u32 s12, 0
        s_cbranch_scc0 Lk2_noclr
        s_mov_b64 exec, s[28:29]
        ds_write_b32 v12, v13
        s_mov_b64 exec, -1
Lk2_noclr:
        """)
    A(f"""
    v_and_b32 v12, 7, v1
    v_lshlrev_b32 v12, 2, v12
    v_add_u32 v12, {FLAG}, v12             ; v12: full[lane&7] ; +32: free[lane&7]
    s_lshl_b32 s33, s12, 2
    s_add_u32 s33, s33, {FLAG}
    v_mov_b32 v13, s33                     ; v13: own full word ; +32 own free word
    """)
    for i in range(4): A(f"v_mov_b32 v{V1+i}, 0")
    for i in range(4): A(f"v_mov_b32 v{P_+4+i}, 0")
    for i in range(16): A(f"v_mov_b32 v{O_+i}, 0")
    X0 = X_[0]
    if fused:
        A("s_cmp_eq_u32 s12, 4")
        A("s_cbranch_scc0 Lattn_wgo")
        lds_spin(A, FLAG + LF_PD, 1, 4, tmp=(146, 147), sleep=1)
        if mprof: wl_stamp(A, 160, 1)
        get_tag(A, FLAG + LF_TAG, "s35", tmp=(146, 147))
        A(f"""
        s_and_b32 s20, s2, 7
        s_lshr_b32 s21, s2, 3
        s_and_b32 s22, s20, 1
        s_lshl_b32 s22, s22, 3
        s_and_b32 s24, s21, 7
        s_add_u32 s22, s22, s24                ; rb
        s_lshr_b32 s20, s20, 1
        s_lshl_b32 s20, s20, 2
        s_lshr_b32 s21, s21, 3
        s_add_u32 s20, s20, s21                ; cgp
        s_lshl_b32 s20, s20, 6
        s_lshl_b32 s22, s22, 2
        s_add_u32 s20, s20, s22
        s_add_u32 s20, s20, {F1A_OFF}
        v_lshlrev_b32 v146, 10, v1
        v_mov_b32 v147, s35
        s_mov_b64 exec, 0xf
        buffer_store_dword v147, v146, s[8:11], s20 offen sc1
        s_mov_b64 exec, -1
        s_mul_i32 s20, s13, 20
        s_add_u32 s21, s20, 19
        s_lshr_b32 s20, s20, 7
        s_lshr_b32 s21, s21, 7
        v_and_b32 v146, 15, v1
        v_lshlrev_b32 v146, 2, v146
        v_bfe_u32 v147, v1, 4, 1
        v_mov_b32 v148, s20
        v_mov_b32 v149, s21
        v_cmp_eq_u32 vcc, 1, v147
        s_nop 1
        v_cndmask_b32 v148, v148, v149, vcc    ; cb
        v_lshrrev_b32 v147, 5, v1              ; 0: K, 1: V
        v_mul_u32_u24 v147, 5, v147
        v_add_u32 v147, 5, v147
        v_add_u32 v147, v147, v148
        v_lshl_add_u32 v147, v147, 6, v146
        v_lshl_add_u32 v148, v148, 6, v146
        v_bfe_u32 v149, v1, 1, 3
        v_cmp_eq_u32 s[36:37], s14, v149
        v_cmp_gt_u32 vcc, 32, v1
        s_and_b64 s[36:37], s[36:37], vcc
        s_and_b32 s20, s2, 3
        s_lshl_b32 s20, s20, 10
        s_add_u32 s20, s20, {F1A_OFF}
        s_mov_b32 s34, 0x40000
Lattn_poll:
        buffer_load_dword v150, v147, s[8:11], s20 offen sc1
        buffer_load_dword v151, v148, s[8:11], s20 offen sc1
        s_waitcnt vmcnt(0)
        v_cmp_eq_u32 vcc, s35, v150
        v_cmp_eq_u32 s[38:39], s35, v151
        s_orn2_b64 s[38:39], s[38:39], s[36:37]
        s_and_b64 vcc, vcc, s[38:39]
        s_cmp_eq_u64 vcc, exec
        s_cbranch_scc1 Lattn_polled
        s_sleep 2
        s_sub_u32 s34, s34, 1
        s_cbranch_scc0 Lattn_poll
Lattn_polled:
        """)
        if mprof: wl_stamp(A, 160, 2)
        lds_set(A, FLAG + LF_GO, 1, tmp=(146, 147))
        A("s_branch Lattn_go")
        A("Lattn_wgo:")
        lds_spin(A, FLAG + LF_GO, 1, 1, tmp=(146, 147), sleep=1)
        A("Lattn_go:")
        if mprof: wl_stamp(A, 160, 3)
        first_loads()
    A(f"""
    s_waitcnt vmcnt(3) lgkmcnt(0)
    """)
    if fused:
        A(f"v_mov_b32 v{FL}, 1")
        A(f"ds_write_b32 v13, v{FL}")
        lds_spin(A, FLAG + LF_FULL, 1, 8, tmp=(FL, FL + 1), sleep=0, cnt="s34")
        if mprof: wl_stamp(A, 160, 4)
    else:
        A("s_barrier")
    A(f"""
    ds_read_b128 v[{KF[0]}:{KF[0]+3}], v2
    ds_read_b128 v[{KF[1]}:{KF[1]+3}], v2 offset:1280
    ds_read_b64 v[{KT}:{KT+1}], v3
    ds_read_b128 v[{V0}:{V0+3}], v4
    s_waitcnt lgkmcnt(0)
    {mf(X0, KF[0], QM, None)}
    {mf(X0+16, KF[1], QM, None)}
    s_nop 11
    {mf2b(X0, KT, QT, X0)}
    s_nop 15
    s_nop 7
    """)
    A(f"v_max3_f32 v9, v{X0}, v{X0+1}, v{X0+2}")
    for i in range(3, 31, 2):
        A(f"v_max3_f32 v9, v9, v{X0+i}, v{X0+i+1}")
    A(f"v_max_f32 v9, v9, v{X0+31}")
    A(f"""
    v_mov_b32 v10, v9
    s_nop 1
    v_permlane32_swap_b32 v9, v10
    s_nop 1
    v_max_f32 v9, v9, v10
    """)
    for i in range(16): A(f"v_sub_f32 v{C_+i}, 0, v9")
    for i in range(32): A(f"v_sub_f32 v{X0+i}, v{X0+i}, v9")
    A(f"""
    ds_read_b128 v[{KF[0]}:{KF[0]+3}], v2 offset:{2*1280}
    ds_read_b128 v[{KF[1]}:{KF[1]+3}], v2 offset:{3*1280}
    ds_read_b64 v[{KT}:{KT+1}], v3 offset:{2*1280}
    s_mov_b32 s18, 0
    s_mov_b32 s19, {SLOT}
    s_mov_b32 s27, {2*SLOT}
    s_setprio {pa}
    s_cmp_ge_u32 s12, 4
    s_cbranch_scc0 Lk2_noprio
    s_setprio {pb}
Lk2_noprio:
    """)
    if prof:
        A("s_memtime s[90:91]")
        A("s_waitcnt lgkmcnt(0)")
        A("s_sub_u32 s90, s90, s92")
    A0 = A
    class F:
        def __call__(self, l):
            for x in l.strip("\n").split("\n"):
                ls = x.strip()
                if exp_mode == 2 and ls.startswith("v_mfma"): continue
                if exp_mode == 3 and (ls.startswith("v_exp") or ls.startswith("v_cvt")): continue
                if exp_mode == 4 and (ls.startswith("ds_read_b128") or ls.startswith("ds_read_b64")): continue
                if exp_mode == 5 and ls.startswith("v_mfma_f32_32x32x4"): continue
                if exp_mode == 6 and (ls.startswith("ds_read_b128") or ls.startswith("ds_read_b64") or ls.startswith("v_mfma")): continue
                if exp_mode == 7 and ls.startswith("buffer_load"): continue
                A0(x)
        def label(self, b): return A0.label(b)
    if lstamp: wl_stamp(A, 150, 0)
    if mprof: wl_stamp(A, 160, 5)
    A("Lk2_loop:")
    A = F()
    def check(reg, need_sgpr, tag):
        lab = A.label(tag)
        off = 32 if tag == "free" else 0
        A(f"""
        v_cmp_le_u32 vcc, {need_sgpr}, v{reg}
        s_cmp_eq_u64 vcc, exec
        s_cbranch_scc1 {lab}
        s_mov_b32 s34, 0x40000
        {lab}_s:
        s_sub_u32 s34, s34, 1
        s_cbranch_scc1 {lab}
        s_sleep 1
        ds_read_b32 v{reg}, v12 offset:{off}
        s_waitcnt lgkmcnt(0)
        v_cmp_le_u32 vcc, {need_sgpr}, v{reg}
        s_cmp_eq_u64 vcc, exec
        s_cbranch_scc0 {lab}_s
        {lab}:
        """)
    def tile(sc, first, pr, t):
        sn = X_[(pr + 1) & 1]
        kt = (2*pr + 4) & 7
        E = lambda i: f"v_exp_f32 v{sc+i}, v{sc+i}"
        C = lambda p, a: f"v_cvt_pk_bf16_f32 v{P_+p}, v{sc+a}, v{sc+a+1}"
        pre = []
        if desc == 1 and t % 2 == 0: A(f"s_setprio {3 - t // 2}")
        if desc == 2 and t % 2 == 0: A(f"s_setprio {max(1, 3 - t // 2) if t < 6 else 1}")
        if desc == 3: A(f"s_setprio {3 - (t % 4)}")
        if desc in (4, 5): A(f"s_setprio {3 - 2*(t % 2)}")
        if desc == 6: A(f"s_setprio {[3,3,2,2,1,1,0,0][t]}") if t % 2 == 0 else None
        if desc == 7: A(f"s_setprio {[3,2,1,0,0,1,2,3][t]}")
        if desc == 8: A(f"s_setprio {[3,2,2,1,1,0,0,0][t]}")
        A("s_waitcnt lgkmcnt(0)")
        if t == 0:
            A(f"""
            s_waitcnt vmcnt(0)
            s_add_u32 s31, s18, 2
            v_mov_b32 v{FL}, s31
            v_mov_b32 v{FL+1}, s18
            ds_write_b32 v13, v{FL}
            ds_write_b32 v13, v{FL+1} offset:32
            """)
        if t == 4:
            nofull = A.label("nofull")
            A("s_cmp_lt_u32 s18, 7")
            A(f"s_cbranch_scc0 {nofull}")
            A("s_add_u32 s31, s18, 2")
            check(FL + 1, "s31", "full")
            A(f"{nofull}:")
            A("v_add_u32 v2, s19, v5")
            A("v_add_u32 v3, s19, v6")
        if first:
            A(mf(sn, KF[0], QM, C_))
            A(f"ds_read_b128 v[{KF[0]}:{KF[0]+3}], v2 offset:{kt*1280}")
        else:
            A(mf2b(sn, KT, QT, sn))
            A(f"ds_read_b64 v[{KT}:{KT+1}], v3 offset:{kt*1280}")
        if t == 1: A(f"ds_read_b32 v{FL}, v12 offset:32")
        if t == 3: A(f"ds_read_b32 v{FL+1}, v12")
        for i in range(4): A(E(i))
        A(mf(O_, V1, P_+4, O_))
        A(f"ds_read_b128 v[{V1}:{V1+3}], v4 offset:{t*VT + 2*VH}")
        if t == 7:
            A("v_add_u32 v4, s19, v7")
        dg = []
        if t == 2:
            skip = A.label("k2skip")
            A(f"s_cmp_lt_u32 s18, 6")
            A(f"s_cbranch_scc0 {skip}")
            check(FL, "s18", "free")
            A("s_add_u32 s30, s27, s25")
            for grp in dma_groups("s30"):
                for l in grp: A(l)
            A(f"{skip}:")
        A(C(0, 0)); A(E(4)); A(C(1, 2))
        for i in (5, 6, 7): A(E(i))
        if desc == 4: A(f"s_setprio {2 - 2*(t % 2)}")
        if first:
            A(mf(sn + 16, KF[1], QM, C_))
            A(f"ds_read_b128 v[{KF[1]}:{KF[1]+3}], v2 offset:{(kt+1)*1280}")
        A(C(2, 4)); A(E(8)); A(C(3, 6)); A(E(9)); A(E(10))
        A(mf(O_, V0, P_, O_))
        A(f"ds_read_b128 v[{V0}:{V0+3}], v4 offset:{((t+1)&7)*VT}")
        for i in (11, 12, 13): A(E(i))
        A(C(4, 8)); A(E(14)); A(C(5, 10)); A(E(15)); A(C(6, 12)); A(C(7, 14))
    for pr in range(4):
        cur = X_[pr & 1]
        tile(cur, True, pr, 2*pr)
        tile(cur + 16, False, pr, 2*pr + 1)
    A = A0
    A(f"""
    s_mov_b32 s19, s27
    s_add_u32 s27, s27, {SLOT}
    s_cmp_ge_u32 s27, {3*SLOT}
    s_cselect_b32 s27, 0, s27
    s_add_u32 s18, s18, 1
    s_cmp_lt_u32 s18, 8
    s_cbranch_scc1 Lk2_loop
    """)
    if lstamp: wl_stamp(A, 150, 1)
    if mprof: wl_stamp(A, 160, 6)
    A(f"""
    s_waitcnt lgkmcnt(0)
    {mf(O_, V1, P_+4, O_)}
    s_mov_b32 s31, 0
    s_nop 15
Lk2_fin:
    v_mov_b32 v9, v{O_+8}
    v_mov_b32 v10, v{O_+8}
    s_nop 1
    v_permlane32_swap_b32 v9, v10
    s_nop 1
    v_mul_f32 v11, 0, v{O_}
    """)
    for i in range(1, 8): A(f"v_fma_f32 v11, v{O_+i}, 0, v11")
    A(f"v_mul_f32 v14, 0, v{O_+8}")
    for i in range(9, 12): A(f"v_fma_f32 v14, v{O_+i}, 0, v14")
    A(f"""
    v_cndmask_b32 v14, 0, v14, s[28:29]
    v_add_f32 v11, v11, v14
    v_add_f32 v11, v11, v10
    v_mov_b32 v15, 0x53800000              ; 2^40
    v_cmp_nlt_f32 vcc, v11, v15            ; !(l < 2^40)
    s_cmp_eq_u32 s31, 0
    s_cbranch_scc0 Lk2_store
    {"" if nofb else "s_cbranch_vccnz Lk2_fallback"}
Lk2_store:
    v_rcp_f32 v10, v10
    s_mul_i32 s20, s13, 5
    s_mul_i32 s21, s15, 40960
    s_add_u32 s21, s21, {OF_OFF}
    v_lshrrev_b32 v11, 5, v1               ; hf
    v_and_b32 v14, 15, v1
    v_lshlrev_b32 v14, 4, v14              ; token16*16
    v_bfe_u32 v15, v1, 4, 1                ; q>>4
    v_mul_u32_u24 v15, 20480, v15
    v_add_u32 v14, v14, v15
    v_add_u32 v11, s20, v11                ; G (a=0)
    """)
    for a in range(3):
        r = O_ + 4*a
        A(f"""
        v_add_u32 v16, {2*a}, v11
        v_lshrrev_b32 v17, 3, v16
        v_lshlrev_b32 v17, 10, v17
        v_bfe_u32 v18, v16, 1, 2
        v_lshl_add_u32 v17, v18, 8, v17
        v_and_b32 v18, 1, v16
        v_lshl_add_u32 v17, v18, 3, v17
        v_add_u32 v17, v17, v14
        v_mul_f32 v{r}, v{r}, v10
        v_mul_f32 v{r+1}, v{r+1}, v10
        v_mul_f32 v{r+2}, v{r+2}, v10
        v_mul_f32 v{r+3}, v{r+3}, v10
        v_cvt_pk_bf16_f32 v{r}, v{r}, v{r+1}
        v_cvt_pk_bf16_f32 v{r+1}, v{r+2}, v{r+3}
        """)
        if a == 2:
            A("s_mov_b64 exec, s[28:29]")
        A(f"buffer_store_dwordx2 v[{r}:{r+1}], v17, s[8:11], s21 offen sc1")
    A("s_mov_b64 exec, -1")
    A("s_waitcnt vmcnt(0)")
    A("s_barrier")
    A(f"""
    s_cmp_eq_u32 s12, 0
    s_cbranch_scc0 Lk2_nopub
    s_lshl_b32 s20, s14, 5
    s_add_u32 s20, s20, s13                ; qb*32 + h
    s_lshl_b32 s20, s20, 2
    s_add_u32 s20, s20, {OFLAG_OFF}
    """)
    if fused:
        get_tag(A, FLAG + LF_TAG, "s21", tmp=(16, 17))
        A("v_mov_b32 v16, s21")
    else:
        A("v_mov_b32 v16, 1")
    A(f"""
    v_mov_b32 v17, 0
    s_mov_b64 exec, 1
    buffer_store_dword v16, v17, s[8:11], s20 offen sc1
    s_mov_b64 exec, -1
Lk2_nopub:
    """)
    if prof:
        A("s_mov_b64 exec, -1")
        if lstamp: wl_dump(A, 150, 1, 8, 12, 21)
        prof_end(A, 1, 8, 12, tmpv=(16, 17, 18, 19, 20), extra="s90")
    if tl: tl2_record(A, 1, 8, 12)
    if mprof:
        wl_stamp(A, 160, 7)
        wl_dump(A, 160, 1, 8, 12, 21)
        A("s_mov_b32 s90, 0")
        prof_end(A, 1, 8, 12, tmpv=(16, 17, 18, 19, 20), extra="s90")
    A("s_endpgm")

    s = X0
    A(f"""
Lk2_fallback:
    s_mov_b32 s31, 1
    v_and_b32 v9, 31, v1
    v_lshlrev_b32 v11, 3, v9
    v_add_u32 v11, 1024, v11
    v_mov_b32 v14, 0xff800000
    s_mov_b32 s18, 0
Lk2_fb1:
    s_lshr_b32 s20, s18, 3
    s_mul_i32 s20, s20, {CH}
    s_and_b32 s21, s18, 7
    s_mul_i32 s21, s21, 1280
    s_add_u32 s20, s20, s21
    s_add_u32 s20, s20, s16
    buffer_load_dwordx4 v[{KF[0]}:{KF[0]+3}], v8, s[8:11], s20 offen
    buffer_load_dwordx2 v[{KT}:{KT+1}], v11, s[8:11], s20 offen
    s_waitcnt vmcnt(0)
    {mf(s, KF[0], QM, None)}
    {mf(s+16, KF[0], QM, None)}
    s_nop 11
    {mf2b(s, KT, QT, s)}
    s_nop 15
    s_nop 7
    """)
    for i in range(0, 16, 2):
        A(f"v_max3_f32 v14, v14, v{s+i}, v{s+i+1}")
    A(f"""
    s_add_u32 s18, s18, 1
    s_cmp_lt_u32 s18, 64
    s_cbranch_scc1 Lk2_fb1
    v_mov_b32 v15, v14
    s_nop 1
    v_permlane32_swap_b32 v14, v15
    s_nop 1
    v_max_f32 v14, v14, v15
    """)
    for i in range(16): A(f"v_mov_b32 v{O_+i}, 0")
    A(f"""
    s_mov_b32 s18, 0
Lk2_fb2:
    s_lshr_b32 s20, s18, 3
    s_mul_i32 s20, s20, {CH}
    s_and_b32 s21, s18, 7
    s_mul_i32 s22, s21, {VT}
    s_add_u32 s22, s22, s20
    s_add_u32 s22, s22, s16
    s_mul_i32 s21, s21, 1280
    s_add_u32 s20, s20, s21
    s_add_u32 s20, s20, s16
    buffer_load_dwordx4 v[{KF[0]}:{KF[0]+3}], v8, s[8:11], s20 offen
    buffer_load_dwordx2 v[{KT}:{KT+1}], v11, s[8:11], s20 offen
    buffer_load_dwordx4 v[{V0}:{V0+3}], v7, s[8:11], s22 offen
    buffer_load_dwordx4 v[{V1}:{V1+3}], v7, s[8:11], s22 offen offset:{2*VH}
    s_waitcnt vmcnt(0)
    {mf(s, KF[0], QM, None)}
    {mf(s+16, KF[0], QM, None)}
    s_nop 11
    {mf2b(s, KT, QT, s)}
    s_nop 15
    s_nop 7
    """)
    for i in range(16): A(f"v_sub_f32 v{s+i}, v{s+i}, v14")
    for i in range(16): A(f"v_exp_f32 v{s+i}, v{s+i}")
    A("s_nop 0")
    for i in range(8): A(f"v_cvt_pk_bf16_f32 v{P_+i}, v{s+2*i}, v{s+2*i+1}")
    A(f"""
    s_nop 1
    {mf(O_, V0, P_, O_)}
    {mf(O_, V1, P_+4, O_)}
    s_add_u32 s18, s18, 1
    s_cmp_lt_u32 s18, 64
    s_cbranch_scc1 Lk2_fb2
    s_nop 15
    s_branch Lk2_fin
Lk2_end:
    s_endpgm
    """)
    if shadow: gen_shadow(A, prof or mprof, shprio, SH_BASE, FLAG, NA=na, fused=fused)
    else: A("Lk2_shadow:\ns_barrier\ns_barrier\ns_endpgm")
    if fused: return A.text()
    return A.text(), kdesc(NAME, 168), f"; @launch kernel={NAME} grid=(256,1,1) block=(768,1,1) lds={LDS_BYTES}"
```

```python
from asm import *
from common import *

ACC_B = 8
ACC_A = 28
WF = [48, 68]
BF = 88
PH = 20480
NPH = 17

def gen_shadow(A, prof, shprio, SH_BASE, FLAG, scl=" sc1", POLL_SLEEP=4, NA=8, fused=False):
    A(f"""
Lk2_shadow:
    """)
    if prof and fused: stamp(A, 10)
    A(f"""
    s_setprio {shprio}
    s_load_dwordx2 s[30:31], s[0:1], 64    ; out
    s_sub_u32 s40, s12, 8                  ; w
    s_lshr_b32 s41, s13, 3
    s_lshl_b32 s44, s14, 2
    s_add_u32 s44, s44, s41                ; rbk
    s_and_b32 s43, s13, 7                  ; cg8
    s_lshl_b32 s46, s44, 2
    s_add_u32 s46, s46, s40                ; T16
    s_mul_i32 s47, s40, 5120
    s_mul_i32 s49, s43, {WF_CG}
    s_add_u32 s49, s49, s47
    s_add_u32 s49, s49, {WF_OFF}
    s_add_u32 s47, s47, {SH_BASE}
    s_mul_i32 s51, s46, {48*1024}
    s_add_u32 s51, s51, {ACT_OFF}
    s_mul_i32 s52, s46, 20480
    s_add_u32 s52, s52, {OF_OFF}
    v_lshlrev_b32 v2, 4, v1                ; lane*16
    v_add_u32 v3, {SH_BASE}, v2
    v_add_u32 v0, {SH_BASE + 3*PH}, v2
    v_and_b32 v4, 3, v1
    v_lshlrev_b32 v4, 2, v4
    v_add_u32 v4, {FLAG + 64}, v4          ; prog[lane&3]
    s_lshl_b32 s53, s40, 2
    s_add_u32 s53, s53, {FLAG + 64}
    v_mov_b32 v5, s53
    s_waitcnt lgkmcnt(0)
    """)
    srd_ws(A, 8, 4, WS_RECORDS)
    srd(A, 24, 30, OUT_BYTES)
    for i in range(40): A(f"v_mov_b32 v{ACC_B+i}, 0")
    if fused:
        A("s_cmp_eq_u32 s40, 0")
        A("s_cbranch_scc0 Lsh_wgo2")
        lds_spin(A, FLAG + LF_RD, 1, 4, tmp=(6, 7), sleep=2)
        get_tag(A, FLAG + LF_TAG, "s62", tmp=(6, 7))
        A(f"""
        s_and_b32 s54, s2, 7
        s_lshr_b32 s55, s2, 3
        s_and_b32 s56, s54, 1
        s_lshl_b32 s56, s56, 3
        s_and_b32 s57, s55, 7
        s_add_u32 s56, s56, s57                ; rb
        s_lshr_b32 s54, s54, 1
        s_lshl_b32 s54, s54, 2
        s_lshr_b32 s55, s55, 3
        s_add_u32 s54, s54, s55                ; cgp
        s_lshl_b32 s56, s56, 6
        s_lshl_b32 s54, s54, 2
        s_add_u32 s54, s54, s56
        s_add_u32 s54, s54, {F1B_OFF}
        v_lshlrev_b32 v6, 10, v1
        v_mov_b32 v7, s62
        s_mov_b64 exec, 0xf
        buffer_store_dword v7, v6, s[8:11], s54 offen sc1
        s_mov_b64 exec, -1
        s_lshr_b32 s54, s44, 1
        s_lshl_b32 s54, s54, 6
        s_and_b32 s55, s2, 3
        s_lshl_b32 s55, s55, 10
        s_add_u32 s54, s54, s55
        s_add_u32 s54, s54, {F1B_OFF}
        v_and_b32 v6, 15, v1
        v_lshlrev_b32 v6, 2, v6
        s_mov_b32 s60, 0x40000
Lsh_pb:
        buffer_load_dword v7, v6, s[8:11], s54 offen sc1
        s_waitcnt vmcnt(0)
        v_cmp_eq_u32 vcc, s62, v7
        s_cmp_eq_u64 vcc, exec
        s_cbranch_scc1 Lsh_pb_ok
        s_sleep 4
        s_sub_u32 s60, s60, 1
        s_cbranch_scc0 Lsh_pb
Lsh_pb_ok:
        """)
        poll256(A, 8, F1W_OFF, "s62", tmp=(6, 7, 48, 49, 50, 51))
        lds_set(A, FLAG + LF_GO2, 1, tmp=(6, 7))
        A("s_branch Lsh_go2")
        A("Lsh_wgo2:")
        lds_spin(A, FLAG + LF_GO2, 1, 1, tmp=(6, 7), sleep=4)
        A("Lsh_go2:")
        if prof: stamp(A, 9)
    else:
        A("s_barrier")
    def issue(q):
        g = []
        if q >= NPH: return g
        sl = q % 4
        for j in range(5):
            g.append([f"s_add_u32 m0, s47, {sl*PH + j*1024}", f"s_add_u32 s55, s49, {q*PH + j*1024}",
                      f"buffer_load_dwordx4 v2, s[8:11], s55 offen lds"])
        if q < 12:
            for k in range(4):
                b = BF + 16*sl + 4*k
                g.append([f"s_add_u32 s55, s51, {(4*q + k)*1024}", f"buffer_load_dwordx4 v[{b}:{b+3}], v2, s[8:11], s55 offen"])
        return g
    def nops(q):
        return 0 if q >= NPH else (9 if q < 12 else 5)
    def emit(g):
        for grp in g:
            for l in grp: A(l)
    def sync(p, n):
        lab = A.label("shs")
        A(f"""
        s_waitcnt vmcnt({n}) lgkmcnt(0)
        v_mov_b32 v6, {p + 1}
        ds_write_b32 v5, v6
        s_mov_b32 s60, 0x40000
        {lab}:
        ds_read_b32 v7, v4
        s_waitcnt lgkmcnt(0)
        v_cmp_le_u32 vcc, {p + 1}, v7
        s_cmp_eq_u64 vcc, exec
        s_cbranch_scc1 {lab}_ok
        s_sleep 2
        s_sub_u32 s60, s60, 1
        s_cbranch_scc0 {lab}
        {lab}_ok:
        """)
    def compute(p, g):
        sl = p % 4
        acc = ACC_B if p < 12 else ACC_A
        base, so = ("v3", sl*PH) if sl < 3 else ("v0", 0)
        def rd(k, fs):
            return [f"ds_read_b128 v[{WF[fs]+4*ct}:{WF[fs]+4*ct+3}], {base} offset:{so + k*5120 + ct*1024}" for ct in range(5)]
        def bfrag(k):
            return (BF + 16*sl + 4*k) if p < 12 else (BF + 4*(4*(p - 12) + k))
        per = (len(g) + 3) // 4
        for l in rd(0, 0): A(l)
        for k in range(4):
            if k < 3:
                for l in rd(k + 1, (k + 1) & 1): A(l)
                A("s_waitcnt lgkmcnt(5)")
            else:
                A("s_waitcnt lgkmcnt(0)")
            b = bfrag(k)
            for ct in range(5):
                A(f"v_mfma_f32_16x16x32_bf16 v[{acc+4*ct}:{acc+4*ct+3}], v[{WF[k&1]+4*ct}:{WF[k&1]+4*ct+3}], v[{b}:{b+3}], v[{acc+4*ct}:{acc+4*ct+3}]")
            emit(g[k*per:(k+1)*per])
    for q in range(3): emit(issue(q))
    for p in range(NA):
        sync(p, nops(p + 1) + nops(p + 2))
        compute(p, issue(p + 3))
    if prof: stamp(A, 0)
    A("s_waitcnt lgkmcnt(0)")
    A("s_barrier")
    if prof: stamp(A, 1)
    A("s_setprio 3")
    for p in range(NA, 12):
        A(f"s_waitcnt vmcnt({nops(p + 1) + nops(p + 2)}) lgkmcnt(0)")
        A("s_barrier")
        compute(p, issue(p + 3))
    if prof: stamp(A, 8)
    A(f"""
    s_cmp_eq_u32 s40, 0
    s_cbranch_scc1 Lsh_poller
    """)
    A("s_sub_u32 s54, s40, 1")
    A(f"s_mul_i32 s61, s43, {WF_CG}")
    A(f"s_add_u32 s61, s61, {WF_OFF + 15*PH}")
    for j in range(14):
        lab = None
        if j == 13:
            lab = A.label("w13")
            A("s_cmp_eq_u32 s54, 0")
            A(f"s_cbranch_scc0 {lab}")
        A(f"s_add_u32 s55, s54, {3*j}")
        A("s_lshl_b32 s55, s55, 10")
        A("s_mov_b32 m0, s55")
        A("s_add_u32 s55, s55, s61")
        A(f"buffer_load_dwordx4 v2, s[8:11], s55 offen lds")
        if lab: A(f"{lab}:")
    A(f"""
    s_branch Lsh_g
Lsh_poller:
    s_lshl_b32 s56, s14, 7
    s_add_u32 s56, s56, {OFLAG_OFF}
    v_and_b32 v4, 31, v1
    v_lshlrev_b32 v4, 2, v4
    s_mov_b32 s60, 0x40000
Lsh_poll:
    buffer_load_dword v7, v4, s[8:11], s56 offen sc1
    s_waitcnt vmcnt(0)
    """)
    if prof:
        A("s_cmp_eq_u32 s60, 0x40000")
        A("s_cbranch_scc0 Lsh_np")
        stamp(A, 6)
        A("Lsh_np:")
    A(f"""
    v_cmp_eq_u32 vcc, {'s62' if fused else '1'}, v7
    s_cmp_eq_u64 vcc, exec
    s_cbranch_scc1 Lsh_g
    s_sleep {POLL_SLEEP}
    s_sub_u32 s60, s60, 1
    s_cbranch_scc0 Lsh_poll
Lsh_g:
    """)
    if prof:
        stamp(A, 7)
    A(f"""
    v_and_b32 v49, 15, v1
    s_lshl_b32 s45, s46, 4
    v_add_u32 v49, s45, v49
    v_lshlrev_b32 v50, 2, v49
    s_mov_b32 s58, {G_OFF}
    buffer_load_dword v6, v50, s[8:11], s58 offen
    v_lshrrev_b32 v48, 4, v1               ; lane>>4
    v_mul_u32_u24 v7, 1280, v49
    v_lshl_add_u32 v5, v48, 3, v7
    s_waitcnt vmcnt(1) lgkmcnt(0)
    s_barrier
    """)
    if prof: stamp(A, 2)
    def oload(k):
        return [f"s_add_u32 s55, s52, {k*1024}", f"buffer_load_dwordx4 v[{BF+4*k}:{BF+4*k+3}], v2, s[8:11], s55 offen{scl}"]
    PRE = 8
    for k in range(PRE):
        for l in oload(k): A(l)
    if prof: stamp(A, 3)
    def wrd(ks, fs):
        p = 12 + ks // 4; k = ks % 4
        if p < 15: base, so = "v3", (p % 4)*PH
        else: base, so = "v2", (p - 15)*PH
        return [f"ds_read_b128 v[{WF[fs]+4*ct}:{WF[fs]+4*ct+3}], {base} offset:{so + k*5120 + ct*1024}" for ct in range(5)]
    for l in wrd(0, 0): A(l)
    for ks in range(20):
        if ks + PRE < 20:
            for l in oload(ks + PRE): A(l)
        issued = min(20, ks + PRE + 1)
        if ks < 19:
            for l in wrd(ks + 1, (ks + 1) & 1): A(l)
            A(f"s_waitcnt vmcnt({issued - 1 - ks}) lgkmcnt(5)")
        else:
            A("s_waitcnt vmcnt(0) lgkmcnt(0)")
        b = BF + 4*ks
        for ct in range(5):
            A(f"v_mfma_f32_16x16x32_bf16 v[{ACC_A+4*ct}:{ACC_A+4*ct+3}], v[{WF[ks&1]+4*ct}:{WF[ks&1]+4*ct+3}], v[{b}:{b+3}], v[{ACC_A+4*ct}:{ACC_A+4*ct+3}]")
    if prof: stamp(A, 4)
    A("s_nop 7")
    A("s_mul_i32 s48, s43, 160")
    for ct in range(5):
        b = ACC_B + 4*ct; a = ACC_A + 4*ct
        for i in range(4):
            A(f"v_sub_f32 v{a+i}, v{a+i}, v{b+i}")
        for i in range(4):
            A(f"v_fma_f32 v{a+i}, v6, v{a+i}, v{b+i}")
        A(f"v_cvt_pk_bf16_f32 v{48+2*ct}, v{a}, v{a+1}")
        A(f"v_cvt_pk_bf16_f32 v{49+2*ct}, v{a+2}, v{a+3}")
        A(f"buffer_store_dwordx2 v[{48+2*ct}:{49+2*ct}], v5, s[24:27], s48 offen offset:{ct*32}")
    if prof:
        stamp(A, 5)
        dump_stamps(A, 1, 8, 12, 11, tmp=50)
        A("s_mov_b64 exec, -1")
        A("s_mov_b32 s90, 0")
        prof_end(A, 1, 8, 12, tmpv=(16, 17, 18, 19, 20), extra="s90")
    A("s_endpgm")
```

```python
import sys, os
sys.path.insert(0, os.path.dirname(os.path.abspath(__file__)))
from k1 import gen_k1
from k2 import gen_k2
from k3 import gen_k3

HEADER = open("gated_mix__softmax_full_mha__dense_activation_mish__prompt.s.ref").read().split("; Override launch")[0]

def build(parts):
    launches = [p[2] for p in parts]
    s = HEADER + "\n".join(launches) + "\n"
    s += '.amdgcn_target "amdgcn-amd-amdhsa--gfx950"\n'
    for t, d, _ in parts:
        s += t
    s += "Lcode_end:\n    s_endpgm\n"
    for t, d, _ in parts:
        s += d.replace(".text\n", "")
    return s

if __name__ == "__main__":
    out = sys.argv[1] if len(sys.argv) > 1 and not sys.argv[1].startswith("--") else "gated_mix__softmax_full_mha__dense_activation_mish__prompt.s"
    prof = "--prof" in sys.argv
    tl = 0
    for a in sys.argv:
        if a.startswith("--tl="): tl = int(a[5:])
    em = 0
    import asm
    for a in sys.argv:
        if a.startswith('--wsbase='): asm.WS_BASE = int(a[9:], 0)
    k1opts = {}
    for a in sys.argv:
        if a.startswith('--k1:'):
            k, v = a[5:].split('='); k1opts[k] = int(v)
    k2opts = {}
    for a in sys.argv:
        if a.startswith('--k2:'):
            k, v = a[5:].split('='); k2opts[k] = int(v)
    for a in sys.argv:
        if a.startswith("--em="): em = int(a[5:])
    m1 = 0
    for a in sys.argv:
        if a.startswith("--m1="): m1 = int(a[5:])
    if tl: k1opts['tl'] = 1; k2opts['tl'] = 1
    s = build([gen_k1(prof=prof, mode=m1, **k1opts), gen_k2(prof=prof, exp_mode=em, **k2opts)]) if '--mega' not in sys.argv else ''
    for a in sys.argv:
        if a.startswith("--order="):
            order = a[8:].split(",")
            lines = s.split("\n")
            L = {l.split("kernel=")[1].split("_kernel")[0]: l for l in lines if l.startswith("; @launch kernel=")}
            idx = [k for k, l in enumerate(lines) if l.startswith("; @launch kernel=")]
            if "k0" in order:
                L["k0"] = "; @launch kernel=k0_kernel grid=(256,1,1) block=(64,1,1) lds=0"
                from asm import khead, kdesc
                s += khead("k0_kernel") + "    s_endpgm\n" + kdesc("k0_kernel", 8)
                lines = s.split("\n")
            lines = lines[:idx[0]] + [L[o] for o in order] + lines[idx[-1]+1:]
            s = "\n".join(lines)
    if "--k3twice" in sys.argv:
        lines = s.split("\n")
        i = [k for k, l in enumerate(lines) if l.startswith("; @launch kernel=k3")][0]
        lines.insert(i, lines[i])
        s = "\n".join(lines)
    if "--mega" in sys.argv:
        from asm import kdesc
        KN = "gated_mix__softmax_full_mha__dense_activation_mish__prompt_kernel"
        t1 = gen_k1(prof=False, mode=m1, fused=KN, mprof=(2 if '--dbg' in sys.argv else prof), **k1opts)
        t2 = gen_k2(prof=False, exp_mode=em, fused=True, mprof=(2 if '--dbg' in sys.argv else prof), **k2opts)
        s = HEADER + "; @launch grid=(256,1,1) block=(768,1,1) lds=155904\n" + '.amdgcn_target "amdgcn-amd-amdhsa--gfx950"\n'
        s += t1 + t2 + "Lcode_end:\n    s_endpgm\n" + kdesc(KN, 168).replace(".text\n", "")
    open(out, "w").write(s)
    print("wrote", out, len(s))
```

```python
class Asm:
    def __init__(self, uid0=0):
        self.lines = []
        self._uid = uid0
    def __call__(self, s):
        for l in s.strip("\n").split("\n"):
            l = l.strip()
            if not l:
                continue
            if l.endswith(":") or l.startswith(".") or l.startswith(";"):
                self.lines.append(l)
            else:
                self.lines.append("    " + l)
    def c(self, s):
        self.lines.append("    ; " + s)
    def label(self, base):
        self._uid += 1
        return f"L{base}_{self._uid}"
    def text(self):
        return "\n".join(self.lines) + "\n"

def vr(a, n=1):
    return f"v{a}" if n == 1 else f"v[{a}:{a+n-1}]"
def sr(a, n=1):
    return f"s{a}" if n == 1 else f"s[{a}:{a+n-1}]"

WS_BASE = 0
def srd_ws(A, d, ptr, nbytes):
    import asm
    if asm.WS_BASE:
        A(f"s_add_u32 s{d}, s{ptr}, {asm.WS_BASE}")
        A(f"s_addc_u32 s{d+1}, s{ptr+1}, 0")
        A(f"s_and_b32 s{d+1}, s{d+1}, 0xffff")
        A(f"s_mov_b32 s{d+2}, {nbytes}")
        A(f"s_mov_b32 s{d+3}, 0x00020000")
    else:
        srd(A, d, ptr, nbytes)

def srd(A, d, ptr, nbytes):
    A(f"s_mov_b32 s{d}, s{ptr}")
    A(f"s_and_b32 s{d+1}, s{ptr+1}, 0xffff")
    A(f"s_mov_b32 s{d+2}, {nbytes}")
    A(f"s_mov_b32 s{d+3}, 0x00020000")

def kdesc(name, vgpr, sgpr=102, accum=None):
    accum = accum if accum is not None else ((vgpr + 3) // 4) * 4
    return f""".section .rodata,"a"
.p2align 6
.amdhsa_kernel {name}
  .amdhsa_next_free_vgpr {vgpr}
  .amdhsa_next_free_sgpr {sgpr}
  .amdhsa_accum_offset {accum}
  .amdhsa_group_segment_fixed_size 0
  .amdhsa_kernarg_size 88
  .amdhsa_user_sgpr_count 2
  .amdhsa_user_sgpr_kernarg_segment_ptr 1
  .amdhsa_system_sgpr_workgroup_id_x 1
.end_amdhsa_kernel
.text
"""
def khead(name):
    return f""".text
.globl {name}
.p2align 8
.type {name},@function
{name}:
"""

DBG_OFF = 0x1800000
def prof_start(A):
    A("s_memtime s[92:93]")
    A("s_memrealtime s[94:95]")
def prof_end(A, kidx, wsrd, wave_sgpr, tmpv=(120, 121, 122, 123, 124), extra=None):
    a, b, c, d, e = tmpv
    lab = A.label("prof")
    A(f"""
    s_waitcnt lgkmcnt(0)
    s_memtime s[96:97]
    s_memrealtime s[98:99]
    s_waitcnt lgkmcnt(0)
    s_sub_u32 s96, s96, s92
    s_sub_u32 s98, s98, s94
    s_lshl_b32 s97, s2, 4
    s_add_u32 s97, s97, s{wave_sgpr}
    s_lshl_b32 s97, s97, 4
    s_add_u32 s97, s97, {DBG_OFF + kidx*0x20000}
    v_mov_b32 v{a}, s94
    v_mov_b32 v{b}, s96
    v_mov_b32 v{c}, s98
    v_mov_b32 v{d}, {extra if extra else 0}
    v_mov_b32 v{e}, 0
    s_mov_b64 exec, 1
    buffer_store_dwordx4 v[{a}:{d}], v{e}, s[{wsrd}:{wsrd+3}], s97 offen
    """)

def stamp(A, i):
    A("s_memtime s[88:89]")
    A("s_waitcnt lgkmcnt(0)")
    A(f"s_sub_u32 s{70+i}, s88, s92")
def dump_stamps(A, kidx, wsrd, wave_sgpr, n, tmp=16):
    A(f"""
    s_lshl_b32 s97, s2, 4
    s_add_u32 s97, s97, s{wave_sgpr}
    s_lshl_b32 s97, s97, 6
    s_add_u32 s97, s97, {DBG_OFF + 0x100000 + kidx*0x40000}
    v_mov_b32 v{tmp}, 0
    s_mov_b64 exec, 1
    """)
    for i in range(n):
        A(f"v_mov_b32 v{tmp+1}, s{70+i}")
        A(f"buffer_store_dword v{tmp+1}, v{tmp}, s[{wsrd}:{wsrd+3}], s97 offen offset:{4*i}")
        A("s_nop 1")

def wl_stamp(A, vreg, idx):
    A("s_memtime s[88:89]")
    A("s_waitcnt lgkmcnt(0)")
    A("s_sub_u32 s88, s88, s92")
    if isinstance(idx, int):
        A(f"v_writelane_b32 v{vreg}, s88, {idx}")
    else:
        A(f"s_mov_b32 m0, {idx}")
        A("s_nop 0")
        A(f"v_writelane_b32 v{vreg}, s88, m0")
def wl_dump(A, vreg, kidx, wsrd, wave_sgpr, tmp):
    A(f"""
    s_lshl_b32 s97, s2, 4
    s_add_u32 s97, s97, s{wave_sgpr}
    s_lshl_b32 s97, s97, 6
    s_add_u32 s97, s97, {DBG_OFF + 0x100000 + kidx*0x40000}
    s_mov_b64 exec, 0xffff
    v_mbcnt_lo_u32_b32 v{tmp}, -1, 0
    v_lshlrev_b32 v{tmp}, 2, v{tmp}
    buffer_store_dword v{vreg}, v{tmp}, s[{wsrd}:{wsrd+3}], s97 offen
    s_mov_b64 exec, -1
    """)

def touch(A, items, vz, vd0):
    for i, (srd_, off) in enumerate(items):
        if isinstance(off, int):
            if off == 0:
                A(f"buffer_load_dword v{vd0}, v{vz}, s[{srd_}:{srd_+3}], 0 offen")
            else:
                A(f"s_mov_b32 s99, {off}")
                A(f"buffer_load_dword v{vd0}, v{vz}, s[{srd_}:{srd_+3}], s99 offen")
        else:
            A(f"buffer_load_dword v{vd0}, v{vz}, s[{srd_}:{srd_+3}], {off} offen")

def tl_start(A, kidx):
    A("s_memrealtime s[84:85]")
def tl_end(A, kidx, tmpv=(2, 3, 4)):
    a, b, c = tmpv
    lab = A.label("tl")
    A(f"""
    s_load_dwordx2 s[80:81], s[0:1], 72
    s_memrealtime s[82:83]
    s_waitcnt lgkmcnt(0)
    s_sub_u32 s80, s80, {512*kidx}
    s_subb_u32 s81, s81, 0
    s_mov_b64 exec, 1
    v_mov_b32 v{a}, 0
    v_mov_b32 v{b}, s82
    global_atomic_umax v{a}, v{b}, s[80:81] offset:{8*kidx+4}
    v_mov_b32 v{c}, s84
    v_not_b32 v{c}, v{c}
    global_atomic_umax v{a}, v{c}, s[80:81] offset:{8*kidx}
    s_waitcnt vmcnt(0)
    """)

TL_OFF = DBG_OFF + 0x300000
def tl2_record(A, kidx, wsrd, wave_sgpr):
    lab = A.label(f"tl2k{kidx}")
    A(f"""
    s_cmp_eq_u32 s{wave_sgpr}, 0
    s_cbranch_scc0 {lab}
    s_memrealtime s[82:83]
    s_waitcnt lgkmcnt(0)
    s_mov_b64 exec, 1
    v_mov_b32 v2, s84
    v_mov_b32 v3, s82
    v_mov_b32 v4, 0
    s_lshl_b32 s80, s2, 3
    s_add_u32 s80, s80, {TL_OFF + kidx*4096}
    buffer_store_dwordx2 v[2:3], v4, s[{wsrd}:{wsrd+3}], s80 offen
    {lab}:
    """)
def tl2_delay(A, which, wsrd, wave_sgpr):
    lab = A.label("tl2d")
    kind, k = which
    A(f"""
    s_cmp_eq_u32 s2, 0
    s_cbranch_scc0 {lab}
    s_cmp_eq_u32 s{wave_sgpr}, 0
    s_cbranch_scc0 {lab}
    s_mov_b64 exec, -1
    v_and_b32 v2, 63, v0
    v_lshlrev_b32 v2, 5, v2
    s_mov_b32 s80, {TL_OFF + k*4096}
    buffer_load_dwordx4 v[4:7], v2, s[{wsrd}:{wsrd+3}], s80 offen sc1
    buffer_load_dwordx4 v[8:11], v2, s[{wsrd}:{wsrd+3}], s80 offen offset:16 sc1
    s_mov_b32 s80, {TL_OFF + (k+1)*4096}
    buffer_load_dwordx4 v[12:15], v2, s[{wsrd}:{wsrd+3}], s80 offen sc1
    buffer_load_dwordx4 v[16:19], v2, s[{wsrd}:{wsrd+3}], s80 offen offset:16 sc1
    s_waitcnt vmcnt(0)
    v_min_u32 v4, v4, v6
    v_min_u32 v8, v8, v10
    v_min_u32 v4, v4, v8
    v_max_u32 v5, v5, v7
    v_max_u32 v9, v9, v11
    v_max_u32 v5, v5, v9
    v_min_u32 v12, v12, v14
    v_min_u32 v16, v16, v18
    v_min_u32 v12, v12, v16
    s_mov_b32 s81, -1
    s_mov_b32 s82, 0
    s_mov_b32 s83, -1
    s_mov_b32 s86, 0
    {lab}_l:
    s_nop 3
    v_readlane_b32 s87, v4, s86
    s_nop 3
    s_min_u32 s81, s81, s87
    v_readlane_b32 s87, v5, s86
    s_nop 3
    s_max_u32 s82, s82, s87
    v_readlane_b32 s87, v12, s86
    s_nop 3
    s_min_u32 s83, s83, s87
    s_add_u32 s86, s86, 1
    s_cmp_lt_u32 s86, 64
    s_cbranch_scc1 {lab}_l
    """)
    if kind == "span": A("s_sub_u32 s81, s82, s81")
    elif kind == "zero": A("s_mov_b32 s81, 0")
    elif kind == "tot":
        A("s_sub_u32 s81, s84, s81")
    else: A("s_sub_u32 s81, s83, s82")
    A(f"""
    s_memrealtime s[82:83]
    s_waitcnt lgkmcnt(0)
    s_add_u32 s81, s81, s82
    {lab}_w:
    s_memrealtime s[82:83]
    s_waitcnt lgkmcnt(0)
    s_sub_u32 s87, s82, s81
    s_cmp_lt_i32 s87, 0
    s_cbranch_scc1 {lab}_w
    {lab}:
    """)

def lds_spin(A, addr, need, nwords, tmp=(2, 3), sleep=1, cnt="s99"):
    a, b = tmp
    lab = A.label("lsp")
    A(f"""
    v_mbcnt_lo_u32_b32 v{a}, -1, 0
    v_mbcnt_hi_u32_b32 v{a}, -1, v{a}
    v_and_b32 v{a}, {nwords - 1}, v{a}
    v_lshlrev_b32 v{a}, 2, v{a}
    v_add_u32 v{a}, {addr}, v{a}
    s_mov_b32 {cnt}, 0x100000
    {lab}:
    ds_read_b32 v{b}, v{a}
    s_waitcnt lgkmcnt(0)
    v_cmp_le_u32 vcc, {need}, v{b}
    s_nop 1
    s_cmp_eq_u64 vcc, exec
    s_cbranch_scc1 {lab}_ok
    s_sleep {sleep}
    s_sub_u32 {cnt}, {cnt}, 1
    s_cbranch_scc0 {lab}
    {lab}_ok:
    """)
def lds_set(A, addr, val, tmp=(2, 3)):
    a, b = tmp
    A(f"""
    v_mov_b32 v{a}, {addr}
    v_mov_b32 v{b}, {val}
    ds_write_b32 v{a}, v{b}
    """)
def get_tag(A, addr, dst_sgpr, tmp=(2, 3)):
    a, b = tmp
    lab = A.label("tag")
    A(f"""
    v_mov_b32 v{a}, {addr}
    s_mov_b32 s99, 0x100000
    {lab}:
    ds_read_b32 v{b}, v{a}
    s_waitcnt lgkmcnt(0)
    v_readfirstlane_b32 {dst_sgpr}, v{b}
    s_nop 3
    s_cmp_lg_u32 {dst_sgpr}, 0
    s_cbranch_scc1 {lab}_ok
    s_sleep 2
    s_sub_u32 s99, s99, 1
    s_cbranch_scc0 {lab}
    {lab}_ok:
    """)
def publish_poll(A, wsrd, off, tag_sgpr, tmp=(2, 3, 4, 5, 6, 7), sleep=4):
    a, b, c, d, e, f = tmp
    lab = A.label("pp")
    A(f"""
    v_mbcnt_lo_u32_b32 v{a}, -1, 0
    v_mbcnt_hi_u32_b32 v{a}, -1, v{a}
    v_lshlrev_b32 v{b}, 10, v{a}
    v_mov_b32 v{c}, {tag_sgpr}
    s_lshl_b32 s98, s2, 2
    s_add_u32 s98, s98, {off}
    s_mov_b64 exec, 0xff
    buffer_store_dword v{c}, v{b}, s[{wsrd}:{wsrd+3}], s98 offen sc1
    s_mov_b64 exec, -1
    v_lshlrev_b32 v{b}, 4, v{a}
    s_and_b32 s98, s2, 7
    s_lshl_b32 s98, s98, 10
    s_add_u32 s98, s98, {off}
    s_mov_b32 s99, 0x40000
    {lab}:
    buffer_load_dwordx4 v[{c}:{f}], v{b}, s[{wsrd}:{wsrd+3}], s98 offen sc1
    s_waitcnt vmcnt(0)
    v_cmp_eq_u32 vcc, {tag_sgpr}, v{c}
    v_cmp_eq_u32 s[96:97], {tag_sgpr}, v{d}
    s_and_b64 vcc, vcc, s[96:97]
    v_cmp_eq_u32 s[96:97], {tag_sgpr}, v{e}
    s_and_b64 vcc, vcc, s[96:97]
    v_cmp_eq_u32 s[96:97], {tag_sgpr}, v{f}
    s_and_b64 vcc, vcc, s[96:97]
    s_cmp_eq_u64 vcc, exec
    s_cbranch_scc1 {lab}_ok
    s_sleep {sleep}
    s_sub_u32 s99, s99, 1
    s_cbranch_scc0 {lab}
    {lab}_ok:
    """)

def publish256(A, wsrd, off, tag_sgpr, tmp=(2, 3, 4)):
    a, b, c = tmp
    A(f"""
    v_mbcnt_lo_u32_b32 v{a}, -1, 0
    v_mbcnt_hi_u32_b32 v{a}, -1, v{a}
    v_mul_u32_u24 v{b}, 4352, v{a}
    v_mov_b32 v{c}, {tag_sgpr}
    s_lshl_b32 s98, s2, 2
    s_add_u32 s98, s98, {off}
    s_mov_b64 exec, 0xff
    buffer_store_dword v{c}, v{b}, s[{wsrd}:{wsrd+3}], s98 offen sc1
    s_mov_b64 exec, -1
    """)
def poll256(A, wsrd, off, tag_sgpr, tmp=(2, 3, 4, 5, 6, 7), sleep=8):
    a, b, c, d, e, f = tmp
    lab = A.label("pl")
    A(f"""
    v_mbcnt_lo_u32_b32 v{a}, -1, 0
    v_mbcnt_hi_u32_b32 v{a}, -1, v{a}
    v_lshlrev_b32 v{b}, 4, v{a}
    s_and_b32 s98, s2, 7
    s_mul_i32 s98, s98, 4352
    s_add_u32 s98, s98, {off}
    s_mov_b32 s99, 0x40000
    {lab}:
    buffer_load_dwordx4 v[{c}:{f}], v{b}, s[{wsrd}:{wsrd+3}], s98 offen sc1
    s_waitcnt vmcnt(0)
    v_cmp_eq_u32 vcc, {tag_sgpr}, v{c}
    v_cmp_eq_u32 s[96:97], {tag_sgpr}, v{d}
    s_and_b64 vcc, vcc, s[96:97]
    v_cmp_eq_u32 s[96:97], {tag_sgpr}, v{e}
    s_and_b64 vcc, vcc, s[96:97]
    v_cmp_eq_u32 s[96:97], {tag_sgpr}, v{f}
    s_and_b64 vcc, vcc, s[96:97]
    s_cmp_eq_u64 vcc, exec
    s_cbranch_scc1 {lab}_ok
    s_sleep {sleep}
    s_sub_u32 s99, s99, 1
    s_cbranch_scc0 {lab}
    {lab}_ok:
    """)

def dbg_dump_lanes(A, vreg, first, n, wg, wave_sgpr, wave):
    lab = A.label("dbgd")
    A(f"""
    s_cmp_eq_u32 s2, {wg}
    s_cbranch_scc0 {lab}
    s_cmp_eq_u32 s{wave_sgpr}, {wave}
    s_cbranch_scc0 {lab}
    s_load_dwordx2 s[96:97], s[0:1], 72
    s_waitcnt lgkmcnt(0)
    s_and_b32 s97, s97, 0xffff
    s_mov_b32 s98, 256
    s_mov_b32 s99, 0x00020000
    v_mbcnt_lo_u32_b32 v2, -1, 0
    v_mbcnt_hi_u32_b32 v2, -1, v2
    v_lshlrev_b32 v3, 2, v2
    v_cmp_gt_u32 vcc, {n}, v2
    s_and_saveexec_b64 s[94:95], vcc
    buffer_store_dword v{vreg}, v3, s[96:99], 0 offen offset:{4*first}
    s_mov_b64 exec, s[94:95]
    {lab}:
    """)
```

```python
from asm import *
from common import *
from k2 import vslot

NAME = "k1_kernel"
SLOT = 45056
XO, WQO, W1O = 0, 16384, 32768
GATE_LDS = 3 * SLOT
UNIT_LDS = 3 * SLOT + 1536
LDS_BYTES = UNIT_LDS + 4096

def gen_k1(prof=False, mode=0, pf=1, rot=0, tlb=1, tl=0, sc=0, cpf=1, wfsc=1, fused=None, mprof=0, rtrig=2):
    SC = {0: '', 1: ' sc1', 2: ' nt', 3: ' sc0 sc1'}[sc & 3]
    SCQ = SC if sc & 4 else ''
    SCW = ' sc1' if wfsc else ''
    KN = fused if fused else NAME
    FL = MEGA_FLAG
    if fused:
        SC = SCQ = SCW = ' sc1'
        tlb = 0
    ROT = rot
    A0 = Asm()
    class F:
        def __init__(s): s.inloop = False
        def __call__(s, l):
            for x in l.strip("\n").split("\n"):
                xs = x.strip()
                if s.inloop:
                    if mode == 1 and xs.startswith("buffer_load") : continue
                    if mode == 2 and (xs.startswith("v_mfma") or xs.startswith("ds_read")): continue
                    if mode == 3 and xs.startswith("v_mfma"): continue
                    if mode in (4, 6) and xs.startswith("s_barrier"): continue
                    if mode == 6 and xs.startswith("buffer_load"): continue
                    if mode == 5 and xs.startswith("ds_read"): continue
                    if mode == 7 and (xs.startswith("buffer_load") or xs.startswith("ds_read")): continue
                    if mode == 8 and (xs.startswith("buffer_load") or xs.startswith("ds_read") or xs.startswith("s_barrier")): continue
                    if mode == 10 and (xs.startswith("buffer_load") or xs.startswith("ds_read") or xs.startswith("s_barrier") or xs.startswith("s_add_u32 m0") or xs.startswith("s_add_u32 s48") or xs.startswith("s_nop 0") or xs.startswith("v_add_u32")): continue
                if xs.endswith("_loop:"): s.inloop = True
                if xs.startswith("s_cbranch_scc1") and xs.endswith("g_loop"): s.inloop = False
                A0(x)
        def label(s, b): return A0.label(b)
        def text(s): return A0.text()
    A = F()
    A(khead(KN))
    A(f"""
    s_cmp_ge_u32 s2, 256
    s_cbranch_scc1 Lk1_exit
    """)
    if prof or mprof: prof_start(A)
    if tl: tl_start(A, 0)
    if cpf:
        A(f"""
        s_getpc_b64 s[80:81]
Lk1_pc:
        s_sub_u32 s80, s80, Lk1_pc - {KN}
        s_subb_u32 s81, s81, 0
        s_lshr_b32 s82, s2, 3
        s_mul_i32 s82, s82, (Lcode_end - {KN} + 4095) / 4096
        v_and_b32 v61, 63, v0
        v_add_u32 v61, s82, v61
        v_min_u32 v61, (Lcode_end - {KN} - 4) / 128, v61
        v_lshlrev_b32 v61, 7, v61
        v_lshrrev_b32 v60, 6, v0
        v_and_b32 v59, 63, v0
        v_cmp_gt_u32 vcc, (Lcode_end - {KN} + 4095) / 4096, v59
        v_cmp_eq_u32 s[82:83], 7, v60
        s_and_b64 vcc, vcc, s[82:83]
        s_and_saveexec_b64 s[82:83], vcc
        s_cbranch_execz Lk1_nocpf
        global_load_dword v61, v61, s[80:81]
Lk1_nocpf:
        s_mov_b64 exec, s[82:83]
        """)
    A(f"""
    s_load_dwordx2 s[80:81], s[0:1], 48    ; w2
    s_load_dwordx2 s[82:83], s[0:1], 16    ; wo
    s_load_dwordx4 s[4:7], s[0:1], 0       ; A_x, wqkv
    s_load_dwordx4 s[8:11], s[0:1], 32     ; w1, b1
    s_load_dwordx2 s[12:13], s[0:1], 56    ; gate_w
    s_load_dwordx2 s[14:15], s[0:1], 80    ; ws
    v_lshrrev_b32 v1, 6, v0
    v_and_b32 v2, 63, v0                   ; lane
    s_and_b32 s41, s2, 7                   ; xcd
    v_readfirstlane_b32 s32, v1
    """)
    if fused:
        A("""
        s_nop 3
        s_mov_b32 s85, s32
        s_sub_u32 s42, s32, 4
        s_add_u32 s43, s32, 4
        s_cmp_ge_u32 s32, 8
        s_cselect_b32 s43, s42, s43
        s_cmp_lt_u32 s32, 4
        s_cselect_b32 s32, s32, s43
        """)
    A(f"""
    s_lshr_b32 s42, s2, 3                  ; i
    s_and_b32 s43, s41, 1
    s_lshl_b32 s43, s43, 3
    s_and_b32 s44, s42, 7
    s_add_u32 s34, s43, s44                ; rb
    s_lshr_b32 s43, s41, 1
    s_lshl_b32 s43, s43, 2
    s_lshr_b32 s44, s42, 3
    s_add_u32 s35, s43, s44                ; cgp
    s_mul_i32 s45, s35, 52
    s_lshr_b32 s45, s45, 8                 ; cgp/5
    s_add_u32 s33, s45, 1
    s_mul_i32 s45, s45, 5
    s_sub_u32 s46, s35, s45                ; cbl (0..4)
    s_cmp_eq_u32 s35, 15
    s_cselect_b32 s33, 0, s33
    v_lshrrev_b32 v3, 3, v2
    v_mul_u32_u24 v3, 1280, v3
    v_and_b32 v13, 7, v2
    v_lshrrev_b32 v14, 4, v2               ; lane>>4
    v_xor_b32 v15, v13, v14
    v_lshl_add_u32 v10, v15, 4, v3         ; even u
    v_xor_b32 v15, 4, v15
    v_lshl_add_u32 v11, v15, 4, v3         ; odd u
    s_lshl_b32 s37, s34, 7                 ; rb*128
    s_lshl_b32 s41, s32, 4                 ; w*16 rows
    s_add_u32 s37, s37, s41
    s_mul_i32 s37, s37, 1280
    s_lshl_b32 s42, s32, 11
    s_lshr_b32 s57, s2, 3                  ; i
    s_and_b32 s78, s57, 7
    s_lshr_b32 s57, s57, 3
    s_lshl_b32 s57, s57, 1
    s_add_u32 s78, s78, s57
    s_mul_i32 s78, s78, {1 if ROT else 0}
    s_mov_b32 s56, 0
    s_mov_b32 s69, 0
    s_mov_b32 s58, s37
    s_mov_b32 s79, 0
    """)
    if ROT == 2:
        A("""
        s_cmp_ge_u32 s78, 10
        s_cselect_b32 s57, 10, 0
        s_sub_u32 s78, s78, s57
        s_mov_b32 s79, s78
        s_mov_b32 s69, s78
        s_lshl_b32 s57, s79, 7
        s_add_u32 s37, s58, s57
        """)
    A(f"""
    s_waitcnt lgkmcnt(0)
    """)
    if prof:
        A("s_memtime s[88:89]")
        A("s_waitcnt lgkmcnt(0)")
        A("s_sub_u32 s87, s88, s92")
    srd(A, 16, 4, X_BYTES)
    srd_ws(A, 24, 14, WS_RECORDS)
    srd(A, 60, 6, WQKV_BYTES)
    srd(A, 64, 8, W1_BYTES)
    if not fused:
        A(f"""
        s_cmp_eq_u32 s32, 7
        s_cbranch_scc0 Lk1_noflag
        s_lshl_b32 s41, s2, 2
        s_add_u32 s41, s41, {OFLAG_OFF}
        v_mov_b32 v3, 0
        s_mov_b64 exec, 1
        buffer_store_dword v3, v3, s[24:27], s41 offen
        s_mov_b64 exec, -1
    Lk1_noflag:
        """)
    if tlb:
        A("s_cmp_eq_u32 s32, 0")
        A("s_cbranch_scc0 Lk1_notouch")
        srd(A, 28, 10, B1_BYTES)
        A("v_mov_b32 v3, 0")
        MB2 = 2 << 20
        touch(A, [(16, "s37"), (60, 0), (60, MB2), (64, 0), (28, 0)] + [(24, k*MB2) for k in range(7)] + [(24, G_OFF)], 3, 1)
        A("Lk1_notouch:")
    A(f"""
    s_cmp_ge_u32 s32, 8
    s_cbranch_scc1 Lk1_H
    s_cmp_ge_u32 s32, 4
    s_cbranch_scc1 Lk1_R
    """)

    def adv_group(ws):
        if ROT == 2:
            g = ["s_add_u32 s79, s79, 1", "s_cmp_eq_u32 s79, 10", "s_cselect_b32 s79, 0, s79", "s_lshl_b32 s57, s79, 7", "s_add_u32 s37, s58, s57"]
        else:
            g = ["s_add_u32 s56, s56, 1", "s_add_u32 s57, s56, s78", "s_sub_u32 s57, s57, 2", "s_and_b32 s57, s57, 7", "s_add_u32 s57, s57, 2",
                 "s_cmp_lt_u32 s56, 2", "s_cselect_b32 s79, s56, s57", "s_lshl_b32 s57, s79, 7", "s_add_u32 s37, s58, s57"]
        if ws:
            g += [f"s_mul_i32 s57, s79, {ws}", "s_add_u32 s38, s59, s57"]
        return g

    def x_dma(slot_sgpr):
        g = []
        for j in range(2):
            g.append([f"s_add_u32 m0, {slot_sgpr}, {j*1024}", f"s_add_u32 s48, s37, {j*10240}",
                      f"buffer_load_dwordx4 v{10 + j}, s[16:19], s48 offen lds"])
        return g

    def xfrag_addr(rowbase_expr_sgpr):
        A(f"""
        v_and_b32 v3, 31, v2                   ; token
        v_lshrrev_b32 v13, 5, v2               ; hf
        v_bfe_u32 v14, v2, 1, 3
        v_xor_b32 v14, v13, v14
        v_lshlrev_b32 v14, 4, v14
        v_lshl_add_u32 v14, v3, 7, v14
        v_add_u32 v56, {rowbase_expr_sgpr}, v14
        v_xor_b32 v57, 32, v56
        v_xor_b32 v58, 64, v56
        v_xor_b32 v59, 96, v56
        """)

    def set_slot(nw, sgpr):
        out = [f"v_add_u32 v{4+k}, {sgpr}, v{56+k}" for k in range(4)]
        out += [f"v_add_u32 v{8+k}, {sgpr}, v{60+k}" for k in range(nw)]
        return out

    def interleave(ms, others):
        n = len(ms)
        per = (len(others) + n - 1) // n
        k = 0
        for i, m in enumerate(ms):
            A(m)
            for grp in others[k:k+per]:
                for l in grp: A(l)
            k += per

    def kstep(ms, rd, extra, wait=True, skip_last=False):
        if wait: A("s_waitcnt lgkmcnt(0)")
        n = len(ms) - (1 if skip_last else 0)
        A(ms[0])
        for grp in rd:
            for l in grp: A(l)
        slots = max(1, n - 1)
        per = (len(extra) + slots - 1) // slots if extra else 0
        k = 0
        for i in range(1, n):
            A(ms[i])
            for grp in extra[k:k+per]:
                for l in grp: A(l)
            k += per
        for grp in extra[k:]:
            for l in grp: A(l)

    def loop(tag, nown, reads, mfmas, dma_groups, nw, unit=False):
        A(f"s_waitcnt vmcnt({nown})")
        A("s_barrier")
        if prof:
            A("s_memtime s[90:91]")
            A("s_waitcnt lgkmcnt(0)")
            A("s_sub_u32 s90, s90, s92")
        for l in set_slot(nw, "0"): A(l)
        for l in reads(0, 0): A(l)
        A(f"s_mov_b32 s50, {SLOT}")
        A.inloop = True
        g = dma_groups()
        adv = g[-1]; g = g[:-1]
        parts = [[], [], [], []]
        for i, grp in enumerate(g): parts[i * 4 // len(g)].append(grp)
        R = lambda ks, fs: [[l] for l in reads(ks, fs)]
        rot = [["s_mov_b32 s51, s50", f"s_add_u32 s50, s50, {SLOT}", f"s_cmp_ge_u32 s50, {3*SLOT}", "s_cselect_b32 s50, 0, s50",
                "s_add_u32 s52, s51, s42", "s_add_u32 s53, s51, s43"]]
        A(f"s_add_u32 s52, s42, {2*SLOT}")
        A(f"s_add_u32 s53, s43, {2*SLOT}")
        kstep(mfmas(0), R(1, 1), parts[0] + parts[1])
        kstep(mfmas(1), R(2, 0), parts[2])
        kstep(mfmas(0), R(3, 1), parts[3] + [adv] + [["s_mov_b32 s52, s42", "s_mov_b32 s53, s43", "s_mov_b32 s40, 0"]], skip_last=True)
        def section(dma, vm, final=False, ug=None):
            A(mfmas(0)[-1])
            A(f"s_waitcnt vmcnt({vm}) lgkmcnt(0)")
            A("s_barrier")
            if final:
                for m in mfmas(1): A(m)
                return
            rd = R(0, 0)
            rd[0] = set_slot(nw, "s50") + rd[0]
            P_ = parts if dma else [[], [], [], []]
            kstep(mfmas(1), rd, P_[0], wait=False)
            kstep(mfmas(0), R(1, 1), P_[1] + (ug or []))
            kstep(mfmas(1), R(2, 0), P_[2])
            tail = (P_[3] + [adv] if dma else []) + rot
            if dma: tail = tail + [["s_add_u32 s40, s40, 1", "s_cmp_lt_u32 s40, 7"]]
            kstep(mfmas(0), R(3, 1), tail, skip_last=True)
        A(f"L{tag}_loop:")
        section(True, nown)
        A(f"s_cbranch_scc1 L{tag}_loop")
        ug = []
        if unit:
            for j in range(4):
                ug.append([f"s_add_u32 m0, s76, {j*1024}", f"s_add_u32 s48, s100, {j*8*1280}", f"buffer_load_dwordx4 v62, s[96:99], s48 offen lds"])
            A("s_lshl_b32 s76, s32, 12")
            A("s_add_u32 s76, s76, s51")
        section(False, nown, ug=ug)
        section(False, 4 if unit else 0)
        section(False, 4 if unit else 0, final=True)
        A.inloop = False
        A("s_nop 15")
        if prof:
            A("s_memtime s[88:89]")
            A("s_waitcnt lgkmcnt(0)")
            A("s_sub_u32 s91, s88, s92")

    A(f"""
    s_cmp_eq_u32 s33, 0
    s_cbranch_scc1 Lk1_gate
    """)
    srd(A, 20, 6, WQKV_BYTES)
    A(f"""
    s_mov_b32 s36, 3840
    v_and_b32 v13, 15, v2
    v_lshlrev_b32 v15, 2, v14
    v_xor_b32 v13, v13, v15
    v_mul_u32_u24 v15, 3840, v14
    v_lshl_add_u32 v12, v13, 4, v15
    s_mul_i32 s38, s32, {16*3840}          ; w*16 k-rows
    s_lshl_b32 s41, s35, 8                 ; cgp*128*2
    s_add_u32 s59, s38, s41
    s_mul_i32 s57, s79, {64*3840}
    s_add_u32 s38, s59, s57
    s_lshl_b32 s43, s32, 12
    s_add_u32 s43, s43, {WQO}
    """)
    def p_dma():
        g = x_dma("s52")
        for j in range(4):
            g.append([f"s_add_u32 m0, s53, {j*1024}",
                      (f"s_add_u32 s48, s38, {j*4*3840}"),
                      f"buffer_load_dwordx4 v12, s[20:23], s48 offen lds"])
        g.append(adv_group(64*3840))
        return g
    def stage_issue(st, dmaf):
        A(f"s_add_u32 s52, s42, {st*SLOT}")
        A(f"s_add_u32 s53, s43, {st*SLOT}")
        for grp in dmaf():
            for l in grp: A(l)
    if prof: wl_stamp(A, 63, 0)
    stage_issue(0, p_dma)
    if prof: wl_stamp(A, 63, 1)
    A("s_barrier")
    if prof: wl_stamp(A, 63, 2)
    LATE_P = True
    A("s_lshr_b32 s41, s32, 1")
    A("s_lshl_b32 s41, s41, 13")
    xfrag_addr("s41")
    A(f"""
    v_bfe_u32 v14, v2, 2, 2                ; r
    v_lshl_add_u32 v15, v13, 3, v14
    v_lshlrev_b32 v15, 8, v15
    v_bfe_u32 v3, v2, 4, 1
    v_lshl_add_u32 v15, v3, 5, v15
    v_and_b32 v3, 3, v2
    v_lshl_add_u32 v15, v3, 3, v15
    v_add_u32 v15, {WQO}, v15
    s_and_b32 s41, s32, 1
    s_lshl_b32 s41, s41, 1
    v_xor_b32 v3, s41, v14                 ; ct ^ r
    v_lshl_add_u32 v60, v3, 6, v15
    v_xor_b32 v3, 1, v3
    v_lshl_add_u32 v61, v3, 6, v15
    """)
    if prof: wl_stamp(A, 63, 3)
    stage_issue(1, p_dma)
    if prof: wl_stamp(A, 63, 4)
    for i in range(64): A(f"v_mov_b32 v{64+i}, 0")
    def p_reads(ks, fs):
        b = 16 + 16*fs
        return [
            f"ds_read_b128 v[{b}:{b+3}], v{4+ks}",
            f"ds_read_b64_tr_b16 v[{b+8}:{b+9}], v8 offset:{ks*4096}",
            f"ds_read_b64_tr_b16 v[{b+10}:{b+11}], v8 offset:{ks*4096 + 1024}",
            f"ds_read_b128 v[{b+4}:{b+7}], v{4+ks} offset:4096",
            f"ds_read_b64_tr_b16 v[{b+12}:{b+13}], v9 offset:{ks*4096}",
            f"ds_read_b64_tr_b16 v[{b+14}:{b+15}], v9 offset:{ks*4096 + 1024}",
        ]
    def p_mfmas(normal):
        def f(fs):
            b = 16 + 16*fs
            out = []
            for rt in range(2):
                for ct in range(2):
                    d = 64 + 16*(2*rt + ct)
                    x = f"v[{b+4*rt}:{b+4*rt+3}]"; w = f"v[{b+8+4*ct}:{b+8+4*ct+3}]"
                    a_, b_ = (x, w) if normal else (w, x)
                    out.append(f"v_mfma_f32_32x32x16_bf16 v[{d}:{d+15}], {a_}, {b_}, v[{d}:{d+15}]")
            return out
        return f
    A(f"""
    s_lshr_b32 s41, s32, 1
    s_lshl_b32 s41, s41, 1
    s_lshl_b32 s44, s34, 2
    s_add_u32 s44, s44, s41                ; T (rt'=0)
    s_cmp_eq_u32 s33, 3
    s_cbranch_scc1 Lk1_mainV
    s_cmp_eq_u32 s33, 1
    s_cbranch_scc0 Lk1_isK
    s_mul_i32 s68, s44, 1280
    s_add_u32 s68, s68, {QF_OFF}
    s_mov_b32 s49, {HSQ}
    s_mov_b32 s70, {f32bits(QSCALE):#x}
    s_branch Lk1_qk
Lk1_isK:
    s_lshr_b32 s68, s44, 3
    s_mul_i32 s68, s68, {CH}
    s_and_b32 s41, s44, 7
    s_mul_i32 s41, s41, 1280
    s_add_u32 s68, s68, s41
    s_add_u32 s68, s68, {KV_OFF}
    s_mov_b32 s49, {HSK}
    s_mov_b32 s70, 1.0
Lk1_qk:
    s_mov_b32 s71, s70
    s_and_b32 s41, s32, 1
    s_lshl_b32 s41, s41, 4
    s_lshl_b32 s55, s46, 5
    s_add_u32 s55, s55, s41                ; G0 base
    v_lshrrev_b32 v13, 5, v2               ; hf
    v_and_b32 v3, 31, v2                   ; token
    v_lshlrev_b32 v14, 4, v3
    v_lshlrev_b32 v15, 3, v3
    v_add_u32 v15, 1024, v15
    """)
    for sl in range(8):
        d = 48 + sl
        A(f"""
        v_add_u32 v16, {2*sl}, v13
        v_add_u32 v16, s55, v16                ; G
        v_mul_u32_u24 v17, 205, v16
        v_lshrrev_b32 v17, 10, v17             ; h = G/5
        v_mul_u32_u24 v18, 5, v17
        v_sub_u32 v18, v16, v18                ; j
        v_mul_lo_u32 v17, v17, s49             ; h*HS
        v_and_b32 v19, 1, v18
        v_lshlrev_b32 v19, 9, v19              ; (j&1)*512
        v_add_u32 v19, v19, v14
        v_cmp_eq_u32 vcc, 4, v18
        v_cmp_gt_u32 s[72:73], 2, v18
        s_nop 0
        v_cndmask_b32 v19, v19, v15, vcc
        """)
        if sl == 0:
            A(f"""
            v_mov_b32 v20, 10
            v_cndmask_b32 v20, v20, 2, vcc
            v_cndmask_b32 v20, v20, 1, s[72:73]
            """)
        else:
            A(f"""
            v_mov_b32 v20, 0
            v_cndmask_b32 v20, v20, 2, vcc
            v_cndmask_b32 v20, v20, {1 if sl < 7 else 2}, s[72:73]
            """)
        A(f"""
        v_add_u32 v19, v19, v17
        v_add_u32 v{d}, v19, v20
        """)
    loop("k1T", 6, p_reads, p_mfmas(False), p_dma, 2)
    if fused: A("s_setprio 3")
    if mprof: wl_stamp(A, 160, 0)
    for rt in range(2):
        for sl in range(8):
            r = 64 + 16*(2*rt + (sl >> 2)) + 4*(sl & 3)
            t = 16 + 16*rt + 2*sl
            A(f"""
            v_pk_mul_f32 v[{r}:{r+1}], v[{r}:{r+1}], s[70:71]
            v_pk_mul_f32 v[{r+2}:{r+3}], v[{r+2}:{r+3}], s[70:71]
            v_cvt_pk_bf16_f32 v{t}, v{r}, v{r+1}
            v_cvt_pk_bf16_f32 v{t+1}, v{r+2}, v{r+3}
            """)
    for sl in range(8):
        lab = A.label("qk")
        A(f"""
        v_and_b32 v56, 3, v{48+sl}
        v_and_b32 v57, -4, v{48+sl}
        """)
        if sl < 7:
            A(f"""
            v_cmp_eq_u32 vcc, 1, v56
            s_nop 1
            s_mov_b64 exec, vcc
            s_cbranch_execz {lab}_a
            buffer_store_dwordx4 v[{16+2*sl}:{19+2*sl}], v57, s[24:27], s68 offen{SCQ}
            buffer_store_dwordx4 v[{32+2*sl}:{35+2*sl}], v57, s[24:27], s68 offen offset:1280{SCQ}
            {lab}_a:
            s_mov_b64 exec, -1
            """)
        A(f"""
        v_cmp_eq_u32 vcc, 2, v56
        s_nop 1
        s_mov_b64 exec, vcc
        s_cbranch_execz {lab}_b
        buffer_store_dwordx2 v[{16+2*sl}:{17+2*sl}], v57, s[24:27], s68 offen{SCQ}
        buffer_store_dwordx2 v[{32+2*sl}:{33+2*sl}], v57, s[24:27], s68 offen offset:1280{SCQ}
        {lab}_b:
        s_mov_b64 exec, -1
        """)
    A("s_branch Lk1_end")
    A("Lk1_mainV:")
    A(f"""
    s_lshr_b32 s68, s44, 3
    s_mul_i32 s68, s68, {CH}
    s_and_b32 s41, s44, 7
    s_mul_i32 s41, s41, {VT}
    s_add_u32 s68, s68, s41
    s_add_u32 s68, s68, {KV_OFF + VPART}
    s_and_b32 s41, s32, 1
    s_lshl_b32 s41, s41, 6
    s_lshl_b32 s55, s46, 7
    s_add_u32 s55, s55, s41
    v_and_b32 v3, 31, v2
    v_lshrrev_b32 v13, 5, v2               ; hf
    v_mul_u32_u24 v14, {VH}, v13
    s_mov_b32 s49, {HSK}
    """)
    for ct in range(2):
        A(f"""
        v_add_u32 v16, {32*ct}, v3
        v_add_u32 v16, s55, v16                ; c
        v_mul_u32_u24 v17, 3277, v16
        v_lshrrev_b32 v17, 16, v17             ; h
        v_mul_u32_u24 v18, 20, v17
        v_sub_u32 v18, v16, v18                ; dh
        v_mul_lo_u32 v17, v17, s49
        v_cmp_eq_u32 s[{72+2*ct}:{73+2*ct}], 0, v18
        """)
        vslot(A, 18, 20, 21)
        A(f"""
        v_lshl_add_u32 v19, v20, 4, v17
        v_add_u32 v{48+ct}, v19, v14
        """)
    loop("k1N", 6, p_reads, p_mfmas(True), p_dma, 2)
    if fused: A("s_setprio 3")
    if mprof: wl_stamp(A, 160, 0)
    for ct in range(2):
        for rt in range(2):
            for j in range(2):
                r = 64 + 16*(2*rt + ct) + 8*j
                t = 32 + 4*(2*rt + j)
                for m in range(4):
                    A(f"v_cvt_pk_bf16_f32 v{t+m}, v{r+2*m}, v{r+2*m+1}")
                A(f"buffer_store_dwordx4 v[{t}:{t+3}], v{48+ct}, s[24:27], s68 offen offset:{rt*VT + j*2*VH}{SC}")
    A("s_branch Lk1_end")

    A("Lk1_gate:")
    srd(A, 28, 12, GW_BYTES)
    A(f"""
    s_mul_i32 s41, s32, 320
    s_add_u32 m0, s41, {GATE_LDS}
    v_lshlrev_b32 v12, 4, v2
    v_cmp_gt_u32 vcc, 20, v2
    s_and_saveexec_b64 s[76:77], vcc
    buffer_load_dwordx4 v12, s[28:31], s41 offen lds
    s_mov_b64 exec, s[76:77]
    """)
    def g_dma():
        g = x_dma("s52")
        g.append(adv_group(0))
        return g
    for st in range(2):
        A(f"s_add_u32 s52, s42, {st*SLOT}")
        for grp in g_dma():
            for l in grp: A(l)
        if st == 0: A("s_barrier")
    A("s_lshl_b32 s41, s32, 12")
    xfrag_addr("s41")
    A(f"""
    v_lshlrev_b32 v9, 4, v13               ; hf*16
    v_add_u32 v62, {GATE_LDS}, v9
    s_lshl_b32 s57, s69, 7
    v_add_u32 v9, s57, v62
    v_mov_b32 v60, 0
    s_mov_b32 s43, 0
    """)
    for i in range(16): A(f"v_mov_b32 v{64+i}, 0")
    def g_reads(ks, fs):
        b = 16 + 16*fs
        out = [f"ds_read_b128 v[{b}:{b+3}], v{4+ks}", f"ds_read_b128 v[{b+4}:{b+7}], v9 offset:{ks*32}"]
        if ks == 3:
            if ROT == 2:
                out += ["s_add_u32 s69, s69, 1", "s_cmp_eq_u32 s69, 10", "s_cselect_b32 s69, 0, s69", "s_lshl_b32 s57, s69, 7", "v_add_u32 v9, s57, v62"]
            else:
                out += ["s_add_u32 s69, s69, 1", "s_add_u32 s57, s69, s78", "s_sub_u32 s57, s57, 2", "s_and_b32 s57, s57, 7", "s_add_u32 s57, s57, 2",
                        "s_cmp_lt_u32 s69, 2", "s_cselect_b32 s57, s69, s57", "s_lshl_b32 s57, s57, 7", "v_add_u32 v9, s57, v62"]
        return out
    def g_mfmas(fs):
        b = 16 + 16*fs
        return [f"v_mfma_f32_32x32x16_bf16 v[64:79], v[{b+4}:{b+7}], v[{b}:{b+3}], v[64:79]"]
    A(f"s_waitcnt vmcnt(2)")
    A("s_barrier")
    A(f"s_add_u32 s52, s42, {2*SLOT}")
    for grp in g_dma():
        for l in grp: A(l)
    if prof:
        A("s_mov_b32 s90, 0")
    for l in set_slot(0, "0"): A(l)
    for l in g_reads(0, 0): A(l)
    A("s_mov_b32 s40, 0")
    A(f"s_mov_b32 s50, {SLOT}")
    A("s_mov_b32 s51, 0")
    A("Lk1g_loop:")
    for ks in range(3):
        fs = ks & 1
        for l in g_reads(ks + 1, fs ^ 1): A(l)
        A("s_waitcnt lgkmcnt(2)")
        for l in g_mfmas(fs): A(l)
    A(f"""
    s_cmp_lt_u32 s40, 8
    s_cbranch_scc1 Lk1g_a
    s_waitcnt vmcnt(0)
Lk1g_a:
    s_waitcnt vmcnt(2) lgkmcnt(0)
    s_barrier
    """)
    for l in set_slot(0, "s50"): A(l)
    for l in g_mfmas(1): A(l)
    for l in g_reads(0, 0): A(l)
    A(f"""
    s_cmp_lt_u32 s40, 7
    s_cbranch_scc0 Lk1g_b
    s_add_u32 s52, s51, s42
    """)
    for grp in g_dma():
        for l in grp: A(l)
    A(f"""
Lk1g_b:
    s_mov_b32 s51, s50
    s_add_u32 s50, s50, {SLOT}
    s_cmp_ge_u32 s50, {3*SLOT}
    s_cselect_b32 s50, 0, s50
    s_add_u32 s40, s40, 1
    s_cmp_lt_u32 s40, 10
    s_cbranch_scc1 Lk1g_loop
    s_waitcnt lgkmcnt(0)
    s_nop 15
    v_mul_f32 v16, {f32bits(-LOG2E):#x}, v64
    v_exp_f32 v16, v16
    s_nop 0
    v_add_f32 v16, 1.0, v16
    v_rcp_f32 v16, v16
    s_lshl_b32 s44, s34, 2
    s_add_u32 s44, s44, s32                ; T
    s_lshl_b32 s44, s44, 7                 ; *32*4 bytes
    s_add_u32 s44, s44, {G_OFF}
    v_lshlrev_b32 v17, 2, v2
    v_cmp_gt_u32 vcc, 32, v2
    s_and_saveexec_b64 s[76:77], vcc
    buffer_store_dword v16, v17, s[24:27], s44 offen{SC}
    s_mov_b64 exec, s[76:77]
    s_branch Lk1_end
    """)

    A("Lk1_R:")
    if prof:
        A("v_writelane_b32 v61, s87, 8")
        wl_stamp(A, 61, 9)
    srd(A, 20, 8, W1_BYTES)
    srd(A, 28, 10, B1_BYTES)
    A(f"""
    s_sub_u32 s47, s32, 4
    s_mul_i32 s41, s35, 192
    v_lshrrev_b32 v3, 5, v2
    v_lshlrev_b32 v3, 4, v3
    """)
    if prof: wl_stamp(A, 61, 12)
    A(f"""
    buffer_load_dwordx4 v[112:115], v3, s[28:31], s41 offen
    """)
    if prof: wl_stamp(A, 61, 13)
    A(f"""
    buffer_load_dwordx4 v[116:119], v3, s[28:31], s41 offen offset:32
    buffer_load_dwordx4 v[120:123], v3, s[28:31], s41 offen offset:64
    buffer_load_dwordx4 v[124:127], v3, s[28:31], s41 offen offset:96
    buffer_load_dwordx4 v[48:51], v3, s[28:31], s41 offen offset:128
    buffer_load_dwordx4 v[52:55], v3, s[28:31], s41 offen offset:160
    """)
    if prof: wl_stamp(A, 61, 14)
    for j, reg in enumerate((12, 62, 63)):
        A(f"""
        s_mul_i32 s41, s47, 192
        s_add_u32 s41, s41, {64*j}
        v_add_u32 v13, s41, v2                 ; t
        v_mul_u32_u24 v14, 5462, v13
        v_lshrrev_b32 v14, 16, v14             ; t/12
        v_mul_u32_u24 v15, 12, v14
        v_sub_u32 v15, v13, v15
        v_mul_u32_u24 v14, 3072, v14
        v_lshl_add_u32 v{reg}, v15, 4, v14
        """)
    A(f"""
    s_mul_i32 s59, s35, 192
    s_mul_i32 s57, s79, {64*3072}
    s_add_u32 s38, s59, s57
    s_mul_i32 s43, s47, 3072
    s_add_u32 s43, s43, {W1O}
    """)
    def r_dma():
        g = x_dma("s52")
        for j, reg in enumerate((12, 62, 63)):
            g.append([f"s_add_u32 m0, s53, {j*1024}", "s_nop 0",
                      f"buffer_load_dwordx4 v{reg}, s[20:23], s38 offen lds"])
        g.append(adv_group(64*3072))
        return g
    def r_stage(st):
        A(f"s_add_u32 s52, s42, {st*SLOT}")
        A(f"s_add_u32 s53, s43, {st*SLOT}")
        for grp in r_dma():
            for l in grp: A(l)
    if prof: wl_stamp(A, 61, 0)
    r_stage(0)
    if prof: wl_stamp(A, 61, 1)
    A("s_barrier")
    A("s_lshl_b32 s41, s47, 12")
    xfrag_addr("s41")
    A(f"""
    v_bfe_u32 v14, v2, 2, 2
    v_lshl_add_u32 v15, v13, 3, v14
    v_mul_u32_u24 v15, 192, v15
    v_bfe_u32 v3, v2, 4, 1
    v_lshl_add_u32 v15, v3, 5, v15
    v_and_b32 v3, 3, v2
    v_lshrrev_b32 v1, 1, v3
    v_and_b32 v3, 1, v3
    v_lshl_or_b32 v3, v3, 1, v1
    v_lshl_add_u32 v15, v3, 3, v15
    v_add_u32 v60, {W1O}, v15
    """)
    if prof: wl_stamp(A, 61, 2)
    r_stage(1)
    if prof: wl_stamp(A, 61, 3)
    A("s_waitcnt vmcnt(10)")
    if prof:
        wl_stamp(A, 61, 4)
    bsrc = [112, 116, 120, 124, 48, 52]
    for ct in range(3):
        for half in range(2):
            for m in range(4):
                src = bsrc[2*ct + half] + m
                d = 64 + 16*ct + 8*half + 2*m
                A(f"v_lshlrev_b32 v{d}, 16, v{src}")
                A(f"v_and_b32 v{d+1}, 0xffff0000, v{src}")
    def r_reads(ks, fs):
        b = 16 + 16*fs
        out = [f"ds_read_b128 v[{b}:{b+3}], v{4+ks}"]
        for ct in range(3):
            out.append(f"ds_read_b64_tr_b16 v[{b+4+4*ct}:{b+5+4*ct}], v8 offset:{ks*16*192 + ct*64}")
            out.append(f"ds_read_b64_tr_b16 v[{b+6+4*ct}:{b+7+4*ct}], v8 offset:{ks*16*192 + 4*192 + ct*64}")
        return out
    def r_mfmas(fs):
        b = 16 + 16*fs
        return [f"v_mfma_f32_32x32x16_bf16 v[{64+16*ct}:{64+16*ct+15}], v[{b+4+4*ct}:{b+7+4*ct}], v[{b}:{b+3}], v[{64+16*ct}:{64+16*ct+15}]" for ct in range(3)]
    loop("k1R", 5, r_reads, r_mfmas, r_dma, 1)
    if not fused: A("s_setprio 2")
    A(f"""
    s_lshl_b32 s44, s34, 2
    s_add_u32 s44, s44, s47                ; T
    s_mul_i32 s45, s44, {2*48*1024}
    s_mul_i32 s41, s35, {3*1024}
    s_add_u32 s45, s45, s41
    s_add_u32 s45, s45, {ACT_OFF}
    v_bfe_u32 v13, v2, 4, 1                ; token>>4
    v_mul_u32_u24 v13, {48*1024}, v13
    v_lshrrev_b32 v14, 5, v2               ; hf
    v_lshl_add_u32 v13, v14, 8, v13
    v_and_b32 v14, 15, v2
    v_lshl_add_u32 v13, v14, 4, v13
    s_mov_b32 s54, {f32bits(LOG2E):#x}
    s_mov_b32 s55, s54
    v_mov_b32 v2, 2.0
    v_mov_b32 v3, 2.0
    """)
    def mish8(r, t0):
        for p in range(4):
            A(f"v_pk_mul_f32 v[{t0+2*p}:{t0+2*p+1}], v[{r+2*p}:{r+2*p+1}], s[54:55]")
        for i in range(8):
            A(f"v_exp_f32 v{t0+i}, v{t0+i}")
        for p in range(4):
            A(f"v_pk_add_f32 v[{t0+8+2*p}:{t0+8+2*p+1}], v[{t0+2*p}:{t0+2*p+1}], v[2:3]")
        for p in range(4):
            A(f"v_pk_fma_f32 v[{t0+2*p}:{t0+2*p+1}], v[{t0+2*p}:{t0+2*p+1}], v[{t0+8+2*p}:{t0+8+2*p+1}], v[2:3]")
        for i in range(8):
            A(f"v_rcp_f32 v{t0+i}, v{t0+i}")
        A("s_nop 0")
        for p in range(4):
            A(f"v_pk_fma_f32 v[{t0+2*p}:{t0+2*p+1}], v[{t0+2*p}:{t0+2*p+1}], -2.0, 1.0 op_sel_hi:[1,0,0]")
        for p in range(4):
            A(f"v_pk_mul_f32 v[{r+2*p}:{r+2*p+1}], v[{r+2*p}:{r+2*p+1}], v[{t0+2*p}:{t0+2*p+1}]")
    k = 0
    for ct in range(3):
        for j in range(2):
            r = 64 + 16*ct + 8*j
            mish8(r, 16)
            t = 32 + 4*k; k += 1
            for m in range(4):
                A(f"v_cvt_pk_bf16_f32 v{t+m}, v{r+2*m}, v{r+2*m+1}")
            if not fused:
                A(f"buffer_store_dwordx4 v[{t}:{t+3}], v13, s[24:27], s45 offen offset:{ct*1024 + j*512}{SC}")
    if fused:
        if rtrig == 2: lds_spin(A, FL + LF_FULL, 1, 8, tmp=(16, 17), sleep=4)
        elif rtrig == 1: lds_spin(A, FL + LF_GO, 1, 1, tmp=(16, 17), sleep=4)
        else: lds_spin(A, FL + LF_PD, 1, 4, tmp=(16, 17), sleep=4)
        k = 0
        for ct in range(3):
            for j in range(2):
                t = 32 + 4*k; k += 1
                A(f"buffer_store_dwordx4 v[{t}:{t+3}], v13, s[24:27], s45 offen offset:{ct*1024 + j*512}{SC}")
    A("s_branch Lk1_endR" if fused else "s_branch Lk1_end")
    A("Lk1_H:")
    if fused:
        A(f"""
        s_cmp_eq_u32 s32, 8
        s_cbranch_scc1 Lk1_H0
        s_cmp_eq_u32 s32, 10
        s_cbranch_scc0 Lk1_Hn2
        v_lshlrev_b32 v3, 2, v2
        v_add_u32 v3, {FL}, v3
        v_mov_b32 v4, 0
        v_cmp_gt_u32 vcc, 32, v2
        s_and_saveexec_b64 s[50:51], vcc
        ds_write_b32 v3, v4
        s_mov_b64 exec, s[50:51]
        s_waitcnt lgkmcnt(0)
Lk1_Hn2:
        s_cmp_eq_u32 s32, 9
        s_cbranch_scc0 Lk1_Hplain
        s_load_dwordx2 s[50:51], s[0:1], 72    ; d_debug
        s_waitcnt lgkmcnt(0)
        """)
        srd(A, 52, 50, 256)
        A(f"""
        v_mov_b32 v4, 0
        s_cmp_eq_u32 s2, 0
        s_cbranch_scc0 Lk1_notag0
        s_memrealtime s[50:51]
        s_waitcnt lgkmcnt(0)
        s_or_b32 s50, s50, 1
        v_mov_b32 v3, s50
        s_mov_b64 exec, 1
        buffer_store_dword v3, v4, s[52:55], 0 offen sc1
        s_mov_b64 exec, -1
Lk1_notag0:
        s_barrier
        s_barrier
        s_barrier
        s_mov_b32 s50, 0x40000
Lk1_tagpoll:
        buffer_load_dword v3, v4, s[52:55], 0 offen sc1
        s_waitcnt vmcnt(0)
        v_readfirstlane_b32 s51, v3
        s_nop 3
        s_cmp_lg_u32 s51, 0
        s_cbranch_scc1 Lk1_gottag
        s_sleep 4
        s_sub_u32 s50, s50, 1
        s_cbranch_scc0 Lk1_tagpoll
Lk1_gottag:
        v_mov_b32 v4, {FL + LF_TAG}
        ds_write_b32 v4, v3
        s_waitcnt lgkmcnt(0)
        """)
        for i in range(9): A("s_barrier")
        A("s_branch Lattn_entry")
        A("Lk1_Hplain:")
        for i in range(12): A("s_barrier")
        A("s_branch Lattn_entry")
        A("Lk1_H0:")
    if True:
        A(f"""
        s_and_b32 s41, s2, 7
        s_and_b32 s43, s41, 1                  ; rh
        s_lshr_b32 s44, s41, 1                 ; cq
        s_lshr_b32 s45, s2, 3                  ; i
        v_mov_b32 v13, 0x7ffffff0
        s_lshl_b32 s46, s43, 10
        s_lshl_b32 s47, s45, 5
        s_add_u32 s46, s46, s47
        v_add_u32 v3, s46, v2
        v_mul_u32_u24 v3, 1280, v3
        v_cmp_gt_u32 vcc, 32, v2
        s_nop 1
        v_cndmask_b32 v4, v13, v3, vcc
        v_lshrrev_b32 v3, 3, v2
        s_lshl_b32 s47, s45, 1
        v_add_u32 v3, s47, v3
        v_mul_u32_u24 v3, 3840, v3
        v_and_b32 v5, 7, v2
        v_lshlrev_b32 v5, 7, v5
        s_lshl_b32 s48, s44, 10
        v_add_u32 v5, s48, v5
        v_cmp_gt_u32 vcc, 3840, v5
        v_add_u32 v5, v5, v3
        v_cmp_gt_u32 s[50:51], 16, v2
        s_and_b64 vcc, vcc, s[50:51]
        s_nop 1
        v_cndmask_b32 v5, v13, v5, vcc
        ; W1: lanes<12: (2i + lane/6)*3072 + cq*768 + (lane%6)*128
        v_cmp_lt_u32 vcc, 5, v2
        v_mov_b32 v6, 0
        v_mov_b32 v7, 1
        v_cndmask_b32 v3, v6, v7, vcc
        v_mul_u32_u24 v6, 6, v3
        v_sub_u32 v6, v2, v6
        v_lshlrev_b32 v6, 7, v6
        v_add_u32 v3, s47, v3
        v_mul_u32_u24 v3, 3072, v3
        v_add_u32 v6, v6, v3
        s_mul_i32 s48, s44, 768
        v_add_u32 v6, s48, v6
        v_cmp_gt_u32 vcc, 12, v2
        s_nop 1
        v_cndmask_b32 v6, v13, v6, vcc
        s_barrier
        """)
        def PF(st):
            A(f"s_mov_b32 s46, {st*128}")
            A(f"buffer_load_dword v16, v4, s[16:19], s46 offen")
            A(f"s_mov_b32 s47, {st*64*3840}")
            A(f"buffer_load_dword v17, v5, s[60:63], s47 offen")
            A(f"s_mov_b32 s48, {st*64*3072}")
            A(f"buffer_load_dword v18, v6, s[64:67], s48 offen")
        def unit_start(u):
            A(f"""
            s_add_u32 s41, s2, {256*u}
            s_mul_i32 s45, s41, 6554
            s_lshr_b32 s45, s45, 16                ; ksg
            s_mul_i32 s47, s45, 10
            s_sub_u32 s47, s41, s47                ; blk
            s_cmp_lt_u32 s45, 48
            s_cselect_b32 s96, s80, s82
            s_cselect_b32 s97, s81, s83
            s_mov_b32 s98, {W2_BYTES}
            s_cselect_b32 s98, s98, {WO_BYTES}
            s_cselect_b32 s100, 0, 48
            s_and_b32 s97, s97, 0xffff
            s_mov_b32 s99, 0x00020000
            s_sub_u32 s100, s45, s100
            s_mul_i32 s100, s100, {32*1280}
            s_lshl_b32 s101, s47, 7
            s_add_u32 s100, s100, s101
            s_lshl_b32 s77, s47, 2                 ; c0
            s_mul_i32 s101, s45, 5120
            s_cmp_lt_u32 s41, 680
            s_cselect_b32 s76, 1, 0
            s_cbranch_scc0 Lk1_us{u}
            """)
            for j in range(4):
                A(f"s_mov_b32 m0, {UNIT_LDS + j*1024}")
                A(f"s_add_u32 s48, s100, {j*8*1280}")
                A(f"buffer_load_dwordx4 v8, s[96:99], s48 offen lds")
            A(f"Lk1_us{u}:")
        def unit_finish(u):
            A(f"""
            s_cmp_eq_u32 s76, 1
            s_cbranch_scc0 Lk1_uf{u}
            s_waitcnt vmcnt(0)
            """)
            for cc in range(4):
                A(f"ds_read_b64_tr_b16 v[{20+4*cc}:{21+4*cc}], v9 offset:{cc*32}")
                A(f"ds_read_b64_tr_b16 v[{22+4*cc}:{23+4*cc}], v9 offset:{cc*32 + 512}")
            A("s_waitcnt lgkmcnt(0)")
            for cc in range(4):
                A(f"""
                s_add_u32 s41, s77, {cc}               ; c
                s_mul_i32 s45, s41, 205
                s_lshr_b32 s45, s45, 10                ; cg8 = c/5
                s_mul_i32 s47, s45, 5
                s_sub_u32 s47, s41, s47                ; ct
                s_mul_i32 s45, s45, {WF_CG}
                s_lshl_b32 s47, s47, 10
                s_add_u32 s45, s45, s47
                s_add_u32 s45, s45, s101
                s_add_u32 s45, s45, {WF_OFF}
                buffer_store_dwordx4 v[{20+4*cc}:{23+4*cc}], v10, s[24:27], s45 offen{SCW}
                """)
            A(f"Lk1_uf{u}:")
        A(f"""
        s_lshl_b32 s41, s2, 6
        v_add_u32 v11, s41, v2
        v_lshrrev_b32 v12, 9, v11
        s_mov_b32 s41, {HSK}
        v_mul_lo_u32 v12, v12, s41             ; h*HSK
        v_bfe_u32 v13, v11, 6, 3
        v_mul_u32_u24 v13, {CH}, v13
        v_add_u32 v12, v12, v13
        v_bfe_u32 v13, v11, 3, 3               ; tile&7
        v_mul_u32_u24 v13, {VT}, v13
        v_add_u32 v12, v12, v13
        v_bfe_u32 v13, v11, 1, 2
        v_mul_u32_u24 v13, {VH}, v13
        v_add_u32 v12, v12, v13
        v_and_b32 v13, 1, v11
        v_mul_u32_u24 v14, 112, v13
        v_add_u32 v12, v12, v14
        v_add_u32 v12, {KV_OFF + VPART + 128}, v12
        v_cmp_eq_u32 vcc, 0, v13
        v_mov_b32 v14, 0x3f803f80
        s_nop 0
        v_cndmask_b32 v20, 0, v14, vcc
        v_mov_b32 v21, v20
        v_mov_b32 v22, v20
        v_mov_b32 v23, v20
        buffer_store_dwordx4 v[20:23], v12, s[24:27], 0 offen{SC}
        v_lshrrev_b32 v8, 3, v2
        v_mul_u32_u24 v8, 1280, v8
        v_and_b32 v3, 7, v2
        v_lshl_add_u32 v8, v3, 4, v8
        v_lshrrev_b32 v9, 4, v2
        v_bfe_u32 v3, v2, 2, 2
        v_lshl_add_u32 v9, v9, 3, v3
        v_lshlrev_b32 v9, 7, v9
        v_and_b32 v3, 3, v2
        v_lshl_add_u32 v9, v3, 3, v9
        v_add_u32 v9, {UNIT_LDS}, v9
        v_lshlrev_b32 v10, 4, v2
        """)
        if pf == 1:
            PF(2); PF(3)
        A("s_barrier")
        for k in range(6):
            if pf == 1: PF(4 + k)
            A("s_barrier")
        unit_start(0)
        A("s_barrier")
        unit_finish(0); unit_start(1)
        A("s_barrier")
        unit_finish(1); unit_start(2)
        A("s_barrier")
        unit_finish(2)
        A("s_barrier")
    if fused:
        A("s_waitcnt vmcnt(0)")
        if mprof: wl_stamp(A, 160, 0)
        get_tag(A, FL + LF_TAG, "s50")
        publish256(A, 24, F1W_OFF, "s50")
        A("s_branch Lattn_entry")
    else:
        A("s_endpgm")
    if fused:
        A("Lk1_endR:")
        A("s_waitcnt vmcnt(0)")
        A(f"s_sub_u32 s41, s32, 4")
        A("s_lshl_b32 s41, s41, 2")
        A(f"s_add_u32 s41, s41, {FL + LF_RD}")
        A("v_mov_b32 v4, s41")
        A("v_mov_b32 v5, 1")
        A("ds_write_b32 v4, v5")
        A("s_branch Lshadow_entry")
        A("Lk1_end:")
        if mprof: wl_stamp(A, 160, 1)
        A("s_waitcnt vmcnt(0)")
        if mprof: wl_stamp(A, 160, 2)
        A("s_lshl_b32 s41, s32, 2")
        A(f"s_add_u32 s41, s41, {FL + LF_PD}")
        A("v_mov_b32 v4, s41")
        A("v_mov_b32 v5, 1")
        A("ds_write_b32 v4, v5")
        A("s_branch Lattn_entry")
        A("Lk1_exit:")
        A("s_endpgm")
        return A.text()
    A("Lk1_end:")
    if prof:
        A("s_memtime s[88:89]")
        A("s_waitcnt lgkmcnt(0)")
        A("s_sub_u32 s88, s88, s92")
        A("s_cmp_ge_u32 s32, 4")
        A("s_cbranch_scc1 Lk1_dbgR")
        A("v_mov_b32 v61, v63")
        A("Lk1_dbgR:")
        A("v_writelane_b32 v61, s88, 11")
        A("v_writelane_b32 v61, s91, 10")
        A(f"""
        s_lshl_b32 s97, s2, 4
        s_add_u32 s97, s97, s32
        s_lshl_b32 s97, s97, 6
        s_add_u32 s97, s97, {DBG_OFF + 0x100000}
        v_and_b32 v4, 63, v0
        v_lshlrev_b32 v4, 2, v4
        v_cmp_gt_u32 vcc, 16, v0
        v_and_b32 v5, 63, v0
        v_cmp_gt_u32 vcc, 16, v5
        s_and_saveexec_b64 s[56:57], vcc
        buffer_store_dword v61, v4, s[24:27], s97 offen
        s_mov_b64 exec, s[56:57]
        """)
        prof_end(A, 0, 24, 32, tmpv=(4, 5, 6, 7, 8), extra="s90")
    if tl: tl2_record(A, 0, 24, 32)
    A("Lk1_exit:")
    A("s_endpgm")
    return A.text(), kdesc(NAME, 128), f"; @launch kernel={NAME} grid=(256,1,1) block=(576,1,1) lds={LDS_BYTES}"
```

```python
from asm import *
from common import *
from k2_shadow import gen_shadow

NAME = "k2_kernel"
SLOT = 24576
SH_BASE = 3 * SLOT
FLAG = SH_BASE + 4 * 20480
LDS_BYTES = FLAG + 128

X_ = [16, 48]
P_ = 80
O_ = 88
C_ = 104
QM = 120
QT = 124
KF = [126, 130]
KT = 134
V0 = 136
V1 = 140
FL = 144

def mf(d, a, b, c):
    cs = "0" if c is None else f"v[{c}:{c+15}]"
    return f"v_mfma_f32_32x32x16_bf16 v[{d}:{d+15}], v[{a}:{a+3}], v[{b}:{b+3}], {cs}"
def mf2b(d, a, b, c):
    cs = "0" if c is None else f"v[{c}:{c+31}]"
    return f"v_mfma_f32_32x32x4_2b_bf16 v[{d}:{d+31}], v[{a}:{a+1}], v[{b}:{b+1}], {cs}"

def vslot(A, row, dst, t1):
    A(f"""
    v_mov_b32 v{dst}, v{row}
    v_add_u32 v{t1}, 12, v{row}
    v_cmp_lt_u32 vcc, 3, v{row}
    s_nop 1
    v_cndmask_b32 v{dst}, v{dst}, v{t1}, vcc
    v_subrev_u32 v{t1}, 1, v{row}
    v_cmp_lt_u32 vcc, 9, v{row}
    s_nop 1
    v_cndmask_b32 v{dst}, v{dst}, v{t1}, vcc
    v_subrev_u32 v{t1}, 8, v{row}
    v_cmp_lt_u32 vcc, 11, v{row}
    s_nop 1
    v_cndmask_b32 v{dst}, v{dst}, v{t1}, vcc
    v_subrev_u32 v{t1}, 5, v{row}
    v_cmp_lt_u32 vcc, 15, v{row}
    s_nop 1
    v_cndmask_b32 v{dst}, v{dst}, v{t1}, vcc
    v_cmp_lt_u32 vcc, 19, v{row}
    s_nop 1
    v_cndmask_b32 v{dst}, v{dst}, 8, vcc
    v_cmp_lt_u32 vcc, 20, v{row}
    s_nop 1
    v_cndmask_b32 v{dst}, v{dst}, 15, vcc
    """)

def gen_k2(prof=False, exp_mode=0, shadow=True, shprio=0, pa=1, pb=2, tl=0, nofb=0, lstamp=0, desc=3, na=10, fused=False, mprof=0):
    A = Asm(10000)
    if not fused:
        A(khead(NAME))
        A(f"""
        s_cmp_ge_u32 s2, 256
        s_cbranch_scc1 Lk2_end
        """)
        if prof: prof_start(A)
        if tl: tl_start(A, 1)
    def ids():
        A(f"""
        s_load_dwordx2 s[4:5], s[0:1], 80
        v_lshrrev_b32 v9, 6, v0
        v_and_b32 v1, 63, v0                   ; lane
        s_and_b32 s20, s2, 7
        v_readfirstlane_b32 s12, v9            ; wave
        s_lshr_b32 s21, s2, 3
        s_and_b32 s22, s21, 3
        s_lshl_b32 s13, s20, 2
        s_add_u32 s13, s13, s22                ; h
        s_lshr_b32 s14, s21, 2                 ; qb
        s_lshl_b32 s15, s14, 3
        s_add_u32 s15, s15, s12                ; T
        """)
    if fused:
        A("Lshadow_entry:")
        ids()
        A("s_branch Lk2_shadow")
        A("Lattn_entry:")
        A("s_setprio 0")
        ids()
    else:
        ids()
        A("s_cmp_ge_u32 s12, 8")
        A("s_cbranch_scc1 Lk2_shadow")
    A(f"""
    s_mul_i32 s16, s13, {HSK}
    s_add_u32 s16, s16, {KV_OFF}
    s_mul_i32 s23, s13, {HSQ}
    s_mul_i32 s24, s15, 1280
    s_add_u32 s23, s23, s24
    s_add_u32 s23, s23, {QF_OFF}
    v_lshlrev_b32 v8, 4, v1                ; lane*16
    v_and_b32 v9, 31, v1
    v_lshrrev_b32 v10, 5, v1               ; hf
    v_lshlrev_b32 v11, 3, v9
    v_add_u32 v11, 1024, v11               ; 1024 + token*8
    s_mul_i32 s25, s12, 3072
    s_add_u32 s17, s16, s25
    s_waitcnt lgkmcnt(0)
    """)
    srd_ws(A, 8, 4, WS_RECORDS)
    def dma_groups(slot_sgpr, slot_imm=0):
        g = []
        for j in range(3):
            m0 = f"s_add_u32 m0, {slot_sgpr}, {slot_imm + j*1024}"
            g.append([m0, f"s_add_u32 s26, s17, {j*1024}", f"buffer_load_dwordx4 v8, s[8:11], s26 offen lds"])
        g.append([f"s_add_u32 s17, s17, {CH}"])
        return g
    def first_loads():
        for grp in dma_groups("s25", 0):
            for l in grp: A(l)
        A(f"""
        buffer_load_dwordx4 v[{QM}:{QM+3}], v8, s[8:11], s23 offen
        buffer_load_dwordx2 v[{QT}:{QT+1}], v11, s[8:11], s23 offen
        """)
        for grp in dma_groups("s25", SLOT):
            for l in grp: A(l)
    if not fused: first_loads()
    A(f"""
    v_cmp_gt_u32 s[28:29], 32, v1          ; lanes < 32
    v_mov_b32 v5, v8
    v_mul_u32_u24 v6, 1280, v10
    v_add_u32 v6, v6, v11
    """)
    vslot(A, 9, 14, 15)
    A(f"""
    v_mul_u32_u24 v7, {VH}, v10
    v_lshl_add_u32 v7, v14, 4, v7
    v_add_u32 v7, {VPART}, v7
    v_mov_b32 v2, v5
    v_mov_b32 v3, v6
    v_mov_b32 v4, v7
    """)
    if not fused:
        A(f"""
        v_lshlrev_b32 v12, 2, v1
        v_add_u32 v12, {FLAG}, v12
        v_mov_b32 v13, 0
        s_cmp_eq_u32 s12, 0
        s_cbranch_scc0 Lk2_noclr
        s_mov_b64 exec, s[28:29]
        ds_write_b32 v12, v13
        s_mov_b64 exec, -1
Lk2_noclr:
        """)
    A(f"""
    v_and_b32 v12, 7, v1
    v_lshlrev_b32 v12, 2, v12
    v_add_u32 v12, {FLAG}, v12             ; v12: full[lane&7] ; +32: free[lane&7]
    s_lshl_b32 s33, s12, 2
    s_add_u32 s33, s33, {FLAG}
    v_mov_b32 v13, s33                     ; v13: own full word ; +32 own free word
    """)
    for i in range(4): A(f"v_mov_b32 v{V1+i}, 0")
    for i in range(4): A(f"v_mov_b32 v{P_+4+i}, 0")
    for i in range(16): A(f"v_mov_b32 v{O_+i}, 0")
    X0 = X_[0]
    if fused:
        A("s_cmp_eq_u32 s12, 4")
        A("s_cbranch_scc0 Lattn_wgo")
        lds_spin(A, FLAG + LF_PD, 1, 4, tmp=(146, 147), sleep=1)
        if mprof: wl_stamp(A, 160, 1)
        get_tag(A, FLAG + LF_TAG, "s35", tmp=(146, 147))
        A(f"""
        s_and_b32 s20, s2, 7
        s_lshr_b32 s21, s2, 3
        s_and_b32 s22, s20, 1
        s_lshl_b32 s22, s22, 3
        s_and_b32 s24, s21, 7
        s_add_u32 s22, s22, s24                ; rb
        s_lshr_b32 s20, s20, 1
        s_lshl_b32 s20, s20, 2
        s_lshr_b32 s21, s21, 3
        s_add_u32 s20, s20, s21                ; cgp
        s_lshl_b32 s20, s20, 6
        s_lshl_b32 s22, s22, 2
        s_add_u32 s20, s20, s22
        s_add_u32 s20, s20, {F1A_OFF}
        v_lshlrev_b32 v146, 10, v1
        v_mov_b32 v147, s35
        s_mov_b64 exec, 0xf
        buffer_store_dword v147, v146, s[8:11], s20 offen sc1
        s_mov_b64 exec, -1
        s_mul_i32 s20, s13, 20
        s_add_u32 s21, s20, 19
        s_lshr_b32 s20, s20, 7
        s_lshr_b32 s21, s21, 7
        v_and_b32 v146, 15, v1
        v_lshlrev_b32 v146, 2, v146
        v_bfe_u32 v147, v1, 4, 1
        v_mov_b32 v148, s20
        v_mov_b32 v149, s21
        v_cmp_eq_u32 vcc, 1, v147
        s_nop 1
        v_cndmask_b32 v148, v148, v149, vcc    ; cb
        v_lshrrev_b32 v147, 5, v1              ; 0: K, 1: V
        v_mul_u32_u24 v147, 5, v147
        v_add_u32 v147, 5, v147
        v_add_u32 v147, v147, v148
        v_lshl_add_u32 v147, v147, 6, v146
        v_lshl_add_u32 v148, v148, 6, v146
        v_bfe_u32 v149, v1, 1, 3
        v_cmp_eq_u32 s[36:37], s14, v149
        v_cmp_gt_u32 vcc, 32, v1
        s_and_b64 s[36:37], s[36:37], vcc
        s_and_b32 s20, s2, 3
        s_lshl_b32 s20, s20, 10
        s_add_u32 s20, s20, {F1A_OFF}
        s_mov_b32 s34, 0x40000
Lattn_poll:
        buffer_load_dword v150, v147, s[8:11], s20 offen sc1
        buffer_load_dword v151, v148, s[8:11], s20 offen sc1
        s_waitcnt vmcnt(0)
        v_cmp_eq_u32 vcc, s35, v150
        v_cmp_eq_u32 s[38:39], s35, v151
        s_orn2_b64 s[38:39], s[38:39], s[36:37]
        s_and_b64 vcc, vcc, s[38:39]
        s_cmp_eq_u64 vcc, exec
        s_cbranch_scc1 Lattn_polled
        s_sleep 2
        s_sub_u32 s34, s34, 1
        s_cbranch_scc0 Lattn_poll
Lattn_polled:
        """)
        if mprof: wl_stamp(A, 160, 2)
        lds_set(A, FLAG + LF_GO, 1, tmp=(146, 147))
        A("s_branch Lattn_go")
        A("Lattn_wgo:")
        lds_spin(A, FLAG + LF_GO, 1, 1, tmp=(146, 147), sleep=1)
        A("Lattn_go:")
        if mprof: wl_stamp(A, 160, 3)
        first_loads()
    A(f"""
    s_waitcnt vmcnt(3) lgkmcnt(0)
    """)
    if fused:
        A(f"v_mov_b32 v{FL}, 1")
        A(f"ds_write_b32 v13, v{FL}")
        lds_spin(A, FLAG + LF_FULL, 1, 8, tmp=(FL, FL + 1), sleep=0, cnt="s34")
        if mprof: wl_stamp(A, 160, 4)
    else:
        A("s_barrier")
    A(f"""
    ds_read_b128 v[{KF[0]}:{KF[0]+3}], v2
    ds_read_b128 v[{KF[1]}:{KF[1]+3}], v2 offset:1280
    ds_read_b64 v[{KT}:{KT+1}], v3
    ds_read_b128 v[{V0}:{V0+3}], v4
    s_waitcnt lgkmcnt(0)
    {mf(X0, KF[0], QM, None)}
    {mf(X0+16, KF[1], QM, None)}
    s_nop 11
    {mf2b(X0, KT, QT, X0)}
    s_nop 15
    s_nop 7
    """)
    A(f"v_max3_f32 v9, v{X0}, v{X0+1}, v{X0+2}")
    for i in range(3, 31, 2):
        A(f"v_max3_f32 v9, v9, v{X0+i}, v{X0+i+1}")
    A(f"v_max_f32 v9, v9, v{X0+31}")
    A(f"""
    v_mov_b32 v10, v9
    s_nop 1
    v_permlane32_swap_b32 v9, v10
    s_nop 1
    v_max_f32 v9, v9, v10
    """)
    for i in range(16): A(f"v_sub_f32 v{C_+i}, 0, v9")
    for i in range(32): A(f"v_sub_f32 v{X0+i}, v{X0+i}, v9")
    A(f"""
    ds_read_b128 v[{KF[0]}:{KF[0]+3}], v2 offset:{2*1280}
    ds_read_b128 v[{KF[1]}:{KF[1]+3}], v2 offset:{3*1280}
    ds_read_b64 v[{KT}:{KT+1}], v3 offset:{2*1280}
    s_mov_b32 s18, 0
    s_mov_b32 s19, {SLOT}
    s_mov_b32 s27, {2*SLOT}
    s_setprio {pa}
    s_cmp_ge_u32 s12, 4
    s_cbranch_scc0 Lk2_noprio
    s_setprio {pb}
Lk2_noprio:
    """)
    if prof:
        A("s_memtime s[90:91]")
        A("s_waitcnt lgkmcnt(0)")
        A("s_sub_u32 s90, s90, s92")
    A0 = A
    class F:
        def __call__(self, l):
            for x in l.strip("\n").split("\n"):
                ls = x.strip()
                if exp_mode == 2 and ls.startswith("v_mfma"): continue
                if exp_mode == 3 and (ls.startswith("v_exp") or ls.startswith("v_cvt")): continue
                if exp_mode == 4 and (ls.startswith("ds_read_b128") or ls.startswith("ds_read_b64")): continue
                if exp_mode == 5 and ls.startswith("v_mfma_f32_32x32x4"): continue
                if exp_mode == 6 and (ls.startswith("ds_read_b128") or ls.startswith("ds_read_b64") or ls.startswith("v_mfma")): continue
                if exp_mode == 7 and ls.startswith("buffer_load"): continue
                A0(x)
        def label(self, b): return A0.label(b)
    if lstamp: wl_stamp(A, 150, 0)
    if mprof: wl_stamp(A, 160, 5)
    A("Lk2_loop:")
    A = F()
    def check(reg, need_sgpr, tag):
        lab = A.label(tag)
        off = 32 if tag == "free" else 0
        A(f"""
        v_cmp_le_u32 vcc, {need_sgpr}, v{reg}
        s_cmp_eq_u64 vcc, exec
        s_cbranch_scc1 {lab}
        s_mov_b32 s34, 0x40000
        {lab}_s:
        s_sub_u32 s34, s34, 1
        s_cbranch_scc1 {lab}
        s_sleep 1
        ds_read_b32 v{reg}, v12 offset:{off}
        s_waitcnt lgkmcnt(0)
        v_cmp_le_u32 vcc, {need_sgpr}, v{reg}
        s_cmp_eq_u64 vcc, exec
        s_cbranch_scc0 {lab}_s
        {lab}:
        """)
    def tile(sc, first, pr, t):
        sn = X_[(pr + 1) & 1]
        kt = (2*pr + 4) & 7
        E = lambda i: f"v_exp_f32 v{sc+i}, v{sc+i}"
        C = lambda p, a: f"v_cvt_pk_bf16_f32 v{P_+p}, v{sc+a}, v{sc+a+1}"
        pre = []
        if desc == 1 and t % 2 == 0: A(f"s_setprio {3 - t // 2}")
        if desc == 2 and t % 2 == 0: A(f"s_setprio {max(1, 3 - t // 2) if t < 6 else 1}")
        if desc == 3: A(f"s_setprio {3 - (t % 4)}")
        if desc in (4, 5): A(f"s_setprio {3 - 2*(t % 2)}")
        if desc == 6: A(f"s_setprio {[3,3,2,2,1,1,0,0][t]}") if t % 2 == 0 else None
        if desc == 7: A(f"s_setprio {[3,2,1,0,0,1,2,3][t]}")
        if desc == 8: A(f"s_setprio {[3,2,2,1,1,0,0,0][t]}")
        A("s_waitcnt lgkmcnt(0)")
        if t == 0:
            A(f"""
            s_waitcnt vmcnt(0)
            s_add_u32 s31, s18, 2
            v_mov_b32 v{FL}, s31
            v_mov_b32 v{FL+1}, s18
            ds_write_b32 v13, v{FL}
            ds_write_b32 v13, v{FL+1} offset:32
            """)
        if t == 4:
            nofull = A.label("nofull")
            A("s_cmp_lt_u32 s18, 7")
            A(f"s_cbranch_scc0 {nofull}")
            A("s_add_u32 s31, s18, 2")
            check(FL + 1, "s31", "full")
            A(f"{nofull}:")
            A("v_add_u32 v2, s19, v5")
            A("v_add_u32 v3, s19, v6")
        if first:
            A(mf(sn, KF[0], QM, C_))
            A(f"ds_read_b128 v[{KF[0]}:{KF[0]+3}], v2 offset:{kt*1280}")
        else:
            A(mf2b(sn, KT, QT, sn))
            A(f"ds_read_b64 v[{KT}:{KT+1}], v3 offset:{kt*1280}")
        if t == 1: A(f"ds_read_b32 v{FL}, v12 offset:32")
        if t == 3: A(f"ds_read_b32 v{FL+1}, v12")
        for i in range(4): A(E(i))
        A(mf(O_, V1, P_+4, O_))
        A(f"ds_read_b128 v[{V1}:{V1+3}], v4 offset:{t*VT + 2*VH}")
        if t == 7:
            A("v_add_u32 v4, s19, v7")
        dg = []
        if t == 2:
            skip = A.label("k2skip")
            A(f"s_cmp_lt_u32 s18, 6")
            A(f"s_cbranch_scc0 {skip}")
            check(FL, "s18", "free")
            A("s_add_u32 s30, s27, s25")
            for grp in dma_groups("s30"):
                for l in grp: A(l)
            A(f"{skip}:")
        A(C(0, 0)); A(E(4)); A(C(1, 2))
        for i in (5, 6, 7): A(E(i))
        if desc == 4: A(f"s_setprio {2 - 2*(t % 2)}")
        if first:
            A(mf(sn + 16, KF[1], QM, C_))
            A(f"ds_read_b128 v[{KF[1]}:{KF[1]+3}], v2 offset:{(kt+1)*1280}")
        A(C(2, 4)); A(E(8)); A(C(3, 6)); A(E(9)); A(E(10))
        A(mf(O_, V0, P_, O_))
        A(f"ds_read_b128 v[{V0}:{V0+3}], v4 offset:{((t+1)&7)*VT}")
        for i in (11, 12, 13): A(E(i))
        A(C(4, 8)); A(E(14)); A(C(5, 10)); A(E(15)); A(C(6, 12)); A(C(7, 14))
    for pr in range(4):
        cur = X_[pr & 1]
        tile(cur, True, pr, 2*pr)
        tile(cur + 16, False, pr, 2*pr + 1)
    A = A0
    A(f"""
    s_mov_b32 s19, s27
    s_add_u32 s27, s27, {SLOT}
    s_cmp_ge_u32 s27, {3*SLOT}
    s_cselect_b32 s27, 0, s27
    s_add_u32 s18, s18, 1
    s_cmp_lt_u32 s18, 8
    s_cbranch_scc1 Lk2_loop
    """)
    if lstamp: wl_stamp(A, 150, 1)
    if mprof: wl_stamp(A, 160, 6)
    A(f"""
    s_waitcnt lgkmcnt(0)
    {mf(O_, V1, P_+4, O_)}
    s_mov_b32 s31, 0
    s_nop 15
Lk2_fin:
    v_mov_b32 v9, v{O_+8}
    v_mov_b32 v10, v{O_+8}
    s_nop 1
    v_permlane32_swap_b32 v9, v10
    s_nop 1
    v_mul_f32 v11, 0, v{O_}
    """)
    for i in range(1, 8): A(f"v_fma_f32 v11, v{O_+i}, 0, v11")
    A(f"v_mul_f32 v14, 0, v{O_+8}")
    for i in range(9, 12): A(f"v_fma_f32 v14, v{O_+i}, 0, v14")
    A(f"""
    v_cndmask_b32 v14, 0, v14, s[28:29]
    v_add_f32 v11, v11, v14
    v_add_f32 v11, v11, v10
    v_mov_b32 v15, 0x53800000              ; 2^40
    v_cmp_nlt_f32 vcc, v11, v15            ; !(l < 2^40)
    s_cmp_eq_u32 s31, 0
    s_cbranch_scc0 Lk2_store
    {"" if nofb else "s_cbranch_vccnz Lk2_fallback"}
Lk2_store:
    v_rcp_f32 v10, v10
    s_mul_i32 s20, s13, 5
    s_mul_i32 s21, s15, 40960
    s_add_u32 s21, s21, {OF_OFF}
    v_lshrrev_b32 v11, 5, v1               ; hf
    v_and_b32 v14, 15, v1
    v_lshlrev_b32 v14, 4, v14              ; token16*16
    v_bfe_u32 v15, v1, 4, 1                ; q>>4
    v_mul_u32_u24 v15, 20480, v15
    v_add_u32 v14, v14, v15
    v_add_u32 v11, s20, v11                ; G (a=0)
    """)
    for a in range(3):
        r = O_ + 4*a
        A(f"""
        v_add_u32 v16, {2*a}, v11
        v_lshrrev_b32 v17, 3, v16
        v_lshlrev_b32 v17, 10, v17
        v_bfe_u32 v18, v16, 1, 2
        v_lshl_add_u32 v17, v18, 8, v17
        v_and_b32 v18, 1, v16
        v_lshl_add_u32 v17, v18, 3, v17
        v_add_u32 v17, v17, v14
        v_mul_f32 v{r}, v{r}, v10
        v_mul_f32 v{r+1}, v{r+1}, v10
        v_mul_f32 v{r+2}, v{r+2}, v10
        v_mul_f32 v{r+3}, v{r+3}, v10
        v_cvt_pk_bf16_f32 v{r}, v{r}, v{r+1}
        v_cvt_pk_bf16_f32 v{r+1}, v{r+2}, v{r+3}
        """)
        if a == 2:
            A("s_mov_b64 exec, s[28:29]")
        A(f"buffer_store_dwordx2 v[{r}:{r+1}], v17, s[8:11], s21 offen sc1")
    A("s_mov_b64 exec, -1")
    A("s_waitcnt vmcnt(0)")
    A("s_barrier")
    A(f"""
    s_cmp_eq_u32 s12, 0
    s_cbranch_scc0 Lk2_nopub
    s_lshl_b32 s20, s14, 5
    s_add_u32 s20, s20, s13                ; qb*32 + h
    s_lshl_b32 s20, s20, 2
    s_add_u32 s20, s20, {OFLAG_OFF}
    """)
    if fused:
        get_tag(A, FLAG + LF_TAG, "s21", tmp=(16, 17))
        A("v_mov_b32 v16, s21")
    else:
        A("v_mov_b32 v16, 1")
    A(f"""
    v_mov_b32 v17, 0
    s_mov_b64 exec, 1
    buffer_store_dword v16, v17, s[8:11], s20 offen sc1
    s_mov_b64 exec, -1
Lk2_nopub:
    """)
    if prof:
        A("s_mov_b64 exec, -1")
        if lstamp: wl_dump(A, 150, 1, 8, 12, 21)
        prof_end(A, 1, 8, 12, tmpv=(16, 17, 18, 19, 20), extra="s90")
    if tl: tl2_record(A, 1, 8, 12)
    if mprof == 2:
        wl_stamp(A, 160, 7)
        dbg_dump_lanes(A, 160, 1, 8, 37, 12, 1)
    elif mprof:
        wl_stamp(A, 160, 7)
        wl_dump(A, 160, 1, 8, 12, 21)
        A("s_mov_b32 s90, 0")
        prof_end(A, 1, 8, 12, tmpv=(16, 17, 18, 19, 20), extra="s90")
    A("s_endpgm")

    s = X0
    A(f"""
Lk2_fallback:
    s_mov_b32 s31, 1
    v_and_b32 v9, 31, v1
    v_lshlrev_b32 v11, 3, v9
    v_add_u32 v11, 1024, v11
    v_mov_b32 v14, 0xff800000
    s_mov_b32 s18, 0
Lk2_fb1:
    s_lshr_b32 s20, s18, 3
    s_mul_i32 s20, s20, {CH}
    s_and_b32 s21, s18, 7
    s_mul_i32 s21, s21, 1280
    s_add_u32 s20, s20, s21
    s_add_u32 s20, s20, s16
    buffer_load_dwordx4 v[{KF[0]}:{KF[0]+3}], v8, s[8:11], s20 offen
    buffer_load_dwordx2 v[{KT}:{KT+1}], v11, s[8:11], s20 offen
    s_waitcnt vmcnt(0)
    {mf(s, KF[0], QM, None)}
    {mf(s+16, KF[0], QM, None)}
    s_nop 11
    {mf2b(s, KT, QT, s)}
    s_nop 15
    s_nop 7
    """)
    for i in range(0, 16, 2):
        A(f"v_max3_f32 v14, v14, v{s+i}, v{s+i+1}")
    A(f"""
    s_add_u32 s18, s18, 1
    s_cmp_lt_u32 s18, 64
    s_cbranch_scc1 Lk2_fb1
    v_mov_b32 v15, v14
    s_nop 1
    v_permlane32_swap_b32 v14, v15
    s_nop 1
    v_max_f32 v14, v14, v15
    """)
    for i in range(16): A(f"v_mov_b32 v{O_+i}, 0")
    A(f"""
    s_mov_b32 s18, 0
Lk2_fb2:
    s_lshr_b32 s20, s18, 3
    s_mul_i32 s20, s20, {CH}
    s_and_b32 s21, s18, 7
    s_mul_i32 s22, s21, {VT}
    s_add_u32 s22, s22, s20
    s_add_u32 s22, s22, s16
    s_mul_i32 s21, s21, 1280
    s_add_u32 s20, s20, s21
    s_add_u32 s20, s20, s16
    buffer_load_dwordx4 v[{KF[0]}:{KF[0]+3}], v8, s[8:11], s20 offen
    buffer_load_dwordx2 v[{KT}:{KT+1}], v11, s[8:11], s20 offen
    buffer_load_dwordx4 v[{V0}:{V0+3}], v7, s[8:11], s22 offen
    buffer_load_dwordx4 v[{V1}:{V1+3}], v7, s[8:11], s22 offen offset:{2*VH}
    s_waitcnt vmcnt(0)
    {mf(s, KF[0], QM, None)}
    {mf(s+16, KF[0], QM, None)}
    s_nop 11
    {mf2b(s, KT, QT, s)}
    s_nop 15
    s_nop 7
    """)
    for i in range(16): A(f"v_sub_f32 v{s+i}, v{s+i}, v14")
    for i in range(16): A(f"v_exp_f32 v{s+i}, v{s+i}")
    A("s_nop 0")
    for i in range(8): A(f"v_cvt_pk_bf16_f32 v{P_+i}, v{s+2*i}, v{s+2*i+1}")
    A(f"""
    s_nop 1
    {mf(O_, V0, P_, O_)}
    {mf(O_, V1, P_+4, O_)}
    s_add_u32 s18, s18, 1
    s_cmp_lt_u32 s18, 64
    s_cbranch_scc1 Lk2_fb2
    s_nop 15
    s_branch Lk2_fin
Lk2_end:
    s_endpgm
    """)
    if shadow: gen_shadow(A, (mprof if mprof else prof), shprio, SH_BASE, FLAG, NA=na, fused=fused)
    else: A("Lk2_shadow:\ns_barrier\ns_barrier\ns_endpgm")
    if fused: return A.text()
    return A.text(), kdesc(NAME, 168), f"; @launch kernel={NAME} grid=(256,1,1) block=(768,1,1) lds={LDS_BYTES}"
```

```python
from asm import *
from common import *

ACC_B = 8
ACC_A = 28
WF = [48, 68]
BF = 88
PH = 20480
NPH = 17

def gen_shadow(A, prof, shprio, SH_BASE, FLAG, scl=" sc1", POLL_SLEEP=4, NA=8, fused=False):
    A(f"""
Lk2_shadow:
    """)
    if prof and fused: stamp(A, 10)
    A(f"""
    s_setprio {shprio}
    s_load_dwordx2 s[30:31], s[0:1], 64    ; out
    s_sub_u32 s40, s12, 8                  ; w
    s_lshr_b32 s41, s13, 3
    s_lshl_b32 s44, s14, 2
    s_add_u32 s44, s44, s41                ; rbk
    s_and_b32 s43, s13, 7                  ; cg8
    s_lshl_b32 s46, s44, 2
    s_add_u32 s46, s46, s40                ; T16
    s_mul_i32 s47, s40, 5120
    s_mul_i32 s49, s43, {WF_CG}
    s_add_u32 s49, s49, s47
    s_add_u32 s49, s49, {WF_OFF}
    s_add_u32 s47, s47, {SH_BASE}
    s_mul_i32 s51, s46, {48*1024}
    s_add_u32 s51, s51, {ACT_OFF}
    s_mul_i32 s52, s46, 20480
    s_add_u32 s52, s52, {OF_OFF}
    v_lshlrev_b32 v2, 4, v1                ; lane*16
    v_add_u32 v3, {SH_BASE}, v2
    v_add_u32 v0, {SH_BASE + 3*PH}, v2
    v_and_b32 v4, 3, v1
    v_lshlrev_b32 v4, 2, v4
    v_add_u32 v4, {FLAG + 64}, v4          ; prog[lane&3]
    s_lshl_b32 s53, s40, 2
    s_add_u32 s53, s53, {FLAG + 64}
    v_mov_b32 v5, s53
    s_waitcnt lgkmcnt(0)
    """)
    srd_ws(A, 8, 4, WS_RECORDS)
    srd(A, 24, 30, OUT_BYTES)
    for i in range(40): A(f"v_mov_b32 v{ACC_B+i}, 0")
    if fused:
        A("s_cmp_eq_u32 s40, 0")
        A("s_cbranch_scc0 Lsh_wgo2")
        lds_spin(A, FLAG + LF_RD, 1, 4, tmp=(6, 7), sleep=2)
        get_tag(A, FLAG + LF_TAG, "s62", tmp=(6, 7))
        A(f"""
        s_and_b32 s54, s2, 7
        s_lshr_b32 s55, s2, 3
        s_and_b32 s56, s54, 1
        s_lshl_b32 s56, s56, 3
        s_and_b32 s57, s55, 7
        s_add_u32 s56, s56, s57                ; rb
        s_lshr_b32 s54, s54, 1
        s_lshl_b32 s54, s54, 2
        s_lshr_b32 s55, s55, 3
        s_add_u32 s54, s54, s55                ; cgp
        s_lshl_b32 s56, s56, 6
        s_lshl_b32 s54, s54, 2
        s_add_u32 s54, s54, s56
        s_add_u32 s54, s54, {F1B_OFF}
        v_lshlrev_b32 v6, 10, v1
        v_mov_b32 v7, s62
        s_mov_b64 exec, 0xf
        buffer_store_dword v7, v6, s[8:11], s54 offen sc1
        s_mov_b64 exec, -1
        s_lshr_b32 s54, s44, 1
        s_lshl_b32 s54, s54, 6
        s_and_b32 s55, s2, 3
        s_lshl_b32 s55, s55, 10
        s_add_u32 s54, s54, s55
        s_add_u32 s54, s54, {F1B_OFF}
        v_and_b32 v6, 15, v1
        v_lshlrev_b32 v6, 2, v6
        s_mov_b32 s60, 0x40000
Lsh_pb:
        buffer_load_dword v7, v6, s[8:11], s54 offen sc1
        s_waitcnt vmcnt(0)
        v_cmp_eq_u32 vcc, s62, v7
        s_cmp_eq_u64 vcc, exec
        s_cbranch_scc1 Lsh_pb_ok
        s_sleep 4
        s_sub_u32 s60, s60, 1
        s_cbranch_scc0 Lsh_pb
Lsh_pb_ok:
        """)
        poll256(A, 8, F1W_OFF, "s62", tmp=(6, 7, 48, 49, 50, 51))
        lds_set(A, FLAG + LF_GO2, 1, tmp=(6, 7))
        A("s_branch Lsh_go2")
        A("Lsh_wgo2:")
        lds_spin(A, FLAG + LF_GO2, 1, 1, tmp=(6, 7), sleep=4)
        A("Lsh_go2:")
        if prof: stamp(A, 9)
    else:
        A("s_barrier")
    def issue(q):
        g = []
        if q >= NPH: return g
        sl = q % 4
        for j in range(5):
            g.append([f"s_add_u32 m0, s47, {sl*PH + j*1024}", f"s_add_u32 s55, s49, {q*PH + j*1024}",
                      f"buffer_load_dwordx4 v2, s[8:11], s55 offen lds"])
        if q < 12:
            for k in range(4):
                b = BF + 16*sl + 4*k
                g.append([f"s_add_u32 s55, s51, {(4*q + k)*1024}", f"buffer_load_dwordx4 v[{b}:{b+3}], v2, s[8:11], s55 offen"])
        return g
    def nops(q):
        return 0 if q >= NPH else (9 if q < 12 else 5)
    def emit(g):
        for grp in g:
            for l in grp: A(l)
    def sync(p, n):
        lab = A.label("shs")
        A(f"""
        s_waitcnt vmcnt({n}) lgkmcnt(0)
        v_mov_b32 v6, {p + 1}
        ds_write_b32 v5, v6
        s_mov_b32 s60, 0x40000
        {lab}:
        ds_read_b32 v7, v4
        s_waitcnt lgkmcnt(0)
        v_cmp_le_u32 vcc, {p + 1}, v7
        s_cmp_eq_u64 vcc, exec
        s_cbranch_scc1 {lab}_ok
        s_sleep 2
        s_sub_u32 s60, s60, 1
        s_cbranch_scc0 {lab}
        {lab}_ok:
        """)
    def compute(p, g):
        sl = p % 4
        acc = ACC_B if p < 12 else ACC_A
        base, so = ("v3", sl*PH) if sl < 3 else ("v0", 0)
        def rd(k, fs):
            return [f"ds_read_b128 v[{WF[fs]+4*ct}:{WF[fs]+4*ct+3}], {base} offset:{so + k*5120 + ct*1024}" for ct in range(5)]
        def bfrag(k):
            return (BF + 16*sl + 4*k) if p < 12 else (BF + 4*(4*(p - 12) + k))
        per = (len(g) + 3) // 4
        for l in rd(0, 0): A(l)
        for k in range(4):
            if k < 3:
                for l in rd(k + 1, (k + 1) & 1): A(l)
                A("s_waitcnt lgkmcnt(5)")
            else:
                A("s_waitcnt lgkmcnt(0)")
            b = bfrag(k)
            for ct in range(5):
                A(f"v_mfma_f32_16x16x32_bf16 v[{acc+4*ct}:{acc+4*ct+3}], v[{WF[k&1]+4*ct}:{WF[k&1]+4*ct+3}], v[{b}:{b+3}], v[{acc+4*ct}:{acc+4*ct+3}]")
            emit(g[k*per:(k+1)*per])
    for q in range(3): emit(issue(q))
    for p in range(NA):
        sync(p, nops(p + 1) + nops(p + 2))
        compute(p, issue(p + 3))
    if prof: stamp(A, 0)
    A("s_waitcnt lgkmcnt(0)")
    A("s_barrier")
    if prof: stamp(A, 1)
    A("s_setprio 3")
    for p in range(NA, 12):
        A(f"s_waitcnt vmcnt({nops(p + 1) + nops(p + 2)}) lgkmcnt(0)")
        A("s_barrier")
        compute(p, issue(p + 3))
    if prof: stamp(A, 8)
    A(f"""
    s_cmp_eq_u32 s40, 0
    s_cbranch_scc1 Lsh_poller
    """)
    A("s_sub_u32 s54, s40, 1")
    A(f"s_mul_i32 s61, s43, {WF_CG}")
    A(f"s_add_u32 s61, s61, {WF_OFF + 15*PH}")
    for j in range(14):
        lab = None
        if j == 13:
            lab = A.label("w13")
            A("s_cmp_eq_u32 s54, 0")
            A(f"s_cbranch_scc0 {lab}")
        A(f"s_add_u32 s55, s54, {3*j}")
        A("s_lshl_b32 s55, s55, 10")
        A("s_mov_b32 m0, s55")
        A("s_add_u32 s55, s55, s61")
        A(f"buffer_load_dwordx4 v2, s[8:11], s55 offen lds")
        if lab: A(f"{lab}:")
    A(f"""
    s_branch Lsh_g
Lsh_poller:
    s_lshl_b32 s56, s14, 7
    s_add_u32 s56, s56, {OFLAG_OFF}
    v_and_b32 v4, 31, v1
    v_lshlrev_b32 v4, 2, v4
    s_mov_b32 s60, 0x40000
Lsh_poll:
    buffer_load_dword v7, v4, s[8:11], s56 offen sc1
    s_waitcnt vmcnt(0)
    """)
    if prof:
        A("s_cmp_eq_u32 s60, 0x40000")
        A("s_cbranch_scc0 Lsh_np")
        stamp(A, 6)
        A("Lsh_np:")
    A(f"""
    v_cmp_eq_u32 vcc, {'s62' if fused else '1'}, v7
    s_cmp_eq_u64 vcc, exec
    s_cbranch_scc1 Lsh_g
    s_sleep {POLL_SLEEP}
    s_sub_u32 s60, s60, 1
    s_cbranch_scc0 Lsh_poll
Lsh_g:
    """)
    if prof:
        stamp(A, 7)
    A(f"""
    v_and_b32 v49, 15, v1
    s_lshl_b32 s45, s46, 4
    v_add_u32 v49, s45, v49
    v_lshlrev_b32 v50, 2, v49
    s_mov_b32 s58, {G_OFF}
    buffer_load_dword v6, v50, s[8:11], s58 offen
    v_lshrrev_b32 v48, 4, v1               ; lane>>4
    v_mul_u32_u24 v7, 1280, v49
    v_lshl_add_u32 v5, v48, 3, v7
    s_waitcnt vmcnt(1) lgkmcnt(0)
    s_barrier
    """)
    if prof: stamp(A, 2)
    def oload(k):
        return [f"s_add_u32 s55, s52, {k*1024}", f"buffer_load_dwordx4 v[{BF+4*k}:{BF+4*k+3}], v2, s[8:11], s55 offen{scl}"]
    PRE = 8
    for k in range(PRE):
        for l in oload(k): A(l)
    if prof: stamp(A, 3)
    def wrd(ks, fs):
        p = 12 + ks // 4; k = ks % 4
        if p < 15: base, so = "v3", (p % 4)*PH
        else: base, so = "v2", (p - 15)*PH
        return [f"ds_read_b128 v[{WF[fs]+4*ct}:{WF[fs]+4*ct+3}], {base} offset:{so + k*5120 + ct*1024}" for ct in range(5)]
    for l in wrd(0, 0): A(l)
    for ks in range(20):
        if ks + PRE < 20:
            for l in oload(ks + PRE): A(l)
        issued = min(20, ks + PRE + 1)
        if ks < 19:
            for l in wrd(ks + 1, (ks + 1) & 1): A(l)
            A(f"s_waitcnt vmcnt({issued - 1 - ks}) lgkmcnt(5)")
        else:
            A("s_waitcnt vmcnt(0) lgkmcnt(0)")
        b = BF + 4*ks
        for ct in range(5):
            A(f"v_mfma_f32_16x16x32_bf16 v[{ACC_A+4*ct}:{ACC_A+4*ct+3}], v[{WF[ks&1]+4*ct}:{WF[ks&1]+4*ct+3}], v[{b}:{b+3}], v[{ACC_A+4*ct}:{ACC_A+4*ct+3}]")
    if prof: stamp(A, 4)
    A("s_nop 7")
    A("s_mul_i32 s48, s43, 160")
    for ct in range(5):
        b = ACC_B + 4*ct; a = ACC_A + 4*ct
        for i in range(4):
            A(f"v_sub_f32 v{a+i}, v{a+i}, v{b+i}")
        for i in range(4):
            A(f"v_fma_f32 v{a+i}, v6, v{a+i}, v{b+i}")
        A(f"v_cvt_pk_bf16_f32 v{48+2*ct}, v{a}, v{a+1}")
        A(f"v_cvt_pk_bf16_f32 v{49+2*ct}, v{a+2}, v{a+3}")
        A(f"buffer_store_dwordx2 v[{48+2*ct}:{49+2*ct}], v5, s[24:27], s48 offen offset:{ct*32}")
    if prof == 2:
        stamp(A, 5)
        A("s_memrealtime s[88:89]")
        A("s_waitcnt lgkmcnt(0)")
        A("s_sub_u32 s88, s88, s94")
        for i, src in enumerate(("s80", "s79", "s70", "s71", "s72", "s75", "s88")):
            A(f"v_writelane_b32 v48, {src}, {i}")
        dbg_dump_lanes(A, 48, 9, 7, 37, 12, 8)
    elif prof:
        stamp(A, 5)
        dump_stamps(A, 1, 8, 12, 11, tmp=50)
        A("s_mov_b64 exec, -1")
        A("s_mov_b32 s90, 0")
        prof_end(A, 1, 8, 12, tmpv=(16, 17, 18, 19, 20), extra="s90")
    A("s_endpgm")
```

```python
from asm import *
from common import *
from k2_shadow import gen_shadow

NAME = "k2_kernel"
SLOT = 24576
SH_BASE = 3 * SLOT
FLAG = SH_BASE + 4 * 20480
LDS_BYTES = FLAG + 128

X_ = [16, 48]
P_ = 80
O_ = 88
C_ = 104
QM = 120
QT = 124
KF = [126, 130]
KT = 134
V0 = 136
V1 = 140
FL = 144

def mf(d, a, b, c):
    cs = "0" if c is None else f"v[{c}:{c+15}]"
    return f"v_mfma_f32_32x32x16_bf16 v[{d}:{d+15}], v[{a}:{a+3}], v[{b}:{b+3}], {cs}"
def mf2b(d, a, b, c):
    cs = "0" if c is None else f"v[{c}:{c+31}]"
    return f"v_mfma_f32_32x32x4_2b_bf16 v[{d}:{d+31}], v[{a}:{a+1}], v[{b}:{b+1}], {cs}"

def vslot(A, row, dst, t1):
    A(f"""
    v_mov_b32 v{dst}, v{row}
    v_add_u32 v{t1}, 12, v{row}
    v_cmp_lt_u32 vcc, 3, v{row}
    s_nop 1
    v_cndmask_b32 v{dst}, v{dst}, v{t1}, vcc
    v_subrev_u32 v{t1}, 1, v{row}
    v_cmp_lt_u32 vcc, 9, v{row}
    s_nop 1
    v_cndmask_b32 v{dst}, v{dst}, v{t1}, vcc
    v_subrev_u32 v{t1}, 8, v{row}
    v_cmp_lt_u32 vcc, 11, v{row}
    s_nop 1
    v_cndmask_b32 v{dst}, v{dst}, v{t1}, vcc
    v_subrev_u32 v{t1}, 5, v{row}
    v_cmp_lt_u32 vcc, 15, v{row}
    s_nop 1
    v_cndmask_b32 v{dst}, v{dst}, v{t1}, vcc
    v_cmp_lt_u32 vcc, 19, v{row}
    s_nop 1
    v_cndmask_b32 v{dst}, v{dst}, 8, vcc
    v_cmp_lt_u32 vcc, 20, v{row}
    s_nop 1
    v_cndmask_b32 v{dst}, v{dst}, 15, vcc
    """)

def gen_k2(prof=False, exp_mode=0, shadow=True, shprio=0, pa=1, pb=2, tl=0, nofb=0, lstamp=0, desc=3, na=10, fused=False, mprof=0, dbg2=0):
    A = Asm(10000)
    if not fused:
        A(khead(NAME))
        A(f"""
        s_cmp_ge_u32 s2, 256
        s_cbranch_scc1 Lk2_end
        """)
        if prof: prof_start(A)
        if tl: tl_start(A, 1)
    def ids():
        A(f"""
        s_load_dwordx2 s[4:5], s[0:1], 80
        v_lshrrev_b32 v9, 6, v0
        v_and_b32 v1, 63, v0                   ; lane
        s_and_b32 s20, s2, 7
        v_readfirstlane_b32 s12, v9            ; wave
        s_lshr_b32 s21, s2, 3
        s_and_b32 s22, s21, 3
        s_lshl_b32 s13, s20, 2
        s_add_u32 s13, s13, s22                ; h
        s_lshr_b32 s14, s21, 2                 ; qb
        s_lshl_b32 s15, s14, 3
        s_add_u32 s15, s15, s12                ; T
        """)
    if fused:
        A("Lshadow_entry:")
        ids()
        A("s_branch Lk2_shadow")
        A("Lattn_entry:")
        A("s_setprio 0")
        ids()
    else:
        ids()
        A("s_cmp_ge_u32 s12, 8")
        A("s_cbranch_scc1 Lk2_shadow")
    A(f"""
    s_mul_i32 s16, s13, {HSK}
    s_add_u32 s16, s16, {KV_OFF}
    s_mul_i32 s23, s13, {HSQ}
    s_mul_i32 s24, s15, 1280
    s_add_u32 s23, s23, s24
    s_add_u32 s23, s23, {QF_OFF}
    v_lshlrev_b32 v8, 4, v1                ; lane*16
    v_and_b32 v9, 31, v1
    v_lshrrev_b32 v10, 5, v1               ; hf
    v_lshlrev_b32 v11, 3, v9
    v_add_u32 v11, 1024, v11               ; 1024 + token*8
    s_mul_i32 s25, s12, 3072
    s_add_u32 s17, s16, s25
    s_waitcnt lgkmcnt(0)
    """)
    srd_ws(A, 8, 4, WS_RECORDS)
    def dma_groups(slot_sgpr, slot_imm=0):
        g = []
        for j in range(3):
            m0 = f"s_add_u32 m0, {slot_sgpr}, {slot_imm + j*1024}"
            g.append([m0, f"s_add_u32 s26, s17, {j*1024}", f"buffer_load_dwordx4 v8, s[8:11], s26 offen lds"])
        g.append([f"s_add_u32 s17, s17, {CH}"])
        return g
    def first_loads():
        for grp in dma_groups("s25", 0):
            for l in grp: A(l)
        A(f"""
        buffer_load_dwordx4 v[{QM}:{QM+3}], v8, s[8:11], s23 offen
        buffer_load_dwordx2 v[{QT}:{QT+1}], v11, s[8:11], s23 offen
        """)
        if not fused:
            for grp in dma_groups("s25", SLOT):
                for l in grp: A(l)
    if not fused: first_loads()
    A(f"""
    v_cmp_gt_u32 s[28:29], 32, v1          ; lanes < 32
    v_mov_b32 v5, v8
    v_mul_u32_u24 v6, 1280, v10
    v_add_u32 v6, v6, v11
    """)
    vslot(A, 9, 14, 15)
    A(f"""
    v_mul_u32_u24 v7, {VH}, v10
    v_lshl_add_u32 v7, v14, 4, v7
    v_add_u32 v7, {VPART}, v7
    v_mov_b32 v2, v5
    v_mov_b32 v3, v6
    v_mov_b32 v4, v7
    """)
    if not fused:
        A(f"""
        v_lshlrev_b32 v12, 2, v1
        v_add_u32 v12, {FLAG}, v12
        v_mov_b32 v13, 0
        s_cmp_eq_u32 s12, 0
        s_cbranch_scc0 Lk2_noclr
        s_mov_b64 exec, s[28:29]
        ds_write_b32 v12, v13
        s_mov_b64 exec, -1
Lk2_noclr:
        """)
    A(f"""
    v_and_b32 v12, 7, v1
    v_lshlrev_b32 v12, 2, v12
    v_add_u32 v12, {FLAG}, v12             ; v12: full[lane&7] ; +32: free[lane&7]
    s_lshl_b32 s33, s12, 2
    s_add_u32 s33, s33, {FLAG}
    v_mov_b32 v13, s33                     ; v13: own full word ; +32 own free word
    """)
    for i in range(4): A(f"v_mov_b32 v{V1+i}, 0")
    for i in range(4): A(f"v_mov_b32 v{P_+4+i}, 0")
    for i in range(16): A(f"v_mov_b32 v{O_+i}, 0")
    X0 = X_[0]
    if fused:
        A("s_cmp_eq_u32 s12, 5")
        A("s_cbranch_scc0 Lattn_nopub")
        lds_spin(A, FLAG + LF_PD, 1, 4, tmp=(146, 147), sleep=0)
        get_tag(A, FLAG + LF_TAG, "s35", tmp=(146, 147))
        A(f"""
        s_and_b32 s20, s2, 7
        s_lshr_b32 s21, s2, 3
        s_and_b32 s22, s20, 1
        s_lshl_b32 s22, s22, 3
        s_and_b32 s24, s21, 7
        s_add_u32 s22, s22, s24                ; rb
        s_lshr_b32 s20, s20, 1
        s_lshl_b32 s20, s20, 2
        s_lshr_b32 s21, s21, 3
        s_add_u32 s20, s20, s21                ; cgp
        s_lshl_b32 s20, s20, 6
        s_lshl_b32 s22, s22, 2
        s_add_u32 s20, s20, s22
        s_add_u32 s20, s20, {F1A_OFF}
        v_lshlrev_b32 v146, 10, v1
        v_mov_b32 v147, s35
        s_mov_b64 exec, 0xf
        buffer_store_dword v147, v146, s[8:11], s20 offen sc1
        s_mov_b64 exec, -1
Lattn_nopub:
        """)
        A("s_cmp_eq_u32 s12, 4")
        A("s_cbranch_scc0 Lattn_wgo")
        get_tag(A, FLAG + LF_TAG, "s35", tmp=(146, 147))
        lds_spin(A, FLAG + LF_PD, 1, 4, tmp=(146, 147), sleep=1)
        if mprof: wl_stamp(A, 160, 1)
        A(f"""
        s_mul_i32 s20, s13, 20
        s_add_u32 s21, s20, 19
        s_lshr_b32 s20, s20, 7
        s_lshr_b32 s21, s21, 7
        v_and_b32 v146, 15, v1
        v_lshlrev_b32 v146, 2, v146
        v_bfe_u32 v147, v1, 4, 1
        v_mov_b32 v148, s20
        v_mov_b32 v149, s21
        v_cmp_eq_u32 vcc, 1, v147
        s_nop 1
        v_cndmask_b32 v148, v148, v149, vcc    ; cb
        v_lshrrev_b32 v147, 5, v1              ; 0: K, 1: V
        v_mul_u32_u24 v147, 5, v147
        v_add_u32 v147, 5, v147
        v_add_u32 v147, v147, v148
        v_lshl_add_u32 v147, v147, 6, v146
        v_lshl_add_u32 v148, v148, 6, v146
        v_bfe_u32 v149, v1, 1, 3
        v_cmp_eq_u32 s[36:37], s14, v149
        v_cmp_gt_u32 vcc, 32, v1
        s_and_b64 s[36:37], s[36:37], vcc
        s_and_b32 s20, s2, 3
        s_lshl_b32 s20, s20, 10
        s_add_u32 s20, s20, {F1A_OFF}
        s_mov_b32 s34, 0x40000
Lattn_poll:
        buffer_load_dword v150, v147, s[8:11], s20 offen sc1
        buffer_load_dword v151, v148, s[8:11], s20 offen sc1
        s_waitcnt vmcnt(0)
        v_cmp_eq_u32 vcc, s35, v150
        v_cmp_eq_u32 s[38:39], s35, v151
        s_orn2_b64 s[38:39], s[38:39], s[36:37]
        s_and_b64 vcc, vcc, s[38:39]
        s_cmp_eq_u64 vcc, exec
        s_cbranch_scc1 Lattn_polled
        s_sleep 2
        s_sub_u32 s34, s34, 1
        s_cbranch_scc0 Lattn_poll
Lattn_polled:
        """)
        if mprof: wl_stamp(A, 160, 2)
        lds_set(A, FLAG + LF_GO, 1, tmp=(146, 147))
        A("s_branch Lattn_go")
        A("Lattn_wgo:")
        lds_spin(A, FLAG + LF_GO, 1, 1, tmp=(146, 147), sleep=1)
        A("Lattn_go:")
        if mprof and not dbg2: wl_stamp(A, 160, 3)
        first_loads()
    A(f"""
    s_waitcnt vmcnt({0 if fused else 3}) lgkmcnt(0)
    """)
    if fused:
        for grp in dma_groups("s25", SLOT):
            for l in grp: A(l)
        A(f"v_mov_b32 v{FL}, 1")
        A(f"ds_write_b32 v13, v{FL}")
        lds_spin(A, FLAG + LF_FULL, 1, 8, tmp=(FL, FL + 1), sleep=0, cnt="s34")
        if mprof and not dbg2: wl_stamp(A, 160, 4)
    else:
        A("s_barrier")
    A(f"""
    ds_read_b128 v[{KF[0]}:{KF[0]+3}], v2
    ds_read_b128 v[{KF[1]}:{KF[1]+3}], v2 offset:1280
    ds_read_b64 v[{KT}:{KT+1}], v3
    ds_read_b128 v[{V0}:{V0+3}], v4
    s_waitcnt lgkmcnt(0)
    {mf(X0, KF[0], QM, None)}
    {mf(X0+16, KF[1], QM, None)}
    s_nop 11
    {mf2b(X0, KT, QT, X0)}
    s_nop 15
    s_nop 7
    """)
    A(f"v_max3_f32 v9, v{X0}, v{X0+1}, v{X0+2}")
    for i in range(3, 31, 2):
        A(f"v_max3_f32 v9, v9, v{X0+i}, v{X0+i+1}")
    A(f"v_max_f32 v9, v9, v{X0+31}")
    A(f"""
    v_mov_b32 v10, v9
    s_nop 1
    v_permlane32_swap_b32 v9, v10
    s_nop 1
    v_max_f32 v9, v9, v10
    """)
    for i in range(16): A(f"v_sub_f32 v{C_+i}, 0, v9")
    for i in range(32): A(f"v_sub_f32 v{X0+i}, v{X0+i}, v9")
    A(f"""
    ds_read_b128 v[{KF[0]}:{KF[0]+3}], v2 offset:{2*1280}
    ds_read_b128 v[{KF[1]}:{KF[1]+3}], v2 offset:{3*1280}
    ds_read_b64 v[{KT}:{KT+1}], v3 offset:{2*1280}
    s_mov_b32 s18, 0
    s_mov_b32 s19, {SLOT}
    s_mov_b32 s27, {2*SLOT}
    s_setprio {pa}
    s_cmp_ge_u32 s12, 4
    s_cbranch_scc0 Lk2_noprio
    s_setprio {pb}
Lk2_noprio:
    """)
    if prof:
        A("s_memtime s[90:91]")
        A("s_waitcnt lgkmcnt(0)")
        A("s_sub_u32 s90, s90, s92")
    A0 = A
    class F:
        def __call__(self, l):
            for x in l.strip("\n").split("\n"):
                ls = x.strip()
                if exp_mode == 2 and ls.startswith("v_mfma"): continue
                if exp_mode == 3 and (ls.startswith("v_exp") or ls.startswith("v_cvt")): continue
                if exp_mode == 4 and (ls.startswith("ds_read_b128") or ls.startswith("ds_read_b64")): continue
                if exp_mode == 5 and ls.startswith("v_mfma_f32_32x32x4"): continue
                if exp_mode == 6 and (ls.startswith("ds_read_b128") or ls.startswith("ds_read_b64") or ls.startswith("v_mfma")): continue
                if exp_mode == 7 and ls.startswith("buffer_load"): continue
                A0(x)
        def label(self, b): return A0.label(b)
    if lstamp: wl_stamp(A, 150, 0)
    if mprof: wl_stamp(A, 160, 5)
    A("Lk2_loop:")
    A = F()
    def check(reg, need_sgpr, tag):
        lab = A.label(tag)
        off = 32 if tag == "free" else 0
        A(f"""
        v_cmp_le_u32 vcc, {need_sgpr}, v{reg}
        s_cmp_eq_u64 vcc, exec
        s_cbranch_scc1 {lab}
        s_mov_b32 s34, 0x40000
        {lab}_s:
        s_sub_u32 s34, s34, 1
        s_cbranch_scc1 {lab}
        s_sleep 1
        ds_read_b32 v{reg}, v12 offset:{off}
        s_waitcnt lgkmcnt(0)
        v_cmp_le_u32 vcc, {need_sgpr}, v{reg}
        s_cmp_eq_u64 vcc, exec
        s_cbranch_scc0 {lab}_s
        {lab}:
        """)
    def tile(sc, first, pr, t):
        sn = X_[(pr + 1) & 1]
        kt = (2*pr + 4) & 7
        E = lambda i: f"v_exp_f32 v{sc+i}, v{sc+i}"
        C = lambda p, a: f"v_cvt_pk_bf16_f32 v{P_+p}, v{sc+a}, v{sc+a+1}"
        pre = []
        if desc == 1 and t % 2 == 0: A(f"s_setprio {3 - t // 2}")
        if desc == 2 and t % 2 == 0: A(f"s_setprio {max(1, 3 - t // 2) if t < 6 else 1}")
        if desc == 3: A(f"s_setprio {3 - (t % 4)}")
        if desc in (4, 5): A(f"s_setprio {3 - 2*(t % 2)}")
        if desc == 6: A(f"s_setprio {[3,3,2,2,1,1,0,0][t]}") if t % 2 == 0 else None
        if desc == 7: A(f"s_setprio {[3,2,1,0,0,1,2,3][t]}")
        if desc == 8: A(f"s_setprio {[3,2,2,1,1,0,0,0][t]}")
        A("s_waitcnt lgkmcnt(0)")
        if t == 0:
            A(f"""
            s_waitcnt vmcnt(0)
            s_add_u32 s31, s18, 2
            v_mov_b32 v{FL}, s31
            v_mov_b32 v{FL+1}, s18
            ds_write_b32 v13, v{FL}
            ds_write_b32 v13, v{FL+1} offset:32
            """)
        if t == 4:
            nofull = A.label("nofull")
            A("s_cmp_lt_u32 s18, 7")
            A(f"s_cbranch_scc0 {nofull}")
            A("s_add_u32 s31, s18, 2")
            check(FL + 1, "s31", "full")
            A(f"{nofull}:")
            A("v_add_u32 v2, s19, v5")
            A("v_add_u32 v3, s19, v6")
        if first:
            A(mf(sn, KF[0], QM, C_))
            A(f"ds_read_b128 v[{KF[0]}:{KF[0]+3}], v2 offset:{kt*1280}")
        else:
            A(mf2b(sn, KT, QT, sn))
            A(f"ds_read_b64 v[{KT}:{KT+1}], v3 offset:{kt*1280}")
        if t == 1: A(f"ds_read_b32 v{FL}, v12 offset:32")
        if t == 3: A(f"ds_read_b32 v{FL+1}, v12")
        for i in range(4): A(E(i))
        A(mf(O_, V1, P_+4, O_))
        A(f"ds_read_b128 v[{V1}:{V1+3}], v4 offset:{t*VT + 2*VH}")
        if t == 7:
            A("v_add_u32 v4, s19, v7")
        dg = []
        if t == 2:
            skip = A.label("k2skip")
            A(f"s_cmp_lt_u32 s18, 6")
            A(f"s_cbranch_scc0 {skip}")
            check(FL, "s18", "free")
            A("s_add_u32 s30, s27, s25")
            for grp in dma_groups("s30"):
                for l in grp: A(l)
            A(f"{skip}:")
        A(C(0, 0)); A(E(4)); A(C(1, 2))
        for i in (5, 6, 7): A(E(i))
        if desc == 4: A(f"s_setprio {2 - 2*(t % 2)}")
        if first:
            A(mf(sn + 16, KF[1], QM, C_))
            A(f"ds_read_b128 v[{KF[1]}:{KF[1]+3}], v2 offset:{(kt+1)*1280}")
        A(C(2, 4)); A(E(8)); A(C(3, 6)); A(E(9)); A(E(10))
        A(mf(O_, V0, P_, O_))
        A(f"ds_read_b128 v[{V0}:{V0+3}], v4 offset:{((t+1)&7)*VT}")
        for i in (11, 12, 13): A(E(i))
        A(C(4, 8)); A(E(14)); A(C(5, 10)); A(E(15)); A(C(6, 12)); A(C(7, 14))
    for pr in range(4):
        cur = X_[pr & 1]
        tile(cur, True, pr, 2*pr)
        tile(cur + 16, False, pr, 2*pr + 1)
    A = A0
    A(f"""
    s_mov_b32 s19, s27
    s_add_u32 s27, s27, {SLOT}
    s_cmp_ge_u32 s27, {3*SLOT}
    s_cselect_b32 s27, 0, s27
    s_add_u32 s18, s18, 1
    s_cmp_lt_u32 s18, 8
    s_cbranch_scc1 Lk2_loop
    """)
    if lstamp: wl_stamp(A, 150, 1)
    if mprof: wl_stamp(A, 160, 6)
    A(f"""
    s_waitcnt lgkmcnt(0)
    {mf(O_, V1, P_+4, O_)}
    s_mov_b32 s31, 0
    s_nop 15
Lk2_fin:
    v_mov_b32 v9, v{O_+8}
    v_mov_b32 v10, v{O_+8}
    s_nop 1
    v_permlane32_swap_b32 v9, v10
    s_nop 1
    v_mul_f32 v11, 0, v{O_}
    """)
    for i in range(1, 8): A(f"v_fma_f32 v11, v{O_+i}, 0, v11")
    A(f"v_mul_f32 v14, 0, v{O_+8}")
    for i in range(9, 12): A(f"v_fma_f32 v14, v{O_+i}, 0, v14")
    A(f"""
    v_cndmask_b32 v14, 0, v14, s[28:29]
    v_add_f32 v11, v11, v14
    v_add_f32 v11, v11, v10
    v_mov_b32 v15, 0x53800000              ; 2^40
    v_cmp_nlt_f32 vcc, v11, v15            ; !(l < 2^40)
    s_cmp_eq_u32 s31, 0
    s_cbranch_scc0 Lk2_store
    {"" if nofb else "s_cbranch_vccnz Lk2_fallback"}
Lk2_store:
    v_rcp_f32 v10, v10
    s_mul_i32 s20, s13, 5
    s_mul_i32 s21, s15, 40960
    s_add_u32 s21, s21, {OF_OFF}
    v_lshrrev_b32 v11, 5, v1               ; hf
    v_and_b32 v14, 15, v1
    v_lshlrev_b32 v14, 4, v14              ; token16*16
    v_bfe_u32 v15, v1, 4, 1                ; q>>4
    v_mul_u32_u24 v15, 20480, v15
    v_add_u32 v14, v14, v15
    v_add_u32 v11, s20, v11                ; G (a=0)
    """)
    for a in range(3):
        r = O_ + 4*a
        A(f"""
        v_add_u32 v16, {2*a}, v11
        v_lshrrev_b32 v17, 3, v16
        v_lshlrev_b32 v17, 10, v17
        v_bfe_u32 v18, v16, 1, 2
        v_lshl_add_u32 v17, v18, 8, v17
        v_and_b32 v18, 1, v16
        v_lshl_add_u32 v17, v18, 3, v17
        v_add_u32 v17, v17, v14
        v_mul_f32 v{r}, v{r}, v10
        v_mul_f32 v{r+1}, v{r+1}, v10
        v_mul_f32 v{r+2}, v{r+2}, v10
        v_mul_f32 v{r+3}, v{r+3}, v10
        v_cvt_pk_bf16_f32 v{r}, v{r}, v{r+1}
        v_cvt_pk_bf16_f32 v{r+1}, v{r+2}, v{r+3}
        """)
        if a == 2:
            A("s_mov_b64 exec, s[28:29]")
        A(f"buffer_store_dwordx2 v[{r}:{r+1}], v17, s[8:11], s21 offen sc1")
    A("s_mov_b64 exec, -1")
    A("s_waitcnt vmcnt(0)")
    A("s_barrier")
    A(f"""
    s_cmp_eq_u32 s12, 0
    s_cbranch_scc0 Lk2_nopub
    s_lshl_b32 s20, s14, 5
    s_add_u32 s20, s20, s13                ; qb*32 + h
    s_lshl_b32 s20, s20, 2
    s_add_u32 s20, s20, {OFLAG_OFF}
    """)
    if fused:
        get_tag(A, FLAG + LF_TAG, "s21", tmp=(16, 17))
        A("v_mov_b32 v16, s21")
    else:
        A("v_mov_b32 v16, 1")
    A(f"""
    v_mov_b32 v17, 0
    s_mov_b64 exec, 1
    buffer_store_dword v16, v17, s[8:11], s20 offen sc1
    s_mov_b64 exec, -1
Lk2_nopub:
    """)
    if prof:
        A("s_mov_b64 exec, -1")
        if lstamp: wl_dump(A, 150, 1, 8, 12, 21)
        prof_end(A, 1, 8, 12, tmpv=(16, 17, 18, 19, 20), extra="s90")
    if tl: tl2_record(A, 1, 8, 12)
    if mprof == 2:
        wl_stamp(A, 160, 7)
        dbg_dump_lanes(A, 160, 1, 8, 37, 12, 1)
    elif mprof:
        wl_stamp(A, 160, 7)
        wl_dump(A, 160, 1, 8, 12, 21)
        A("s_mov_b32 s90, 0")
        prof_end(A, 1, 8, 12, tmpv=(16, 17, 18, 19, 20), extra="s90")
    A("s_endpgm")

    s = X0
    A(f"""
Lk2_fallback:
    s_mov_b32 s31, 1
    v_and_b32 v9, 31, v1
    v_lshlrev_b32 v11, 3, v9
    v_add_u32 v11, 1024, v11
    v_mov_b32 v14, 0xff800000
    s_mov_b32 s18, 0
Lk2_fb1:
    s_lshr_b32 s20, s18, 3
    s_mul_i32 s20, s20, {CH}
    s_and_b32 s21, s18, 7
    s_mul_i32 s21, s21, 1280
    s_add_u32 s20, s20, s21
    s_add_u32 s20, s20, s16
    buffer_load_dwordx4 v[{KF[0]}:{KF[0]+3}], v8, s[8:11], s20 offen
    buffer_load_dwordx2 v[{KT}:{KT+1}], v11, s[8:11], s20 offen
    s_waitcnt vmcnt(0)
    {mf(s, KF[0], QM, None)}
    {mf(s+16, KF[0], QM, None)}
    s_nop 11
    {mf2b(s, KT, QT, s)}
    s_nop 15
    s_nop 7
    """)
    for i in range(0, 16, 2):
        A(f"v_max3_f32 v14, v14, v{s+i}, v{s+i+1}")
    A(f"""
    s_add_u32 s18, s18, 1
    s_cmp_lt_u32 s18, 64
    s_cbranch_scc1 Lk2_fb1
    v_mov_b32 v15, v14
    s_nop 1
    v_permlane32_swap_b32 v14, v15
    s_nop 1
    v_max_f32 v14, v14, v15
    """)
    for i in range(16): A(f"v_mov_b32 v{O_+i}, 0")
    A(f"""
    s_mov_b32 s18, 0
Lk2_fb2:
    s_lshr_b32 s20, s18, 3
    s_mul_i32 s20, s20, {CH}
    s_and_b32 s21, s18, 7
    s_mul_i32 s22, s21, {VT}
    s_add_u32 s22, s22, s20
    s_add_u32 s22, s22, s16
    s_mul_i32 s21, s21, 1280
    s_add_u32 s20, s20, s21
    s_add_u32 s20, s20, s16
    buffer_load_dwordx4 v[{KF[0]}:{KF[0]+3}], v8, s[8:11], s20 offen
    buffer_load_dwordx2 v[{KT}:{KT+1}], v11, s[8:11], s20 offen
    buffer_load_dwordx4 v[{V0}:{V0+3}], v7, s[8:11], s22 offen
    buffer_load_dwordx4 v[{V1}:{V1+3}], v7, s[8:11], s22 offen offset:{2*VH}
    s_waitcnt vmcnt(0)
    {mf(s, KF[0], QM, None)}
    {mf(s+16, KF[0], QM, None)}
    s_nop 11
    {mf2b(s, KT, QT, s)}
    s_nop 15
    s_nop 7
    """)
    for i in range(16): A(f"v_sub_f32 v{s+i}, v{s+i}, v14")
    for i in range(16): A(f"v_exp_f32 v{s+i}, v{s+i}")
    A("s_nop 0")
    for i in range(8): A(f"v_cvt_pk_bf16_f32 v{P_+i}, v{s+2*i}, v{s+2*i+1}")
    A(f"""
    s_nop 1
    {mf(O_, V0, P_, O_)}
    {mf(O_, V1, P_+4, O_)}
    s_add_u32 s18, s18, 1
    s_cmp_lt_u32 s18, 64
    s_cbranch_scc1 Lk2_fb2
    s_nop 15
    s_branch Lk2_fin
Lk2_end:
    s_endpgm
    """)
    if shadow: gen_shadow(A, (mprof if mprof else prof), shprio, SH_BASE, FLAG, NA=na, fused=fused)
    else: A("Lk2_shadow:\ns_barrier\ns_barrier\ns_endpgm")
    if fused: return A.text()
    return A.text(), kdesc(NAME, 168), f"; @launch kernel={NAME} grid=(256,1,1) block=(768,1,1) lds={LDS_BYTES}"
```

```python
from asm import *
from common import *
from k2 import vslot

NAME = "k1_kernel"
SLOT = 45056
XO, WQO, W1O = 0, 16384, 32768
GATE_LDS = 3 * SLOT
UNIT_LDS = 3 * SLOT + 1536
LDS_BYTES = UNIT_LDS + 4096

def gen_k1(prof=False, mode=0, pf=1, rot=0, tlb=1, tl=0, sc=0, cpf=1, wfsc=1, fused=None, mprof=0, rtrig=2, cpf2=0):
    SC = {0: '', 1: ' sc1', 2: ' nt', 3: ' sc0 sc1'}[sc & 3]
    SCQ = SC if sc & 4 else ''
    SCW = ' sc1' if wfsc else ''
    KN = fused if fused else NAME
    FL = MEGA_FLAG
    if fused:
        SC = SCQ = SCW = ' sc1'
        tlb = 0
    ROT = rot
    A0 = Asm()
    class F:
        def __init__(s): s.inloop = False
        def __call__(s, l):
            for x in l.strip("\n").split("\n"):
                xs = x.strip()
                if s.inloop:
                    if mode == 1 and xs.startswith("buffer_load") : continue
                    if mode == 2 and (xs.startswith("v_mfma") or xs.startswith("ds_read")): continue
                    if mode == 3 and xs.startswith("v_mfma"): continue
                    if mode in (4, 6) and xs.startswith("s_barrier"): continue
                    if mode == 6 and xs.startswith("buffer_load"): continue
                    if mode == 5 and xs.startswith("ds_read"): continue
                    if mode == 7 and (xs.startswith("buffer_load") or xs.startswith("ds_read")): continue
                    if mode == 8 and (xs.startswith("buffer_load") or xs.startswith("ds_read") or xs.startswith("s_barrier")): continue
                    if mode == 10 and (xs.startswith("buffer_load") or xs.startswith("ds_read") or xs.startswith("s_barrier") or xs.startswith("s_add_u32 m0") or xs.startswith("s_add_u32 s48") or xs.startswith("s_nop 0") or xs.startswith("v_add_u32")): continue
                if xs.endswith("_loop:"): s.inloop = True
                if xs.startswith("s_cbranch_scc1") and xs.endswith("g_loop"): s.inloop = False
                A0(x)
        def label(s, b): return A0.label(b)
        def text(s): return A0.text()
    A = F()
    A(khead(KN))
    A(f"""
    s_cmp_ge_u32 s2, 256
    s_cbranch_scc1 Lk1_exit
    """)
    if prof or mprof: prof_start(A)
    if tl: tl_start(A, 0)
    if cpf:
        A(f"""
        s_getpc_b64 s[80:81]
Lk1_pc:
        s_sub_u32 s80, s80, Lk1_pc - {KN}
        s_subb_u32 s81, s81, 0
        s_lshr_b32 s82, s2, 3
        s_mul_i32 s82, s82, (Lcode_end - {KN} + 4095) / 4096
        v_and_b32 v61, 63, v0
        v_add_u32 v61, s82, v61
        v_min_u32 v61, (Lcode_end - {KN} - 4) / 128, v61
        v_lshlrev_b32 v61, 7, v61
        v_lshrrev_b32 v60, 6, v0
        v_and_b32 v59, 63, v0
        v_cmp_gt_u32 vcc, (Lcode_end - {KN} + 4095) / 4096, v59
        v_cmp_eq_u32 s[82:83], 7, v60
        s_and_b64 vcc, vcc, s[82:83]
        s_and_saveexec_b64 s[82:83], vcc
        s_cbranch_execz Lk1_nocpf
        global_load_dword v61, v61, s[80:81]
Lk1_nocpf:
        s_mov_b64 exec, s[82:83]
        """)
    A(f"""
    s_load_dwordx2 s[80:81], s[0:1], 48    ; w2
    s_load_dwordx2 s[82:83], s[0:1], 16    ; wo
    s_load_dwordx4 s[4:7], s[0:1], 0       ; A_x, wqkv
    s_load_dwordx4 s[8:11], s[0:1], 32     ; w1, b1
    s_load_dwordx2 s[12:13], s[0:1], 56    ; gate_w
    s_load_dwordx2 s[14:15], s[0:1], 80    ; ws
    v_lshrrev_b32 v1, 6, v0
    v_and_b32 v2, 63, v0                   ; lane
    s_and_b32 s41, s2, 7                   ; xcd
    v_readfirstlane_b32 s32, v1
    """)
    if fused:
        A("""
        s_nop 3
        s_mov_b32 s85, s32
        s_sub_u32 s42, s32, 4
        s_add_u32 s43, s32, 4
        s_cmp_ge_u32 s32, 8
        s_cselect_b32 s43, s42, s43
        s_cmp_lt_u32 s32, 4
        s_cselect_b32 s32, s32, s43
        """)
    A(f"""
    s_lshr_b32 s42, s2, 3                  ; i
    s_and_b32 s43, s41, 1
    s_lshl_b32 s43, s43, 3
    s_and_b32 s44, s42, 7
    s_add_u32 s34, s43, s44                ; rb
    s_lshr_b32 s43, s41, 1
    s_lshl_b32 s43, s43, 2
    s_lshr_b32 s44, s42, 3
    s_add_u32 s35, s43, s44                ; cgp
    s_mul_i32 s45, s35, 52
    s_lshr_b32 s45, s45, 8                 ; cgp/5
    s_add_u32 s33, s45, 1
    s_mul_i32 s45, s45, 5
    s_sub_u32 s46, s35, s45                ; cbl (0..4)
    s_cmp_eq_u32 s35, 15
    s_cselect_b32 s33, 0, s33
    v_lshrrev_b32 v3, 3, v2
    v_mul_u32_u24 v3, 1280, v3
    v_and_b32 v13, 7, v2
    v_lshrrev_b32 v14, 4, v2               ; lane>>4
    v_xor_b32 v15, v13, v14
    v_lshl_add_u32 v10, v15, 4, v3         ; even u
    v_xor_b32 v15, 4, v15
    v_lshl_add_u32 v11, v15, 4, v3         ; odd u
    s_lshl_b32 s37, s34, 7                 ; rb*128
    s_lshl_b32 s41, s32, 4                 ; w*16 rows
    s_add_u32 s37, s37, s41
    s_mul_i32 s37, s37, 1280
    s_lshl_b32 s42, s32, 11
    s_lshr_b32 s57, s2, 3                  ; i
    s_and_b32 s78, s57, 7
    s_lshr_b32 s57, s57, 3
    s_lshl_b32 s57, s57, 1
    s_add_u32 s78, s78, s57
    s_mul_i32 s78, s78, {1 if ROT else 0}
    s_mov_b32 s56, 0
    s_mov_b32 s69, 0
    s_mov_b32 s58, s37
    s_mov_b32 s79, 0
    """)
    if ROT == 2:
        A("""
        s_cmp_ge_u32 s78, 10
        s_cselect_b32 s57, 10, 0
        s_sub_u32 s78, s78, s57
        s_mov_b32 s79, s78
        s_mov_b32 s69, s78
        s_lshl_b32 s57, s79, 7
        s_add_u32 s37, s58, s57
        """)
    A(f"""
    s_waitcnt lgkmcnt(0)
    """)
    if prof:
        A("s_memtime s[88:89]")
        A("s_waitcnt lgkmcnt(0)")
        A("s_sub_u32 s87, s88, s92")
    srd(A, 16, 4, X_BYTES)
    srd_ws(A, 24, 14, WS_RECORDS)
    srd(A, 60, 6, WQKV_BYTES)
    srd(A, 64, 8, W1_BYTES)
    if not fused:
        A(f"""
        s_cmp_eq_u32 s32, 7
        s_cbranch_scc0 Lk1_noflag
        s_lshl_b32 s41, s2, 2
        s_add_u32 s41, s41, {OFLAG_OFF}
        v_mov_b32 v3, 0
        s_mov_b64 exec, 1
        buffer_store_dword v3, v3, s[24:27], s41 offen
        s_mov_b64 exec, -1
    Lk1_noflag:
        """)
    if tlb:
        A("s_cmp_eq_u32 s32, 0")
        A("s_cbranch_scc0 Lk1_notouch")
        srd(A, 28, 10, B1_BYTES)
        A("v_mov_b32 v3, 0")
        MB2 = 2 << 20
        touch(A, [(16, "s37"), (60, 0), (60, MB2), (64, 0), (28, 0)] + [(24, k*MB2) for k in range(7)] + [(24, G_OFF)], 3, 1)
        A("Lk1_notouch:")
    A(f"""
    s_cmp_ge_u32 s32, 8
    s_cbranch_scc1 Lk1_H
    s_cmp_ge_u32 s32, 4
    s_cbranch_scc1 Lk1_R
    """)

    def adv_group(ws):
        if ROT == 2:
            g = ["s_add_u32 s79, s79, 1", "s_cmp_eq_u32 s79, 10", "s_cselect_b32 s79, 0, s79", "s_lshl_b32 s57, s79, 7", "s_add_u32 s37, s58, s57"]
        else:
            g = ["s_add_u32 s56, s56, 1", "s_add_u32 s57, s56, s78", "s_sub_u32 s57, s57, 2", "s_and_b32 s57, s57, 7", "s_add_u32 s57, s57, 2",
                 "s_cmp_lt_u32 s56, 2", "s_cselect_b32 s79, s56, s57", "s_lshl_b32 s57, s79, 7", "s_add_u32 s37, s58, s57"]
        if ws:
            g += [f"s_mul_i32 s57, s79, {ws}", "s_add_u32 s38, s59, s57"]
        return g

    def x_dma(slot_sgpr):
        g = []
        for j in range(2):
            g.append([f"s_add_u32 m0, {slot_sgpr}, {j*1024}", f"s_add_u32 s48, s37, {j*10240}",
                      f"buffer_load_dwordx4 v{10 + j}, s[16:19], s48 offen lds"])
        return g

    def xfrag_addr(rowbase_expr_sgpr):
        A(f"""
        v_and_b32 v3, 31, v2                   ; token
        v_lshrrev_b32 v13, 5, v2               ; hf
        v_bfe_u32 v14, v2, 1, 3
        v_xor_b32 v14, v13, v14
        v_lshlrev_b32 v14, 4, v14
        v_lshl_add_u32 v14, v3, 7, v14
        v_add_u32 v56, {rowbase_expr_sgpr}, v14
        v_xor_b32 v57, 32, v56
        v_xor_b32 v58, 64, v56
        v_xor_b32 v59, 96, v56
        """)

    def set_slot(nw, sgpr):
        out = [f"v_add_u32 v{4+k}, {sgpr}, v{56+k}" for k in range(4)]
        out += [f"v_add_u32 v{8+k}, {sgpr}, v{60+k}" for k in range(nw)]
        return out

    def interleave(ms, others):
        n = len(ms)
        per = (len(others) + n - 1) // n
        k = 0
        for i, m in enumerate(ms):
            A(m)
            for grp in others[k:k+per]:
                for l in grp: A(l)
            k += per

    def kstep(ms, rd, extra, wait=True, skip_last=False):
        if wait: A("s_waitcnt lgkmcnt(0)")
        n = len(ms) - (1 if skip_last else 0)
        A(ms[0])
        for grp in rd:
            for l in grp: A(l)
        slots = max(1, n - 1)
        per = (len(extra) + slots - 1) // slots if extra else 0
        k = 0
        for i in range(1, n):
            A(ms[i])
            for grp in extra[k:k+per]:
                for l in grp: A(l)
            k += per
        for grp in extra[k:]:
            for l in grp: A(l)

    def loop(tag, nown, reads, mfmas, dma_groups, nw, unit=False):
        A(f"s_waitcnt vmcnt({nown})")
        A("s_barrier")
        if prof:
            A("s_memtime s[90:91]")
            A("s_waitcnt lgkmcnt(0)")
            A("s_sub_u32 s90, s90, s92")
        for l in set_slot(nw, "0"): A(l)
        for l in reads(0, 0): A(l)
        A(f"s_mov_b32 s50, {SLOT}")
        A.inloop = True
        g = dma_groups()
        adv = g[-1]; g = g[:-1]
        parts = [[], [], [], []]
        for i, grp in enumerate(g): parts[i * 4 // len(g)].append(grp)
        R = lambda ks, fs: [[l] for l in reads(ks, fs)]
        rot = [["s_mov_b32 s51, s50", f"s_add_u32 s50, s50, {SLOT}", f"s_cmp_ge_u32 s50, {3*SLOT}", "s_cselect_b32 s50, 0, s50",
                "s_add_u32 s52, s51, s42", "s_add_u32 s53, s51, s43"]]
        A(f"s_add_u32 s52, s42, {2*SLOT}")
        A(f"s_add_u32 s53, s43, {2*SLOT}")
        kstep(mfmas(0), R(1, 1), parts[0] + parts[1])
        kstep(mfmas(1), R(2, 0), parts[2])
        kstep(mfmas(0), R(3, 1), parts[3] + [adv] + [["s_mov_b32 s52, s42", "s_mov_b32 s53, s43", "s_mov_b32 s40, 0"]], skip_last=True)
        def section(dma, vm, final=False, ug=None):
            A(mfmas(0)[-1])
            A(f"s_waitcnt vmcnt({vm}) lgkmcnt(0)")
            A("s_barrier")
            if final:
                for m in mfmas(1): A(m)
                return
            rd = R(0, 0)
            rd[0] = set_slot(nw, "s50") + rd[0]
            P_ = parts if dma else [[], [], [], []]
            kstep(mfmas(1), rd, P_[0], wait=False)
            kstep(mfmas(0), R(1, 1), P_[1] + (ug or []))
            kstep(mfmas(1), R(2, 0), P_[2])
            tail = (P_[3] + [adv] if dma else []) + rot
            if dma: tail = tail + [["s_add_u32 s40, s40, 1", "s_cmp_lt_u32 s40, 7"]]
            kstep(mfmas(0), R(3, 1), tail, skip_last=True)
        A(f"L{tag}_loop:")
        section(True, nown)
        A(f"s_cbranch_scc1 L{tag}_loop")
        ug = []
        if unit:
            for j in range(4):
                ug.append([f"s_add_u32 m0, s76, {j*1024}", f"s_add_u32 s48, s100, {j*8*1280}", f"buffer_load_dwordx4 v62, s[96:99], s48 offen lds"])
            A("s_lshl_b32 s76, s32, 12")
            A("s_add_u32 s76, s76, s51")
        section(False, nown, ug=ug)
        section(False, 4 if unit else 0)
        section(False, 4 if unit else 0, final=True)
        A.inloop = False
        A("s_nop 15")
        if prof:
            A("s_memtime s[88:89]")
            A("s_waitcnt lgkmcnt(0)")
            A("s_sub_u32 s91, s88, s92")

    A(f"""
    s_cmp_eq_u32 s33, 0
    s_cbranch_scc1 Lk1_gate
    """)
    srd(A, 20, 6, WQKV_BYTES)
    A(f"""
    s_mov_b32 s36, 3840
    v_and_b32 v13, 15, v2
    v_lshlrev_b32 v15, 2, v14
    v_xor_b32 v13, v13, v15
    v_mul_u32_u24 v15, 3840, v14
    v_lshl_add_u32 v12, v13, 4, v15
    s_mul_i32 s38, s32, {16*3840}          ; w*16 k-rows
    s_lshl_b32 s41, s35, 8                 ; cgp*128*2
    s_add_u32 s59, s38, s41
    s_mul_i32 s57, s79, {64*3840}
    s_add_u32 s38, s59, s57
    s_lshl_b32 s43, s32, 12
    s_add_u32 s43, s43, {WQO}
    """)
    def p_dma():
        g = x_dma("s52")
        for j in range(4):
            g.append([f"s_add_u32 m0, s53, {j*1024}",
                      (f"s_add_u32 s48, s38, {j*4*3840}"),
                      f"buffer_load_dwordx4 v12, s[20:23], s48 offen lds"])
        g.append(adv_group(64*3840))
        return g
    def stage_issue(st, dmaf):
        A(f"s_add_u32 s52, s42, {st*SLOT}")
        A(f"s_add_u32 s53, s43, {st*SLOT}")
        for grp in dmaf():
            for l in grp: A(l)
    if prof: wl_stamp(A, 63, 0)
    stage_issue(0, p_dma)
    if prof: wl_stamp(A, 63, 1)
    A("s_barrier")
    if prof: wl_stamp(A, 63, 2)
    LATE_P = True
    A("s_lshr_b32 s41, s32, 1")
    A("s_lshl_b32 s41, s41, 13")
    xfrag_addr("s41")
    A(f"""
    v_bfe_u32 v14, v2, 2, 2                ; r
    v_lshl_add_u32 v15, v13, 3, v14
    v_lshlrev_b32 v15, 8, v15
    v_bfe_u32 v3, v2, 4, 1
    v_lshl_add_u32 v15, v3, 5, v15
    v_and_b32 v3, 3, v2
    v_lshl_add_u32 v15, v3, 3, v15
    v_add_u32 v15, {WQO}, v15
    s_and_b32 s41, s32, 1
    s_lshl_b32 s41, s41, 1
    v_xor_b32 v3, s41, v14                 ; ct ^ r
    v_lshl_add_u32 v60, v3, 6, v15
    v_xor_b32 v3, 1, v3
    v_lshl_add_u32 v61, v3, 6, v15
    """)
    if prof: wl_stamp(A, 63, 3)
    stage_issue(1, p_dma)
    if prof: wl_stamp(A, 63, 4)
    for i in range(64): A(f"v_mov_b32 v{64+i}, 0")
    def p_reads(ks, fs):
        b = 16 + 16*fs
        return [
            f"ds_read_b128 v[{b}:{b+3}], v{4+ks}",
            f"ds_read_b64_tr_b16 v[{b+8}:{b+9}], v8 offset:{ks*4096}",
            f"ds_read_b64_tr_b16 v[{b+10}:{b+11}], v8 offset:{ks*4096 + 1024}",
            f"ds_read_b128 v[{b+4}:{b+7}], v{4+ks} offset:4096",
            f"ds_read_b64_tr_b16 v[{b+12}:{b+13}], v9 offset:{ks*4096}",
            f"ds_read_b64_tr_b16 v[{b+14}:{b+15}], v9 offset:{ks*4096 + 1024}",
        ]
    def p_mfmas(normal):
        def f(fs):
            b = 16 + 16*fs
            out = []
            for rt in range(2):
                for ct in range(2):
                    d = 64 + 16*(2*rt + ct)
                    x = f"v[{b+4*rt}:{b+4*rt+3}]"; w = f"v[{b+8+4*ct}:{b+8+4*ct+3}]"
                    a_, b_ = (x, w) if normal else (w, x)
                    out.append(f"v_mfma_f32_32x32x16_bf16 v[{d}:{d+15}], {a_}, {b_}, v[{d}:{d+15}]")
            return out
        return f
    A(f"""
    s_lshr_b32 s41, s32, 1
    s_lshl_b32 s41, s41, 1
    s_lshl_b32 s44, s34, 2
    s_add_u32 s44, s44, s41                ; T (rt'=0)
    s_cmp_eq_u32 s33, 3
    s_cbranch_scc1 Lk1_mainV
    s_cmp_eq_u32 s33, 1
    s_cbranch_scc0 Lk1_isK
    s_mul_i32 s68, s44, 1280
    s_add_u32 s68, s68, {QF_OFF}
    s_mov_b32 s49, {HSQ}
    s_mov_b32 s70, {f32bits(QSCALE):#x}
    s_branch Lk1_qk
Lk1_isK:
    s_lshr_b32 s68, s44, 3
    s_mul_i32 s68, s68, {CH}
    s_and_b32 s41, s44, 7
    s_mul_i32 s41, s41, 1280
    s_add_u32 s68, s68, s41
    s_add_u32 s68, s68, {KV_OFF}
    s_mov_b32 s49, {HSK}
    s_mov_b32 s70, 1.0
Lk1_qk:
    s_mov_b32 s71, s70
    s_and_b32 s41, s32, 1
    s_lshl_b32 s41, s41, 4
    s_lshl_b32 s55, s46, 5
    s_add_u32 s55, s55, s41                ; G0 base
    v_lshrrev_b32 v13, 5, v2               ; hf
    v_and_b32 v3, 31, v2                   ; token
    v_lshlrev_b32 v14, 4, v3
    v_lshlrev_b32 v15, 3, v3
    v_add_u32 v15, 1024, v15
    """)
    for sl in range(8):
        d = 48 + sl
        A(f"""
        v_add_u32 v16, {2*sl}, v13
        v_add_u32 v16, s55, v16                ; G
        v_mul_u32_u24 v17, 205, v16
        v_lshrrev_b32 v17, 10, v17             ; h = G/5
        v_mul_u32_u24 v18, 5, v17
        v_sub_u32 v18, v16, v18                ; j
        v_mul_lo_u32 v17, v17, s49             ; h*HS
        v_and_b32 v19, 1, v18
        v_lshlrev_b32 v19, 9, v19              ; (j&1)*512
        v_add_u32 v19, v19, v14
        v_cmp_eq_u32 vcc, 4, v18
        v_cmp_gt_u32 s[72:73], 2, v18
        s_nop 0
        v_cndmask_b32 v19, v19, v15, vcc
        """)
        if sl == 0:
            A(f"""
            v_mov_b32 v20, 10
            v_cndmask_b32 v20, v20, 2, vcc
            v_cndmask_b32 v20, v20, 1, s[72:73]
            """)
        else:
            A(f"""
            v_mov_b32 v20, 0
            v_cndmask_b32 v20, v20, 2, vcc
            v_cndmask_b32 v20, v20, {1 if sl < 7 else 2}, s[72:73]
            """)
        A(f"""
        v_add_u32 v19, v19, v17
        v_add_u32 v{d}, v19, v20
        """)
    loop("k1T", 6, p_reads, p_mfmas(False), p_dma, 2)
    if fused: A("s_setprio 3")
    if mprof: wl_stamp(A, 160, 0)
    for rt in range(2):
        for sl in range(8):
            r = 64 + 16*(2*rt + (sl >> 2)) + 4*(sl & 3)
            t = 16 + 16*rt + 2*sl
            A(f"""
            v_pk_mul_f32 v[{r}:{r+1}], v[{r}:{r+1}], s[70:71]
            v_pk_mul_f32 v[{r+2}:{r+3}], v[{r+2}:{r+3}], s[70:71]
            v_cvt_pk_bf16_f32 v{t}, v{r}, v{r+1}
            v_cvt_pk_bf16_f32 v{t+1}, v{r+2}, v{r+3}
            """)
    for sl in range(8):
        lab = A.label("qk")
        A(f"""
        v_and_b32 v56, 3, v{48+sl}
        v_and_b32 v57, -4, v{48+sl}
        """)
        if sl < 7:
            A(f"""
            v_cmp_eq_u32 vcc, 1, v56
            s_nop 1
            s_mov_b64 exec, vcc
            s_cbranch_execz {lab}_a
            buffer_store_dwordx4 v[{16+2*sl}:{19+2*sl}], v57, s[24:27], s68 offen{SCQ}
            buffer_store_dwordx4 v[{32+2*sl}:{35+2*sl}], v57, s[24:27], s68 offen offset:1280{SCQ}
            {lab}_a:
            s_mov_b64 exec, -1
            """)
        A(f"""
        v_cmp_eq_u32 vcc, 2, v56
        s_nop 1
        s_mov_b64 exec, vcc
        s_cbranch_execz {lab}_b
        buffer_store_dwordx2 v[{16+2*sl}:{17+2*sl}], v57, s[24:27], s68 offen{SCQ}
        buffer_store_dwordx2 v[{32+2*sl}:{33+2*sl}], v57, s[24:27], s68 offen offset:1280{SCQ}
        {lab}_b:
        s_mov_b64 exec, -1
        """)
    A("s_branch Lk1_end")
    A("Lk1_mainV:")
    A(f"""
    s_lshr_b32 s68, s44, 3
    s_mul_i32 s68, s68, {CH}
    s_and_b32 s41, s44, 7
    s_mul_i32 s41, s41, {VT}
    s_add_u32 s68, s68, s41
    s_add_u32 s68, s68, {KV_OFF + VPART}
    s_and_b32 s41, s32, 1
    s_lshl_b32 s41, s41, 6
    s_lshl_b32 s55, s46, 7
    s_add_u32 s55, s55, s41
    v_and_b32 v3, 31, v2
    v_lshrrev_b32 v13, 5, v2               ; hf
    v_mul_u32_u24 v14, {VH}, v13
    s_mov_b32 s49, {HSK}
    """)
    for ct in range(2):
        A(f"""
        v_add_u32 v16, {32*ct}, v3
        v_add_u32 v16, s55, v16                ; c
        v_mul_u32_u24 v17, 3277, v16
        v_lshrrev_b32 v17, 16, v17             ; h
        v_mul_u32_u24 v18, 20, v17
        v_sub_u32 v18, v16, v18                ; dh
        v_mul_lo_u32 v17, v17, s49
        v_cmp_eq_u32 s[{72+2*ct}:{73+2*ct}], 0, v18
        """)
        vslot(A, 18, 20, 21)
        A(f"""
        v_lshl_add_u32 v19, v20, 4, v17
        v_add_u32 v{48+ct}, v19, v14
        """)
    loop("k1N", 6, p_reads, p_mfmas(True), p_dma, 2)
    if fused: A("s_setprio 3")
    if mprof: wl_stamp(A, 160, 0)
    for ct in range(2):
        for rt in range(2):
            for j in range(2):
                r = 64 + 16*(2*rt + ct) + 8*j
                t = 32 + 4*(2*rt + j)
                for m in range(4):
                    A(f"v_cvt_pk_bf16_f32 v{t+m}, v{r+2*m}, v{r+2*m+1}")
                A(f"buffer_store_dwordx4 v[{t}:{t+3}], v{48+ct}, s[24:27], s68 offen offset:{rt*VT + j*2*VH}{SC}")
    A("s_branch Lk1_end")

    A("Lk1_gate:")
    srd(A, 28, 12, GW_BYTES)
    A(f"""
    s_mul_i32 s41, s32, 320
    s_add_u32 m0, s41, {GATE_LDS}
    v_lshlrev_b32 v12, 4, v2
    v_cmp_gt_u32 vcc, 20, v2
    s_and_saveexec_b64 s[76:77], vcc
    buffer_load_dwordx4 v12, s[28:31], s41 offen lds
    s_mov_b64 exec, s[76:77]
    """)
    def g_dma():
        g = x_dma("s52")
        g.append(adv_group(0))
        return g
    for st in range(2):
        A(f"s_add_u32 s52, s42, {st*SLOT}")
        for grp in g_dma():
            for l in grp: A(l)
        if st == 0: A("s_barrier")
    A("s_lshl_b32 s41, s32, 12")
    xfrag_addr("s41")
    A(f"""
    v_lshlrev_b32 v9, 4, v13               ; hf*16
    v_add_u32 v62, {GATE_LDS}, v9
    s_lshl_b32 s57, s69, 7
    v_add_u32 v9, s57, v62
    v_mov_b32 v60, 0
    s_mov_b32 s43, 0
    """)
    for i in range(16): A(f"v_mov_b32 v{64+i}, 0")
    def g_reads(ks, fs):
        b = 16 + 16*fs
        out = [f"ds_read_b128 v[{b}:{b+3}], v{4+ks}", f"ds_read_b128 v[{b+4}:{b+7}], v9 offset:{ks*32}"]
        if ks == 3:
            if ROT == 2:
                out += ["s_add_u32 s69, s69, 1", "s_cmp_eq_u32 s69, 10", "s_cselect_b32 s69, 0, s69", "s_lshl_b32 s57, s69, 7", "v_add_u32 v9, s57, v62"]
            else:
                out += ["s_add_u32 s69, s69, 1", "s_add_u32 s57, s69, s78", "s_sub_u32 s57, s57, 2", "s_and_b32 s57, s57, 7", "s_add_u32 s57, s57, 2",
                        "s_cmp_lt_u32 s69, 2", "s_cselect_b32 s57, s69, s57", "s_lshl_b32 s57, s57, 7", "v_add_u32 v9, s57, v62"]
        return out
    def g_mfmas(fs):
        b = 16 + 16*fs
        return [f"v_mfma_f32_32x32x16_bf16 v[64:79], v[{b+4}:{b+7}], v[{b}:{b+3}], v[64:79]"]
    A(f"s_waitcnt vmcnt(2)")
    A("s_barrier")
    A(f"s_add_u32 s52, s42, {2*SLOT}")
    for grp in g_dma():
        for l in grp: A(l)
    if prof:
        A("s_mov_b32 s90, 0")
    for l in set_slot(0, "0"): A(l)
    for l in g_reads(0, 0): A(l)
    A("s_mov_b32 s40, 0")
    A(f"s_mov_b32 s50, {SLOT}")
    A("s_mov_b32 s51, 0")
    A("Lk1g_loop:")
    for ks in range(3):
        fs = ks & 1
        for l in g_reads(ks + 1, fs ^ 1): A(l)
        A("s_waitcnt lgkmcnt(2)")
        for l in g_mfmas(fs): A(l)
    A(f"""
    s_cmp_lt_u32 s40, 8
    s_cbranch_scc1 Lk1g_a
    s_waitcnt vmcnt(0)
Lk1g_a:
    s_waitcnt vmcnt(2) lgkmcnt(0)
    s_barrier
    """)
    for l in set_slot(0, "s50"): A(l)
    for l in g_mfmas(1): A(l)
    for l in g_reads(0, 0): A(l)
    A(f"""
    s_cmp_lt_u32 s40, 7
    s_cbranch_scc0 Lk1g_b
    s_add_u32 s52, s51, s42
    """)
    for grp in g_dma():
        for l in grp: A(l)
    A(f"""
Lk1g_b:
    s_mov_b32 s51, s50
    s_add_u32 s50, s50, {SLOT}
    s_cmp_ge_u32 s50, {3*SLOT}
    s_cselect_b32 s50, 0, s50
    s_add_u32 s40, s40, 1
    s_cmp_lt_u32 s40, 10
    s_cbranch_scc1 Lk1g_loop
    s_waitcnt lgkmcnt(0)
    s_nop 15
    v_mul_f32 v16, {f32bits(-LOG2E):#x}, v64
    v_exp_f32 v16, v16
    s_nop 0
    v_add_f32 v16, 1.0, v16
    v_rcp_f32 v16, v16
    s_lshl_b32 s44, s34, 2
    s_add_u32 s44, s44, s32                ; T
    s_lshl_b32 s44, s44, 7                 ; *32*4 bytes
    s_add_u32 s44, s44, {G_OFF}
    v_lshlrev_b32 v17, 2, v2
    v_cmp_gt_u32 vcc, 32, v2
    s_and_saveexec_b64 s[76:77], vcc
    buffer_store_dword v16, v17, s[24:27], s44 offen{SC}
    s_mov_b64 exec, s[76:77]
    s_branch Lk1_end
    """)

    A("Lk1_R:")
    if prof:
        A("v_writelane_b32 v61, s87, 8")
        wl_stamp(A, 61, 9)
    srd(A, 20, 8, W1_BYTES)
    srd(A, 28, 10, B1_BYTES)
    A(f"""
    s_sub_u32 s47, s32, 4
    s_mul_i32 s41, s35, 192
    v_lshrrev_b32 v3, 5, v2
    v_lshlrev_b32 v3, 4, v3
    """)
    if prof: wl_stamp(A, 61, 12)
    A(f"""
    buffer_load_dwordx4 v[112:115], v3, s[28:31], s41 offen
    """)
    if prof: wl_stamp(A, 61, 13)
    A(f"""
    buffer_load_dwordx4 v[116:119], v3, s[28:31], s41 offen offset:32
    buffer_load_dwordx4 v[120:123], v3, s[28:31], s41 offen offset:64
    buffer_load_dwordx4 v[124:127], v3, s[28:31], s41 offen offset:96
    buffer_load_dwordx4 v[48:51], v3, s[28:31], s41 offen offset:128
    buffer_load_dwordx4 v[52:55], v3, s[28:31], s41 offen offset:160
    """)
    if prof: wl_stamp(A, 61, 14)
    for j, reg in enumerate((12, 62, 63)):
        A(f"""
        s_mul_i32 s41, s47, 192
        s_add_u32 s41, s41, {64*j}
        v_add_u32 v13, s41, v2                 ; t
        v_mul_u32_u24 v14, 5462, v13
        v_lshrrev_b32 v14, 16, v14             ; t/12
        v_mul_u32_u24 v15, 12, v14
        v_sub_u32 v15, v13, v15
        v_mul_u32_u24 v14, 3072, v14
        v_lshl_add_u32 v{reg}, v15, 4, v14
        """)
    A(f"""
    s_mul_i32 s59, s35, 192
    s_mul_i32 s57, s79, {64*3072}
    s_add_u32 s38, s59, s57
    s_mul_i32 s43, s47, 3072
    s_add_u32 s43, s43, {W1O}
    """)
    def r_dma():
        g = x_dma("s52")
        for j, reg in enumerate((12, 62, 63)):
            g.append([f"s_add_u32 m0, s53, {j*1024}", "s_nop 0",
                      f"buffer_load_dwordx4 v{reg}, s[20:23], s38 offen lds"])
        g.append(adv_group(64*3072))
        return g
    def r_stage(st):
        A(f"s_add_u32 s52, s42, {st*SLOT}")
        A(f"s_add_u32 s53, s43, {st*SLOT}")
        for grp in r_dma():
            for l in grp: A(l)
    if prof: wl_stamp(A, 61, 0)
    r_stage(0)
    if prof: wl_stamp(A, 61, 1)
    A("s_barrier")
    A("s_lshl_b32 s41, s47, 12")
    xfrag_addr("s41")
    A(f"""
    v_bfe_u32 v14, v2, 2, 2
    v_lshl_add_u32 v15, v13, 3, v14
    v_mul_u32_u24 v15, 192, v15
    v_bfe_u32 v3, v2, 4, 1
    v_lshl_add_u32 v15, v3, 5, v15
    v_and_b32 v3, 3, v2
    v_lshrrev_b32 v1, 1, v3
    v_and_b32 v3, 1, v3
    v_lshl_or_b32 v3, v3, 1, v1
    v_lshl_add_u32 v15, v3, 3, v15
    v_add_u32 v60, {W1O}, v15
    """)
    if prof: wl_stamp(A, 61, 2)
    r_stage(1)
    if prof: wl_stamp(A, 61, 3)
    A("s_waitcnt vmcnt(10)")
    if prof:
        wl_stamp(A, 61, 4)
    bsrc = [112, 116, 120, 124, 48, 52]
    for ct in range(3):
        for half in range(2):
            for m in range(4):
                src = bsrc[2*ct + half] + m
                d = 64 + 16*ct + 8*half + 2*m
                A(f"v_lshlrev_b32 v{d}, 16, v{src}")
                A(f"v_and_b32 v{d+1}, 0xffff0000, v{src}")
    def r_reads(ks, fs):
        b = 16 + 16*fs
        out = [f"ds_read_b128 v[{b}:{b+3}], v{4+ks}"]
        for ct in range(3):
            out.append(f"ds_read_b64_tr_b16 v[{b+4+4*ct}:{b+5+4*ct}], v8 offset:{ks*16*192 + ct*64}")
            out.append(f"ds_read_b64_tr_b16 v[{b+6+4*ct}:{b+7+4*ct}], v8 offset:{ks*16*192 + 4*192 + ct*64}")
        return out
    def r_mfmas(fs):
        b = 16 + 16*fs
        return [f"v_mfma_f32_32x32x16_bf16 v[{64+16*ct}:{64+16*ct+15}], v[{b+4+4*ct}:{b+7+4*ct}], v[{b}:{b+3}], v[{64+16*ct}:{64+16*ct+15}]" for ct in range(3)]
    loop("k1R", 5, r_reads, r_mfmas, r_dma, 1)
    if not fused: A("s_setprio 2")
    A(f"""
    s_lshl_b32 s44, s34, 2
    s_add_u32 s44, s44, s47                ; T
    s_mul_i32 s45, s44, {2*48*1024}
    s_mul_i32 s41, s35, {3*1024}
    s_add_u32 s45, s45, s41
    s_add_u32 s45, s45, {ACT_OFF}
    v_bfe_u32 v13, v2, 4, 1                ; token>>4
    v_mul_u32_u24 v13, {48*1024}, v13
    v_lshrrev_b32 v14, 5, v2               ; hf
    v_lshl_add_u32 v13, v14, 8, v13
    v_and_b32 v14, 15, v2
    v_lshl_add_u32 v13, v14, 4, v13
    s_mov_b32 s54, {f32bits(LOG2E):#x}
    s_mov_b32 s55, s54
    v_mov_b32 v2, 2.0
    v_mov_b32 v3, 2.0
    """)
    def mish8(r, t0):
        for p in range(4):
            A(f"v_pk_mul_f32 v[{t0+2*p}:{t0+2*p+1}], v[{r+2*p}:{r+2*p+1}], s[54:55]")
        for i in range(8):
            A(f"v_exp_f32 v{t0+i}, v{t0+i}")
        for p in range(4):
            A(f"v_pk_add_f32 v[{t0+8+2*p}:{t0+8+2*p+1}], v[{t0+2*p}:{t0+2*p+1}], v[2:3]")
        for p in range(4):
            A(f"v_pk_fma_f32 v[{t0+2*p}:{t0+2*p+1}], v[{t0+2*p}:{t0+2*p+1}], v[{t0+8+2*p}:{t0+8+2*p+1}], v[2:3]")
        for i in range(8):
            A(f"v_rcp_f32 v{t0+i}, v{t0+i}")
        A("s_nop 0")
        for p in range(4):
            A(f"v_pk_fma_f32 v[{t0+2*p}:{t0+2*p+1}], v[{t0+2*p}:{t0+2*p+1}], -2.0, 1.0 op_sel_hi:[1,0,0]")
        for p in range(4):
            A(f"v_pk_mul_f32 v[{r+2*p}:{r+2*p+1}], v[{r+2*p}:{r+2*p+1}], v[{t0+2*p}:{t0+2*p+1}]")
    k = 0
    for ct in range(3):
        for j in range(2):
            r = 64 + 16*ct + 8*j
            mish8(r, 16)
            t = 32 + 4*k; k += 1
            for m in range(4):
                A(f"v_cvt_pk_bf16_f32 v{t+m}, v{r+2*m}, v{r+2*m+1}")
            if not fused:
                A(f"buffer_store_dwordx4 v[{t}:{t+3}], v13, s[24:27], s45 offen offset:{ct*1024 + j*512}{SC}")
    if fused:
        if rtrig == 2: lds_spin(A, FL + LF_FULL, 1, 8, tmp=(16, 17), sleep=4)
        elif rtrig == 1: lds_spin(A, FL + LF_GO, 1, 1, tmp=(16, 17), sleep=4)
        else: lds_spin(A, FL + LF_PD, 1, 4, tmp=(16, 17), sleep=4)
        k = 0
        for ct in range(3):
            for j in range(2):
                t = 32 + 4*k; k += 1
                A(f"buffer_store_dwordx4 v[{t}:{t+3}], v13, s[24:27], s45 offen offset:{ct*1024 + j*512}{SC}")
    A("s_branch Lk1_endR" if fused else "s_branch Lk1_end")
    A("Lk1_H:")
    if fused:
        A(f"""
        s_cmp_eq_u32 s32, 8
        s_cbranch_scc1 Lk1_H0
        s_cmp_eq_u32 s32, 10
        s_cbranch_scc0 Lk1_Hn2
        v_lshlrev_b32 v3, 2, v2
        v_add_u32 v3, {FL}, v3
        v_mov_b32 v4, 0
        v_cmp_gt_u32 vcc, 32, v2
        s_and_saveexec_b64 s[50:51], vcc
        ds_write_b32 v3, v4
        s_mov_b64 exec, s[50:51]
        s_waitcnt lgkmcnt(0)
Lk1_Hn2:
        s_cmp_eq_u32 s32, 9
        s_cbranch_scc0 Lk1_Hplain
        s_load_dwordx2 s[50:51], s[0:1], 72    ; d_debug
        s_waitcnt lgkmcnt(0)
        """)
        srd(A, 52, 50, 256)
        A(f"""
        v_mov_b32 v4, 0
        s_cmp_eq_u32 s2, 0
        s_cbranch_scc0 Lk1_notag0
        s_memrealtime s[50:51]
        s_waitcnt lgkmcnt(0)
        s_or_b32 s50, s50, 1
        v_mov_b32 v3, s50
        s_mov_b64 exec, 1
        buffer_store_dword v3, v4, s[52:55], 0 offen sc1
        s_mov_b64 exec, -1
Lk1_notag0:
        s_barrier
        s_barrier
        s_barrier
        s_mov_b32 s50, 0x40000
Lk1_tagpoll:
        buffer_load_dword v3, v4, s[52:55], 0 offen sc1
        s_waitcnt vmcnt(0)
        v_readfirstlane_b32 s51, v3
        s_nop 3
        s_cmp_lg_u32 s51, 0
        s_cbranch_scc1 Lk1_gottag
        s_sleep 4
        s_sub_u32 s50, s50, 1
        s_cbranch_scc0 Lk1_tagpoll
Lk1_gottag:
        v_mov_b32 v4, {FL + LF_TAG}
        ds_write_b32 v4, v3
        s_waitcnt lgkmcnt(0)
        """)
        for i in range(9): A("s_barrier")
        A("s_branch Lattn_entry")
        A("Lk1_Hplain:")
        if cpf2:
            A(f"""
            s_cmp_eq_u32 s32, 11
            s_cbranch_scc0 Lk1_nocp2
            v_mov_b32 v13, 0x7ffffff0
            ; x: lanes: row = 8wg + lane/8, line = 2 + lane%8  (lines 2..9)
            v_lshrrev_b32 v3, 3, v2
            s_lshl_b32 s41, s2, 3
            v_add_u32 v3, s41, v3
            v_mul_u32_u24 v3, 1280, v3
            v_and_b32 v4, 7, v2
            v_lshl_add_u32 v3, v4, 7, v3
            v_add_u32 v3, 256, v3
            s_mul_i32 s41, s2, 60
            v_add_u32 v5, s41, v2
            v_lshlrev_b32 v5, 7, v5
            v_add_u32 v5, {128*3840}, v5
            v_cmp_gt_u32 vcc, 60, v2
            s_nop 1
            v_cndmask_b32 v5, v13, v5, vcc
            s_mul_i32 s41, s2, 48
            v_add_u32 v6, s41, v2
            v_lshlrev_b32 v6, 7, v6
            v_add_u32 v6, {128*3072}, v6
            v_cmp_gt_u32 vcc, 48, v2
            s_nop 1
            v_cndmask_b32 v6, v13, v6, vcc
            """)
            if cpf2 == 2: A("s_barrier")
            A("""
            buffer_load_dword v16, v3, s[16:19], 0 offen
            buffer_load_dword v17, v5, s[60:63], 0 offen
            buffer_load_dword v18, v6, s[64:67], 0 offen
            """)
            for i in range(11 if cpf2 == 2 else 12): A("s_barrier")
            A("s_branch Lattn_entry")
            A("Lk1_nocp2:")
        for i in range(12): A("s_barrier")
        A("s_branch Lattn_entry")
        A("Lk1_H0:")
    if True:
        A(f"""
        s_and_b32 s41, s2, 7
        s_and_b32 s43, s41, 1                  ; rh
        s_lshr_b32 s44, s41, 1                 ; cq
        s_lshr_b32 s45, s2, 3                  ; i
        v_mov_b32 v13, 0x7ffffff0
        s_lshl_b32 s46, s43, 10
        s_lshl_b32 s47, s45, 5
        s_add_u32 s46, s46, s47
        v_add_u32 v3, s46, v2
        v_mul_u32_u24 v3, 1280, v3
        v_cmp_gt_u32 vcc, 32, v2
        s_nop 1
        v_cndmask_b32 v4, v13, v3, vcc
        v_lshrrev_b32 v3, 3, v2
        s_lshl_b32 s47, s45, 1
        v_add_u32 v3, s47, v3
        v_mul_u32_u24 v3, 3840, v3
        v_and_b32 v5, 7, v2
        v_lshlrev_b32 v5, 7, v5
        s_lshl_b32 s48, s44, 10
        v_add_u32 v5, s48, v5
        v_cmp_gt_u32 vcc, 3840, v5
        v_add_u32 v5, v5, v3
        v_cmp_gt_u32 s[50:51], 16, v2
        s_and_b64 vcc, vcc, s[50:51]
        s_nop 1
        v_cndmask_b32 v5, v13, v5, vcc
        ; W1: lanes<12: (2i + lane/6)*3072 + cq*768 + (lane%6)*128
        v_cmp_lt_u32 vcc, 5, v2
        v_mov_b32 v6, 0
        v_mov_b32 v7, 1
        v_cndmask_b32 v3, v6, v7, vcc
        v_mul_u32_u24 v6, 6, v3
        v_sub_u32 v6, v2, v6
        v_lshlrev_b32 v6, 7, v6
        v_add_u32 v3, s47, v3
        v_mul_u32_u24 v3, 3072, v3
        v_add_u32 v6, v6, v3
        s_mul_i32 s48, s44, 768
        v_add_u32 v6, s48, v6
        v_cmp_gt_u32 vcc, 12, v2
        s_nop 1
        v_cndmask_b32 v6, v13, v6, vcc
        s_barrier
        """)
        def PF(st):
            A(f"s_mov_b32 s46, {st*128}")
            A(f"buffer_load_dword v16, v4, s[16:19], s46 offen")
            A(f"s_mov_b32 s47, {st*64*3840}")
            A(f"buffer_load_dword v17, v5, s[60:63], s47 offen")
            A(f"s_mov_b32 s48, {st*64*3072}")
            A(f"buffer_load_dword v18, v6, s[64:67], s48 offen")
        def unit_start(u):
            A(f"""
            s_add_u32 s41, s2, {256*u}
            s_mul_i32 s45, s41, 6554
            s_lshr_b32 s45, s45, 16                ; ksg
            s_mul_i32 s47, s45, 10
            s_sub_u32 s47, s41, s47                ; blk
            s_cmp_lt_u32 s45, 48
            s_cselect_b32 s96, s80, s82
            s_cselect_b32 s97, s81, s83
            s_mov_b32 s98, {W2_BYTES}
            s_cselect_b32 s98, s98, {WO_BYTES}
            s_cselect_b32 s100, 0, 48
            s_and_b32 s97, s97, 0xffff
            s_mov_b32 s99, 0x00020000
            s_sub_u32 s100, s45, s100
            s_mul_i32 s100, s100, {32*1280}
            s_lshl_b32 s101, s47, 7
            s_add_u32 s100, s100, s101
            s_lshl_b32 s77, s47, 2                 ; c0
            s_mul_i32 s101, s45, 5120
            s_cmp_lt_u32 s41, 680
            s_cselect_b32 s76, 1, 0
            s_cbranch_scc0 Lk1_us{u}
            """)
            for j in range(4):
                A(f"s_mov_b32 m0, {UNIT_LDS + j*1024}")
                A(f"s_add_u32 s48, s100, {j*8*1280}")
                A(f"buffer_load_dwordx4 v8, s[96:99], s48 offen lds")
            A(f"Lk1_us{u}:")
        def unit_finish(u):
            A(f"""
            s_cmp_eq_u32 s76, 1
            s_cbranch_scc0 Lk1_uf{u}
            s_waitcnt vmcnt(0)
            """)
            for cc in range(4):
                A(f"ds_read_b64_tr_b16 v[{20+4*cc}:{21+4*cc}], v9 offset:{cc*32}")
                A(f"ds_read_b64_tr_b16 v[{22+4*cc}:{23+4*cc}], v9 offset:{cc*32 + 512}")
            A("s_waitcnt lgkmcnt(0)")
            for cc in range(4):
                A(f"""
                s_add_u32 s41, s77, {cc}               ; c
                s_mul_i32 s45, s41, 205
                s_lshr_b32 s45, s45, 10                ; cg8 = c/5
                s_mul_i32 s47, s45, 5
                s_sub_u32 s47, s41, s47                ; ct
                s_mul_i32 s45, s45, {WF_CG}
                s_lshl_b32 s47, s47, 10
                s_add_u32 s45, s45, s47
                s_add_u32 s45, s45, s101
                s_add_u32 s45, s45, {WF_OFF}
                buffer_store_dwordx4 v[{20+4*cc}:{23+4*cc}], v10, s[24:27], s45 offen{SCW}
                """)
            A(f"Lk1_uf{u}:")
        A(f"""
        s_lshl_b32 s41, s2, 6
        v_add_u32 v11, s41, v2
        v_lshrrev_b32 v12, 9, v11
        s_mov_b32 s41, {HSK}
        v_mul_lo_u32 v12, v12, s41             ; h*HSK
        v_bfe_u32 v13, v11, 6, 3
        v_mul_u32_u24 v13, {CH}, v13
        v_add_u32 v12, v12, v13
        v_bfe_u32 v13, v11, 3, 3               ; tile&7
        v_mul_u32_u24 v13, {VT}, v13
        v_add_u32 v12, v12, v13
        v_bfe_u32 v13, v11, 1, 2
        v_mul_u32_u24 v13, {VH}, v13
        v_add_u32 v12, v12, v13
        v_and_b32 v13, 1, v11
        v_mul_u32_u24 v14, 112, v13
        v_add_u32 v12, v12, v14
        v_add_u32 v12, {KV_OFF + VPART + 128}, v12
        v_cmp_eq_u32 vcc, 0, v13
        v_mov_b32 v14, 0x3f803f80
        s_nop 0
        v_cndmask_b32 v20, 0, v14, vcc
        v_mov_b32 v21, v20
        v_mov_b32 v22, v20
        v_mov_b32 v23, v20
        buffer_store_dwordx4 v[20:23], v12, s[24:27], 0 offen{SC}
        v_lshrrev_b32 v8, 3, v2
        v_mul_u32_u24 v8, 1280, v8
        v_and_b32 v3, 7, v2
        v_lshl_add_u32 v8, v3, 4, v8
        v_lshrrev_b32 v9, 4, v2
        v_bfe_u32 v3, v2, 2, 2
        v_lshl_add_u32 v9, v9, 3, v3
        v_lshlrev_b32 v9, 7, v9
        v_and_b32 v3, 3, v2
        v_lshl_add_u32 v9, v3, 3, v9
        v_add_u32 v9, {UNIT_LDS}, v9
        v_lshlrev_b32 v10, 4, v2
        """)
        if pf == 1:
            PF(2); PF(3)
        A("s_barrier")
        for k in range(6):
            if pf == 1: PF(4 + k)
            A("s_barrier")
        unit_start(0)
        A("s_barrier")
        unit_finish(0); unit_start(1)
        A("s_barrier")
        unit_finish(1); unit_start(2)
        A("s_barrier")
        unit_finish(2)
        A("s_barrier")
    if fused:
        A("s_waitcnt vmcnt(0)")
        if mprof: wl_stamp(A, 160, 0)
        get_tag(A, FL + LF_TAG, "s50")
        publish256(A, 24, F1W_OFF, "s50")
        A("s_branch Lattn_entry")
    else:
        A("s_endpgm")
    if fused:
        A("Lk1_endR:")
        A("s_waitcnt vmcnt(0)")
        A(f"s_sub_u32 s41, s32, 4")
        A("s_lshl_b32 s41, s41, 2")
        A(f"s_add_u32 s41, s41, {FL + LF_RD}")
        A("v_mov_b32 v4, s41")
        A("v_mov_b32 v5, 1")
        A("ds_write_b32 v4, v5")
        A("s_branch Lshadow_entry")
        A("Lk1_end:")
        if mprof: wl_stamp(A, 160, 1)
        A("s_waitcnt vmcnt(0)")
        if mprof: wl_stamp(A, 160, 2)
        A("s_lshl_b32 s41, s32, 2")
        A(f"s_add_u32 s41, s41, {FL + LF_PD}")
        A("v_mov_b32 v4, s41")
        A("v_mov_b32 v5, 1")
        A("ds_write_b32 v4, v5")
        A("s_branch Lattn_entry")
        A("Lk1_exit:")
        A("s_endpgm")
        return A.text()
    A("Lk1_end:")
    if prof:
        A("s_memtime s[88:89]")
        A("s_waitcnt lgkmcnt(0)")
        A("s_sub_u32 s88, s88, s92")
        A("s_cmp_ge_u32 s32, 4")
        A("s_cbranch_scc1 Lk1_dbgR")
        A("v_mov_b32 v61, v63")
        A("Lk1_dbgR:")
        A("v_writelane_b32 v61, s88, 11")
        A("v_writelane_b32 v61, s91, 10")
        A(f"""
        s_lshl_b32 s97, s2, 4
        s_add_u32 s97, s97, s32
        s_lshl_b32 s97, s97, 6
        s_add_u32 s97, s97, {DBG_OFF + 0x100000}
        v_and_b32 v4, 63, v0
        v_lshlrev_b32 v4, 2, v4
        v_cmp_gt_u32 vcc, 16, v0
        v_and_b32 v5, 63, v0
        v_cmp_gt_u32 vcc, 16, v5
        s_and_saveexec_b64 s[56:57], vcc
        buffer_store_dword v61, v4, s[24:27], s97 offen
        s_mov_b64 exec, s[56:57]
        """)
        prof_end(A, 0, 24, 32, tmpv=(4, 5, 6, 7, 8), extra="s90")
    if tl: tl2_record(A, 0, 24, 32)
    A("Lk1_exit:")
    A("s_endpgm")
    return A.text(), kdesc(NAME, 128), f"; @launch kernel={NAME} grid=(256,1,1) block=(576,1,1) lds={LDS_BYTES}"
```

```python
from asm import *
from common import *
from k2 import vslot

NAME = "k1_kernel"
SLOT = 45056
XO, WQO, W1O = 0, 16384, 32768
GATE_LDS = 3 * SLOT
UNIT_LDS = 3 * SLOT + 1536
LDS_BYTES = UNIT_LDS + 4096

def gen_k1(prof=False, mode=0, pf=1, rot=0, tlb=1, tl=0, sc=0, cpf=1, wfsc=1, fused=None, mprof=0, rtrig=2, cpf2=0, dbg2=0):
    SC = {0: '', 1: ' sc1', 2: ' nt', 3: ' sc0 sc1'}[sc & 3]
    SCQ = SC if sc & 4 else ''
    SCW = ' sc1' if wfsc else ''
    KN = fused if fused else NAME
    FL = MEGA_FLAG
    if fused:
        SC = SCQ = SCW = ' sc1'
        tlb = 0
    ROT = rot
    A0 = Asm()
    class F:
        def __init__(s): s.inloop = False
        def __call__(s, l):
            for x in l.strip("\n").split("\n"):
                xs = x.strip()
                if s.inloop:
                    if mode == 1 and xs.startswith("buffer_load") : continue
                    if mode == 2 and (xs.startswith("v_mfma") or xs.startswith("ds_read")): continue
                    if mode == 3 and xs.startswith("v_mfma"): continue
                    if mode in (4, 6) and xs.startswith("s_barrier"): continue
                    if mode == 6 and xs.startswith("buffer_load"): continue
                    if mode == 5 and xs.startswith("ds_read"): continue
                    if mode == 7 and (xs.startswith("buffer_load") or xs.startswith("ds_read")): continue
                    if mode == 8 and (xs.startswith("buffer_load") or xs.startswith("ds_read") or xs.startswith("s_barrier")): continue
                    if mode == 10 and (xs.startswith("buffer_load") or xs.startswith("ds_read") or xs.startswith("s_barrier") or xs.startswith("s_add_u32 m0") or xs.startswith("s_add_u32 s48") or xs.startswith("s_nop 0") or xs.startswith("v_add_u32")): continue
                if xs.endswith("_loop:"): s.inloop = True
                if xs.startswith("s_cbranch_scc1") and xs.endswith("g_loop"): s.inloop = False
                A0(x)
        def label(s, b): return A0.label(b)
        def text(s): return A0.text()
    A = F()
    A(khead(KN))
    A(f"""
    s_cmp_ge_u32 s2, 256
    s_cbranch_scc1 Lk1_exit
    """)
    if prof or mprof: prof_start(A)
    if tl: tl_start(A, 0)
    if cpf:
        A(f"""
        s_getpc_b64 s[80:81]
Lk1_pc:
        s_sub_u32 s80, s80, Lk1_pc - {KN}
        s_subb_u32 s81, s81, 0
        s_lshr_b32 s82, s2, 3
        s_mul_i32 s82, s82, (Lcode_end - {KN} + 4095) / 4096
        v_and_b32 v61, 63, v0
        v_add_u32 v61, s82, v61
        v_min_u32 v61, (Lcode_end - {KN} - 4) / 128, v61
        v_lshlrev_b32 v61, 7, v61
        v_lshrrev_b32 v60, 6, v0
        v_and_b32 v59, 63, v0
        v_cmp_gt_u32 vcc, (Lcode_end - {KN} + 4095) / 4096, v59
        v_cmp_eq_u32 s[82:83], 7, v60
        s_and_b64 vcc, vcc, s[82:83]
        s_and_saveexec_b64 s[82:83], vcc
        s_cbranch_execz Lk1_nocpf
        global_load_dword v61, v61, s[80:81]
Lk1_nocpf:
        s_mov_b64 exec, s[82:83]
        """)
    A(f"""
    s_load_dwordx2 s[80:81], s[0:1], 48    ; w2
    s_load_dwordx2 s[82:83], s[0:1], 16    ; wo
    s_load_dwordx4 s[4:7], s[0:1], 0       ; A_x, wqkv
    s_load_dwordx4 s[8:11], s[0:1], 32     ; w1, b1
    s_load_dwordx2 s[12:13], s[0:1], 56    ; gate_w
    s_load_dwordx2 s[14:15], s[0:1], 80    ; ws
    v_lshrrev_b32 v1, 6, v0
    v_and_b32 v2, 63, v0                   ; lane
    s_and_b32 s41, s2, 7                   ; xcd
    v_readfirstlane_b32 s32, v1
    """)
    if fused:
        A("""
        s_nop 3
        s_mov_b32 s85, s32
        s_sub_u32 s42, s32, 4
        s_add_u32 s43, s32, 4
        s_cmp_ge_u32 s32, 8
        s_cselect_b32 s43, s42, s43
        s_cmp_lt_u32 s32, 4
        s_cselect_b32 s32, s32, s43
        """)
    A(f"""
    s_lshr_b32 s42, s2, 3                  ; i
    s_and_b32 s43, s41, 1
    s_lshl_b32 s43, s43, 3
    s_and_b32 s44, s42, 7
    s_add_u32 s34, s43, s44                ; rb
    s_lshr_b32 s43, s41, 1
    s_lshl_b32 s43, s43, 2
    s_lshr_b32 s44, s42, 3
    s_add_u32 s35, s43, s44                ; cgp
    s_mul_i32 s45, s35, 52
    s_lshr_b32 s45, s45, 8                 ; cgp/5
    s_add_u32 s33, s45, 1
    s_mul_i32 s45, s45, 5
    s_sub_u32 s46, s35, s45                ; cbl (0..4)
    s_cmp_eq_u32 s35, 15
    s_cselect_b32 s33, 0, s33
    v_lshrrev_b32 v3, 3, v2
    v_mul_u32_u24 v3, 1280, v3
    v_and_b32 v13, 7, v2
    v_lshrrev_b32 v14, 4, v2               ; lane>>4
    v_xor_b32 v15, v13, v14
    v_lshl_add_u32 v10, v15, 4, v3         ; even u
    v_xor_b32 v15, 4, v15
    v_lshl_add_u32 v11, v15, 4, v3         ; odd u
    s_lshl_b32 s37, s34, 7                 ; rb*128
    s_lshl_b32 s41, s32, 4                 ; w*16 rows
    s_add_u32 s37, s37, s41
    s_mul_i32 s37, s37, 1280
    s_lshl_b32 s42, s32, 11
    s_lshr_b32 s57, s2, 3                  ; i
    s_and_b32 s78, s57, 7
    s_lshr_b32 s57, s57, 3
    s_lshl_b32 s57, s57, 1
    s_add_u32 s78, s78, s57
    s_mul_i32 s78, s78, {1 if ROT else 0}
    s_mov_b32 s56, 0
    s_mov_b32 s69, 0
    s_mov_b32 s58, s37
    s_mov_b32 s79, 0
    """)
    if ROT == 2:
        A("""
        s_cmp_ge_u32 s78, 10
        s_cselect_b32 s57, 10, 0
        s_sub_u32 s78, s78, s57
        s_mov_b32 s79, s78
        s_mov_b32 s69, s78
        s_lshl_b32 s57, s79, 7
        s_add_u32 s37, s58, s57
        """)
    A(f"""
    s_waitcnt lgkmcnt(0)
    """)
    if prof:
        A("s_memtime s[88:89]")
        A("s_waitcnt lgkmcnt(0)")
        A("s_sub_u32 s87, s88, s92")
    srd(A, 16, 4, X_BYTES)
    srd_ws(A, 24, 14, WS_RECORDS)
    srd(A, 60, 6, WQKV_BYTES)
    srd(A, 64, 8, W1_BYTES)
    if not fused:
        A(f"""
        s_cmp_eq_u32 s32, 7
        s_cbranch_scc0 Lk1_noflag
        s_lshl_b32 s41, s2, 2
        s_add_u32 s41, s41, {OFLAG_OFF}
        v_mov_b32 v3, 0
        s_mov_b64 exec, 1
        buffer_store_dword v3, v3, s[24:27], s41 offen
        s_mov_b64 exec, -1
    Lk1_noflag:
        """)
    if tlb:
        A("s_cmp_eq_u32 s32, 0")
        A("s_cbranch_scc0 Lk1_notouch")
        srd(A, 28, 10, B1_BYTES)
        A("v_mov_b32 v3, 0")
        MB2 = 2 << 20
        touch(A, [(16, "s37"), (60, 0), (60, MB2), (64, 0), (28, 0)] + [(24, k*MB2) for k in range(7)] + [(24, G_OFF)], 3, 1)
        A("Lk1_notouch:")
    A(f"""
    s_cmp_ge_u32 s32, 8
    s_cbranch_scc1 Lk1_H
    s_cmp_ge_u32 s32, 4
    s_cbranch_scc1 Lk1_R
    """)

    def adv_group(ws):
        if ROT == 2:
            g = ["s_add_u32 s79, s79, 1", "s_cmp_eq_u32 s79, 10", "s_cselect_b32 s79, 0, s79", "s_lshl_b32 s57, s79, 7", "s_add_u32 s37, s58, s57"]
        else:
            g = ["s_add_u32 s56, s56, 1", "s_add_u32 s57, s56, s78", "s_sub_u32 s57, s57, 2", "s_and_b32 s57, s57, 7", "s_add_u32 s57, s57, 2",
                 "s_cmp_lt_u32 s56, 2", "s_cselect_b32 s79, s56, s57", "s_lshl_b32 s57, s79, 7", "s_add_u32 s37, s58, s57"]
        if ws:
            g += [f"s_mul_i32 s57, s79, {ws}", "s_add_u32 s38, s59, s57"]
        return g

    def x_dma(slot_sgpr):
        g = []
        for j in range(2):
            g.append([f"s_add_u32 m0, {slot_sgpr}, {j*1024}", f"s_add_u32 s48, s37, {j*10240}",
                      f"buffer_load_dwordx4 v{10 + j}, s[16:19], s48 offen lds"])
        return g

    def xfrag_addr(rowbase_expr_sgpr):
        A(f"""
        v_and_b32 v3, 31, v2                   ; token
        v_lshrrev_b32 v13, 5, v2               ; hf
        v_bfe_u32 v14, v2, 1, 3
        v_xor_b32 v14, v13, v14
        v_lshlrev_b32 v14, 4, v14
        v_lshl_add_u32 v14, v3, 7, v14
        v_add_u32 v56, {rowbase_expr_sgpr}, v14
        v_xor_b32 v57, 32, v56
        v_xor_b32 v58, 64, v56
        v_xor_b32 v59, 96, v56
        """)

    def set_slot(nw, sgpr):
        out = [f"v_add_u32 v{4+k}, {sgpr}, v{56+k}" for k in range(4)]
        out += [f"v_add_u32 v{8+k}, {sgpr}, v{60+k}" for k in range(nw)]
        return out

    def interleave(ms, others):
        n = len(ms)
        per = (len(others) + n - 1) // n
        k = 0
        for i, m in enumerate(ms):
            A(m)
            for grp in others[k:k+per]:
                for l in grp: A(l)
            k += per

    def kstep(ms, rd, extra, wait=True, skip_last=False):
        if wait: A("s_waitcnt lgkmcnt(0)")
        n = len(ms) - (1 if skip_last else 0)
        A(ms[0])
        for grp in rd:
            for l in grp: A(l)
        slots = max(1, n - 1)
        per = (len(extra) + slots - 1) // slots if extra else 0
        k = 0
        for i in range(1, n):
            A(ms[i])
            for grp in extra[k:k+per]:
                for l in grp: A(l)
            k += per
        for grp in extra[k:]:
            for l in grp: A(l)

    def loop(tag, nown, reads, mfmas, dma_groups, nw, unit=False):
        A(f"s_waitcnt vmcnt({nown})")
        A("s_barrier")
        if dbg2 and nw == 2: wl_stamp(A, 160, 4)
        if prof:
            A("s_memtime s[90:91]")
            A("s_waitcnt lgkmcnt(0)")
            A("s_sub_u32 s90, s90, s92")
        for l in set_slot(nw, "0"): A(l)
        for l in reads(0, 0): A(l)
        A(f"s_mov_b32 s50, {SLOT}")
        A.inloop = True
        g = dma_groups()
        adv = g[-1]; g = g[:-1]
        parts = [[], [], [], []]
        for i, grp in enumerate(g): parts[i * 4 // len(g)].append(grp)
        R = lambda ks, fs: [[l] for l in reads(ks, fs)]
        rot = [["s_mov_b32 s51, s50", f"s_add_u32 s50, s50, {SLOT}", f"s_cmp_ge_u32 s50, {3*SLOT}", "s_cselect_b32 s50, 0, s50",
                "s_add_u32 s52, s51, s42", "s_add_u32 s53, s51, s43"]]
        A(f"s_add_u32 s52, s42, {2*SLOT}")
        A(f"s_add_u32 s53, s43, {2*SLOT}")
        kstep(mfmas(0), R(1, 1), parts[0] + parts[1])
        kstep(mfmas(1), R(2, 0), parts[2])
        kstep(mfmas(0), R(3, 1), parts[3] + [adv] + [["s_mov_b32 s52, s42", "s_mov_b32 s53, s43", "s_mov_b32 s40, 0"]], skip_last=True)
        def section(dma, vm, final=False, ug=None):
            A(mfmas(0)[-1])
            A(f"s_waitcnt vmcnt({vm}) lgkmcnt(0)")
            A("s_barrier")
            if final:
                for m in mfmas(1): A(m)
                return
            rd = R(0, 0)
            rd[0] = set_slot(nw, "s50") + rd[0]
            P_ = parts if dma else [[], [], [], []]
            kstep(mfmas(1), rd, P_[0], wait=False)
            kstep(mfmas(0), R(1, 1), P_[1] + (ug or []))
            kstep(mfmas(1), R(2, 0), P_[2])
            tail = (P_[3] + [adv] if dma else []) + rot
            if dma: tail = tail + [["s_add_u32 s40, s40, 1", "s_cmp_lt_u32 s40, 7"]]
            kstep(mfmas(0), R(3, 1), tail, skip_last=True)
        A(f"L{tag}_loop:")
        section(True, nown)
        A(f"s_cbranch_scc1 L{tag}_loop")
        ug = []
        if unit:
            for j in range(4):
                ug.append([f"s_add_u32 m0, s76, {j*1024}", f"s_add_u32 s48, s100, {j*8*1280}", f"buffer_load_dwordx4 v62, s[96:99], s48 offen lds"])
            A("s_lshl_b32 s76, s32, 12")
            A("s_add_u32 s76, s76, s51")
        section(False, nown, ug=ug)
        section(False, 4 if unit else 0)
        section(False, 4 if unit else 0, final=True)
        A.inloop = False
        A("s_nop 15")
        if prof:
            A("s_memtime s[88:89]")
            A("s_waitcnt lgkmcnt(0)")
            A("s_sub_u32 s91, s88, s92")

    A(f"""
    s_cmp_eq_u32 s33, 0
    s_cbranch_scc1 Lk1_gate
    """)
    srd(A, 20, 6, WQKV_BYTES)
    A(f"""
    s_mov_b32 s36, 3840
    v_and_b32 v13, 15, v2
    v_lshlrev_b32 v15, 2, v14
    v_xor_b32 v13, v13, v15
    v_mul_u32_u24 v15, 3840, v14
    v_lshl_add_u32 v12, v13, 4, v15
    s_mul_i32 s38, s32, {16*3840}          ; w*16 k-rows
    s_lshl_b32 s41, s35, 8                 ; cgp*128*2
    s_add_u32 s59, s38, s41
    s_mul_i32 s57, s79, {64*3840}
    s_add_u32 s38, s59, s57
    s_lshl_b32 s43, s32, 12
    s_add_u32 s43, s43, {WQO}
    """)
    def p_dma():
        g = x_dma("s52")
        for j in range(4):
            g.append([f"s_add_u32 m0, s53, {j*1024}",
                      (f"s_add_u32 s48, s38, {j*4*3840}"),
                      f"buffer_load_dwordx4 v12, s[20:23], s48 offen lds"])
        g.append(adv_group(64*3840))
        return g
    def stage_issue(st, dmaf):
        A(f"s_add_u32 s52, s42, {st*SLOT}")
        A(f"s_add_u32 s53, s43, {st*SLOT}")
        for grp in dmaf():
            for l in grp: A(l)
    if prof: wl_stamp(A, 63, 0)
    stage_issue(0, p_dma)
    if dbg2: wl_stamp(A, 160, 2)
    if prof: wl_stamp(A, 63, 1)
    A("s_barrier")
    if dbg2: wl_stamp(A, 160, 3)
    if prof: wl_stamp(A, 63, 2)
    LATE_P = True
    A("s_lshr_b32 s41, s32, 1")
    A("s_lshl_b32 s41, s41, 13")
    xfrag_addr("s41")
    A(f"""
    v_bfe_u32 v14, v2, 2, 2                ; r
    v_lshl_add_u32 v15, v13, 3, v14
    v_lshlrev_b32 v15, 8, v15
    v_bfe_u32 v3, v2, 4, 1
    v_lshl_add_u32 v15, v3, 5, v15
    v_and_b32 v3, 3, v2
    v_lshl_add_u32 v15, v3, 3, v15
    v_add_u32 v15, {WQO}, v15
    s_and_b32 s41, s32, 1
    s_lshl_b32 s41, s41, 1
    v_xor_b32 v3, s41, v14                 ; ct ^ r
    v_lshl_add_u32 v60, v3, 6, v15
    v_xor_b32 v3, 1, v3
    v_lshl_add_u32 v61, v3, 6, v15
    """)
    if prof: wl_stamp(A, 63, 3)
    stage_issue(1, p_dma)
    if prof: wl_stamp(A, 63, 4)
    for i in range(64): A(f"v_mov_b32 v{64+i}, 0")
    def p_reads(ks, fs):
        b = 16 + 16*fs
        return [
            f"ds_read_b128 v[{b}:{b+3}], v{4+ks}",
            f"ds_read_b64_tr_b16 v[{b+8}:{b+9}], v8 offset:{ks*4096}",
            f"ds_read_b64_tr_b16 v[{b+10}:{b+11}], v8 offset:{ks*4096 + 1024}",
            f"ds_read_b128 v[{b+4}:{b+7}], v{4+ks} offset:4096",
            f"ds_read_b64_tr_b16 v[{b+12}:{b+13}], v9 offset:{ks*4096}",
            f"ds_read_b64_tr_b16 v[{b+14}:{b+15}], v9 offset:{ks*4096 + 1024}",
        ]
    def p_mfmas(normal):
        def f(fs):
            b = 16 + 16*fs
            out = []
            for rt in range(2):
                for ct in range(2):
                    d = 64 + 16*(2*rt + ct)
                    x = f"v[{b+4*rt}:{b+4*rt+3}]"; w = f"v[{b+8+4*ct}:{b+8+4*ct+3}]"
                    a_, b_ = (x, w) if normal else (w, x)
                    out.append(f"v_mfma_f32_32x32x16_bf16 v[{d}:{d+15}], {a_}, {b_}, v[{d}:{d+15}]")
            return out
        return f
    A(f"""
    s_lshr_b32 s41, s32, 1
    s_lshl_b32 s41, s41, 1
    s_lshl_b32 s44, s34, 2
    s_add_u32 s44, s44, s41                ; T (rt'=0)
    s_cmp_eq_u32 s33, 3
    s_cbranch_scc1 Lk1_mainV
    s_cmp_eq_u32 s33, 1
    s_cbranch_scc0 Lk1_isK
    s_mul_i32 s68, s44, 1280
    s_add_u32 s68, s68, {QF_OFF}
    s_mov_b32 s49, {HSQ}
    s_mov_b32 s70, {f32bits(QSCALE):#x}
    s_branch Lk1_qk
Lk1_isK:
    s_lshr_b32 s68, s44, 3
    s_mul_i32 s68, s68, {CH}
    s_and_b32 s41, s44, 7
    s_mul_i32 s41, s41, 1280
    s_add_u32 s68, s68, s41
    s_add_u32 s68, s68, {KV_OFF}
    s_mov_b32 s49, {HSK}
    s_mov_b32 s70, 1.0
Lk1_qk:
    s_mov_b32 s71, s70
    s_and_b32 s41, s32, 1
    s_lshl_b32 s41, s41, 4
    s_lshl_b32 s55, s46, 5
    s_add_u32 s55, s55, s41                ; G0 base
    v_lshrrev_b32 v13, 5, v2               ; hf
    v_and_b32 v3, 31, v2                   ; token
    v_lshlrev_b32 v14, 4, v3
    v_lshlrev_b32 v15, 3, v3
    v_add_u32 v15, 1024, v15
    """)
    for sl in range(8):
        d = 48 + sl
        A(f"""
        v_add_u32 v16, {2*sl}, v13
        v_add_u32 v16, s55, v16                ; G
        v_mul_u32_u24 v17, 205, v16
        v_lshrrev_b32 v17, 10, v17             ; h = G/5
        v_mul_u32_u24 v18, 5, v17
        v_sub_u32 v18, v16, v18                ; j
        v_mul_lo_u32 v17, v17, s49             ; h*HS
        v_and_b32 v19, 1, v18
        v_lshlrev_b32 v19, 9, v19              ; (j&1)*512
        v_add_u32 v19, v19, v14
        v_cmp_eq_u32 vcc, 4, v18
        v_cmp_gt_u32 s[72:73], 2, v18
        s_nop 0
        v_cndmask_b32 v19, v19, v15, vcc
        """)
        if sl == 0:
            A(f"""
            v_mov_b32 v20, 10
            v_cndmask_b32 v20, v20, 2, vcc
            v_cndmask_b32 v20, v20, 1, s[72:73]
            """)
        else:
            A(f"""
            v_mov_b32 v20, 0
            v_cndmask_b32 v20, v20, 2, vcc
            v_cndmask_b32 v20, v20, {1 if sl < 7 else 2}, s[72:73]
            """)
        A(f"""
        v_add_u32 v19, v19, v17
        v_add_u32 v{d}, v19, v20
        """)
    loop("k1T", 6, p_reads, p_mfmas(False), p_dma, 2)
    if fused: A("s_setprio 3")
    if mprof: wl_stamp(A, 160, 0)
    for rt in range(2):
        for sl in range(8):
            r = 64 + 16*(2*rt + (sl >> 2)) + 4*(sl & 3)
            t = 16 + 16*rt + 2*sl
            A(f"""
            v_pk_mul_f32 v[{r}:{r+1}], v[{r}:{r+1}], s[70:71]
            v_pk_mul_f32 v[{r+2}:{r+3}], v[{r+2}:{r+3}], s[70:71]
            v_cvt_pk_bf16_f32 v{t}, v{r}, v{r+1}
            v_cvt_pk_bf16_f32 v{t+1}, v{r+2}, v{r+3}
            """)
    for sl in range(8):
        lab = A.label("qk")
        A(f"""
        v_and_b32 v56, 3, v{48+sl}
        v_and_b32 v57, -4, v{48+sl}
        """)
        if sl < 7:
            A(f"""
            v_cmp_eq_u32 vcc, 1, v56
            s_nop 1
            s_mov_b64 exec, vcc
            s_cbranch_execz {lab}_a
            buffer_store_dwordx4 v[{16+2*sl}:{19+2*sl}], v57, s[24:27], s68 offen{SCQ}
            buffer_store_dwordx4 v[{32+2*sl}:{35+2*sl}], v57, s[24:27], s68 offen offset:1280{SCQ}
            {lab}_a:
            s_mov_b64 exec, -1
            """)
        A(f"""
        v_cmp_eq_u32 vcc, 2, v56
        s_nop 1
        s_mov_b64 exec, vcc
        s_cbranch_execz {lab}_b
        buffer_store_dwordx2 v[{16+2*sl}:{17+2*sl}], v57, s[24:27], s68 offen{SCQ}
        buffer_store_dwordx2 v[{32+2*sl}:{33+2*sl}], v57, s[24:27], s68 offen offset:1280{SCQ}
        {lab}_b:
        s_mov_b64 exec, -1
        """)
    A("s_branch Lk1_end")
    A("Lk1_mainV:")
    A(f"""
    s_lshr_b32 s68, s44, 3
    s_mul_i32 s68, s68, {CH}
    s_and_b32 s41, s44, 7
    s_mul_i32 s41, s41, {VT}
    s_add_u32 s68, s68, s41
    s_add_u32 s68, s68, {KV_OFF + VPART}
    s_and_b32 s41, s32, 1
    s_lshl_b32 s41, s41, 6
    s_lshl_b32 s55, s46, 7
    s_add_u32 s55, s55, s41
    v_and_b32 v3, 31, v2
    v_lshrrev_b32 v13, 5, v2               ; hf
    v_mul_u32_u24 v14, {VH}, v13
    s_mov_b32 s49, {HSK}
    """)
    for ct in range(2):
        A(f"""
        v_add_u32 v16, {32*ct}, v3
        v_add_u32 v16, s55, v16                ; c
        v_mul_u32_u24 v17, 3277, v16
        v_lshrrev_b32 v17, 16, v17             ; h
        v_mul_u32_u24 v18, 20, v17
        v_sub_u32 v18, v16, v18                ; dh
        v_mul_lo_u32 v17, v17, s49
        v_cmp_eq_u32 s[{72+2*ct}:{73+2*ct}], 0, v18
        """)
        vslot(A, 18, 20, 21)
        A(f"""
        v_lshl_add_u32 v19, v20, 4, v17
        v_add_u32 v{48+ct}, v19, v14
        """)
    loop("k1N", 6, p_reads, p_mfmas(True), p_dma, 2)
    if fused: A("s_setprio 3")
    if mprof: wl_stamp(A, 160, 0)
    for ct in range(2):
        for rt in range(2):
            for j in range(2):
                r = 64 + 16*(2*rt + ct) + 8*j
                t = 32 + 4*(2*rt + j)
                for m in range(4):
                    A(f"v_cvt_pk_bf16_f32 v{t+m}, v{r+2*m}, v{r+2*m+1}")
                A(f"buffer_store_dwordx4 v[{t}:{t+3}], v{48+ct}, s[24:27], s68 offen offset:{rt*VT + j*2*VH}{SC}")
    A("s_branch Lk1_end")

    A("Lk1_gate:")
    srd(A, 28, 12, GW_BYTES)
    A(f"""
    s_mul_i32 s41, s32, 320
    s_add_u32 m0, s41, {GATE_LDS}
    v_lshlrev_b32 v12, 4, v2
    v_cmp_gt_u32 vcc, 20, v2
    s_and_saveexec_b64 s[76:77], vcc
    buffer_load_dwordx4 v12, s[28:31], s41 offen lds
    s_mov_b64 exec, s[76:77]
    """)
    def g_dma():
        g = x_dma("s52")
        g.append(adv_group(0))
        return g
    for st in range(2):
        A(f"s_add_u32 s52, s42, {st*SLOT}")
        for grp in g_dma():
            for l in grp: A(l)
        if st == 0: A("s_barrier")
    A("s_lshl_b32 s41, s32, 12")
    xfrag_addr("s41")
    A(f"""
    v_lshlrev_b32 v9, 4, v13               ; hf*16
    v_add_u32 v62, {GATE_LDS}, v9
    s_lshl_b32 s57, s69, 7
    v_add_u32 v9, s57, v62
    v_mov_b32 v60, 0
    s_mov_b32 s43, 0
    """)
    for i in range(16): A(f"v_mov_b32 v{64+i}, 0")
    def g_reads(ks, fs):
        b = 16 + 16*fs
        out = [f"ds_read_b128 v[{b}:{b+3}], v{4+ks}", f"ds_read_b128 v[{b+4}:{b+7}], v9 offset:{ks*32}"]
        if ks == 3:
            if ROT == 2:
                out += ["s_add_u32 s69, s69, 1", "s_cmp_eq_u32 s69, 10", "s_cselect_b32 s69, 0, s69", "s_lshl_b32 s57, s69, 7", "v_add_u32 v9, s57, v62"]
            else:
                out += ["s_add_u32 s69, s69, 1", "s_add_u32 s57, s69, s78", "s_sub_u32 s57, s57, 2", "s_and_b32 s57, s57, 7", "s_add_u32 s57, s57, 2",
                        "s_cmp_lt_u32 s69, 2", "s_cselect_b32 s57, s69, s57", "s_lshl_b32 s57, s57, 7", "v_add_u32 v9, s57, v62"]
        return out
    def g_mfmas(fs):
        b = 16 + 16*fs
        return [f"v_mfma_f32_32x32x16_bf16 v[64:79], v[{b+4}:{b+7}], v[{b}:{b+3}], v[64:79]"]
    A(f"s_waitcnt vmcnt(2)")
    A("s_barrier")
    A(f"s_add_u32 s52, s42, {2*SLOT}")
    for grp in g_dma():
        for l in grp: A(l)
    if prof:
        A("s_mov_b32 s90, 0")
    for l in set_slot(0, "0"): A(l)
    for l in g_reads(0, 0): A(l)
    A("s_mov_b32 s40, 0")
    A(f"s_mov_b32 s50, {SLOT}")
    A("s_mov_b32 s51, 0")
    A("Lk1g_loop:")
    for ks in range(3):
        fs = ks & 1
        for l in g_reads(ks + 1, fs ^ 1): A(l)
        A("s_waitcnt lgkmcnt(2)")
        for l in g_mfmas(fs): A(l)
    A(f"""
    s_cmp_lt_u32 s40, 8
    s_cbranch_scc1 Lk1g_a
    s_waitcnt vmcnt(0)
Lk1g_a:
    s_waitcnt vmcnt(2) lgkmcnt(0)
    s_barrier
    """)
    for l in set_slot(0, "s50"): A(l)
    for l in g_mfmas(1): A(l)
    for l in g_reads(0, 0): A(l)
    A(f"""
    s_cmp_lt_u32 s40, 7
    s_cbranch_scc0 Lk1g_b
    s_add_u32 s52, s51, s42
    """)
    for grp in g_dma():
        for l in grp: A(l)
    A(f"""
Lk1g_b:
    s_mov_b32 s51, s50
    s_add_u32 s50, s50, {SLOT}
    s_cmp_ge_u32 s50, {3*SLOT}
    s_cselect_b32 s50, 0, s50
    s_add_u32 s40, s40, 1
    s_cmp_lt_u32 s40, 10
    s_cbranch_scc1 Lk1g_loop
    s_waitcnt lgkmcnt(0)
    s_nop 15
    v_mul_f32 v16, {f32bits(-LOG2E):#x}, v64
    v_exp_f32 v16, v16
    s_nop 0
    v_add_f32 v16, 1.0, v16
    v_rcp_f32 v16, v16
    s_lshl_b32 s44, s34, 2
    s_add_u32 s44, s44, s32                ; T
    s_lshl_b32 s44, s44, 7                 ; *32*4 bytes
    s_add_u32 s44, s44, {G_OFF}
    v_lshlrev_b32 v17, 2, v2
    v_cmp_gt_u32 vcc, 32, v2
    s_and_saveexec_b64 s[76:77], vcc
    buffer_store_dword v16, v17, s[24:27], s44 offen{SC}
    s_mov_b64 exec, s[76:77]
    s_branch Lk1_end
    """)

    A("Lk1_R:")
    if prof:
        A("v_writelane_b32 v61, s87, 8")
        wl_stamp(A, 61, 9)
    srd(A, 20, 8, W1_BYTES)
    srd(A, 28, 10, B1_BYTES)
    A(f"""
    s_sub_u32 s47, s32, 4
    s_mul_i32 s41, s35, 192
    v_lshrrev_b32 v3, 5, v2
    v_lshlrev_b32 v3, 4, v3
    """)
    if prof: wl_stamp(A, 61, 12)
    A(f"""
    buffer_load_dwordx4 v[112:115], v3, s[28:31], s41 offen
    """)
    if prof: wl_stamp(A, 61, 13)
    A(f"""
    buffer_load_dwordx4 v[116:119], v3, s[28:31], s41 offen offset:32
    buffer_load_dwordx4 v[120:123], v3, s[28:31], s41 offen offset:64
    buffer_load_dwordx4 v[124:127], v3, s[28:31], s41 offen offset:96
    buffer_load_dwordx4 v[48:51], v3, s[28:31], s41 offen offset:128
    buffer_load_dwordx4 v[52:55], v3, s[28:31], s41 offen offset:160
    """)
    if prof: wl_stamp(A, 61, 14)
    for j, reg in enumerate((12, 62, 63)):
        A(f"""
        s_mul_i32 s41, s47, 192
        s_add_u32 s41, s41, {64*j}
        v_add_u32 v13, s41, v2                 ; t
        v_mul_u32_u24 v14, 5462, v13
        v_lshrrev_b32 v14, 16, v14             ; t/12
        v_mul_u32_u24 v15, 12, v14
        v_sub_u32 v15, v13, v15
        v_mul_u32_u24 v14, 3072, v14
        v_lshl_add_u32 v{reg}, v15, 4, v14
        """)
    A(f"""
    s_mul_i32 s59, s35, 192
    s_mul_i32 s57, s79, {64*3072}
    s_add_u32 s38, s59, s57
    s_mul_i32 s43, s47, 3072
    s_add_u32 s43, s43, {W1O}
    """)
    def r_dma():
        g = x_dma("s52")
        for j, reg in enumerate((12, 62, 63)):
            g.append([f"s_add_u32 m0, s53, {j*1024}", "s_nop 0",
                      f"buffer_load_dwordx4 v{reg}, s[20:23], s38 offen lds"])
        g.append(adv_group(64*3072))
        return g
    def r_stage(st):
        A(f"s_add_u32 s52, s42, {st*SLOT}")
        A(f"s_add_u32 s53, s43, {st*SLOT}")
        for grp in r_dma():
            for l in grp: A(l)
    if prof: wl_stamp(A, 61, 0)
    r_stage(0)
    if prof: wl_stamp(A, 61, 1)
    A("s_barrier")
    A("s_lshl_b32 s41, s47, 12")
    xfrag_addr("s41")
    A(f"""
    v_bfe_u32 v14, v2, 2, 2
    v_lshl_add_u32 v15, v13, 3, v14
    v_mul_u32_u24 v15, 192, v15
    v_bfe_u32 v3, v2, 4, 1
    v_lshl_add_u32 v15, v3, 5, v15
    v_and_b32 v3, 3, v2
    v_lshrrev_b32 v1, 1, v3
    v_and_b32 v3, 1, v3
    v_lshl_or_b32 v3, v3, 1, v1
    v_lshl_add_u32 v15, v3, 3, v15
    v_add_u32 v60, {W1O}, v15
    """)
    if prof: wl_stamp(A, 61, 2)
    r_stage(1)
    if prof: wl_stamp(A, 61, 3)
    A("s_waitcnt vmcnt(10)")
    if prof:
        wl_stamp(A, 61, 4)
    bsrc = [112, 116, 120, 124, 48, 52]
    for ct in range(3):
        for half in range(2):
            for m in range(4):
                src = bsrc[2*ct + half] + m
                d = 64 + 16*ct + 8*half + 2*m
                A(f"v_lshlrev_b32 v{d}, 16, v{src}")
                A(f"v_and_b32 v{d+1}, 0xffff0000, v{src}")
    def r_reads(ks, fs):
        b = 16 + 16*fs
        out = [f"ds_read_b128 v[{b}:{b+3}], v{4+ks}"]
        for ct in range(3):
            out.append(f"ds_read_b64_tr_b16 v[{b+4+4*ct}:{b+5+4*ct}], v8 offset:{ks*16*192 + ct*64}")
            out.append(f"ds_read_b64_tr_b16 v[{b+6+4*ct}:{b+7+4*ct}], v8 offset:{ks*16*192 + 4*192 + ct*64}")
        return out
    def r_mfmas(fs):
        b = 16 + 16*fs
        return [f"v_mfma_f32_32x32x16_bf16 v[{64+16*ct}:{64+16*ct+15}], v[{b+4+4*ct}:{b+7+4*ct}], v[{b}:{b+3}], v[{64+16*ct}:{64+16*ct+15}]" for ct in range(3)]
    loop("k1R", 5, r_reads, r_mfmas, r_dma, 1)
    if not fused: A("s_setprio 2")
    A(f"""
    s_lshl_b32 s44, s34, 2
    s_add_u32 s44, s44, s47                ; T
    s_mul_i32 s45, s44, {2*48*1024}
    s_mul_i32 s41, s35, {3*1024}
    s_add_u32 s45, s45, s41
    s_add_u32 s45, s45, {ACT_OFF}
    v_bfe_u32 v13, v2, 4, 1                ; token>>4
    v_mul_u32_u24 v13, {48*1024}, v13
    v_lshrrev_b32 v14, 5, v2               ; hf
    v_lshl_add_u32 v13, v14, 8, v13
    v_and_b32 v14, 15, v2
    v_lshl_add_u32 v13, v14, 4, v13
    s_mov_b32 s54, {f32bits(LOG2E):#x}
    s_mov_b32 s55, s54
    v_mov_b32 v2, 2.0
    v_mov_b32 v3, 2.0
    """)
    def mish8(r, t0):
        for p in range(4):
            A(f"v_pk_mul_f32 v[{t0+2*p}:{t0+2*p+1}], v[{r+2*p}:{r+2*p+1}], s[54:55]")
        for i in range(8):
            A(f"v_exp_f32 v{t0+i}, v{t0+i}")
        for p in range(4):
            A(f"v_pk_add_f32 v[{t0+8+2*p}:{t0+8+2*p+1}], v[{t0+2*p}:{t0+2*p+1}], v[2:3]")
        for p in range(4):
            A(f"v_pk_fma_f32 v[{t0+2*p}:{t0+2*p+1}], v[{t0+2*p}:{t0+2*p+1}], v[{t0+8+2*p}:{t0+8+2*p+1}], v[2:3]")
        for i in range(8):
            A(f"v_rcp_f32 v{t0+i}, v{t0+i}")
        A("s_nop 0")
        for p in range(4):
            A(f"v_pk_fma_f32 v[{t0+2*p}:{t0+2*p+1}], v[{t0+2*p}:{t0+2*p+1}], -2.0, 1.0 op_sel_hi:[1,0,0]")
        for p in range(4):
            A(f"v_pk_mul_f32 v[{r+2*p}:{r+2*p+1}], v[{r+2*p}:{r+2*p+1}], v[{t0+2*p}:{t0+2*p+1}]")
    k = 0
    for ct in range(3):
        for j in range(2):
            r = 64 + 16*ct + 8*j
            mish8(r, 16)
            t = 32 + 4*k; k += 1
            for m in range(4):
                A(f"v_cvt_pk_bf16_f32 v{t+m}, v{r+2*m}, v{r+2*m+1}")
            if not fused:
                A(f"buffer_store_dwordx4 v[{t}:{t+3}], v13, s[24:27], s45 offen offset:{ct*1024 + j*512}{SC}")
    if fused:
        if rtrig == 2: lds_spin(A, FL + LF_FULL, 1, 8, tmp=(16, 17), sleep=4)
        elif rtrig == 1: lds_spin(A, FL + LF_GO, 1, 1, tmp=(16, 17), sleep=4)
        else: lds_spin(A, FL + LF_PD, 1, 4, tmp=(16, 17), sleep=4)
        k = 0
        for ct in range(3):
            for j in range(2):
                t = 32 + 4*k; k += 1
                A(f"buffer_store_dwordx4 v[{t}:{t+3}], v13, s[24:27], s45 offen offset:{ct*1024 + j*512}{SC}")
    A("s_branch Lk1_endR" if fused else "s_branch Lk1_end")
    A("Lk1_H:")
    if fused:
        A(f"""
        s_cmp_eq_u32 s32, 8
        s_cbranch_scc1 Lk1_H0
        s_cmp_eq_u32 s32, 10
        s_cbranch_scc0 Lk1_Hn2
        v_lshlrev_b32 v3, 2, v2
        v_add_u32 v3, {FL}, v3
        v_mov_b32 v4, 0
        v_cmp_gt_u32 vcc, 32, v2
        s_and_saveexec_b64 s[50:51], vcc
        ds_write_b32 v3, v4
        s_mov_b64 exec, s[50:51]
        s_waitcnt lgkmcnt(0)
Lk1_Hn2:
        s_cmp_eq_u32 s32, 9
        s_cbranch_scc0 Lk1_Hplain
        s_load_dwordx2 s[50:51], s[0:1], 72    ; d_debug
        s_waitcnt lgkmcnt(0)
        """)
        srd(A, 52, 50, 256)
        A(f"""
        v_mov_b32 v4, 0
        s_cmp_eq_u32 s2, 0
        s_cbranch_scc0 Lk1_notag0
        s_memrealtime s[50:51]
        s_waitcnt lgkmcnt(0)
        s_or_b32 s50, s50, 1
        v_mov_b32 v3, s50
        s_mov_b64 exec, 1
        buffer_store_dword v3, v4, s[52:55], 0 offen sc1
        s_mov_b64 exec, -1
Lk1_notag0:
        s_barrier
        s_barrier
        s_barrier
        s_mov_b32 s50, 0x40000
Lk1_tagpoll:
        buffer_load_dword v3, v4, s[52:55], 0 offen sc1
        s_waitcnt vmcnt(0)
        v_readfirstlane_b32 s51, v3
        s_nop 3
        s_cmp_lg_u32 s51, 0
        s_cbranch_scc1 Lk1_gottag
        s_sleep 4
        s_sub_u32 s50, s50, 1
        s_cbranch_scc0 Lk1_tagpoll
Lk1_gottag:
        v_mov_b32 v4, {FL + LF_TAG}
        ds_write_b32 v4, v3
        s_waitcnt lgkmcnt(0)
        """)
        for i in range(9): A("s_barrier")
        A("s_branch Lattn_entry")
        A("Lk1_Hplain:")
        if cpf2:
            A(f"""
            s_cmp_eq_u32 s32, 11
            s_cbranch_scc0 Lk1_nocp2
            v_mov_b32 v13, 0x7ffffff0
            ; x: lanes: row = 8wg + lane/8, line = 2 + lane%8  (lines 2..9)
            v_lshrrev_b32 v3, 3, v2
            s_lshl_b32 s41, s2, 3
            v_add_u32 v3, s41, v3
            v_mul_u32_u24 v3, 1280, v3
            v_and_b32 v4, 7, v2
            v_lshl_add_u32 v3, v4, 7, v3
            v_add_u32 v3, 256, v3
            s_mul_i32 s41, s2, 60
            v_add_u32 v5, s41, v2
            v_lshlrev_b32 v5, 7, v5
            v_add_u32 v5, {128*3840}, v5
            v_cmp_gt_u32 vcc, 60, v2
            s_nop 1
            v_cndmask_b32 v5, v13, v5, vcc
            s_mul_i32 s41, s2, 48
            v_add_u32 v6, s41, v2
            v_lshlrev_b32 v6, 7, v6
            v_add_u32 v6, {128*3072}, v6
            v_cmp_gt_u32 vcc, 48, v2
            s_nop 1
            v_cndmask_b32 v6, v13, v6, vcc
            """)
            if cpf2 == 2: A("s_barrier")
            A("""
            buffer_load_dword v16, v3, s[16:19], 0 offen
            buffer_load_dword v17, v5, s[60:63], 0 offen
            buffer_load_dword v18, v6, s[64:67], 0 offen
            """)
            for i in range(11 if cpf2 == 2 else 12): A("s_barrier")
            A("s_branch Lattn_entry")
            A("Lk1_nocp2:")
        for i in range(12): A("s_barrier")
        A("s_branch Lattn_entry")
        A("Lk1_H0:")
    if True:
        A(f"""
        s_and_b32 s41, s2, 7
        s_and_b32 s43, s41, 1                  ; rh
        s_lshr_b32 s44, s41, 1                 ; cq
        s_lshr_b32 s45, s2, 3                  ; i
        v_mov_b32 v13, 0x7ffffff0
        s_lshl_b32 s46, s43, 10
        s_lshl_b32 s47, s45, 5
        s_add_u32 s46, s46, s47
        v_add_u32 v3, s46, v2
        v_mul_u32_u24 v3, 1280, v3
        v_cmp_gt_u32 vcc, 32, v2
        s_nop 1
        v_cndmask_b32 v4, v13, v3, vcc
        v_lshrrev_b32 v3, 3, v2
        s_lshl_b32 s47, s45, 1
        v_add_u32 v3, s47, v3
        v_mul_u32_u24 v3, 3840, v3
        v_and_b32 v5, 7, v2
        v_lshlrev_b32 v5, 7, v5
        s_lshl_b32 s48, s44, 10
        v_add_u32 v5, s48, v5
        v_cmp_gt_u32 vcc, 3840, v5
        v_add_u32 v5, v5, v3
        v_cmp_gt_u32 s[50:51], 16, v2
        s_and_b64 vcc, vcc, s[50:51]
        s_nop 1
        v_cndmask_b32 v5, v13, v5, vcc
        ; W1: lanes<12: (2i + lane/6)*3072 + cq*768 + (lane%6)*128
        v_cmp_lt_u32 vcc, 5, v2
        v_mov_b32 v6, 0
        v_mov_b32 v7, 1
        v_cndmask_b32 v3, v6, v7, vcc
        v_mul_u32_u24 v6, 6, v3
        v_sub_u32 v6, v2, v6
        v_lshlrev_b32 v6, 7, v6
        v_add_u32 v3, s47, v3
        v_mul_u32_u24 v3, 3072, v3
        v_add_u32 v6, v6, v3
        s_mul_i32 s48, s44, 768
        v_add_u32 v6, s48, v6
        v_cmp_gt_u32 vcc, 12, v2
        s_nop 1
        v_cndmask_b32 v6, v13, v6, vcc
        s_barrier
        """)
        def PF(st):
            A(f"s_mov_b32 s46, {st*128}")
            A(f"buffer_load_dword v16, v4, s[16:19], s46 offen")
            A(f"s_mov_b32 s47, {st*64*3840}")
            A(f"buffer_load_dword v17, v5, s[60:63], s47 offen")
            A(f"s_mov_b32 s48, {st*64*3072}")
            A(f"buffer_load_dword v18, v6, s[64:67], s48 offen")
        def unit_start(u):
            A(f"""
            s_add_u32 s41, s2, {256*u}
            s_mul_i32 s45, s41, 6554
            s_lshr_b32 s45, s45, 16                ; ksg
            s_mul_i32 s47, s45, 10
            s_sub_u32 s47, s41, s47                ; blk
            s_cmp_lt_u32 s45, 48
            s_cselect_b32 s96, s80, s82
            s_cselect_b32 s97, s81, s83
            s_mov_b32 s98, {W2_BYTES}
            s_cselect_b32 s98, s98, {WO_BYTES}
            s_cselect_b32 s100, 0, 48
            s_and_b32 s97, s97, 0xffff
            s_mov_b32 s99, 0x00020000
            s_sub_u32 s100, s45, s100
            s_mul_i32 s100, s100, {32*1280}
            s_lshl_b32 s101, s47, 7
            s_add_u32 s100, s100, s101
            s_lshl_b32 s77, s47, 2                 ; c0
            s_mul_i32 s101, s45, 5120
            s_cmp_lt_u32 s41, 680
            s_cselect_b32 s76, 1, 0
            s_cbranch_scc0 Lk1_us{u}
            """)
            for j in range(4):
                A(f"s_mov_b32 m0, {UNIT_LDS + j*1024}")
                A(f"s_add_u32 s48, s100, {j*8*1280}")
                A(f"buffer_load_dwordx4 v8, s[96:99], s48 offen lds")
            A(f"Lk1_us{u}:")
        def unit_finish(u):
            A(f"""
            s_cmp_eq_u32 s76, 1
            s_cbranch_scc0 Lk1_uf{u}
            s_waitcnt vmcnt(0)
            """)
            for cc in range(4):
                A(f"ds_read_b64_tr_b16 v[{20+4*cc}:{21+4*cc}], v9 offset:{cc*32}")
                A(f"ds_read_b64_tr_b16 v[{22+4*cc}:{23+4*cc}], v9 offset:{cc*32 + 512}")
            A("s_waitcnt lgkmcnt(0)")
            for cc in range(4):
                A(f"""
                s_add_u32 s41, s77, {cc}               ; c
                s_mul_i32 s45, s41, 205
                s_lshr_b32 s45, s45, 10                ; cg8 = c/5
                s_mul_i32 s47, s45, 5
                s_sub_u32 s47, s41, s47                ; ct
                s_mul_i32 s45, s45, {WF_CG}
                s_lshl_b32 s47, s47, 10
                s_add_u32 s45, s45, s47
                s_add_u32 s45, s45, s101
                s_add_u32 s45, s45, {WF_OFF}
                buffer_store_dwordx4 v[{20+4*cc}:{23+4*cc}], v10, s[24:27], s45 offen{SCW}
                """)
            A(f"Lk1_uf{u}:")
        A(f"""
        s_lshl_b32 s41, s2, 6
        v_add_u32 v11, s41, v2
        v_lshrrev_b32 v12, 9, v11
        s_mov_b32 s41, {HSK}
        v_mul_lo_u32 v12, v12, s41             ; h*HSK
        v_bfe_u32 v13, v11, 6, 3
        v_mul_u32_u24 v13, {CH}, v13
        v_add_u32 v12, v12, v13
        v_bfe_u32 v13, v11, 3, 3               ; tile&7
        v_mul_u32_u24 v13, {VT}, v13
        v_add_u32 v12, v12, v13
        v_bfe_u32 v13, v11, 1, 2
        v_mul_u32_u24 v13, {VH}, v13
        v_add_u32 v12, v12, v13
        v_and_b32 v13, 1, v11
        v_mul_u32_u24 v14, 112, v13
        v_add_u32 v12, v12, v14
        v_add_u32 v12, {KV_OFF + VPART + 128}, v12
        v_cmp_eq_u32 vcc, 0, v13
        v_mov_b32 v14, 0x3f803f80
        s_nop 0
        v_cndmask_b32 v20, 0, v14, vcc
        v_mov_b32 v21, v20
        v_mov_b32 v22, v20
        v_mov_b32 v23, v20
        buffer_store_dwordx4 v[20:23], v12, s[24:27], 0 offen{SC}
        v_lshrrev_b32 v8, 3, v2
        v_mul_u32_u24 v8, 1280, v8
        v_and_b32 v3, 7, v2
        v_lshl_add_u32 v8, v3, 4, v8
        v_lshrrev_b32 v9, 4, v2
        v_bfe_u32 v3, v2, 2, 2
        v_lshl_add_u32 v9, v9, 3, v3
        v_lshlrev_b32 v9, 7, v9
        v_and_b32 v3, 3, v2
        v_lshl_add_u32 v9, v3, 3, v9
        v_add_u32 v9, {UNIT_LDS}, v9
        v_lshlrev_b32 v10, 4, v2
        """)
        if pf == 1:
            PF(2); PF(3)
        A("s_barrier")
        for k in range(6):
            if pf == 1: PF(4 + k)
            A("s_barrier")
        unit_start(0)
        A("s_barrier")
        unit_finish(0); unit_start(1)
        A("s_barrier")
        unit_finish(1); unit_start(2)
        A("s_barrier")
        unit_finish(2)
        A("s_barrier")
    if fused:
        A("s_waitcnt vmcnt(0)")
        if mprof: wl_stamp(A, 160, 0)
        get_tag(A, FL + LF_TAG, "s50")
        publish256(A, 24, F1W_OFF, "s50")
        A("s_branch Lattn_entry")
    else:
        A("s_endpgm")
    if fused:
        A("Lk1_endR:")
        A("s_waitcnt vmcnt(0)")
        A(f"s_sub_u32 s41, s32, 4")
        A("s_lshl_b32 s41, s41, 2")
        A(f"s_add_u32 s41, s41, {FL + LF_RD}")
        A("v_mov_b32 v4, s41")
        A("v_mov_b32 v5, 1")
        A("ds_write_b32 v4, v5")
        A("s_branch Lshadow_entry")
        A("Lk1_end:")
        if mprof: wl_stamp(A, 160, 1)
        A("s_waitcnt vmcnt(0)")
        if mprof and not dbg2: wl_stamp(A, 160, 2)
        A("s_lshl_b32 s41, s32, 2")
        A(f"s_add_u32 s41, s41, {FL + LF_PD}")
        A("v_mov_b32 v4, s41")
        A("v_mov_b32 v5, 1")
        A("ds_write_b32 v4, v5")
        A("s_branch Lattn_entry")
        A("Lk1_exit:")
        A("s_endpgm")
        return A.text()
    A("Lk1_end:")
    if prof:
        A("s_memtime s[88:89]")
        A("s_waitcnt lgkmcnt(0)")
        A("s_sub_u32 s88, s88, s92")
        A("s_cmp_ge_u32 s32, 4")
        A("s_cbranch_scc1 Lk1_dbgR")
        A("v_mov_b32 v61, v63")
        A("Lk1_dbgR:")
        A("v_writelane_b32 v61, s88, 11")
        A("v_writelane_b32 v61, s91, 10")
        A(f"""
        s_lshl_b32 s97, s2, 4
        s_add_u32 s97, s97, s32
        s_lshl_b32 s97, s97, 6
        s_add_u32 s97, s97, {DBG_OFF + 0x100000}
        v_and_b32 v4, 63, v0
        v_lshlrev_b32 v4, 2, v4
        v_cmp_gt_u32 vcc, 16, v0
        v_and_b32 v5, 63, v0
        v_cmp_gt_u32 vcc, 16, v5
        s_and_saveexec_b64 s[56:57], vcc
        buffer_store_dword v61, v4, s[24:27], s97 offen
        s_mov_b64 exec, s[56:57]
        """)
        prof_end(A, 0, 24, 32, tmpv=(4, 5, 6, 7, 8), extra="s90")
    if tl: tl2_record(A, 0, 24, 32)
    A("Lk1_exit:")
    A("s_endpgm")
    return A.text(), kdesc(NAME, 128), f"; @launch kernel={NAME} grid=(256,1,1) block=(576,1,1) lds={LDS_BYTES}"
```

```python
S = 2048; D = 640; H = 32; DH = 20; F = 1536
X_BYTES = S * D * 2
WQKV_BYTES = D * 3 * D * 2
WO_BYTES = D * D * 2
W1_BYTES = D * F * 2
W2_BYTES = F * D * 2
B1_BYTES = F * 2
GW_BYTES = D * 2
OUT_BYTES = S * D * 2

QF_OFF = 0
HSQ = 64 * 1280
KV_OFF = 0x280000
VH = 352
VT = 4 * VH
CH = 21504
HSK = 8 * CH
VPART = 8 * 1280
ACT_OFF = 0x800000
OF_OFF = 0xE00000
BP_OFF = 0x1100000
WF_OFF = 0x1100000
WF_CG = 68*5*1024
OFLAG_OFF = 0x1740000
WOF_OFF = 0x1500000
G_OFF = 0x1400000
WS_RECORDS = 0x2000000

import math
QSCALE = math.log2(math.e) / math.sqrt(DH)
LOG2E = math.log2(math.e)

import struct
def f32bits(x):
    return struct.unpack("<I", struct.pack("<f", x))[0]

FROW = 4352
FREP = 16*FROW + 256
F1A_OFF = 0x1600000
F1B_OFF = 0x1680000
F1W_OFF = 0x1700000
MEGA_FLAG = 155648
LF_FULL, LF_FREE, LF_PROG, LF_PD, LF_RD, LF_GO, LF_GO2, LF_TAG, LF_HD, LF_F1P, LF_GOALL = 0, 32, 64, 80, 96, 116, 120, 124, 128, 144, 160
```

```python
from asm import *
from common import *
from k2 import vslot

NAME = "k1_kernel"
SLOT = 45056
XO, WQO, W1O = 0, 16384, 32768
GATE_LDS = 3 * SLOT
UNIT_LDS = 3 * SLOT + 1536
LDS_BYTES = UNIT_LDS + 3*4096


def gen_helpers(A, FL, pf, mprof, hprio=0, pfa=0):
    UL = UNIT_LDS
    A(f"""
    s_cmp_eq_u32 s32, 8
    s_cbranch_scc1 Lk1_H0
    s_sub_u32 s40, s32, 10
    s_cmp_eq_u32 s32, 9
    s_cselect_b32 s40, 2, s40
    s_cmp_eq_u32 s32, 10
    s_cbranch_scc0 Lk1_Hn2
    v_lshlrev_b32 v3, 2, v2
    v_add_u32 v3, {FL}, v3
    v_mov_b32 v4, 0
    ds_write_b32 v3, v4
    s_waitcnt lgkmcnt(0)
Lk1_Hn2:
    s_cmp_eq_u32 s32, 9
    s_cbranch_scc0 Lk1_Hn1
    s_load_dwordx2 s[50:51], s[0:1], 72    ; d_debug
    s_waitcnt lgkmcnt(0)
    """)
    srd(A, 52, 50, 256)
    A(f"""
    s_cmp_eq_u32 s2, 0
    s_cbranch_scc0 Lk1_Hn1
    s_memrealtime s[50:51]
    s_waitcnt lgkmcnt(0)
    s_or_b32 s50, s50, 1
    v_mov_b32 v3, s50
    v_mov_b32 v4, 0
    s_mov_b64 exec, 1
    buffer_store_dword v3, v4, s[52:55], 0 offen sc1
    s_mov_b64 exec, -1
Lk1_Hn1:
    ; unit: idx = wg + 256u (< 680): ksg = idx/10, blk = idx%10
    s_lshl_b32 s41, s40, 8
    s_add_u32 s41, s41, s2
    s_mul_i32 s45, s41, 6554
    s_lshr_b32 s45, s45, 16                ; ksg
    s_mul_i32 s47, s45, 10
    s_sub_u32 s47, s41, s47                ; blk
    s_cmp_lt_u32 s45, 48
    s_cselect_b32 s96, s80, s82
    s_cselect_b32 s97, s81, s83
    s_mov_b32 s98, {W2_BYTES}
    s_cselect_b32 s98, s98, {WO_BYTES}
    s_cselect_b32 s100, 0, 48
    s_and_b32 s97, s97, 0xffff
    s_mov_b32 s99, 0x00020000
    s_sub_u32 s100, s45, s100
    s_mul_i32 s100, s100, {32*1280}
    s_lshl_b32 s101, s47, 7
    s_add_u32 s100, s100, s101
    s_lshl_b32 s77, s47, 2                 ; c0
    s_mul_i32 s101, s45, 5120
    s_lshl_b32 s75, s40, 12
    s_add_u32 s75, s75, {UL}
    s_cmp_lt_u32 s41, 680
    s_cselect_b32 s76, 1, 0
    v_lshrrev_b32 v8, 3, v2
    v_mul_u32_u24 v8, 1280, v8
    v_and_b32 v3, 7, v2
    v_lshl_add_u32 v8, v3, 4, v8
    v_lshrrev_b32 v9, 4, v2
    v_bfe_u32 v3, v2, 2, 2
    v_lshl_add_u32 v9, v9, 3, v3
    v_lshlrev_b32 v9, 7, v9
    v_and_b32 v3, 3, v2
    v_lshl_add_u32 v9, v3, 3, v9
    v_add_u32 v9, s75, v9
    v_lshlrev_b32 v10, 4, v2
    s_barrier                              ; Bs0
    s_barrier                              ; B_0
    s_cmp_eq_u32 s76, 1
    s_cbranch_scc0 Lk1_nous
    """)
    for j in range(4):
        A(f"s_add_u32 m0, s75, {j*1024}")
        A(f"s_add_u32 s48, s100, {j*8*1280}")
        A(f"buffer_load_dwordx4 v8, s[96:99], s48 offen lds")
    A(f"""
Lk1_nous:
    s_barrier                              ; B_1
    s_barrier                              ; B_2
    s_barrier                              ; B_3
    s_cmp_eq_u32 s32, 9
    s_cbranch_scc0 Lk1_notag
    v_mov_b32 v4, 0
    s_mov_b32 s50, 0x40000
Lk1_tagpoll:
    buffer_load_dword v3, v4, s[52:55], 0 offen sc1
    s_waitcnt vmcnt(0)
    v_readfirstlane_b32 s51, v3
    s_nop 3
    s_cmp_lg_u32 s51, 0
    s_cbranch_scc1 Lk1_gottag
    s_sleep 4
    s_sub_u32 s50, s50, 1
    s_cbranch_scc0 Lk1_tagpoll
Lk1_gottag:
    v_mov_b32 v4, {FL + LF_TAG}
    ds_write_b32 v4, v3
    s_waitcnt lgkmcnt(0)
Lk1_notag:
    s_barrier                              ; B_4
    s_barrier                              ; B_5
    s_barrier                              ; B_6
    s_barrier                              ; B_7
    s_cmp_eq_u32 s76, 1
    s_cbranch_scc0 Lk1_nouf
    s_waitcnt vmcnt(0)
    """)
    for cc in range(4):
        A(f"ds_read_b64_tr_b16 v[{20+4*cc}:{21+4*cc}], v9 offset:{cc*32}")
        A(f"ds_read_b64_tr_b16 v[{22+4*cc}:{23+4*cc}], v9 offset:{cc*32 + 512}")
    A("s_waitcnt lgkmcnt(0)")
    for cc in range(4):
        A(f"""
        s_add_u32 s41, s77, {cc}               ; c
        s_mul_i32 s45, s41, 205
        s_lshr_b32 s45, s45, 10                ; cg8 = c/5
        s_mul_i32 s47, s45, 5
        s_sub_u32 s47, s41, s47                ; ct
        s_mul_i32 s45, s45, {WF_CG}
        s_lshl_b32 s47, s47, 10
        s_add_u32 s45, s45, s47
        s_add_u32 s45, s45, s101
        s_add_u32 s45, s45, {WF_OFF}
        buffer_store_dwordx4 v[{20+4*cc}:{23+4*cc}], v10, s[24:27], s45 offen sc1
        """)
    A(f"""
Lk1_nouf:
    s_barrier                              ; B_8
    s_barrier                              ; B_9
    s_barrier                              ; B_10
    s_waitcnt vmcnt(0)
    s_lshl_b32 s41, s40, 2
    s_add_u32 s41, s41, {FL + LF_HD}
    v_mov_b32 v4, s41
    v_mov_b32 v5, 1
    ds_write_b32 v4, v5
    s_cmp_eq_u32 s32, 11
    s_cbranch_scc0 Lattn_entry
    """)
    lds_spin(A, FL + LF_HD, 1, 4)
    get_tag(A, FL + LF_TAG, "s50")
    publish256(A, 24, F1W_OFF, "s50")
    A("s_branch Lattn_entry")
    A(f"""
Lk1_H0:
    s_setprio {hprio}
    s_cmp_lt_u32 s35, 10
    s_cbranch_scc1 Lk1_noconst
    s_cmp_eq_u32 s35, 15
    s_cbranch_scc1 Lk1_noconst
    s_lshl_b32 s41, s46, 7
    s_add_u32 s42, s41, 19
    s_mul_i32 s42, s42, 3277
    s_lshr_b32 s42, s42, 16                ; h0
    s_add_u32 s43, s41, 127
    s_mul_i32 s43, s43, 3277
    s_lshr_b32 s43, s43, 16                ; h1
    s_min_u32 s43, s43, 31
    v_lshrrev_b32 v11, 5, v2
    v_bfe_u32 v12, v2, 3, 2
    s_lshl_b32 s44, s34, 2
    v_add_u32 v12, s44, v12                ; T
    v_lshrrev_b32 v13, 3, v12
    v_mul_u32_u24 v13, {CH}, v13
    v_and_b32 v12, 7, v12
    v_mul_u32_u24 v12, {VT}, v12
    v_add_u32 v12, v12, v13
    v_bfe_u32 v13, v2, 1, 2
    v_mul_u32_u24 v13, {VH}, v13
    v_add_u32 v12, v12, v13
    v_and_b32 v13, 1, v2
    v_mul_u32_u24 v14, 112, v13
    v_add_u32 v12, v12, v14
    v_add_u32 v12, {KV_OFF + VPART + 128}, v12
    v_cmp_eq_u32 vcc, 0, v13
    v_mov_b32 v14, 0x3f803f80
    s_mov_b32 s45, {HSK}
    v_cndmask_b32 v20, 0, v14, vcc
    v_mov_b32 v21, v20
    v_mov_b32 v22, v20
    v_mov_b32 v23, v20
    """)
    for t in range(4):
        lab = A.label("cv")
        A(f"""
        s_add_u32 s47, s42, {2*t}
        v_add_u32 v15, s47, v11                ; head
        v_cmp_ge_u32 vcc, s43, v15
        v_mul_lo_u32 v15, v15, s45
        v_add_u32 v15, v15, v12
        s_and_saveexec_b64 s[50:51], vcc
        s_cbranch_execz {lab}
        buffer_store_dwordx4 v[20:23], v15, s[24:27], 0 offen sc1
        {lab}:
        s_mov_b64 exec, s[50:51]
        """)
    A(f"""
Lk1_noconst:
    s_and_b32 s41, s2, 7
    s_and_b32 s43, s41, 1                  ; rh
    s_lshr_b32 s44, s41, 1                 ; cq
    s_lshr_b32 s45, s2, 3                  ; i
    v_mov_b32 v13, 0x7ffffff0
    s_lshl_b32 s46, s43, 10
    s_lshl_b32 s47, s45, 5
    s_add_u32 s46, s46, s47
    v_add_u32 v3, s46, v2
    v_mul_u32_u24 v3, 1280, v3
    v_cmp_gt_u32 vcc, 32, v2
    s_nop 1
    v_cndmask_b32 v4, v13, v3, vcc
    v_lshrrev_b32 v3, 3, v2
    s_lshl_b32 s47, s45, 1
    v_add_u32 v3, s47, v3
    v_mul_u32_u24 v3, 3840, v3
    v_and_b32 v5, 7, v2
    v_lshlrev_b32 v5, 7, v5
    s_lshl_b32 s48, s44, 10
    v_add_u32 v5, s48, v5
    v_cmp_gt_u32 vcc, 3840, v5
    v_add_u32 v5, v5, v3
    v_cmp_gt_u32 s[50:51], 16, v2
    s_and_b64 vcc, vcc, s[50:51]
    s_nop 1
    v_cndmask_b32 v5, v13, v5, vcc
    v_cmp_lt_u32 vcc, 5, v2
    v_mov_b32 v6, 0
    v_mov_b32 v7, 1
    v_cndmask_b32 v3, v6, v7, vcc
    v_mul_u32_u24 v6, 6, v3
    v_sub_u32 v6, v2, v6
    v_lshlrev_b32 v6, 7, v6
    v_add_u32 v3, s47, v3
    v_mul_u32_u24 v3, 3072, v3
    v_add_u32 v6, v6, v3
    s_mul_i32 s48, s44, 768
    v_add_u32 v6, s48, v6
    v_cmp_gt_u32 vcc, 12, v2
    s_nop 1
    v_cndmask_b32 v6, v13, v6, vcc
    s_barrier                              ; Bs0
    """)
    def PF(st):
        A(f"s_mov_b32 s46, {st*128}")
        A(f"buffer_load_dword v16, v4, s[16:19], s46 offen")
        A(f"s_mov_b32 s47, {st*64*3840}")
        A(f"buffer_load_dword v17, v5, s[60:63], s47 offen")
        A(f"s_mov_b32 s48, {st*64*3072}")
        A(f"buffer_load_dword v18, v6, s[64:67], s48 offen")
    if pf == 1:
        for st in range(2, 4 + pfa): PF(st)
    A("s_barrier")
    for k in range(10):
        if pf == 1 and 4 + pfa + k <= 9: PF(4 + pfa + k)
        A("s_barrier")
    A("s_waitcnt vmcnt(0)")
    if mprof: wl_stamp(A, 160, 0)
    lds_set(A, FL + LF_HD + 12, 1)
    A("s_branch Lattn_entry")

def gen_k1(prof=False, mode=0, pf=2, rot=1, tlb=1, tl=0, sc=0, cpf=1, wfsc=1, fused=None, mprof=0, rtrig=2, cpf2=0, dbg2=0, hprio=0, pfa=0):
    SC = {0: '', 1: ' sc1', 2: ' nt', 3: ' sc0 sc1'}[sc & 3]
    SCQ = SC if sc & 4 else ''
    SCW = ' sc1' if wfsc else ''
    KN = fused if fused else NAME
    FL = MEGA_FLAG
    if fused:
        SC = SCQ = SCW = ' sc1'
        tlb = 0
    ROT = rot
    A0 = Asm()
    class F:
        def __init__(s): s.inloop = False
        def __call__(s, l):
            for x in l.strip("\n").split("\n"):
                xs = x.strip()
                if s.inloop:
                    if mode == 1 and xs.startswith("buffer_load") : continue
                    if mode == 2 and (xs.startswith("v_mfma") or xs.startswith("ds_read")): continue
                    if mode == 3 and xs.startswith("v_mfma"): continue
                    if mode in (4, 6) and xs.startswith("s_barrier"): continue
                    if mode == 6 and xs.startswith("buffer_load"): continue
                    if mode == 5 and xs.startswith("ds_read"): continue
                    if mode == 7 and (xs.startswith("buffer_load") or xs.startswith("ds_read")): continue
                    if mode == 8 and (xs.startswith("buffer_load") or xs.startswith("ds_read") or xs.startswith("s_barrier")): continue
                    if mode == 10 and (xs.startswith("buffer_load") or xs.startswith("ds_read") or xs.startswith("s_barrier") or xs.startswith("s_add_u32 m0") or xs.startswith("s_add_u32 s48") or xs.startswith("s_nop 0") or xs.startswith("v_add_u32")): continue
                if xs.endswith("_loop:"): s.inloop = True
                if xs.startswith("s_cbranch_scc1") and xs.endswith("g_loop"): s.inloop = False
                A0(x)
        def label(s, b): return A0.label(b)
        def text(s): return A0.text()
    A = F()
    A(khead(KN))
    A(f"""
    s_cmp_ge_u32 s2, 256
    s_cbranch_scc1 Lk1_exit
    """)
    if prof or mprof: prof_start(A)
    if tl: tl_start(A, 0)
    if cpf:
        A(f"""
        s_getpc_b64 s[80:81]
Lk1_pc:
        s_sub_u32 s80, s80, Lk1_pc - {KN}
        s_subb_u32 s81, s81, 0
        s_lshr_b32 s82, s2, 3
        s_mul_i32 s82, s82, (Lcode_end - {KN} + 4095) / 4096
        v_and_b32 v61, 63, v0
        v_add_u32 v61, s82, v61
        v_min_u32 v61, (Lcode_end - {KN} - 4) / 128, v61
        v_lshlrev_b32 v61, 7, v61
        v_lshrrev_b32 v60, 6, v0
        v_and_b32 v59, 63, v0
        v_cmp_gt_u32 vcc, (Lcode_end - {KN} + 4095) / 4096, v59
        v_cmp_eq_u32 s[82:83], 7, v60
        s_and_b64 vcc, vcc, s[82:83]
        s_and_saveexec_b64 s[82:83], vcc
        s_cbranch_execz Lk1_nocpf
        global_load_dword v61, v61, s[80:81]
Lk1_nocpf:
        s_mov_b64 exec, s[82:83]
        """)
    A(f"""
    s_load_dwordx2 s[80:81], s[0:1], 48    ; w2
    s_load_dwordx2 s[82:83], s[0:1], 16    ; wo
    s_load_dwordx4 s[4:7], s[0:1], 0       ; A_x, wqkv
    s_load_dwordx4 s[8:11], s[0:1], 32     ; w1, b1
    s_load_dwordx2 s[12:13], s[0:1], 56    ; gate_w
    s_load_dwordx2 s[14:15], s[0:1], 80    ; ws
    v_lshrrev_b32 v1, 6, v0
    v_and_b32 v2, 63, v0                   ; lane
    s_and_b32 s41, s2, 7                   ; xcd
    v_readfirstlane_b32 s32, v1
    """)
    if fused:
        A("""
        s_nop 3
        s_mov_b32 s85, s32
        s_sub_u32 s42, s32, 4
        s_add_u32 s43, s32, 4
        s_cmp_ge_u32 s32, 8
        s_cselect_b32 s43, s42, s43
        s_cmp_lt_u32 s32, 4
        s_cselect_b32 s32, s32, s43
        """)
    A(f"""
    s_lshr_b32 s42, s2, 3                  ; i
    s_and_b32 s43, s41, 1
    s_lshl_b32 s43, s43, 3
    s_and_b32 s44, s42, 7
    s_add_u32 s34, s43, s44                ; rb
    s_lshr_b32 s43, s41, 1
    s_lshl_b32 s43, s43, 2
    s_lshr_b32 s44, s42, 3
    s_add_u32 s35, s43, s44                ; cgp
    s_mul_i32 s45, s35, 52
    s_lshr_b32 s45, s45, 8                 ; cgp/5
    s_add_u32 s33, s45, 1
    s_mul_i32 s45, s45, 5
    s_sub_u32 s46, s35, s45                ; cbl (0..4)
    s_cmp_eq_u32 s35, 15
    s_cselect_b32 s33, 0, s33
    v_lshrrev_b32 v3, 3, v2
    v_mul_u32_u24 v3, 1280, v3
    v_and_b32 v13, 7, v2
    v_lshrrev_b32 v14, 4, v2               ; lane>>4
    v_xor_b32 v15, v13, v14
    v_lshl_add_u32 v10, v15, 4, v3         ; even u
    v_xor_b32 v15, 4, v15
    v_lshl_add_u32 v11, v15, 4, v3         ; odd u
    s_lshl_b32 s37, s34, 7                 ; rb*128
    s_lshl_b32 s41, s32, 4                 ; w*16 rows
    s_add_u32 s37, s37, s41
    s_mul_i32 s37, s37, 1280
    s_lshl_b32 s42, s32, 11
    s_lshr_b32 s57, s2, 3                  ; i
    s_and_b32 s78, s57, 7
    s_lshr_b32 s57, s57, 3
    s_lshl_b32 s57, s57, 1
    s_add_u32 s78, s78, s57
    s_mul_i32 s78, s78, {1 if ROT else 0}
    s_mov_b32 s56, 0
    s_mov_b32 s69, 0
    s_mov_b32 s58, s37
    s_mov_b32 s79, 0
    """)
    if ROT == 2:
        A("""
        s_cmp_ge_u32 s78, 10
        s_cselect_b32 s57, 10, 0
        s_sub_u32 s78, s78, s57
        s_mov_b32 s79, s78
        s_mov_b32 s69, s78
        s_lshl_b32 s57, s79, 7
        s_add_u32 s37, s58, s57
        """)
    A(f"""
    s_waitcnt lgkmcnt(0)
    """)
    if prof:
        A("s_memtime s[88:89]")
        A("s_waitcnt lgkmcnt(0)")
        A("s_sub_u32 s87, s88, s92")
    srd(A, 16, 4, X_BYTES)
    srd_ws(A, 24, 14, WS_RECORDS)
    srd(A, 60, 6, WQKV_BYTES)
    srd(A, 64, 8, W1_BYTES)
    if not fused:
        A(f"""
        s_cmp_eq_u32 s32, 7
        s_cbranch_scc0 Lk1_noflag
        s_lshl_b32 s41, s2, 2
        s_add_u32 s41, s41, {OFLAG_OFF}
        v_mov_b32 v3, 0
        s_mov_b64 exec, 1
        buffer_store_dword v3, v3, s[24:27], s41 offen
        s_mov_b64 exec, -1
    Lk1_noflag:
        """)
    if tlb:
        A("s_cmp_eq_u32 s32, 0")
        A("s_cbranch_scc0 Lk1_notouch")
        srd(A, 28, 10, B1_BYTES)
        A("v_mov_b32 v3, 0")
        MB2 = 2 << 20
        touch(A, [(16, "s37"), (60, 0), (60, MB2), (64, 0), (28, 0)] + [(24, k*MB2) for k in range(7)] + [(24, G_OFF)], 3, 1)
        A("Lk1_notouch:")
    A(f"""
    s_cmp_ge_u32 s32, 8
    s_cbranch_scc1 Lk1_H
    s_cmp_ge_u32 s32, 4
    s_cbranch_scc1 Lk1_R
    """)

    def adv_group(ws):
        if ROT == 2:
            g = ["s_add_u32 s79, s79, 1", "s_cmp_eq_u32 s79, 10", "s_cselect_b32 s79, 0, s79", "s_lshl_b32 s57, s79, 7", "s_add_u32 s37, s58, s57"]
        else:
            g = ["s_add_u32 s56, s56, 1", "s_add_u32 s57, s56, s78", "s_sub_u32 s57, s57, 2", "s_and_b32 s57, s57, 7", "s_add_u32 s57, s57, 2",
                 "s_cmp_lt_u32 s56, 2", "s_cselect_b32 s79, s56, s57", "s_lshl_b32 s57, s79, 7", "s_add_u32 s37, s58, s57"]
        if ws:
            g += [f"s_mul_i32 s57, s79, {ws}", "s_add_u32 s38, s59, s57"]
        return g

    def x_dma(slot_sgpr):
        g = []
        for j in range(2):
            g.append([f"s_add_u32 m0, {slot_sgpr}, {j*1024}", f"s_add_u32 s48, s37, {j*10240}",
                      f"buffer_load_dwordx4 v{10 + j}, s[16:19], s48 offen lds"])
        return g

    def xfrag_addr(rowbase_expr_sgpr):
        A(f"""
        v_and_b32 v3, 31, v2                   ; token
        v_lshrrev_b32 v13, 5, v2               ; hf
        v_bfe_u32 v14, v2, 1, 3
        v_xor_b32 v14, v13, v14
        v_lshlrev_b32 v14, 4, v14
        v_lshl_add_u32 v14, v3, 7, v14
        v_add_u32 v56, {rowbase_expr_sgpr}, v14
        v_xor_b32 v57, 32, v56
        v_xor_b32 v58, 64, v56
        v_xor_b32 v59, 96, v56
        """)

    def set_slot(nw, sgpr):
        out = [f"v_add_u32 v{4+k}, {sgpr}, v{56+k}" for k in range(4)]
        out += [f"v_add_u32 v{8+k}, {sgpr}, v{60+k}" for k in range(nw)]
        return out

    def interleave(ms, others):
        n = len(ms)
        per = (len(others) + n - 1) // n
        k = 0
        for i, m in enumerate(ms):
            A(m)
            for grp in others[k:k+per]:
                for l in grp: A(l)
            k += per

    def kstep(ms, rd, extra, wait=True, skip_last=False):
        if wait: A("s_waitcnt lgkmcnt(0)")
        n = len(ms) - (1 if skip_last else 0)
        A(ms[0])
        for grp in rd:
            for l in grp: A(l)
        slots = max(1, n - 1)
        per = (len(extra) + slots - 1) // slots if extra else 0
        k = 0
        for i in range(1, n):
            A(ms[i])
            for grp in extra[k:k+per]:
                for l in grp: A(l)
            k += per
        for grp in extra[k:]:
            for l in grp: A(l)

    def loop(tag, nown, reads, mfmas, dma_groups, nw, unit=False):
        A(f"s_waitcnt vmcnt({nown})")
        A("s_barrier")
        if dbg2 and nw == 2: wl_stamp(A, 160, 4)
        if prof:
            A("s_memtime s[90:91]")
            A("s_waitcnt lgkmcnt(0)")
            A("s_sub_u32 s90, s90, s92")
        for l in set_slot(nw, "0"): A(l)
        for l in reads(0, 0): A(l)
        A(f"s_mov_b32 s50, {SLOT}")
        A.inloop = True
        g = dma_groups()
        adv = g[-1]; g = g[:-1]
        parts = [[], [], [], []]
        for i, grp in enumerate(g): parts[i * 4 // len(g)].append(grp)
        R = lambda ks, fs: [[l] for l in reads(ks, fs)]
        rot = [["s_mov_b32 s51, s50", f"s_add_u32 s50, s50, {SLOT}", f"s_cmp_ge_u32 s50, {3*SLOT}", "s_cselect_b32 s50, 0, s50",
                "s_add_u32 s52, s51, s42", "s_add_u32 s53, s51, s43"]]
        A(f"s_add_u32 s52, s42, {2*SLOT}")
        A(f"s_add_u32 s53, s43, {2*SLOT}")
        kstep(mfmas(0), R(1, 1), parts[0] + parts[1])
        kstep(mfmas(1), R(2, 0), parts[2])
        kstep(mfmas(0), R(3, 1), parts[3] + [adv] + [["s_mov_b32 s52, s42", "s_mov_b32 s53, s43", "s_mov_b32 s40, 0"]], skip_last=True)
        def section(dma, vm, final=False, ug=None):
            A(mfmas(0)[-1])
            A(f"s_waitcnt vmcnt({vm}) lgkmcnt(0)")
            A("s_barrier")
            if final:
                for m in mfmas(1): A(m)
                return
            rd = R(0, 0)
            rd[0] = set_slot(nw, "s50") + rd[0]
            P_ = parts if dma else [[], [], [], []]
            kstep(mfmas(1), rd, P_[0], wait=False)
            kstep(mfmas(0), R(1, 1), P_[1] + (ug or []))
            kstep(mfmas(1), R(2, 0), P_[2])
            tail = (P_[3] + [adv] if dma else []) + rot
            if dma: tail = tail + [["s_add_u32 s40, s40, 1", "s_cmp_lt_u32 s40, 7"]]
            kstep(mfmas(0), R(3, 1), tail, skip_last=True)
        A(f"L{tag}_loop:")
        section(True, nown)
        A(f"s_cbranch_scc1 L{tag}_loop")
        ug = []
        if unit:
            for j in range(4):
                ug.append([f"s_add_u32 m0, s76, {j*1024}", f"s_add_u32 s48, s100, {j*8*1280}", f"buffer_load_dwordx4 v62, s[96:99], s48 offen lds"])
            A("s_lshl_b32 s76, s32, 12")
            A("s_add_u32 s76, s76, s51")
        section(False, nown, ug=ug)
        section(False, 4 if unit else 0)
        section(False, 4 if unit else 0, final=True)
        A.inloop = False
        A("s_nop 15")
        if prof:
            A("s_memtime s[88:89]")
            A("s_waitcnt lgkmcnt(0)")
            A("s_sub_u32 s91, s88, s92")

    A(f"""
    s_cmp_eq_u32 s33, 0
    s_cbranch_scc1 Lk1_gate
    """)
    srd(A, 20, 6, WQKV_BYTES)
    A(f"""
    s_mov_b32 s36, 3840
    v_and_b32 v13, 15, v2
    v_lshlrev_b32 v15, 2, v14
    v_xor_b32 v13, v13, v15
    v_mul_u32_u24 v15, 3840, v14
    v_lshl_add_u32 v12, v13, 4, v15
    s_mul_i32 s38, s32, {16*3840}          ; w*16 k-rows
    s_lshl_b32 s41, s35, 8                 ; cgp*128*2
    s_add_u32 s59, s38, s41
    s_mul_i32 s57, s79, {64*3840}
    s_add_u32 s38, s59, s57
    s_lshl_b32 s43, s32, 12
    s_add_u32 s43, s43, {WQO}
    """)
    def p_dma():
        g = x_dma("s52")
        for j in range(4):
            g.append([f"s_add_u32 m0, s53, {j*1024}",
                      (f"s_add_u32 s48, s38, {j*4*3840}"),
                      f"buffer_load_dwordx4 v12, s[20:23], s48 offen lds"])
        g.append(adv_group(64*3840))
        return g
    def stage_issue(st, dmaf):
        A(f"s_add_u32 s52, s42, {st*SLOT}")
        A(f"s_add_u32 s53, s43, {st*SLOT}")
        for grp in dmaf():
            for l in grp: A(l)
    if prof: wl_stamp(A, 63, 0)
    stage_issue(0, p_dma)
    if dbg2: wl_stamp(A, 160, 2)
    if prof: wl_stamp(A, 63, 1)
    A("s_barrier")
    if dbg2: wl_stamp(A, 160, 3)
    if prof: wl_stamp(A, 63, 2)
    LATE_P = True
    A("s_lshr_b32 s41, s32, 1")
    A("s_lshl_b32 s41, s41, 13")
    xfrag_addr("s41")
    A(f"""
    v_bfe_u32 v14, v2, 2, 2                ; r
    v_lshl_add_u32 v15, v13, 3, v14
    v_lshlrev_b32 v15, 8, v15
    v_bfe_u32 v3, v2, 4, 1
    v_lshl_add_u32 v15, v3, 5, v15
    v_and_b32 v3, 3, v2
    v_lshl_add_u32 v15, v3, 3, v15
    v_add_u32 v15, {WQO}, v15
    s_and_b32 s41, s32, 1
    s_lshl_b32 s41, s41, 1
    v_xor_b32 v3, s41, v14                 ; ct ^ r
    v_lshl_add_u32 v60, v3, 6, v15
    v_xor_b32 v3, 1, v3
    v_lshl_add_u32 v61, v3, 6, v15
    """)
    if prof: wl_stamp(A, 63, 3)
    stage_issue(1, p_dma)
    if prof: wl_stamp(A, 63, 4)
    for i in range(64): A(f"v_mov_b32 v{64+i}, 0")
    def p_reads(ks, fs):
        b = 16 + 16*fs
        return [
            f"ds_read_b128 v[{b}:{b+3}], v{4+ks}",
            f"ds_read_b64_tr_b16 v[{b+8}:{b+9}], v8 offset:{ks*4096}",
            f"ds_read_b64_tr_b16 v[{b+10}:{b+11}], v8 offset:{ks*4096 + 1024}",
            f"ds_read_b128 v[{b+4}:{b+7}], v{4+ks} offset:4096",
            f"ds_read_b64_tr_b16 v[{b+12}:{b+13}], v9 offset:{ks*4096}",
            f"ds_read_b64_tr_b16 v[{b+14}:{b+15}], v9 offset:{ks*4096 + 1024}",
        ]
    def p_mfmas(normal):
        def f(fs):
            b = 16 + 16*fs
            out = []
            for rt in range(2):
                for ct in range(2):
                    d = 64 + 16*(2*rt + ct)
                    x = f"v[{b+4*rt}:{b+4*rt+3}]"; w = f"v[{b+8+4*ct}:{b+8+4*ct+3}]"
                    a_, b_ = (x, w) if normal else (w, x)
                    out.append(f"v_mfma_f32_32x32x16_bf16 v[{d}:{d+15}], {a_}, {b_}, v[{d}:{d+15}]")
            return out
        return f
    A(f"""
    s_lshr_b32 s41, s32, 1
    s_lshl_b32 s41, s41, 1
    s_lshl_b32 s44, s34, 2
    s_add_u32 s44, s44, s41                ; T (rt'=0)
    s_cmp_eq_u32 s33, 3
    s_cbranch_scc1 Lk1_mainV
    s_cmp_eq_u32 s33, 1
    s_cbranch_scc0 Lk1_isK
    s_mul_i32 s68, s44, 1280
    s_add_u32 s68, s68, {QF_OFF}
    s_mov_b32 s49, {HSQ}
    s_mov_b32 s70, {f32bits(QSCALE):#x}
    s_branch Lk1_qk
Lk1_isK:
    s_lshr_b32 s68, s44, 3
    s_mul_i32 s68, s68, {CH}
    s_and_b32 s41, s44, 7
    s_mul_i32 s41, s41, 1280
    s_add_u32 s68, s68, s41
    s_add_u32 s68, s68, {KV_OFF}
    s_mov_b32 s49, {HSK}
    s_mov_b32 s70, 1.0
Lk1_qk:
    s_mov_b32 s71, s70
    s_and_b32 s41, s32, 1
    s_lshl_b32 s41, s41, 4
    s_lshl_b32 s55, s46, 5
    s_add_u32 s55, s55, s41                ; G0 base
    v_lshrrev_b32 v13, 5, v2               ; hf
    v_and_b32 v3, 31, v2                   ; token
    v_lshlrev_b32 v14, 4, v3
    v_lshlrev_b32 v15, 3, v3
    v_add_u32 v15, 1024, v15
    """)
    for sl in range(8):
        d = 48 + sl
        A(f"""
        v_add_u32 v16, {2*sl}, v13
        v_add_u32 v16, s55, v16                ; G
        v_mul_u32_u24 v17, 205, v16
        v_lshrrev_b32 v17, 10, v17             ; h = G/5
        v_mul_u32_u24 v18, 5, v17
        v_sub_u32 v18, v16, v18                ; j
        v_mul_lo_u32 v17, v17, s49             ; h*HS
        v_and_b32 v19, 1, v18
        v_lshlrev_b32 v19, 9, v19              ; (j&1)*512
        v_add_u32 v19, v19, v14
        v_cmp_eq_u32 vcc, 4, v18
        v_cmp_gt_u32 s[72:73], 2, v18
        s_nop 0
        v_cndmask_b32 v19, v19, v15, vcc
        """)
        if sl == 0:
            A(f"""
            v_mov_b32 v20, 10
            v_cndmask_b32 v20, v20, 2, vcc
            v_cndmask_b32 v20, v20, 1, s[72:73]
            """)
        else:
            A(f"""
            v_mov_b32 v20, 0
            v_cndmask_b32 v20, v20, 2, vcc
            v_cndmask_b32 v20, v20, {1 if sl < 7 else 2}, s[72:73]
            """)
        A(f"""
        v_add_u32 v19, v19, v17
        v_add_u32 v{d}, v19, v20
        """)
    loop("k1T", 6, p_reads, p_mfmas(False), p_dma, 2)
    if fused: A("s_setprio 3")
    if mprof: wl_stamp(A, 160, 0)
    for rt in range(2):
        for sl in range(8):
            r = 64 + 16*(2*rt + (sl >> 2)) + 4*(sl & 3)
            t = 16 + 16*rt + 2*sl
            A(f"""
            v_pk_mul_f32 v[{r}:{r+1}], v[{r}:{r+1}], s[70:71]
            v_pk_mul_f32 v[{r+2}:{r+3}], v[{r+2}:{r+3}], s[70:71]
            v_cvt_pk_bf16_f32 v{t}, v{r}, v{r+1}
            v_cvt_pk_bf16_f32 v{t+1}, v{r+2}, v{r+3}
            """)
    for sl in range(8):
        lab = A.label("qk")
        A(f"""
        v_and_b32 v56, 3, v{48+sl}
        v_and_b32 v57, -4, v{48+sl}
        """)
        if sl < 7:
            A(f"""
            v_cmp_eq_u32 vcc, 1, v56
            s_nop 1
            s_mov_b64 exec, vcc
            s_cbranch_execz {lab}_a
            buffer_store_dwordx4 v[{16+2*sl}:{19+2*sl}], v57, s[24:27], s68 offen{SCQ}
            buffer_store_dwordx4 v[{32+2*sl}:{35+2*sl}], v57, s[24:27], s68 offen offset:1280{SCQ}
            {lab}_a:
            s_mov_b64 exec, -1
            """)
        A(f"""
        v_cmp_eq_u32 vcc, 2, v56
        s_nop 1
        s_mov_b64 exec, vcc
        s_cbranch_execz {lab}_b
        buffer_store_dwordx2 v[{16+2*sl}:{17+2*sl}], v57, s[24:27], s68 offen{SCQ}
        buffer_store_dwordx2 v[{32+2*sl}:{33+2*sl}], v57, s[24:27], s68 offen offset:1280{SCQ}
        {lab}_b:
        s_mov_b64 exec, -1
        """)
    A("s_branch Lk1_end")
    A("Lk1_mainV:")
    A(f"""
    s_lshr_b32 s68, s44, 3
    s_mul_i32 s68, s68, {CH}
    s_and_b32 s41, s44, 7
    s_mul_i32 s41, s41, {VT}
    s_add_u32 s68, s68, s41
    s_add_u32 s68, s68, {KV_OFF + VPART}
    s_and_b32 s41, s32, 1
    s_lshl_b32 s41, s41, 6
    s_lshl_b32 s55, s46, 7
    s_add_u32 s55, s55, s41
    v_and_b32 v3, 31, v2
    v_lshrrev_b32 v13, 5, v2               ; hf
    v_mul_u32_u24 v14, {VH}, v13
    s_mov_b32 s49, {HSK}
    """)
    for ct in range(2):
        A(f"""
        v_add_u32 v16, {32*ct}, v3
        v_add_u32 v16, s55, v16                ; c
        v_mul_u32_u24 v17, 3277, v16
        v_lshrrev_b32 v17, 16, v17             ; h
        v_mul_u32_u24 v18, 20, v17
        v_sub_u32 v18, v16, v18                ; dh
        v_mul_lo_u32 v17, v17, s49
        v_cmp_eq_u32 s[{72+2*ct}:{73+2*ct}], 0, v18
        """)
        vslot(A, 18, 20, 21)
        A(f"""
        v_lshl_add_u32 v19, v20, 4, v17
        v_add_u32 v{48+ct}, v19, v14
        """)
    loop("k1N", 6, p_reads, p_mfmas(True), p_dma, 2)
    if fused: A("s_setprio 3")
    if mprof: wl_stamp(A, 160, 0)
    for ct in range(2):
        for rt in range(2):
            for j in range(2):
                r = 64 + 16*(2*rt + ct) + 8*j
                t = 32 + 4*(2*rt + j)
                for m in range(4):
                    A(f"v_cvt_pk_bf16_f32 v{t+m}, v{r+2*m}, v{r+2*m+1}")
                A(f"buffer_store_dwordx4 v[{t}:{t+3}], v{48+ct}, s[24:27], s68 offen offset:{rt*VT + j*2*VH}{SC}")
    A("s_branch Lk1_end")

    A("Lk1_gate:")
    srd(A, 28, 12, GW_BYTES)
    A(f"""
    s_mul_i32 s41, s32, 320
    s_add_u32 m0, s41, {GATE_LDS}
    v_lshlrev_b32 v12, 4, v2
    v_cmp_gt_u32 vcc, 20, v2
    s_and_saveexec_b64 s[76:77], vcc
    buffer_load_dwordx4 v12, s[28:31], s41 offen lds
    s_mov_b64 exec, s[76:77]
    """)
    def g_dma():
        g = x_dma("s52")
        g.append(adv_group(0))
        return g
    for st in range(2):
        A(f"s_add_u32 s52, s42, {st*SLOT}")
        for grp in g_dma():
            for l in grp: A(l)
        if st == 0: A("s_barrier")
    A("s_lshl_b32 s41, s32, 12")
    xfrag_addr("s41")
    A(f"""
    v_lshlrev_b32 v9, 4, v13               ; hf*16
    v_add_u32 v62, {GATE_LDS}, v9
    s_lshl_b32 s57, s69, 7
    v_add_u32 v9, s57, v62
    v_mov_b32 v60, 0
    s_mov_b32 s43, 0
    """)
    for i in range(16): A(f"v_mov_b32 v{64+i}, 0")
    def g_reads(ks, fs):
        b = 16 + 16*fs
        out = [f"ds_read_b128 v[{b}:{b+3}], v{4+ks}", f"ds_read_b128 v[{b+4}:{b+7}], v9 offset:{ks*32}"]
        if ks == 3:
            if ROT == 2:
                out += ["s_add_u32 s69, s69, 1", "s_cmp_eq_u32 s69, 10", "s_cselect_b32 s69, 0, s69", "s_lshl_b32 s57, s69, 7", "v_add_u32 v9, s57, v62"]
            else:
                out += ["s_add_u32 s69, s69, 1", "s_add_u32 s57, s69, s78", "s_sub_u32 s57, s57, 2", "s_and_b32 s57, s57, 7", "s_add_u32 s57, s57, 2",
                        "s_cmp_lt_u32 s69, 2", "s_cselect_b32 s57, s69, s57", "s_lshl_b32 s57, s57, 7", "v_add_u32 v9, s57, v62"]
        return out
    def g_mfmas(fs):
        b = 16 + 16*fs
        return [f"v_mfma_f32_32x32x16_bf16 v[64:79], v[{b+4}:{b+7}], v[{b}:{b+3}], v[64:79]"]
    A(f"s_waitcnt vmcnt(2)")
    A("s_barrier")
    A(f"s_add_u32 s52, s42, {2*SLOT}")
    for grp in g_dma():
        for l in grp: A(l)
    if prof:
        A("s_mov_b32 s90, 0")
    for l in set_slot(0, "0"): A(l)
    for l in g_reads(0, 0): A(l)
    A("s_mov_b32 s40, 0")
    A(f"s_mov_b32 s50, {SLOT}")
    A("s_mov_b32 s51, 0")
    A("Lk1g_loop:")
    for ks in range(3):
        fs = ks & 1
        for l in g_reads(ks + 1, fs ^ 1): A(l)
        A("s_waitcnt lgkmcnt(2)")
        for l in g_mfmas(fs): A(l)
    A(f"""
    s_cmp_lt_u32 s40, 8
    s_cbranch_scc1 Lk1g_a
    s_waitcnt vmcnt(0)
Lk1g_a:
    s_waitcnt vmcnt(2) lgkmcnt(0)
    s_barrier
    """)
    for l in set_slot(0, "s50"): A(l)
    for l in g_mfmas(1): A(l)
    for l in g_reads(0, 0): A(l)
    A(f"""
    s_cmp_lt_u32 s40, 7
    s_cbranch_scc0 Lk1g_b
    s_add_u32 s52, s51, s42
    """)
    for grp in g_dma():
        for l in grp: A(l)
    A(f"""
Lk1g_b:
    s_mov_b32 s51, s50
    s_add_u32 s50, s50, {SLOT}
    s_cmp_ge_u32 s50, {3*SLOT}
    s_cselect_b32 s50, 0, s50
    s_add_u32 s40, s40, 1
    s_cmp_lt_u32 s40, 10
    s_cbranch_scc1 Lk1g_loop
    s_waitcnt lgkmcnt(0)
    s_nop 15
    v_mul_f32 v16, {f32bits(-LOG2E):#x}, v64
    v_exp_f32 v16, v16
    s_nop 0
    v_add_f32 v16, 1.0, v16
    v_rcp_f32 v16, v16
    s_lshl_b32 s44, s34, 2
    s_add_u32 s44, s44, s32                ; T
    s_lshl_b32 s44, s44, 7                 ; *32*4 bytes
    s_add_u32 s44, s44, {G_OFF}
    v_lshlrev_b32 v17, 2, v2
    v_cmp_gt_u32 vcc, 32, v2
    s_and_saveexec_b64 s[76:77], vcc
    buffer_store_dword v16, v17, s[24:27], s44 offen{SC}
    s_mov_b64 exec, s[76:77]
    s_branch Lk1_end
    """)

    A("Lk1_R:")
    if prof:
        A("v_writelane_b32 v61, s87, 8")
        wl_stamp(A, 61, 9)
    srd(A, 20, 8, W1_BYTES)
    srd(A, 28, 10, B1_BYTES)
    A(f"""
    s_sub_u32 s47, s32, 4
    s_mul_i32 s41, s35, 192
    v_lshrrev_b32 v3, 5, v2
    v_lshlrev_b32 v3, 4, v3
    """)
    if prof: wl_stamp(A, 61, 12)
    A(f"""
    buffer_load_dwordx4 v[112:115], v3, s[28:31], s41 offen
    """)
    if prof: wl_stamp(A, 61, 13)
    A(f"""
    buffer_load_dwordx4 v[116:119], v3, s[28:31], s41 offen offset:32
    buffer_load_dwordx4 v[120:123], v3, s[28:31], s41 offen offset:64
    buffer_load_dwordx4 v[124:127], v3, s[28:31], s41 offen offset:96
    buffer_load_dwordx4 v[48:51], v3, s[28:31], s41 offen offset:128
    buffer_load_dwordx4 v[52:55], v3, s[28:31], s41 offen offset:160
    """)
    if prof: wl_stamp(A, 61, 14)
    for j, reg in enumerate((12, 62, 63)):
        A(f"""
        s_mul_i32 s41, s47, 192
        s_add_u32 s41, s41, {64*j}
        v_add_u32 v13, s41, v2                 ; t
        v_mul_u32_u24 v14, 5462, v13
        v_lshrrev_b32 v14, 16, v14             ; t/12
        v_mul_u32_u24 v15, 12, v14
        v_sub_u32 v15, v13, v15
        v_mul_u32_u24 v14, 3072, v14
        v_lshl_add_u32 v{reg}, v15, 4, v14
        """)
    A(f"""
    s_mul_i32 s59, s35, 192
    s_mul_i32 s57, s79, {64*3072}
    s_add_u32 s38, s59, s57
    s_mul_i32 s43, s47, 3072
    s_add_u32 s43, s43, {W1O}
    """)
    def r_dma():
        g = x_dma("s52")
        for j, reg in enumerate((12, 62, 63)):
            g.append([f"s_add_u32 m0, s53, {j*1024}", "s_nop 0",
                      f"buffer_load_dwordx4 v{reg}, s[20:23], s38 offen lds"])
        g.append(adv_group(64*3072))
        return g
    def r_stage(st):
        A(f"s_add_u32 s52, s42, {st*SLOT}")
        A(f"s_add_u32 s53, s43, {st*SLOT}")
        for grp in r_dma():
            for l in grp: A(l)
    if prof: wl_stamp(A, 61, 0)
    r_stage(0)
    if prof: wl_stamp(A, 61, 1)
    A("s_barrier")
    A("s_lshl_b32 s41, s47, 12")
    xfrag_addr("s41")
    A(f"""
    v_bfe_u32 v14, v2, 2, 2
    v_lshl_add_u32 v15, v13, 3, v14
    v_mul_u32_u24 v15, 192, v15
    v_bfe_u32 v3, v2, 4, 1
    v_lshl_add_u32 v15, v3, 5, v15
    v_and_b32 v3, 3, v2
    v_lshrrev_b32 v1, 1, v3
    v_and_b32 v3, 1, v3
    v_lshl_or_b32 v3, v3, 1, v1
    v_lshl_add_u32 v15, v3, 3, v15
    v_add_u32 v60, {W1O}, v15
    """)
    if prof: wl_stamp(A, 61, 2)
    r_stage(1)
    if prof: wl_stamp(A, 61, 3)
    A("s_waitcnt vmcnt(10)")
    if prof:
        wl_stamp(A, 61, 4)
    bsrc = [112, 116, 120, 124, 48, 52]
    for ct in range(3):
        for half in range(2):
            for m in range(4):
                src = bsrc[2*ct + half] + m
                d = 64 + 16*ct + 8*half + 2*m
                A(f"v_lshlrev_b32 v{d}, 16, v{src}")
                A(f"v_and_b32 v{d+1}, 0xffff0000, v{src}")
    def r_reads(ks, fs):
        b = 16 + 16*fs
        out = [f"ds_read_b128 v[{b}:{b+3}], v{4+ks}"]
        for ct in range(3):
            out.append(f"ds_read_b64_tr_b16 v[{b+4+4*ct}:{b+5+4*ct}], v8 offset:{ks*16*192 + ct*64}")
            out.append(f"ds_read_b64_tr_b16 v[{b+6+4*ct}:{b+7+4*ct}], v8 offset:{ks*16*192 + 4*192 + ct*64}")
        return out
    def r_mfmas(fs):
        b = 16 + 16*fs
        return [f"v_mfma_f32_32x32x16_bf16 v[{64+16*ct}:{64+16*ct+15}], v[{b+4+4*ct}:{b+7+4*ct}], v[{b}:{b+3}], v[{64+16*ct}:{64+16*ct+15}]" for ct in range(3)]
    loop("k1R", 5, r_reads, r_mfmas, r_dma, 1)
    if not fused: A("s_setprio 2")
    A(f"""
    s_lshl_b32 s44, s34, 2
    s_add_u32 s44, s44, s47                ; T
    s_mul_i32 s45, s44, {2*48*1024}
    s_mul_i32 s41, s35, {3*1024}
    s_add_u32 s45, s45, s41
    s_add_u32 s45, s45, {ACT_OFF}
    v_bfe_u32 v13, v2, 4, 1                ; token>>4
    v_mul_u32_u24 v13, {48*1024}, v13
    v_lshrrev_b32 v14, 5, v2               ; hf
    v_lshl_add_u32 v13, v14, 8, v13
    v_and_b32 v14, 15, v2
    v_lshl_add_u32 v13, v14, 4, v13
    s_mov_b32 s54, {f32bits(LOG2E):#x}
    s_mov_b32 s55, s54
    v_mov_b32 v2, 2.0
    v_mov_b32 v3, 2.0
    """)
    def mish8(r, t0):
        for p in range(4):
            A(f"v_pk_mul_f32 v[{t0+2*p}:{t0+2*p+1}], v[{r+2*p}:{r+2*p+1}], s[54:55]")
        for i in range(8):
            A(f"v_exp_f32 v{t0+i}, v{t0+i}")
        for p in range(4):
            A(f"v_pk_add_f32 v[{t0+8+2*p}:{t0+8+2*p+1}], v[{t0+2*p}:{t0+2*p+1}], v[2:3]")
        for p in range(4):
            A(f"v_pk_fma_f32 v[{t0+2*p}:{t0+2*p+1}], v[{t0+2*p}:{t0+2*p+1}], v[{t0+8+2*p}:{t0+8+2*p+1}], v[2:3]")
        for i in range(8):
            A(f"v_rcp_f32 v{t0+i}, v{t0+i}")
        A("s_nop 0")
        for p in range(4):
            A(f"v_pk_fma_f32 v[{t0+2*p}:{t0+2*p+1}], v[{t0+2*p}:{t0+2*p+1}], -2.0, 1.0 op_sel_hi:[1,0,0]")
        for p in range(4):
            A(f"v_pk_mul_f32 v[{r+2*p}:{r+2*p+1}], v[{r+2*p}:{r+2*p+1}], v[{t0+2*p}:{t0+2*p+1}]")
    k = 0
    for ct in range(3):
        for j in range(2):
            r = 64 + 16*ct + 8*j
            mish8(r, 16)
            t = 32 + 4*k; k += 1
            for m in range(4):
                A(f"v_cvt_pk_bf16_f32 v{t+m}, v{r+2*m}, v{r+2*m+1}")
            if not fused:
                A(f"buffer_store_dwordx4 v[{t}:{t+3}], v13, s[24:27], s45 offen offset:{ct*1024 + j*512}{SC}")
    if fused:
        if rtrig == 2: lds_spin(A, FL + LF_FULL, 1, 8, tmp=(16, 17), sleep=4)
        elif rtrig == 1: lds_spin(A, FL + LF_GO, 1, 1, tmp=(16, 17), sleep=4)
        else: lds_spin(A, FL + LF_PD, 1, 4, tmp=(16, 17), sleep=4)
        k = 0
        for ct in range(3):
            for j in range(2):
                t = 32 + 4*k; k += 1
                A(f"buffer_store_dwordx4 v[{t}:{t+3}], v13, s[24:27], s45 offen offset:{ct*1024 + j*512}{SC}")
    A("s_branch Lk1_endR" if fused else "s_branch Lk1_end")
    A("Lk1_H:")
    gen_helpers(A, FL, pf, mprof, hprio, pfa)
    if fused:
        A("Lk1_endR:")
        A("s_waitcnt vmcnt(0)")
        A(f"s_sub_u32 s41, s32, 4")
        A("s_lshl_b32 s41, s41, 2")
        A(f"s_add_u32 s41, s41, {FL + LF_RD}")
        A("v_mov_b32 v4, s41")
        A("v_mov_b32 v5, 1")
        A("ds_write_b32 v4, v5")
        A("s_branch Lshadow_entry")
        A("Lk1_end:")
        if mprof: wl_stamp(A, 160, 1)
        A("s_waitcnt vmcnt(0)")
        if mprof and not dbg2: wl_stamp(A, 160, 2)
        A("s_lshl_b32 s41, s32, 2")
        A(f"s_add_u32 s41, s41, {FL + LF_PD}")
        A("v_mov_b32 v4, s41")
        A("v_mov_b32 v5, 1")
        A("ds_write_b32 v4, v5")
        A("s_branch Lattn_entry")
        A("Lk1_exit:")
        A("s_endpgm")
        return A.text()
    A("Lk1_end:")
    if prof:
        A("s_memtime s[88:89]")
        A("s_waitcnt lgkmcnt(0)")
        A("s_sub_u32 s88, s88, s92")
        A("s_cmp_ge_u32 s32, 4")
        A("s_cbranch_scc1 Lk1_dbgR")
        A("v_mov_b32 v61, v63")
        A("Lk1_dbgR:")
        A("v_writelane_b32 v61, s88, 11")
        A("v_writelane_b32 v61, s91, 10")
        A(f"""
        s_lshl_b32 s97, s2, 4
        s_add_u32 s97, s97, s32
        s_lshl_b32 s97, s97, 6
        s_add_u32 s97, s97, {DBG_OFF + 0x100000}
        v_and_b32 v4, 63, v0
        v_lshlrev_b32 v4, 2, v4
        v_cmp_gt_u32 vcc, 16, v0
        v_and_b32 v5, 63, v0
        v_cmp_gt_u32 vcc, 16, v5
        s_and_saveexec_b64 s[56:57], vcc
        buffer_store_dword v61, v4, s[24:27], s97 offen
        s_mov_b64 exec, s[56:57]
        """)
        prof_end(A, 0, 24, 32, tmpv=(4, 5, 6, 7, 8), extra="s90")
    if tl: tl2_record(A, 0, 24, 32)
    A("Lk1_exit:")
    A("s_endpgm")
    return A.text(), kdesc(NAME, 128), f"; @launch kernel={NAME} grid=(256,1,1) block=(576,1,1) lds={LDS_BYTES}"
```

```python
from asm import *
from common import *
from k2_shadow import gen_shadow

NAME = "k2_kernel"
SLOT = 24576
SH_BASE = 3 * SLOT
FLAG = SH_BASE + 4 * 20480
LDS_BYTES = FLAG + 256

X_ = [16, 48]
P_ = 80
O_ = 88
C_ = 104
QM = 120
QT = 124
KF = [126, 130]
KT = 134
V0 = 136
V1 = 140
FL = 144

def mf(d, a, b, c):
    cs = "0" if c is None else f"v[{c}:{c+15}]"
    return f"v_mfma_f32_32x32x16_bf16 v[{d}:{d+15}], v[{a}:{a+3}], v[{b}:{b+3}], {cs}"
def mf2b(d, a, b, c):
    cs = "0" if c is None else f"v[{c}:{c+31}]"
    return f"v_mfma_f32_32x32x4_2b_bf16 v[{d}:{d+31}], v[{a}:{a+1}], v[{b}:{b+1}], {cs}"

def vslot(A, row, dst, t1):
    A(f"""
    v_mov_b32 v{dst}, v{row}
    v_add_u32 v{t1}, 12, v{row}
    v_cmp_lt_u32 vcc, 3, v{row}
    s_nop 1
    v_cndmask_b32 v{dst}, v{dst}, v{t1}, vcc
    v_subrev_u32 v{t1}, 1, v{row}
    v_cmp_lt_u32 vcc, 9, v{row}
    s_nop 1
    v_cndmask_b32 v{dst}, v{dst}, v{t1}, vcc
    v_subrev_u32 v{t1}, 8, v{row}
    v_cmp_lt_u32 vcc, 11, v{row}
    s_nop 1
    v_cndmask_b32 v{dst}, v{dst}, v{t1}, vcc
    v_subrev_u32 v{t1}, 5, v{row}
    v_cmp_lt_u32 vcc, 15, v{row}
    s_nop 1
    v_cndmask_b32 v{dst}, v{dst}, v{t1}, vcc
    v_cmp_lt_u32 vcc, 19, v{row}
    s_nop 1
    v_cndmask_b32 v{dst}, v{dst}, 8, vcc
    v_cmp_lt_u32 vcc, 20, v{row}
    s_nop 1
    v_cndmask_b32 v{dst}, v{dst}, 15, vcc
    """)

def gen_k2(prof=False, exp_mode=0, shadow=True, shprio=0, pa=1, pb=2, tl=0, nofb=0, lstamp=0, desc=3, na=10, fused=False, mprof=0, dbg2=0, oft=0, outf=0):
    A = Asm(10000)
    if not fused:
        A(khead(NAME))
        A(f"""
        s_cmp_ge_u32 s2, 256
        s_cbranch_scc1 Lk2_end
        """)
        if prof: prof_start(A)
        if tl: tl_start(A, 1)
    def ids():
        A(f"""
        s_load_dwordx2 s[4:5], s[0:1], 80
        v_lshrrev_b32 v9, 6, v0
        v_and_b32 v1, 63, v0                   ; lane
        s_and_b32 s20, s2, 7
        v_readfirstlane_b32 s12, v9            ; wave
        s_lshr_b32 s21, s2, 3
        s_and_b32 s22, s21, 3
        s_lshl_b32 s13, s20, 2
        s_add_u32 s13, s13, s22                ; h
        s_lshr_b32 s14, s21, 2                 ; qb
        s_lshl_b32 s15, s14, 3
        s_add_u32 s15, s15, s12                ; T
        """)
    if fused:
        A("Lshadow_entry:")
        ids()
        A("s_branch Lk2_shadow")
        A("Lattn_entry:")
        A("s_setprio 0")
        ids()
    else:
        ids()
        A("s_cmp_ge_u32 s12, 8")
        A("s_cbranch_scc1 Lk2_shadow")
    A(f"""
    s_mul_i32 s16, s13, {HSK}
    s_add_u32 s16, s16, {KV_OFF}
    s_mul_i32 s23, s13, {HSQ}
    s_mul_i32 s24, s15, 1280
    s_add_u32 s23, s23, s24
    s_add_u32 s23, s23, {QF_OFF}
    v_lshlrev_b32 v8, 4, v1                ; lane*16
    v_and_b32 v9, 31, v1
    v_lshrrev_b32 v10, 5, v1               ; hf
    v_lshlrev_b32 v11, 3, v9
    v_add_u32 v11, 1024, v11               ; 1024 + token*8
    s_mul_i32 s25, s12, 3072
    s_add_u32 s17, s16, s25
    s_waitcnt lgkmcnt(0)
    """)
    srd_ws(A, 8, 4, WS_RECORDS)
    def dma_groups(slot_sgpr, slot_imm=0):
        g = []
        for j in range(3):
            m0 = f"s_add_u32 m0, {slot_sgpr}, {slot_imm + j*1024}"
            g.append([m0, f"s_add_u32 s26, s17, {j*1024}", f"buffer_load_dwordx4 v8, s[8:11], s26 offen lds"])
        g.append([f"s_add_u32 s17, s17, {CH}"])
        return g
    def first_loads():
        for grp in dma_groups("s25", 0):
            for l in grp: A(l)
        A(f"""
        buffer_load_dwordx4 v[{QM}:{QM+3}], v8, s[8:11], s23 offen
        buffer_load_dwordx2 v[{QT}:{QT+1}], v11, s[8:11], s23 offen
        """)
        if not fused:
            for grp in dma_groups("s25", SLOT):
                for l in grp: A(l)
    if not fused: first_loads()
    A(f"""
    v_cmp_gt_u32 s[28:29], 32, v1          ; lanes < 32
    v_mov_b32 v5, v8
    v_mul_u32_u24 v6, 1280, v10
    v_add_u32 v6, v6, v11
    """)
    vslot(A, 9, 14, 15)
    A(f"""
    v_mul_u32_u24 v7, {VH}, v10
    v_lshl_add_u32 v7, v14, 4, v7
    v_add_u32 v7, {VPART}, v7
    v_mov_b32 v2, v5
    v_mov_b32 v3, v6
    v_mov_b32 v4, v7
    """)
    if not fused:
        A(f"""
        v_lshlrev_b32 v12, 2, v1
        v_add_u32 v12, {FLAG}, v12
        v_mov_b32 v13, 0
        s_cmp_eq_u32 s12, 0
        s_cbranch_scc0 Lk2_noclr
        s_mov_b64 exec, s[28:29]
        ds_write_b32 v12, v13
        s_mov_b64 exec, -1
Lk2_noclr:
        """)
    A(f"""
    v_and_b32 v12, 7, v1
    v_lshlrev_b32 v12, 2, v12
    v_add_u32 v12, {FLAG}, v12             ; v12: full[lane&7] ; +32: free[lane&7]
    s_lshl_b32 s33, s12, 2
    s_add_u32 s33, s33, {FLAG}
    v_mov_b32 v13, s33                     ; v13: own full word ; +32 own free word
    """)
    for i in range(4): A(f"v_mov_b32 v{V1+i}, 0")
    for i in range(4): A(f"v_mov_b32 v{P_+4+i}, 0")
    for i in range(16): A(f"v_mov_b32 v{O_+i}, 0")
    X0 = X_[0]
    if fused:
        if oft:
            A(f"""
            s_cmp_eq_u32 s12, 6
            s_cbranch_scc0 Lattn_nooft
            v_lshrrev_b32 v146, 2, v1
            s_lshl_b32 s20, s14, 4
            v_add_u32 v146, s20, v146              ; T16
            v_mul_u32_u24 v146, 20480, v146
            v_and_b32 v147, 1, v1
            v_lshl_add_u32 v146, v147, 7, v146     ; + line*128
            v_bfe_u32 v147, v1, 1, 1
            s_mul_i32 s20, s13, 5
            """)
            for m in range(3):
                A(f"""
                v_add_u32 v148, {2*m}, v147
                v_min_u32 v148, 4, v148
                v_add_u32 v148, s20, v148              ; G
                v_lshrrev_b32 v149, 3, v148
                v_lshlrev_b32 v149, 10, v149
                v_bfe_u32 v148, v148, 1, 2
                v_lshl_add_u32 v149, v148, 8, v149
                v_add_u32 v149, v149, v146
                s_mov_b32 s21, {OF_OFF}
                buffer_load_dword v150, v149, s[8:11], s21 offen sc1
                """)
            A("Lattn_nooft:")
        A("s_cmp_eq_u32 s12, 5")
        A("s_cbranch_scc0 Lattn_nopub")
        lds_spin(A, FLAG + LF_HD + 12, 1, 1, tmp=(146, 147), sleep=0)
        lds_spin(A, FLAG + LF_PD, 1, 4, tmp=(146, 147), sleep=0)
        get_tag(A, FLAG + LF_TAG, "s35", tmp=(146, 147))
        A(f"""
        s_and_b32 s20, s2, 7
        s_lshr_b32 s21, s2, 3
        s_and_b32 s22, s20, 1
        s_lshl_b32 s22, s22, 3
        s_and_b32 s24, s21, 7
        s_add_u32 s22, s22, s24                ; rb
        s_lshr_b32 s20, s20, 1
        s_lshl_b32 s20, s20, 2
        s_lshr_b32 s21, s21, 3
        s_add_u32 s20, s20, s21                ; cgp
        s_mul_i32 s20, s20, {FROW}
        s_lshl_b32 s22, s22, 2
        s_add_u32 s20, s20, s22
        s_add_u32 s20, s20, {F1A_OFF}
        v_mul_u32_u24 v146, {FREP}, v1
        v_mov_b32 v147, s35
        s_mov_b64 exec, 0xf
        buffer_store_dword v147, v146, s[8:11], s20 offen sc1
        s_mov_b64 exec, -1
        """)
        if mprof == 1:
            wl_stamp(A, 160, 8)
            A("s_waitcnt vmcnt(0)")
            wl_stamp(A, 160, 9)
        A("Lattn_nopub:")
        A("s_cmp_eq_u32 s12, 4")
        A("s_cbranch_scc0 Lattn_wgo")
        get_tag(A, FLAG + LF_TAG, "s35", tmp=(146, 147))
        lds_spin(A, FLAG + LF_PD, 1, 4, tmp=(146, 147), sleep=1)
        if mprof: wl_stamp(A, 160, 1)
        A(f"""
        s_mul_i32 s20, s13, 20
        s_add_u32 s21, s20, 19
        s_lshr_b32 s20, s20, 7
        s_lshr_b32 s21, s21, 7
        v_and_b32 v146, 15, v1
        v_lshlrev_b32 v146, 2, v146
        v_bfe_u32 v147, v1, 4, 1
        v_mov_b32 v148, s20
        v_mov_b32 v149, s21
        v_cmp_eq_u32 vcc, 1, v147
        s_nop 1
        v_cndmask_b32 v148, v148, v149, vcc    ; cb
        v_lshrrev_b32 v147, 5, v1              ; 0: K, 1: V
        v_mul_u32_u24 v147, 5, v147
        v_add_u32 v147, 5, v147
        v_add_u32 v147, v147, v148
        v_mul_u32_u24 v147, {FROW}, v147
        v_add_u32 v147, v147, v146
        v_mul_u32_u24 v148, {FROW}, v148
        v_add_u32 v148, v148, v146
        v_bfe_u32 v149, v1, 1, 3
        v_cmp_eq_u32 s[36:37], s14, v149
        v_cmp_gt_u32 vcc, 32, v1
        s_and_b64 s[36:37], s[36:37], vcc
        s_lshr_b32 s20, s2, 3
        s_and_b32 s20, s20, 3
        s_mul_i32 s20, s20, {FREP}
        s_add_u32 s20, s20, {F1A_OFF}
        s_mov_b32 s34, 0x40000
Lattn_poll:
        buffer_load_dword v150, v147, s[8:11], s20 offen sc1
        buffer_load_dword v151, v148, s[8:11], s20 offen sc1
        s_waitcnt vmcnt(0)
        """)
        if mprof == 1:
            A("s_cmp_eq_u32 s34, 0x40000")
            A("s_cbranch_scc0 Lattn_np")
            wl_stamp(A, 160, 8)
            A("Lattn_np:")
        A(f"""
        v_cmp_eq_u32 vcc, s35, v150
        v_cmp_eq_u32 s[38:39], s35, v151
        s_orn2_b64 s[38:39], s[38:39], s[36:37]
        s_and_b64 vcc, vcc, s[38:39]
        s_cmp_eq_u64 vcc, exec
        s_cbranch_scc1 Lattn_polled
        s_sleep 2
        s_sub_u32 s34, s34, 1
        s_cbranch_scc0 Lattn_poll
Lattn_polled:
        """)
        if mprof: wl_stamp(A, 160, 2)
        if mprof == 1:
            A("s_sub_u32 s34, 0x40000, s34")
            A("v_writelane_b32 v160, s34, 9")
        lds_set(A, FLAG + LF_GO, 1, tmp=(146, 147))
        A("s_branch Lattn_go")
        A("Lattn_wgo:")
        lds_spin(A, FLAG + LF_GO, 1, 1, tmp=(146, 147), sleep=1)
        A("Lattn_go:")
        if mprof and not dbg2: wl_stamp(A, 160, 3)
        first_loads()
    A(f"""
    s_waitcnt vmcnt({0 if fused else 3}) lgkmcnt(0)
    """)
    if fused:
        for grp in dma_groups("s25", SLOT):
            for l in grp: A(l)
        A(f"v_mov_b32 v{FL}, 1")
        A(f"ds_write_b32 v13, v{FL}")
        lds_spin(A, FLAG + LF_FULL, 1, 8, tmp=(FL, FL + 1), sleep=0, cnt="s34")
        if mprof and not dbg2: wl_stamp(A, 160, 4)
    else:
        A("s_barrier")
    A(f"""
    ds_read_b128 v[{KF[0]}:{KF[0]+3}], v2
    ds_read_b128 v[{KF[1]}:{KF[1]+3}], v2 offset:1280
    ds_read_b64 v[{KT}:{KT+1}], v3
    ds_read_b128 v[{V0}:{V0+3}], v4
    s_waitcnt lgkmcnt(0)
    {mf(X0, KF[0], QM, None)}
    {mf(X0+16, KF[1], QM, None)}
    s_nop 11
    {mf2b(X0, KT, QT, X0)}
    s_nop 15
    s_nop 7
    """)
    A(f"v_max3_f32 v9, v{X0}, v{X0+1}, v{X0+2}")
    for i in range(3, 31, 2):
        A(f"v_max3_f32 v9, v9, v{X0+i}, v{X0+i+1}")
    A(f"v_max_f32 v9, v9, v{X0+31}")
    A(f"""
    v_mov_b32 v10, v9
    s_nop 1
    v_permlane32_swap_b32 v9, v10
    s_nop 1
    v_max_f32 v9, v9, v10
    """)
    for i in range(16): A(f"v_sub_f32 v{C_+i}, 0, v9")
    for i in range(32): A(f"v_sub_f32 v{X0+i}, v{X0+i}, v9")
    A(f"""
    ds_read_b128 v[{KF[0]}:{KF[0]+3}], v2 offset:{2*1280}
    ds_read_b128 v[{KF[1]}:{KF[1]+3}], v2 offset:{3*1280}
    ds_read_b64 v[{KT}:{KT+1}], v3 offset:{2*1280}
    s_mov_b32 s18, 0
    s_mov_b32 s19, {SLOT}
    s_mov_b32 s27, {2*SLOT}
    s_setprio {pa}
    s_cmp_ge_u32 s12, 4
    s_cbranch_scc0 Lk2_noprio
    s_setprio {pb}
Lk2_noprio:
    """)
    if prof:
        A("s_memtime s[90:91]")
        A("s_waitcnt lgkmcnt(0)")
        A("s_sub_u32 s90, s90, s92")
    A0 = A
    class F:
        def __call__(self, l):
            for x in l.strip("\n").split("\n"):
                ls = x.strip()
                if exp_mode == 2 and ls.startswith("v_mfma"): continue
                if exp_mode == 3 and (ls.startswith("v_exp") or ls.startswith("v_cvt")): continue
                if exp_mode == 4 and (ls.startswith("ds_read_b128") or ls.startswith("ds_read_b64")): continue
                if exp_mode == 5 and ls.startswith("v_mfma_f32_32x32x4"): continue
                if exp_mode == 6 and (ls.startswith("ds_read_b128") or ls.startswith("ds_read_b64") or ls.startswith("v_mfma")): continue
                if exp_mode == 7 and ls.startswith("buffer_load"): continue
                A0(x)
        def label(self, b): return A0.label(b)
    if lstamp: wl_stamp(A, 150, 0)
    if mprof: wl_stamp(A, 160, 5)
    A("Lk2_loop:")
    A = F()
    def check(reg, need_sgpr, tag):
        lab = A.label(tag)
        off = 32 if tag == "free" else 0
        A(f"""
        v_cmp_le_u32 vcc, {need_sgpr}, v{reg}
        s_cmp_eq_u64 vcc, exec
        s_cbranch_scc1 {lab}
        s_mov_b32 s34, 0x40000
        {lab}_s:
        s_sub_u32 s34, s34, 1
        s_cbranch_scc1 {lab}
        s_sleep 1
        ds_read_b32 v{reg}, v12 offset:{off}
        s_waitcnt lgkmcnt(0)
        v_cmp_le_u32 vcc, {need_sgpr}, v{reg}
        s_cmp_eq_u64 vcc, exec
        s_cbranch_scc0 {lab}_s
        {lab}:
        """)
    def tile(sc, first, pr, t):
        sn = X_[(pr + 1) & 1]
        kt = (2*pr + 4) & 7
        E = lambda i: f"v_exp_f32 v{sc+i}, v{sc+i}"
        C = lambda p, a: f"v_cvt_pk_bf16_f32 v{P_+p}, v{sc+a}, v{sc+a+1}"
        pre = []
        if desc == 1 and t % 2 == 0: A(f"s_setprio {3 - t // 2}")
        if desc == 2 and t % 2 == 0: A(f"s_setprio {max(1, 3 - t // 2) if t < 6 else 1}")
        if desc == 3: A(f"s_setprio {3 - (t % 4)}")
        if desc in (4, 5): A(f"s_setprio {3 - 2*(t % 2)}")
        if desc == 6: A(f"s_setprio {[3,3,2,2,1,1,0,0][t]}") if t % 2 == 0 else None
        if desc == 7: A(f"s_setprio {[3,2,1,0,0,1,2,3][t]}")
        if desc == 8: A(f"s_setprio {[3,2,2,1,1,0,0,0][t]}")
        A("s_waitcnt lgkmcnt(0)")
        if t == 0:
            A(f"""
            s_waitcnt vmcnt(0)
            s_add_u32 s31, s18, 2
            v_mov_b32 v{FL}, s31
            v_mov_b32 v{FL+1}, s18
            ds_write_b32 v13, v{FL}
            ds_write_b32 v13, v{FL+1} offset:32
            """)
        if t == 4:
            nofull = A.label("nofull")
            A("s_cmp_lt_u32 s18, 7")
            A(f"s_cbranch_scc0 {nofull}")
            A("s_add_u32 s31, s18, 2")
            check(FL + 1, "s31", "full")
            A(f"{nofull}:")
            A("v_add_u32 v2, s19, v5")
            A("v_add_u32 v3, s19, v6")
        if first:
            A(mf(sn, KF[0], QM, C_))
            A(f"ds_read_b128 v[{KF[0]}:{KF[0]+3}], v2 offset:{kt*1280}")
        else:
            A(mf2b(sn, KT, QT, sn))
            A(f"ds_read_b64 v[{KT}:{KT+1}], v3 offset:{kt*1280}")
        if t == 1: A(f"ds_read_b32 v{FL}, v12 offset:32")
        if t == 3: A(f"ds_read_b32 v{FL+1}, v12")
        for i in range(4): A(E(i))
        A(mf(O_, V1, P_+4, O_))
        A(f"ds_read_b128 v[{V1}:{V1+3}], v4 offset:{t*VT + 2*VH}")
        if t == 7:
            A("v_add_u32 v4, s19, v7")
        dg = []
        if t == 2:
            skip = A.label("k2skip")
            A(f"s_cmp_lt_u32 s18, 6")
            A(f"s_cbranch_scc0 {skip}")
            check(FL, "s18", "free")
            A("s_add_u32 s30, s27, s25")
            for grp in dma_groups("s30"):
                for l in grp: A(l)
            A(f"{skip}:")
        A(C(0, 0)); A(E(4)); A(C(1, 2))
        for i in (5, 6, 7): A(E(i))
        if desc == 4: A(f"s_setprio {2 - 2*(t % 2)}")
        if first:
            A(mf(sn + 16, KF[1], QM, C_))
            A(f"ds_read_b128 v[{KF[1]}:{KF[1]+3}], v2 offset:{(kt+1)*1280}")
        A(C(2, 4)); A(E(8)); A(C(3, 6)); A(E(9)); A(E(10))
        A(mf(O_, V0, P_, O_))
        A(f"ds_read_b128 v[{V0}:{V0+3}], v4 offset:{((t+1)&7)*VT}")
        for i in (11, 12, 13): A(E(i))
        A(C(4, 8)); A(E(14)); A(C(5, 10)); A(E(15)); A(C(6, 12)); A(C(7, 14))
    for pr in range(4):
        cur = X_[pr & 1]
        tile(cur, True, pr, 2*pr)
        tile(cur + 16, False, pr, 2*pr + 1)
    A = A0
    A(f"""
    s_mov_b32 s19, s27
    s_add_u32 s27, s27, {SLOT}
    s_cmp_ge_u32 s27, {3*SLOT}
    s_cselect_b32 s27, 0, s27
    s_add_u32 s18, s18, 1
    s_cmp_lt_u32 s18, 8
    s_cbranch_scc1 Lk2_loop
    """)
    if lstamp: wl_stamp(A, 150, 1)
    if mprof: wl_stamp(A, 160, 6)
    A(f"""
    s_waitcnt lgkmcnt(0)
    {mf(O_, V1, P_+4, O_)}
    s_mov_b32 s31, 0
    s_nop 15
Lk2_fin:
    v_mov_b32 v9, v{O_+8}
    v_mov_b32 v10, v{O_+8}
    s_nop 1
    v_permlane32_swap_b32 v9, v10
    s_nop 1
    v_mul_f32 v11, 0, v{O_}
    """)
    for i in range(1, 8): A(f"v_fma_f32 v11, v{O_+i}, 0, v11")
    A(f"v_mul_f32 v14, 0, v{O_+8}")
    for i in range(9, 12): A(f"v_fma_f32 v14, v{O_+i}, 0, v14")
    A(f"""
    v_cndmask_b32 v14, 0, v14, s[28:29]
    v_add_f32 v11, v11, v14
    v_add_f32 v11, v11, v10
    v_mov_b32 v15, 0x53800000              ; 2^40
    v_cmp_nlt_f32 vcc, v11, v15            ; !(l < 2^40)
    s_cmp_eq_u32 s31, 0
    s_cbranch_scc0 Lk2_store
    {"" if nofb else "s_cbranch_vccnz Lk2_fallback"}
Lk2_store:
    v_rcp_f32 v10, v10
    s_mul_i32 s20, s13, 5
    s_mul_i32 s21, s15, 40960
    s_add_u32 s21, s21, {OF_OFF}
    v_lshrrev_b32 v11, 5, v1               ; hf
    v_and_b32 v14, 15, v1
    v_lshlrev_b32 v14, 4, v14              ; token16*16
    v_bfe_u32 v15, v1, 4, 1                ; q>>4
    v_mul_u32_u24 v15, 20480, v15
    v_add_u32 v14, v14, v15
    v_add_u32 v11, s20, v11                ; G (a=0)
    """)
    for a in range(3):
        r = O_ + 4*a
        A(f"""
        v_add_u32 v16, {2*a}, v11
        v_lshrrev_b32 v17, 3, v16
        v_lshlrev_b32 v17, 10, v17
        v_bfe_u32 v18, v16, 1, 2
        v_lshl_add_u32 v17, v18, 8, v17
        v_and_b32 v18, 1, v16
        v_lshl_add_u32 v17, v18, 3, v17
        v_add_u32 v17, v17, v14
        v_mul_f32 v{r}, v{r}, v10
        v_mul_f32 v{r+1}, v{r+1}, v10
        v_mul_f32 v{r+2}, v{r+2}, v10
        v_mul_f32 v{r+3}, v{r+3}, v10
        v_cvt_pk_bf16_f32 v{r}, v{r}, v{r+1}
        v_cvt_pk_bf16_f32 v{r+1}, v{r+2}, v{r+3}
        """)
        if a == 2:
            A("s_mov_b64 exec, s[28:29]")
        A(f"buffer_store_dwordx2 v[{r}:{r+1}], v17, s[8:11], s21 offen sc1")
    A("s_mov_b64 exec, -1")
    A("s_waitcnt vmcnt(0)")
    A("s_barrier")
    A(f"""
    s_cmp_eq_u32 s12, 0
    s_cbranch_scc0 Lk2_nopub
    s_mul_i32 s20, s14, {FROW}
    s_lshl_b32 s21, s13, 2
    s_add_u32 s20, s20, s21
    s_add_u32 s20, s20, {OFLAG_OFF}
    """)
    if fused:
        get_tag(A, FLAG + LF_TAG, "s21", tmp=(16, 17))
        A("v_mov_b32 v16, s21")
    else:
        A("v_mov_b32 v16, 1")
    A(f"""
    v_mov_b32 v17, 0
    s_mov_b64 exec, 1
    buffer_store_dword v16, v17, s[8:11], s20 offen sc1
    s_mov_b64 exec, -1
Lk2_nopub:
    """)
    if prof:
        A("s_mov_b64 exec, -1")
        if lstamp: wl_dump(A, 150, 1, 8, 12, 21)
        prof_end(A, 1, 8, 12, tmpv=(16, 17, 18, 19, 20), extra="s90")
    if tl: tl2_record(A, 1, 8, 12)
    if mprof == 2:
        wl_stamp(A, 160, 7)
        dbg_dump_lanes(A, 160, 1, 8, 37, 12, 1)
    elif mprof:
        wl_stamp(A, 160, 7)
        wl_dump(A, 160, 1, 8, 12, 21)
        A("s_mov_b32 s90, 0")
        prof_end(A, 1, 8, 12, tmpv=(16, 17, 18, 19, 20), extra="s90")
    A("s_endpgm")

    s = X0
    A(f"""
Lk2_fallback:
    s_mov_b32 s31, 1
    v_and_b32 v9, 31, v1
    v_lshlrev_b32 v11, 3, v9
    v_add_u32 v11, 1024, v11
    v_mov_b32 v14, 0xff800000
    s_mov_b32 s18, 0
Lk2_fb1:
    s_lshr_b32 s20, s18, 3
    s_mul_i32 s20, s20, {CH}
    s_and_b32 s21, s18, 7
    s_mul_i32 s21, s21, 1280
    s_add_u32 s20, s20, s21
    s_add_u32 s20, s20, s16
    buffer_load_dwordx4 v[{KF[0]}:{KF[0]+3}], v8, s[8:11], s20 offen
    buffer_load_dwordx2 v[{KT}:{KT+1}], v11, s[8:11], s20 offen
    s_waitcnt vmcnt(0)
    {mf(s, KF[0], QM, None)}
    {mf(s+16, KF[0], QM, None)}
    s_nop 11
    {mf2b(s, KT, QT, s)}
    s_nop 15
    s_nop 7
    """)
    for i in range(0, 16, 2):
        A(f"v_max3_f32 v14, v14, v{s+i}, v{s+i+1}")
    A(f"""
    s_add_u32 s18, s18, 1
    s_cmp_lt_u32 s18, 64
    s_cbranch_scc1 Lk2_fb1
    v_mov_b32 v15, v14
    s_nop 1
    v_permlane32_swap_b32 v14, v15
    s_nop 1
    v_max_f32 v14, v14, v15
    """)
    for i in range(16): A(f"v_mov_b32 v{O_+i}, 0")
    A(f"""
    s_mov_b32 s18, 0
Lk2_fb2:
    s_lshr_b32 s20, s18, 3
    s_mul_i32 s20, s20, {CH}
    s_and_b32 s21, s18, 7
    s_mul_i32 s22, s21, {VT}
    s_add_u32 s22, s22, s20
    s_add_u32 s22, s22, s16
    s_mul_i32 s21, s21, 1280
    s_add_u32 s20, s20, s21
    s_add_u32 s20, s20, s16
    buffer_load_dwordx4 v[{KF[0]}:{KF[0]+3}], v8, s[8:11], s20 offen
    buffer_load_dwordx2 v[{KT}:{KT+1}], v11, s[8:11], s20 offen
    buffer_load_dwordx4 v[{V0}:{V0+3}], v7, s[8:11], s22 offen
    buffer_load_dwordx4 v[{V1}:{V1+3}], v7, s[8:11], s22 offen offset:{2*VH}
    s_waitcnt vmcnt(0)
    {mf(s, KF[0], QM, None)}
    {mf(s+16, KF[0], QM, None)}
    s_nop 11
    {mf2b(s, KT, QT, s)}
    s_nop 15
    s_nop 7
    """)
    for i in range(16): A(f"v_sub_f32 v{s+i}, v{s+i}, v14")
    for i in range(16): A(f"v_exp_f32 v{s+i}, v{s+i}")
    A("s_nop 0")
    for i in range(8): A(f"v_cvt_pk_bf16_f32 v{P_+i}, v{s+2*i}, v{s+2*i+1}")
    A(f"""
    s_nop 1
    {mf(O_, V0, P_, O_)}
    {mf(O_, V1, P_+4, O_)}
    s_add_u32 s18, s18, 1
    s_cmp_lt_u32 s18, 64
    s_cbranch_scc1 Lk2_fb2
    s_nop 15
    s_branch Lk2_fin
Lk2_end:
    s_endpgm
    """)
    if shadow: gen_shadow(A, (mprof if mprof else prof), shprio, SH_BASE, FLAG, NA=na, fused=fused, outf=outf)
    else: A("Lk2_shadow:\ns_barrier\ns_barrier\ns_endpgm")
    if fused: return A.text()
    return A.text(), kdesc(NAME, 168), f"; @launch kernel={NAME} grid=(256,1,1) block=(768,1,1) lds={LDS_BYTES}"
```

```python
from asm import *
from common import *

ACC_B = 8
ACC_A = 28
WF = [48, 68]
BF = 88
PH = 20480
NPH = 17

def gen_shadow(A, prof, shprio, SH_BASE, FLAG, scl=" sc1", POLL_SLEEP=4, NA=8, fused=False):
    A(f"""
Lk2_shadow:
    """)
    if prof and fused: stamp(A, 10)
    A(f"""
    s_setprio {shprio}
    s_load_dwordx2 s[30:31], s[0:1], 64    ; out
    s_sub_u32 s40, s12, 8                  ; w
    s_lshr_b32 s41, s13, 3
    s_lshl_b32 s44, s14, 2
    s_add_u32 s44, s44, s41                ; rbk
    s_and_b32 s43, s13, 7                  ; cg8
    s_lshl_b32 s46, s44, 2
    s_add_u32 s46, s46, s40                ; T16
    s_mul_i32 s47, s40, 5120
    s_mul_i32 s49, s43, {WF_CG}
    s_add_u32 s49, s49, s47
    s_add_u32 s49, s49, {WF_OFF}
    s_add_u32 s47, s47, {SH_BASE}
    s_mul_i32 s51, s46, {48*1024}
    s_add_u32 s51, s51, {ACT_OFF}
    s_mul_i32 s52, s46, 20480
    s_add_u32 s52, s52, {OF_OFF}
    v_lshlrev_b32 v2, 4, v1                ; lane*16
    v_add_u32 v3, {SH_BASE}, v2
    v_add_u32 v0, {SH_BASE + 3*PH}, v2
    v_and_b32 v4, 3, v1
    v_lshlrev_b32 v4, 2, v4
    v_add_u32 v4, {FLAG + 64}, v4          ; prog[lane&3]
    s_lshl_b32 s53, s40, 2
    s_add_u32 s53, s53, {FLAG + 64}
    v_mov_b32 v5, s53
    s_waitcnt lgkmcnt(0)
    """)
    srd_ws(A, 8, 4, WS_RECORDS)
    srd(A, 24, 30, OUT_BYTES)
    for i in range(40): A(f"v_mov_b32 v{ACC_B+i}, 0")
    if fused:
        A("s_cmp_eq_u32 s40, 0")
        A("s_cbranch_scc0 Lsh_wgo2")
        lds_spin(A, FLAG + LF_RD, 1, 4, tmp=(6, 7), sleep=2)
        get_tag(A, FLAG + LF_TAG, "s62", tmp=(6, 7))
        A(f"""
        s_and_b32 s54, s2, 7
        s_lshr_b32 s55, s2, 3
        s_and_b32 s56, s54, 1
        s_lshl_b32 s56, s56, 3
        s_and_b32 s57, s55, 7
        s_add_u32 s56, s56, s57                ; rb
        s_lshr_b32 s54, s54, 1
        s_lshl_b32 s54, s54, 2
        s_lshr_b32 s55, s55, 3
        s_add_u32 s54, s54, s55                ; cgp
        s_mul_i32 s56, s56, {FROW}
        s_lshl_b32 s54, s54, 2
        s_add_u32 s54, s54, s56
        s_add_u32 s54, s54, {F1B_OFF}
        v_mul_u32_u24 v6, {FREP}, v1
        v_mov_b32 v7, s62
        s_mov_b64 exec, 0xf
        buffer_store_dword v7, v6, s[8:11], s54 offen sc1
        s_mov_b64 exec, -1
        s_lshr_b32 s54, s44, 1
        s_mul_i32 s54, s54, {FROW}
        s_lshr_b32 s55, s2, 3
        s_and_b32 s55, s55, 3
        s_mul_i32 s55, s55, {FREP}
        s_add_u32 s54, s54, s55
        s_add_u32 s54, s54, {F1B_OFF}
        v_and_b32 v6, 15, v1
        v_lshlrev_b32 v6, 2, v6
        s_mov_b32 s60, 0x40000
Lsh_pb:
        buffer_load_dword v7, v6, s[8:11], s54 offen sc1
        s_waitcnt vmcnt(0)
        v_cmp_eq_u32 vcc, s62, v7
        s_cmp_eq_u64 vcc, exec
        s_cbranch_scc1 Lsh_pb_ok
        s_sleep 4
        s_sub_u32 s60, s60, 1
        s_cbranch_scc0 Lsh_pb
Lsh_pb_ok:
        """)
        poll256(A, 8, F1W_OFF, "s62", tmp=(6, 7, 48, 49, 50, 51))
        lds_set(A, FLAG + LF_GO2, 1, tmp=(6, 7))
        A("s_branch Lsh_go2")
        A("Lsh_wgo2:")
        lds_spin(A, FLAG + LF_GO2, 1, 1, tmp=(6, 7), sleep=4)
        A("Lsh_go2:")
        if prof: stamp(A, 9)
    else:
        A("s_barrier")
    def issue(q):
        g = []
        if q >= NPH: return g
        sl = q % 4
        for j in range(5):
            g.append([f"s_add_u32 m0, s47, {sl*PH + j*1024}", f"s_add_u32 s55, s49, {q*PH + j*1024}",
                      f"buffer_load_dwordx4 v2, s[8:11], s55 offen lds"])
        if q < 12:
            for k in range(4):
                b = BF + 16*sl + 4*k
                g.append([f"s_add_u32 s55, s51, {(4*q + k)*1024}", f"buffer_load_dwordx4 v[{b}:{b+3}], v2, s[8:11], s55 offen"])
        return g
    def nops(q):
        return 0 if q >= NPH else (9 if q < 12 else 5)
    def emit(g):
        for grp in g:
            for l in grp: A(l)
    def sync(p, n):
        lab = A.label("shs")
        A(f"""
        s_waitcnt vmcnt({n}) lgkmcnt(0)
        v_mov_b32 v6, {p + 1}
        ds_write_b32 v5, v6
        s_mov_b32 s60, 0x40000
        {lab}:
        ds_read_b32 v7, v4
        s_waitcnt lgkmcnt(0)
        v_cmp_le_u32 vcc, {p + 1}, v7
        s_cmp_eq_u64 vcc, exec
        s_cbranch_scc1 {lab}_ok
        s_sleep 2
        s_sub_u32 s60, s60, 1
        s_cbranch_scc0 {lab}
        {lab}_ok:
        """)
    def compute(p, g):
        sl = p % 4
        acc = ACC_B if p < 12 else ACC_A
        base, so = ("v3", sl*PH) if sl < 3 else ("v0", 0)
        def rd(k, fs):
            return [f"ds_read_b128 v[{WF[fs]+4*ct}:{WF[fs]+4*ct+3}], {base} offset:{so + k*5120 + ct*1024}" for ct in range(5)]
        def bfrag(k):
            return (BF + 16*sl + 4*k) if p < 12 else (BF + 4*(4*(p - 12) + k))
        per = (len(g) + 3) // 4
        for l in rd(0, 0): A(l)
        for k in range(4):
            if k < 3:
                for l in rd(k + 1, (k + 1) & 1): A(l)
                A("s_waitcnt lgkmcnt(5)")
            else:
                A("s_waitcnt lgkmcnt(0)")
            b = bfrag(k)
            for ct in range(5):
                A(f"v_mfma_f32_16x16x32_bf16 v[{acc+4*ct}:{acc+4*ct+3}], v[{WF[k&1]+4*ct}:{WF[k&1]+4*ct+3}], v[{b}:{b+3}], v[{acc+4*ct}:{acc+4*ct+3}]")
            emit(g[k*per:(k+1)*per])
    for q in range(3): emit(issue(q))
    for p in range(NA):
        sync(p, nops(p + 1) + nops(p + 2))
        compute(p, issue(p + 3))
    if prof: stamp(A, 0)
    A("s_waitcnt lgkmcnt(0)")
    A("s_barrier")
    if prof: stamp(A, 1)
    A("s_setprio 3")
    for p in range(NA, 12):
        A(f"s_waitcnt vmcnt({nops(p + 1) + nops(p + 2)}) lgkmcnt(0)")
        A("s_barrier")
        compute(p, issue(p + 3))
    if prof: stamp(A, 8)
    A(f"""
    s_cmp_eq_u32 s40, 0
    s_cbranch_scc1 Lsh_poller
    """)
    A("s_sub_u32 s54, s40, 1")
    A(f"s_mul_i32 s61, s43, {WF_CG}")
    A(f"s_add_u32 s61, s61, {WF_OFF + 15*PH}")
    for j in range(14):
        lab = None
        if j == 13:
            lab = A.label("w13")
            A("s_cmp_eq_u32 s54, 0")
            A(f"s_cbranch_scc0 {lab}")
        A(f"s_add_u32 s55, s54, {3*j}")
        A("s_lshl_b32 s55, s55, 10")
        A("s_mov_b32 m0, s55")
        A("s_add_u32 s55, s55, s61")
        A(f"buffer_load_dwordx4 v2, s[8:11], s55 offen lds")
        if lab: A(f"{lab}:")
    A(f"""
    s_branch Lsh_g
Lsh_poller:
    s_mul_i32 s56, s14, {FROW}
    s_add_u32 s56, s56, {OFLAG_OFF}
    v_and_b32 v4, 31, v1
    v_lshlrev_b32 v4, 2, v4
    s_mov_b32 s60, 0x40000
Lsh_poll:
    buffer_load_dword v7, v4, s[8:11], s56 offen sc1
    s_waitcnt vmcnt(0)
    """)
    if prof:
        A("s_cmp_eq_u32 s60, 0x40000")
        A("s_cbranch_scc0 Lsh_np")
        stamp(A, 6)
        A("Lsh_np:")
    A(f"""
    v_cmp_eq_u32 vcc, {'s62' if fused else '1'}, v7
    s_cmp_eq_u64 vcc, exec
    s_cbranch_scc1 Lsh_g
    s_sleep {POLL_SLEEP}
    s_sub_u32 s60, s60, 1
    s_cbranch_scc0 Lsh_poll
Lsh_g:
    """)
    if prof:
        stamp(A, 7)
    A(f"""
    v_and_b32 v49, 15, v1
    s_lshl_b32 s45, s46, 4
    v_add_u32 v49, s45, v49
    v_lshlrev_b32 v50, 2, v49
    s_mov_b32 s58, {G_OFF}
    buffer_load_dword v6, v50, s[8:11], s58 offen
    v_lshrrev_b32 v48, 4, v1               ; lane>>4
    v_mul_u32_u24 v7, 1280, v49
    v_lshl_add_u32 v5, v48, 3, v7
    s_waitcnt vmcnt(1) lgkmcnt(0)
    s_barrier
    """)
    if prof: stamp(A, 2)
    def oload(k):
        return [f"s_add_u32 s55, s52, {k*1024}", f"buffer_load_dwordx4 v[{BF+4*k}:{BF+4*k+3}], v2, s[8:11], s55 offen{scl}"]
    PRE = 8
    for k in range(PRE):
        for l in oload(k): A(l)
    if prof: stamp(A, 3)
    def wrd(ks, fs):
        p = 12 + ks // 4; k = ks % 4
        if p < 15: base, so = "v3", (p % 4)*PH
        else: base, so = "v2", (p - 15)*PH
        return [f"ds_read_b128 v[{WF[fs]+4*ct}:{WF[fs]+4*ct+3}], {base} offset:{so + k*5120 + ct*1024}" for ct in range(5)]
    for l in wrd(0, 0): A(l)
    for ks in range(20):
        if ks + PRE < 20:
            for l in oload(ks + PRE): A(l)
        issued = min(20, ks + PRE + 1)
        if ks < 19:
            for l in wrd(ks + 1, (ks + 1) & 1): A(l)
            A(f"s_waitcnt vmcnt({issued - 1 - ks}) lgkmcnt(5)")
        else:
            A("s_waitcnt vmcnt(0) lgkmcnt(0)")
        b = BF + 4*ks
        for ct in range(5):
            A(f"v_mfma_f32_16x16x32_bf16 v[{ACC_A+4*ct}:{ACC_A+4*ct+3}], v[{WF[ks&1]+4*ct}:{WF[ks&1]+4*ct+3}], v[{b}:{b+3}], v[{ACC_A+4*ct}:{ACC_A+4*ct+3}]")
    if prof: stamp(A, 4)
    A("s_nop 7")
    A("s_mul_i32 s48, s43, 160")
    for ct in range(5):
        b = ACC_B + 4*ct; a = ACC_A + 4*ct
        for i in range(4):
            A(f"v_sub_f32 v{a+i}, v{a+i}, v{b+i}")
        for i in range(4):
            A(f"v_fma_f32 v{a+i}, v6, v{a+i}, v{b+i}")
        A(f"v_cvt_pk_bf16_f32 v{48+2*ct}, v{a}, v{a+1}")
        A(f"v_cvt_pk_bf16_f32 v{49+2*ct}, v{a+2}, v{a+3}")
        A(f"buffer_store_dwordx2 v[{48+2*ct}:{49+2*ct}], v5, s[24:27], s48 offen offset:{ct*32}")
    if prof == 2:
        stamp(A, 5)
        A("s_memrealtime s[88:89]")
        A("s_waitcnt lgkmcnt(0)")
        A("s_sub_u32 s88, s88, s94")
        for i, src in enumerate(("s80", "s79", "s70", "s71", "s72", "s75", "s88")):
            A(f"v_writelane_b32 v48, {src}, {i}")
        dbg_dump_lanes(A, 48, 9, 7, 37, 12, 8)
    elif prof:
        stamp(A, 5)
        dump_stamps(A, 1, 8, 12, 11, tmp=50)
        A("s_mov_b64 exec, -1")
        A("s_mov_b32 s90, 0")
        prof_end(A, 1, 8, 12, tmpv=(16, 17, 18, 19, 20), extra="s90")
    A("s_endpgm")
```

```python
from asm import *
from common import *

ACC_B = 8
ACC_A = 28
WF = [48, 68]
BF = 88
PH = 20480
NPH = 17

def gen_shadow(A, prof, shprio, SH_BASE, FLAG, scl=" sc1", POLL_SLEEP=4, NA=8, fused=False, outf=0):
    OUTF = ['', ' sc1', ' nt', ' sc0 sc1'][outf]
    A(f"""
Lk2_shadow:
    """)
    if prof and fused: stamp(A, 10)
    A(f"""
    s_setprio {shprio}
    s_load_dwordx2 s[30:31], s[0:1], 64    ; out
    s_sub_u32 s40, s12, 8                  ; w
    s_lshr_b32 s41, s13, 3
    s_lshl_b32 s44, s14, 2
    s_add_u32 s44, s44, s41                ; rbk
    s_and_b32 s43, s13, 7                  ; cg8
    s_lshl_b32 s46, s44, 2
    s_add_u32 s46, s46, s40                ; T16
    s_mul_i32 s47, s40, 5120
    s_mul_i32 s49, s43, {WF_CG}
    s_add_u32 s49, s49, s47
    s_add_u32 s49, s49, {WF_OFF}
    s_add_u32 s47, s47, {SH_BASE}
    s_mul_i32 s51, s46, {48*1024}
    s_add_u32 s51, s51, {ACT_OFF}
    s_mul_i32 s52, s46, 20480
    s_add_u32 s52, s52, {OF_OFF}
    v_lshlrev_b32 v2, 4, v1                ; lane*16
    v_add_u32 v3, {SH_BASE}, v2
    v_add_u32 v0, {SH_BASE + 3*PH}, v2
    v_and_b32 v4, 3, v1
    v_lshlrev_b32 v4, 2, v4
    v_add_u32 v4, {FLAG + 64}, v4          ; prog[lane&3]
    s_lshl_b32 s53, s40, 2
    s_add_u32 s53, s53, {FLAG + 64}
    v_mov_b32 v5, s53
    s_waitcnt lgkmcnt(0)
    """)
    srd_ws(A, 8, 4, WS_RECORDS)
    srd(A, 24, 30, OUT_BYTES)
    for i in range(40): A(f"v_mov_b32 v{ACC_B+i}, 0")
    if fused:
        A("s_cmp_eq_u32 s40, 0")
        A("s_cbranch_scc0 Lsh_wgo2")
        lds_spin(A, FLAG + LF_RD, 1, 4, tmp=(6, 7), sleep=2)
        get_tag(A, FLAG + LF_TAG, "s62", tmp=(6, 7))
        A(f"""
        s_and_b32 s54, s2, 7
        s_lshr_b32 s55, s2, 3
        s_and_b32 s56, s54, 1
        s_lshl_b32 s56, s56, 3
        s_and_b32 s57, s55, 7
        s_add_u32 s56, s56, s57                ; rb
        s_lshr_b32 s54, s54, 1
        s_lshl_b32 s54, s54, 2
        s_lshr_b32 s55, s55, 3
        s_add_u32 s54, s54, s55                ; cgp
        s_mul_i32 s56, s56, {FROW}
        s_lshl_b32 s54, s54, 2
        s_add_u32 s54, s54, s56
        s_add_u32 s54, s54, {F1B_OFF}
        v_mul_u32_u24 v6, {FREP}, v1
        v_mov_b32 v7, s62
        s_mov_b64 exec, 0xf
        buffer_store_dword v7, v6, s[8:11], s54 offen sc1
        s_mov_b64 exec, -1
        """)
        poll256(A, 8, F1W_OFF, "s62", tmp=(6, 7, 48, 49, 50, 51))
        A(f"""
        s_lshr_b32 s54, s44, 1
        s_mul_i32 s54, s54, {FROW}
        s_lshr_b32 s55, s2, 3
        s_and_b32 s55, s55, 3
        s_mul_i32 s55, s55, {FREP}
        s_add_u32 s54, s54, s55
        s_add_u32 s54, s54, {F1B_OFF}
        v_and_b32 v6, 15, v1
        v_lshlrev_b32 v6, 2, v6
        s_mov_b32 s60, 0x40000
Lsh_pb:
        buffer_load_dword v7, v6, s[8:11], s54 offen sc1
        s_waitcnt vmcnt(0)
        v_cmp_eq_u32 vcc, s62, v7
        s_cmp_eq_u64 vcc, exec
        s_cbranch_scc1 Lsh_pb_ok
        s_sleep 2
        s_sub_u32 s60, s60, 1
        s_cbranch_scc0 Lsh_pb
Lsh_pb_ok:
        """)
        lds_set(A, FLAG + LF_GO2, 1, tmp=(6, 7))
        A("s_branch Lsh_go2")
        A("Lsh_wgo2:")
        lds_spin(A, FLAG + LF_GO2, 1, 1, tmp=(6, 7), sleep=4)
        A("Lsh_go2:")
        if prof: stamp(A, 9)
    else:
        A("s_barrier")
    def issue(q):
        g = []
        if q >= NPH: return g
        sl = q % 4
        for j in range(5):
            g.append([f"s_add_u32 m0, s47, {sl*PH + j*1024}", f"s_add_u32 s55, s49, {q*PH + j*1024}",
                      f"buffer_load_dwordx4 v2, s[8:11], s55 offen lds"])
        if q < 12:
            for k in range(4):
                b = BF + 16*sl + 4*k
                g.append([f"s_add_u32 s55, s51, {(4*q + k)*1024}", f"buffer_load_dwordx4 v[{b}:{b+3}], v2, s[8:11], s55 offen"])
        return g
    def nops(q):
        return 0 if q >= NPH else (9 if q < 12 else 5)
    def emit(g):
        for grp in g:
            for l in grp: A(l)
    def sync(p, n):
        lab = A.label("shs")
        A(f"""
        s_waitcnt vmcnt({n}) lgkmcnt(0)
        v_mov_b32 v6, {p + 1}
        ds_write_b32 v5, v6
        s_mov_b32 s60, 0x40000
        {lab}:
        ds_read_b32 v7, v4
        s_waitcnt lgkmcnt(0)
        v_cmp_le_u32 vcc, {p + 1}, v7
        s_cmp_eq_u64 vcc, exec
        s_cbranch_scc1 {lab}_ok
        s_sleep 2
        s_sub_u32 s60, s60, 1
        s_cbranch_scc0 {lab}
        {lab}_ok:
        """)
    def compute(p, g):
        sl = p % 4
        acc = ACC_B if p < 12 else ACC_A
        base, so = ("v3", sl*PH) if sl < 3 else ("v0", 0)
        def rd(k, fs):
            return [f"ds_read_b128 v[{WF[fs]+4*ct}:{WF[fs]+4*ct+3}], {base} offset:{so + k*5120 + ct*1024}" for ct in range(5)]
        def bfrag(k):
            return (BF + 16*sl + 4*k) if p < 12 else (BF + 4*(4*(p - 12) + k))
        per = (len(g) + 3) // 4
        for l in rd(0, 0): A(l)
        for k in range(4):
            if k < 3:
                for l in rd(k + 1, (k + 1) & 1): A(l)
                A("s_waitcnt lgkmcnt(5)")
            else:
                A("s_waitcnt lgkmcnt(0)")
            b = bfrag(k)
            for ct in range(5):
                A(f"v_mfma_f32_16x16x32_bf16 v[{acc+4*ct}:{acc+4*ct+3}], v[{WF[k&1]+4*ct}:{WF[k&1]+4*ct+3}], v[{b}:{b+3}], v[{acc+4*ct}:{acc+4*ct+3}]")
            emit(g[k*per:(k+1)*per])
    for q in range(3): emit(issue(q))
    for p in range(NA):
        sync(p, nops(p + 1) + nops(p + 2))
        compute(p, issue(p + 3))
    if prof: stamp(A, 0)
    A("s_waitcnt lgkmcnt(0)")
    A("s_barrier")
    if prof: stamp(A, 1)
    A("s_setprio 3")
    for p in range(NA, 12):
        A(f"s_waitcnt vmcnt({nops(p + 1) + nops(p + 2)}) lgkmcnt(0)")
        A("s_barrier")
        compute(p, issue(p + 3))
    if prof: stamp(A, 8)
    A(f"""
    s_cmp_eq_u32 s40, 0
    s_cbranch_scc1 Lsh_poller
    """)
    A("s_sub_u32 s54, s40, 1")
    A(f"s_mul_i32 s61, s43, {WF_CG}")
    A(f"s_add_u32 s61, s61, {WF_OFF + 15*PH}")
    for j in range(14):
        lab = None
        if j == 13:
            lab = A.label("w13")
            A("s_cmp_eq_u32 s54, 0")
            A(f"s_cbranch_scc0 {lab}")
        A(f"s_add_u32 s55, s54, {3*j}")
        A("s_lshl_b32 s55, s55, 10")
        A("s_mov_b32 m0, s55")
        A("s_add_u32 s55, s55, s61")
        A(f"buffer_load_dwordx4 v2, s[8:11], s55 offen lds")
        if lab: A(f"{lab}:")
    A(f"""
    s_branch Lsh_g
Lsh_poller:
    s_mul_i32 s56, s14, {FROW}
    s_add_u32 s56, s56, {OFLAG_OFF}
    v_and_b32 v4, 31, v1
    v_lshlrev_b32 v4, 2, v4
    s_mov_b32 s60, 0x40000
Lsh_poll:
    buffer_load_dword v7, v4, s[8:11], s56 offen sc1
    s_waitcnt vmcnt(0)
    """)
    if prof:
        A("s_cmp_eq_u32 s60, 0x40000")
        A("s_cbranch_scc0 Lsh_np")
        stamp(A, 6)
        A("Lsh_np:")
    A(f"""
    v_cmp_eq_u32 vcc, {'s62' if fused else '1'}, v7
    s_cmp_eq_u64 vcc, exec
    s_cbranch_scc1 Lsh_g
    s_sleep {POLL_SLEEP}
    s_sub_u32 s60, s60, 1
    s_cbranch_scc0 Lsh_poll
Lsh_g:
    """)
    if prof:
        stamp(A, 7)
    A(f"""
    v_and_b32 v49, 15, v1
    s_lshl_b32 s45, s46, 4
    v_add_u32 v49, s45, v49
    v_lshlrev_b32 v50, 2, v49
    s_mov_b32 s58, {G_OFF}
    buffer_load_dword v6, v50, s[8:11], s58 offen
    v_lshrrev_b32 v48, 4, v1               ; lane>>4
    v_mul_u32_u24 v7, 1280, v49
    v_lshl_add_u32 v5, v48, 3, v7
    s_waitcnt vmcnt(1) lgkmcnt(0)
    s_barrier
    """)
    if prof: stamp(A, 2)
    def oload(k):
        return [f"s_add_u32 s55, s52, {k*1024}", f"buffer_load_dwordx4 v[{BF+4*k}:{BF+4*k+3}], v2, s[8:11], s55 offen{scl}"]
    PRE = 8
    for k in range(PRE):
        for l in oload(k): A(l)
    if prof: stamp(A, 3)
    def wrd(ks, fs):
        p = 12 + ks // 4; k = ks % 4
        if p < 15: base, so = "v3", (p % 4)*PH
        else: base, so = "v2", (p - 15)*PH
        return [f"ds_read_b128 v[{WF[fs]+4*ct}:{WF[fs]+4*ct+3}], {base} offset:{so + k*5120 + ct*1024}" for ct in range(5)]
    for l in wrd(0, 0): A(l)
    for ks in range(20):
        if ks + PRE < 20:
            for l in oload(ks + PRE): A(l)
        issued = min(20, ks + PRE + 1)
        if ks < 19:
            for l in wrd(ks + 1, (ks + 1) & 1): A(l)
            A(f"s_waitcnt vmcnt({issued - 1 - ks}) lgkmcnt(5)")
        else:
            A("s_waitcnt vmcnt(0) lgkmcnt(0)")
        b = BF + 4*ks
        for ct in range(5):
            A(f"v_mfma_f32_16x16x32_bf16 v[{ACC_A+4*ct}:{ACC_A+4*ct+3}], v[{WF[ks&1]+4*ct}:{WF[ks&1]+4*ct+3}], v[{b}:{b+3}], v[{ACC_A+4*ct}:{ACC_A+4*ct+3}]")
    if prof: stamp(A, 4)
    A("s_nop 7")
    A("s_mul_i32 s48, s43, 160")
    for ct in range(5):
        b = ACC_B + 4*ct; a = ACC_A + 4*ct
        for i in range(4):
            A(f"v_sub_f32 v{a+i}, v{a+i}, v{b+i}")
        for i in range(4):
            A(f"v_fma_f32 v{a+i}, v6, v{a+i}, v{b+i}")
        A(f"v_cvt_pk_bf16_f32 v{48+2*ct}, v{a}, v{a+1}")
        A(f"v_cvt_pk_bf16_f32 v{49+2*ct}, v{a+2}, v{a+3}")
        A(f"buffer_store_dwordx2 v[{48+2*ct}:{49+2*ct}], v5, s[24:27], s48 offen offset:{ct*32}{OUTF}")
    if prof == 2:
        stamp(A, 5)
        A("s_memrealtime s[88:89]")
        A("s_waitcnt lgkmcnt(0)")
        A("s_sub_u32 s88, s88, s94")
        for i, src in enumerate(("s80", "s79", "s70", "s71", "s72", "s75", "s88")):
            A(f"v_writelane_b32 v48, {src}, {i}")
        dbg_dump_lanes(A, 48, 9, 7, 37, 12, 8)
    elif prof:
        stamp(A, 5)
        dump_stamps(A, 1, 8, 12, 14, tmp=50)
        A("s_mov_b64 exec, -1")
        A("s_mov_b32 s90, 0")
        prof_end(A, 1, 8, 12, tmpv=(16, 17, 18, 19, 20), extra="s90")
    A("s_endpgm")
```

```python
from asm import *
from common import *
from k2 import vslot

NAME = "k1_kernel"
SLOT = 45056
XO, WQO, W1O = 0, 16384, 32768
GATE_LDS = 3 * SLOT
UNIT_LDS = 3 * SLOT + 1536
LDS_BYTES = UNIT_LDS + 3*4096


def gen_helpers(A, FL, pf, mprof, hprio=0, pfa=0):
    UL = UNIT_LDS
    A(f"""
    s_cmp_eq_u32 s32, 8
    s_cbranch_scc1 Lk1_H0
    s_sub_u32 s40, s32, 10
    s_cmp_eq_u32 s32, 9
    s_cselect_b32 s40, 2, s40
    s_cmp_eq_u32 s32, 10
    s_cbranch_scc0 Lk1_Hn2
    v_lshlrev_b32 v3, 2, v2
    v_add_u32 v3, {FL}, v3
    v_mov_b32 v4, 0
    ds_write_b32 v3, v4
    s_waitcnt lgkmcnt(0)
Lk1_Hn2:
    s_cmp_eq_u32 s32, 9
    s_cbranch_scc0 Lk1_Hn1
    s_load_dwordx2 s[50:51], s[0:1], 72    ; d_debug
    s_waitcnt lgkmcnt(0)
    """)
    srd(A, 52, 50, 256)
    A(f"""
    s_cmp_eq_u32 s2, 0
    s_cbranch_scc0 Lk1_Hn1
    s_memrealtime s[50:51]
    s_waitcnt lgkmcnt(0)
    s_or_b32 s50, s50, 1
    v_mov_b32 v3, s50
    v_mov_b32 v4, 0
    s_mov_b64 exec, 1
    buffer_store_dword v3, v4, s[52:55], 0 offen sc1
    s_mov_b64 exec, -1
Lk1_Hn1:
    ; unit: idx = wg + 256u (< 680): ksg = idx/10, blk = idx%10
    s_lshl_b32 s41, s40, 8
    s_add_u32 s41, s41, s2
    s_mul_i32 s45, s41, 6554
    s_lshr_b32 s45, s45, 16                ; ksg
    s_mul_i32 s47, s45, 10
    s_sub_u32 s47, s41, s47                ; blk
    s_cmp_lt_u32 s45, 48
    s_cselect_b32 s96, s80, s82
    s_cselect_b32 s97, s81, s83
    s_mov_b32 s98, {W2_BYTES}
    s_cselect_b32 s98, s98, {WO_BYTES}
    s_cselect_b32 s100, 0, 48
    s_and_b32 s97, s97, 0xffff
    s_mov_b32 s99, 0x00020000
    s_sub_u32 s100, s45, s100
    s_mul_i32 s100, s100, {32*1280}
    s_lshl_b32 s101, s47, 7
    s_add_u32 s100, s100, s101
    s_lshl_b32 s77, s47, 2                 ; c0
    s_mul_i32 s101, s45, 5120
    s_lshl_b32 s75, s40, 12
    s_add_u32 s75, s75, {UL}
    s_cmp_lt_u32 s41, 680
    s_cselect_b32 s76, 1, 0
    v_lshrrev_b32 v8, 3, v2
    v_mul_u32_u24 v8, 1280, v8
    v_and_b32 v3, 7, v2
    v_lshl_add_u32 v8, v3, 4, v8
    v_lshrrev_b32 v9, 4, v2
    v_bfe_u32 v3, v2, 2, 2
    v_lshl_add_u32 v9, v9, 3, v3
    v_lshlrev_b32 v9, 7, v9
    v_and_b32 v3, 3, v2
    v_lshl_add_u32 v9, v3, 3, v9
    v_add_u32 v9, s75, v9
    v_lshlrev_b32 v10, 4, v2
    s_barrier                              ; Bs0
    s_barrier                              ; B_0
    s_cmp_eq_u32 s76, 1
    s_cbranch_scc0 Lk1_nous
    """)
    for j in range(4):
        A(f"s_add_u32 m0, s75, {j*1024}")
        A(f"s_add_u32 s48, s100, {j*8*1280}")
        A(f"buffer_load_dwordx4 v8, s[96:99], s48 offen lds")
    A(f"""
Lk1_nous:
    s_barrier                              ; B_1
    s_barrier                              ; B_2
    s_barrier                              ; B_3
    s_cmp_eq_u32 s32, 9
    s_cbranch_scc0 Lk1_notag
    v_mov_b32 v4, 0
    s_mov_b32 s50, 0x40000
Lk1_tagpoll:
    buffer_load_dword v3, v4, s[52:55], 0 offen sc1
    s_waitcnt vmcnt(0)
    v_readfirstlane_b32 s51, v3
    s_nop 3
    s_cmp_lg_u32 s51, 0
    s_cbranch_scc1 Lk1_gottag
    s_sleep 4
    s_sub_u32 s50, s50, 1
    s_cbranch_scc0 Lk1_tagpoll
Lk1_gottag:
    v_mov_b32 v4, {FL + LF_TAG}
    ds_write_b32 v4, v3
    s_waitcnt lgkmcnt(0)
Lk1_notag:
    s_barrier                              ; B_4
    s_barrier                              ; B_5
    s_barrier                              ; B_6
    s_barrier                              ; B_7
    s_cmp_eq_u32 s76, 1
    s_cbranch_scc0 Lk1_nouf
    s_waitcnt vmcnt(0)
    """)
    for cc in range(4):
        A(f"ds_read_b64_tr_b16 v[{20+4*cc}:{21+4*cc}], v9 offset:{cc*32}")
        A(f"ds_read_b64_tr_b16 v[{22+4*cc}:{23+4*cc}], v9 offset:{cc*32 + 512}")
    A("s_waitcnt lgkmcnt(0)")
    for cc in range(4):
        A(f"""
        s_add_u32 s41, s77, {cc}               ; c
        s_mul_i32 s45, s41, 205
        s_lshr_b32 s45, s45, 10                ; cg8 = c/5
        s_mul_i32 s47, s45, 5
        s_sub_u32 s47, s41, s47                ; ct
        s_mul_i32 s45, s45, {WF_CG}
        s_lshl_b32 s47, s47, 10
        s_add_u32 s45, s45, s47
        s_add_u32 s45, s45, s101
        s_add_u32 s45, s45, {WF_OFF}
        buffer_store_dwordx4 v[{20+4*cc}:{23+4*cc}], v10, s[24:27], s45 offen sc1
        """)
    A(f"""
Lk1_nouf:
    s_barrier                              ; B_8
    s_barrier                              ; B_9
    s_barrier                              ; B_10
    s_waitcnt vmcnt(0)
    s_lshl_b32 s41, s40, 2
    s_add_u32 s41, s41, {FL + LF_HD}
    v_mov_b32 v4, s41
    v_mov_b32 v5, 1
    ds_write_b32 v4, v5
    s_cmp_eq_u32 s32, 11
    s_cbranch_scc0 Lattn_entry
    """)
    lds_spin(A, FL + LF_HD, 1, 4)
    get_tag(A, FL + LF_TAG, "s50")
    publish256(A, 24, F1W_OFF, "s50")
    A("s_branch Lattn_entry")
    A(f"""
Lk1_H0:
    s_setprio {hprio}
    s_cmp_lt_u32 s35, 10
    s_cbranch_scc1 Lk1_noconst
    s_cmp_eq_u32 s35, 15
    s_cbranch_scc1 Lk1_noconst
    s_lshl_b32 s41, s46, 7
    s_add_u32 s42, s41, 19
    s_mul_i32 s42, s42, 3277
    s_lshr_b32 s42, s42, 16                ; h0
    s_add_u32 s43, s41, 127
    s_mul_i32 s43, s43, 3277
    s_lshr_b32 s43, s43, 16                ; h1
    s_min_u32 s43, s43, 31
    v_lshrrev_b32 v11, 5, v2
    v_bfe_u32 v12, v2, 3, 2
    s_lshl_b32 s44, s34, 2
    v_add_u32 v12, s44, v12                ; T
    v_lshrrev_b32 v13, 3, v12
    v_mul_u32_u24 v13, {CH}, v13
    v_and_b32 v12, 7, v12
    v_mul_u32_u24 v12, {VT}, v12
    v_add_u32 v12, v12, v13
    v_bfe_u32 v13, v2, 1, 2
    v_mul_u32_u24 v13, {VH}, v13
    v_add_u32 v12, v12, v13
    v_and_b32 v13, 1, v2
    v_mul_u32_u24 v14, 112, v13
    v_add_u32 v12, v12, v14
    v_add_u32 v12, {KV_OFF + VPART + 128}, v12
    v_cmp_eq_u32 vcc, 0, v13
    v_mov_b32 v14, 0x3f803f80
    s_mov_b32 s45, {HSK}
    v_cndmask_b32 v20, 0, v14, vcc
    v_mov_b32 v21, v20
    v_mov_b32 v22, v20
    v_mov_b32 v23, v20
    """)
    for t in range(4):
        lab = A.label("cv")
        A(f"""
        s_add_u32 s47, s42, {2*t}
        v_add_u32 v15, s47, v11                ; head
        v_cmp_ge_u32 vcc, s43, v15
        v_mul_lo_u32 v15, v15, s45
        v_add_u32 v15, v15, v12
        s_and_saveexec_b64 s[50:51], vcc
        s_cbranch_execz {lab}
        buffer_store_dwordx4 v[20:23], v15, s[24:27], 0 offen sc1
        {lab}:
        s_mov_b64 exec, s[50:51]
        """)
    A(f"""
Lk1_noconst:
    s_and_b32 s41, s2, 7
    s_and_b32 s43, s41, 1                  ; rh
    s_lshr_b32 s44, s41, 1                 ; cq
    s_lshr_b32 s45, s2, 3                  ; i
    v_mov_b32 v13, 0x7ffffff0
    s_lshl_b32 s46, s43, 10
    s_lshl_b32 s47, s45, 5
    s_add_u32 s46, s46, s47
    v_add_u32 v3, s46, v2
    v_mul_u32_u24 v3, 1280, v3
    v_cmp_gt_u32 vcc, 32, v2
    s_nop 1
    v_cndmask_b32 v4, v13, v3, vcc
    v_lshrrev_b32 v3, 3, v2
    s_lshl_b32 s47, s45, 1
    v_add_u32 v3, s47, v3
    v_mul_u32_u24 v3, 3840, v3
    v_and_b32 v5, 7, v2
    v_lshlrev_b32 v5, 7, v5
    s_lshl_b32 s48, s44, 10
    v_add_u32 v5, s48, v5
    v_cmp_gt_u32 vcc, 3840, v5
    v_add_u32 v5, v5, v3
    v_cmp_gt_u32 s[50:51], 16, v2
    s_and_b64 vcc, vcc, s[50:51]
    s_nop 1
    v_cndmask_b32 v5, v13, v5, vcc
    v_cmp_lt_u32 vcc, 5, v2
    v_mov_b32 v6, 0
    v_mov_b32 v7, 1
    v_cndmask_b32 v3, v6, v7, vcc
    v_mul_u32_u24 v6, 6, v3
    v_sub_u32 v6, v2, v6
    v_lshlrev_b32 v6, 7, v6
    v_add_u32 v3, s47, v3
    v_mul_u32_u24 v3, 3072, v3
    v_add_u32 v6, v6, v3
    s_mul_i32 s48, s44, 768
    v_add_u32 v6, s48, v6
    v_cmp_gt_u32 vcc, 12, v2
    s_nop 1
    v_cndmask_b32 v6, v13, v6, vcc
    s_barrier                              ; Bs0
    """)
    def PF(st):
        A(f"s_mov_b32 s46, {st*128}")
        A(f"buffer_load_dword v16, v4, s[16:19], s46 offen")
        A(f"s_mov_b32 s47, {st*64*3840}")
        A(f"buffer_load_dword v17, v5, s[60:63], s47 offen")
        A(f"s_mov_b32 s48, {st*64*3072}")
        A(f"buffer_load_dword v18, v6, s[64:67], s48 offen")
    def PFW1(st):
        A(f"s_mov_b32 s48, {st*64*3072}")
        A(f"buffer_load_dword v18, v6, s[64:67], s48 offen")
    if pf == 1:
        for st in range(2, 4 + pfa): PF(st)
    A("s_barrier")
    for k in range(10):
        if pf == 1 and 4 + pfa + k <= 9: PF(4 + pfa + k)
        if pf == 3: PFW1(k)
        A("s_barrier")
    A("s_waitcnt vmcnt(0)")
    if mprof: wl_stamp(A, 160, 0)
    lds_set(A, FL + LF_HD + 12, 1)
    A("s_branch Lattn_entry")

def gen_k1(prof=False, mode=0, pf=2, rot=1, tlb=1, tl=0, sc=0, cpf=1, wfsc=1, fused=None, mprof=0, rtrig=2, cpf2=0, dbg2=0, hprio=0, pfa=0, v5=0):
    global SLOT, GATE_LDS, UNIT_LDS
    if fused and v5:
        SLOT = 32768; GATE_LDS = 3*SLOT; UNIT_LDS = GATE_LDS + 1536
    else:
        v5 = 0
    SC = {0: '', 1: ' sc1', 2: ' nt', 3: ' sc0 sc1'}[sc & 3]
    SCQ = SC if sc & 4 else ''
    SCW = ' sc1' if wfsc else ''
    KN = fused if fused else NAME
    FL = MEGA_FLAG
    if fused:
        SC = SCQ = SCW = ' sc1'
        tlb = 0
    ROT = rot
    A0 = Asm()
    class F:
        def __init__(s): s.inloop = False
        def __call__(s, l):
            for x in l.strip("\n").split("\n"):
                xs = x.strip()
                if s.inloop:
                    if mode == 1 and xs.startswith("buffer_load") : continue
                    if mode == 2 and (xs.startswith("v_mfma") or xs.startswith("ds_read")): continue
                    if mode == 3 and xs.startswith("v_mfma"): continue
                    if mode in (4, 6) and xs.startswith("s_barrier"): continue
                    if mode == 6 and xs.startswith("buffer_load"): continue
                    if mode == 5 and xs.startswith("ds_read"): continue
                    if mode == 7 and (xs.startswith("buffer_load") or xs.startswith("ds_read")): continue
                    if mode == 8 and (xs.startswith("buffer_load") or xs.startswith("ds_read") or xs.startswith("s_barrier")): continue
                    if mode == 10 and (xs.startswith("buffer_load") or xs.startswith("ds_read") or xs.startswith("s_barrier") or xs.startswith("s_add_u32 m0") or xs.startswith("s_add_u32 s48") or xs.startswith("s_nop 0") or xs.startswith("v_add_u32")): continue
                if xs.endswith("_loop:"): s.inloop = True
                if xs.startswith("s_cbranch_scc1") and xs.endswith("g_loop"): s.inloop = False
                A0(x)
        def label(s, b): return A0.label(b)
        def text(s): return A0.text()
    A = F()
    A(khead(KN))
    A(f"""
    s_cmp_ge_u32 s2, 256
    s_cbranch_scc1 Lk1_exit
    """)
    if prof or mprof: prof_start(A)
    if tl: tl_start(A, 0)
    if cpf:
        A(f"""
        s_getpc_b64 s[80:81]
Lk1_pc:
        s_sub_u32 s80, s80, Lk1_pc - {KN}
        s_subb_u32 s81, s81, 0
        s_lshr_b32 s82, s2, 3
        s_mul_i32 s82, s82, (Lcode_end - {KN} + 4095) / 4096
        v_and_b32 v61, 63, v0
        v_add_u32 v61, s82, v61
        v_min_u32 v61, (Lcode_end - {KN} - 4) / 128, v61
        v_lshlrev_b32 v61, 7, v61
        v_lshrrev_b32 v60, 6, v0
        v_and_b32 v59, 63, v0
        v_cmp_gt_u32 vcc, (Lcode_end - {KN} + 4095) / 4096, v59
        v_cmp_eq_u32 s[82:83], 7, v60
        s_and_b64 vcc, vcc, s[82:83]
        s_and_saveexec_b64 s[82:83], vcc
        s_cbranch_execz Lk1_nocpf
        global_load_dword v61, v61, s[80:81]
Lk1_nocpf:
        s_mov_b64 exec, s[82:83]
        """)
    A(f"""
    s_load_dwordx2 s[80:81], s[0:1], 48    ; w2
    s_load_dwordx2 s[82:83], s[0:1], 16    ; wo
    s_load_dwordx4 s[4:7], s[0:1], 0       ; A_x, wqkv
    s_load_dwordx4 s[8:11], s[0:1], 32     ; w1, b1
    s_load_dwordx2 s[12:13], s[0:1], 56    ; gate_w
    s_load_dwordx2 s[14:15], s[0:1], 80    ; ws
    v_lshrrev_b32 v1, 6, v0
    v_and_b32 v2, 63, v0                   ; lane
    s_and_b32 s41, s2, 7                   ; xcd
    v_readfirstlane_b32 s32, v1
    """)
    if fused:
        A("""
        s_nop 3
        s_mov_b32 s85, s32
        s_sub_u32 s42, s32, 4
        s_add_u32 s43, s32, 4
        s_cmp_ge_u32 s32, 8
        s_cselect_b32 s43, s42, s43
        s_cmp_lt_u32 s32, 4
        s_cselect_b32 s32, s32, s43
        """)
    A(f"""
    s_lshr_b32 s42, s2, 3                  ; i
    s_and_b32 s43, s41, 1
    s_lshl_b32 s43, s43, 3
    s_and_b32 s44, s42, 7
    s_add_u32 s34, s43, s44                ; rb
    s_lshr_b32 s43, s41, 1
    s_lshl_b32 s43, s43, 2
    s_lshr_b32 s44, s42, 3
    s_add_u32 s35, s43, s44                ; cgp
    s_mul_i32 s45, s35, 52
    s_lshr_b32 s45, s45, 8                 ; cgp/5
    s_add_u32 s33, s45, 1
    s_mul_i32 s45, s45, 5
    s_sub_u32 s46, s35, s45                ; cbl (0..4)
    s_cmp_eq_u32 s35, 15
    s_cselect_b32 s33, 0, s33
    v_lshrrev_b32 v3, 3, v2
    v_mul_u32_u24 v3, 1280, v3
    v_and_b32 v13, 7, v2
    v_lshrrev_b32 v14, 4, v2               ; lane>>4
    v_xor_b32 v15, v13, v14
    v_lshl_add_u32 v10, v15, 4, v3         ; even u
    v_xor_b32 v15, 4, v15
    v_lshl_add_u32 v11, v15, 4, v3         ; odd u
    s_lshl_b32 s37, s34, 7                 ; rb*128
    """)
    if v5:
        A("""
        s_sub_u32 s41, s32, 4
        s_and_b32 s41, s41, 3
        s_lshl_b32 s42, s41, 12
        s_lshl_b32 s41, s41, 5
        """)
    else:
        A("""
        s_lshl_b32 s41, s32, 4                 ; w*16 rows
        s_lshl_b32 s42, s32, 11
        """)
    A(f"""
    s_add_u32 s37, s37, s41
    s_mul_i32 s37, s37, 1280
    s_lshr_b32 s57, s2, 3                  ; i
    s_and_b32 s78, s57, 7
    s_lshr_b32 s57, s57, 3
    s_lshl_b32 s57, s57, 1
    s_add_u32 s78, s78, s57
    s_mul_i32 s78, s78, {1 if ROT else 0}
    s_mov_b32 s56, 0
    s_mov_b32 s69, 0
    s_mov_b32 s58, s37
    s_mov_b32 s79, 0
    """)
    if ROT == 2:
        A("""
        s_cmp_ge_u32 s78, 10
        s_cselect_b32 s57, 10, 0
        s_sub_u32 s78, s78, s57
        s_mov_b32 s79, s78
        s_mov_b32 s69, s78
        s_lshl_b32 s57, s79, 7
        s_add_u32 s37, s58, s57
        """)
    A(f"""
    s_waitcnt lgkmcnt(0)
    """)
    if prof:
        A("s_memtime s[88:89]")
        A("s_waitcnt lgkmcnt(0)")
        A("s_sub_u32 s87, s88, s92")
    srd(A, 16, 4, X_BYTES)
    srd_ws(A, 24, 14, WS_RECORDS)
    srd(A, 60, 6, WQKV_BYTES)
    srd(A, 64, 8, W1_BYTES)
    if not fused:
        A(f"""
        s_cmp_eq_u32 s32, 7
        s_cbranch_scc0 Lk1_noflag
        s_lshl_b32 s41, s2, 2
        s_add_u32 s41, s41, {OFLAG_OFF}
        v_mov_b32 v3, 0
        s_mov_b64 exec, 1
        buffer_store_dword v3, v3, s[24:27], s41 offen
        s_mov_b64 exec, -1
    Lk1_noflag:
        """)
    if tlb:
        A("s_cmp_eq_u32 s32, 0")
        A("s_cbranch_scc0 Lk1_notouch")
        srd(A, 28, 10, B1_BYTES)
        A("v_mov_b32 v3, 0")
        MB2 = 2 << 20
        touch(A, [(16, "s37"), (60, 0), (60, MB2), (64, 0), (28, 0)] + [(24, k*MB2) for k in range(7)] + [(24, G_OFF)], 3, 1)
        A("Lk1_notouch:")
    A(f"""
    s_cmp_ge_u32 s32, 8
    s_cbranch_scc1 Lk1_H
    s_cmp_ge_u32 s32, 4
    s_cbranch_scc1 Lk1_R
    """)

    def adv_group(ws):
        if ROT == 2:
            g = ["s_add_u32 s79, s79, 1", "s_cmp_eq_u32 s79, 10", "s_cselect_b32 s79, 0, s79", "s_lshl_b32 s57, s79, 7", "s_add_u32 s37, s58, s57"]
        else:
            g = ["s_add_u32 s56, s56, 1", "s_add_u32 s57, s56, s78", "s_sub_u32 s57, s57, 2", "s_and_b32 s57, s57, 7", "s_add_u32 s57, s57, 2",
                 "s_cmp_lt_u32 s56, 2", "s_cselect_b32 s79, s56, s57", "s_lshl_b32 s57, s79, 7", "s_add_u32 s37, s58, s57"]
        if ws:
            g += [f"s_mul_i32 s57, s79, {ws}", "s_add_u32 s38, s59, s57"]
        return g

    def x_dma(slot_sgpr):
        g = []
        for j in range(4 if v5 else 2):
            g.append([f"s_add_u32 m0, {slot_sgpr}, {j*1024}", f"s_add_u32 s48, s37, {j*10240}",
                      f"buffer_load_dwordx4 v{10 + (j & 1)}, s[16:19], s48 offen lds"])
        return g

    def xfrag_addr(rowbase_expr_sgpr):
        A(f"""
        v_and_b32 v3, 31, v2                   ; token
        v_lshrrev_b32 v13, 5, v2               ; hf
        v_bfe_u32 v14, v2, 1, 3
        v_xor_b32 v14, v13, v14
        v_lshlrev_b32 v14, 4, v14
        v_lshl_add_u32 v14, v3, 7, v14
        v_add_u32 v56, {rowbase_expr_sgpr}, v14
        v_xor_b32 v57, 32, v56
        v_xor_b32 v58, 64, v56
        v_xor_b32 v59, 96, v56
        """)

    def set_slot(nw, sgpr):
        out = [f"v_add_u32 v{4+k}, {sgpr}, v{56+k}" for k in range(4)]
        out += [f"v_add_u32 v{8+k}, {sgpr}, v{60+k}" for k in range(nw)]
        return out

    def interleave(ms, others):
        n = len(ms)
        per = (len(others) + n - 1) // n
        k = 0
        for i, m in enumerate(ms):
            A(m)
            for grp in others[k:k+per]:
                for l in grp: A(l)
            k += per

    def kstep(ms, rd, extra, wait=True, skip_last=False):
        if wait: A("s_waitcnt lgkmcnt(0)")
        n = len(ms) - (1 if skip_last else 0)
        A(ms[0])
        for grp in rd:
            for l in grp: A(l)
        slots = max(1, n - 1)
        per = (len(extra) + slots - 1) // slots if extra else 0
        k = 0
        for i in range(1, n):
            A(ms[i])
            for grp in extra[k:k+per]:
                for l in grp: A(l)
            k += per
        for grp in extra[k:]:
            for l in grp: A(l)

    def loop(tag, nown, reads, mfmas, dma_groups, nw, unit=False):
        A(f"s_waitcnt vmcnt({nown})")
        A("s_barrier")
        if dbg2 and nw == 2: wl_stamp(A, 160, 4)
        if prof:
            A("s_memtime s[90:91]")
            A("s_waitcnt lgkmcnt(0)")
            A("s_sub_u32 s90, s90, s92")
        for l in set_slot(nw, "0"): A(l)
        for l in reads(0, 0): A(l)
        A(f"s_mov_b32 s50, {SLOT}")
        A.inloop = True
        g = dma_groups()
        adv = g[-1]; g = g[:-1]
        parts = [[], [], [], []]
        for i, grp in enumerate(g): parts[i * 4 // len(g)].append(grp)
        R = lambda ks, fs: [[l] for l in reads(ks, fs)]
        rot = [["s_mov_b32 s51, s50", f"s_add_u32 s50, s50, {SLOT}", f"s_cmp_ge_u32 s50, {3*SLOT}", "s_cselect_b32 s50, 0, s50",
                "s_add_u32 s52, s51, s42", "s_add_u32 s53, s51, s43"]]
        A(f"s_add_u32 s52, s42, {2*SLOT}")
        A(f"s_add_u32 s53, s43, {2*SLOT}")
        kstep(mfmas(0), R(1, 1), parts[0] + parts[1])
        kstep(mfmas(1), R(2, 0), parts[2])
        kstep(mfmas(0), R(3, 1), parts[3] + [adv] + [["s_mov_b32 s52, s42", "s_mov_b32 s53, s43", "s_mov_b32 s40, 0"]], skip_last=True)
        def section(dma, vm, final=False, ug=None):
            A(mfmas(0)[-1])
            A(f"s_waitcnt vmcnt({vm}) lgkmcnt(0)")
            A("s_barrier")
            if final:
                for m in mfmas(1): A(m)
                return
            rd = R(0, 0)
            rd[0] = set_slot(nw, "s50") + rd[0]
            P_ = parts if dma else [[], [], [], []]
            kstep(mfmas(1), rd, P_[0], wait=False)
            kstep(mfmas(0), R(1, 1), P_[1] + (ug or []))
            kstep(mfmas(1), R(2, 0), P_[2])
            tail = (P_[3] + [adv] if dma else []) + rot
            if dma: tail = tail + [["s_add_u32 s40, s40, 1", "s_cmp_lt_u32 s40, 7"]]
            kstep(mfmas(0), R(3, 1), tail, skip_last=True)
        A(f"L{tag}_loop:")
        section(True, nown)
        A(f"s_cbranch_scc1 L{tag}_loop")
        ug = []
        if unit:
            for j in range(4):
                ug.append([f"s_add_u32 m0, s76, {j*1024}", f"s_add_u32 s48, s100, {j*8*1280}", f"buffer_load_dwordx4 v62, s[96:99], s48 offen lds"])
            A("s_lshl_b32 s76, s32, 12")
            A("s_add_u32 s76, s76, s51")
        section(False, nown, ug=ug)
        section(False, 4 if unit else 0)
        section(False, 4 if unit else 0, final=True)
        A.inloop = False
        A("s_nop 15")
        if prof:
            A("s_memtime s[88:89]")
            A("s_waitcnt lgkmcnt(0)")
            A("s_sub_u32 s91, s88, s92")

    A(f"""
    s_cmp_eq_u32 s33, 0
    s_cbranch_scc1 Lk1_gate
    """)
    srd(A, 20, 6, WQKV_BYTES)
    A(f"""
    s_mov_b32 s36, 3840
    v_and_b32 v13, 15, v2
    v_lshlrev_b32 v15, 2, v14
    v_xor_b32 v13, v13, v15
    v_mul_u32_u24 v15, 3840, v14
    v_lshl_add_u32 v12, v13, 4, v15
    s_mul_i32 s38, s32, {16*3840}          ; w*16 k-rows
    s_lshl_b32 s41, s35, 8                 ; cgp*128*2
    s_add_u32 s59, s38, s41
    s_mul_i32 s57, s79, {64*3840}
    s_add_u32 s38, s59, s57
    s_lshl_b32 s43, s32, 12
    s_add_u32 s43, s43, {WQO}
    """)
    def p_dma():
        g = [] if v5 else x_dma("s52")
        for j in range(4):
            g.append([f"s_add_u32 m0, s53, {j*1024}",
                      (f"s_add_u32 s48, s38, {j*4*3840}"),
                      f"buffer_load_dwordx4 v12, s[20:23], s48 offen lds"])
        g.append(adv_group(64*3840))
        return g
    def stage_issue(st, dmaf):
        A(f"s_add_u32 s52, s42, {st*SLOT}")
        A(f"s_add_u32 s53, s43, {st*SLOT}")
        for grp in dmaf():
            for l in grp: A(l)
    if prof: wl_stamp(A, 63, 0)
    stage_issue(0, p_dma)
    if dbg2: wl_stamp(A, 160, 2)
    if prof: wl_stamp(A, 63, 1)
    A("s_barrier")
    if dbg2: wl_stamp(A, 160, 3)
    if prof: wl_stamp(A, 63, 2)
    LATE_P = True
    A("s_lshr_b32 s41, s32, 1")
    A("s_lshl_b32 s41, s41, 13")
    xfrag_addr("s41")
    A(f"""
    v_bfe_u32 v14, v2, 2, 2                ; r
    v_lshl_add_u32 v15, v13, 3, v14
    v_lshlrev_b32 v15, 8, v15
    v_bfe_u32 v3, v2, 4, 1
    v_lshl_add_u32 v15, v3, 5, v15
    v_and_b32 v3, 3, v2
    v_lshl_add_u32 v15, v3, 3, v15
    v_add_u32 v15, {WQO}, v15
    s_and_b32 s41, s32, 1
    s_lshl_b32 s41, s41, 1
    v_xor_b32 v3, s41, v14                 ; ct ^ r
    v_lshl_add_u32 v60, v3, 6, v15
    v_xor_b32 v3, 1, v3
    v_lshl_add_u32 v61, v3, 6, v15
    """)
    if prof: wl_stamp(A, 63, 3)
    stage_issue(1, p_dma)
    if prof: wl_stamp(A, 63, 4)
    for i in range(64): A(f"v_mov_b32 v{64+i}, 0")
    def p_reads(ks, fs):
        b = 16 + 16*fs
        return [
            f"ds_read_b128 v[{b}:{b+3}], v{4+ks}",
            f"ds_read_b64_tr_b16 v[{b+8}:{b+9}], v8 offset:{ks*4096}",
            f"ds_read_b64_tr_b16 v[{b+10}:{b+11}], v8 offset:{ks*4096 + 1024}",
            f"ds_read_b128 v[{b+4}:{b+7}], v{4+ks} offset:4096",
            f"ds_read_b64_tr_b16 v[{b+12}:{b+13}], v9 offset:{ks*4096}",
            f"ds_read_b64_tr_b16 v[{b+14}:{b+15}], v9 offset:{ks*4096 + 1024}",
        ]
    def p_mfmas(normal):
        def f(fs):
            b = 16 + 16*fs
            out = []
            for rt in range(2):
                for ct in range(2):
                    d = 64 + 16*(2*rt + ct)
                    x = f"v[{b+4*rt}:{b+4*rt+3}]"; w = f"v[{b+8+4*ct}:{b+8+4*ct+3}]"
                    a_, b_ = (x, w) if normal else (w, x)
                    out.append(f"v_mfma_f32_32x32x16_bf16 v[{d}:{d+15}], {a_}, {b_}, v[{d}:{d+15}]")
            return out
        return f
    A(f"""
    s_lshr_b32 s41, s32, 1
    s_lshl_b32 s41, s41, 1
    s_lshl_b32 s44, s34, 2
    s_add_u32 s44, s44, s41                ; T (rt'=0)
    s_cmp_eq_u32 s33, 3
    s_cbranch_scc1 Lk1_mainV
    s_cmp_eq_u32 s33, 1
    s_cbranch_scc0 Lk1_isK
    s_mul_i32 s68, s44, 1280
    s_add_u32 s68, s68, {QF_OFF}
    s_mov_b32 s49, {HSQ}
    s_mov_b32 s70, {f32bits(QSCALE):#x}
    s_branch Lk1_qk
Lk1_isK:
    s_lshr_b32 s68, s44, 3
    s_mul_i32 s68, s68, {CH}
    s_and_b32 s41, s44, 7
    s_mul_i32 s41, s41, 1280
    s_add_u32 s68, s68, s41
    s_add_u32 s68, s68, {KV_OFF}
    s_mov_b32 s49, {HSK}
    s_mov_b32 s70, 1.0
Lk1_qk:
    s_mov_b32 s71, s70
    s_and_b32 s41, s32, 1
    s_lshl_b32 s41, s41, 4
    s_lshl_b32 s55, s46, 5
    s_add_u32 s55, s55, s41                ; G0 base
    v_lshrrev_b32 v13, 5, v2               ; hf
    v_and_b32 v3, 31, v2                   ; token
    v_lshlrev_b32 v14, 4, v3
    v_lshlrev_b32 v15, 3, v3
    v_add_u32 v15, 1024, v15
    """)
    for sl in range(8):
        d = 48 + sl
        A(f"""
        v_add_u32 v16, {2*sl}, v13
        v_add_u32 v16, s55, v16                ; G
        v_mul_u32_u24 v17, 205, v16
        v_lshrrev_b32 v17, 10, v17             ; h = G/5
        v_mul_u32_u24 v18, 5, v17
        v_sub_u32 v18, v16, v18                ; j
        v_mul_lo_u32 v17, v17, s49             ; h*HS
        v_and_b32 v19, 1, v18
        v_lshlrev_b32 v19, 9, v19              ; (j&1)*512
        v_add_u32 v19, v19, v14
        v_cmp_eq_u32 vcc, 4, v18
        v_cmp_gt_u32 s[72:73], 2, v18
        s_nop 0
        v_cndmask_b32 v19, v19, v15, vcc
        """)
        if sl == 0:
            A(f"""
            v_mov_b32 v20, 10
            v_cndmask_b32 v20, v20, 2, vcc
            v_cndmask_b32 v20, v20, 1, s[72:73]
            """)
        else:
            A(f"""
            v_mov_b32 v20, 0
            v_cndmask_b32 v20, v20, 2, vcc
            v_cndmask_b32 v20, v20, {1 if sl < 7 else 2}, s[72:73]
            """)
        A(f"""
        v_add_u32 v19, v19, v17
        v_add_u32 v{d}, v19, v20
        """)
    loop("k1T", 4 if v5 else 6, p_reads, p_mfmas(False), p_dma, 2)
    if fused: A("s_setprio 3")
    if mprof: wl_stamp(A, 160, 0)
    def pack(sl):
        for rt in range(2):
            r = 64 + 16*(2*rt + (sl >> 2)) + 4*(sl & 3)
            t = 16 + 16*rt + 2*sl
            A(f"""
            v_pk_mul_f32 v[{r}:{r+1}], v[{r}:{r+1}], s[70:71]
            v_pk_mul_f32 v[{r+2}:{r+3}], v[{r+2}:{r+3}], s[70:71]
            v_cvt_pk_bf16_f32 v{t}, v{r}, v{r+1}
            v_cvt_pk_bf16_f32 v{t+1}, v{r+2}, v{r+3}
            """)
    pack(0)
    for sl in range(8):
        if sl < 7: pack(sl + 1)
        lab = A.label("qk")
        A(f"""
        v_and_b32 v56, 3, v{48+sl}
        v_and_b32 v57, -4, v{48+sl}
        """)
        if sl < 7:
            A(f"""
            v_cmp_eq_u32 vcc, 1, v56
            s_nop 1
            s_mov_b64 exec, vcc
            s_cbranch_execz {lab}_a
            buffer_store_dwordx4 v[{16+2*sl}:{19+2*sl}], v57, s[24:27], s68 offen{SCQ}
            buffer_store_dwordx4 v[{32+2*sl}:{35+2*sl}], v57, s[24:27], s68 offen offset:1280{SCQ}
            {lab}_a:
            s_mov_b64 exec, -1
            """)
        A(f"""
        v_cmp_eq_u32 vcc, 2, v56
        s_nop 1
        s_mov_b64 exec, vcc
        s_cbranch_execz {lab}_b
        buffer_store_dwordx2 v[{16+2*sl}:{17+2*sl}], v57, s[24:27], s68 offen{SCQ}
        buffer_store_dwordx2 v[{32+2*sl}:{33+2*sl}], v57, s[24:27], s68 offen offset:1280{SCQ}
        {lab}_b:
        s_mov_b64 exec, -1
        """)
    A("s_branch Lk1_end")
    A("Lk1_mainV:")
    A(f"""
    s_lshr_b32 s68, s44, 3
    s_mul_i32 s68, s68, {CH}
    s_and_b32 s41, s44, 7
    s_mul_i32 s41, s41, {VT}
    s_add_u32 s68, s68, s41
    s_add_u32 s68, s68, {KV_OFF + VPART}
    s_and_b32 s41, s32, 1
    s_lshl_b32 s41, s41, 6
    s_lshl_b32 s55, s46, 7
    s_add_u32 s55, s55, s41
    v_and_b32 v3, 31, v2
    v_lshrrev_b32 v13, 5, v2               ; hf
    v_mul_u32_u24 v14, {VH}, v13
    s_mov_b32 s49, {HSK}
    """)
    for ct in range(2):
        A(f"""
        v_add_u32 v16, {32*ct}, v3
        v_add_u32 v16, s55, v16                ; c
        v_mul_u32_u24 v17, 3277, v16
        v_lshrrev_b32 v17, 16, v17             ; h
        v_mul_u32_u24 v18, 20, v17
        v_sub_u32 v18, v16, v18                ; dh
        v_mul_lo_u32 v17, v17, s49
        v_cmp_eq_u32 s[{72+2*ct}:{73+2*ct}], 0, v18
        """)
        vslot(A, 18, 20, 21)
        A(f"""
        v_lshl_add_u32 v19, v20, 4, v17
        v_add_u32 v{48+ct}, v19, v14
        """)
    loop("k1N", 4 if v5 else 6, p_reads, p_mfmas(True), p_dma, 2)
    if fused: A("s_setprio 3")
    if mprof: wl_stamp(A, 160, 0)
    for ct in range(2):
        for rt in range(2):
            for j in range(2):
                r = 64 + 16*(2*rt + ct) + 8*j
                t = 32 + 4*(2*rt + j)
                for m in range(4):
                    A(f"v_cvt_pk_bf16_f32 v{t+m}, v{r+2*m}, v{r+2*m+1}")
                A(f"buffer_store_dwordx4 v[{t}:{t+3}], v{48+ct}, s[24:27], s68 offen offset:{rt*VT + j*2*VH}{SC}")
    A("s_branch Lk1_end")

    A("Lk1_gate:")
    srd(A, 28, 12, GW_BYTES)
    A(f"""
    s_mul_i32 s41, s32, 320
    s_add_u32 m0, s41, {GATE_LDS}
    v_lshlrev_b32 v12, 4, v2
    v_cmp_gt_u32 vcc, 20, v2
    s_and_saveexec_b64 s[76:77], vcc
    buffer_load_dwordx4 v12, s[28:31], s41 offen lds
    s_mov_b64 exec, s[76:77]
    """)
    def g_dma():
        if v5: return []
        g = x_dma("s52")
        g.append(adv_group(0))
        return g
    for st in range(2):
        A(f"s_add_u32 s52, s42, {st*SLOT}")
        for grp in g_dma():
            for l in grp: A(l)
        if st == 0: A("s_barrier")
    A("s_lshl_b32 s41, s32, 12")
    xfrag_addr("s41")
    A(f"""
    v_lshlrev_b32 v9, 4, v13               ; hf*16
    v_add_u32 v62, {GATE_LDS}, v9
    s_lshl_b32 s57, s69, 7
    v_add_u32 v9, s57, v62
    v_mov_b32 v60, 0
    s_mov_b32 s43, 0
    """)
    for i in range(16): A(f"v_mov_b32 v{64+i}, 0")
    def g_reads(ks, fs):
        b = 16 + 16*fs
        out = [f"ds_read_b128 v[{b}:{b+3}], v{4+ks}", f"ds_read_b128 v[{b+4}:{b+7}], v9 offset:{ks*32}"]
        if ks == 3:
            if ROT == 2:
                out += ["s_add_u32 s69, s69, 1", "s_cmp_eq_u32 s69, 10", "s_cselect_b32 s69, 0, s69", "s_lshl_b32 s57, s69, 7", "v_add_u32 v9, s57, v62"]
            else:
                out += ["s_add_u32 s69, s69, 1", "s_add_u32 s57, s69, s78", "s_sub_u32 s57, s57, 2", "s_and_b32 s57, s57, 7", "s_add_u32 s57, s57, 2",
                        "s_cmp_lt_u32 s69, 2", "s_cselect_b32 s57, s69, s57", "s_lshl_b32 s57, s57, 7", "v_add_u32 v9, s57, v62"]
        return out
    def g_mfmas(fs):
        b = 16 + 16*fs
        return [f"v_mfma_f32_32x32x16_bf16 v[64:79], v[{b+4}:{b+7}], v[{b}:{b+3}], v[64:79]"]
    A(f"s_waitcnt vmcnt({0 if v5 else 2})")
    A("s_barrier")
    A(f"s_add_u32 s52, s42, {2*SLOT}")
    for grp in g_dma():
        for l in grp: A(l)
    if prof:
        A("s_mov_b32 s90, 0")
    for l in set_slot(0, "0"): A(l)
    for l in g_reads(0, 0): A(l)
    A("s_mov_b32 s40, 0")
    A(f"s_mov_b32 s50, {SLOT}")
    A("s_mov_b32 s51, 0")
    A("Lk1g_loop:")
    for ks in range(3):
        fs = ks & 1
        for l in g_reads(ks + 1, fs ^ 1): A(l)
        A("s_waitcnt lgkmcnt(2)")
        for l in g_mfmas(fs): A(l)
    A(f"""
    s_cmp_lt_u32 s40, 8
    s_cbranch_scc1 Lk1g_a
    s_waitcnt vmcnt(0)
Lk1g_a:
    s_waitcnt vmcnt(2) lgkmcnt(0)
    s_barrier
    """)
    for l in set_slot(0, "s50"): A(l)
    for l in g_mfmas(1): A(l)
    for l in g_reads(0, 0): A(l)
    A(f"""
    s_cmp_lt_u32 s40, 7
    s_cbranch_scc0 Lk1g_b
    s_add_u32 s52, s51, s42
    """)
    for grp in g_dma():
        for l in grp: A(l)
    A(f"""
Lk1g_b:
    s_mov_b32 s51, s50
    s_add_u32 s50, s50, {SLOT}
    s_cmp_ge_u32 s50, {3*SLOT}
    s_cselect_b32 s50, 0, s50
    s_add_u32 s40, s40, 1
    s_cmp_lt_u32 s40, 10
    s_cbranch_scc1 Lk1g_loop
    s_waitcnt lgkmcnt(0)
    s_nop 15
    v_mul_f32 v16, {f32bits(-LOG2E):#x}, v64
    v_exp_f32 v16, v16
    s_nop 0
    v_add_f32 v16, 1.0, v16
    v_rcp_f32 v16, v16
    s_lshl_b32 s44, s34, 2
    s_add_u32 s44, s44, s32                ; T
    s_lshl_b32 s44, s44, 7                 ; *32*4 bytes
    s_add_u32 s44, s44, {G_OFF}
    v_lshlrev_b32 v17, 2, v2
    v_cmp_gt_u32 vcc, 32, v2
    s_and_saveexec_b64 s[76:77], vcc
    buffer_store_dword v16, v17, s[24:27], s44 offen{SC}
    s_mov_b64 exec, s[76:77]
    s_branch Lk1_end
    """)

    A("Lk1_R:")
    if prof:
        A("v_writelane_b32 v61, s87, 8")
        wl_stamp(A, 61, 9)
    srd(A, 20, 8, W1_BYTES)
    srd(A, 28, 10, B1_BYTES)
    A(f"""
    s_sub_u32 s47, s32, 4
    s_mul_i32 s41, s35, 192
    v_lshrrev_b32 v3, 5, v2
    v_lshlrev_b32 v3, 4, v3
    """)
    if prof: wl_stamp(A, 61, 12)
    A(f"""
    buffer_load_dwordx4 v[112:115], v3, s[28:31], s41 offen
    """)
    if prof: wl_stamp(A, 61, 13)
    A(f"""
    buffer_load_dwordx4 v[116:119], v3, s[28:31], s41 offen offset:32
    buffer_load_dwordx4 v[120:123], v3, s[28:31], s41 offen offset:64
    buffer_load_dwordx4 v[124:127], v3, s[28:31], s41 offen offset:96
    buffer_load_dwordx4 v[48:51], v3, s[28:31], s41 offen offset:128
    buffer_load_dwordx4 v[52:55], v3, s[28:31], s41 offen offset:160
    """)
    if prof: wl_stamp(A, 61, 14)
    for j, reg in enumerate((12, 62, 63)):
        A(f"""
        s_mul_i32 s41, s47, 192
        s_add_u32 s41, s41, {64*j}
        v_add_u32 v13, s41, v2                 ; t
        v_mul_u32_u24 v14, 5462, v13
        v_lshrrev_b32 v14, 16, v14             ; t/12
        v_mul_u32_u24 v15, 12, v14
        v_sub_u32 v15, v13, v15
        v_mul_u32_u24 v14, 3072, v14
        v_lshl_add_u32 v{reg}, v15, 4, v14
        """)
    A(f"""
    s_mul_i32 s59, s35, 192
    s_mul_i32 s57, s79, {64*3072}
    s_add_u32 s38, s59, s57
    s_mul_i32 s43, s47, 3072
    s_add_u32 s43, s43, {W1O}
    """)
    if not v5:
        def r_dma():
            g = x_dma("s52")
            for j, reg in enumerate((12, 62, 63)):
                g.append([f"s_add_u32 m0, s53, {j*1024}", "s_nop 0",
                          f"buffer_load_dwordx4 v{reg}, s[20:23], s38 offen lds"])
            g.append(adv_group(64*3072))
            return g
        def r_stage(st):
            A(f"s_add_u32 s52, s42, {st*SLOT}")
            A(f"s_add_u32 s53, s43, {st*SLOT}")
            for grp in r_dma():
                for l in grp: A(l)
        if prof: wl_stamp(A, 61, 0)
        r_stage(0)
        if prof: wl_stamp(A, 61, 1)
        A("s_barrier")
        A("s_lshl_b32 s41, s47, 12")
        xfrag_addr("s41")
        A(f"""
        v_bfe_u32 v14, v2, 2, 2
        v_lshl_add_u32 v15, v13, 3, v14
        v_mul_u32_u24 v15, 192, v15
        v_bfe_u32 v3, v2, 4, 1
        v_lshl_add_u32 v15, v3, 5, v15
        v_and_b32 v3, 3, v2
        v_lshrrev_b32 v1, 1, v3
        v_and_b32 v3, 1, v3
        v_lshl_or_b32 v3, v3, 1, v1
        v_lshl_add_u32 v15, v3, 3, v15
        v_add_u32 v60, {W1O}, v15
        """)
        if prof: wl_stamp(A, 61, 2)
        r_stage(1)
        if prof: wl_stamp(A, 61, 3)
        A("s_waitcnt vmcnt(10)")
        if prof:
            wl_stamp(A, 61, 4)
        bsrc = [112, 116, 120, 124, 48, 52]
        for ct in range(3):
            for half in range(2):
                for m in range(4):
                    src = bsrc[2*ct + half] + m
                    d = 64 + 16*ct + 8*half + 2*m
                    A(f"v_lshlrev_b32 v{d}, 16, v{src}")
                    A(f"v_and_b32 v{d+1}, 0xffff0000, v{src}")
        def r_reads(ks, fs):
            b = 16 + 16*fs
            out = [f"ds_read_b128 v[{b}:{b+3}], v{4+ks}"]
            for ct in range(3):
                out.append(f"ds_read_b64_tr_b16 v[{b+4+4*ct}:{b+5+4*ct}], v8 offset:{ks*16*192 + ct*64}")
                out.append(f"ds_read_b64_tr_b16 v[{b+6+4*ct}:{b+7+4*ct}], v8 offset:{ks*16*192 + 4*192 + ct*64}")
            return out
        def r_mfmas(fs):
            b = 16 + 16*fs
            return [f"v_mfma_f32_32x32x16_bf16 v[{64+16*ct}:{64+16*ct+15}], v[{b+4+4*ct}:{b+7+4*ct}], v[{b}:{b+3}], v[{64+16*ct}:{64+16*ct+15}]" for ct in range(3)]
        loop("k1R", 5, r_reads, r_mfmas, r_dma, 1)
    else:
        def l_stage(dest):
            for grp in x_dma(dest):
                for l in grp: A(l)
            for l in adv_group(0): A(l)
        A("s_mov_b32 s52, s42")
        l_stage("s52")
        A("s_barrier")
        A(f"s_add_u32 s52, s42, {SLOT}")
        l_stage("s52")
        A("s_waitcnt vmcnt(8)")
        bsrc = [112, 116, 120, 124, 48, 52]
        for ct in range(3):
            for half in range(2):
                for m in range(4):
                    src = bsrc[2*ct + half] + m
                    d = 64 + 16*ct + 8*half + 2*m
                    A(f"v_lshlrev_b32 v{d}, 16, v{src}")
                    A(f"v_and_b32 v{d+1}, 0xffff0000, v{src}")
        A("s_waitcnt vmcnt(4)")
        A("s_barrier")
        A(f"s_add_u32 s52, s42, {2*SLOT}")
        l_stage("s52")
        for st in range(10):
            A(f"s_waitcnt vmcnt({4 if st <= 7 else 0})")
            A("s_barrier")
            if st < 7:
                A(f"s_add_u32 s52, s42, {(st % 3)*SLOT}")
                l_stage("s52")
        FS = 28672; FB = 3*24576
        if mprof == 1: stamp(A, 11)
        A(f"""
        s_lshl_b32 s41, s47, 12
        """)
        xfrag_addr("s41")
        A(f"""
        v_bfe_u32 v14, v2, 2, 2
        v_lshl_add_u32 v15, v13, 3, v14
        v_mul_u32_u24 v15, 192, v15
        v_bfe_u32 v3, v2, 4, 1
        v_lshl_add_u32 v15, v3, 5, v15
        v_and_b32 v3, 3, v2
        v_lshrrev_b32 v1, 1, v3
        v_and_b32 v3, 1, v3
        v_lshl_or_b32 v3, v3, 1, v1
        v_lshl_add_u32 v15, v3, 3, v15
        v_add_u32 v60, 16384, v15
        s_mov_b32 s37, s58
        s_mov_b32 s38, s59                     ; W1 soffset
        s_lshl_b32 s42, s47, 12
        s_add_u32 s42, s42, {FB}
        s_mul_i32 s43, s47, 3072
        s_add_u32 s43, s43, {FB + 16384}
        v_and_b32 v61, 3, v2
        v_lshlrev_b32 v61, 2, v61
        v_add_u32 v61, {FL + LF_F1P}, v61
        s_lshl_b32 s41, s47, 2
        s_add_u32 s41, s41, {FL + LF_F1P}
        v_mov_b32 v1, s41
        """)
        def f_groups(slot):
            g = []
            for j in range(4):
                g.append([f"s_add_u32 m0, s42, {slot*FS + j*1024}", f"s_add_u32 s48, s37, {j*10240}",
                          f"buffer_load_dwordx4 v{10 + (j & 1)}, s[16:19], s48 offen lds"])
            for j, reg in enumerate((12, 62, 63)):
                g.append([f"s_add_u32 m0, s43, {slot*FS + j*1024}", "s_nop 0",
                          f"buffer_load_dwordx4 v{reg}, s[20:23], s38 offen lds"])
            g.append(["s_add_u32 s37, s37, 128", f"s_add_u32 s38, s38, {64*3072}"])
            return g
        for st in range(2):
            for grp in f_groups(st):
                for l in grp: A(l)
        def r_reads(ks, fs):
            b = 16 + 16*fs
            out = [f"ds_read_b128 v[{b}:{b+3}], v{4+ks}"]
            for ct in range(3):
                out.append(f"ds_read_b64_tr_b16 v[{b+4+4*ct}:{b+5+4*ct}], v8 offset:{ks*16*192 + ct*64}")
                out.append(f"ds_read_b64_tr_b16 v[{b+6+4*ct}:{b+7+4*ct}], v8 offset:{ks*16*192 + 4*192 + ct*64}")
            return out
        def r_mfmas(fs):
            b = 16 + 16*fs
            return [f"v_mfma_f32_32x32x16_bf16 v[{64+16*ct}:{64+16*ct+15}], v[{b+4+4*ct}:{b+7+4*ct}], v[{b}:{b+3}], v[{64+16*ct}:{64+16*ct+15}]" for ct in range(3)]
        for st in range(10):
            lab = A.label("f1s")
            A(f"""
            s_waitcnt vmcnt({7 if st < 9 else 0}) lgkmcnt(0)
            v_mov_b32 v9, {st + 1}
            ds_write_b32 v1, v9
            s_mov_b32 s99, 0x100000
            {lab}:
            ds_read_b32 v9, v61
            s_waitcnt lgkmcnt(0)
            v_cmp_le_u32 vcc, {st + 1}, v9
            s_cmp_eq_u64 vcc, exec
            s_cbranch_scc1 {lab}_ok
            s_sub_u32 s99, s99, 1
            s_cbranch_scc0 {lab}
            {lab}_ok:
            """)
            if mprof == 1: wl_stamp(A, 127, st)
            for l in set_slot(1, str(FB + (st % 3)*FS)): A(l)
            for l in r_reads(0, 0): A(l)
            g = f_groups((st + 2) % 3) if st + 2 < 10 else []
            per = (len(g) + 2) // 3
            for ks in range(3):
                kstep(r_mfmas(ks & 1), [[l] for l in r_reads(ks + 1, (ks & 1) ^ 1)], g[ks*per:(ks+1)*per])
            kstep(r_mfmas(1), [], [])
        A("s_nop 15")
        if mprof == 1:
            stamp(A, 12)
            wl_dump(A, 127, 0, 24, 85, 9)
    if not fused: A("s_setprio 2")
    A(f"""
    s_lshl_b32 s44, s34, 2
    s_add_u32 s44, s44, s47                ; T
    s_mul_i32 s45, s44, {2*48*1024}
    s_mul_i32 s41, s35, {3*1024}
    s_add_u32 s45, s45, s41
    s_add_u32 s45, s45, {ACT_OFF}
    v_bfe_u32 v13, v2, 4, 1                ; token>>4
    v_mul_u32_u24 v13, {48*1024}, v13
    v_lshrrev_b32 v14, 5, v2               ; hf
    v_lshl_add_u32 v13, v14, 8, v13
    v_and_b32 v14, 15, v2
    v_lshl_add_u32 v13, v14, 4, v13
    s_mov_b32 s54, {f32bits(LOG2E):#x}
    s_mov_b32 s55, s54
    v_mov_b32 v2, 2.0
    v_mov_b32 v3, 2.0
    """)
    def mish8(r, t0):
        for p in range(4):
            A(f"v_pk_mul_f32 v[{t0+2*p}:{t0+2*p+1}], v[{r+2*p}:{r+2*p+1}], s[54:55]")
        for i in range(8):
            A(f"v_exp_f32 v{t0+i}, v{t0+i}")
        for p in range(4):
            A(f"v_pk_add_f32 v[{t0+8+2*p}:{t0+8+2*p+1}], v[{t0+2*p}:{t0+2*p+1}], v[2:3]")
        for p in range(4):
            A(f"v_pk_fma_f32 v[{t0+2*p}:{t0+2*p+1}], v[{t0+2*p}:{t0+2*p+1}], v[{t0+8+2*p}:{t0+8+2*p+1}], v[2:3]")
        for i in range(8):
            A(f"v_rcp_f32 v{t0+i}, v{t0+i}")
        A("s_nop 0")
        for p in range(4):
            A(f"v_pk_fma_f32 v[{t0+2*p}:{t0+2*p+1}], v[{t0+2*p}:{t0+2*p+1}], -2.0, 1.0 op_sel_hi:[1,0,0]")
        for p in range(4):
            A(f"v_pk_mul_f32 v[{r+2*p}:{r+2*p+1}], v[{r+2*p}:{r+2*p+1}], v[{t0+2*p}:{t0+2*p+1}]")
    k = 0
    for ct in range(3):
        for j in range(2):
            r = 64 + 16*ct + 8*j
            mish8(r, 16)
            t = 32 + 4*k; k += 1
            for m in range(4):
                A(f"v_cvt_pk_bf16_f32 v{t+m}, v{r+2*m}, v{r+2*m+1}")
            if not fused:
                A(f"buffer_store_dwordx4 v[{t}:{t+3}], v13, s[24:27], s45 offen offset:{ct*1024 + j*512}{SC}")
    if fused:
        if mprof == 1: stamp(A, 13)
        if rtrig == 2: lds_spin(A, FL + LF_FULL, 1, 8, tmp=(16, 17), sleep=4)
        elif rtrig == 1: lds_spin(A, FL + LF_GO, 1, 1, tmp=(16, 17), sleep=4)
        else: lds_spin(A, FL + LF_PD, 1, 4, tmp=(16, 17), sleep=4)
        k = 0
        for ct in range(3):
            for j in range(2):
                t = 32 + 4*k; k += 1
                A(f"buffer_store_dwordx4 v[{t}:{t+3}], v13, s[24:27], s45 offen offset:{ct*1024 + j*512}{SC}")
    A("s_branch Lk1_endR" if fused else "s_branch Lk1_end")
    A("Lk1_H:")
    gen_helpers(A, FL, pf, mprof, hprio, pfa)
    if fused:
        A("Lk1_endR:")
        A("s_waitcnt vmcnt(0)")
        A(f"s_sub_u32 s41, s32, 4")
        A("s_lshl_b32 s41, s41, 2")
        A(f"s_add_u32 s41, s41, {FL + LF_RD}")
        A("v_mov_b32 v4, s41")
        A("v_mov_b32 v5, 1")
        A("ds_write_b32 v4, v5")
        A("s_branch Lshadow_entry")
        A("Lk1_end:")
        if mprof: wl_stamp(A, 160, 1)
        A("s_waitcnt vmcnt(0)")
        if mprof and not dbg2: wl_stamp(A, 160, 2)
        A("s_lshl_b32 s41, s32, 2")
        A(f"s_add_u32 s41, s41, {FL + LF_PD}")
        A("v_mov_b32 v4, s41")
        A("v_mov_b32 v5, 1")
        A("ds_write_b32 v4, v5")
        A("s_branch Lattn_entry")
        A("Lk1_exit:")
        A("s_endpgm")
        return A.text()
    A("Lk1_end:")
    if prof:
        A("s_memtime s[88:89]")
        A("s_waitcnt lgkmcnt(0)")
        A("s_sub_u32 s88, s88, s92")
        A("s_cmp_ge_u32 s32, 4")
        A("s_cbranch_scc1 Lk1_dbgR")
        A("v_mov_b32 v61, v63")
        A("Lk1_dbgR:")
        A("v_writelane_b32 v61, s88, 11")
        A("v_writelane_b32 v61, s91, 10")
        A(f"""
        s_lshl_b32 s97, s2, 4
        s_add_u32 s97, s97, s32
        s_lshl_b32 s97, s97, 6
        s_add_u32 s97, s97, {DBG_OFF + 0x100000}
        v_and_b32 v4, 63, v0
        v_lshlrev_b32 v4, 2, v4
        v_cmp_gt_u32 vcc, 16, v0
        v_and_b32 v5, 63, v0
        v_cmp_gt_u32 vcc, 16, v5
        s_and_saveexec_b64 s[56:57], vcc
        buffer_store_dword v61, v4, s[24:27], s97 offen
        s_mov_b64 exec, s[56:57]
        """)
        prof_end(A, 0, 24, 32, tmpv=(4, 5, 6, 7, 8), extra="s90")
    if tl: tl2_record(A, 0, 24, 32)
    A("Lk1_exit:")
    A("s_endpgm")
    return A.text(), kdesc(NAME, 128), f"; @launch kernel={NAME} grid=(256,1,1) block=(576,1,1) lds={LDS_BYTES}"
```

```python
from asm import *
from common import *
from k2_shadow import gen_shadow

NAME = "k2_kernel"
SLOT = 24576
SH_BASE = 3 * SLOT
FLAG = MEGA_FLAG
LDS_BYTES = FLAG + 256

X_ = [16, 48]
P_ = 80
O_ = 88
C_ = 104
QM = 120
QT = 124
KF = [126, 130]
KT = 134
V0 = 136
V1 = 140
FL = 144

def mf(d, a, b, c):
    cs = "0" if c is None else f"v[{c}:{c+15}]"
    return f"v_mfma_f32_32x32x16_bf16 v[{d}:{d+15}], v[{a}:{a+3}], v[{b}:{b+3}], {cs}"
def mf2b(d, a, b, c):
    cs = "0" if c is None else f"v[{c}:{c+31}]"
    return f"v_mfma_f32_32x32x4_2b_bf16 v[{d}:{d+31}], v[{a}:{a+1}], v[{b}:{b+1}], {cs}"

def vslot(A, row, dst, t1):
    A(f"""
    v_mov_b32 v{dst}, v{row}
    v_add_u32 v{t1}, 12, v{row}
    v_cmp_lt_u32 vcc, 3, v{row}
    s_nop 1
    v_cndmask_b32 v{dst}, v{dst}, v{t1}, vcc
    v_subrev_u32 v{t1}, 1, v{row}
    v_cmp_lt_u32 vcc, 9, v{row}
    s_nop 1
    v_cndmask_b32 v{dst}, v{dst}, v{t1}, vcc
    v_subrev_u32 v{t1}, 8, v{row}
    v_cmp_lt_u32 vcc, 11, v{row}
    s_nop 1
    v_cndmask_b32 v{dst}, v{dst}, v{t1}, vcc
    v_subrev_u32 v{t1}, 5, v{row}
    v_cmp_lt_u32 vcc, 15, v{row}
    s_nop 1
    v_cndmask_b32 v{dst}, v{dst}, v{t1}, vcc
    v_cmp_lt_u32 vcc, 19, v{row}
    s_nop 1
    v_cndmask_b32 v{dst}, v{dst}, 8, vcc
    v_cmp_lt_u32 vcc, 20, v{row}
    s_nop 1
    v_cndmask_b32 v{dst}, v{dst}, 15, vcc
    """)

def gen_k2(prof=False, exp_mode=0, shadow=True, shprio=0, pa=1, pb=2, tl=0, nofb=0, lstamp=0, desc=3, na=11, fused=False, mprof=0, dbg2=0, oft=0, outf=0, tm=0):
    KT4 = 152; QA4 = 156; QB4 = 164
    A = Asm(10000)
    if not fused:
        A(khead(NAME))
        A(f"""
        s_cmp_ge_u32 s2, 256
        s_cbranch_scc1 Lk2_end
        """)
        if prof: prof_start(A)
        if tl: tl_start(A, 1)
    def ids():
        A(f"""
        s_load_dwordx2 s[4:5], s[0:1], 80
        v_lshrrev_b32 v9, 6, v0
        v_and_b32 v1, 63, v0                   ; lane
        s_and_b32 s20, s2, 7
        v_readfirstlane_b32 s12, v9            ; wave
        s_lshr_b32 s21, s2, 3
        s_and_b32 s22, s21, 3
        s_lshl_b32 s13, s20, 2
        s_add_u32 s13, s13, s22                ; h
        s_lshr_b32 s14, s21, 2                 ; qb
        s_lshl_b32 s15, s14, 3
        s_add_u32 s15, s15, s12                ; T
        """)
    if fused:
        A("Lshadow_entry:")
        ids()
        A("s_branch Lk2_shadow")
        A("Lattn_entry:")
        A("s_setprio 0")
        ids()
    else:
        ids()
        A("s_cmp_ge_u32 s12, 8")
        A("s_cbranch_scc1 Lk2_shadow")
    A(f"""
    s_mul_i32 s16, s13, {HSK}
    s_add_u32 s16, s16, {KV_OFF}
    s_mul_i32 s23, s13, {HSQ}
    s_mul_i32 s24, s15, 1280
    s_add_u32 s23, s23, s24
    s_add_u32 s23, s23, {QF_OFF}
    v_lshlrev_b32 v8, 4, v1                ; lane*16
    v_and_b32 v9, 31, v1
    v_lshrrev_b32 v10, 5, v1               ; hf
    v_lshlrev_b32 v11, 3, v9
    v_add_u32 v11, 1024, v11               ; 1024 + token*8
    s_mul_i32 s25, s12, 3072
    s_add_u32 s17, s16, s25
    s_waitcnt lgkmcnt(0)
    """)
    srd_ws(A, 8, 4, WS_RECORDS)
    def dma_groups(slot_sgpr, slot_imm=0):
        g = []
        for j in range(3):
            m0 = f"s_add_u32 m0, {slot_sgpr}, {slot_imm + j*1024}"
            g.append([m0, f"s_add_u32 s26, s17, {j*1024}", f"buffer_load_dwordx4 v8, s[8:11], s26 offen lds"])
        g.append([f"s_add_u32 s17, s17, {CH}"])
        return g
    def first_loads():
        for grp in dma_groups("s25", 0):
            for l in grp: A(l)
        A(f"""
        buffer_load_dwordx4 v[{QM}:{QM+3}], v8, s[8:11], s23 offen
        buffer_load_dwordx2 v[{QT}:{QT+1}], v11, s[8:11], s23 offen
        """)
        if not fused:
            for grp in dma_groups("s25", SLOT):
                for l in grp: A(l)
    if not fused: first_loads()
    A(f"""
    v_cmp_gt_u32 s[28:29], 32, v1          ; lanes < 32
    v_mov_b32 v5, v8
    v_mul_u32_u24 v6, 1280, v10
    v_add_u32 v6, v6, v11
    """)
    A(f"""
    s_and_b32 s20, s13, 1
    s_mov_b32 s21, 0x43120
    s_cmp_eq_u32 s20, 1
    s_cselect_b32 s21, 0x04231, s21        ; odd h: 1,3,2,4,0
    v_lshrrev_b32 v14, 2, v9
    v_lshlrev_b32 v14, 2, v14              ; 4*g
    v_lshrrev_b32 v15, v14, s21
    v_and_b32 v15, 15, v15                 ; j
    v_and_b32 v14, 3, v9
    v_lshl_add_u32 v15, v15, 2, v14        ; dh
    v_cmp_gt_u32 vcc, 20, v9
    s_nop 1
    v_cndmask_b32 v16, v9, v15, vcc
    """)
    vslot(A, 16, 14, 15)
    A(f"""
    s_mul_i32 s21, s13, 5
    v_and_b32 v16, 15, v1
    v_lshlrev_b32 v16, 4, v16              ; token16*16
    v_bfe_u32 v17, v1, 4, 1
    v_mul_u32_u24 v17, 20480, v17
    v_add_u32 v16, v16, v17
    v_lshlrev_b32 v17, 1, v10              ; 2*hf
    v_add_u32 v17, s20, v17
    v_add_u32 v17, s21, v17                ; G0
    v_lshrrev_b32 v18, 3, v17
    v_lshlrev_b32 v18, 10, v18
    v_bfe_u32 v17, v17, 1, 2
    v_lshl_add_u32 v18, v17, 8, v18
    v_add_u32 v152, v18, v16
    s_xor_b32 s20, s20, 1
    s_lshl_b32 s20, s20, 2
    s_add_u32 s20, s20, s21                ; G1
    s_lshr_b32 s21, s20, 3
    s_lshl_b32 s21, s21, 10
    s_bfe_u32 s22, s20, 0x20001
    s_lshl_b32 s22, s22, 8
    s_add_u32 s21, s21, s22
    s_and_b32 s20, s20, 1
    s_lshl_b32 s20, s20, 3
    s_add_u32 s21, s21, s20
    v_add_u32 v153, s21, v16
    v_mul_u32_u24 v7, {VH}, v10
    v_lshl_add_u32 v7, v14, 4, v7
    v_add_u32 v7, {VPART}, v7
    v_mov_b32 v2, v5
    v_mov_b32 v3, v6
    v_mov_b32 v4, v7
    """)
    if not fused:
        A(f"""
        v_lshlrev_b32 v12, 2, v1
        v_add_u32 v12, {FLAG}, v12
        v_mov_b32 v13, 0
        s_cmp_eq_u32 s12, 0
        s_cbranch_scc0 Lk2_noclr
        s_mov_b64 exec, s[28:29]
        ds_write_b32 v12, v13
        s_mov_b64 exec, -1
Lk2_noclr:
        """)
    A(f"""
    v_and_b32 v12, 7, v1
    v_lshlrev_b32 v12, 2, v12
    v_add_u32 v12, {FLAG}, v12             ; v12: full[lane&7] ; +32: free[lane&7]
    s_lshl_b32 s33, s12, 2
    s_add_u32 s33, s33, {FLAG}
    v_mov_b32 v13, s33                     ; v13: own full word ; +32 own free word
    """)
    for i in range(4): A(f"v_mov_b32 v{V1+i}, 0")
    for i in range(4): A(f"v_mov_b32 v{P_+4+i}, 0")
    for i in range(16): A(f"v_mov_b32 v{O_+i}, 0")
    X0 = X_[0]
    if fused:
        if oft:
            A(f"""
            s_cmp_eq_u32 s12, 6
            s_cbranch_scc0 Lattn_nooft
            v_lshrrev_b32 v146, 2, v1
            s_lshl_b32 s20, s14, 4
            v_add_u32 v146, s20, v146              ; T16
            v_mul_u32_u24 v146, 20480, v146
            v_and_b32 v147, 1, v1
            v_lshl_add_u32 v146, v147, 7, v146     ; + line*128
            v_bfe_u32 v147, v1, 1, 1
            s_mul_i32 s20, s13, 5
            """)
            for m in range(3):
                A(f"""
                v_add_u32 v148, {2*m}, v147
                v_min_u32 v148, 4, v148
                v_add_u32 v148, s20, v148              ; G
                v_lshrrev_b32 v149, 3, v148
                v_lshlrev_b32 v149, 10, v149
                v_bfe_u32 v148, v148, 1, 2
                v_lshl_add_u32 v149, v148, 8, v149
                v_add_u32 v149, v149, v146
                s_mov_b32 s21, {OF_OFF}
                buffer_load_dword v150, v149, s[8:11], s21 offen sc1
                """)
            A("Lattn_nooft:")
        A("s_cmp_eq_u32 s12, 5")
        A("s_cbranch_scc0 Lattn_nopub")
        lds_spin(A, FLAG + LF_HD + 12, 1, 1, tmp=(146, 147), sleep=0)
        lds_spin(A, FLAG + LF_PD, 1, 4, tmp=(146, 147), sleep=0)
        get_tag(A, FLAG + LF_TAG, "s35", tmp=(146, 147))
        A(f"""
        s_and_b32 s20, s2, 7
        s_lshr_b32 s21, s2, 3
        s_and_b32 s22, s20, 1
        s_lshl_b32 s22, s22, 3
        s_and_b32 s24, s21, 7
        s_add_u32 s22, s22, s24                ; rb
        s_lshr_b32 s20, s20, 1
        s_lshl_b32 s20, s20, 2
        s_lshr_b32 s21, s21, 3
        s_add_u32 s20, s20, s21                ; cgp
        s_mul_i32 s20, s20, {FROW}
        s_lshl_b32 s22, s22, 2
        s_add_u32 s20, s20, s22
        s_add_u32 s20, s20, {F1A_OFF}
        v_mul_u32_u24 v146, {FREP}, v1
        v_mov_b32 v147, s35
        s_mov_b64 exec, 0xf
        buffer_store_dword v147, v146, s[8:11], s20 offen sc1
        s_mov_b64 exec, -1
        """)
        if mprof == 1:
            wl_stamp(A, 160, 8)
            A("s_waitcnt vmcnt(0)")
            wl_stamp(A, 160, 9)
        A("Lattn_nopub:")
        A("s_cmp_eq_u32 s12, 4")
        A("s_cbranch_scc0 Lattn_wgo")
        get_tag(A, FLAG + LF_TAG, "s35", tmp=(146, 147))
        lds_spin(A, FLAG + LF_PD, 1, 4, tmp=(146, 147), sleep=1)
        if mprof: wl_stamp(A, 160, 1)
        A(f"""
        s_mul_i32 s20, s13, 20
        s_add_u32 s21, s20, 19
        s_lshr_b32 s20, s20, 7
        s_lshr_b32 s21, s21, 7
        v_and_b32 v146, 15, v1
        v_lshlrev_b32 v146, 2, v146
        v_bfe_u32 v147, v1, 4, 1
        v_mov_b32 v148, s20
        v_mov_b32 v149, s21
        v_cmp_eq_u32 vcc, 1, v147
        s_nop 1
        v_cndmask_b32 v148, v148, v149, vcc    ; cb
        v_lshrrev_b32 v147, 5, v1              ; 0: K, 1: V
        v_mul_u32_u24 v147, 5, v147
        v_add_u32 v147, 5, v147
        v_add_u32 v147, v147, v148
        v_mul_u32_u24 v147, {FROW}, v147
        v_add_u32 v147, v147, v146
        v_mul_u32_u24 v148, {FROW}, v148
        v_add_u32 v148, v148, v146
        v_bfe_u32 v149, v1, 1, 3
        v_cmp_eq_u32 s[36:37], s14, v149
        v_cmp_gt_u32 vcc, 32, v1
        s_and_b64 s[36:37], s[36:37], vcc
        s_lshr_b32 s20, s2, 3
        s_and_b32 s20, s20, 3
        s_mul_i32 s20, s20, {FREP}
        s_add_u32 s20, s20, {F1A_OFF}
        s_mov_b32 s34, 0x40000
Lattn_poll:
        buffer_load_dword v150, v147, s[8:11], s20 offen sc1
        buffer_load_dword v151, v148, s[8:11], s20 offen sc1
        s_waitcnt vmcnt(0)
        """)
        if mprof == 1:
            A("s_cmp_eq_u32 s34, 0x40000")
            A("s_cbranch_scc0 Lattn_np")
            wl_stamp(A, 160, 8)
            A("Lattn_np:")
        A(f"""
        v_cmp_eq_u32 vcc, s35, v150
        v_cmp_eq_u32 s[38:39], s35, v151
        s_orn2_b64 s[38:39], s[38:39], s[36:37]
        s_and_b64 vcc, vcc, s[38:39]
        s_cmp_eq_u64 vcc, exec
        s_cbranch_scc1 Lattn_polled
        s_sleep 2
        s_sub_u32 s34, s34, 1
        s_cbranch_scc0 Lattn_poll
Lattn_polled:
        """)
        if mprof: wl_stamp(A, 160, 2)
        if mprof == 1:
            A("s_sub_u32 s34, 0x40000, s34")
            A("v_writelane_b32 v160, s34, 9")
        lds_set(A, FLAG + LF_GO, 1, tmp=(146, 147))
        A("s_branch Lattn_go")
        A("Lattn_wgo:")
        lds_spin(A, FLAG + LF_GO, 1, 1, tmp=(146, 147), sleep=1)
        A("Lattn_go:")
        if mprof and not dbg2: wl_stamp(A, 160, 3)
        first_loads()
    A(f"""
    s_waitcnt vmcnt({0 if fused else 3}) lgkmcnt(0)
    """)
    if fused:
        for grp in dma_groups("s25", SLOT):
            for l in grp: A(l)
        A(f"v_mov_b32 v{FL}, 1")
        A(f"ds_write_b32 v13, v{FL}")
        lds_spin(A, FLAG + LF_FULL, 1, 8, tmp=(FL, FL + 1), sleep=0, cnt="s34")
        if mprof and not dbg2: wl_stamp(A, 160, 4)
    else:
        A("s_barrier")
    KTr = KT4 if tm else KT
    if tm:
        A(f"""
        v_cndmask_b32 v{QA4}, 0, v{QT}, s[28:29]
        v_cndmask_b32 v{QA4+1}, 0, v{QT+1}, s[28:29]
        v_mov_b32 v{QA4+2}, 0
        v_mov_b32 v{QA4+3}, 0
        v_cndmask_b32 v{QB4}, v{QT}, 0, s[28:29]
        v_cndmask_b32 v{QB4+1}, v{QT+1}, 0, s[28:29]
        v_mov_b32 v{QB4+2}, 0
        v_mov_b32 v{QB4+3}, 0
        v_mov_b32 v{KT4+2}, 0
        v_mov_b32 v{KT4+3}, 0
        """)
    A(f"""
    ds_read_b128 v[{KF[0]}:{KF[0]+3}], v2
    ds_read_b128 v[{KF[1]}:{KF[1]+3}], v2 offset:1280
    ds_read_b64 v[{KTr}:{KTr+1}], v3
    ds_read_b128 v[{V0}:{V0+3}], v4
    s_waitcnt lgkmcnt(0)
    {mf(X0, KF[0], QM, None)}
    {mf(X0+16, KF[1], QM, None)}
    """)
    if tm:
        A(mf(X0, KT4, QA4, X0)); A(mf(X0+16, KT4, QB4, X0+16)); A("s_nop 15")
    else:
        A("s_nop 11"); A(mf2b(X0, KT, QT, X0)); A("s_nop 15"); A("s_nop 7")
    A(f"v_max3_f32 v9, v{X0}, v{X0+1}, v{X0+2}")
    for i in range(3, 31, 2):
        A(f"v_max3_f32 v9, v9, v{X0+i}, v{X0+i+1}")
    A(f"v_max_f32 v9, v9, v{X0+31}")
    A(f"""
    v_mov_b32 v10, v9
    s_nop 1
    v_permlane32_swap_b32 v9, v10
    s_nop 1
    v_max_f32 v9, v9, v10
    """)
    A("v_sub_f32 v14, 0, v9")
    A("v_mov_b32 v15, v14")
    for i in range(16): A(f"v_pk_add_f32 v[{X0+2*i}:{X0+2*i+1}], v[{X0+2*i}:{X0+2*i+1}], v[14:15]")
    for i in range(16): A(f"v_mov_b32 v{C_+i}, v14")
    A(f"""
    ds_read_b128 v[{KF[0]}:{KF[0]+3}], v2 offset:{2*1280}
    ds_read_b128 v[{KF[1]}:{KF[1]+3}], v2 offset:{3*1280}
    ds_read_b64 v[{KTr}:{KTr+1}], v3 offset:{2*1280}
    s_mov_b32 s18, 0
    s_mov_b32 s19, {SLOT}
    s_mov_b32 s27, {2*SLOT}
    s_setprio {pa}
    s_cmp_ge_u32 s12, 4
    s_cbranch_scc0 Lk2_noprio
    s_setprio {pb}
Lk2_noprio:
    """)
    if prof:
        A("s_memtime s[90:91]")
        A("s_waitcnt lgkmcnt(0)")
        A("s_sub_u32 s90, s90, s92")
    A0 = A
    class F:
        def __call__(self, l):
            for x in l.strip("\n").split("\n"):
                ls = x.strip()
                if exp_mode == 2 and ls.startswith("v_mfma"): continue
                if exp_mode == 3 and (ls.startswith("v_exp") or ls.startswith("v_cvt")): continue
                if exp_mode == 4 and (ls.startswith("ds_read_b128") or ls.startswith("ds_read_b64")): continue
                if exp_mode == 5 and ls.startswith("v_mfma_f32_32x32x4"): continue
                if exp_mode == 6 and (ls.startswith("ds_read_b128") or ls.startswith("ds_read_b64") or ls.startswith("v_mfma")): continue
                if exp_mode == 7 and ls.startswith("buffer_load"): continue
                A0(x)
        def label(self, b): return A0.label(b)
    if lstamp: wl_stamp(A, 150, 0)
    if mprof: wl_stamp(A, 160, 5)
    A("Lk2_loop:")
    A = F()
    def check(reg, need_sgpr, tag):
        lab = A.label(tag)
        off = 32 if tag == "free" else 0
        A(f"""
        v_cmp_le_u32 vcc, {need_sgpr}, v{reg}
        s_cmp_eq_u64 vcc, exec
        s_cbranch_scc1 {lab}
        s_mov_b32 s34, 0x40000
        {lab}_s:
        s_sub_u32 s34, s34, 1
        s_cbranch_scc1 {lab}
        s_sleep 1
        ds_read_b32 v{reg}, v12 offset:{off}
        s_waitcnt lgkmcnt(0)
        v_cmp_le_u32 vcc, {need_sgpr}, v{reg}
        s_cmp_eq_u64 vcc, exec
        s_cbranch_scc0 {lab}_s
        {lab}:
        """)
    def tile(sc, first, pr, t):
        sn = X_[(pr + 1) & 1]
        kt = (2*pr + 4) & 7
        E = lambda i: f"v_exp_f32 v{sc+i}, v{sc+i}"
        C = lambda p, a: f"v_cvt_pk_bf16_f32 v{P_+p}, v{sc+a}, v{sc+a+1}"
        pre = []
        if desc == 1 and t % 2 == 0: A(f"s_setprio {3 - t // 2}")
        if desc == 2 and t % 2 == 0: A(f"s_setprio {max(1, 3 - t // 2) if t < 6 else 1}")
        if desc == 3: A(f"s_setprio {3 - (t % 4)}")
        if desc in (4, 5): A(f"s_setprio {3 - 2*(t % 2)}")
        if desc == 6: A(f"s_setprio {[3,3,2,2,1,1,0,0][t]}") if t % 2 == 0 else None
        if desc == 7: A(f"s_setprio {[3,2,1,0,0,1,2,3][t]}")
        if desc == 8: A(f"s_setprio {[3,2,2,1,1,0,0,0][t]}")
        A("s_waitcnt lgkmcnt(0)")
        if t == 0:
            A(f"""
            s_waitcnt vmcnt(0)
            s_add_u32 s31, s18, 2
            v_mov_b32 v{FL}, s31
            v_mov_b32 v{FL+1}, s18
            ds_write_b32 v13, v{FL}
            ds_write_b32 v13, v{FL+1} offset:32
            """)
        if t == 4:
            nofull = A.label("nofull")
            A("s_cmp_lt_u32 s18, 7")
            A(f"s_cbranch_scc0 {nofull}")
            A("s_add_u32 s31, s18, 2")
            check(FL + 1, "s31", "full")
            A(f"{nofull}:")
            A("v_add_u32 v2, s19, v5")
            A("v_add_u32 v3, s19, v6")
        if first:
            A(mf(sn, KF[0], QM, C_))
            A(f"ds_read_b128 v[{KF[0]}:{KF[0]+3}], v2 offset:{kt*1280}")
        elif tm:
            A(mf(sn, KT4, QA4, sn))
        else:
            A(mf2b(sn, KT, QT, sn))
            A(f"ds_read_b64 v[{KT}:{KT+1}], v3 offset:{kt*1280}")
        if t == 1: A(f"ds_read_b32 v{FL}, v12 offset:32")
        if t == 3: A(f"ds_read_b32 v{FL+1}, v12")
        for i in range(4): A(E(i))
        A(mf(O_, V1, P_+4, O_))
        A(f"ds_read_b128 v[{V1}:{V1+3}], v4 offset:{t*VT + 2*VH}")
        if t == 7:
            A("v_add_u32 v4, s19, v7")
        dg = []
        if t == 2:
            skip = A.label("k2skip")
            A(f"s_cmp_lt_u32 s18, 6")
            A(f"s_cbranch_scc0 {skip}")
            check(FL, "s18", "free")
            A("s_add_u32 s30, s27, s25")
            for grp in dma_groups("s30"):
                for l in grp: A(l)
            A(f"{skip}:")
        A(C(0, 0)); A(E(4)); A(C(1, 2))
        for i in (5, 6, 7): A(E(i))
        if desc == 4: A(f"s_setprio {2 - 2*(t % 2)}")
        if first:
            A(mf(sn + 16, KF[1], QM, C_))
            A(f"ds_read_b128 v[{KF[1]}:{KF[1]+3}], v2 offset:{(kt+1)*1280}")
        elif tm:
            A(mf(sn + 16, KT4, QB4, sn + 16))
            A(f"ds_read_b64 v[{KT4}:{KT4+1}], v3 offset:{kt*1280}")
        A(C(2, 4)); A(E(8)); A(C(3, 6)); A(E(9)); A(E(10))
        A(mf(O_, V0, P_, O_))
        A(f"ds_read_b128 v[{V0}:{V0+3}], v4 offset:{((t+1)&7)*VT}")
        for i in (11, 12, 13): A(E(i))
        A(C(4, 8)); A(E(14)); A(C(5, 10)); A(E(15)); A(C(6, 12)); A(C(7, 14))
    for pr in range(4):
        cur = X_[pr & 1]
        tile(cur, True, pr, 2*pr)
        tile(cur + 16, False, pr, 2*pr + 1)
    A = A0
    A(f"""
    s_mov_b32 s19, s27
    s_add_u32 s27, s27, {SLOT}
    s_cmp_ge_u32 s27, {3*SLOT}
    s_cselect_b32 s27, 0, s27
    s_add_u32 s18, s18, 1
    s_cmp_lt_u32 s18, 8
    s_cbranch_scc1 Lk2_loop
    """)
    if lstamp: wl_stamp(A, 150, 1)
    if mprof: wl_stamp(A, 160, 6)
    A(f"""
    s_waitcnt lgkmcnt(0)
    {mf(O_, V1, P_+4, O_)}
    s_mov_b32 s31, 0
    s_nop 15
Lk2_fin:
    v_mov_b32 v9, v{O_+8}
    v_mov_b32 v10, v{O_+8}
    s_nop 1
    v_permlane32_swap_b32 v9, v10
    s_nop 1
    v_mul_f32 v11, 0, v{O_}
    """)
    for i in range(1, 8): A(f"v_fma_f32 v11, v{O_+i}, 0, v11")
    A(f"v_mul_f32 v14, 0, v{O_+8}")
    for i in range(9, 12): A(f"v_fma_f32 v14, v{O_+i}, 0, v14")
    A(f"""
    v_cndmask_b32 v14, 0, v14, s[28:29]
    v_add_f32 v11, v11, v14
    v_add_f32 v11, v11, v10
    v_mov_b32 v15, 0x53800000              ; 2^40
    v_cmp_nlt_f32 vcc, v11, v15            ; !(l < 2^40)
    s_cmp_eq_u32 s31, 0
    s_cbranch_scc0 Lk2_store
    {"" if nofb else "s_cbranch_vccnz Lk2_fallback"}
Lk2_store:
    v_rcp_f32 v10, v10
    s_mul_i32 s21, s15, 40960
    s_add_u32 s21, s21, {OF_OFF}
    v_mov_b32 v11, v10
    """)
    for p in range(6):
        A(f"v_pk_mul_f32 v[{O_+2*p}:{O_+2*p+1}], v[{O_+2*p}:{O_+2*p+1}], v[10:11]")
    for p in range(6):
        A(f"v_cvt_pk_bf16_f32 v{16+p}, v{O_+2*p}, v{O_+2*p+1}")
    A(f"""
    buffer_store_dwordx4 v[16:19], v152, s[8:11], s21 offen sc1
    s_mov_b64 exec, s[28:29]
    buffer_store_dwordx2 v[20:21], v153, s[8:11], s21 offen sc1
    """)
    A("s_mov_b64 exec, -1")
    A("s_waitcnt vmcnt(0)")
    A("s_barrier")
    A(f"""
    s_cmp_eq_u32 s12, 0
    s_cbranch_scc0 Lk2_nopub
    s_mul_i32 s20, s14, {FROW}
    s_lshl_b32 s21, s13, 2
    s_add_u32 s20, s20, s21
    s_add_u32 s20, s20, {OFLAG_OFF}
    """)
    if fused:
        get_tag(A, FLAG + LF_TAG, "s21", tmp=(16, 17))
        A("v_mov_b32 v16, s21")
    else:
        A("v_mov_b32 v16, 1")
    A(f"""
    v_mov_b32 v17, 0
    s_mov_b64 exec, 1
    buffer_store_dword v16, v17, s[8:11], s20 offen sc1
    s_mov_b64 exec, -1
Lk2_nopub:
    """)
    if prof:
        A("s_mov_b64 exec, -1")
        if lstamp: wl_dump(A, 150, 1, 8, 12, 21)
        prof_end(A, 1, 8, 12, tmpv=(16, 17, 18, 19, 20), extra="s90")
    if tl: tl2_record(A, 1, 8, 12)
    if mprof == 2:
        wl_stamp(A, 160, 7)
        dbg_dump_lanes(A, 160, 1, 8, 37, 12, 1)
    elif mprof:
        wl_stamp(A, 160, 7)
        wl_dump(A, 160, 1, 8, 12, 21)
        A("s_mov_b32 s90, 0")
        prof_end(A, 1, 8, 12, tmpv=(16, 17, 18, 19, 20), extra="s90")
    A("s_endpgm")

    s = X0
    A(f"""
Lk2_fallback:
    s_mov_b32 s31, 1
    v_and_b32 v9, 31, v1
    v_lshlrev_b32 v11, 3, v9
    v_add_u32 v11, 1024, v11
    v_mov_b32 v14, 0xff800000
    s_mov_b32 s18, 0
Lk2_fb1:
    s_lshr_b32 s20, s18, 3
    s_mul_i32 s20, s20, {CH}
    s_and_b32 s21, s18, 7
    s_mul_i32 s21, s21, 1280
    s_add_u32 s20, s20, s21
    s_add_u32 s20, s20, s16
    buffer_load_dwordx4 v[{KF[0]}:{KF[0]+3}], v8, s[8:11], s20 offen
    buffer_load_dwordx2 v[{KT}:{KT+1}], v11, s[8:11], s20 offen
    s_waitcnt vmcnt(0)
    {mf(s, KF[0], QM, None)}
    {mf(s+16, KF[0], QM, None)}
    s_nop 11
    {mf2b(s, KT, QT, s)}
    s_nop 15
    s_nop 7
    """)
    for i in range(0, 16, 2):
        A(f"v_max3_f32 v14, v14, v{s+i}, v{s+i+1}")
    A(f"""
    s_add_u32 s18, s18, 1
    s_cmp_lt_u32 s18, 64
    s_cbranch_scc1 Lk2_fb1
    v_mov_b32 v15, v14
    s_nop 1
    v_permlane32_swap_b32 v14, v15
    s_nop 1
    v_max_f32 v14, v14, v15
    """)
    for i in range(16): A(f"v_mov_b32 v{O_+i}, 0")
    A(f"""
    s_mov_b32 s18, 0
Lk2_fb2:
    s_lshr_b32 s20, s18, 3
    s_mul_i32 s20, s20, {CH}
    s_and_b32 s21, s18, 7
    s_mul_i32 s22, s21, {VT}
    s_add_u32 s22, s22, s20
    s_add_u32 s22, s22, s16
    s_mul_i32 s21, s21, 1280
    s_add_u32 s20, s20, s21
    s_add_u32 s20, s20, s16
    buffer_load_dwordx4 v[{KF[0]}:{KF[0]+3}], v8, s[8:11], s20 offen
    buffer_load_dwordx2 v[{KT}:{KT+1}], v11, s[8:11], s20 offen
    buffer_load_dwordx4 v[{V0}:{V0+3}], v7, s[8:11], s22 offen
    buffer_load_dwordx4 v[{V1}:{V1+3}], v7, s[8:11], s22 offen offset:{2*VH}
    s_waitcnt vmcnt(0)
    {mf(s, KF[0], QM, None)}
    {mf(s+16, KF[0], QM, None)}
    s_nop 11
    {mf2b(s, KT, QT, s)}
    s_nop 15
    s_nop 7
    """)
    for i in range(16): A(f"v_sub_f32 v{s+i}, v{s+i}, v14")
    for i in range(16): A(f"v_exp_f32 v{s+i}, v{s+i}")
    A("s_nop 0")
    for i in range(8): A(f"v_cvt_pk_bf16_f32 v{P_+i}, v{s+2*i}, v{s+2*i+1}")
    A(f"""
    s_nop 1
    {mf(O_, V0, P_, O_)}
    {mf(O_, V1, P_+4, O_)}
    s_add_u32 s18, s18, 1
    s_cmp_lt_u32 s18, 64
    s_cbranch_scc1 Lk2_fb2
    s_nop 15
    s_branch Lk2_fin
Lk2_end:
    s_endpgm
    """)
    if shadow: gen_shadow(A, (mprof if mprof else prof), shprio, SH_BASE, FLAG, NA=na, fused=fused, outf=outf)
    else: A("Lk2_shadow:\ns_barrier\ns_barrier\ns_endpgm")
    if fused: return A.text()
    return A.text(), kdesc(NAME, 168), f"; @launch kernel={NAME} grid=(256,1,1) block=(768,1,1) lds={LDS_BYTES}"
```

```python
from asm import *
from common import *
from k2_shadow import gen_shadow

NAME = "k2_kernel"
SLOT = 24576
SH_BASE = 3 * SLOT
FLAG = MEGA_FLAG
LDS_BYTES = FLAG + 256

X_ = [16, 48]
P_ = 80
O_ = 88
C_ = 104
QM = 120
QT = 124
KF = [126, 130]
KT = 134
V0 = 136
V1 = 140
FL = 144

def mf(d, a, b, c):
    cs = "0" if c is None else f"v[{c}:{c+15}]"
    return f"v_mfma_f32_32x32x16_bf16 v[{d}:{d+15}], v[{a}:{a+3}], v[{b}:{b+3}], {cs}"
def mf2b(d, a, b, c):
    cs = "0" if c is None else f"v[{c}:{c+31}]"
    return f"v_mfma_f32_32x32x4_2b_bf16 v[{d}:{d+31}], v[{a}:{a+1}], v[{b}:{b+1}], {cs}"

def vslot(A, row, dst, t1):
    A(f"""
    v_mov_b32 v{dst}, v{row}
    v_add_u32 v{t1}, 12, v{row}
    v_cmp_lt_u32 vcc, 3, v{row}
    s_nop 1
    v_cndmask_b32 v{dst}, v{dst}, v{t1}, vcc
    v_subrev_u32 v{t1}, 1, v{row}
    v_cmp_lt_u32 vcc, 9, v{row}
    s_nop 1
    v_cndmask_b32 v{dst}, v{dst}, v{t1}, vcc
    v_subrev_u32 v{t1}, 8, v{row}
    v_cmp_lt_u32 vcc, 11, v{row}
    s_nop 1
    v_cndmask_b32 v{dst}, v{dst}, v{t1}, vcc
    v_subrev_u32 v{t1}, 5, v{row}
    v_cmp_lt_u32 vcc, 15, v{row}
    s_nop 1
    v_cndmask_b32 v{dst}, v{dst}, v{t1}, vcc
    v_cmp_lt_u32 vcc, 19, v{row}
    s_nop 1
    v_cndmask_b32 v{dst}, v{dst}, 8, vcc
    v_cmp_lt_u32 vcc, 20, v{row}
    s_nop 1
    v_cndmask_b32 v{dst}, v{dst}, 15, vcc
    """)

def gen_k2(prof=False, exp_mode=0, shadow=True, shprio=0, pa=1, pb=2, tl=0, nofb=0, lstamp=0, desc=3, na=11, fused=False, mprof=0, dbg2=0, oft=0, outf=0, tm=0):
    KT4 = 152; QA4 = 156; QB4 = 164
    A = Asm(10000)
    if not fused:
        A(khead(NAME))
        A(f"""
        s_cmp_ge_u32 s2, 256
        s_cbranch_scc1 Lk2_end
        """)
        if prof: prof_start(A)
        if tl: tl_start(A, 1)
    def ids():
        A(f"""
        s_load_dwordx2 s[4:5], s[0:1], 80
        v_lshrrev_b32 v9, 6, v0
        v_and_b32 v1, 63, v0                   ; lane
        s_and_b32 s20, s2, 7
        v_readfirstlane_b32 s12, v9            ; wave
        s_lshr_b32 s21, s2, 3
        s_and_b32 s22, s21, 3
        s_lshl_b32 s13, s20, 2
        s_add_u32 s13, s13, s22                ; h
        s_lshr_b32 s14, s21, 2                 ; qb
        s_lshl_b32 s15, s14, 3
        s_add_u32 s15, s15, s12                ; T
        """)
    if fused:
        A("Lshadow_entry:")
        ids()
        A("s_branch Lk2_shadow")
        A("Lattn_entry:")
        A("s_setprio 0")
        ids()
    else:
        ids()
        A("s_cmp_ge_u32 s12, 8")
        A("s_cbranch_scc1 Lk2_shadow")
    A(f"""
    s_mul_i32 s16, s13, {HSK}
    s_add_u32 s16, s16, {KV_OFF}
    s_mul_i32 s23, s13, {HSQ}
    s_mul_i32 s24, s15, 1280
    s_add_u32 s23, s23, s24
    s_add_u32 s23, s23, {QF_OFF}
    v_lshlrev_b32 v8, 4, v1                ; lane*16
    v_and_b32 v9, 31, v1
    v_lshrrev_b32 v10, 5, v1               ; hf
    v_lshlrev_b32 v11, 3, v9
    v_add_u32 v11, 1024, v11               ; 1024 + token*8
    s_mul_i32 s25, s12, 3072
    s_add_u32 s17, s16, s25
    s_waitcnt lgkmcnt(0)
    """)
    srd_ws(A, 8, 4, WS_RECORDS)
    def dma_groups(slot_sgpr, slot_imm=0):
        g = []
        for j in range(3):
            m0 = f"s_add_u32 m0, {slot_sgpr}, {slot_imm + j*1024}"
            g.append([m0, f"s_add_u32 s26, s17, {j*1024}", f"buffer_load_dwordx4 v8, s[8:11], s26 offen lds"])
        g.append([f"s_add_u32 s17, s17, {CH}"])
        return g
    def first_loads():
        for grp in dma_groups("s25", 0):
            for l in grp: A(l)
        A(f"""
        buffer_load_dwordx4 v[{QM}:{QM+3}], v8, s[8:11], s23 offen
        buffer_load_dwordx2 v[{QT}:{QT+1}], v11, s[8:11], s23 offen
        """)
        if not fused:
            for grp in dma_groups("s25", SLOT):
                for l in grp: A(l)
    if not fused: first_loads()
    A(f"""
    v_cmp_gt_u32 s[28:29], 32, v1          ; lanes < 32
    v_mov_b32 v5, v8
    v_mul_u32_u24 v6, 1280, v10
    v_add_u32 v6, v6, v11
    """)
    A(f"""
    s_and_b32 s20, s13, 1
    s_mov_b32 s21, 0x43120
    s_cmp_eq_u32 s20, 1
    s_cselect_b32 s21, 0x04231, s21        ; odd h: 1,3,2,4,0
    v_lshrrev_b32 v14, 2, v9
    v_lshlrev_b32 v14, 2, v14              ; 4*g
    v_lshrrev_b32 v15, v14, s21
    v_and_b32 v15, 15, v15                 ; j
    v_and_b32 v14, 3, v9
    v_lshl_add_u32 v15, v15, 2, v14        ; dh
    v_cmp_gt_u32 vcc, 20, v9
    s_nop 1
    v_cndmask_b32 v16, v9, v15, vcc
    """)
    vslot(A, 16, 14, 15)
    A(f"""
    s_mul_i32 s21, s13, 5
    v_and_b32 v16, 15, v1
    v_lshlrev_b32 v16, 4, v16              ; token16*16
    v_bfe_u32 v17, v1, 4, 1
    v_mul_u32_u24 v17, 20480, v17
    v_add_u32 v16, v16, v17
    v_lshlrev_b32 v17, 1, v10              ; 2*hf
    v_add_u32 v17, s20, v17
    v_add_u32 v17, s21, v17                ; G0
    v_lshrrev_b32 v18, 3, v17
    v_lshlrev_b32 v18, 10, v18
    v_bfe_u32 v17, v17, 1, 2
    v_lshl_add_u32 v18, v17, 8, v18
    v_add_u32 v152, v18, v16
    s_xor_b32 s20, s20, 1
    s_lshl_b32 s20, s20, 2
    s_add_u32 s20, s20, s21                ; G1
    s_lshr_b32 s21, s20, 3
    s_lshl_b32 s21, s21, 10
    s_bfe_u32 s22, s20, 0x20001
    s_lshl_b32 s22, s22, 8
    s_add_u32 s21, s21, s22
    s_and_b32 s20, s20, 1
    s_lshl_b32 s20, s20, 3
    s_add_u32 s21, s21, s20
    v_add_u32 v153, s21, v16
    v_mul_u32_u24 v7, {VH}, v10
    v_lshl_add_u32 v7, v14, 4, v7
    v_add_u32 v7, {VPART}, v7
    v_mov_b32 v2, v5
    v_mov_b32 v3, v6
    v_mov_b32 v4, v7
    """)
    if not fused:
        A(f"""
        v_lshlrev_b32 v12, 2, v1
        v_add_u32 v12, {FLAG}, v12
        v_mov_b32 v13, 0
        s_cmp_eq_u32 s12, 0
        s_cbranch_scc0 Lk2_noclr
        s_mov_b64 exec, s[28:29]
        ds_write_b32 v12, v13
        s_mov_b64 exec, -1
Lk2_noclr:
        """)
    A(f"""
    v_and_b32 v12, 7, v1
    v_lshlrev_b32 v12, 2, v12
    v_add_u32 v12, {FLAG}, v12             ; v12: full[lane&7] ; +32: free[lane&7]
    s_lshl_b32 s33, s12, 2
    s_add_u32 s33, s33, {FLAG}
    v_mov_b32 v13, s33                     ; v13: own full word ; +32 own free word
    """)
    for i in range(4): A(f"v_mov_b32 v{V1+i}, 0")
    for i in range(4): A(f"v_mov_b32 v{P_+4+i}, 0")
    for i in range(16): A(f"v_mov_b32 v{O_+i}, 0")
    X0 = X_[0]
    if fused:
        if oft:
            A(f"""
            s_cmp_eq_u32 s12, 6
            s_cbranch_scc0 Lattn_nooft
            v_lshrrev_b32 v146, 2, v1
            s_lshl_b32 s20, s14, 4
            v_add_u32 v146, s20, v146              ; T16
            v_mul_u32_u24 v146, 20480, v146
            v_and_b32 v147, 1, v1
            v_lshl_add_u32 v146, v147, 7, v146     ; + line*128
            v_bfe_u32 v147, v1, 1, 1
            s_mul_i32 s20, s13, 5
            """)
            for m in range(3):
                A(f"""
                v_add_u32 v148, {2*m}, v147
                v_min_u32 v148, 4, v148
                v_add_u32 v148, s20, v148              ; G
                v_lshrrev_b32 v149, 3, v148
                v_lshlrev_b32 v149, 10, v149
                v_bfe_u32 v148, v148, 1, 2
                v_lshl_add_u32 v149, v148, 8, v149
                v_add_u32 v149, v149, v146
                s_mov_b32 s21, {OF_OFF}
                buffer_load_dword v150, v149, s[8:11], s21 offen sc1
                """)
            A("Lattn_nooft:")
        A("s_cmp_eq_u32 s12, 5")
        A("s_cbranch_scc0 Lattn_nopub")
        lds_spin(A, FLAG + LF_HD + 12, 1, 1, tmp=(146, 147), sleep=0)
        lds_spin(A, FLAG + LF_PD, 1, 4, tmp=(146, 147), sleep=0)
        get_tag(A, FLAG + LF_TAG, "s35", tmp=(146, 147))
        A(f"""
        s_and_b32 s20, s2, 7
        s_lshr_b32 s21, s2, 3
        s_and_b32 s22, s20, 1
        s_lshl_b32 s22, s22, 3
        s_and_b32 s24, s21, 7
        s_add_u32 s22, s22, s24                ; rb
        s_lshr_b32 s20, s20, 1
        s_lshl_b32 s20, s20, 2
        s_lshr_b32 s21, s21, 3
        s_add_u32 s20, s20, s21                ; cgp
        s_mul_i32 s20, s20, {FROW}
        s_lshl_b32 s22, s22, 2
        s_add_u32 s20, s20, s22
        s_add_u32 s20, s20, {F1A_OFF}
        v_mul_u32_u24 v146, {FREP}, v1
        v_mov_b32 v147, s35
        s_mov_b64 exec, 0xf
        buffer_store_dword v147, v146, s[8:11], s20 offen sc1
        s_mov_b64 exec, -1
        """)
        if mprof == 1:
            wl_stamp(A, 160, 8)
            A("s_waitcnt vmcnt(0)")
            wl_stamp(A, 160, 9)
        A("Lattn_nopub:")
        A("s_cmp_eq_u32 s12, 4")
        A("s_cbranch_scc0 Lattn_wgo")
        get_tag(A, FLAG + LF_TAG, "s35", tmp=(146, 147))
        lds_spin(A, FLAG + LF_PD, 1, 4, tmp=(146, 147), sleep=1)
        if mprof: wl_stamp(A, 160, 1)
        A(f"""
        s_mul_i32 s20, s13, 20
        s_add_u32 s21, s20, 19
        s_lshr_b32 s20, s20, 7
        s_lshr_b32 s21, s21, 7
        v_and_b32 v146, 15, v1
        v_lshlrev_b32 v146, 2, v146
        v_bfe_u32 v147, v1, 4, 1
        v_mov_b32 v148, s20
        v_mov_b32 v149, s21
        v_cmp_eq_u32 vcc, 1, v147
        s_nop 1
        v_cndmask_b32 v148, v148, v149, vcc    ; cb
        v_lshrrev_b32 v147, 5, v1              ; 0: K, 1: V
        v_mul_u32_u24 v147, 5, v147
        v_add_u32 v147, 5, v147
        v_add_u32 v147, v147, v148
        v_mul_u32_u24 v147, {FROW}, v147
        v_add_u32 v147, v147, v146
        v_mul_u32_u24 v148, {FROW}, v148
        v_add_u32 v148, v148, v146
        v_bfe_u32 v149, v1, 1, 3
        v_cmp_eq_u32 s[36:37], s14, v149
        v_cmp_gt_u32 vcc, 32, v1
        s_and_b64 s[36:37], s[36:37], vcc
        s_lshr_b32 s20, s2, 3
        s_and_b32 s20, s20, 3
        s_mul_i32 s20, s20, {FREP}
        s_add_u32 s20, s20, {F1A_OFF}
        s_mov_b32 s34, 0x40000
Lattn_poll:
        buffer_load_dword v150, v147, s[8:11], s20 offen sc1
        buffer_load_dword v151, v148, s[8:11], s20 offen sc1
        s_waitcnt vmcnt(0)
        """)
        if mprof == 1:
            A("s_cmp_eq_u32 s34, 0x40000")
            A("s_cbranch_scc0 Lattn_np")
            wl_stamp(A, 160, 8)
            A("Lattn_np:")
        A(f"""
        v_cmp_eq_u32 vcc, s35, v150
        v_cmp_eq_u32 s[38:39], s35, v151
        s_orn2_b64 s[38:39], s[38:39], s[36:37]
        s_and_b64 vcc, vcc, s[38:39]
        s_cmp_eq_u64 vcc, exec
        s_cbranch_scc1 Lattn_polled
        s_sleep 2
        s_sub_u32 s34, s34, 1
        s_cbranch_scc0 Lattn_poll
Lattn_polled:
        """)
        if mprof: wl_stamp(A, 160, 2)
        if mprof == 1:
            A("s_sub_u32 s34, 0x40000, s34")
            A("v_writelane_b32 v160, s34, 9")
        lds_set(A, FLAG + LF_GO, 1, tmp=(146, 147))
        A("s_branch Lattn_go")
        A("Lattn_wgo:")
        lds_spin(A, FLAG + LF_GO, 1, 1, tmp=(146, 147), sleep=1)
        A("Lattn_go:")
        if mprof and not dbg2: wl_stamp(A, 160, 3)
        first_loads()
    A(f"""
    s_waitcnt vmcnt({0 if fused else 3}) lgkmcnt(0)
    """)
    if fused:
        for grp in dma_groups("s25", SLOT):
            for l in grp: A(l)
        A(f"v_mov_b32 v{FL}, 1")
        A(f"ds_write_b32 v13, v{FL}")
        lds_spin(A, FLAG + LF_FULL, 1, 8, tmp=(FL, FL + 1), sleep=0, cnt="s34")
        if mprof and not dbg2: wl_stamp(A, 160, 4)
    else:
        A("s_barrier")
    KTr = KT4 if tm else KT
    if tm:
        A(f"""
        v_cndmask_b32 v{QA4}, 0, v{QT}, s[28:29]
        v_cndmask_b32 v{QA4+1}, 0, v{QT+1}, s[28:29]
        v_mov_b32 v{QA4+2}, 0
        v_mov_b32 v{QA4+3}, 0
        v_cndmask_b32 v{QB4}, v{QT}, 0, s[28:29]
        v_cndmask_b32 v{QB4+1}, v{QT+1}, 0, s[28:29]
        v_mov_b32 v{QB4+2}, 0
        v_mov_b32 v{QB4+3}, 0
        v_mov_b32 v{KT4+2}, 0
        v_mov_b32 v{KT4+3}, 0
        """)
    A(f"""
    ds_read_b128 v[{KF[0]}:{KF[0]+3}], v2
    ds_read_b128 v[{KF[1]}:{KF[1]+3}], v2 offset:1280
    ds_read_b64 v[{KTr}:{KTr+1}], v3
    ds_read_b128 v[{V0}:{V0+3}], v4
    s_waitcnt lgkmcnt(0)
    {mf(X0, KF[0], QM, None)}
    {mf(X0+16, KF[1], QM, None)}
    """)
    if tm:
        A(mf(X0, KT4, QA4, X0)); A(mf(X0+16, KT4, QB4, X0+16)); A("s_nop 15")
    else:
        A("s_nop 11"); A(mf2b(X0, KT, QT, X0)); A("s_nop 15"); A("s_nop 7")
    A(f"v_max3_f32 v9, v{X0}, v{X0+1}, v{X0+2}")
    for i in range(3, 31, 2):
        A(f"v_max3_f32 v9, v9, v{X0+i}, v{X0+i+1}")
    A(f"v_max_f32 v9, v9, v{X0+31}")
    A(f"""
    v_mov_b32 v10, v9
    s_nop 1
    v_permlane32_swap_b32 v9, v10
    s_nop 1
    v_max_f32 v9, v9, v10
    """)
    A("v_sub_f32 v14, 0, v9")
    A("v_mov_b32 v15, v14")
    for i in range(16): A(f"v_pk_add_f32 v[{X0+2*i}:{X0+2*i+1}], v[{X0+2*i}:{X0+2*i+1}], v[14:15]")
    for i in range(16): A(f"v_mov_b32 v{C_+i}, v14")
    A(f"""
    ds_read_b128 v[{KF[0]}:{KF[0]+3}], v2 offset:{2*1280}
    ds_read_b128 v[{KF[1]}:{KF[1]+3}], v2 offset:{3*1280}
    ds_read_b64 v[{KTr}:{KTr+1}], v3 offset:{2*1280}
    s_mov_b32 s18, 0
    s_mov_b32 s19, {SLOT}
    s_mov_b32 s27, {2*SLOT}
    s_setprio {pa}
    s_cmp_ge_u32 s12, 4
    s_cbranch_scc0 Lk2_noprio
    s_setprio {pb}
Lk2_noprio:
    """)
    if prof:
        A("s_memtime s[90:91]")
        A("s_waitcnt lgkmcnt(0)")
        A("s_sub_u32 s90, s90, s92")
    A0 = A
    class F:
        def __call__(self, l):
            for x in l.strip("\n").split("\n"):
                ls = x.strip()
                if exp_mode == 2 and ls.startswith("v_mfma"): continue
                if exp_mode == 3 and (ls.startswith("v_exp") or ls.startswith("v_cvt")): continue
                if exp_mode == 4 and (ls.startswith("ds_read_b128") or ls.startswith("ds_read_b64")): continue
                if exp_mode == 5 and ls.startswith("v_mfma_f32_32x32x4"): continue
                if exp_mode == 6 and (ls.startswith("ds_read_b128") or ls.startswith("ds_read_b64") or ls.startswith("v_mfma")): continue
                if exp_mode == 7 and ls.startswith("buffer_load"): continue
                A0(x)
        def label(self, b): return A0.label(b)
    if lstamp: wl_stamp(A, 150, 0)
    if mprof: wl_stamp(A, 160, 5)
    A("Lk2_loop:")
    A = F()
    def check(reg, need_sgpr, tag):
        lab = A.label(tag)
        off = 32 if tag == "free" else 0
        A(f"""
        v_cmp_le_u32 vcc, {need_sgpr}, v{reg}
        s_cmp_eq_u64 vcc, exec
        s_cbranch_scc1 {lab}
        s_mov_b32 s34, 0x40000
        {lab}_s:
        s_sub_u32 s34, s34, 1
        s_cbranch_scc1 {lab}
        s_sleep 1
        ds_read_b32 v{reg}, v12 offset:{off}
        s_waitcnt lgkmcnt(0)
        v_cmp_le_u32 vcc, {need_sgpr}, v{reg}
        s_cmp_eq_u64 vcc, exec
        s_cbranch_scc0 {lab}_s
        {lab}:
        """)
    def tile(sc, first, pr, t):
        sn = X_[(pr + 1) & 1]
        kt = (2*pr + 4) & 7
        E = lambda i: f"v_exp_f32 v{sc+i}, v{sc+i}"
        C = lambda p, a: f"v_cvt_pk_bf16_f32 v{P_+p}, v{sc+a}, v{sc+a+1}"
        pre = []
        if desc == 1 and t % 2 == 0: A(f"s_setprio {3 - t // 2}")
        if desc == 2 and t % 2 == 0: A(f"s_setprio {max(1, 3 - t // 2) if t < 6 else 1}")
        if desc == 3: A(f"s_setprio {3 - (t % 4)}")
        if desc in (4, 5): A(f"s_setprio {3 - 2*(t % 2)}")
        if desc == 6: A(f"s_setprio {[3,3,2,2,1,1,0,0][t]}") if t % 2 == 0 else None
        if desc == 7: A(f"s_setprio {[3,2,1,0,0,1,2,3][t]}")
        if desc == 8: A(f"s_setprio {[3,2,2,1,1,0,0,0][t]}")
        A("s_waitcnt lgkmcnt(0)")
        if t == 0:
            A(f"""
            v_mov_b32 v{FL+1}, s18
            ds_write_b32 v13, v{FL+1} offset:32
            """)
        if t == 2:
            A(f"""
            s_waitcnt vmcnt(0)
            s_add_u32 s31, s18, 2
            v_mov_b32 v{FL+1}, s31
            ds_write_b32 v13, v{FL+1}
            """)
        if t == 4:
            nofull = A.label("nofull")
            A("s_cmp_lt_u32 s18, 7")
            A(f"s_cbranch_scc0 {nofull}")
            A("s_add_u32 s31, s18, 2")
            check(FL + 1, "s31", "full")
            A(f"{nofull}:")
            A("v_add_u32 v2, s19, v5")
            A("v_add_u32 v3, s19, v6")
        if first:
            A(mf(sn, KF[0], QM, C_))
            A(f"ds_read_b128 v[{KF[0]}:{KF[0]+3}], v2 offset:{kt*1280}")
        elif tm:
            A(mf(sn, KT4, QA4, sn))
        else:
            A(mf2b(sn, KT, QT, sn))
            A(f"ds_read_b64 v[{KT}:{KT+1}], v3 offset:{kt*1280}")
        if t == 1: A(f"ds_read_b32 v{FL}, v12 offset:32")
        if t == 3: A(f"ds_read_b32 v{FL+1}, v12")
        for i in range(4): A(E(i))
        A(mf(O_, V1, P_+4, O_))
        A(f"ds_read_b128 v[{V1}:{V1+3}], v4 offset:{t*VT + 2*VH}")
        if t == 7:
            A("v_add_u32 v4, s19, v7")
        dg = []
        if t == 2:
            skip = A.label("k2skip")
            A(f"s_cmp_lt_u32 s18, 6")
            A(f"s_cbranch_scc0 {skip}")
            check(FL, "s18", "free")
            A("s_add_u32 s30, s27, s25")
            for grp in dma_groups("s30"):
                for l in grp: A(l)
            A(f"{skip}:")
        A(C(0, 0)); A(E(4)); A(C(1, 2))
        for i in (5, 6, 7): A(E(i))
        if desc == 4: A(f"s_setprio {2 - 2*(t % 2)}")
        if first:
            A(mf(sn + 16, KF[1], QM, C_))
            A(f"ds_read_b128 v[{KF[1]}:{KF[1]+3}], v2 offset:{(kt+1)*1280}")
        elif tm:
            A(mf(sn + 16, KT4, QB4, sn + 16))
            A(f"ds_read_b64 v[{KT4}:{KT4+1}], v3 offset:{kt*1280}")
        A(C(2, 4)); A(E(8)); A(C(3, 6)); A(E(9)); A(E(10))
        A(mf(O_, V0, P_, O_))
        A(f"ds_read_b128 v[{V0}:{V0+3}], v4 offset:{((t+1)&7)*VT}")
        for i in (11, 12, 13): A(E(i))
        A(C(4, 8)); A(E(14)); A(C(5, 10)); A(E(15)); A(C(6, 12)); A(C(7, 14))
    for pr in range(4):
        cur = X_[pr & 1]
        tile(cur, True, pr, 2*pr)
        tile(cur + 16, False, pr, 2*pr + 1)
    A = A0
    A(f"""
    s_mov_b32 s19, s27
    s_add_u32 s27, s27, {SLOT}
    s_cmp_ge_u32 s27, {3*SLOT}
    s_cselect_b32 s27, 0, s27
    s_add_u32 s18, s18, 1
    s_cmp_lt_u32 s18, 8
    s_cbranch_scc1 Lk2_loop
    """)
    if lstamp: wl_stamp(A, 150, 1)
    if mprof: wl_stamp(A, 160, 6)
    A(f"""
    s_waitcnt lgkmcnt(0)
    {mf(O_, V1, P_+4, O_)}
    s_mov_b32 s31, 0
    s_nop 15
Lk2_fin:
    v_mov_b32 v9, v{O_+8}
    v_mov_b32 v10, v{O_+8}
    s_nop 1
    v_permlane32_swap_b32 v9, v10
    s_nop 1
    v_mul_f32 v11, 0, v{O_}
    """)
    for i in range(1, 8): A(f"v_fma_f32 v11, v{O_+i}, 0, v11")
    A(f"v_mul_f32 v14, 0, v{O_+8}")
    for i in range(9, 12): A(f"v_fma_f32 v14, v{O_+i}, 0, v14")
    A(f"""
    v_cndmask_b32 v14, 0, v14, s[28:29]
    v_add_f32 v11, v11, v14
    v_add_f32 v11, v11, v10
    v_mov_b32 v15, 0x53800000              ; 2^40
    v_cmp_nlt_f32 vcc, v11, v15            ; !(l < 2^40)
    s_cmp_eq_u32 s31, 0
    s_cbranch_scc0 Lk2_store
    {"" if nofb else "s_cbranch_vccnz Lk2_fallback"}
Lk2_store:
    v_rcp_f32 v10, v10
    s_mul_i32 s21, s15, 40960
    s_add_u32 s21, s21, {OF_OFF}
    v_mov_b32 v11, v10
    """)
    for p in range(6):
        A(f"v_pk_mul_f32 v[{O_+2*p}:{O_+2*p+1}], v[{O_+2*p}:{O_+2*p+1}], v[10:11]")
    for p in range(6):
        A(f"v_cvt_pk_bf16_f32 v{16+p}, v{O_+2*p}, v{O_+2*p+1}")
    A(f"""
    buffer_store_dwordx4 v[16:19], v152, s[8:11], s21 offen sc1
    s_mov_b64 exec, s[28:29]
    buffer_store_dwordx2 v[20:21], v153, s[8:11], s21 offen sc1
    """)
    A("s_mov_b64 exec, -1")
    A("s_waitcnt vmcnt(0)")
    A("s_barrier")
    A(f"""
    s_cmp_eq_u32 s12, 0
    s_cbranch_scc0 Lk2_nopub
    s_mul_i32 s20, s14, {FROW}
    s_lshl_b32 s21, s13, 2
    s_add_u32 s20, s20, s21
    s_add_u32 s20, s20, {OFLAG_OFF}
    """)
    if fused:
        get_tag(A, FLAG + LF_TAG, "s21", tmp=(16, 17))
        A("v_mov_b32 v16, s21")
    else:
        A("v_mov_b32 v16, 1")
    A(f"""
    v_mov_b32 v17, 0
    s_mov_b64 exec, 1
    buffer_store_dword v16, v17, s[8:11], s20 offen sc1
    s_mov_b64 exec, -1
Lk2_nopub:
    """)
    if prof:
        A("s_mov_b64 exec, -1")
        if lstamp: wl_dump(A, 150, 1, 8, 12, 21)
        prof_end(A, 1, 8, 12, tmpv=(16, 17, 18, 19, 20), extra="s90")
    if tl: tl2_record(A, 1, 8, 12)
    if mprof == 2:
        wl_stamp(A, 160, 7)
        dbg_dump_lanes(A, 160, 1, 8, 37, 12, 1)
    elif mprof:
        wl_stamp(A, 160, 7)
        wl_dump(A, 160, 1, 8, 12, 21)
        A("s_mov_b32 s90, 0")
        prof_end(A, 1, 8, 12, tmpv=(16, 17, 18, 19, 20), extra="s90")
    A("s_endpgm")

    s = X0
    A(f"""
Lk2_fallback:
    s_mov_b32 s31, 1
    v_and_b32 v9, 31, v1
    v_lshlrev_b32 v11, 3, v9
    v_add_u32 v11, 1024, v11
    v_mov_b32 v14, 0xff800000
    s_mov_b32 s18, 0
Lk2_fb1:
    s_lshr_b32 s20, s18, 3
    s_mul_i32 s20, s20, {CH}
    s_and_b32 s21, s18, 7
    s_mul_i32 s21, s21, 1280
    s_add_u32 s20, s20, s21
    s_add_u32 s20, s20, s16
    buffer_load_dwordx4 v[{KF[0]}:{KF[0]+3}], v8, s[8:11], s20 offen
    buffer_load_dwordx2 v[{KT}:{KT+1}], v11, s[8:11], s20 offen
    s_waitcnt vmcnt(0)
    {mf(s, KF[0], QM, None)}
    {mf(s+16, KF[0], QM, None)}
    s_nop 11
    {mf2b(s, KT, QT, s)}
    s_nop 15
    s_nop 7
    """)
    for i in range(0, 16, 2):
        A(f"v_max3_f32 v14, v14, v{s+i}, v{s+i+1}")
    A(f"""
    s_add_u32 s18, s18, 1
    s_cmp_lt_u32 s18, 64
    s_cbranch_scc1 Lk2_fb1
    v_mov_b32 v15, v14
    s_nop 1
    v_permlane32_swap_b32 v14, v15
    s_nop 1
    v_max_f32 v14, v14, v15
    """)
    for i in range(16): A(f"v_mov_b32 v{O_+i}, 0")
    A(f"""
    s_mov_b32 s18, 0
Lk2_fb2:
    s_lshr_b32 s20, s18, 3
    s_mul_i32 s20, s20, {CH}
    s_and_b32 s21, s18, 7
    s_mul_i32 s22, s21, {VT}
    s_add_u32 s22, s22, s20
    s_add_u32 s22, s22, s16
    s_mul_i32 s21, s21, 1280
    s_add_u32 s20, s20, s21
    s_add_u32 s20, s20, s16
    buffer_load_dwordx4 v[{KF[0]}:{KF[0]+3}], v8, s[8:11], s20 offen
    buffer_load_dwordx2 v[{KT}:{KT+1}], v11, s[8:11], s20 offen
    buffer_load_dwordx4 v[{V0}:{V0+3}], v7, s[8:11], s22 offen
    buffer_load_dwordx4 v[{V1}:{V1+3}], v7, s[8:11], s22 offen offset:{2*VH}
    s_waitcnt vmcnt(0)
    {mf(s, KF[0], QM, None)}
    {mf(s+16, KF[0], QM, None)}
    s_nop 11
    {mf2b(s, KT, QT, s)}
    s_nop 15
    s_nop 7
    """)
    for i in range(16): A(f"v_sub_f32 v{s+i}, v{s+i}, v14")
    for i in range(16): A(f"v_exp_f32 v{s+i}, v{s+i}")
    A("s_nop 0")
    for i in range(8): A(f"v_cvt_pk_bf16_f32 v{P_+i}, v{s+2*i}, v{s+2*i+1}")
    A(f"""
    s_nop 1
    {mf(O_, V0, P_, O_)}
    {mf(O_, V1, P_+4, O_)}
    s_add_u32 s18, s18, 1
    s_cmp_lt_u32 s18, 64
    s_cbranch_scc1 Lk2_fb2
    s_nop 15
    s_branch Lk2_fin
Lk2_end:
    s_endpgm
    """)
    if shadow: gen_shadow(A, (mprof if mprof else prof), shprio, SH_BASE, FLAG, NA=na, fused=fused, outf=outf)
    else: A("Lk2_shadow:\ns_barrier\ns_barrier\ns_endpgm")
    if fused: return A.text()
    return A.text(), kdesc(NAME, 168), f"; @launch kernel={NAME} grid=(256,1,1) block=(768,1,1) lds={LDS_BYTES}"
```

```python
from asm import *
from common import *
from k2_shadow import gen_shadow

NAME = "k2_kernel"
SLOT = 24576
SH_BASE = 3 * SLOT
FLAG = MEGA_FLAG
LDS_BYTES = FLAG + 256

X_ = [16, 48]
P_ = 80
O_ = 88
C_ = 104
QM = 120
QT = 124
KF = [126, 130]
KT = 134
V0 = 136
V1 = 140
FL = 144

def mf(d, a, b, c):
    cs = "0" if c is None else f"v[{c}:{c+15}]"
    return f"v_mfma_f32_32x32x16_bf16 v[{d}:{d+15}], v[{a}:{a+3}], v[{b}:{b+3}], {cs}"
def mf2b(d, a, b, c):
    cs = "0" if c is None else f"v[{c}:{c+31}]"
    return f"v_mfma_f32_32x32x4_2b_bf16 v[{d}:{d+31}], v[{a}:{a+1}], v[{b}:{b+1}], {cs}"

def vslot(A, row, dst, t1):
    A(f"""
    v_mov_b32 v{dst}, v{row}
    v_add_u32 v{t1}, 12, v{row}
    v_cmp_lt_u32 vcc, 3, v{row}
    s_nop 1
    v_cndmask_b32 v{dst}, v{dst}, v{t1}, vcc
    v_subrev_u32 v{t1}, 1, v{row}
    v_cmp_lt_u32 vcc, 9, v{row}
    s_nop 1
    v_cndmask_b32 v{dst}, v{dst}, v{t1}, vcc
    v_subrev_u32 v{t1}, 8, v{row}
    v_cmp_lt_u32 vcc, 11, v{row}
    s_nop 1
    v_cndmask_b32 v{dst}, v{dst}, v{t1}, vcc
    v_subrev_u32 v{t1}, 5, v{row}
    v_cmp_lt_u32 vcc, 15, v{row}
    s_nop 1
    v_cndmask_b32 v{dst}, v{dst}, v{t1}, vcc
    v_cmp_lt_u32 vcc, 19, v{row}
    s_nop 1
    v_cndmask_b32 v{dst}, v{dst}, 8, vcc
    v_cmp_lt_u32 vcc, 20, v{row}
    s_nop 1
    v_cndmask_b32 v{dst}, v{dst}, 15, vcc
    """)

def gen_k2(prof=False, exp_mode=0, shadow=True, shprio=0, pa=1, pb=2, tl=0, nofb=0, lstamp=0, desc=3, na=11, fused=False, mprof=0, dbg2=0, oft=0, outf=0, tm=0, part=1):
    KT4 = 152; QA4 = 156; QB4 = 164
    A = Asm(10000)
    if not fused:
        A(khead(NAME))
        A(f"""
        s_cmp_ge_u32 s2, 256
        s_cbranch_scc1 Lk2_end
        """)
        if prof: prof_start(A)
        if tl: tl_start(A, 1)
    def ids():
        A(f"""
        s_load_dwordx2 s[4:5], s[0:1], 80
        v_lshrrev_b32 v9, 6, v0
        v_and_b32 v1, 63, v0                   ; lane
        s_and_b32 s20, s2, 7
        v_readfirstlane_b32 s12, v9            ; wave
        s_lshr_b32 s21, s2, 3
        s_and_b32 s22, s21, 3
        s_lshl_b32 s13, s20, 2
        s_add_u32 s13, s13, s22                ; h
        s_lshr_b32 s14, s21, 2                 ; qb
        s_lshl_b32 s15, s14, 3
        s_add_u32 s15, s15, s12                ; T
        """)
    if fused:
        A("Lshadow_entry:")
        ids()
        A("s_branch Lk2_shadow")
        A("Lattn_entry:")
        A("s_setprio 0")
        ids()
    else:
        ids()
        A("s_cmp_ge_u32 s12, 8")
        A("s_cbranch_scc1 Lk2_shadow")
    A(f"""
    s_mul_i32 s16, s13, {HSK}
    s_add_u32 s16, s16, {KV_OFF}
    s_mul_i32 s23, s13, {HSQ}
    s_mul_i32 s24, s15, 1280
    s_add_u32 s23, s23, s24
    s_add_u32 s23, s23, {QF_OFF}
    v_lshlrev_b32 v8, 4, v1                ; lane*16
    v_and_b32 v9, 31, v1
    v_lshrrev_b32 v10, 5, v1               ; hf
    v_lshlrev_b32 v11, 3, v9
    v_add_u32 v11, 1024, v11               ; 1024 + token*8
    s_mul_i32 s25, s12, 3072
    s_add_u32 s17, s16, s25
    """)
    if fused and part:
        A(f"""
        s_add_u32 s44, s17, {8*CH}
        s_mul_i32 s20, s14, {CH}
        s_add_u32 s17, s17, s20
        """)
    A(f"""
    s_waitcnt lgkmcnt(0)
    """)
    srd_ws(A, 8, 4, WS_RECORDS)
    def dma_groups(slot_sgpr, slot_imm=0):
        g = []
        for j in range(3):
            m0 = f"s_add_u32 m0, {slot_sgpr}, {slot_imm + j*1024}"
            g.append([m0, f"s_add_u32 s26, s17, {j*1024}", f"buffer_load_dwordx4 v8, s[8:11], s26 offen lds"])
        if fused and part:
            g.append([f"s_add_u32 s17, s17, {CH}", "s_cmp_ge_u32 s17, s44", f"s_cselect_b32 s26, {8*CH}, 0", "s_sub_u32 s17, s17, s26"])
        else:
            g.append([f"s_add_u32 s17, s17, {CH}"])
        return g
    def first_loads():
        for grp in dma_groups("s25", 0):
            for l in grp: A(l)
        A(f"""
        buffer_load_dwordx4 v[{QM}:{QM+3}], v8, s[8:11], s23 offen
        buffer_load_dwordx2 v[{QT}:{QT+1}], v11, s[8:11], s23 offen
        """)
        if not fused:
            for grp in dma_groups("s25", SLOT):
                for l in grp: A(l)
    if not fused: first_loads()
    A(f"""
    v_cmp_gt_u32 s[28:29], 32, v1          ; lanes < 32
    v_mov_b32 v5, v8
    v_mul_u32_u24 v6, 1280, v10
    v_add_u32 v6, v6, v11
    """)
    A(f"""
    s_and_b32 s20, s13, 1
    s_mov_b32 s21, 0x43120
    s_cmp_eq_u32 s20, 1
    s_cselect_b32 s21, 0x04231, s21        ; odd h: 1,3,2,4,0
    v_lshrrev_b32 v14, 2, v9
    v_lshlrev_b32 v14, 2, v14              ; 4*g
    v_lshrrev_b32 v15, v14, s21
    v_and_b32 v15, 15, v15                 ; j
    v_and_b32 v14, 3, v9
    v_lshl_add_u32 v15, v15, 2, v14        ; dh
    v_cmp_gt_u32 vcc, 20, v9
    s_nop 1
    v_cndmask_b32 v16, v9, v15, vcc
    """)
    vslot(A, 16, 14, 15)
    A(f"""
    s_mul_i32 s21, s13, 5
    v_and_b32 v16, 15, v1
    v_lshlrev_b32 v16, 4, v16              ; token16*16
    v_bfe_u32 v17, v1, 4, 1
    v_mul_u32_u24 v17, 20480, v17
    v_add_u32 v16, v16, v17
    v_lshlrev_b32 v17, 1, v10              ; 2*hf
    v_add_u32 v17, s20, v17
    v_add_u32 v17, s21, v17                ; G0
    v_lshrrev_b32 v18, 3, v17
    v_lshlrev_b32 v18, 10, v18
    v_bfe_u32 v17, v17, 1, 2
    v_lshl_add_u32 v18, v17, 8, v18
    v_add_u32 v152, v18, v16
    s_xor_b32 s20, s20, 1
    s_lshl_b32 s20, s20, 2
    s_add_u32 s20, s20, s21                ; G1
    s_lshr_b32 s21, s20, 3
    s_lshl_b32 s21, s21, 10
    s_bfe_u32 s22, s20, 0x20001
    s_lshl_b32 s22, s22, 8
    s_add_u32 s21, s21, s22
    s_and_b32 s20, s20, 1
    s_lshl_b32 s20, s20, 3
    s_add_u32 s21, s21, s20
    v_add_u32 v153, s21, v16
    v_mul_u32_u24 v7, {VH}, v10
    v_lshl_add_u32 v7, v14, 4, v7
    v_add_u32 v7, {VPART}, v7
    v_mov_b32 v2, v5
    v_mov_b32 v3, v6
    v_mov_b32 v4, v7
    """)
    if not fused:
        A(f"""
        v_lshlrev_b32 v12, 2, v1
        v_add_u32 v12, {FLAG}, v12
        v_mov_b32 v13, 0
        s_cmp_eq_u32 s12, 0
        s_cbranch_scc0 Lk2_noclr
        s_mov_b64 exec, s[28:29]
        ds_write_b32 v12, v13
        s_mov_b64 exec, -1
Lk2_noclr:
        """)
    A(f"""
    v_and_b32 v12, 7, v1
    v_lshlrev_b32 v12, 2, v12
    v_add_u32 v12, {FLAG}, v12             ; v12: full[lane&7] ; +32: free[lane&7]
    s_lshl_b32 s33, s12, 2
    s_add_u32 s33, s33, {FLAG}
    v_mov_b32 v13, s33                     ; v13: own full word ; +32 own free word
    """)
    for i in range(4): A(f"v_mov_b32 v{V1+i}, 0")
    for i in range(4): A(f"v_mov_b32 v{P_+4+i}, 0")
    for i in range(16): A(f"v_mov_b32 v{O_+i}, 0")
    X0 = X_[0]
    if fused:
        if oft:
            A(f"""
            s_cmp_eq_u32 s12, 6
            s_cbranch_scc0 Lattn_nooft
            v_lshrrev_b32 v146, 2, v1
            s_lshl_b32 s20, s14, 4
            v_add_u32 v146, s20, v146              ; T16
            v_mul_u32_u24 v146, 20480, v146
            v_and_b32 v147, 1, v1
            v_lshl_add_u32 v146, v147, 7, v146     ; + line*128
            v_bfe_u32 v147, v1, 1, 1
            s_mul_i32 s20, s13, 5
            """)
            for m in range(3):
                A(f"""
                v_add_u32 v148, {2*m}, v147
                v_min_u32 v148, 4, v148
                v_add_u32 v148, s20, v148              ; G
                v_lshrrev_b32 v149, 3, v148
                v_lshlrev_b32 v149, 10, v149
                v_bfe_u32 v148, v148, 1, 2
                v_lshl_add_u32 v149, v148, 8, v149
                v_add_u32 v149, v149, v146
                s_mov_b32 s21, {OF_OFF}
                buffer_load_dword v150, v149, s[8:11], s21 offen sc1
                """)
            A("Lattn_nooft:")
        A("s_cmp_eq_u32 s12, 5")
        A("s_cbranch_scc0 Lattn_nopub")
        lds_spin(A, FLAG + LF_HD + 12, 1, 1, tmp=(146, 147), sleep=0)
        lds_spin(A, FLAG + LF_PD, 1, 4, tmp=(146, 147), sleep=0)
        get_tag(A, FLAG + LF_TAG, "s35", tmp=(146, 147))
        A(f"""
        s_and_b32 s20, s2, 7
        s_lshr_b32 s21, s2, 3
        s_and_b32 s22, s20, 1
        s_lshl_b32 s22, s22, 3
        s_and_b32 s24, s21, 7
        s_add_u32 s22, s22, s24                ; rb
        s_lshr_b32 s20, s20, 1
        s_lshl_b32 s20, s20, 2
        s_lshr_b32 s21, s21, 3
        s_add_u32 s20, s20, s21                ; cgp
        s_mul_i32 s20, s20, {FROW}
        s_lshl_b32 s22, s22, 2
        s_add_u32 s20, s20, s22
        s_add_u32 s20, s20, {F1A_OFF}
        v_mul_u32_u24 v146, {FREP}, v1
        v_mov_b32 v147, s35
        s_mov_b64 exec, 0xf
        buffer_store_dword v147, v146, s[8:11], s20 offen sc1
        s_mov_b64 exec, -1
        """)
        if mprof == 1:
            wl_stamp(A, 160, 8)
            A("s_waitcnt vmcnt(0)")
            wl_stamp(A, 160, 9)
        A("Lattn_nopub:")
        A("s_cmp_eq_u32 s12, 4")
        A("s_cbranch_scc0 Lattn_wgo")
        get_tag(A, FLAG + LF_TAG, "s35", tmp=(146, 147))
        lds_spin(A, FLAG + LF_PD, 1, 4, tmp=(146, 147), sleep=1)
        if mprof: wl_stamp(A, 160, 1)
        A(f"""
        s_mul_i32 s20, s13, 20
        s_add_u32 s21, s20, 19
        s_lshr_b32 s20, s20, 7
        s_lshr_b32 s21, s21, 7
        v_and_b32 v146, 15, v1
        v_lshlrev_b32 v146, 2, v146
        v_bfe_u32 v147, v1, 4, 1
        v_mov_b32 v148, s20
        v_mov_b32 v149, s21
        v_cmp_eq_u32 vcc, 1, v147
        s_nop 1
        v_cndmask_b32 v148, v148, v149, vcc    ; cb
        v_lshrrev_b32 v147, 5, v1              ; 0: K, 1: V
        v_mul_u32_u24 v147, 5, v147
        v_add_u32 v147, 5, v147
        v_add_u32 v147, v147, v148
        v_mul_u32_u24 v147, {FROW}, v147
        v_add_u32 v147, v147, v146
        v_mul_u32_u24 v148, {FROW}, v148
        v_add_u32 v148, v148, v146
        v_bfe_u32 v149, v1, 1, 3
        v_cmp_eq_u32 s[36:37], s14, v149
        v_cmp_gt_u32 vcc, 32, v1
        s_and_b64 s[36:37], s[36:37], vcc
        s_lshr_b32 s20, s2, 3
        s_and_b32 s20, s20, 3
        s_mul_i32 s20, s20, {FREP}
        s_add_u32 s20, s20, {F1A_OFF}
        s_mov_b32 s45, s20
        """)
        if part:
            A(f"""
            v_and_b32 v149, 15, v1
            s_lshl_b32 s21, s14, 1
            v_subrev_u32 v149, s21, v149
            v_and_b32 v149, 15, v149
            v_cmp_gt_u32 s[46:47], 4, v149
            """)
        else:
            A("s_mov_b64 s[46:47], -1")
        A(f"""
        s_mov_b32 s34, 0x40000
Lattn_poll:
        buffer_load_dword v150, v147, s[8:11], s20 offen sc1
        buffer_load_dword v151, v148, s[8:11], s20 offen sc1
        s_waitcnt vmcnt(0)
        """)
        if mprof == 1:
            A("s_cmp_eq_u32 s34, 0x40000")
            A("s_cbranch_scc0 Lattn_np")
            wl_stamp(A, 160, 8)
            A("Lattn_np:")
        A(f"""
        v_cmp_eq_u32 vcc, s35, v150
        v_cmp_eq_u32 s[38:39], s35, v151
        s_orn2_b64 vcc, vcc, s[46:47]
        s_orn2_b64 s[38:39], s[38:39], s[36:37]
        s_and_b64 vcc, vcc, s[38:39]
        s_cmp_eq_u64 vcc, exec
        s_cbranch_scc1 Lattn_polled
        s_sleep 2
        s_sub_u32 s34, s34, 1
        s_cbranch_scc0 Lattn_poll
Lattn_polled:
        """)
        if mprof: wl_stamp(A, 160, 2)
        if mprof == 1:
            A("s_sub_u32 s34, 0x40000, s34")
            A("v_writelane_b32 v160, s34, 9")
        lds_set(A, FLAG + LF_GO, 1, tmp=(146, 149))
        A("s_branch Lattn_go")
        A("Lattn_wgo:")
        lds_spin(A, FLAG + LF_GO, 1, 1, tmp=(146, 147), sleep=1)
        A("Lattn_go:")
        if mprof and not dbg2: wl_stamp(A, 160, 3)
        first_loads()
    A(f"""
    s_waitcnt vmcnt({0 if fused else 3}) lgkmcnt(0)
    """)
    if fused:
        for grp in dma_groups("s25", SLOT):
            for l in grp: A(l)
        A(f"v_mov_b32 v{FL}, 1")
        A(f"ds_write_b32 v13, v{FL}")
        lds_spin(A, FLAG + LF_FULL, 1, 8, tmp=(FL, FL + 1), sleep=0, cnt="s34")
        if mprof and not dbg2: wl_stamp(A, 160, 4)
    else:
        A("s_barrier")
    KTr = KT4 if tm else KT
    if tm:
        A(f"""
        v_cndmask_b32 v{QA4}, 0, v{QT}, s[28:29]
        v_cndmask_b32 v{QA4+1}, 0, v{QT+1}, s[28:29]
        v_mov_b32 v{QA4+2}, 0
        v_mov_b32 v{QA4+3}, 0
        v_cndmask_b32 v{QB4}, v{QT}, 0, s[28:29]
        v_cndmask_b32 v{QB4+1}, v{QT+1}, 0, s[28:29]
        v_mov_b32 v{QB4+2}, 0
        v_mov_b32 v{QB4+3}, 0
        v_mov_b32 v{KT4+2}, 0
        v_mov_b32 v{KT4+3}, 0
        """)
    A(f"""
    ds_read_b128 v[{KF[0]}:{KF[0]+3}], v2
    ds_read_b128 v[{KF[1]}:{KF[1]+3}], v2 offset:1280
    ds_read_b64 v[{KTr}:{KTr+1}], v3
    ds_read_b128 v[{V0}:{V0+3}], v4
    s_waitcnt lgkmcnt(0)
    {mf(X0, KF[0], QM, None)}
    {mf(X0+16, KF[1], QM, None)}
    """)
    if tm:
        A(mf(X0, KT4, QA4, X0)); A(mf(X0+16, KT4, QB4, X0+16)); A("s_nop 15")
    else:
        A("s_nop 11"); A(mf2b(X0, KT, QT, X0)); A("s_nop 15"); A("s_nop 7")
    A(f"v_max3_f32 v9, v{X0}, v{X0+1}, v{X0+2}")
    for i in range(3, 31, 2):
        A(f"v_max3_f32 v9, v9, v{X0+i}, v{X0+i+1}")
    A(f"v_max_f32 v9, v9, v{X0+31}")
    A(f"""
    v_mov_b32 v10, v9
    s_nop 1
    v_permlane32_swap_b32 v9, v10
    s_nop 1
    v_max_f32 v9, v9, v10
    """)
    A("v_sub_f32 v14, 0, v9")
    A("v_mov_b32 v15, v14")
    for i in range(16): A(f"v_pk_add_f32 v[{X0+2*i}:{X0+2*i+1}], v[{X0+2*i}:{X0+2*i+1}], v[14:15]")
    for i in range(16): A(f"v_mov_b32 v{C_+i}, v14")
    A(f"""
    ds_read_b128 v[{KF[0]}:{KF[0]+3}], v2 offset:{2*1280}
    ds_read_b128 v[{KF[1]}:{KF[1]+3}], v2 offset:{3*1280}
    ds_read_b64 v[{KTr}:{KTr+1}], v3 offset:{2*1280}
    s_mov_b32 s18, 0
    s_mov_b32 s19, {SLOT}
    s_mov_b32 s27, {2*SLOT}
    s_setprio {pa}
    s_cmp_ge_u32 s12, 4
    s_cbranch_scc0 Lk2_noprio
    s_setprio {pb}
Lk2_noprio:
    """)
    if prof:
        A("s_memtime s[90:91]")
        A("s_waitcnt lgkmcnt(0)")
        A("s_sub_u32 s90, s90, s92")
    A0 = A
    class F:
        def __call__(self, l):
            for x in l.strip("\n").split("\n"):
                ls = x.strip()
                if exp_mode == 2 and ls.startswith("v_mfma"): continue
                if exp_mode == 3 and (ls.startswith("v_exp") or ls.startswith("v_cvt")): continue
                if exp_mode == 4 and (ls.startswith("ds_read_b128") or ls.startswith("ds_read_b64")): continue
                if exp_mode == 5 and ls.startswith("v_mfma_f32_32x32x4"): continue
                if exp_mode == 6 and (ls.startswith("ds_read_b128") or ls.startswith("ds_read_b64") or ls.startswith("v_mfma")): continue
                if exp_mode == 7 and ls.startswith("buffer_load"): continue
                A0(x)
        def label(self, b): return A0.label(b)
    if lstamp: wl_stamp(A, 150, 0)
    if mprof: wl_stamp(A, 160, 5)
    A("Lk2_loop:")
    A = F()
    def check(reg, need_sgpr, tag):
        lab = A.label(tag)
        off = 32 if tag == "free" else 0
        A(f"""
        v_cmp_le_u32 vcc, {need_sgpr}, v{reg}
        s_cmp_eq_u64 vcc, exec
        s_cbranch_scc1 {lab}
        s_mov_b32 s34, 0x40000
        {lab}_s:
        s_sub_u32 s34, s34, 1
        s_cbranch_scc1 {lab}
        s_sleep 1
        ds_read_b32 v{reg}, v12 offset:{off}
        s_waitcnt lgkmcnt(0)
        v_cmp_le_u32 vcc, {need_sgpr}, v{reg}
        s_cmp_eq_u64 vcc, exec
        s_cbranch_scc0 {lab}_s
        {lab}:
        """)
    def tile(sc, first, pr, t):
        sn = X_[(pr + 1) & 1]
        kt = (2*pr + 4) & 7
        E = lambda i: f"v_exp_f32 v{sc+i}, v{sc+i}"
        C = lambda p, a: f"v_cvt_pk_bf16_f32 v{P_+p}, v{sc+a}, v{sc+a+1}"
        pre = []
        if desc == 1 and t % 2 == 0: A(f"s_setprio {3 - t // 2}")
        if desc == 2 and t % 2 == 0: A(f"s_setprio {max(1, 3 - t // 2) if t < 6 else 1}")
        if desc == 3: A(f"s_setprio {3 - (t % 4)}")
        if desc in (4, 5): A(f"s_setprio {3 - 2*(t % 2)}")
        if desc == 6: A(f"s_setprio {[3,3,2,2,1,1,0,0][t]}") if t % 2 == 0 else None
        if desc == 7: A(f"s_setprio {[3,2,1,0,0,1,2,3][t]}")
        if desc == 8: A(f"s_setprio {[3,2,2,1,1,0,0,0][t]}")
        A("s_waitcnt lgkmcnt(0)")
        if t == 0:
            A(f"""
            v_mov_b32 v{FL+1}, s18
            ds_write_b32 v13, v{FL+1} offset:32
            """)
        if t == 2:
            A(f"""
            s_waitcnt vmcnt(0)
            s_add_u32 s31, s18, 2
            v_mov_b32 v{FL+1}, s31
            ds_write_b32 v13, v{FL+1}
            """)
        if t == 4:
            nofull = A.label("nofull")
            A("s_cmp_lt_u32 s18, 7")
            A(f"s_cbranch_scc0 {nofull}")
            A("s_add_u32 s31, s18, 2")
            check(FL + 1, "s31", "full")
            A(f"{nofull}:")
            A("v_add_u32 v2, s19, v5")
            A("v_add_u32 v3, s19, v6")
        if first:
            A(mf(sn, KF[0], QM, C_))
            A(f"ds_read_b128 v[{KF[0]}:{KF[0]+3}], v2 offset:{kt*1280}")
        elif tm:
            A(mf(sn, KT4, QA4, sn))
        else:
            A(mf2b(sn, KT, QT, sn))
            A(f"ds_read_b64 v[{KT}:{KT+1}], v3 offset:{kt*1280}")
        if t == 1: A(f"ds_read_b32 v{FL}, v12 offset:32")
        if t == 3: A(f"ds_read_b32 v{FL+1}, v12")
        for i in range(4): A(E(i))
        A(mf(O_, V1, P_+4, O_))
        A(f"ds_read_b128 v[{V1}:{V1+3}], v4 offset:{t*VT + 2*VH}")
        if t == 7:
            A("v_add_u32 v4, s19, v7")
        dg = []
        if t == 2:
            skip = A.label("k2skip")
            A(f"s_cmp_lt_u32 s18, 6")
            A(f"s_cbranch_scc0 {skip}")
            if fused and part:
                ga = A.label("goall")
                A(f"""
                s_cmp_eq_u32 s18, 0
                s_cbranch_scc0 {ga}
                s_cmp_eq_u32 s12, 4
                s_cbranch_scc0 {ga}_w
                s_mov_b32 s34, 0x40000
                {ga}_p:
                buffer_load_dword v150, v147, s[8:11], s45 offen sc1
                s_waitcnt vmcnt(0)
                v_cmp_eq_u32 vcc, s35, v150
                s_cmp_eq_u64 vcc, exec
                s_cbranch_scc1 {ga}_s
                s_sleep 2
                s_sub_u32 s34, s34, 1
                s_cbranch_scc0 {ga}_p
                {ga}_s:
                v_mov_b32 v150, {FLAG + LF_GOALL}
                v_mov_b32 v151, 1
                ds_write_b32 v150, v151
                s_branch {ga}
                {ga}_w:
                """)
                lds_spin(A, FLAG + LF_GOALL, 1, 1, tmp=(150, 151), sleep=1, cnt="s34")
                A(f"{ga}:")
            check(FL, "s18", "free")
            A("s_add_u32 s30, s27, s25")
            for grp in dma_groups("s30"):
                for l in grp: A(l)
            A(f"{skip}:")
        A(C(0, 0)); A(E(4)); A(C(1, 2))
        for i in (5, 6, 7): A(E(i))
        if desc == 4: A(f"s_setprio {2 - 2*(t % 2)}")
        if first:
            A(mf(sn + 16, KF[1], QM, C_))
            A(f"ds_read_b128 v[{KF[1]}:{KF[1]+3}], v2 offset:{(kt+1)*1280}")
        elif tm:
            A(mf(sn + 16, KT4, QB4, sn + 16))
            A(f"ds_read_b64 v[{KT4}:{KT4+1}], v3 offset:{kt*1280}")
        A(C(2, 4)); A(E(8)); A(C(3, 6)); A(E(9)); A(E(10))
        A(mf(O_, V0, P_, O_))
        A(f"ds_read_b128 v[{V0}:{V0+3}], v4 offset:{((t+1)&7)*VT}")
        for i in (11, 12, 13): A(E(i))
        A(C(4, 8)); A(E(14)); A(C(5, 10)); A(E(15)); A(C(6, 12)); A(C(7, 14))
    for pr in range(4):
        cur = X_[pr & 1]
        tile(cur, True, pr, 2*pr)
        tile(cur + 16, False, pr, 2*pr + 1)
    A = A0
    A(f"""
    s_mov_b32 s19, s27
    s_add_u32 s27, s27, {SLOT}
    s_cmp_ge_u32 s27, {3*SLOT}
    s_cselect_b32 s27, 0, s27
    s_add_u32 s18, s18, 1
    s_cmp_lt_u32 s18, 8
    s_cbranch_scc1 Lk2_loop
    """)
    if lstamp: wl_stamp(A, 150, 1)
    if mprof: wl_stamp(A, 160, 6)
    A(f"""
    s_waitcnt lgkmcnt(0)
    {mf(O_, V1, P_+4, O_)}
    s_mov_b32 s31, 0
    s_nop 15
Lk2_fin:
    v_mov_b32 v9, v{O_+8}
    v_mov_b32 v10, v{O_+8}
    s_nop 1
    v_permlane32_swap_b32 v9, v10
    s_nop 1
    v_mul_f32 v11, 0, v{O_}
    """)
    for i in range(1, 8): A(f"v_fma_f32 v11, v{O_+i}, 0, v11")
    A(f"v_mul_f32 v14, 0, v{O_+8}")
    for i in range(9, 12): A(f"v_fma_f32 v14, v{O_+i}, 0, v14")
    A(f"""
    v_cndmask_b32 v14, 0, v14, s[28:29]
    v_add_f32 v11, v11, v14
    v_add_f32 v11, v11, v10
    v_mov_b32 v15, 0x53800000              ; 2^40
    v_cmp_nlt_f32 vcc, v11, v15            ; !(l < 2^40)
    s_cmp_eq_u32 s31, 0
    s_cbranch_scc0 Lk2_store
    {"" if nofb else "s_cbranch_vccnz Lk2_fallback"}
Lk2_store:
    v_rcp_f32 v10, v10
    s_mul_i32 s21, s15, 40960
    s_add_u32 s21, s21, {OF_OFF}
    v_mov_b32 v11, v10
    """)
    for p in range(6):
        A(f"v_pk_mul_f32 v[{O_+2*p}:{O_+2*p+1}], v[{O_+2*p}:{O_+2*p+1}], v[10:11]")
    for p in range(6):
        A(f"v_cvt_pk_bf16_f32 v{16+p}, v{O_+2*p}, v{O_+2*p+1}")
    A(f"""
    buffer_store_dwordx4 v[16:19], v152, s[8:11], s21 offen sc1
    s_mov_b64 exec, s[28:29]
    buffer_store_dwordx2 v[20:21], v153, s[8:11], s21 offen sc1
    """)
    A("s_mov_b64 exec, -1")
    A("s_waitcnt vmcnt(0)")
    A("s_barrier")
    A(f"""
    s_cmp_eq_u32 s12, 0
    s_cbranch_scc0 Lk2_nopub
    s_mul_i32 s20, s14, {FROW}
    s_lshl_b32 s21, s13, 2
    s_add_u32 s20, s20, s21
    s_add_u32 s20, s20, {OFLAG_OFF}
    """)
    if fused:
        get_tag(A, FLAG + LF_TAG, "s21", tmp=(16, 17))
        A("v_mov_b32 v16, s21")
    else:
        A("v_mov_b32 v16, 1")
    A(f"""
    v_mov_b32 v17, 0
    s_mov_b64 exec, 1
    buffer_store_dword v16, v17, s[8:11], s20 offen sc1
    s_mov_b64 exec, -1
Lk2_nopub:
    """)
    if prof:
        A("s_mov_b64 exec, -1")
        if lstamp: wl_dump(A, 150, 1, 8, 12, 21)
        prof_end(A, 1, 8, 12, tmpv=(16, 17, 18, 19, 20), extra="s90")
    if tl: tl2_record(A, 1, 8, 12)
    if mprof == 2:
        wl_stamp(A, 160, 7)
        dbg_dump_lanes(A, 160, 1, 8, 37, 12, 1)
    elif mprof:
        wl_stamp(A, 160, 7)
        wl_dump(A, 160, 1, 8, 12, 21)
        A("s_mov_b32 s90, 0")
        prof_end(A, 1, 8, 12, tmpv=(16, 17, 18, 19, 20), extra="s90")
    A("s_endpgm")

    s = X0
    A(f"""
Lk2_fallback:
    s_mov_b32 s31, 1
    v_and_b32 v9, 31, v1
    v_lshlrev_b32 v11, 3, v9
    v_add_u32 v11, 1024, v11
    v_mov_b32 v14, 0xff800000
    s_mov_b32 s18, 0
Lk2_fb1:
    s_lshr_b32 s20, s18, 3
    s_mul_i32 s20, s20, {CH}
    s_and_b32 s21, s18, 7
    s_mul_i32 s21, s21, 1280
    s_add_u32 s20, s20, s21
    s_add_u32 s20, s20, s16
    buffer_load_dwordx4 v[{KF[0]}:{KF[0]+3}], v8, s[8:11], s20 offen
    buffer_load_dwordx2 v[{KT}:{KT+1}], v11, s[8:11], s20 offen
    s_waitcnt vmcnt(0)
    {mf(s, KF[0], QM, None)}
    {mf(s+16, KF[0], QM, None)}
    s_nop 11
    {mf2b(s, KT, QT, s)}
    s_nop 15
    s_nop 7
    """)
    for i in range(0, 16, 2):
        A(f"v_max3_f32 v14, v14, v{s+i}, v{s+i+1}")
    A(f"""
    s_add_u32 s18, s18, 1
    s_cmp_lt_u32 s18, 64
    s_cbranch_scc1 Lk2_fb1
    v_mov_b32 v15, v14
    s_nop 1
    v_permlane32_swap_b32 v14, v15
    s_nop 1
    v_max_f32 v14, v14, v15
    """)
    for i in range(16): A(f"v_mov_b32 v{O_+i}, 0")
    A(f"""
    s_mov_b32 s18, 0
Lk2_fb2:
    s_lshr_b32 s20, s18, 3
    s_mul_i32 s20, s20, {CH}
    s_and_b32 s21, s18, 7
    s_mul_i32 s22, s21, {VT}
    s_add_u32 s22, s22, s20
    s_add_u32 s22, s22, s16
    s_mul_i32 s21, s21, 1280
    s_add_u32 s20, s20, s21
    s_add_u32 s20, s20, s16
    buffer_load_dwordx4 v[{KF[0]}:{KF[0]+3}], v8, s[8:11], s20 offen
    buffer_load_dwordx2 v[{KT}:{KT+1}], v11, s[8:11], s20 offen
    buffer_load_dwordx4 v[{V0}:{V0+3}], v7, s[8:11], s22 offen
    buffer_load_dwordx4 v[{V1}:{V1+3}], v7, s[8:11], s22 offen offset:{2*VH}
    s_waitcnt vmcnt(0)
    {mf(s, KF[0], QM, None)}
    {mf(s+16, KF[0], QM, None)}
    s_nop 11
    {mf2b(s, KT, QT, s)}
    s_nop 15
    s_nop 7
    """)
    for i in range(16): A(f"v_sub_f32 v{s+i}, v{s+i}, v14")
    for i in range(16): A(f"v_exp_f32 v{s+i}, v{s+i}")
    A("s_nop 0")
    for i in range(8): A(f"v_cvt_pk_bf16_f32 v{P_+i}, v{s+2*i}, v{s+2*i+1}")
    A(f"""
    s_nop 1
    {mf(O_, V0, P_, O_)}
    {mf(O_, V1, P_+4, O_)}
    s_add_u32 s18, s18, 1
    s_cmp_lt_u32 s18, 64
    s_cbranch_scc1 Lk2_fb2
    s_nop 15
    s_branch Lk2_fin
Lk2_end:
    s_endpgm
    """)
    if shadow: gen_shadow(A, (mprof if mprof else prof), shprio, SH_BASE, FLAG, NA=na, fused=fused, outf=outf)
    else: A("Lk2_shadow:\ns_barrier\ns_barrier\ns_endpgm")
    if fused: return A.text()
    return A.text(), kdesc(NAME, 168), f"; @launch kernel={NAME} grid=(256,1,1) block=(768,1,1) lds={LDS_BYTES}"
```

```python
from asm import *
from common import *
from k2 import vslot

NAME = "k1_kernel"
SLOT = 45056
XO, WQO, W1O = 0, 16384, 32768
GATE_LDS = 3 * SLOT
UNIT_LDS = 3 * SLOT + 1536
LDS_BYTES = UNIT_LDS + 3*4096


def spf_setup(A):
    A(f"""
    s_and_b32 s41, s2, 7
    s_and_b32 s43, s41, 1                  ; rh
    s_lshr_b32 s44, s41, 1                 ; cq
    s_lshr_b32 s45, s2, 3                  ; i
    s_lshl_b32 s47, s43, 10
    s_lshl_b32 s48, s45, 5
    s_add_u32 s47, s47, s48
    s_mul_i32 s47, s47, 1280               ; (rh*1024 + 32i)*1280
    s_add_u32 s56, s4, s47
    s_addc_u32 s57, s5, 0
    s_lshl_b32 s47, s45, 1
    s_mul_i32 s48, s47, 3840
    s_lshl_b32 s49, s44, 10
    s_add_u32 s48, s48, s49                ; 2i*3840 + cq*1024
    s_add_u32 s58, s6, s48
    s_addc_u32 s59, s7, 0
    s_cmp_eq_u32 s44, 3
    s_cselect_b32 s49, 256, 0
    s_sub_u32 s48, s48, s49
    s_add_u32 s78, s6, s48
    s_addc_u32 s79, s7, 0
    s_mul_i32 s48, s47, 3072
    s_mul_i32 s49, s44, 768
    s_add_u32 s48, s48, s49
    s_add_u32 s86, s8, s48
    s_addc_u32 s87, s9, 0
    """)
def spf_lines(h):
    x = [("s[56:57]", j*1280, 128) for j in range(32)]
    wq = [("s[58:59]" if l < 6 else "s[78:79]", r*3840 + l*128, 64*3840) for r in range(2) for l in range(8)]
    w1 = [("s[86:87]", r*3072 + l*128, 64*3072) for r in range(2) for l in range(6)]
    return (x + wq + w1)[15*h:15*h + 15]
def spf_issue(A, h, st, n):
    for k, (b, off, step) in enumerate(spf_lines(h)[:n]):
        o = off + st*step
        if o < (1 << 20):
            A(f"s_load_dword s{68 + (k % 7)}, {b}, {o:#x}")
        else:
            A(f"s_mov_b32 s49, {o}")
            A(f"s_load_dword s{68 + (k % 7)}, {b}, s49")

def gen_helpers(A, FL, pf, mprof, hprio=0, pfa=0, spf=0):
    UL = UNIT_LDS
    spf_n = spf
    def spf(st, first=False):
        if not spf_n or st > 9: return
        lab = A.label("spf")
        A(f"s_cmp_eq_u32 s32, 9")
        A(f"s_cbranch_scc0 {lab}_2")
        spf_issue(A, 1, st, spf_n)
        A(f"s_branch {lab}")
        A(f"{lab}_2:")
        A(f"s_cmp_eq_u32 s32, 10")
        A(f"s_cbranch_scc0 {lab}_3")
        spf_issue(A, 2, st, spf_n)
        A(f"s_branch {lab}")
        A(f"{lab}_3:")
        spf_issue(A, 3, st, spf_n)
        A(f"{lab}:")
    A(f"""
    s_cmp_eq_u32 s32, 8
    s_cbranch_scc1 Lk1_H0
    s_sub_u32 s40, s32, 10
    s_cmp_eq_u32 s32, 9
    s_cselect_b32 s40, 2, s40
    s_cmp_eq_u32 s32, 10
    s_cbranch_scc0 Lk1_Hn2
    v_lshlrev_b32 v3, 2, v2
    v_add_u32 v3, {FL}, v3
    v_mov_b32 v4, 0
    ds_write_b32 v3, v4
    s_waitcnt lgkmcnt(0)
Lk1_Hn2:
    s_cmp_eq_u32 s32, 9
    s_cbranch_scc0 Lk1_Hn1
    s_load_dwordx2 s[50:51], s[0:1], 72    ; d_debug
    s_waitcnt lgkmcnt(0)
    """)
    srd(A, 52, 50, 256)
    A(f"""
    s_cmp_eq_u32 s2, 0
    s_cbranch_scc0 Lk1_Hn1
    s_memrealtime s[50:51]
    s_waitcnt lgkmcnt(0)
    s_or_b32 s50, s50, 1
    v_mov_b32 v3, s50
    v_mov_b32 v4, 0
    s_mov_b64 exec, 1
    buffer_store_dword v3, v4, s[52:55], 0 offen sc1
    s_mov_b64 exec, -1
Lk1_Hn1:
    """)
    if spf_n: spf_setup(A)
    A(f"""
    ; unit: idx = wg + 256u (< 680): ksg = idx/10, blk = idx%10
    s_lshl_b32 s41, s40, 8
    s_add_u32 s41, s41, s2
    s_mul_i32 s45, s41, 6554
    s_lshr_b32 s45, s45, 16                ; ksg
    s_mul_i32 s47, s45, 10
    s_sub_u32 s47, s41, s47                ; blk
    s_cmp_lt_u32 s45, 48
    s_cselect_b32 s96, s80, s82
    s_cselect_b32 s97, s81, s83
    s_mov_b32 s98, {W2_BYTES}
    s_cselect_b32 s98, s98, {WO_BYTES}
    s_cselect_b32 s100, 0, 48
    s_and_b32 s97, s97, 0xffff
    s_mov_b32 s99, 0x00020000
    s_sub_u32 s100, s45, s100
    s_mul_i32 s100, s100, {32*1280}
    s_lshl_b32 s101, s47, 7
    s_add_u32 s100, s100, s101
    s_lshl_b32 s77, s47, 2                 ; c0
    s_mul_i32 s101, s45, 5120
    s_lshl_b32 s75, s40, 12
    s_add_u32 s75, s75, {UL}
    s_cmp_lt_u32 s41, 680
    s_cselect_b32 s76, 1, 0
    v_lshrrev_b32 v8, 3, v2
    v_mul_u32_u24 v8, 1280, v8
    v_and_b32 v3, 7, v2
    v_lshl_add_u32 v8, v3, 4, v8
    v_lshrrev_b32 v9, 4, v2
    v_bfe_u32 v3, v2, 2, 2
    v_lshl_add_u32 v9, v9, 3, v3
    v_lshlrev_b32 v9, 7, v9
    v_and_b32 v3, 3, v2
    v_lshl_add_u32 v9, v3, 3, v9
    v_add_u32 v9, s75, v9
    v_lshlrev_b32 v10, 4, v2
    s_barrier                              ; Bs0
    """)
    spf(2); spf(3)
    A("s_barrier")
    spf(4)
    A(f"""
    s_cmp_eq_u32 s76, 1
    s_cbranch_scc0 Lk1_nous
    """)
    for j in range(4):
        A(f"s_add_u32 m0, s75, {j*1024}")
        A(f"s_add_u32 s48, s100, {j*8*1280}")
        A(f"buffer_load_dwordx4 v8, s[96:99], s48 offen lds")
    A(f"""
Lk1_nous:
    s_barrier                              ; B_1
    """)
    spf(5)
    A("s_barrier")
    spf(6)
    A("s_barrier")
    spf(7)
    A(f"""
    s_cmp_eq_u32 s32, 9
    s_cbranch_scc0 Lk1_notag
    v_mov_b32 v4, 0
    s_mov_b32 s50, 0x40000
Lk1_tagpoll:
    buffer_load_dword v3, v4, s[52:55], 0 offen sc1
    s_waitcnt vmcnt(0)
    v_readfirstlane_b32 s51, v3
    s_nop 3
    s_cmp_lg_u32 s51, 0
    s_cbranch_scc1 Lk1_gottag
    s_sleep 4
    s_sub_u32 s50, s50, 1
    s_cbranch_scc0 Lk1_tagpoll
Lk1_gottag:
    v_mov_b32 v4, {FL + LF_TAG}
    ds_write_b32 v4, v3
    s_waitcnt lgkmcnt(0)
Lk1_notag:
    s_barrier                              ; B_4
    """)
    spf(8)
    A("s_barrier")
    spf(9)
    A(f"""
    s_barrier                              ; B_6
    s_barrier                              ; B_7
    s_cmp_eq_u32 s76, 1
    s_cbranch_scc0 Lk1_nouf
    s_waitcnt vmcnt(0)
    """)
    for cc in range(4):
        A(f"ds_read_b64_tr_b16 v[{20+4*cc}:{21+4*cc}], v9 offset:{cc*32}")
        A(f"ds_read_b64_tr_b16 v[{22+4*cc}:{23+4*cc}], v9 offset:{cc*32 + 512}")
    A("s_waitcnt lgkmcnt(0)")
    for cc in range(4):
        A(f"""
        s_add_u32 s41, s77, {cc}               ; c
        s_mul_i32 s45, s41, 205
        s_lshr_b32 s45, s45, 10                ; cg8 = c/5
        s_mul_i32 s47, s45, 5
        s_sub_u32 s47, s41, s47                ; ct
        s_mul_i32 s45, s45, {WF_CG}
        s_lshl_b32 s47, s47, 10
        s_add_u32 s45, s45, s47
        s_add_u32 s45, s45, s101
        s_add_u32 s45, s45, {WF_OFF}
        buffer_store_dwordx4 v[{20+4*cc}:{23+4*cc}], v10, s[24:27], s45 offen sc1
        """)
    A(f"""
Lk1_nouf:
    s_barrier                              ; B_8
    s_barrier                              ; B_9
    s_barrier                              ; B_10
    s_waitcnt vmcnt(0)
    s_lshl_b32 s41, s40, 2
    s_add_u32 s41, s41, {FL + LF_HD}
    v_mov_b32 v4, s41
    v_mov_b32 v5, 1
    ds_write_b32 v4, v5
    s_cmp_eq_u32 s32, 11
    s_cbranch_scc0 Lattn_entry
    """)
    lds_spin(A, FL + LF_HD, 1, 4)
    get_tag(A, FL + LF_TAG, "s50")
    publish256(A, 24, F1W_OFF, "s50")
    A("s_branch Lattn_entry")
    A(f"""
Lk1_H0:
    s_setprio {hprio}
    s_cmp_lt_u32 s35, 10
    s_cbranch_scc1 Lk1_noconst
    s_cmp_eq_u32 s35, 15
    s_cbranch_scc1 Lk1_noconst
    s_lshl_b32 s41, s46, 7
    s_add_u32 s42, s41, 19
    s_mul_i32 s42, s42, 3277
    s_lshr_b32 s42, s42, 16                ; h0
    s_add_u32 s43, s41, 127
    s_mul_i32 s43, s43, 3277
    s_lshr_b32 s43, s43, 16                ; h1
    s_min_u32 s43, s43, 31
    v_lshrrev_b32 v11, 5, v2
    v_bfe_u32 v12, v2, 3, 2
    s_lshl_b32 s44, s34, 2
    v_add_u32 v12, s44, v12                ; T
    v_lshrrev_b32 v13, 3, v12
    v_mul_u32_u24 v13, {CH}, v13
    v_and_b32 v12, 7, v12
    v_mul_u32_u24 v12, {VT}, v12
    v_add_u32 v12, v12, v13
    v_bfe_u32 v13, v2, 1, 2
    v_mul_u32_u24 v13, {VH}, v13
    v_add_u32 v12, v12, v13
    v_and_b32 v13, 1, v2
    v_mul_u32_u24 v14, 112, v13
    v_add_u32 v12, v12, v14
    v_add_u32 v12, {KV_OFF + VPART + 128}, v12
    v_cmp_eq_u32 vcc, 0, v13
    v_mov_b32 v14, 0x3f803f80
    s_mov_b32 s45, {HSK}
    v_cndmask_b32 v20, 0, v14, vcc
    v_mov_b32 v21, v20
    v_mov_b32 v22, v20
    v_mov_b32 v23, v20
    """)
    for t in range(4):
        lab = A.label("cv")
        A(f"""
        s_add_u32 s47, s42, {2*t}
        v_add_u32 v15, s47, v11                ; head
        v_cmp_ge_u32 vcc, s43, v15
        v_mul_lo_u32 v15, v15, s45
        v_add_u32 v15, v15, v12
        s_and_saveexec_b64 s[50:51], vcc
        s_cbranch_execz {lab}
        buffer_store_dwordx4 v[20:23], v15, s[24:27], 0 offen sc1
        {lab}:
        s_mov_b64 exec, s[50:51]
        """)
    A(f"""
Lk1_noconst:
    """)
    if spf_n: spf_setup(A)
    A(f"""
    s_and_b32 s41, s2, 7
    s_and_b32 s43, s41, 1                  ; rh
    s_lshr_b32 s44, s41, 1                 ; cq
    s_lshr_b32 s45, s2, 3                  ; i
    v_mov_b32 v13, 0x7ffffff0
    s_lshl_b32 s46, s43, 10
    s_lshl_b32 s47, s45, 5
    s_add_u32 s46, s46, s47
    v_add_u32 v3, s46, v2
    v_mul_u32_u24 v3, 1280, v3
    v_cmp_gt_u32 vcc, 32, v2
    s_nop 1
    v_cndmask_b32 v4, v13, v3, vcc
    v_lshrrev_b32 v3, 3, v2
    s_lshl_b32 s47, s45, 1
    v_add_u32 v3, s47, v3
    v_mul_u32_u24 v3, 3840, v3
    v_and_b32 v5, 7, v2
    v_lshlrev_b32 v5, 7, v5
    s_lshl_b32 s48, s44, 10
    v_add_u32 v5, s48, v5
    v_cmp_gt_u32 vcc, 3840, v5
    v_add_u32 v5, v5, v3
    v_cmp_gt_u32 s[50:51], 16, v2
    s_and_b64 vcc, vcc, s[50:51]
    s_nop 1
    v_cndmask_b32 v5, v13, v5, vcc
    v_cmp_lt_u32 vcc, 5, v2
    v_mov_b32 v6, 0
    v_mov_b32 v7, 1
    v_cndmask_b32 v3, v6, v7, vcc
    v_mul_u32_u24 v6, 6, v3
    v_sub_u32 v6, v2, v6
    v_lshlrev_b32 v6, 7, v6
    v_add_u32 v3, s47, v3
    v_mul_u32_u24 v3, 3072, v3
    v_add_u32 v6, v6, v3
    s_mul_i32 s48, s44, 768
    v_add_u32 v6, s48, v6
    v_cmp_gt_u32 vcc, 12, v2
    s_nop 1
    v_cndmask_b32 v6, v13, v6, vcc
    s_barrier                              ; Bs0
    """)
    def PF(st):
        A(f"s_mov_b32 s46, {st*128}")
        A(f"buffer_load_dword v16, v4, s[16:19], s46 offen")
        A(f"s_mov_b32 s47, {st*64*3840}")
        A(f"buffer_load_dword v17, v5, s[60:63], s47 offen")
        A(f"s_mov_b32 s48, {st*64*3072}")
        A(f"buffer_load_dword v18, v6, s[64:67], s48 offen")
    def PFW1(st):
        A(f"s_mov_b32 s48, {st*64*3072}")
        A(f"buffer_load_dword v18, v6, s[64:67], s48 offen")
    if pf == 1:
        for st in range(2, 4 + pfa): PF(st)
    if spf_n:
        spf_issue(A, 0, 2, spf_n); spf_issue(A, 0, 3, spf_n)
    A("s_barrier")
    for k in range(10):
        if pf == 1 and 4 + pfa + k <= 9: PF(4 + pfa + k)
        if pf == 3: PFW1(k)
        if spf_n and 4 + k <= 9: spf_issue(A, 0, 4 + k, spf_n)
        A("s_barrier")
    A("s_waitcnt vmcnt(0)")
    if mprof: wl_stamp(A, 160, 0)
    lds_set(A, FL + LF_HD + 12, 1)
    A("s_branch Lattn_entry")

def gen_k1(prof=False, mode=0, pf=2, rot=1, tlb=1, tl=0, sc=0, cpf=1, wfsc=1, fused=None, mprof=0, rtrig=2, cpf2=0, dbg2=0, hprio=0, pfa=0, v5=0, spf=0):
    global SLOT, GATE_LDS, UNIT_LDS
    if fused and v5:
        SLOT = 32768; GATE_LDS = 3*SLOT; UNIT_LDS = GATE_LDS + 1536
    else:
        v5 = 0
    SC = {0: '', 1: ' sc1', 2: ' nt', 3: ' sc0 sc1'}[sc & 3]
    SCQ = SC if sc & 4 else ''
    SCW = ' sc1' if wfsc else ''
    KN = fused if fused else NAME
    FL = MEGA_FLAG
    if fused:
        SC = SCQ = SCW = ' sc1'
        tlb = 0
    ROT = rot
    A0 = Asm()
    class F:
        def __init__(s): s.inloop = False
        def __call__(s, l):
            for x in l.strip("\n").split("\n"):
                xs = x.strip()
                if s.inloop:
                    if mode == 1 and xs.startswith("buffer_load") : continue
                    if mode == 2 and (xs.startswith("v_mfma") or xs.startswith("ds_read")): continue
                    if mode == 3 and xs.startswith("v_mfma"): continue
                    if mode in (4, 6) and xs.startswith("s_barrier"): continue
                    if mode == 6 and xs.startswith("buffer_load"): continue
                    if mode == 5 and xs.startswith("ds_read"): continue
                    if mode == 7 and (xs.startswith("buffer_load") or xs.startswith("ds_read")): continue
                    if mode == 8 and (xs.startswith("buffer_load") or xs.startswith("ds_read") or xs.startswith("s_barrier")): continue
                    if mode == 10 and (xs.startswith("buffer_load") or xs.startswith("ds_read") or xs.startswith("s_barrier") or xs.startswith("s_add_u32 m0") or xs.startswith("s_add_u32 s48") or xs.startswith("s_nop 0") or xs.startswith("v_add_u32")): continue
                if xs.endswith("_loop:"): s.inloop = True
                if xs.startswith("s_cbranch_scc1") and xs.endswith("g_loop"): s.inloop = False
                A0(x)
        def label(s, b): return A0.label(b)
        def text(s): return A0.text()
    A = F()
    A(khead(KN))
    A(f"""
    s_cmp_ge_u32 s2, 256
    s_cbranch_scc1 Lk1_exit
    """)
    if prof or mprof: prof_start(A)
    if tl: tl_start(A, 0)
    if cpf:
        A(f"""
        s_getpc_b64 s[80:81]
Lk1_pc:
        s_sub_u32 s80, s80, Lk1_pc - {KN}
        s_subb_u32 s81, s81, 0
        s_lshr_b32 s82, s2, 3
        s_mul_i32 s82, s82, (Lcode_end - {KN} + 4095) / 4096
        v_and_b32 v61, 63, v0
        v_add_u32 v61, s82, v61
        v_min_u32 v61, (Lcode_end - {KN} - 4) / 128, v61
        v_lshlrev_b32 v61, 7, v61
        v_lshrrev_b32 v60, 6, v0
        v_and_b32 v59, 63, v0
        v_cmp_gt_u32 vcc, (Lcode_end - {KN} + 4095) / 4096, v59
        v_cmp_eq_u32 s[82:83], 7, v60
        s_and_b64 vcc, vcc, s[82:83]
        s_and_saveexec_b64 s[82:83], vcc
        s_cbranch_execz Lk1_nocpf
        global_load_dword v61, v61, s[80:81]
Lk1_nocpf:
        s_mov_b64 exec, s[82:83]
        """)
    A(f"""
    s_load_dwordx2 s[80:81], s[0:1], 48    ; w2
    s_load_dwordx2 s[82:83], s[0:1], 16    ; wo
    s_load_dwordx4 s[4:7], s[0:1], 0       ; A_x, wqkv
    s_load_dwordx4 s[8:11], s[0:1], 32     ; w1, b1
    s_load_dwordx2 s[12:13], s[0:1], 56    ; gate_w
    s_load_dwordx2 s[14:15], s[0:1], 80    ; ws
    v_lshrrev_b32 v1, 6, v0
    v_and_b32 v2, 63, v0                   ; lane
    s_and_b32 s41, s2, 7                   ; xcd
    v_readfirstlane_b32 s32, v1
    """)
    if fused:
        A("""
        s_nop 3
        s_mov_b32 s85, s32
        s_sub_u32 s42, s32, 4
        s_add_u32 s43, s32, 4
        s_cmp_ge_u32 s32, 8
        s_cselect_b32 s43, s42, s43
        s_cmp_lt_u32 s32, 4
        s_cselect_b32 s32, s32, s43
        """)
    A(f"""
    s_lshr_b32 s42, s2, 3                  ; i
    s_and_b32 s43, s41, 1
    s_lshl_b32 s43, s43, 3
    s_and_b32 s44, s42, 7
    s_add_u32 s34, s43, s44                ; rb
    s_lshr_b32 s43, s41, 1
    s_lshl_b32 s43, s43, 2
    s_lshr_b32 s44, s42, 3
    s_add_u32 s35, s43, s44                ; cgp
    s_mul_i32 s45, s35, 52
    s_lshr_b32 s45, s45, 8                 ; cgp/5
    s_add_u32 s33, s45, 1
    s_mul_i32 s45, s45, 5
    s_sub_u32 s46, s35, s45                ; cbl (0..4)
    s_cmp_eq_u32 s35, 15
    s_cselect_b32 s33, 0, s33
    v_lshrrev_b32 v3, 3, v2
    v_mul_u32_u24 v3, 1280, v3
    v_and_b32 v13, 7, v2
    v_lshrrev_b32 v14, 4, v2               ; lane>>4
    v_xor_b32 v15, v13, v14
    v_lshl_add_u32 v10, v15, 4, v3         ; even u
    v_xor_b32 v15, 4, v15
    v_lshl_add_u32 v11, v15, 4, v3         ; odd u
    s_lshl_b32 s37, s34, 7                 ; rb*128
    """)
    if v5:
        A("""
        s_sub_u32 s41, s32, 4
        s_and_b32 s41, s41, 3
        s_lshl_b32 s42, s41, 12
        s_lshl_b32 s41, s41, 5
        """)
    else:
        A("""
        s_lshl_b32 s41, s32, 4                 ; w*16 rows
        s_lshl_b32 s42, s32, 11
        """)
    A(f"""
    s_add_u32 s37, s37, s41
    s_mul_i32 s37, s37, 1280
    s_lshr_b32 s57, s2, 3                  ; i
    s_and_b32 s78, s57, 7
    s_lshr_b32 s57, s57, 3
    s_lshl_b32 s57, s57, 1
    s_add_u32 s78, s78, s57
    s_mul_i32 s78, s78, {1 if ROT else 0}
    s_mov_b32 s56, 0
    s_mov_b32 s69, 0
    s_mov_b32 s58, s37
    s_mov_b32 s79, 0
    """)
    if ROT == 2:
        A("""
        s_cmp_ge_u32 s78, 10
        s_cselect_b32 s57, 10, 0
        s_sub_u32 s78, s78, s57
        s_mov_b32 s79, s78
        s_mov_b32 s69, s78
        s_lshl_b32 s57, s79, 7
        s_add_u32 s37, s58, s57
        """)
    A(f"""
    s_waitcnt lgkmcnt(0)
    """)
    if prof:
        A("s_memtime s[88:89]")
        A("s_waitcnt lgkmcnt(0)")
        A("s_sub_u32 s87, s88, s92")
    srd(A, 16, 4, X_BYTES)
    srd_ws(A, 24, 14, WS_RECORDS)
    srd(A, 60, 6, WQKV_BYTES)
    srd(A, 64, 8, W1_BYTES)
    if not fused:
        A(f"""
        s_cmp_eq_u32 s32, 7
        s_cbranch_scc0 Lk1_noflag
        s_lshl_b32 s41, s2, 2
        s_add_u32 s41, s41, {OFLAG_OFF}
        v_mov_b32 v3, 0
        s_mov_b64 exec, 1
        buffer_store_dword v3, v3, s[24:27], s41 offen
        s_mov_b64 exec, -1
    Lk1_noflag:
        """)
    if tlb:
        A("s_cmp_eq_u32 s32, 0")
        A("s_cbranch_scc0 Lk1_notouch")
        srd(A, 28, 10, B1_BYTES)
        A("v_mov_b32 v3, 0")
        MB2 = 2 << 20
        touch(A, [(16, "s37"), (60, 0), (60, MB2), (64, 0), (28, 0)] + [(24, k*MB2) for k in range(7)] + [(24, G_OFF)], 3, 1)
        A("Lk1_notouch:")
    A(f"""
    s_cmp_ge_u32 s32, 8
    s_cbranch_scc1 Lk1_H
    s_cmp_ge_u32 s32, 4
    s_cbranch_scc1 Lk1_R
    """)

    def adv_group(ws):
        if ROT == 2:
            g = ["s_add_u32 s79, s79, 1", "s_cmp_eq_u32 s79, 10", "s_cselect_b32 s79, 0, s79", "s_lshl_b32 s57, s79, 7", "s_add_u32 s37, s58, s57"]
        else:
            g = ["s_add_u32 s56, s56, 1", "s_add_u32 s57, s56, s78", "s_sub_u32 s57, s57, 2", "s_and_b32 s57, s57, 7", "s_add_u32 s57, s57, 2",
                 "s_cmp_lt_u32 s56, 2", "s_cselect_b32 s79, s56, s57", "s_lshl_b32 s57, s79, 7", "s_add_u32 s37, s58, s57"]
        if ws:
            g += [f"s_mul_i32 s57, s79, {ws}", "s_add_u32 s38, s59, s57"]
        return g

    def x_dma(slot_sgpr):
        g = []
        for j in range(4 if v5 else 2):
            g.append([f"s_add_u32 m0, {slot_sgpr}, {j*1024}", f"s_add_u32 s48, s37, {j*10240}",
                      f"buffer_load_dwordx4 v{10 + (j & 1)}, s[16:19], s48 offen lds"])
        return g

    def xfrag_addr(rowbase_expr_sgpr):
        A(f"""
        v_and_b32 v3, 31, v2                   ; token
        v_lshrrev_b32 v13, 5, v2               ; hf
        v_bfe_u32 v14, v2, 1, 3
        v_xor_b32 v14, v13, v14
        v_lshlrev_b32 v14, 4, v14
        v_lshl_add_u32 v14, v3, 7, v14
        v_add_u32 v56, {rowbase_expr_sgpr}, v14
        v_xor_b32 v57, 32, v56
        v_xor_b32 v58, 64, v56
        v_xor_b32 v59, 96, v56
        """)

    def set_slot(nw, sgpr):
        out = [f"v_add_u32 v{4+k}, {sgpr}, v{56+k}" for k in range(4)]
        out += [f"v_add_u32 v{8+k}, {sgpr}, v{60+k}" for k in range(nw)]
        return out

    def interleave(ms, others):
        n = len(ms)
        per = (len(others) + n - 1) // n
        k = 0
        for i, m in enumerate(ms):
            A(m)
            for grp in others[k:k+per]:
                for l in grp: A(l)
            k += per

    def kstep(ms, rd, extra, wait=True, skip_last=False):
        if wait: A("s_waitcnt lgkmcnt(0)")
        n = len(ms) - (1 if skip_last else 0)
        A(ms[0])
        for grp in rd:
            for l in grp: A(l)
        slots = max(1, n - 1)
        per = (len(extra) + slots - 1) // slots if extra else 0
        k = 0
        for i in range(1, n):
            A(ms[i])
            for grp in extra[k:k+per]:
                for l in grp: A(l)
            k += per
        for grp in extra[k:]:
            for l in grp: A(l)

    def loop(tag, nown, reads, mfmas, dma_groups, nw, unit=False):
        A(f"s_waitcnt vmcnt({nown})")
        A("s_barrier")
        if dbg2 and nw == 2: wl_stamp(A, 160, 4)
        if prof:
            A("s_memtime s[90:91]")
            A("s_waitcnt lgkmcnt(0)")
            A("s_sub_u32 s90, s90, s92")
        for l in set_slot(nw, "0"): A(l)
        for l in reads(0, 0): A(l)
        A(f"s_mov_b32 s50, {SLOT}")
        A.inloop = True
        g = dma_groups()
        adv = g[-1]; g = g[:-1]
        parts = [[], [], [], []]
        for i, grp in enumerate(g): parts[i * 4 // len(g)].append(grp)
        R = lambda ks, fs: [[l] for l in reads(ks, fs)]
        rot = [["s_mov_b32 s51, s50", f"s_add_u32 s50, s50, {SLOT}", f"s_cmp_ge_u32 s50, {3*SLOT}", "s_cselect_b32 s50, 0, s50",
                "s_add_u32 s52, s51, s42", "s_add_u32 s53, s51, s43"]]
        A(f"s_add_u32 s52, s42, {2*SLOT}")
        A(f"s_add_u32 s53, s43, {2*SLOT}")
        kstep(mfmas(0), R(1, 1), parts[0] + parts[1])
        kstep(mfmas(1), R(2, 0), parts[2])
        kstep(mfmas(0), R(3, 1), parts[3] + [adv] + [["s_mov_b32 s52, s42", "s_mov_b32 s53, s43", "s_mov_b32 s40, 0"]], skip_last=True)
        def section(dma, vm, final=False, ug=None):
            A(mfmas(0)[-1])
            A(f"s_waitcnt vmcnt({vm}) lgkmcnt(0)")
            A("s_barrier")
            if final:
                for m in mfmas(1): A(m)
                return
            rd = R(0, 0)
            rd[0] = set_slot(nw, "s50") + rd[0]
            P_ = parts if dma else [[], [], [], []]
            kstep(mfmas(1), rd, P_[0], wait=False)
            kstep(mfmas(0), R(1, 1), P_[1] + (ug or []))
            kstep(mfmas(1), R(2, 0), P_[2])
            tail = (P_[3] + [adv] if dma else []) + rot
            if dma: tail = tail + [["s_add_u32 s40, s40, 1", "s_cmp_lt_u32 s40, 7"]]
            kstep(mfmas(0), R(3, 1), tail, skip_last=True)
        A(f"L{tag}_loop:")
        section(True, nown)
        A(f"s_cbranch_scc1 L{tag}_loop")
        ug = []
        if unit:
            for j in range(4):
                ug.append([f"s_add_u32 m0, s76, {j*1024}", f"s_add_u32 s48, s100, {j*8*1280}", f"buffer_load_dwordx4 v62, s[96:99], s48 offen lds"])
            A("s_lshl_b32 s76, s32, 12")
            A("s_add_u32 s76, s76, s51")
        section(False, nown, ug=ug)
        section(False, 4 if unit else 0)
        section(False, 4 if unit else 0, final=True)
        A.inloop = False
        A("s_nop 15")
        if prof:
            A("s_memtime s[88:89]")
            A("s_waitcnt lgkmcnt(0)")
            A("s_sub_u32 s91, s88, s92")

    A(f"""
    s_cmp_eq_u32 s33, 0
    s_cbranch_scc1 Lk1_gate
    """)
    srd(A, 20, 6, WQKV_BYTES)
    A(f"""
    s_mov_b32 s36, 3840
    v_and_b32 v13, 15, v2
    v_lshlrev_b32 v15, 2, v14
    v_xor_b32 v13, v13, v15
    v_mul_u32_u24 v15, 3840, v14
    v_lshl_add_u32 v12, v13, 4, v15
    s_mul_i32 s38, s32, {16*3840}          ; w*16 k-rows
    s_lshl_b32 s41, s35, 8                 ; cgp*128*2
    s_add_u32 s59, s38, s41
    s_mul_i32 s57, s79, {64*3840}
    s_add_u32 s38, s59, s57
    s_lshl_b32 s43, s32, 12
    s_add_u32 s43, s43, {WQO}
    """)
    def p_dma():
        g = [] if v5 else x_dma("s52")
        for j in range(4):
            g.append([f"s_add_u32 m0, s53, {j*1024}",
                      (f"s_add_u32 s48, s38, {j*4*3840}"),
                      f"buffer_load_dwordx4 v12, s[20:23], s48 offen lds"])
        g.append(adv_group(64*3840))
        return g
    def stage_issue(st, dmaf):
        A(f"s_add_u32 s52, s42, {st*SLOT}")
        A(f"s_add_u32 s53, s43, {st*SLOT}")
        for grp in dmaf():
            for l in grp: A(l)
    if prof: wl_stamp(A, 63, 0)
    stage_issue(0, p_dma)
    if dbg2: wl_stamp(A, 160, 2)
    if prof: wl_stamp(A, 63, 1)
    A("s_barrier")
    if dbg2: wl_stamp(A, 160, 3)
    if prof: wl_stamp(A, 63, 2)
    LATE_P = True
    A("s_lshr_b32 s41, s32, 1")
    A("s_lshl_b32 s41, s41, 13")
    xfrag_addr("s41")
    A(f"""
    v_bfe_u32 v14, v2, 2, 2                ; r
    v_lshl_add_u32 v15, v13, 3, v14
    v_lshlrev_b32 v15, 8, v15
    v_bfe_u32 v3, v2, 4, 1
    v_lshl_add_u32 v15, v3, 5, v15
    v_and_b32 v3, 3, v2
    v_lshl_add_u32 v15, v3, 3, v15
    v_add_u32 v15, {WQO}, v15
    s_and_b32 s41, s32, 1
    s_lshl_b32 s41, s41, 1
    v_xor_b32 v3, s41, v14                 ; ct ^ r
    v_lshl_add_u32 v60, v3, 6, v15
    v_xor_b32 v3, 1, v3
    v_lshl_add_u32 v61, v3, 6, v15
    """)
    if prof: wl_stamp(A, 63, 3)
    stage_issue(1, p_dma)
    if prof: wl_stamp(A, 63, 4)
    for i in range(64): A(f"v_mov_b32 v{64+i}, 0")
    def p_reads(ks, fs):
        b = 16 + 16*fs
        return [
            f"ds_read_b128 v[{b}:{b+3}], v{4+ks}",
            f"ds_read_b64_tr_b16 v[{b+8}:{b+9}], v8 offset:{ks*4096}",
            f"ds_read_b64_tr_b16 v[{b+10}:{b+11}], v8 offset:{ks*4096 + 1024}",
            f"ds_read_b128 v[{b+4}:{b+7}], v{4+ks} offset:4096",
            f"ds_read_b64_tr_b16 v[{b+12}:{b+13}], v9 offset:{ks*4096}",
            f"ds_read_b64_tr_b16 v[{b+14}:{b+15}], v9 offset:{ks*4096 + 1024}",
        ]
    def p_mfmas(normal):
        def f(fs):
            b = 16 + 16*fs
            out = []
            for rt in range(2):
                for ct in range(2):
                    d = 64 + 16*(2*rt + ct)
                    x = f"v[{b+4*rt}:{b+4*rt+3}]"; w = f"v[{b+8+4*ct}:{b+8+4*ct+3}]"
                    a_, b_ = (x, w) if normal else (w, x)
                    out.append(f"v_mfma_f32_32x32x16_bf16 v[{d}:{d+15}], {a_}, {b_}, v[{d}:{d+15}]")
            return out
        return f
    A(f"""
    s_lshr_b32 s41, s32, 1
    s_lshl_b32 s41, s41, 1
    s_lshl_b32 s44, s34, 2
    s_add_u32 s44, s44, s41                ; T (rt'=0)
    s_cmp_eq_u32 s33, 3
    s_cbranch_scc1 Lk1_mainV
    s_cmp_eq_u32 s33, 1
    s_cbranch_scc0 Lk1_isK
    s_mul_i32 s68, s44, 1280
    s_add_u32 s68, s68, {QF_OFF}
    s_mov_b32 s49, {HSQ}
    s_mov_b32 s70, {f32bits(QSCALE):#x}
    s_branch Lk1_qk
Lk1_isK:
    s_lshr_b32 s68, s44, 3
    s_mul_i32 s68, s68, {CH}
    s_and_b32 s41, s44, 7
    s_mul_i32 s41, s41, 1280
    s_add_u32 s68, s68, s41
    s_add_u32 s68, s68, {KV_OFF}
    s_mov_b32 s49, {HSK}
    s_mov_b32 s70, 1.0
Lk1_qk:
    s_mov_b32 s71, s70
    s_and_b32 s41, s32, 1
    s_lshl_b32 s41, s41, 4
    s_lshl_b32 s55, s46, 5
    s_add_u32 s55, s55, s41                ; G0 base
    v_lshrrev_b32 v13, 5, v2               ; hf
    v_and_b32 v3, 31, v2                   ; token
    v_lshlrev_b32 v14, 4, v3
    v_lshlrev_b32 v15, 3, v3
    v_add_u32 v15, 1024, v15
    """)
    for sl in range(8):
        d = 48 + sl
        A(f"""
        v_add_u32 v16, {2*sl}, v13
        v_add_u32 v16, s55, v16                ; G
        v_mul_u32_u24 v17, 205, v16
        v_lshrrev_b32 v17, 10, v17             ; h = G/5
        v_mul_u32_u24 v18, 5, v17
        v_sub_u32 v18, v16, v18                ; j
        v_mul_lo_u32 v17, v17, s49             ; h*HS
        v_and_b32 v19, 1, v18
        v_lshlrev_b32 v19, 9, v19              ; (j&1)*512
        v_add_u32 v19, v19, v14
        v_cmp_eq_u32 vcc, 4, v18
        v_cmp_gt_u32 s[72:73], 2, v18
        s_nop 0
        v_cndmask_b32 v19, v19, v15, vcc
        """)
        if sl == 0:
            A(f"""
            v_mov_b32 v20, 10
            v_cndmask_b32 v20, v20, 2, vcc
            v_cndmask_b32 v20, v20, 1, s[72:73]
            """)
        else:
            A(f"""
            v_mov_b32 v20, 0
            v_cndmask_b32 v20, v20, 2, vcc
            v_cndmask_b32 v20, v20, {1 if sl < 7 else 2}, s[72:73]
            """)
        A(f"""
        v_add_u32 v19, v19, v17
        v_add_u32 v{d}, v19, v20
        """)
    loop("k1T", 4 if v5 else 6, p_reads, p_mfmas(False), p_dma, 2)
    if fused: A("s_setprio 3")
    if mprof: wl_stamp(A, 160, 0)
    def pack(sl):
        for rt in range(2):
            r = 64 + 16*(2*rt + (sl >> 2)) + 4*(sl & 3)
            t = 16 + 16*rt + 2*sl
            A(f"""
            v_pk_mul_f32 v[{r}:{r+1}], v[{r}:{r+1}], s[70:71]
            v_pk_mul_f32 v[{r+2}:{r+3}], v[{r+2}:{r+3}], s[70:71]
            v_cvt_pk_bf16_f32 v{t}, v{r}, v{r+1}
            v_cvt_pk_bf16_f32 v{t+1}, v{r+2}, v{r+3}
            """)
    pack(0)
    for sl in range(8):
        if sl < 7: pack(sl + 1)
        lab = A.label("qk")
        A(f"""
        v_and_b32 v56, 3, v{48+sl}
        v_and_b32 v57, -4, v{48+sl}
        """)
        if sl < 7:
            A(f"""
            v_cmp_eq_u32 vcc, 1, v56
            s_nop 1
            s_mov_b64 exec, vcc
            s_cbranch_execz {lab}_a
            buffer_store_dwordx4 v[{16+2*sl}:{19+2*sl}], v57, s[24:27], s68 offen{SCQ}
            buffer_store_dwordx4 v[{32+2*sl}:{35+2*sl}], v57, s[24:27], s68 offen offset:1280{SCQ}
            {lab}_a:
            s_mov_b64 exec, -1
            """)
        A(f"""
        v_cmp_eq_u32 vcc, 2, v56
        s_nop 1
        s_mov_b64 exec, vcc
        s_cbranch_execz {lab}_b
        buffer_store_dwordx2 v[{16+2*sl}:{17+2*sl}], v57, s[24:27], s68 offen{SCQ}
        buffer_store_dwordx2 v[{32+2*sl}:{33+2*sl}], v57, s[24:27], s68 offen offset:1280{SCQ}
        {lab}_b:
        s_mov_b64 exec, -1
        """)
    A("s_branch Lk1_end")
    A("Lk1_mainV:")
    A(f"""
    s_lshr_b32 s68, s44, 3
    s_mul_i32 s68, s68, {CH}
    s_and_b32 s41, s44, 7
    s_mul_i32 s41, s41, {VT}
    s_add_u32 s68, s68, s41
    s_add_u32 s68, s68, {KV_OFF + VPART}
    s_and_b32 s41, s32, 1
    s_lshl_b32 s41, s41, 6
    s_lshl_b32 s55, s46, 7
    s_add_u32 s55, s55, s41
    v_and_b32 v3, 31, v2
    v_lshrrev_b32 v13, 5, v2               ; hf
    v_mul_u32_u24 v14, {VH}, v13
    s_mov_b32 s49, {HSK}
    """)
    for ct in range(2):
        A(f"""
        v_add_u32 v16, {32*ct}, v3
        v_add_u32 v16, s55, v16                ; c
        v_mul_u32_u24 v17, 3277, v16
        v_lshrrev_b32 v17, 16, v17             ; h
        v_mul_u32_u24 v18, 20, v17
        v_sub_u32 v18, v16, v18                ; dh
        v_mul_lo_u32 v17, v17, s49
        v_cmp_eq_u32 s[{72+2*ct}:{73+2*ct}], 0, v18
        """)
        vslot(A, 18, 20, 21)
        A(f"""
        v_lshl_add_u32 v19, v20, 4, v17
        v_add_u32 v{48+ct}, v19, v14
        """)
    loop("k1N", 4 if v5 else 6, p_reads, p_mfmas(True), p_dma, 2)
    if fused: A("s_setprio 3")
    if mprof: wl_stamp(A, 160, 0)
    for ct in range(2):
        for rt in range(2):
            for j in range(2):
                r = 64 + 16*(2*rt + ct) + 8*j
                t = 32 + 4*(2*rt + j)
                for m in range(4):
                    A(f"v_cvt_pk_bf16_f32 v{t+m}, v{r+2*m}, v{r+2*m+1}")
                A(f"buffer_store_dwordx4 v[{t}:{t+3}], v{48+ct}, s[24:27], s68 offen offset:{rt*VT + j*2*VH}{SC}")
    A("s_branch Lk1_end")

    A("Lk1_gate:")
    srd(A, 28, 12, GW_BYTES)
    A(f"""
    s_mul_i32 s41, s32, 320
    s_add_u32 m0, s41, {GATE_LDS}
    v_lshlrev_b32 v12, 4, v2
    v_cmp_gt_u32 vcc, 20, v2
    s_and_saveexec_b64 s[76:77], vcc
    buffer_load_dwordx4 v12, s[28:31], s41 offen lds
    s_mov_b64 exec, s[76:77]
    """)
    def g_dma():
        if v5: return []
        g = x_dma("s52")
        g.append(adv_group(0))
        return g
    for st in range(2):
        A(f"s_add_u32 s52, s42, {st*SLOT}")
        for grp in g_dma():
            for l in grp: A(l)
        if st == 0: A("s_barrier")
    A("s_lshl_b32 s41, s32, 12")
    xfrag_addr("s41")
    A(f"""
    v_lshlrev_b32 v9, 4, v13               ; hf*16
    v_add_u32 v62, {GATE_LDS}, v9
    s_lshl_b32 s57, s69, 7
    v_add_u32 v9, s57, v62
    v_mov_b32 v60, 0
    s_mov_b32 s43, 0
    """)
    for i in range(16): A(f"v_mov_b32 v{64+i}, 0")
    def g_reads(ks, fs):
        b = 16 + 16*fs
        out = [f"ds_read_b128 v[{b}:{b+3}], v{4+ks}", f"ds_read_b128 v[{b+4}:{b+7}], v9 offset:{ks*32}"]
        if ks == 3:
            if ROT == 2:
                out += ["s_add_u32 s69, s69, 1", "s_cmp_eq_u32 s69, 10", "s_cselect_b32 s69, 0, s69", "s_lshl_b32 s57, s69, 7", "v_add_u32 v9, s57, v62"]
            else:
                out += ["s_add_u32 s69, s69, 1", "s_add_u32 s57, s69, s78", "s_sub_u32 s57, s57, 2", "s_and_b32 s57, s57, 7", "s_add_u32 s57, s57, 2",
                        "s_cmp_lt_u32 s69, 2", "s_cselect_b32 s57, s69, s57", "s_lshl_b32 s57, s57, 7", "v_add_u32 v9, s57, v62"]
        return out
    def g_mfmas(fs):
        b = 16 + 16*fs
        return [f"v_mfma_f32_32x32x16_bf16 v[64:79], v[{b+4}:{b+7}], v[{b}:{b+3}], v[64:79]"]
    A(f"s_waitcnt vmcnt({0 if v5 else 2})")
    A("s_barrier")
    A(f"s_add_u32 s52, s42, {2*SLOT}")
    for grp in g_dma():
        for l in grp: A(l)
    if prof:
        A("s_mov_b32 s90, 0")
    for l in set_slot(0, "0"): A(l)
    for l in g_reads(0, 0): A(l)
    A("s_mov_b32 s40, 0")
    A(f"s_mov_b32 s50, {SLOT}")
    A("s_mov_b32 s51, 0")
    A("Lk1g_loop:")
    for ks in range(3):
        fs = ks & 1
        for l in g_reads(ks + 1, fs ^ 1): A(l)
        A("s_waitcnt lgkmcnt(2)")
        for l in g_mfmas(fs): A(l)
    A(f"""
    s_cmp_lt_u32 s40, 8
    s_cbranch_scc1 Lk1g_a
    s_waitcnt vmcnt(0)
Lk1g_a:
    s_waitcnt vmcnt(2) lgkmcnt(0)
    s_barrier
    """)
    for l in set_slot(0, "s50"): A(l)
    for l in g_mfmas(1): A(l)
    for l in g_reads(0, 0): A(l)
    A(f"""
    s_cmp_lt_u32 s40, 7
    s_cbranch_scc0 Lk1g_b
    s_add_u32 s52, s51, s42
    """)
    for grp in g_dma():
        for l in grp: A(l)
    A(f"""
Lk1g_b:
    s_mov_b32 s51, s50
    s_add_u32 s50, s50, {SLOT}
    s_cmp_ge_u32 s50, {3*SLOT}
    s_cselect_b32 s50, 0, s50
    s_add_u32 s40, s40, 1
    s_cmp_lt_u32 s40, 10
    s_cbranch_scc1 Lk1g_loop
    s_waitcnt lgkmcnt(0)
    s_nop 15
    v_mul_f32 v16, {f32bits(-LOG2E):#x}, v64
    v_exp_f32 v16, v16
    s_nop 0
    v_add_f32 v16, 1.0, v16
    v_rcp_f32 v16, v16
    s_lshl_b32 s44, s34, 2
    s_add_u32 s44, s44, s32                ; T
    s_lshl_b32 s44, s44, 7                 ; *32*4 bytes
    s_add_u32 s44, s44, {G_OFF}
    v_lshlrev_b32 v17, 2, v2
    v_cmp_gt_u32 vcc, 32, v2
    s_and_saveexec_b64 s[76:77], vcc
    buffer_store_dword v16, v17, s[24:27], s44 offen{SC}
    s_mov_b64 exec, s[76:77]
    s_branch Lk1_end
    """)

    A("Lk1_R:")
    if prof:
        A("v_writelane_b32 v61, s87, 8")
        wl_stamp(A, 61, 9)
    srd(A, 20, 8, W1_BYTES)
    srd(A, 28, 10, B1_BYTES)
    A(f"""
    s_sub_u32 s47, s32, 4
    s_mul_i32 s41, s35, 192
    v_lshrrev_b32 v3, 5, v2
    v_lshlrev_b32 v3, 4, v3
    """)
    if prof: wl_stamp(A, 61, 12)
    A(f"""
    buffer_load_dwordx4 v[112:115], v3, s[28:31], s41 offen
    """)
    if prof: wl_stamp(A, 61, 13)
    A(f"""
    buffer_load_dwordx4 v[116:119], v3, s[28:31], s41 offen offset:32
    buffer_load_dwordx4 v[120:123], v3, s[28:31], s41 offen offset:64
    buffer_load_dwordx4 v[124:127], v3, s[28:31], s41 offen offset:96
    buffer_load_dwordx4 v[48:51], v3, s[28:31], s41 offen offset:128
    buffer_load_dwordx4 v[52:55], v3, s[28:31], s41 offen offset:160
    """)
    if prof: wl_stamp(A, 61, 14)
    for j, reg in enumerate((12, 62, 63)):
        A(f"""
        s_mul_i32 s41, s47, 192
        s_add_u32 s41, s41, {64*j}
        v_add_u32 v13, s41, v2                 ; t
        v_mul_u32_u24 v14, 5462, v13
        v_lshrrev_b32 v14, 16, v14             ; t/12
        v_mul_u32_u24 v15, 12, v14
        v_sub_u32 v15, v13, v15
        v_mul_u32_u24 v14, 3072, v14
        v_lshl_add_u32 v{reg}, v15, 4, v14
        """)
    A(f"""
    s_mul_i32 s59, s35, 192
    s_mul_i32 s57, s79, {64*3072}
    s_add_u32 s38, s59, s57
    s_mul_i32 s43, s47, 3072
    s_add_u32 s43, s43, {W1O}
    """)
    if not v5:
        def r_dma():
            g = x_dma("s52")
            for j, reg in enumerate((12, 62, 63)):
                g.append([f"s_add_u32 m0, s53, {j*1024}", "s_nop 0",
                          f"buffer_load_dwordx4 v{reg}, s[20:23], s38 offen lds"])
            g.append(adv_group(64*3072))
            return g
        def r_stage(st):
            A(f"s_add_u32 s52, s42, {st*SLOT}")
            A(f"s_add_u32 s53, s43, {st*SLOT}")
            for grp in r_dma():
                for l in grp: A(l)
        if prof: wl_stamp(A, 61, 0)
        r_stage(0)
        if prof: wl_stamp(A, 61, 1)
        A("s_barrier")
        A("s_lshl_b32 s41, s47, 12")
        xfrag_addr("s41")
        A(f"""
        v_bfe_u32 v14, v2, 2, 2
        v_lshl_add_u32 v15, v13, 3, v14
        v_mul_u32_u24 v15, 192, v15
        v_bfe_u32 v3, v2, 4, 1
        v_lshl_add_u32 v15, v3, 5, v15
        v_and_b32 v3, 3, v2
        v_lshrrev_b32 v1, 1, v3
        v_and_b32 v3, 1, v3
        v_lshl_or_b32 v3, v3, 1, v1
        v_lshl_add_u32 v15, v3, 3, v15
        v_add_u32 v60, {W1O}, v15
        """)
        if prof: wl_stamp(A, 61, 2)
        r_stage(1)
        if prof: wl_stamp(A, 61, 3)
        A("s_waitcnt vmcnt(10)")
        if prof:
            wl_stamp(A, 61, 4)
        bsrc = [112, 116, 120, 124, 48, 52]
        for ct in range(3):
            for half in range(2):
                for m in range(4):
                    src = bsrc[2*ct + half] + m
                    d = 64 + 16*ct + 8*half + 2*m
                    A(f"v_lshlrev_b32 v{d}, 16, v{src}")
                    A(f"v_and_b32 v{d+1}, 0xffff0000, v{src}")
        def r_reads(ks, fs):
            b = 16 + 16*fs
            out = [f"ds_read_b128 v[{b}:{b+3}], v{4+ks}"]
            for ct in range(3):
                out.append(f"ds_read_b64_tr_b16 v[{b+4+4*ct}:{b+5+4*ct}], v8 offset:{ks*16*192 + ct*64}")
                out.append(f"ds_read_b64_tr_b16 v[{b+6+4*ct}:{b+7+4*ct}], v8 offset:{ks*16*192 + 4*192 + ct*64}")
            return out
        def r_mfmas(fs):
            b = 16 + 16*fs
            return [f"v_mfma_f32_32x32x16_bf16 v[{64+16*ct}:{64+16*ct+15}], v[{b+4+4*ct}:{b+7+4*ct}], v[{b}:{b+3}], v[{64+16*ct}:{64+16*ct+15}]" for ct in range(3)]
        loop("k1R", 5, r_reads, r_mfmas, r_dma, 1)
    else:
        def l_stage(dest):
            for grp in x_dma(dest):
                for l in grp: A(l)
            for l in adv_group(0): A(l)
        A("s_mov_b32 s52, s42")
        l_stage("s52")
        A("s_barrier")
        A(f"s_add_u32 s52, s42, {SLOT}")
        l_stage("s52")
        A("s_waitcnt vmcnt(8)")
        bsrc = [112, 116, 120, 124, 48, 52]
        for ct in range(3):
            for half in range(2):
                for m in range(4):
                    src = bsrc[2*ct + half] + m
                    d = 64 + 16*ct + 8*half + 2*m
                    A(f"v_lshlrev_b32 v{d}, 16, v{src}")
                    A(f"v_and_b32 v{d+1}, 0xffff0000, v{src}")
        A("s_waitcnt vmcnt(4)")
        A("s_barrier")
        A(f"s_add_u32 s52, s42, {2*SLOT}")
        l_stage("s52")
        for st in range(10):
            A(f"s_waitcnt vmcnt({4 if st <= 7 else 0})")
            A("s_barrier")
            if st < 7:
                A(f"s_add_u32 s52, s42, {(st % 3)*SLOT}")
                l_stage("s52")
        FS = 28672; FB = 3*24576
        if mprof == 1: stamp(A, 11)
        A(f"""
        s_lshl_b32 s41, s47, 12
        """)
        xfrag_addr("s41")
        A(f"""
        v_bfe_u32 v14, v2, 2, 2
        v_lshl_add_u32 v15, v13, 3, v14
        v_mul_u32_u24 v15, 192, v15
        v_bfe_u32 v3, v2, 4, 1
        v_lshl_add_u32 v15, v3, 5, v15
        v_and_b32 v3, 3, v2
        v_lshrrev_b32 v1, 1, v3
        v_and_b32 v3, 1, v3
        v_lshl_or_b32 v3, v3, 1, v1
        v_lshl_add_u32 v15, v3, 3, v15
        v_add_u32 v60, 16384, v15
        s_mov_b32 s37, s58
        s_mov_b32 s38, s59                     ; W1 soffset
        s_lshl_b32 s42, s47, 12
        s_add_u32 s42, s42, {FB}
        s_mul_i32 s43, s47, 3072
        s_add_u32 s43, s43, {FB + 16384}
        v_and_b32 v61, 3, v2
        v_lshlrev_b32 v61, 2, v61
        v_add_u32 v61, {FL + LF_F1P}, v61
        s_lshl_b32 s41, s47, 2
        s_add_u32 s41, s41, {FL + LF_F1P}
        v_mov_b32 v1, s41
        """)
        def f_groups(slot):
            g = []
            for j in range(4):
                g.append([f"s_add_u32 m0, s42, {slot*FS + j*1024}", f"s_add_u32 s48, s37, {j*10240}",
                          f"buffer_load_dwordx4 v{10 + (j & 1)}, s[16:19], s48 offen lds"])
            for j, reg in enumerate((12, 62, 63)):
                g.append([f"s_add_u32 m0, s43, {slot*FS + j*1024}", "s_nop 0",
                          f"buffer_load_dwordx4 v{reg}, s[20:23], s38 offen lds"])
            g.append(["s_add_u32 s37, s37, 128", f"s_add_u32 s38, s38, {64*3072}"])
            return g
        for st in range(2):
            for grp in f_groups(st):
                for l in grp: A(l)
        def r_reads(ks, fs):
            b = 16 + 16*fs
            out = [f"ds_read_b128 v[{b}:{b+3}], v{4+ks}"]
            for ct in range(3):
                out.append(f"ds_read_b64_tr_b16 v[{b+4+4*ct}:{b+5+4*ct}], v8 offset:{ks*16*192 + ct*64}")
                out.append(f"ds_read_b64_tr_b16 v[{b+6+4*ct}:{b+7+4*ct}], v8 offset:{ks*16*192 + 4*192 + ct*64}")
            return out
        def r_mfmas(fs):
            b = 16 + 16*fs
            return [f"v_mfma_f32_32x32x16_bf16 v[{64+16*ct}:{64+16*ct+15}], v[{b+4+4*ct}:{b+7+4*ct}], v[{b}:{b+3}], v[{64+16*ct}:{64+16*ct+15}]" for ct in range(3)]
        for st in range(10):
            lab = A.label("f1s")
            A(f"""
            s_waitcnt vmcnt({7 if st < 9 else 0}) lgkmcnt(0)
            v_mov_b32 v9, {st + 1}
            ds_write_b32 v1, v9
            s_mov_b32 s99, 0x100000
            {lab}:
            ds_read_b32 v9, v61
            s_waitcnt lgkmcnt(0)
            v_cmp_le_u32 vcc, {st + 1}, v9
            s_cmp_eq_u64 vcc, exec
            s_cbranch_scc1 {lab}_ok
            s_sub_u32 s99, s99, 1
            s_cbranch_scc0 {lab}
            {lab}_ok:
            """)
            if mprof == 1: wl_stamp(A, 127, st)
            for l in set_slot(1, str(FB + (st % 3)*FS)): A(l)
            for l in r_reads(0, 0): A(l)
            g = f_groups((st + 2) % 3) if st + 2 < 10 else []
            per = (len(g) + 2) // 3
            for ks in range(3):
                kstep(r_mfmas(ks & 1), [[l] for l in r_reads(ks + 1, (ks & 1) ^ 1)], g[ks*per:(ks+1)*per])
            kstep(r_mfmas(1), [], [])
        A("s_nop 15")
        if mprof == 1:
            stamp(A, 12)
            wl_dump(A, 127, 0, 24, 85, 9)
    if not fused: A("s_setprio 2")
    A(f"""
    s_lshl_b32 s44, s34, 2
    s_add_u32 s44, s44, s47                ; T
    s_mul_i32 s45, s44, {2*48*1024}
    s_mul_i32 s41, s35, {3*1024}
    s_add_u32 s45, s45, s41
    s_add_u32 s45, s45, {ACT_OFF}
    v_bfe_u32 v13, v2, 4, 1                ; token>>4
    v_mul_u32_u24 v13, {48*1024}, v13
    v_lshrrev_b32 v14, 5, v2               ; hf
    v_lshl_add_u32 v13, v14, 8, v13
    v_and_b32 v14, 15, v2
    v_lshl_add_u32 v13, v14, 4, v13
    s_mov_b32 s54, {f32bits(LOG2E):#x}
    s_mov_b32 s55, s54
    v_mov_b32 v2, 2.0
    v_mov_b32 v3, 2.0
    """)
    def mish8(r, t0):
        for p in range(4):
            A(f"v_pk_mul_f32 v[{t0+2*p}:{t0+2*p+1}], v[{r+2*p}:{r+2*p+1}], s[54:55]")
        for i in range(8):
            A(f"v_exp_f32 v{t0+i}, v{t0+i}")
        for p in range(4):
            A(f"v_pk_add_f32 v[{t0+8+2*p}:{t0+8+2*p+1}], v[{t0+2*p}:{t0+2*p+1}], v[2:3]")
        for p in range(4):
            A(f"v_pk_fma_f32 v[{t0+2*p}:{t0+2*p+1}], v[{t0+2*p}:{t0+2*p+1}], v[{t0+8+2*p}:{t0+8+2*p+1}], v[2:3]")
        for i in range(8):
            A(f"v_rcp_f32 v{t0+i}, v{t0+i}")
        A("s_nop 0")
        for p in range(4):
            A(f"v_pk_fma_f32 v[{t0+2*p}:{t0+2*p+1}], v[{t0+2*p}:{t0+2*p+1}], -2.0, 1.0 op_sel_hi:[1,0,0]")
        for p in range(4):
            A(f"v_pk_mul_f32 v[{r+2*p}:{r+2*p+1}], v[{r+2*p}:{r+2*p+1}], v[{t0+2*p}:{t0+2*p+1}]")
    k = 0
    for ct in range(3):
        for j in range(2):
            r = 64 + 16*ct + 8*j
            mish8(r, 16)
            t = 32 + 4*k; k += 1
            for m in range(4):
                A(f"v_cvt_pk_bf16_f32 v{t+m}, v{r+2*m}, v{r+2*m+1}")
            if not fused:
                A(f"buffer_store_dwordx4 v[{t}:{t+3}], v13, s[24:27], s45 offen offset:{ct*1024 + j*512}{SC}")
    if fused:
        if mprof == 1: stamp(A, 13)
        if rtrig == 2: lds_spin(A, FL + LF_FULL, 1, 8, tmp=(16, 17), sleep=4)
        elif rtrig == 1: lds_spin(A, FL + LF_GO, 1, 1, tmp=(16, 17), sleep=4)
        else: lds_spin(A, FL + LF_PD, 1, 4, tmp=(16, 17), sleep=4)
        k = 0
        for ct in range(3):
            for j in range(2):
                t = 32 + 4*k; k += 1
                A(f"buffer_store_dwordx4 v[{t}:{t+3}], v13, s[24:27], s45 offen offset:{ct*1024 + j*512}{SC}")
    A("s_branch Lk1_endR" if fused else "s_branch Lk1_end")
    A("Lk1_H:")
    gen_helpers(A, FL, pf, mprof, hprio, pfa, spf)
    if fused:
        A("Lk1_endR:")
        A("s_waitcnt vmcnt(0)")
        A(f"s_sub_u32 s41, s32, 4")
        A("s_lshl_b32 s41, s41, 2")
        A(f"s_add_u32 s41, s41, {FL + LF_RD}")
        A("v_mov_b32 v4, s41")
        A("v_mov_b32 v5, 1")
        A("ds_write_b32 v4, v5")
        A("s_branch Lshadow_entry")
        A("Lk1_end:")
        if mprof: wl_stamp(A, 160, 1)
        A("s_waitcnt vmcnt(0)")
        if mprof and not dbg2: wl_stamp(A, 160, 2)
        A("s_lshl_b32 s41, s32, 2")
        A(f"s_add_u32 s41, s41, {FL + LF_PD}")
        A("v_mov_b32 v4, s41")
        A("v_mov_b32 v5, 1")
        A("ds_write_b32 v4, v5")
        A("s_branch Lattn_entry")
        A("Lk1_exit:")
        A("s_endpgm")
        return A.text()
    A("Lk1_end:")
    if prof:
        A("s_memtime s[88:89]")
        A("s_waitcnt lgkmcnt(0)")
        A("s_sub_u32 s88, s88, s92")
        A("s_cmp_ge_u32 s32, 4")
        A("s_cbranch_scc1 Lk1_dbgR")
        A("v_mov_b32 v61, v63")
        A("Lk1_dbgR:")
        A("v_writelane_b32 v61, s88, 11")
        A("v_writelane_b32 v61, s91, 10")
        A(f"""
        s_lshl_b32 s97, s2, 4
        s_add_u32 s97, s97, s32
        s_lshl_b32 s97, s97, 6
        s_add_u32 s97, s97, {DBG_OFF + 0x100000}
        v_and_b32 v4, 63, v0
        v_lshlrev_b32 v4, 2, v4
        v_cmp_gt_u32 vcc, 16, v0
        v_and_b32 v5, 63, v0
        v_cmp_gt_u32 vcc, 16, v5
        s_and_saveexec_b64 s[56:57], vcc
        buffer_store_dword v61, v4, s[24:27], s97 offen
        s_mov_b64 exec, s[56:57]
        """)
        prof_end(A, 0, 24, 32, tmpv=(4, 5, 6, 7, 8), extra="s90")
    if tl: tl2_record(A, 0, 24, 32)
    A("Lk1_exit:")
    A("s_endpgm")
    return A.text(), kdesc(NAME, 128), f"; @launch kernel={NAME} grid=(256,1,1) block=(576,1,1) lds={LDS_BYTES}"
```

```python
from asm import *
from common import *
from k2_shadow import gen_shadow

NAME = "k2_kernel"
SLOT = 24576
SH_BASE = 3 * SLOT
FLAG = MEGA_FLAG
LDS_BYTES = FLAG + 256

X_ = [16, 48]
P_ = 80
O_ = 88
C_ = 104
QM = 120
QT = 124
KF = [126, 130]
KT = 134
V0 = 136
V1 = 140
FL = 144

def mf(d, a, b, c):
    cs = "0" if c is None else f"v[{c}:{c+15}]"
    return f"v_mfma_f32_32x32x16_bf16 v[{d}:{d+15}], v[{a}:{a+3}], v[{b}:{b+3}], {cs}"
def mf2b(d, a, b, c):
    cs = "0" if c is None else f"v[{c}:{c+31}]"
    return f"v_mfma_f32_32x32x4_2b_bf16 v[{d}:{d+31}], v[{a}:{a+1}], v[{b}:{b+1}], {cs}"

def vslot(A, row, dst, t1):
    A(f"""
    v_mov_b32 v{dst}, v{row}
    v_add_u32 v{t1}, 12, v{row}
    v_cmp_lt_u32 vcc, 3, v{row}
    s_nop 1
    v_cndmask_b32 v{dst}, v{dst}, v{t1}, vcc
    v_subrev_u32 v{t1}, 1, v{row}
    v_cmp_lt_u32 vcc, 9, v{row}
    s_nop 1
    v_cndmask_b32 v{dst}, v{dst}, v{t1}, vcc
    v_subrev_u32 v{t1}, 8, v{row}
    v_cmp_lt_u32 vcc, 11, v{row}
    s_nop 1
    v_cndmask_b32 v{dst}, v{dst}, v{t1}, vcc
    v_subrev_u32 v{t1}, 5, v{row}
    v_cmp_lt_u32 vcc, 15, v{row}
    s_nop 1
    v_cndmask_b32 v{dst}, v{dst}, v{t1}, vcc
    v_cmp_lt_u32 vcc, 19, v{row}
    s_nop 1
    v_cndmask_b32 v{dst}, v{dst}, 8, vcc
    v_cmp_lt_u32 vcc, 20, v{row}
    s_nop 1
    v_cndmask_b32 v{dst}, v{dst}, 15, vcc
    """)

def gen_k2(prof=False, exp_mode=0, shadow=True, shprio=0, pa=1, pb=2, tl=0, nofb=0, lstamp=0, desc=3, na=11, fused=False, mprof=0, dbg2=0, oft=0, outf=0, tm=0, part=0, shexp=0):
    KT4 = 152; QA4 = 156; QB4 = 164
    A = Asm(10000)
    if not fused:
        A(khead(NAME))
        A(f"""
        s_cmp_ge_u32 s2, 256
        s_cbranch_scc1 Lk2_end
        """)
        if prof: prof_start(A)
        if tl: tl_start(A, 1)
    def ids():
        A(f"""
        s_load_dwordx2 s[4:5], s[0:1], 80
        v_lshrrev_b32 v9, 6, v0
        v_and_b32 v1, 63, v0                   ; lane
        s_and_b32 s20, s2, 7
        v_readfirstlane_b32 s12, v9            ; wave
        s_lshr_b32 s21, s2, 3
        s_and_b32 s22, s21, 3
        s_lshl_b32 s13, s20, 2
        s_add_u32 s13, s13, s22                ; h
        s_lshr_b32 s14, s21, 2                 ; qb
        s_lshl_b32 s15, s14, 3
        s_add_u32 s15, s15, s12                ; T
        """)
    if fused:
        A("Lshadow_entry:")
        ids()
        A("s_branch Lk2_shadow")
        A("Lattn_entry:")
        A("s_setprio 0")
        ids()
    else:
        ids()
        A("s_cmp_ge_u32 s12, 8")
        A("s_cbranch_scc1 Lk2_shadow")
    A(f"""
    s_mul_i32 s16, s13, {HSK}
    s_add_u32 s16, s16, {KV_OFF}
    s_mul_i32 s23, s13, {HSQ}
    s_mul_i32 s24, s15, 1280
    s_add_u32 s23, s23, s24
    s_add_u32 s23, s23, {QF_OFF}
    v_lshlrev_b32 v8, 4, v1                ; lane*16
    v_and_b32 v9, 31, v1
    v_lshrrev_b32 v10, 5, v1               ; hf
    v_lshlrev_b32 v11, 3, v9
    v_add_u32 v11, 1024, v11               ; 1024 + token*8
    s_mul_i32 s25, s12, 3072
    s_add_u32 s17, s16, s25
    """)
    if fused and part:
        A(f"""
        s_add_u32 s44, s17, {8*CH}
        s_mul_i32 s20, s14, {CH if part == 1 else 0}
        s_add_u32 s17, s17, s20
        """)
    A(f"""
    s_waitcnt lgkmcnt(0)
    """)
    srd_ws(A, 8, 4, WS_RECORDS)
    def dma_groups(slot_sgpr, slot_imm=0):
        g = []
        for j in range(3):
            m0 = f"s_add_u32 m0, {slot_sgpr}, {slot_imm + j*1024}"
            g.append([m0, f"s_add_u32 s26, s17, {j*1024}", f"buffer_load_dwordx4 v8, s[8:11], s26 offen lds"])
        if fused and part:
            g.append([f"s_add_u32 s17, s17, {CH}", "s_cmp_ge_u32 s17, s44", f"s_cselect_b32 s26, {8*CH}, 0", "s_sub_u32 s17, s17, s26"])
        else:
            g.append([f"s_add_u32 s17, s17, {CH}"])
        return g
    def first_loads():
        for grp in dma_groups("s25", 0):
            for l in grp: A(l)
        A(f"""
        buffer_load_dwordx4 v[{QM}:{QM+3}], v8, s[8:11], s23 offen
        buffer_load_dwordx2 v[{QT}:{QT+1}], v11, s[8:11], s23 offen
        """)
        if not fused:
            for grp in dma_groups("s25", SLOT):
                for l in grp: A(l)
    if not fused: first_loads()
    A(f"""
    v_cmp_gt_u32 s[28:29], 32, v1          ; lanes < 32
    v_mov_b32 v5, v8
    v_mul_u32_u24 v6, 1280, v10
    v_add_u32 v6, v6, v11
    """)
    A(f"""
    s_and_b32 s20, s13, 1
    s_mov_b32 s21, 0x43120
    s_cmp_eq_u32 s20, 1
    s_cselect_b32 s21, 0x04231, s21        ; odd h: 1,3,2,4,0
    v_lshrrev_b32 v14, 2, v9
    v_lshlrev_b32 v14, 2, v14              ; 4*g
    v_lshrrev_b32 v15, v14, s21
    v_and_b32 v15, 15, v15                 ; j
    v_and_b32 v14, 3, v9
    v_lshl_add_u32 v15, v15, 2, v14        ; dh
    v_cmp_gt_u32 vcc, 20, v9
    s_nop 1
    v_cndmask_b32 v16, v9, v15, vcc
    """)
    vslot(A, 16, 14, 15)
    A(f"""
    s_mul_i32 s21, s13, 5
    v_and_b32 v16, 15, v1
    v_lshlrev_b32 v16, 4, v16              ; token16*16
    v_bfe_u32 v17, v1, 4, 1
    v_mul_u32_u24 v17, 20480, v17
    v_add_u32 v16, v16, v17
    v_lshlrev_b32 v17, 1, v10              ; 2*hf
    v_add_u32 v17, s20, v17
    v_add_u32 v17, s21, v17                ; G0
    v_lshrrev_b32 v18, 3, v17
    v_lshlrev_b32 v18, 10, v18
    v_bfe_u32 v17, v17, 1, 2
    v_lshl_add_u32 v18, v17, 8, v18
    v_add_u32 v152, v18, v16
    s_xor_b32 s20, s20, 1
    s_lshl_b32 s20, s20, 2
    s_add_u32 s20, s20, s21                ; G1
    s_lshr_b32 s21, s20, 3
    s_lshl_b32 s21, s21, 10
    s_bfe_u32 s22, s20, 0x20001
    s_lshl_b32 s22, s22, 8
    s_add_u32 s21, s21, s22
    s_and_b32 s20, s20, 1
    s_lshl_b32 s20, s20, 3
    s_add_u32 s21, s21, s20
    v_add_u32 v153, s21, v16
    v_mul_u32_u24 v7, {VH}, v10
    v_lshl_add_u32 v7, v14, 4, v7
    v_add_u32 v7, {VPART}, v7
    v_mov_b32 v2, v5
    v_mov_b32 v3, v6
    v_mov_b32 v4, v7
    """)
    if not fused:
        A(f"""
        v_lshlrev_b32 v12, 2, v1
        v_add_u32 v12, {FLAG}, v12
        v_mov_b32 v13, 0
        s_cmp_eq_u32 s12, 0
        s_cbranch_scc0 Lk2_noclr
        s_mov_b64 exec, s[28:29]
        ds_write_b32 v12, v13
        s_mov_b64 exec, -1
Lk2_noclr:
        """)
    A(f"""
    v_and_b32 v12, 7, v1
    v_lshlrev_b32 v12, 2, v12
    v_add_u32 v12, {FLAG}, v12             ; v12: full[lane&7] ; +32: free[lane&7]
    s_lshl_b32 s33, s12, 2
    s_add_u32 s33, s33, {FLAG}
    v_mov_b32 v13, s33                     ; v13: own full word ; +32 own free word
    """)
    for i in range(4): A(f"v_mov_b32 v{V1+i}, 0")
    for i in range(4): A(f"v_mov_b32 v{P_+4+i}, 0")
    for i in range(16): A(f"v_mov_b32 v{O_+i}, 0")
    X0 = X_[0]
    if fused:
        if oft:
            A(f"""
            s_cmp_eq_u32 s12, 6
            s_cbranch_scc0 Lattn_nooft
            v_lshrrev_b32 v146, 2, v1
            s_lshl_b32 s20, s14, 4
            v_add_u32 v146, s20, v146              ; T16
            v_mul_u32_u24 v146, 20480, v146
            v_and_b32 v147, 1, v1
            v_lshl_add_u32 v146, v147, 7, v146     ; + line*128
            v_bfe_u32 v147, v1, 1, 1
            s_mul_i32 s20, s13, 5
            """)
            for m in range(3):
                A(f"""
                v_add_u32 v148, {2*m}, v147
                v_min_u32 v148, 4, v148
                v_add_u32 v148, s20, v148              ; G
                v_lshrrev_b32 v149, 3, v148
                v_lshlrev_b32 v149, 10, v149
                v_bfe_u32 v148, v148, 1, 2
                v_lshl_add_u32 v149, v148, 8, v149
                v_add_u32 v149, v149, v146
                s_mov_b32 s21, {OF_OFF}
                buffer_load_dword v150, v149, s[8:11], s21 offen sc1
                """)
            A("Lattn_nooft:")
        A("s_cmp_eq_u32 s12, 5")
        A("s_cbranch_scc0 Lattn_nopub")
        lds_spin(A, FLAG + LF_HD + 12, 1, 1, tmp=(146, 147), sleep=0)
        lds_spin(A, FLAG + LF_PD, 1, 4, tmp=(146, 147), sleep=0)
        get_tag(A, FLAG + LF_TAG, "s35", tmp=(146, 147))
        A(f"""
        s_and_b32 s20, s2, 7
        s_lshr_b32 s21, s2, 3
        s_and_b32 s22, s20, 1
        s_lshl_b32 s22, s22, 3
        s_and_b32 s24, s21, 7
        s_add_u32 s22, s22, s24                ; rb
        s_lshr_b32 s20, s20, 1
        s_lshl_b32 s20, s20, 2
        s_lshr_b32 s21, s21, 3
        s_add_u32 s20, s20, s21                ; cgp
        s_mul_i32 s20, s20, {FROW}
        s_lshl_b32 s22, s22, 2
        s_add_u32 s20, s20, s22
        s_add_u32 s20, s20, {F1A_OFF}
        v_mul_u32_u24 v146, {FREP}, v1
        v_mov_b32 v147, s35
        s_mov_b64 exec, 0xf
        buffer_store_dword v147, v146, s[8:11], s20 offen sc1
        s_mov_b64 exec, -1
        """)
        if mprof == 1:
            wl_stamp(A, 160, 8)
            A("s_waitcnt vmcnt(0)")
            wl_stamp(A, 160, 9)
        A("Lattn_nopub:")
        A("s_cmp_eq_u32 s12, 4")
        A("s_cbranch_scc0 Lattn_wgo")
        get_tag(A, FLAG + LF_TAG, "s35", tmp=(146, 147))
        lds_spin(A, FLAG + LF_PD, 1, 4, tmp=(146, 147), sleep=1)
        if mprof: wl_stamp(A, 160, 1)
        A(f"""
        s_mul_i32 s20, s13, 20
        s_add_u32 s21, s20, 19
        s_lshr_b32 s20, s20, 7
        s_lshr_b32 s21, s21, 7
        v_and_b32 v146, 15, v1
        v_lshlrev_b32 v146, 2, v146
        v_bfe_u32 v147, v1, 4, 1
        v_mov_b32 v148, s20
        v_mov_b32 v149, s21
        v_cmp_eq_u32 vcc, 1, v147
        s_nop 1
        v_cndmask_b32 v148, v148, v149, vcc    ; cb
        v_lshrrev_b32 v147, 5, v1              ; 0: K, 1: V
        v_mul_u32_u24 v147, 5, v147
        v_add_u32 v147, 5, v147
        v_add_u32 v147, v147, v148
        v_mul_u32_u24 v147, {FROW}, v147
        v_add_u32 v147, v147, v146
        v_mul_u32_u24 v148, {FROW}, v148
        v_add_u32 v148, v148, v146
        v_bfe_u32 v149, v1, 1, 3
        v_cmp_eq_u32 s[36:37], s14, v149
        v_cmp_gt_u32 vcc, 32, v1
        s_and_b64 s[36:37], s[36:37], vcc
        s_lshr_b32 s20, s2, 3
        s_and_b32 s20, s20, 3
        s_mul_i32 s20, s20, {FREP}
        s_add_u32 s20, s20, {F1A_OFF}
        s_mov_b32 s45, s20
        """)
        if part:
            A(f"""
            v_and_b32 v149, 15, v1
            s_mul_i32 s21, s14, {2 if part == 1 else 0}
            v_subrev_u32 v149, s21, v149
            v_and_b32 v149, 15, v149
            v_cmp_gt_u32 s[46:47], 4, v149
            """)
        else:
            A("s_mov_b64 s[46:47], -1")
        A(f"""
        s_mov_b32 s34, 0x40000
Lattn_poll:
        buffer_load_dword v150, v147, s[8:11], s20 offen sc1
        buffer_load_dword v151, v148, s[8:11], s20 offen sc1
        s_waitcnt vmcnt(0)
        """)
        if mprof == 1:
            A("s_cmp_eq_u32 s34, 0x40000")
            A("s_cbranch_scc0 Lattn_np")
            wl_stamp(A, 160, 8)
            A("Lattn_np:")
        A(f"""
        v_cmp_eq_u32 vcc, s35, v150
        v_cmp_eq_u32 s[38:39], s35, v151
        s_orn2_b64 vcc, vcc, s[46:47]
        s_orn2_b64 s[38:39], s[38:39], s[36:37]
        s_and_b64 vcc, vcc, s[38:39]
        s_cmp_eq_u64 vcc, exec
        s_cbranch_scc1 Lattn_polled
        s_sleep 2
        s_sub_u32 s34, s34, 1
        s_cbranch_scc0 Lattn_poll
Lattn_polled:
        """)
        if mprof: wl_stamp(A, 160, 2)
        if mprof == 1:
            A("s_sub_u32 s34, 0x40000, s34")
            A("v_writelane_b32 v160, s34, 9")
        lds_set(A, FLAG + LF_GO, 1, tmp=(146, 149))
        A("s_branch Lattn_go")
        A("Lattn_wgo:")
        lds_spin(A, FLAG + LF_GO, 1, 1, tmp=(146, 147), sleep=1)
        A("Lattn_go:")
        if mprof and not dbg2: wl_stamp(A, 160, 3)
        first_loads()
    A(f"""
    s_waitcnt vmcnt({0 if fused else 3}) lgkmcnt(0)
    """)
    if fused:
        for grp in dma_groups("s25", SLOT):
            for l in grp: A(l)
        if part:
            A("""
            s_cmp_eq_u32 s12, 4
            s_cbranch_scc0 Lattn_noap
            buffer_load_dword v150, v147, s[8:11], s45 offen sc1
Lattn_noap:
            """)
        A(f"v_mov_b32 v{FL}, 1")
        A(f"ds_write_b32 v13, v{FL}")
        lds_spin(A, FLAG + LF_FULL, 1, 8, tmp=(FL, FL + 1), sleep=0, cnt="s34")
        if mprof and not dbg2: wl_stamp(A, 160, 4)
    else:
        A("s_barrier")
    KTr = KT4 if tm else KT
    if tm:
        A(f"""
        v_cndmask_b32 v{QA4}, 0, v{QT}, s[28:29]
        v_cndmask_b32 v{QA4+1}, 0, v{QT+1}, s[28:29]
        v_mov_b32 v{QA4+2}, 0
        v_mov_b32 v{QA4+3}, 0
        v_cndmask_b32 v{QB4}, v{QT}, 0, s[28:29]
        v_cndmask_b32 v{QB4+1}, v{QT+1}, 0, s[28:29]
        v_mov_b32 v{QB4+2}, 0
        v_mov_b32 v{QB4+3}, 0
        v_mov_b32 v{KT4+2}, 0
        v_mov_b32 v{KT4+3}, 0
        """)
    A(f"""
    ds_read_b128 v[{KF[0]}:{KF[0]+3}], v2
    ds_read_b128 v[{KF[1]}:{KF[1]+3}], v2 offset:1280
    ds_read_b64 v[{KTr}:{KTr+1}], v3
    ds_read_b128 v[{V0}:{V0+3}], v4
    s_waitcnt lgkmcnt(0)
    {mf(X0, KF[0], QM, None)}
    {mf(X0+16, KF[1], QM, None)}
    """)
    if tm:
        A(mf(X0, KT4, QA4, X0)); A(mf(X0+16, KT4, QB4, X0+16)); A("s_nop 15")
    else:
        A("s_nop 11"); A(mf2b(X0, KT, QT, X0)); A("s_nop 15"); A("s_nop 7")
    A(f"v_max3_f32 v9, v{X0}, v{X0+1}, v{X0+2}")
    for i in range(3, 31, 2):
        A(f"v_max3_f32 v9, v9, v{X0+i}, v{X0+i+1}")
    A(f"v_max_f32 v9, v9, v{X0+31}")
    A(f"""
    v_mov_b32 v10, v9
    s_nop 1
    v_permlane32_swap_b32 v9, v10
    s_nop 1
    v_max_f32 v9, v9, v10
    """)
    A("v_sub_f32 v14, 0, v9")
    A("v_mov_b32 v15, v14")
    for i in range(16): A(f"v_pk_add_f32 v[{X0+2*i}:{X0+2*i+1}], v[{X0+2*i}:{X0+2*i+1}], v[14:15]")
    for i in range(16): A(f"v_mov_b32 v{C_+i}, v14")
    A(f"""
    ds_read_b128 v[{KF[0]}:{KF[0]+3}], v2 offset:{2*1280}
    ds_read_b128 v[{KF[1]}:{KF[1]+3}], v2 offset:{3*1280}
    ds_read_b64 v[{KTr}:{KTr+1}], v3 offset:{2*1280}
    s_mov_b32 s18, 0
    s_mov_b32 s19, {SLOT}
    s_mov_b32 s27, {2*SLOT}
    s_setprio {pa}
    s_cmp_ge_u32 s12, 4
    s_cbranch_scc0 Lk2_noprio
    s_setprio {pb}
Lk2_noprio:
    """)
    if prof:
        A("s_memtime s[90:91]")
        A("s_waitcnt lgkmcnt(0)")
        A("s_sub_u32 s90, s90, s92")
    A0 = A
    class F:
        def __call__(self, l):
            for x in l.strip("\n").split("\n"):
                ls = x.strip()
                if exp_mode == 2 and ls.startswith("v_mfma"): continue
                if exp_mode == 3 and (ls.startswith("v_exp") or ls.startswith("v_cvt")): continue
                if exp_mode == 4 and (ls.startswith("ds_read_b128") or ls.startswith("ds_read_b64")): continue
                if exp_mode == 5 and ls.startswith("v_mfma_f32_32x32x4"): continue
                if exp_mode == 6 and (ls.startswith("ds_read_b128") or ls.startswith("ds_read_b64") or ls.startswith("v_mfma")): continue
                if exp_mode == 7 and ls.startswith("buffer_load"): continue
                A0(x)
        def label(self, b): return A0.label(b)
    if lstamp: wl_stamp(A, 150, 0)
    if mprof: wl_stamp(A, 160, 5)
    A("Lk2_loop:")
    A = F()
    def check(reg, need_sgpr, tag):
        lab = A.label(tag)
        off = 32 if tag == "free" else 0
        A(f"""
        v_cmp_le_u32 vcc, {need_sgpr}, v{reg}
        s_cmp_eq_u64 vcc, exec
        s_cbranch_scc1 {lab}
        s_mov_b32 s34, 0x40000
        {lab}_s:
        s_sub_u32 s34, s34, 1
        s_cbranch_scc1 {lab}
        s_sleep 1
        ds_read_b32 v{reg}, v12 offset:{off}
        s_waitcnt lgkmcnt(0)
        v_cmp_le_u32 vcc, {need_sgpr}, v{reg}
        s_cmp_eq_u64 vcc, exec
        s_cbranch_scc0 {lab}_s
        {lab}:
        """)
    def tile(sc, first, pr, t):
        sn = X_[(pr + 1) & 1]
        kt = (2*pr + 4) & 7
        E = lambda i: f"v_exp_f32 v{sc+i}, v{sc+i}"
        C = lambda p, a: f"v_cvt_pk_bf16_f32 v{P_+p}, v{sc+a}, v{sc+a+1}"
        pre = []
        if desc == 1 and t % 2 == 0: A(f"s_setprio {3 - t // 2}")
        if desc == 2 and t % 2 == 0: A(f"s_setprio {max(1, 3 - t // 2) if t < 6 else 1}")
        if desc == 3: A(f"s_setprio {3 - (t % 4)}")
        if desc in (4, 5): A(f"s_setprio {3 - 2*(t % 2)}")
        if desc == 6: A(f"s_setprio {[3,3,2,2,1,1,0,0][t]}") if t % 2 == 0 else None
        if desc == 7: A(f"s_setprio {[3,2,1,0,0,1,2,3][t]}")
        if desc == 8: A(f"s_setprio {[3,2,2,1,1,0,0,0][t]}")
        A("s_waitcnt lgkmcnt(0)")
        if t == 0:
            A(f"""
            v_mov_b32 v{FL+1}, s18
            ds_write_b32 v13, v{FL+1} offset:32
            """)
        if t == 2:
            A(f"""
            s_waitcnt vmcnt(0)
            s_add_u32 s31, s18, 2
            v_mov_b32 v{FL+1}, s31
            ds_write_b32 v13, v{FL+1}
            """)
        if t == 4:
            nofull = A.label("nofull")
            A("s_cmp_lt_u32 s18, 7")
            A(f"s_cbranch_scc0 {nofull}")
            A("s_add_u32 s31, s18, 2")
            check(FL + 1, "s31", "full")
            A(f"{nofull}:")
            A("v_add_u32 v2, s19, v5")
            A("v_add_u32 v3, s19, v6")
        if first:
            A(mf(sn, KF[0], QM, C_))
            A(f"ds_read_b128 v[{KF[0]}:{KF[0]+3}], v2 offset:{kt*1280}")
        elif tm:
            A(mf(sn, KT4, QA4, sn))
        else:
            A(mf2b(sn, KT, QT, sn))
            A(f"ds_read_b64 v[{KT}:{KT+1}], v3 offset:{kt*1280}")
        if t == 1: A(f"ds_read_b32 v{FL}, v12 offset:32")
        if t == 3: A(f"ds_read_b32 v{FL+1}, v12")
        for i in range(4): A(E(i))
        A(mf(O_, V1, P_+4, O_))
        A(f"ds_read_b128 v[{V1}:{V1+3}], v4 offset:{t*VT + 2*VH}")
        if t == 7:
            A("v_add_u32 v4, s19, v7")
        dg = []
        if t == 2:
            skip = A.label("k2skip")
            A(f"s_cmp_lt_u32 s18, 6")
            A(f"s_cbranch_scc0 {skip}")
            if fused and part:
                ga = A.label("goall")
                A(f"""
                s_cmp_eq_u32 s18, 0
                s_cbranch_scc0 {ga}
                s_cmp_eq_u32 s12, 4
                s_cbranch_scc0 {ga}_w
                s_mov_b32 s34, 0x40000
                {ga}_p:
                v_cmp_eq_u32 vcc, s35, v150
                s_cmp_eq_u64 vcc, exec
                s_cbranch_scc1 {ga}_s
                buffer_load_dword v150, v147, s[8:11], s45 offen sc1
                s_waitcnt vmcnt(0)
                s_sub_u32 s34, s34, 1
                s_cbranch_scc0 {ga}_p
                {ga}_s:
                v_mov_b32 v150, {FLAG + LF_GOALL}
                v_mov_b32 v151, 1
                ds_write_b32 v150, v151
                s_branch {ga}
                {ga}_w:
                """)
                lds_spin(A, FLAG + LF_GOALL, 1, 1, tmp=(150, 151), sleep=1, cnt="s34")
                A(f"{ga}:")
            check(FL, "s18", "free")
            A("s_add_u32 s30, s27, s25")
            for grp in dma_groups("s30"):
                for l in grp: A(l)
            A(f"{skip}:")
        A(C(0, 0)); A(E(4)); A(C(1, 2))
        for i in (5, 6, 7): A(E(i))
        if desc == 4: A(f"s_setprio {2 - 2*(t % 2)}")
        if first:
            A(mf(sn + 16, KF[1], QM, C_))
            A(f"ds_read_b128 v[{KF[1]}:{KF[1]+3}], v2 offset:{(kt+1)*1280}")
        elif tm:
            A(mf(sn + 16, KT4, QB4, sn + 16))
            A(f"ds_read_b64 v[{KT4}:{KT4+1}], v3 offset:{kt*1280}")
        A(C(2, 4)); A(E(8)); A(C(3, 6)); A(E(9)); A(E(10))
        A(mf(O_, V0, P_, O_))
        A(f"ds_read_b128 v[{V0}:{V0+3}], v4 offset:{((t+1)&7)*VT}")
        for i in (11, 12, 13): A(E(i))
        A(C(4, 8)); A(E(14)); A(C(5, 10)); A(E(15)); A(C(6, 12)); A(C(7, 14))
    for pr in range(4):
        cur = X_[pr & 1]
        tile(cur, True, pr, 2*pr)
        tile(cur + 16, False, pr, 2*pr + 1)
    A = A0
    A(f"""
    s_mov_b32 s19, s27
    s_add_u32 s27, s27, {SLOT}
    s_cmp_ge_u32 s27, {3*SLOT}
    s_cselect_b32 s27, 0, s27
    s_add_u32 s18, s18, 1
    s_cmp_lt_u32 s18, 8
    s_cbranch_scc1 Lk2_loop
    """)
    if lstamp: wl_stamp(A, 150, 1)
    if mprof: wl_stamp(A, 160, 6)
    A(f"""
    s_waitcnt lgkmcnt(0)
    {mf(O_, V1, P_+4, O_)}
    s_mov_b32 s31, 0
    s_nop 15
Lk2_fin:
    v_mov_b32 v9, v{O_+8}
    v_mov_b32 v10, v{O_+8}
    s_nop 1
    v_permlane32_swap_b32 v9, v10
    s_nop 1
    v_mul_f32 v11, 0, v{O_}
    """)
    for i in range(1, 8): A(f"v_fma_f32 v11, v{O_+i}, 0, v11")
    A(f"v_mul_f32 v14, 0, v{O_+8}")
    for i in range(9, 12): A(f"v_fma_f32 v14, v{O_+i}, 0, v14")
    A(f"""
    v_cndmask_b32 v14, 0, v14, s[28:29]
    v_add_f32 v11, v11, v14
    v_add_f32 v11, v11, v10
    v_mov_b32 v15, 0x53800000              ; 2^40
    v_cmp_nlt_f32 vcc, v11, v15            ; !(l < 2^40)
    s_cmp_eq_u32 s31, 0
    s_cbranch_scc0 Lk2_store
    {"" if nofb else "s_cbranch_vccnz Lk2_fallback"}
Lk2_store:
    v_rcp_f32 v10, v10
    s_mul_i32 s21, s15, 40960
    s_add_u32 s21, s21, {OF_OFF}
    v_mov_b32 v11, v10
    """)
    for p in range(6):
        A(f"v_pk_mul_f32 v[{O_+2*p}:{O_+2*p+1}], v[{O_+2*p}:{O_+2*p+1}], v[10:11]")
    for p in range(6):
        A(f"v_cvt_pk_bf16_f32 v{16+p}, v{O_+2*p}, v{O_+2*p+1}")
    A(f"""
    buffer_store_dwordx4 v[16:19], v152, s[8:11], s21 offen sc1
    s_mov_b64 exec, s[28:29]
    buffer_store_dwordx2 v[20:21], v153, s[8:11], s21 offen sc1
    """)
    A("s_mov_b64 exec, -1")
    A("s_waitcnt vmcnt(0)")
    A("s_barrier")
    A(f"""
    s_cmp_eq_u32 s12, 0
    s_cbranch_scc0 Lk2_nopub
    s_mul_i32 s20, s14, {FROW}
    s_lshl_b32 s21, s13, 2
    s_add_u32 s20, s20, s21
    s_add_u32 s20, s20, {OFLAG_OFF}
    """)
    if fused:
        get_tag(A, FLAG + LF_TAG, "s21", tmp=(16, 17))
        A("v_mov_b32 v16, s21")
    else:
        A("v_mov_b32 v16, 1")
    A(f"""
    v_mov_b32 v17, 0
    s_mov_b64 exec, 1
    buffer_store_dword v16, v17, s[8:11], s20 offen sc1
    s_mov_b64 exec, -1
Lk2_nopub:
    """)
    if prof:
        A("s_mov_b64 exec, -1")
        if lstamp: wl_dump(A, 150, 1, 8, 12, 21)
        prof_end(A, 1, 8, 12, tmpv=(16, 17, 18, 19, 20), extra="s90")
    if tl: tl2_record(A, 1, 8, 12)
    if mprof == 2:
        wl_stamp(A, 160, 7)
        dbg_dump_lanes(A, 160, 1, 8, 37, 12, 1)
    elif mprof:
        wl_stamp(A, 160, 7)
        wl_dump(A, 160, 1, 8, 12, 21)
        A("s_mov_b32 s90, 0")
        prof_end(A, 1, 8, 12, tmpv=(16, 17, 18, 19, 20), extra="s90")
    A("s_endpgm")

    s = X0
    A(f"""
Lk2_fallback:
    s_mov_b32 s31, 1
    v_and_b32 v9, 31, v1
    v_lshlrev_b32 v11, 3, v9
    v_add_u32 v11, 1024, v11
    v_mov_b32 v14, 0xff800000
    s_mov_b32 s18, 0
Lk2_fb1:
    s_lshr_b32 s20, s18, 3
    s_mul_i32 s20, s20, {CH}
    s_and_b32 s21, s18, 7
    s_mul_i32 s21, s21, 1280
    s_add_u32 s20, s20, s21
    s_add_u32 s20, s20, s16
    buffer_load_dwordx4 v[{KF[0]}:{KF[0]+3}], v8, s[8:11], s20 offen
    buffer_load_dwordx2 v[{KT}:{KT+1}], v11, s[8:11], s20 offen
    s_waitcnt vmcnt(0)
    {mf(s, KF[0], QM, None)}
    {mf(s+16, KF[0], QM, None)}
    s_nop 11
    {mf2b(s, KT, QT, s)}
    s_nop 15
    s_nop 7
    """)
    for i in range(0, 16, 2):
        A(f"v_max3_f32 v14, v14, v{s+i}, v{s+i+1}")
    A(f"""
    s_add_u32 s18, s18, 1
    s_cmp_lt_u32 s18, 64
    s_cbranch_scc1 Lk2_fb1
    v_mov_b32 v15, v14
    s_nop 1
    v_permlane32_swap_b32 v14, v15
    s_nop 1
    v_max_f32 v14, v14, v15
    """)
    for i in range(16): A(f"v_mov_b32 v{O_+i}, 0")
    A(f"""
    s_mov_b32 s18, 0
Lk2_fb2:
    s_lshr_b32 s20, s18, 3
    s_mul_i32 s20, s20, {CH}
    s_and_b32 s21, s18, 7
    s_mul_i32 s22, s21, {VT}
    s_add_u32 s22, s22, s20
    s_add_u32 s22, s22, s16
    s_mul_i32 s21, s21, 1280
    s_add_u32 s20, s20, s21
    s_add_u32 s20, s20, s16
    buffer_load_dwordx4 v[{KF[0]}:{KF[0]+3}], v8, s[8:11], s20 offen
    buffer_load_dwordx2 v[{KT}:{KT+1}], v11, s[8:11], s20 offen
    buffer_load_dwordx4 v[{V0}:{V0+3}], v7, s[8:11], s22 offen
    buffer_load_dwordx4 v[{V1}:{V1+3}], v7, s[8:11], s22 offen offset:{2*VH}
    s_waitcnt vmcnt(0)
    {mf(s, KF[0], QM, None)}
    {mf(s+16, KF[0], QM, None)}
    s_nop 11
    {mf2b(s, KT, QT, s)}
    s_nop 15
    s_nop 7
    """)
    for i in range(16): A(f"v_sub_f32 v{s+i}, v{s+i}, v14")
    for i in range(16): A(f"v_exp_f32 v{s+i}, v{s+i}")
    A("s_nop 0")
    for i in range(8): A(f"v_cvt_pk_bf16_f32 v{P_+i}, v{s+2*i}, v{s+2*i+1}")
    A(f"""
    s_nop 1
    {mf(O_, V0, P_, O_)}
    {mf(O_, V1, P_+4, O_)}
    s_add_u32 s18, s18, 1
    s_cmp_lt_u32 s18, 64
    s_cbranch_scc1 Lk2_fb2
    s_nop 15
    s_branch Lk2_fin
Lk2_end:
    s_endpgm
    """)
    if shadow: gen_shadow(A, (mprof if mprof else prof), shprio, SH_BASE, FLAG, NA=na, fused=fused, outf=outf, shexp=shexp)
    else: A("Lk2_shadow:\ns_barrier\ns_barrier\ns_endpgm")
    if fused: return A.text()
    return A.text(), kdesc(NAME, 168), f"; @launch kernel={NAME} grid=(256,1,1) block=(768,1,1) lds={LDS_BYTES}"
```

```python
from asm import *
from common import *

ACC_B = 8
ACC_A = 28
WF = [48, 68]
BF = 88
PH = 20480
NPH = 17

def gen_shadow(A, prof, shprio, SH_BASE, FLAG, scl=" sc1", POLL_SLEEP=4, NA=8, fused=False, outf=0, shexp=0):
    OUTF = ['', ' sc1', ' nt', ' sc0 sc1'][outf]
    A(f"""
Lk2_shadow:
    """)
    if prof and fused: stamp(A, 10)
    A(f"""
    s_setprio {shprio}
    s_load_dwordx2 s[30:31], s[0:1], 64    ; out
    s_sub_u32 s40, s12, 8                  ; w
    s_lshr_b32 s41, s13, 3
    s_lshl_b32 s44, s14, 2
    s_add_u32 s44, s44, s41                ; rbk
    s_and_b32 s43, s13, 7                  ; cg8
    s_lshl_b32 s46, s44, 2
    s_add_u32 s46, s46, s40                ; T16
    s_mul_i32 s47, s40, 5120
    s_mul_i32 s49, s43, {WF_CG}
    s_add_u32 s49, s49, s47
    s_add_u32 s49, s49, {WF_OFF}
    s_add_u32 s47, s47, {SH_BASE}
    s_mul_i32 s51, s46, {48*1024}
    s_add_u32 s51, s51, {ACT_OFF}
    s_mul_i32 s52, s46, 20480
    s_add_u32 s52, s52, {OF_OFF}
    v_lshlrev_b32 v2, 4, v1                ; lane*16
    v_add_u32 v3, {SH_BASE}, v2
    v_add_u32 v0, {SH_BASE + 3*PH}, v2
    v_and_b32 v4, 3, v1
    v_lshlrev_b32 v4, 2, v4
    v_add_u32 v4, {FLAG + 64}, v4          ; prog[lane&3]
    s_lshl_b32 s53, s40, 2
    s_add_u32 s53, s53, {FLAG + 64}
    v_mov_b32 v5, s53
    s_waitcnt lgkmcnt(0)
    """)
    srd_ws(A, 8, 4, WS_RECORDS)
    srd(A, 24, 30, OUT_BYTES)
    for i in range(40): A(f"v_mov_b32 v{ACC_B+i}, 0")
    if fused:
        A("s_cmp_eq_u32 s40, 0")
        A("s_cbranch_scc0 Lsh_wgo2")
        lds_spin(A, FLAG + LF_RD, 1, 4, tmp=(6, 7), sleep=2)
        get_tag(A, FLAG + LF_TAG, "s62", tmp=(6, 7))
        A(f"""
        s_and_b32 s54, s2, 7
        s_lshr_b32 s55, s2, 3
        s_and_b32 s56, s54, 1
        s_lshl_b32 s56, s56, 3
        s_and_b32 s57, s55, 7
        s_add_u32 s56, s56, s57                ; rb
        s_lshr_b32 s54, s54, 1
        s_lshl_b32 s54, s54, 2
        s_lshr_b32 s55, s55, 3
        s_add_u32 s54, s54, s55                ; cgp
        s_mul_i32 s56, s56, {FROW}
        s_lshl_b32 s54, s54, 2
        s_add_u32 s54, s54, s56
        s_add_u32 s54, s54, {F1B_OFF}
        v_mul_u32_u24 v6, {FREP}, v1
        v_mov_b32 v7, s62
        s_mov_b64 exec, 0xf
        buffer_store_dword v7, v6, s[8:11], s54 offen sc1
        s_mov_b64 exec, -1
        """)
        poll256(A, 8, F1W_OFF, "s62", tmp=(6, 7, 48, 49, 50, 51))
        A(f"""
        s_lshr_b32 s54, s44, 1
        s_mul_i32 s54, s54, {FROW}
        s_lshr_b32 s55, s2, 3
        s_and_b32 s55, s55, 3
        s_mul_i32 s55, s55, {FREP}
        s_add_u32 s54, s54, s55
        s_add_u32 s54, s54, {F1B_OFF}
        v_and_b32 v6, 15, v1
        v_lshlrev_b32 v6, 2, v6
        s_mov_b32 s60, 0x40000
Lsh_pb:
        buffer_load_dword v7, v6, s[8:11], s54 offen sc1
        s_waitcnt vmcnt(0)
        v_cmp_eq_u32 vcc, s62, v7
        s_cmp_eq_u64 vcc, exec
        s_cbranch_scc1 Lsh_pb_ok
        s_sleep 2
        s_sub_u32 s60, s60, 1
        s_cbranch_scc0 Lsh_pb
Lsh_pb_ok:
        """)
        lds_set(A, FLAG + LF_GO2, 1, tmp=(6, 7))
        A("s_branch Lsh_go2")
        A("Lsh_wgo2:")
        lds_spin(A, FLAG + LF_GO2, 1, 1, tmp=(6, 7), sleep=4)
        A("Lsh_go2:")
        if prof: stamp(A, 9)
    else:
        A("s_barrier")
    def issue(q):
        g = []
        if q >= NPH: return g
        sl = q % 4
        for j in range(5):
            g.append([f"s_add_u32 m0, s47, {sl*PH + j*1024}", f"s_add_u32 s55, s49, {q*PH + j*1024}",
                      f"buffer_load_dwordx4 v2, s[8:11], s55 offen lds"])
        if q < 12:
            for k in range(4):
                b = BF + 16*sl + 4*k
                g.append([f"s_add_u32 s55, s51, {(4*q + k)*1024}", f"buffer_load_dwordx4 v[{b}:{b+3}], v2, s[8:11], s55 offen"])
        return g
    def nops(q):
        return 0 if q >= NPH else (9 if q < 12 else 5)
    def emit(g):
        for grp in g:
            for l in grp: A(l)
    def sync(p, n):
        lab = A.label("shs")
        A(f"""
        s_waitcnt vmcnt({n}) lgkmcnt(0)
        v_mov_b32 v6, {p + 1}
        ds_write_b32 v5, v6
        s_mov_b32 s60, 0x40000
        {lab}:
        ds_read_b32 v7, v4
        s_waitcnt lgkmcnt(0)
        v_cmp_le_u32 vcc, {p + 1}, v7
        s_cmp_eq_u64 vcc, exec
        s_cbranch_scc1 {lab}_ok
        s_sleep 2
        s_sub_u32 s60, s60, 1
        s_cbranch_scc0 {lab}
        {lab}_ok:
        """)
    def compute(p, g):
        sl = p % 4
        acc = ACC_B if p < 12 else ACC_A
        base, so = ("v3", sl*PH) if sl < 3 else ("v0", 0)
        def rd(k, fs):
            return [f"ds_read_b128 v[{WF[fs]+4*ct}:{WF[fs]+4*ct+3}], {base} offset:{so + k*5120 + ct*1024}" for ct in range(5)]
        def bfrag(k):
            return (BF + 16*sl + 4*k) if p < 12 else (BF + 4*(4*(p - 12) + k))
        per = (len(g) + 3) // 4
        noread = shexp and p < 12
        if not noread:
            for l in rd(0, 0): A(l)
        for k in range(4):
            if noread: pass
            elif k < 3:
                for l in rd(k + 1, (k + 1) & 1): A(l)
                A("s_waitcnt lgkmcnt(5)")
            else:
                A("s_waitcnt lgkmcnt(0)")
            b = bfrag(k)
            for ct in range(5 if not (shexp == 2 and p < 12) else 3):
                A(f"v_mfma_f32_16x16x32_bf16 v[{acc+4*ct}:{acc+4*ct+3}], v[{WF[k&1]+4*ct}:{WF[k&1]+4*ct+3}], v[{b}:{b+3}], v[{acc+4*ct}:{acc+4*ct+3}]")
            emit(g[k*per:(k+1)*per])
    for q in range(3): emit(issue(q))
    for p in range(NA):
        if shexp: A(f"s_waitcnt vmcnt({nops(p + 1) + nops(p + 2)})")
        else: sync(p, nops(p + 1) + nops(p + 2))
        compute(p, issue(p + 3))
    if prof: stamp(A, 0)
    A("s_waitcnt lgkmcnt(0)")
    A("s_barrier")
    if prof: stamp(A, 1)
    A("s_setprio 3")
    for p in range(NA, 12):
        A(f"s_waitcnt vmcnt({nops(p + 1) + nops(p + 2)}) lgkmcnt(0)")
        A("s_barrier")
        compute(p, issue(p + 3))
    if prof: stamp(A, 8)
    A(f"""
    s_cmp_eq_u32 s40, 0
    s_cbranch_scc1 Lsh_poller
    """)
    A("s_sub_u32 s54, s40, 1")
    A(f"s_mul_i32 s61, s43, {WF_CG}")
    A(f"s_add_u32 s61, s61, {WF_OFF + 15*PH}")
    for j in range(14):
        lab = None
        if j == 13:
            lab = A.label("w13")
            A("s_cmp_eq_u32 s54, 0")
            A(f"s_cbranch_scc0 {lab}")
        A(f"s_add_u32 s55, s54, {3*j}")
        A("s_lshl_b32 s55, s55, 10")
        A("s_mov_b32 m0, s55")
        A("s_add_u32 s55, s55, s61")
        A(f"buffer_load_dwordx4 v2, s[8:11], s55 offen lds")
        if lab: A(f"{lab}:")
    A(f"""
    s_branch Lsh_g
Lsh_poller:
    s_mul_i32 s56, s14, {FROW}
    s_add_u32 s56, s56, {OFLAG_OFF}
    v_and_b32 v4, 31, v1
    v_lshlrev_b32 v4, 2, v4
    s_mov_b32 s60, 0x40000
Lsh_poll:
    buffer_load_dword v7, v4, s[8:11], s56 offen sc1
    s_waitcnt vmcnt(0)
    """)
    if prof:
        A("s_cmp_eq_u32 s60, 0x40000")
        A("s_cbranch_scc0 Lsh_np")
        stamp(A, 6)
        A("Lsh_np:")
    A(f"""
    v_cmp_eq_u32 vcc, {'s62' if fused else '1'}, v7
    s_cmp_eq_u64 vcc, exec
    s_cbranch_scc1 Lsh_g
    s_sleep {POLL_SLEEP}
    s_sub_u32 s60, s60, 1
    s_cbranch_scc0 Lsh_poll
Lsh_g:
    """)
    if prof:
        stamp(A, 7)
    A(f"""
    v_and_b32 v49, 15, v1
    s_lshl_b32 s45, s46, 4
    v_add_u32 v49, s45, v49
    v_lshlrev_b32 v50, 2, v49
    s_mov_b32 s58, {G_OFF}
    buffer_load_dword v6, v50, s[8:11], s58 offen
    v_lshrrev_b32 v48, 4, v1               ; lane>>4
    v_mul_u32_u24 v7, 1280, v49
    v_lshl_add_u32 v5, v48, 3, v7
    s_waitcnt vmcnt(1) lgkmcnt(0)
    s_barrier
    """)
    if prof: stamp(A, 2)
    def oload(k):
        return [f"s_add_u32 s55, s52, {k*1024}", f"buffer_load_dwordx4 v[{BF+4*k}:{BF+4*k+3}], v2, s[8:11], s55 offen{scl}"]
    PRE = 8
    for k in range(PRE):
        for l in oload(k): A(l)
    if prof: stamp(A, 3)
    def wrd(ks, fs):
        p = 12 + ks // 4; k = ks % 4
        if p < 15: base, so = "v3", (p % 4)*PH
        else: base, so = "v2", (p - 15)*PH
        return [f"ds_read_b128 v[{WF[fs]+4*ct}:{WF[fs]+4*ct+3}], {base} offset:{so + k*5120 + ct*1024}" for ct in range(5)]
    for l in wrd(0, 0): A(l)
    for ks in range(20):
        if ks + PRE < 20:
            for l in oload(ks + PRE): A(l)
        issued = min(20, ks + PRE + 1)
        if ks < 19:
            for l in wrd(ks + 1, (ks + 1) & 1): A(l)
            A(f"s_waitcnt vmcnt({issued - 1 - ks}) lgkmcnt(5)")
        else:
            A("s_waitcnt vmcnt(0) lgkmcnt(0)")
        b = BF + 4*ks
        for ct in range(5):
            A(f"v_mfma_f32_16x16x32_bf16 v[{ACC_A+4*ct}:{ACC_A+4*ct+3}], v[{WF[ks&1]+4*ct}:{WF[ks&1]+4*ct+3}], v[{b}:{b+3}], v[{ACC_A+4*ct}:{ACC_A+4*ct+3}]")
    if prof: stamp(A, 4)
    A("s_nop 7")
    A("s_mul_i32 s48, s43, 160")
    for ct in range(5):
        b = ACC_B + 4*ct; a = ACC_A + 4*ct
        for i in range(4):
            A(f"v_sub_f32 v{a+i}, v{a+i}, v{b+i}")
        for i in range(4):
            A(f"v_fma_f32 v{a+i}, v6, v{a+i}, v{b+i}")
        A(f"v_cvt_pk_bf16_f32 v{48+2*ct}, v{a}, v{a+1}")
        A(f"v_cvt_pk_bf16_f32 v{49+2*ct}, v{a+2}, v{a+3}")
        A(f"buffer_store_dwordx2 v[{48+2*ct}:{49+2*ct}], v5, s[24:27], s48 offen offset:{ct*32}{OUTF}")
    if prof == 2:
        stamp(A, 5)
        A("s_memrealtime s[88:89]")
        A("s_waitcnt lgkmcnt(0)")
        A("s_sub_u32 s88, s88, s94")
        for i, src in enumerate(("s80", "s79", "s70", "s71", "s72", "s75", "s88")):
            A(f"v_writelane_b32 v48, {src}, {i}")
        dbg_dump_lanes(A, 48, 9, 7, 37, 12, 8)
    elif prof:
        stamp(A, 5)
        dump_stamps(A, 1, 8, 12, 14, tmp=50)
        A("s_mov_b64 exec, -1")
        A("s_mov_b32 s90, 0")
        prof_end(A, 1, 8, 12, tmpv=(16, 17, 18, 19, 20), extra="s90")
    A("s_endpgm")
```

```python
from asm import *
from common import *
from k2 import vslot

NAME = "k1_kernel"
SLOT = 45056
XO, WQO, W1O = 0, 16384, 32768
GATE_LDS = 3 * SLOT
UNIT_LDS = 3 * SLOT + 1536
LDS_BYTES = UNIT_LDS + 3*4096


def spf_setup(A):
    A(f"""
    s_and_b32 s41, s2, 7
    s_and_b32 s43, s41, 1                  ; rh
    s_lshr_b32 s44, s41, 1                 ; cq
    s_lshr_b32 s45, s2, 3                  ; i
    s_lshl_b32 s47, s43, 10
    s_lshl_b32 s48, s45, 5
    s_add_u32 s47, s47, s48
    s_mul_i32 s47, s47, 1280               ; (rh*1024 + 32i)*1280
    s_add_u32 s56, s4, s47
    s_addc_u32 s57, s5, 0
    s_lshl_b32 s47, s45, 1
    s_mul_i32 s48, s47, 3840
    s_lshl_b32 s49, s44, 10
    s_add_u32 s48, s48, s49                ; 2i*3840 + cq*1024
    s_add_u32 s58, s6, s48
    s_addc_u32 s59, s7, 0
    s_cmp_eq_u32 s44, 3
    s_cselect_b32 s49, 256, 0
    s_sub_u32 s48, s48, s49
    s_add_u32 s78, s6, s48
    s_addc_u32 s79, s7, 0
    s_mul_i32 s48, s47, 3072
    s_mul_i32 s49, s44, 768
    s_add_u32 s48, s48, s49
    s_add_u32 s86, s8, s48
    s_addc_u32 s87, s9, 0
    """)
def spf_lines(h):
    x = [("s[56:57]", j*1280, 128) for j in range(32)]
    wq = [("s[58:59]" if l < 6 else "s[78:79]", r*3840 + l*128, 64*3840) for r in range(2) for l in range(8)]
    w1 = [("s[86:87]", r*3072 + l*128, 64*3072) for r in range(2) for l in range(6)]
    return (x + wq + w1)[15*h:15*h + 15]
def spf_issue(A, h, st, n):
    for k, (b, off, step) in enumerate(spf_lines(h)[:n]):
        o = off + st*step
        if o < (1 << 20):
            A(f"s_load_dword s{68 + (k % 7)}, {b}, {o:#x}")
        else:
            A(f"s_mov_b32 s49, {o}")
            A(f"s_load_dword s{68 + (k % 7)}, {b}, s49")

def gen_helpers(A, FL, pf, mprof, hprio=0, pfa=0, spf=0, cpf=1, KN=None):
    UL = UNIT_LDS
    spf_n = spf
    def spf(st, first=False):
        if not spf_n or st > 9: return
        lab = A.label("spf")
        A(f"s_cmp_eq_u32 s32, 9")
        A(f"s_cbranch_scc0 {lab}_2")
        spf_issue(A, 1, st, spf_n)
        A(f"s_branch {lab}")
        A(f"{lab}_2:")
        A(f"s_cmp_eq_u32 s32, 10")
        A(f"s_cbranch_scc0 {lab}_3")
        spf_issue(A, 2, st, spf_n)
        A(f"s_branch {lab}")
        A(f"{lab}_3:")
        spf_issue(A, 3, st, spf_n)
        A(f"{lab}:")
    A(f"""
    s_cmp_eq_u32 s32, 8
    s_cbranch_scc1 Lk1_H0
    s_sub_u32 s40, s32, 10
    s_cmp_eq_u32 s32, 9
    s_cselect_b32 s40, 2, s40
    """)
    if cpf:
        A(f"""
        s_cmp_eq_u32 s32, 11
        s_cbranch_scc0 Lk1_nocpf
        s_getpc_b64 s[50:51]
Lk1_pc:
        s_sub_u32 s50, s50, Lk1_pc - {KN}
        s_subb_u32 s51, s51, 0
        s_lshr_b32 s52, s2, 3
        s_mul_i32 s52, s52, (Lcode_end - {KN} + 4095) / 4096
        v_add_u32 v20, s52, v2
        v_min_u32 v20, (Lcode_end - {KN} - 4) / 128, v20
        v_lshlrev_b32 v20, 7, v20
        v_cmp_gt_u32 vcc, (Lcode_end - {KN} + 4095) / 4096, v2
        s_and_saveexec_b64 s[52:53], vcc
        global_load_dword v21, v20, s[50:51]
        s_mov_b64 exec, s[52:53]
Lk1_nocpf:
        """)
    A(f"""
    s_cmp_eq_u32 s32, 10
    s_cbranch_scc0 Lk1_Hn2
    v_lshlrev_b32 v3, 2, v2
    v_add_u32 v3, {FL}, v3
    v_mov_b32 v4, 0
    ds_write_b32 v3, v4
    s_waitcnt lgkmcnt(0)
Lk1_Hn2:
    s_cmp_eq_u32 s32, 9
    s_cbranch_scc0 Lk1_Hn1
    s_load_dwordx2 s[50:51], s[0:1], 72    ; d_debug
    s_waitcnt lgkmcnt(0)
    """)
    srd(A, 52, 50, 256)
    A(f"""
    s_cmp_eq_u32 s2, 0
    s_cbranch_scc0 Lk1_Hn1
    s_memrealtime s[50:51]
    s_waitcnt lgkmcnt(0)
    s_or_b32 s50, s50, 1
    v_mov_b32 v3, s50
    v_mov_b32 v4, 0
    s_mov_b64 exec, 1
    buffer_store_dword v3, v4, s[52:55], 0 offen sc1
    s_mov_b64 exec, -1
Lk1_Hn1:
    """)
    if spf_n: spf_setup(A)
    A(f"""
    ; unit: idx = wg + 256u (< 680): ksg = idx/10, blk = idx%10
    s_lshl_b32 s41, s40, 8
    s_add_u32 s41, s41, s2
    s_mul_i32 s45, s41, 6554
    s_lshr_b32 s45, s45, 16                ; ksg
    s_mul_i32 s47, s45, 10
    s_sub_u32 s47, s41, s47                ; blk
    s_cmp_lt_u32 s45, 48
    s_cselect_b32 s96, s80, s82
    s_cselect_b32 s97, s81, s83
    s_mov_b32 s98, {W2_BYTES}
    s_cselect_b32 s98, s98, {WO_BYTES}
    s_cselect_b32 s100, 0, 48
    s_and_b32 s97, s97, 0xffff
    s_mov_b32 s99, 0x00020000
    s_sub_u32 s100, s45, s100
    s_mul_i32 s100, s100, {32*1280}
    s_lshl_b32 s101, s47, 7
    s_add_u32 s100, s100, s101
    s_lshl_b32 s77, s47, 2                 ; c0
    s_mul_i32 s101, s45, 5120
    s_lshl_b32 s75, s40, 12
    s_add_u32 s75, s75, {UL}
    s_cmp_lt_u32 s41, 680
    s_cselect_b32 s76, 1, 0
    v_lshrrev_b32 v8, 3, v2
    v_mul_u32_u24 v8, 1280, v8
    v_and_b32 v3, 7, v2
    v_lshl_add_u32 v8, v3, 4, v8
    v_lshrrev_b32 v9, 4, v2
    v_bfe_u32 v3, v2, 2, 2
    v_lshl_add_u32 v9, v9, 3, v3
    v_lshlrev_b32 v9, 7, v9
    v_and_b32 v3, 3, v2
    v_lshl_add_u32 v9, v3, 3, v9
    v_add_u32 v9, s75, v9
    v_lshlrev_b32 v10, 4, v2
    s_barrier                              ; Bs0
    """)
    spf(2); spf(3)
    A("s_barrier")
    spf(4)
    A(f"""
    s_cmp_eq_u32 s76, 1
    s_cbranch_scc0 Lk1_nous
    """)
    for j in range(4):
        A(f"s_add_u32 m0, s75, {j*1024}")
        A(f"s_add_u32 s48, s100, {j*8*1280}")
        A(f"buffer_load_dwordx4 v8, s[96:99], s48 offen lds")
    A(f"""
Lk1_nous:
    s_barrier                              ; B_1
    """)
    spf(5)
    A("s_barrier")
    spf(6)
    A("s_barrier")
    spf(7)
    A(f"""
    s_cmp_eq_u32 s32, 9
    s_cbranch_scc0 Lk1_notag
    v_mov_b32 v4, 0
    s_mov_b32 s50, 0x40000
Lk1_tagpoll:
    buffer_load_dword v3, v4, s[52:55], 0 offen sc1
    s_waitcnt vmcnt(0)
    v_readfirstlane_b32 s51, v3
    s_nop 3
    s_cmp_lg_u32 s51, 0
    s_cbranch_scc1 Lk1_gottag
    s_sleep 4
    s_sub_u32 s50, s50, 1
    s_cbranch_scc0 Lk1_tagpoll
Lk1_gottag:
    v_mov_b32 v4, {FL + LF_TAG}
    ds_write_b32 v4, v3
    s_waitcnt lgkmcnt(0)
Lk1_notag:
    s_barrier                              ; B_4
    """)
    spf(8)
    A("s_barrier")
    spf(9)
    A(f"""
    s_barrier                              ; B_6
    s_barrier                              ; B_7
    s_cmp_eq_u32 s76, 1
    s_cbranch_scc0 Lk1_nouf
    s_waitcnt vmcnt(0)
    """)
    for cc in range(4):
        A(f"ds_read_b64_tr_b16 v[{20+4*cc}:{21+4*cc}], v9 offset:{cc*32}")
        A(f"ds_read_b64_tr_b16 v[{22+4*cc}:{23+4*cc}], v9 offset:{cc*32 + 512}")
    A("s_waitcnt lgkmcnt(0)")
    for cc in range(4):
        A(f"""
        s_add_u32 s41, s77, {cc}               ; c
        s_mul_i32 s45, s41, 205
        s_lshr_b32 s45, s45, 10                ; cg8 = c/5
        s_mul_i32 s47, s45, 5
        s_sub_u32 s47, s41, s47                ; ct
        s_mul_i32 s45, s45, {WF_CG}
        s_lshl_b32 s47, s47, 10
        s_add_u32 s45, s45, s47
        s_add_u32 s45, s45, s101
        s_add_u32 s45, s45, {WF_OFF}
        buffer_store_dwordx4 v[{20+4*cc}:{23+4*cc}], v10, s[24:27], s45 offen sc1
        """)
    A(f"""
Lk1_nouf:
    s_barrier                              ; B_8
    s_barrier                              ; B_9
    s_barrier                              ; B_10
    s_waitcnt vmcnt(0)
    s_lshl_b32 s41, s40, 2
    s_add_u32 s41, s41, {FL + LF_HD}
    v_mov_b32 v4, s41
    v_mov_b32 v5, 1
    ds_write_b32 v4, v5
    s_cmp_eq_u32 s32, 11
    s_cbranch_scc0 Lattn_entry
    """)
    lds_spin(A, FL + LF_HD, 1, 4)
    get_tag(A, FL + LF_TAG, "s50")
    publish256(A, 24, F1W_OFF, "s50")
    A("s_branch Lattn_entry")
    A(f"""
Lk1_H0:
    s_setprio {hprio}
    s_cmp_lt_u32 s35, 10
    s_cbranch_scc1 Lk1_noconst
    s_cmp_eq_u32 s35, 15
    s_cbranch_scc1 Lk1_noconst
    s_lshl_b32 s41, s46, 7
    s_add_u32 s42, s41, 19
    s_mul_i32 s42, s42, 3277
    s_lshr_b32 s42, s42, 16                ; h0
    s_add_u32 s43, s41, 127
    s_mul_i32 s43, s43, 3277
    s_lshr_b32 s43, s43, 16                ; h1
    s_min_u32 s43, s43, 31
    v_lshrrev_b32 v11, 5, v2
    v_bfe_u32 v12, v2, 3, 2
    s_lshl_b32 s44, s34, 2
    v_add_u32 v12, s44, v12                ; T
    v_lshrrev_b32 v13, 3, v12
    v_mul_u32_u24 v13, {CH}, v13
    v_and_b32 v12, 7, v12
    v_mul_u32_u24 v12, {VT}, v12
    v_add_u32 v12, v12, v13
    v_bfe_u32 v13, v2, 1, 2
    v_mul_u32_u24 v13, {VH}, v13
    v_add_u32 v12, v12, v13
    v_and_b32 v13, 1, v2
    v_mul_u32_u24 v14, 112, v13
    v_add_u32 v12, v12, v14
    v_add_u32 v12, {KV_OFF + VPART + 128}, v12
    v_cmp_eq_u32 vcc, 0, v13
    v_mov_b32 v14, 0x3f803f80
    s_mov_b32 s45, {HSK}
    v_cndmask_b32 v20, 0, v14, vcc
    v_mov_b32 v21, v20
    v_mov_b32 v22, v20
    v_mov_b32 v23, v20
    """)
    for t in range(4):
        lab = A.label("cv")
        A(f"""
        s_add_u32 s47, s42, {2*t}
        v_add_u32 v15, s47, v11                ; head
        v_cmp_ge_u32 vcc, s43, v15
        v_mul_lo_u32 v15, v15, s45
        v_add_u32 v15, v15, v12
        s_and_saveexec_b64 s[50:51], vcc
        s_cbranch_execz {lab}
        buffer_store_dwordx4 v[20:23], v15, s[24:27], 0 offen sc1
        {lab}:
        s_mov_b64 exec, s[50:51]
        """)
    A(f"""
Lk1_noconst:
    """)
    if spf_n: spf_setup(A)
    A(f"""
    s_and_b32 s41, s2, 7
    s_and_b32 s43, s41, 1                  ; rh
    s_lshr_b32 s44, s41, 1                 ; cq
    s_lshr_b32 s45, s2, 3                  ; i
    v_mov_b32 v13, 0x7ffffff0
    s_lshl_b32 s46, s43, 10
    s_lshl_b32 s47, s45, 5
    s_add_u32 s46, s46, s47
    v_add_u32 v3, s46, v2
    v_mul_u32_u24 v3, 1280, v3
    v_cmp_gt_u32 vcc, 32, v2
    s_nop 1
    v_cndmask_b32 v4, v13, v3, vcc
    v_lshrrev_b32 v3, 3, v2
    s_lshl_b32 s47, s45, 1
    v_add_u32 v3, s47, v3
    v_mul_u32_u24 v3, 3840, v3
    v_and_b32 v5, 7, v2
    v_lshlrev_b32 v5, 7, v5
    s_lshl_b32 s48, s44, 10
    v_add_u32 v5, s48, v5
    v_cmp_gt_u32 vcc, 3840, v5
    v_add_u32 v5, v5, v3
    v_cmp_gt_u32 s[50:51], 16, v2
    s_and_b64 vcc, vcc, s[50:51]
    s_nop 1
    v_cndmask_b32 v5, v13, v5, vcc
    v_cmp_lt_u32 vcc, 5, v2
    v_mov_b32 v6, 0
    v_mov_b32 v7, 1
    v_cndmask_b32 v3, v6, v7, vcc
    v_mul_u32_u24 v6, 6, v3
    v_sub_u32 v6, v2, v6
    v_lshlrev_b32 v6, 7, v6
    v_add_u32 v3, s47, v3
    v_mul_u32_u24 v3, 3072, v3
    v_add_u32 v6, v6, v3
    s_mul_i32 s48, s44, 768
    v_add_u32 v6, s48, v6
    v_cmp_gt_u32 vcc, 12, v2
    s_nop 1
    v_cndmask_b32 v6, v13, v6, vcc
    s_barrier                              ; Bs0
    """)
    def PF(st):
        A(f"s_mov_b32 s46, {st*128}")
        A(f"buffer_load_dword v16, v4, s[16:19], s46 offen")
        A(f"s_mov_b32 s47, {st*64*3840}")
        A(f"buffer_load_dword v17, v5, s[60:63], s47 offen")
        A(f"s_mov_b32 s48, {st*64*3072}")
        A(f"buffer_load_dword v18, v6, s[64:67], s48 offen")
    def PFW1(st):
        A(f"s_mov_b32 s48, {st*64*3072}")
        A(f"buffer_load_dword v18, v6, s[64:67], s48 offen")
    if pf == 1:
        for st in range(2, 4 + pfa): PF(st)
    if spf_n:
        spf_issue(A, 0, 2, spf_n); spf_issue(A, 0, 3, spf_n)
    A("s_barrier")
    for k in range(10):
        if pf == 1 and 4 + pfa + k <= 9: PF(4 + pfa + k)
        if pf == 3: PFW1(k)
        if spf_n and 4 + k <= 9: spf_issue(A, 0, 4 + k, spf_n)
        A("s_barrier")
    A("s_waitcnt vmcnt(0)")
    if mprof: wl_stamp(A, 160, 0)
    lds_set(A, FL + LF_HD + 12, 1)
    A("s_branch Lattn_entry")

def gen_k1(prof=False, mode=0, pf=2, rot=1, tlb=1, tl=0, sc=0, cpf=1, wfsc=1, fused=None, mprof=0, rtrig=2, cpf2=0, dbg2=0, hprio=0, pfa=0, v5=0, spf=0, rprio=0, pprio=0):
    global SLOT, GATE_LDS, UNIT_LDS
    if fused and v5:
        SLOT = 32768; GATE_LDS = 3*SLOT; UNIT_LDS = GATE_LDS + 1536
    else:
        v5 = 0
    SC = {0: '', 1: ' sc1', 2: ' nt', 3: ' sc0 sc1'}[sc & 3]
    SCQ = SC if sc & 4 else ''
    SCW = ' sc1' if wfsc else ''
    KN = fused if fused else NAME
    FL = MEGA_FLAG
    if fused:
        SC = SCQ = SCW = ' sc1'
        tlb = 0
    ROT = rot
    A0 = Asm()
    class F:
        def __init__(s): s.inloop = False
        def __call__(s, l):
            for x in l.strip("\n").split("\n"):
                xs = x.strip()
                if s.inloop:
                    if mode == 1 and xs.startswith("buffer_load") : continue
                    if mode == 2 and (xs.startswith("v_mfma") or xs.startswith("ds_read")): continue
                    if mode == 3 and xs.startswith("v_mfma"): continue
                    if mode in (4, 6) and xs.startswith("s_barrier"): continue
                    if mode == 6 and xs.startswith("buffer_load"): continue
                    if mode == 5 and xs.startswith("ds_read"): continue
                    if mode == 7 and (xs.startswith("buffer_load") or xs.startswith("ds_read")): continue
                    if mode == 8 and (xs.startswith("buffer_load") or xs.startswith("ds_read") or xs.startswith("s_barrier")): continue
                    if mode == 10 and (xs.startswith("buffer_load") or xs.startswith("ds_read") or xs.startswith("s_barrier") or xs.startswith("s_add_u32 m0") or xs.startswith("s_add_u32 s48") or xs.startswith("s_nop 0") or xs.startswith("v_add_u32")): continue
                if xs.endswith("_loop:"): s.inloop = True
                if xs.startswith("s_cbranch_scc1") and xs.endswith("g_loop"): s.inloop = False
                A0(x)
        def label(s, b): return A0.label(b)
        def text(s): return A0.text()
    A = F()
    A(khead(KN))
    A(f"""
    s_cmp_ge_u32 s2, 256
    s_cbranch_scc1 Lk1_exit
    """)
    if prof or mprof: prof_start(A)
    if tl: tl_start(A, 0)
    if cpf and not fused:
        A(f"""
        s_getpc_b64 s[80:81]
Lk1_pc:
        s_sub_u32 s80, s80, Lk1_pc - {KN}
        s_subb_u32 s81, s81, 0
        s_lshr_b32 s82, s2, 3
        s_mul_i32 s82, s82, (Lcode_end - {KN} + 4095) / 4096
        v_and_b32 v61, 63, v0
        v_add_u32 v61, s82, v61
        v_min_u32 v61, (Lcode_end - {KN} - 4) / 128, v61
        v_lshlrev_b32 v61, 7, v61
        v_lshrrev_b32 v60, 6, v0
        v_and_b32 v59, 63, v0
        v_cmp_gt_u32 vcc, (Lcode_end - {KN} + 4095) / 4096, v59
        v_cmp_eq_u32 s[82:83], 7, v60
        s_and_b64 vcc, vcc, s[82:83]
        s_and_saveexec_b64 s[82:83], vcc
        s_cbranch_execz Lk1_nocpf
        global_load_dword v61, v61, s[80:81]
Lk1_nocpf:
        s_mov_b64 exec, s[82:83]
        """)
    A(f"""
    s_load_dwordx2 s[80:81], s[0:1], 48    ; w2
    s_load_dwordx2 s[82:83], s[0:1], 16    ; wo
    s_load_dwordx4 s[4:7], s[0:1], 0       ; A_x, wqkv
    s_load_dwordx4 s[8:11], s[0:1], 32     ; w1, b1
    s_load_dwordx2 s[12:13], s[0:1], 56    ; gate_w
    s_load_dwordx2 s[14:15], s[0:1], 80    ; ws
    v_lshrrev_b32 v1, 6, v0
    v_and_b32 v2, 63, v0                   ; lane
    s_and_b32 s41, s2, 7                   ; xcd
    v_readfirstlane_b32 s32, v1
    """)
    if fused:
        A("""
        s_nop 3
        s_mov_b32 s85, s32
        s_sub_u32 s42, s32, 4
        s_add_u32 s43, s32, 4
        s_cmp_ge_u32 s32, 8
        s_cselect_b32 s43, s42, s43
        s_cmp_lt_u32 s32, 4
        s_cselect_b32 s32, s32, s43
        """)
    A(f"""
    s_lshr_b32 s42, s2, 3                  ; i
    s_and_b32 s43, s41, 1
    s_lshl_b32 s43, s43, 3
    s_and_b32 s44, s42, 7
    s_add_u32 s34, s43, s44                ; rb
    s_lshr_b32 s43, s41, 1
    s_lshl_b32 s43, s43, 2
    s_lshr_b32 s44, s42, 3
    s_add_u32 s35, s43, s44                ; cgp
    s_mul_i32 s45, s35, 52
    s_lshr_b32 s45, s45, 8                 ; cgp/5
    s_add_u32 s33, s45, 1
    s_mul_i32 s45, s45, 5
    s_sub_u32 s46, s35, s45                ; cbl (0..4)
    s_cmp_eq_u32 s35, 15
    s_cselect_b32 s33, 0, s33
    v_lshrrev_b32 v3, 3, v2
    v_mul_u32_u24 v3, 1280, v3
    v_and_b32 v13, 7, v2
    v_lshrrev_b32 v14, 4, v2               ; lane>>4
    v_xor_b32 v15, v13, v14
    v_lshl_add_u32 v10, v15, 4, v3         ; even u
    v_xor_b32 v15, 4, v15
    v_lshl_add_u32 v11, v15, 4, v3         ; odd u
    s_lshl_b32 s37, s34, 7                 ; rb*128
    """)
    if v5:
        A("""
        s_sub_u32 s41, s32, 4
        s_and_b32 s41, s41, 3
        s_lshl_b32 s42, s41, 12
        s_lshl_b32 s41, s41, 5
        """)
    else:
        A("""
        s_lshl_b32 s41, s32, 4                 ; w*16 rows
        s_lshl_b32 s42, s32, 11
        """)
    A(f"""
    s_add_u32 s37, s37, s41
    s_mul_i32 s37, s37, 1280
    s_lshr_b32 s57, s2, 3                  ; i
    s_and_b32 s78, s57, 7
    s_lshr_b32 s57, s57, 3
    s_lshl_b32 s57, s57, 1
    s_add_u32 s78, s78, s57
    s_mul_i32 s78, s78, {1 if ROT else 0}
    s_mov_b32 s56, 0
    s_mov_b32 s69, 0
    s_mov_b32 s58, s37
    s_mov_b32 s79, 0
    """)
    if ROT == 2:
        A("""
        s_cmp_ge_u32 s78, 10
        s_cselect_b32 s57, 10, 0
        s_sub_u32 s78, s78, s57
        s_mov_b32 s79, s78
        s_mov_b32 s69, s78
        s_lshl_b32 s57, s79, 7
        s_add_u32 s37, s58, s57
        """)
    A(f"""
    s_waitcnt lgkmcnt(0)
    """)
    if prof:
        A("s_memtime s[88:89]")
        A("s_waitcnt lgkmcnt(0)")
        A("s_sub_u32 s87, s88, s92")
    srd(A, 16, 4, X_BYTES)
    srd_ws(A, 24, 14, WS_RECORDS)
    srd(A, 60, 6, WQKV_BYTES)
    srd(A, 64, 8, W1_BYTES)
    if not fused:
        A(f"""
        s_cmp_eq_u32 s32, 7
        s_cbranch_scc0 Lk1_noflag
        s_lshl_b32 s41, s2, 2
        s_add_u32 s41, s41, {OFLAG_OFF}
        v_mov_b32 v3, 0
        s_mov_b64 exec, 1
        buffer_store_dword v3, v3, s[24:27], s41 offen
        s_mov_b64 exec, -1
    Lk1_noflag:
        """)
    if tlb:
        A("s_cmp_eq_u32 s32, 0")
        A("s_cbranch_scc0 Lk1_notouch")
        srd(A, 28, 10, B1_BYTES)
        A("v_mov_b32 v3, 0")
        MB2 = 2 << 20
        touch(A, [(16, "s37"), (60, 0), (60, MB2), (64, 0), (28, 0)] + [(24, k*MB2) for k in range(7)] + [(24, G_OFF)], 3, 1)
        A("Lk1_notouch:")
    A(f"""
    s_cmp_ge_u32 s32, 8
    s_cbranch_scc1 Lk1_H
    s_cmp_ge_u32 s32, 4
    s_cbranch_scc1 Lk1_R
    """)

    def adv_group(ws):
        if ROT == 2:
            g = ["s_add_u32 s79, s79, 1", "s_cmp_eq_u32 s79, 10", "s_cselect_b32 s79, 0, s79", "s_lshl_b32 s57, s79, 7", "s_add_u32 s37, s58, s57"]
        else:
            g = ["s_add_u32 s56, s56, 1", "s_add_u32 s57, s56, s78", "s_sub_u32 s57, s57, 2", "s_and_b32 s57, s57, 7", "s_add_u32 s57, s57, 2",
                 "s_cmp_lt_u32 s56, 2", "s_cselect_b32 s79, s56, s57", "s_lshl_b32 s57, s79, 7", "s_add_u32 s37, s58, s57"]
        if ws:
            g += [f"s_mul_i32 s57, s79, {ws}", "s_add_u32 s38, s59, s57"]
        return g

    def x_dma(slot_sgpr):
        g = []
        for j in range(4 if v5 else 2):
            g.append([f"s_add_u32 m0, {slot_sgpr}, {j*1024}", f"s_add_u32 s48, s37, {j*10240}",
                      f"buffer_load_dwordx4 v{10 + (j & 1)}, s[16:19], s48 offen lds"])
        return g

    def xfrag_addr(rowbase_expr_sgpr):
        A(f"""
        v_and_b32 v3, 31, v2                   ; token
        v_lshrrev_b32 v13, 5, v2               ; hf
        v_bfe_u32 v14, v2, 1, 3
        v_xor_b32 v14, v13, v14
        v_lshlrev_b32 v14, 4, v14
        v_lshl_add_u32 v14, v3, 7, v14
        v_add_u32 v56, {rowbase_expr_sgpr}, v14
        v_xor_b32 v57, 32, v56
        v_xor_b32 v58, 64, v56
        v_xor_b32 v59, 96, v56
        """)

    def set_slot(nw, sgpr):
        out = [f"v_add_u32 v{4+k}, {sgpr}, v{56+k}" for k in range(4)]
        out += [f"v_add_u32 v{8+k}, {sgpr}, v{60+k}" for k in range(nw)]
        return out

    def interleave(ms, others):
        n = len(ms)
        per = (len(others) + n - 1) // n
        k = 0
        for i, m in enumerate(ms):
            A(m)
            for grp in others[k:k+per]:
                for l in grp: A(l)
            k += per

    def kstep(ms, rd, extra, wait=True, skip_last=False):
        if wait: A("s_waitcnt lgkmcnt(0)")
        n = len(ms) - (1 if skip_last else 0)
        A(ms[0])
        for grp in rd:
            for l in grp: A(l)
        slots = max(1, n - 1)
        per = (len(extra) + slots - 1) // slots if extra else 0
        k = 0
        for i in range(1, n):
            A(ms[i])
            for grp in extra[k:k+per]:
                for l in grp: A(l)
            k += per
        for grp in extra[k:]:
            for l in grp: A(l)

    def loop(tag, nown, reads, mfmas, dma_groups, nw, unit=False):
        A(f"s_waitcnt vmcnt({nown})")
        A("s_barrier")
        if dbg2 and nw == 2: wl_stamp(A, 160, 4)
        if prof:
            A("s_memtime s[90:91]")
            A("s_waitcnt lgkmcnt(0)")
            A("s_sub_u32 s90, s90, s92")
        for l in set_slot(nw, "0"): A(l)
        for l in reads(0, 0): A(l)
        A(f"s_mov_b32 s50, {SLOT}")
        A.inloop = True
        g = dma_groups()
        adv = g[-1]; g = g[:-1]
        parts = [[], [], [], []]
        for i, grp in enumerate(g): parts[i * 4 // len(g)].append(grp)
        R = lambda ks, fs: [[l] for l in reads(ks, fs)]
        rot = [["s_mov_b32 s51, s50", f"s_add_u32 s50, s50, {SLOT}", f"s_cmp_ge_u32 s50, {3*SLOT}", "s_cselect_b32 s50, 0, s50",
                "s_add_u32 s52, s51, s42", "s_add_u32 s53, s51, s43"]]
        A(f"s_add_u32 s52, s42, {2*SLOT}")
        A(f"s_add_u32 s53, s43, {2*SLOT}")
        kstep(mfmas(0), R(1, 1), parts[0] + parts[1])
        kstep(mfmas(1), R(2, 0), parts[2])
        kstep(mfmas(0), R(3, 1), parts[3] + [adv] + [["s_mov_b32 s52, s42", "s_mov_b32 s53, s43", "s_mov_b32 s40, 0"]], skip_last=True)
        def section(dma, vm, final=False, ug=None):
            A(mfmas(0)[-1])
            A(f"s_waitcnt vmcnt({vm}) lgkmcnt(0)")
            A("s_barrier")
            if final:
                for m in mfmas(1): A(m)
                return
            rd = R(0, 0)
            rd[0] = set_slot(nw, "s50") + rd[0]
            P_ = parts if dma else [[], [], [], []]
            kstep(mfmas(1), rd, P_[0], wait=False)
            kstep(mfmas(0), R(1, 1), P_[1] + (ug or []))
            kstep(mfmas(1), R(2, 0), P_[2])
            tail = (P_[3] + [adv] if dma else []) + rot
            if dma: tail = tail + [["s_add_u32 s40, s40, 1", "s_cmp_lt_u32 s40, 7"]]
            kstep(mfmas(0), R(3, 1), tail, skip_last=True)
        A(f"L{tag}_loop:")
        section(True, nown)
        A(f"s_cbranch_scc1 L{tag}_loop")
        ug = []
        if unit:
            for j in range(4):
                ug.append([f"s_add_u32 m0, s76, {j*1024}", f"s_add_u32 s48, s100, {j*8*1280}", f"buffer_load_dwordx4 v62, s[96:99], s48 offen lds"])
            A("s_lshl_b32 s76, s32, 12")
            A("s_add_u32 s76, s76, s51")
        section(False, nown, ug=ug)
        section(False, 4 if unit else 0)
        section(False, 4 if unit else 0, final=True)
        A.inloop = False
        A("s_nop 15")
        if prof:
            A("s_memtime s[88:89]")
            A("s_waitcnt lgkmcnt(0)")
            A("s_sub_u32 s91, s88, s92")

    A(f"""
    s_cmp_eq_u32 s33, 0
    s_cbranch_scc1 Lk1_gate
    """)
    if pprio: A(f"s_setprio {pprio}")
    srd(A, 20, 6, WQKV_BYTES)
    A(f"""
    s_mov_b32 s36, 3840
    v_and_b32 v13, 15, v2
    v_lshlrev_b32 v15, 2, v14
    v_xor_b32 v13, v13, v15
    v_mul_u32_u24 v15, 3840, v14
    v_lshl_add_u32 v12, v13, 4, v15
    s_mul_i32 s38, s32, {16*3840}          ; w*16 k-rows
    s_lshl_b32 s41, s35, 8                 ; cgp*128*2
    s_add_u32 s59, s38, s41
    s_mul_i32 s57, s79, {64*3840}
    s_add_u32 s38, s59, s57
    s_lshl_b32 s43, s32, 12
    s_add_u32 s43, s43, {WQO}
    """)
    def p_dma():
        g = [] if v5 else x_dma("s52")
        for j in range(4):
            g.append([f"s_add_u32 m0, s53, {j*1024}",
                      (f"s_add_u32 s48, s38, {j*4*3840}"),
                      f"buffer_load_dwordx4 v12, s[20:23], s48 offen lds"])
        g.append(adv_group(64*3840))
        return g
    def stage_issue(st, dmaf):
        A(f"s_add_u32 s52, s42, {st*SLOT}")
        A(f"s_add_u32 s53, s43, {st*SLOT}")
        for grp in dmaf():
            for l in grp: A(l)
    if prof: wl_stamp(A, 63, 0)
    stage_issue(0, p_dma)
    if dbg2: wl_stamp(A, 160, 2)
    if prof: wl_stamp(A, 63, 1)
    A("s_barrier")
    if dbg2: wl_stamp(A, 160, 3)
    if prof: wl_stamp(A, 63, 2)
    LATE_P = True
    A("s_lshr_b32 s41, s32, 1")
    A("s_lshl_b32 s41, s41, 13")
    xfrag_addr("s41")
    A(f"""
    v_bfe_u32 v14, v2, 2, 2                ; r
    v_lshl_add_u32 v15, v13, 3, v14
    v_lshlrev_b32 v15, 8, v15
    v_bfe_u32 v3, v2, 4, 1
    v_lshl_add_u32 v15, v3, 5, v15
    v_and_b32 v3, 3, v2
    v_lshl_add_u32 v15, v3, 3, v15
    v_add_u32 v15, {WQO}, v15
    s_and_b32 s41, s32, 1
    s_lshl_b32 s41, s41, 1
    v_xor_b32 v3, s41, v14                 ; ct ^ r
    v_lshl_add_u32 v60, v3, 6, v15
    v_xor_b32 v3, 1, v3
    v_lshl_add_u32 v61, v3, 6, v15
    """)
    if prof: wl_stamp(A, 63, 3)
    stage_issue(1, p_dma)
    if prof: wl_stamp(A, 63, 4)
    for i in range(64): A(f"v_mov_b32 v{64+i}, 0")
    def p_reads(ks, fs):
        b = 16 + 16*fs
        return [
            f"ds_read_b128 v[{b}:{b+3}], v{4+ks}",
            f"ds_read_b64_tr_b16 v[{b+8}:{b+9}], v8 offset:{ks*4096}",
            f"ds_read_b64_tr_b16 v[{b+10}:{b+11}], v8 offset:{ks*4096 + 1024}",
            f"ds_read_b128 v[{b+4}:{b+7}], v{4+ks} offset:4096",
            f"ds_read_b64_tr_b16 v[{b+12}:{b+13}], v9 offset:{ks*4096}",
            f"ds_read_b64_tr_b16 v[{b+14}:{b+15}], v9 offset:{ks*4096 + 1024}",
        ]
    def p_mfmas(normal):
        def f(fs):
            b = 16 + 16*fs
            out = []
            for rt in range(2):
                for ct in range(2):
                    d = 64 + 16*(2*rt + ct)
                    x = f"v[{b+4*rt}:{b+4*rt+3}]"; w = f"v[{b+8+4*ct}:{b+8+4*ct+3}]"
                    a_, b_ = (x, w) if normal else (w, x)
                    out.append(f"v_mfma_f32_32x32x16_bf16 v[{d}:{d+15}], {a_}, {b_}, v[{d}:{d+15}]")
            return out
        return f
    A(f"""
    s_lshr_b32 s41, s32, 1
    s_lshl_b32 s41, s41, 1
    s_lshl_b32 s44, s34, 2
    s_add_u32 s44, s44, s41                ; T (rt'=0)
    s_cmp_eq_u32 s33, 3
    s_cbranch_scc1 Lk1_mainV
    s_cmp_eq_u32 s33, 1
    s_cbranch_scc0 Lk1_isK
    s_mul_i32 s68, s44, 1280
    s_add_u32 s68, s68, {QF_OFF}
    s_mov_b32 s49, {HSQ}
    s_mov_b32 s70, {f32bits(QSCALE):#x}
    s_branch Lk1_qk
Lk1_isK:
    s_lshr_b32 s68, s44, 3
    s_mul_i32 s68, s68, {CH}
    s_and_b32 s41, s44, 7
    s_mul_i32 s41, s41, 1280
    s_add_u32 s68, s68, s41
    s_add_u32 s68, s68, {KV_OFF}
    s_mov_b32 s49, {HSK}
    s_mov_b32 s70, 1.0
Lk1_qk:
    s_mov_b32 s71, s70
    s_and_b32 s41, s32, 1
    s_lshl_b32 s41, s41, 4
    s_lshl_b32 s55, s46, 5
    s_add_u32 s55, s55, s41                ; G0 base
    v_lshrrev_b32 v13, 5, v2               ; hf
    v_and_b32 v3, 31, v2                   ; token
    v_lshlrev_b32 v14, 4, v3
    v_lshlrev_b32 v15, 3, v3
    v_add_u32 v15, 1024, v15
    """)
    for sl in range(8):
        d = 48 + sl
        A(f"""
        v_add_u32 v16, {2*sl}, v13
        v_add_u32 v16, s55, v16                ; G
        v_mul_u32_u24 v17, 205, v16
        v_lshrrev_b32 v17, 10, v17             ; h = G/5
        v_mul_u32_u24 v18, 5, v17
        v_sub_u32 v18, v16, v18                ; j
        v_mul_lo_u32 v17, v17, s49             ; h*HS
        v_and_b32 v19, 1, v18
        v_lshlrev_b32 v19, 9, v19              ; (j&1)*512
        v_add_u32 v19, v19, v14
        v_cmp_eq_u32 vcc, 4, v18
        v_cmp_gt_u32 s[72:73], 2, v18
        s_nop 0
        v_cndmask_b32 v19, v19, v15, vcc
        """)
        if sl == 0:
            A(f"""
            v_mov_b32 v20, 10
            v_cndmask_b32 v20, v20, 2, vcc
            v_cndmask_b32 v20, v20, 1, s[72:73]
            """)
        else:
            A(f"""
            v_mov_b32 v20, 0
            v_cndmask_b32 v20, v20, 2, vcc
            v_cndmask_b32 v20, v20, {1 if sl < 7 else 2}, s[72:73]
            """)
        A(f"""
        v_add_u32 v19, v19, v17
        v_add_u32 v{d}, v19, v20
        """)
    loop("k1T", 4 if v5 else 6, p_reads, p_mfmas(False), p_dma, 2)
    if fused: A("s_setprio 3")
    if mprof: wl_stamp(A, 160, 0)
    def pack(sl):
        for rt in range(2):
            r = 64 + 16*(2*rt + (sl >> 2)) + 4*(sl & 3)
            t = 16 + 16*rt + 2*sl
            A(f"""
            v_pk_mul_f32 v[{r}:{r+1}], v[{r}:{r+1}], s[70:71]
            v_pk_mul_f32 v[{r+2}:{r+3}], v[{r+2}:{r+3}], s[70:71]
            v_cvt_pk_bf16_f32 v{t}, v{r}, v{r+1}
            v_cvt_pk_bf16_f32 v{t+1}, v{r+2}, v{r+3}
            """)
    pack(0)
    for sl in range(8):
        if sl < 7: pack(sl + 1)
        lab = A.label("qk")
        A(f"""
        v_and_b32 v56, 3, v{48+sl}
        v_and_b32 v57, -4, v{48+sl}
        """)
        if sl < 7:
            A(f"""
            v_cmp_eq_u32 vcc, 1, v56
            s_nop 1
            s_mov_b64 exec, vcc
            s_cbranch_execz {lab}_a
            buffer_store_dwordx4 v[{16+2*sl}:{19+2*sl}], v57, s[24:27], s68 offen{SCQ}
            buffer_store_dwordx4 v[{32+2*sl}:{35+2*sl}], v57, s[24:27], s68 offen offset:1280{SCQ}
            {lab}_a:
            s_mov_b64 exec, -1
            """)
        A(f"""
        v_cmp_eq_u32 vcc, 2, v56
        s_nop 1
        s_mov_b64 exec, vcc
        s_cbranch_execz {lab}_b
        buffer_store_dwordx2 v[{16+2*sl}:{17+2*sl}], v57, s[24:27], s68 offen{SCQ}
        buffer_store_dwordx2 v[{32+2*sl}:{33+2*sl}], v57, s[24:27], s68 offen offset:1280{SCQ}
        {lab}_b:
        s_mov_b64 exec, -1
        """)
    A("s_branch Lk1_end")
    A("Lk1_mainV:")
    A(f"""
    s_lshr_b32 s68, s44, 3
    s_mul_i32 s68, s68, {CH}
    s_and_b32 s41, s44, 7
    s_mul_i32 s41, s41, {VT}
    s_add_u32 s68, s68, s41
    s_add_u32 s68, s68, {KV_OFF + VPART}
    s_and_b32 s41, s32, 1
    s_lshl_b32 s41, s41, 6
    s_lshl_b32 s55, s46, 7
    s_add_u32 s55, s55, s41
    v_and_b32 v3, 31, v2
    v_lshrrev_b32 v13, 5, v2               ; hf
    v_mul_u32_u24 v14, {VH}, v13
    s_mov_b32 s49, {HSK}
    """)
    for ct in range(2):
        A(f"""
        v_add_u32 v16, {32*ct}, v3
        v_add_u32 v16, s55, v16                ; c
        v_mul_u32_u24 v17, 3277, v16
        v_lshrrev_b32 v17, 16, v17             ; h
        v_mul_u32_u24 v18, 20, v17
        v_sub_u32 v18, v16, v18                ; dh
        v_mul_lo_u32 v17, v17, s49
        v_cmp_eq_u32 s[{72+2*ct}:{73+2*ct}], 0, v18
        """)
        vslot(A, 18, 20, 21)
        A(f"""
        v_lshl_add_u32 v19, v20, 4, v17
        v_add_u32 v{48+ct}, v19, v14
        """)
    loop("k1N", 4 if v5 else 6, p_reads, p_mfmas(True), p_dma, 2)
    if fused: A("s_setprio 3")
    if mprof: wl_stamp(A, 160, 0)
    for ct in range(2):
        for rt in range(2):
            for j in range(2):
                r = 64 + 16*(2*rt + ct) + 8*j
                t = 32 + 4*(2*rt + j)
                for m in range(4):
                    A(f"v_cvt_pk_bf16_f32 v{t+m}, v{r+2*m}, v{r+2*m+1}")
                A(f"buffer_store_dwordx4 v[{t}:{t+3}], v{48+ct}, s[24:27], s68 offen offset:{rt*VT + j*2*VH}{SC}")
    A("s_branch Lk1_end")

    A("Lk1_gate:")
    srd(A, 28, 12, GW_BYTES)
    A(f"""
    s_mul_i32 s41, s32, 320
    s_add_u32 m0, s41, {GATE_LDS}
    v_lshlrev_b32 v12, 4, v2
    v_cmp_gt_u32 vcc, 20, v2
    s_and_saveexec_b64 s[76:77], vcc
    buffer_load_dwordx4 v12, s[28:31], s41 offen lds
    s_mov_b64 exec, s[76:77]
    """)
    def g_dma():
        if v5: return []
        g = x_dma("s52")
        g.append(adv_group(0))
        return g
    for st in range(2):
        A(f"s_add_u32 s52, s42, {st*SLOT}")
        for grp in g_dma():
            for l in grp: A(l)
        if st == 0: A("s_barrier")
    A("s_lshl_b32 s41, s32, 12")
    xfrag_addr("s41")
    A(f"""
    v_lshlrev_b32 v9, 4, v13               ; hf*16
    v_add_u32 v62, {GATE_LDS}, v9
    s_lshl_b32 s57, s69, 7
    v_add_u32 v9, s57, v62
    v_mov_b32 v60, 0
    s_mov_b32 s43, 0
    """)
    for i in range(16): A(f"v_mov_b32 v{64+i}, 0")
    def g_reads(ks, fs):
        b = 16 + 16*fs
        out = [f"ds_read_b128 v[{b}:{b+3}], v{4+ks}", f"ds_read_b128 v[{b+4}:{b+7}], v9 offset:{ks*32}"]
        if ks == 3:
            if ROT == 2:
                out += ["s_add_u32 s69, s69, 1", "s_cmp_eq_u32 s69, 10", "s_cselect_b32 s69, 0, s69", "s_lshl_b32 s57, s69, 7", "v_add_u32 v9, s57, v62"]
            else:
                out += ["s_add_u32 s69, s69, 1", "s_add_u32 s57, s69, s78", "s_sub_u32 s57, s57, 2", "s_and_b32 s57, s57, 7", "s_add_u32 s57, s57, 2",
                        "s_cmp_lt_u32 s69, 2", "s_cselect_b32 s57, s69, s57", "s_lshl_b32 s57, s57, 7", "v_add_u32 v9, s57, v62"]
        return out
    def g_mfmas(fs):
        b = 16 + 16*fs
        return [f"v_mfma_f32_32x32x16_bf16 v[64:79], v[{b+4}:{b+7}], v[{b}:{b+3}], v[64:79]"]
    A(f"s_waitcnt vmcnt({0 if v5 else 2})")
    A("s_barrier")
    A(f"s_add_u32 s52, s42, {2*SLOT}")
    for grp in g_dma():
        for l in grp: A(l)
    if prof:
        A("s_mov_b32 s90, 0")
    for l in set_slot(0, "0"): A(l)
    for l in g_reads(0, 0): A(l)
    A("s_mov_b32 s40, 0")
    A(f"s_mov_b32 s50, {SLOT}")
    A("s_mov_b32 s51, 0")
    A("Lk1g_loop:")
    for ks in range(3):
        fs = ks & 1
        for l in g_reads(ks + 1, fs ^ 1): A(l)
        A("s_waitcnt lgkmcnt(2)")
        for l in g_mfmas(fs): A(l)
    A(f"""
    s_cmp_lt_u32 s40, 8
    s_cbranch_scc1 Lk1g_a
    s_waitcnt vmcnt(0)
Lk1g_a:
    s_waitcnt vmcnt(2) lgkmcnt(0)
    s_barrier
    """)
    for l in set_slot(0, "s50"): A(l)
    for l in g_mfmas(1): A(l)
    for l in g_reads(0, 0): A(l)
    A(f"""
    s_cmp_lt_u32 s40, 7
    s_cbranch_scc0 Lk1g_b
    s_add_u32 s52, s51, s42
    """)
    for grp in g_dma():
        for l in grp: A(l)
    A(f"""
Lk1g_b:
    s_mov_b32 s51, s50
    s_add_u32 s50, s50, {SLOT}
    s_cmp_ge_u32 s50, {3*SLOT}
    s_cselect_b32 s50, 0, s50
    s_add_u32 s40, s40, 1
    s_cmp_lt_u32 s40, 10
    s_cbranch_scc1 Lk1g_loop
    s_waitcnt lgkmcnt(0)
    s_nop 15
    v_mul_f32 v16, {f32bits(-LOG2E):#x}, v64
    v_exp_f32 v16, v16
    s_nop 0
    v_add_f32 v16, 1.0, v16
    v_rcp_f32 v16, v16
    s_lshl_b32 s44, s34, 2
    s_add_u32 s44, s44, s32                ; T
    s_lshl_b32 s44, s44, 7                 ; *32*4 bytes
    s_add_u32 s44, s44, {G_OFF}
    v_lshlrev_b32 v17, 2, v2
    v_cmp_gt_u32 vcc, 32, v2
    s_and_saveexec_b64 s[76:77], vcc
    buffer_store_dword v16, v17, s[24:27], s44 offen{SC}
    s_mov_b64 exec, s[76:77]
    s_branch Lk1_end
    """)

    A("Lk1_R:")
    if rprio: A(f"s_setprio {rprio}")
    if prof:
        A("v_writelane_b32 v61, s87, 8")
        wl_stamp(A, 61, 9)
    srd(A, 20, 8, W1_BYTES)
    srd(A, 28, 10, B1_BYTES)
    A(f"""
    s_sub_u32 s47, s32, 4
    s_mul_i32 s41, s35, 192
    v_lshrrev_b32 v3, 5, v2
    v_lshlrev_b32 v3, 4, v3
    """)
    if prof: wl_stamp(A, 61, 12)
    A(f"""
    buffer_load_dwordx4 v[112:115], v3, s[28:31], s41 offen
    """)
    if prof: wl_stamp(A, 61, 13)
    A(f"""
    buffer_load_dwordx4 v[116:119], v3, s[28:31], s41 offen offset:32
    buffer_load_dwordx4 v[120:123], v3, s[28:31], s41 offen offset:64
    buffer_load_dwordx4 v[124:127], v3, s[28:31], s41 offen offset:96
    buffer_load_dwordx4 v[48:51], v3, s[28:31], s41 offen offset:128
    buffer_load_dwordx4 v[52:55], v3, s[28:31], s41 offen offset:160
    """)
    if prof: wl_stamp(A, 61, 14)
    for j, reg in enumerate((12, 62, 63)):
        A(f"""
        s_mul_i32 s41, s47, 192
        s_add_u32 s41, s41, {64*j}
        v_add_u32 v13, s41, v2                 ; t
        v_mul_u32_u24 v14, 5462, v13
        v_lshrrev_b32 v14, 16, v14             ; t/12
        v_mul_u32_u24 v15, 12, v14
        v_sub_u32 v15, v13, v15
        v_mul_u32_u24 v14, 3072, v14
        v_lshl_add_u32 v{reg}, v15, 4, v14
        """)
    A(f"""
    s_mul_i32 s59, s35, 192
    s_mul_i32 s57, s79, {64*3072}
    s_add_u32 s38, s59, s57
    s_mul_i32 s43, s47, 3072
    s_add_u32 s43, s43, {W1O}
    """)
    if not v5:
        def r_dma():
            g = x_dma("s52")
            for j, reg in enumerate((12, 62, 63)):
                g.append([f"s_add_u32 m0, s53, {j*1024}", "s_nop 0",
                          f"buffer_load_dwordx4 v{reg}, s[20:23], s38 offen lds"])
            g.append(adv_group(64*3072))
            return g
        def r_stage(st):
            A(f"s_add_u32 s52, s42, {st*SLOT}")
            A(f"s_add_u32 s53, s43, {st*SLOT}")
            for grp in r_dma():
                for l in grp: A(l)
        if prof: wl_stamp(A, 61, 0)
        r_stage(0)
        if prof: wl_stamp(A, 61, 1)
        A("s_barrier")
        A("s_lshl_b32 s41, s47, 12")
        xfrag_addr("s41")
        A(f"""
        v_bfe_u32 v14, v2, 2, 2
        v_lshl_add_u32 v15, v13, 3, v14
        v_mul_u32_u24 v15, 192, v15
        v_bfe_u32 v3, v2, 4, 1
        v_lshl_add_u32 v15, v3, 5, v15
        v_and_b32 v3, 3, v2
        v_lshrrev_b32 v1, 1, v3
        v_and_b32 v3, 1, v3
        v_lshl_or_b32 v3, v3, 1, v1
        v_lshl_add_u32 v15, v3, 3, v15
        v_add_u32 v60, {W1O}, v15
        """)
        if prof: wl_stamp(A, 61, 2)
        r_stage(1)
        if prof: wl_stamp(A, 61, 3)
        A("s_waitcnt vmcnt(10)")
        if prof:
            wl_stamp(A, 61, 4)
        bsrc = [112, 116, 120, 124, 48, 52]
        for ct in range(3):
            for half in range(2):
                for m in range(4):
                    src = bsrc[2*ct + half] + m
                    d = 64 + 16*ct + 8*half + 2*m
                    A(f"v_lshlrev_b32 v{d}, 16, v{src}")
                    A(f"v_and_b32 v{d+1}, 0xffff0000, v{src}")
        def r_reads(ks, fs):
            b = 16 + 16*fs
            out = [f"ds_read_b128 v[{b}:{b+3}], v{4+ks}"]
            for ct in range(3):
                out.append(f"ds_read_b64_tr_b16 v[{b+4+4*ct}:{b+5+4*ct}], v8 offset:{ks*16*192 + ct*64}")
                out.append(f"ds_read_b64_tr_b16 v[{b+6+4*ct}:{b+7+4*ct}], v8 offset:{ks*16*192 + 4*192 + ct*64}")
            return out
        def r_mfmas(fs):
            b = 16 + 16*fs
            return [f"v_mfma_f32_32x32x16_bf16 v[{64+16*ct}:{64+16*ct+15}], v[{b+4+4*ct}:{b+7+4*ct}], v[{b}:{b+3}], v[{64+16*ct}:{64+16*ct+15}]" for ct in range(3)]
        loop("k1R", 5, r_reads, r_mfmas, r_dma, 1)
    else:
        def l_stage(dest):
            for grp in x_dma(dest):
                for l in grp: A(l)
            for l in adv_group(0): A(l)
        A("s_mov_b32 s52, s42")
        l_stage("s52")
        A("s_barrier")
        A(f"s_add_u32 s52, s42, {SLOT}")
        l_stage("s52")
        A("s_waitcnt vmcnt(8)")
        bsrc = [112, 116, 120, 124, 48, 52]
        for ct in range(3):
            for half in range(2):
                for m in range(4):
                    src = bsrc[2*ct + half] + m
                    d = 64 + 16*ct + 8*half + 2*m
                    A(f"v_lshlrev_b32 v{d}, 16, v{src}")
                    A(f"v_and_b32 v{d+1}, 0xffff0000, v{src}")
        A("s_waitcnt vmcnt(4)")
        A("s_barrier")
        A(f"s_add_u32 s52, s42, {2*SLOT}")
        l_stage("s52")
        for st in range(10):
            A(f"s_waitcnt vmcnt({4 if st <= 7 else 0})")
            A("s_barrier")
            if st < 7:
                A(f"s_add_u32 s52, s42, {(st % 3)*SLOT}")
                l_stage("s52")
        FS = 28672; FB = 3*24576
        if mprof == 1: stamp(A, 11)
        A(f"""
        s_lshl_b32 s41, s47, 12
        """)
        xfrag_addr("s41")
        A(f"""
        v_bfe_u32 v14, v2, 2, 2
        v_lshl_add_u32 v15, v13, 3, v14
        v_mul_u32_u24 v15, 192, v15
        v_bfe_u32 v3, v2, 4, 1
        v_lshl_add_u32 v15, v3, 5, v15
        v_and_b32 v3, 3, v2
        v_lshrrev_b32 v1, 1, v3
        v_and_b32 v3, 1, v3
        v_lshl_or_b32 v3, v3, 1, v1
        v_lshl_add_u32 v15, v3, 3, v15
        v_add_u32 v60, 16384, v15
        s_mov_b32 s37, s58
        s_mov_b32 s38, s59                     ; W1 soffset
        s_lshl_b32 s42, s47, 12
        s_add_u32 s42, s42, {FB}
        s_mul_i32 s43, s47, 3072
        s_add_u32 s43, s43, {FB + 16384}
        v_and_b32 v61, 3, v2
        v_lshlrev_b32 v61, 2, v61
        v_add_u32 v61, {FL + LF_F1P}, v61
        s_lshl_b32 s41, s47, 2
        s_add_u32 s41, s41, {FL + LF_F1P}
        v_mov_b32 v1, s41
        """)
        def f_groups(slot):
            g = []
            for j in range(4):
                g.append([f"s_add_u32 m0, s42, {slot*FS + j*1024}", f"s_add_u32 s48, s37, {j*10240}",
                          f"buffer_load_dwordx4 v{10 + (j & 1)}, s[16:19], s48 offen lds"])
            for j, reg in enumerate((12, 62, 63)):
                g.append([f"s_add_u32 m0, s43, {slot*FS + j*1024}", "s_nop 0",
                          f"buffer_load_dwordx4 v{reg}, s[20:23], s38 offen lds"])
            g.append(["s_add_u32 s37, s37, 128", f"s_add_u32 s38, s38, {64*3072}"])
            return g
        for st in range(2):
            for grp in f_groups(st):
                for l in grp: A(l)
        def r_reads(ks, fs):
            b = 16 + 16*fs
            out = [f"ds_read_b128 v[{b}:{b+3}], v{4+ks}"]
            for ct in range(3):
                out.append(f"ds_read_b64_tr_b16 v[{b+4+4*ct}:{b+5+4*ct}], v8 offset:{ks*16*192 + ct*64}")
                out.append(f"ds_read_b64_tr_b16 v[{b+6+4*ct}:{b+7+4*ct}], v8 offset:{ks*16*192 + 4*192 + ct*64}")
            return out
        def r_mfmas(fs):
            b = 16 + 16*fs
            return [f"v_mfma_f32_32x32x16_bf16 v[{64+16*ct}:{64+16*ct+15}], v[{b+4+4*ct}:{b+7+4*ct}], v[{b}:{b+3}], v[{64+16*ct}:{64+16*ct+15}]" for ct in range(3)]
        for st in range(10):
            lab = A.label("f1s")
            A(f"""
            s_waitcnt vmcnt({7 if st < 9 else 0}) lgkmcnt(0)
            v_mov_b32 v9, {st + 1}
            ds_write_b32 v1, v9
            s_mov_b32 s99, 0x100000
            {lab}:
            ds_read_b32 v9, v61
            s_waitcnt lgkmcnt(0)
            v_cmp_le_u32 vcc, {st + 1}, v9
            s_cmp_eq_u64 vcc, exec
            s_cbranch_scc1 {lab}_ok
            s_sub_u32 s99, s99, 1
            s_cbranch_scc0 {lab}
            {lab}_ok:
            """)
            if mprof == 1: wl_stamp(A, 127, st)
            for l in set_slot(1, str(FB + (st % 3)*FS)): A(l)
            for l in r_reads(0, 0): A(l)
            g = f_groups((st + 2) % 3) if st + 2 < 10 else []
            per = (len(g) + 2) // 3
            for ks in range(3):
                kstep(r_mfmas(ks & 1), [[l] for l in r_reads(ks + 1, (ks & 1) ^ 1)], g[ks*per:(ks+1)*per])
            kstep(r_mfmas(1), [], [])
        A("s_nop 15")
        if mprof == 1:
            stamp(A, 12)
            wl_dump(A, 127, 0, 24, 85, 9)
    if not fused: A("s_setprio 2")
    A(f"""
    s_lshl_b32 s44, s34, 2
    s_add_u32 s44, s44, s47                ; T
    s_mul_i32 s45, s44, {2*48*1024}
    s_mul_i32 s41, s35, {3*1024}
    s_add_u32 s45, s45, s41
    s_add_u32 s45, s45, {ACT_OFF}
    v_bfe_u32 v13, v2, 4, 1                ; token>>4
    v_mul_u32_u24 v13, {48*1024}, v13
    v_lshrrev_b32 v14, 5, v2               ; hf
    v_lshl_add_u32 v13, v14, 8, v13
    v_and_b32 v14, 15, v2
    v_lshl_add_u32 v13, v14, 4, v13
    s_mov_b32 s54, {f32bits(LOG2E):#x}
    s_mov_b32 s55, s54
    v_mov_b32 v2, 2.0
    v_mov_b32 v3, 2.0
    """)
    def mish8(r, t0):
        for p in range(4):
            A(f"v_pk_mul_f32 v[{t0+2*p}:{t0+2*p+1}], v[{r+2*p}:{r+2*p+1}], s[54:55]")
        for i in range(8):
            A(f"v_exp_f32 v{t0+i}, v{t0+i}")
        for p in range(4):
            A(f"v_pk_add_f32 v[{t0+8+2*p}:{t0+8+2*p+1}], v[{t0+2*p}:{t0+2*p+1}], v[2:3]")
        for p in range(4):
            A(f"v_pk_fma_f32 v[{t0+2*p}:{t0+2*p+1}], v[{t0+2*p}:{t0+2*p+1}], v[{t0+8+2*p}:{t0+8+2*p+1}], v[2:3]")
        for i in range(8):
            A(f"v_rcp_f32 v{t0+i}, v{t0+i}")
        A("s_nop 0")
        for p in range(4):
            A(f"v_pk_fma_f32 v[{t0+2*p}:{t0+2*p+1}], v[{t0+2*p}:{t0+2*p+1}], -2.0, 1.0 op_sel_hi:[1,0,0]")
        for p in range(4):
            A(f"v_pk_mul_f32 v[{r+2*p}:{r+2*p+1}], v[{r+2*p}:{r+2*p+1}], v[{t0+2*p}:{t0+2*p+1}]")
    k = 0
    for ct in range(3):
        for j in range(2):
            r = 64 + 16*ct + 8*j
            mish8(r, 16)
            t = 32 + 4*k; k += 1
            for m in range(4):
                A(f"v_cvt_pk_bf16_f32 v{t+m}, v{r+2*m}, v{r+2*m+1}")
            if not fused:
                A(f"buffer_store_dwordx4 v[{t}:{t+3}], v13, s[24:27], s45 offen offset:{ct*1024 + j*512}{SC}")
    if fused:
        if mprof == 1: stamp(A, 13)
        if rtrig == 2: lds_spin(A, FL + LF_FULL, 1, 8, tmp=(16, 17), sleep=4)
        elif rtrig == 1: lds_spin(A, FL + LF_GO, 1, 1, tmp=(16, 17), sleep=4)
        else: lds_spin(A, FL + LF_PD, 1, 4, tmp=(16, 17), sleep=4)
        k = 0
        for ct in range(3):
            for j in range(2):
                t = 32 + 4*k; k += 1
                A(f"buffer_store_dwordx4 v[{t}:{t+3}], v13, s[24:27], s45 offen offset:{ct*1024 + j*512}{SC}")
    A("s_branch Lk1_endR" if fused else "s_branch Lk1_end")
    A("Lk1_H:")
    gen_helpers(A, FL, pf, mprof, hprio, pfa, spf, cpf, KN)
    if fused:
        A("Lk1_endR:")
        A("s_waitcnt vmcnt(0)")
        A(f"s_sub_u32 s41, s32, 4")
        A("s_lshl_b32 s41, s41, 2")
        A(f"s_add_u32 s41, s41, {FL + LF_RD}")
        A("v_mov_b32 v4, s41")
        A("v_mov_b32 v5, 1")
        A("ds_write_b32 v4, v5")
        A("s_branch Lshadow_entry")
        A("Lk1_end:")
        if mprof: wl_stamp(A, 160, 1)
        A("s_waitcnt vmcnt(0)")
        if mprof and not dbg2: wl_stamp(A, 160, 2)
        A("s_lshl_b32 s41, s32, 2")
        A(f"s_add_u32 s41, s41, {FL + LF_PD}")
        A("v_mov_b32 v4, s41")
        A("v_mov_b32 v5, 1")
        A("ds_write_b32 v4, v5")
        A("s_branch Lattn_entry")
        A("Lk1_exit:")
        A("s_endpgm")
        return A.text()
    A("Lk1_end:")
    if prof:
        A("s_memtime s[88:89]")
        A("s_waitcnt lgkmcnt(0)")
        A("s_sub_u32 s88, s88, s92")
        A("s_cmp_ge_u32 s32, 4")
        A("s_cbranch_scc1 Lk1_dbgR")
        A("v_mov_b32 v61, v63")
        A("Lk1_dbgR:")
        A("v_writelane_b32 v61, s88, 11")
        A("v_writelane_b32 v61, s91, 10")
        A(f"""
        s_lshl_b32 s97, s2, 4
        s_add_u32 s97, s97, s32
        s_lshl_b32 s97, s97, 6
        s_add_u32 s97, s97, {DBG_OFF + 0x100000}
        v_and_b32 v4, 63, v0
        v_lshlrev_b32 v4, 2, v4
        v_cmp_gt_u32 vcc, 16, v0
        v_and_b32 v5, 63, v0
        v_cmp_gt_u32 vcc, 16, v5
        s_and_saveexec_b64 s[56:57], vcc
        buffer_store_dword v61, v4, s[24:27], s97 offen
        s_mov_b64 exec, s[56:57]
        """)
        prof_end(A, 0, 24, 32, tmpv=(4, 5, 6, 7, 8), extra="s90")
    if tl: tl2_record(A, 0, 24, 32)
    A("Lk1_exit:")
    A("s_endpgm")
    return A.text(), kdesc(NAME, 128), f"; @launch kernel={NAME} grid=(256,1,1) block=(576,1,1) lds={LDS_BYTES}"
```

```python
from asm import *
from common import *
from k2_shadow import gen_shadow

NAME = "k2_kernel"
SLOT = 24576
SH_BASE = 3 * SLOT
FLAG = MEGA_FLAG
LDS_BYTES = FLAG + 256

X_ = [16, 48]
P_ = 80
O_ = 88
C_ = 104
QM = 120
QT = 124
KF = [126, 130]
KT = 134
V0 = 136
V1 = 140
FL = 144

def mf(d, a, b, c):
    cs = "0" if c is None else f"v[{c}:{c+15}]"
    return f"v_mfma_f32_32x32x16_bf16 v[{d}:{d+15}], v[{a}:{a+3}], v[{b}:{b+3}], {cs}"
def mf2b(d, a, b, c):
    cs = "0" if c is None else f"v[{c}:{c+31}]"
    return f"v_mfma_f32_32x32x4_2b_bf16 v[{d}:{d+31}], v[{a}:{a+1}], v[{b}:{b+1}], {cs}"

def vslot(A, row, dst, t1):
    A(f"""
    v_mov_b32 v{dst}, v{row}
    v_add_u32 v{t1}, 12, v{row}
    v_cmp_lt_u32 vcc, 3, v{row}
    s_nop 1
    v_cndmask_b32 v{dst}, v{dst}, v{t1}, vcc
    v_subrev_u32 v{t1}, 1, v{row}
    v_cmp_lt_u32 vcc, 9, v{row}
    s_nop 1
    v_cndmask_b32 v{dst}, v{dst}, v{t1}, vcc
    v_subrev_u32 v{t1}, 8, v{row}
    v_cmp_lt_u32 vcc, 11, v{row}
    s_nop 1
    v_cndmask_b32 v{dst}, v{dst}, v{t1}, vcc
    v_subrev_u32 v{t1}, 5, v{row}
    v_cmp_lt_u32 vcc, 15, v{row}
    s_nop 1
    v_cndmask_b32 v{dst}, v{dst}, v{t1}, vcc
    v_cmp_lt_u32 vcc, 19, v{row}
    s_nop 1
    v_cndmask_b32 v{dst}, v{dst}, 8, vcc
    v_cmp_lt_u32 vcc, 20, v{row}
    s_nop 1
    v_cndmask_b32 v{dst}, v{dst}, 15, vcc
    """)

def gen_k2(prof=False, exp_mode=0, shadow=True, shprio=0, pa=1, pb=2, tl=0, nofb=0, lstamp=0, desc=3, na=11, fused=False, mprof=0, dbg2=0, oft=0, outf=0, tm=0, part=0, shexp=0, shv2=0, pp=0, ppo=0):
    KT4 = 152; QA4 = 156; QB4 = 164
    A = Asm(10000)
    if not fused:
        A(khead(NAME))
        A(f"""
        s_cmp_ge_u32 s2, 256
        s_cbranch_scc1 Lk2_end
        """)
        if prof: prof_start(A)
        if tl: tl_start(A, 1)
    def ids():
        A(f"""
        s_load_dwordx2 s[4:5], s[0:1], 80
        v_lshrrev_b32 v9, 6, v0
        v_and_b32 v1, 63, v0                   ; lane
        s_and_b32 s20, s2, 7
        v_readfirstlane_b32 s12, v9            ; wave
        s_lshr_b32 s21, s2, 3
        s_and_b32 s22, s21, 3
        s_lshl_b32 s13, s20, 2
        s_add_u32 s13, s13, s22                ; h
        s_lshr_b32 s14, s21, 2                 ; qb
        s_lshl_b32 s15, s14, 3
        s_add_u32 s15, s15, s12                ; T
        """)
    if fused:
        A("Lshadow_entry:")
        ids()
        A("s_branch Lk2_shadow")
        A("Lattn_entry:")
        A("s_setprio 0")
        ids()
    else:
        ids()
        A("s_cmp_ge_u32 s12, 8")
        A("s_cbranch_scc1 Lk2_shadow")
    A(f"""
    s_mul_i32 s16, s13, {HSK}
    s_add_u32 s16, s16, {KV_OFF}
    s_mul_i32 s23, s13, {HSQ}
    s_mul_i32 s24, s15, 1280
    s_add_u32 s23, s23, s24
    s_add_u32 s23, s23, {QF_OFF}
    v_lshlrev_b32 v8, 4, v1                ; lane*16
    v_and_b32 v9, 31, v1
    v_lshrrev_b32 v10, 5, v1               ; hf
    v_lshlrev_b32 v11, 3, v9
    v_add_u32 v11, 1024, v11               ; 1024 + token*8
    s_mul_i32 s25, s12, 3072
    s_add_u32 s17, s16, s25
    """)
    if fused and part:
        A(f"""
        s_add_u32 s44, s17, {8*CH}
        s_mul_i32 s20, s14, {CH if part == 1 else 0}
        s_add_u32 s17, s17, s20
        """)
    A(f"""
    s_waitcnt lgkmcnt(0)
    """)
    srd_ws(A, 8, 4, WS_RECORDS)
    def dma_groups(slot_sgpr, slot_imm=0):
        g = []
        for j in range(3):
            m0 = f"s_add_u32 m0, {slot_sgpr}, {slot_imm + j*1024}"
            g.append([m0, f"s_add_u32 s26, s17, {j*1024}", f"buffer_load_dwordx4 v8, s[8:11], s26 offen lds"])
        if fused and part:
            g.append([f"s_add_u32 s17, s17, {CH}", "s_cmp_ge_u32 s17, s44", f"s_cselect_b32 s26, {8*CH}, 0", "s_sub_u32 s17, s17, s26"])
        else:
            g.append([f"s_add_u32 s17, s17, {CH}"])
        return g
    def first_loads():
        for grp in dma_groups("s25", 0):
            for l in grp: A(l)
        A(f"""
        buffer_load_dwordx4 v[{QM}:{QM+3}], v8, s[8:11], s23 offen
        buffer_load_dwordx2 v[{QT}:{QT+1}], v11, s[8:11], s23 offen
        """)
        if not fused:
            for grp in dma_groups("s25", SLOT):
                for l in grp: A(l)
    if not fused: first_loads()
    A(f"""
    v_cmp_gt_u32 s[28:29], 32, v1          ; lanes < 32
    v_mov_b32 v5, v8
    v_mul_u32_u24 v6, 1280, v10
    v_add_u32 v6, v6, v11
    """)
    A(f"""
    s_and_b32 s20, s13, 1
    s_mov_b32 s21, 0x43120
    s_cmp_eq_u32 s20, 1
    s_cselect_b32 s21, 0x04231, s21        ; odd h: 1,3,2,4,0
    v_lshrrev_b32 v14, 2, v9
    v_lshlrev_b32 v14, 2, v14              ; 4*g
    v_lshrrev_b32 v15, v14, s21
    v_and_b32 v15, 15, v15                 ; j
    v_and_b32 v14, 3, v9
    v_lshl_add_u32 v15, v15, 2, v14        ; dh
    v_cmp_gt_u32 vcc, 20, v9
    s_nop 1
    v_cndmask_b32 v16, v9, v15, vcc
    """)
    vslot(A, 16, 14, 15)
    A(f"""
    s_mul_i32 s21, s13, 5
    v_and_b32 v16, 15, v1
    v_lshlrev_b32 v16, 4, v16              ; token16*16
    v_bfe_u32 v17, v1, 4, 1
    v_mul_u32_u24 v17, 20480, v17
    v_add_u32 v16, v16, v17
    v_lshlrev_b32 v17, 1, v10              ; 2*hf
    v_add_u32 v17, s20, v17
    v_add_u32 v17, s21, v17                ; G0
    v_lshrrev_b32 v18, 3, v17
    v_lshlrev_b32 v18, 10, v18
    v_bfe_u32 v17, v17, 1, 2
    v_lshl_add_u32 v18, v17, 8, v18
    v_add_u32 v152, v18, v16
    s_xor_b32 s20, s20, 1
    s_lshl_b32 s20, s20, 2
    s_add_u32 s20, s20, s21                ; G1
    s_lshr_b32 s21, s20, 3
    s_lshl_b32 s21, s21, 10
    s_bfe_u32 s22, s20, 0x20001
    s_lshl_b32 s22, s22, 8
    s_add_u32 s21, s21, s22
    s_and_b32 s20, s20, 1
    s_lshl_b32 s20, s20, 3
    s_add_u32 s21, s21, s20
    v_add_u32 v153, s21, v16
    v_mul_u32_u24 v7, {VH}, v10
    v_lshl_add_u32 v7, v14, 4, v7
    v_add_u32 v7, {VPART}, v7
    v_mov_b32 v2, v5
    v_mov_b32 v3, v6
    v_mov_b32 v4, v7
    """)
    if not fused:
        A(f"""
        v_lshlrev_b32 v12, 2, v1
        v_add_u32 v12, {FLAG}, v12
        v_mov_b32 v13, 0
        s_cmp_eq_u32 s12, 0
        s_cbranch_scc0 Lk2_noclr
        s_mov_b64 exec, s[28:29]
        ds_write_b32 v12, v13
        s_mov_b64 exec, -1
Lk2_noclr:
        """)
    A(f"""
    v_and_b32 v12, 7, v1
    v_lshlrev_b32 v12, 2, v12
    v_add_u32 v12, {FLAG}, v12             ; v12: full[lane&7] ; +32: free[lane&7]
    s_lshl_b32 s33, s12, 2
    s_add_u32 s33, s33, {FLAG}
    v_mov_b32 v13, s33                     ; v13: own full word ; +32 own free word
    """)
    for i in range(4): A(f"v_mov_b32 v{V1+i}, 0")
    for i in range(4): A(f"v_mov_b32 v{P_+4+i}, 0")
    for i in range(16): A(f"v_mov_b32 v{O_+i}, 0")
    X0 = X_[0]
    if fused:
        if oft:
            A(f"""
            s_cmp_eq_u32 s12, 6
            s_cbranch_scc0 Lattn_nooft
            v_lshrrev_b32 v146, 2, v1
            s_lshl_b32 s20, s14, 4
            v_add_u32 v146, s20, v146              ; T16
            v_mul_u32_u24 v146, 20480, v146
            v_and_b32 v147, 1, v1
            v_lshl_add_u32 v146, v147, 7, v146     ; + line*128
            v_bfe_u32 v147, v1, 1, 1
            s_mul_i32 s20, s13, 5
            """)
            for m in range(3):
                A(f"""
                v_add_u32 v148, {2*m}, v147
                v_min_u32 v148, 4, v148
                v_add_u32 v148, s20, v148              ; G
                v_lshrrev_b32 v149, 3, v148
                v_lshlrev_b32 v149, 10, v149
                v_bfe_u32 v148, v148, 1, 2
                v_lshl_add_u32 v149, v148, 8, v149
                v_add_u32 v149, v149, v146
                s_mov_b32 s21, {OF_OFF}
                buffer_load_dword v150, v149, s[8:11], s21 offen sc1
                """)
            A("Lattn_nooft:")
        A("s_cmp_eq_u32 s12, 5")
        A("s_cbranch_scc0 Lattn_nopub")
        lds_spin(A, FLAG + LF_HD + 12, 1, 1, tmp=(146, 147), sleep=0)
        lds_spin(A, FLAG + LF_PD, 1, 4, tmp=(146, 147), sleep=0)
        get_tag(A, FLAG + LF_TAG, "s35", tmp=(146, 147))
        A(f"""
        s_and_b32 s20, s2, 7
        s_lshr_b32 s21, s2, 3
        s_and_b32 s22, s20, 1
        s_lshl_b32 s22, s22, 3
        s_and_b32 s24, s21, 7
        s_add_u32 s22, s22, s24                ; rb
        s_lshr_b32 s20, s20, 1
        s_lshl_b32 s20, s20, 2
        s_lshr_b32 s21, s21, 3
        s_add_u32 s20, s20, s21                ; cgp
        s_mul_i32 s20, s20, {FROW}
        s_lshl_b32 s22, s22, 2
        s_add_u32 s20, s20, s22
        s_add_u32 s20, s20, {F1A_OFF}
        v_mul_u32_u24 v146, {FREP}, v1
        v_mov_b32 v147, s35
        s_mov_b64 exec, 0xf
        buffer_store_dword v147, v146, s[8:11], s20 offen sc1
        s_mov_b64 exec, -1
        """)
        if mprof == 1:
            wl_stamp(A, 160, 8)
            A("s_waitcnt vmcnt(0)")
            wl_stamp(A, 160, 9)
        A("Lattn_nopub:")
        A("s_cmp_eq_u32 s12, 4")
        A("s_cbranch_scc0 Lattn_wgo")
        get_tag(A, FLAG + LF_TAG, "s35", tmp=(146, 147))
        lds_spin(A, FLAG + LF_PD, 1, 4, tmp=(146, 147), sleep=1)
        if mprof: wl_stamp(A, 160, 1)
        A(f"""
        s_mul_i32 s20, s13, 20
        s_add_u32 s21, s20, 19
        s_lshr_b32 s20, s20, 7
        s_lshr_b32 s21, s21, 7
        v_and_b32 v146, 15, v1
        v_lshlrev_b32 v146, 2, v146
        v_bfe_u32 v147, v1, 4, 1
        v_mov_b32 v148, s20
        v_mov_b32 v149, s21
        v_cmp_eq_u32 vcc, 1, v147
        s_nop 1
        v_cndmask_b32 v148, v148, v149, vcc    ; cb
        v_lshrrev_b32 v147, 5, v1              ; 0: K, 1: V
        v_mul_u32_u24 v147, 5, v147
        v_add_u32 v147, 5, v147
        v_add_u32 v147, v147, v148
        v_mul_u32_u24 v147, {FROW}, v147
        v_add_u32 v147, v147, v146
        v_mul_u32_u24 v148, {FROW}, v148
        v_add_u32 v148, v148, v146
        v_bfe_u32 v149, v1, 1, 3
        v_cmp_eq_u32 s[36:37], s14, v149
        v_cmp_gt_u32 vcc, 32, v1
        s_and_b64 s[36:37], s[36:37], vcc
        s_lshr_b32 s20, s2, 3
        s_and_b32 s20, s20, 3
        s_mul_i32 s20, s20, {FREP}
        s_add_u32 s20, s20, {F1A_OFF}
        s_mov_b32 s45, s20
        """)
        if part:
            A(f"""
            v_and_b32 v149, 15, v1
            s_mul_i32 s21, s14, {2 if part == 1 else 0}
            v_subrev_u32 v149, s21, v149
            v_and_b32 v149, 15, v149
            v_cmp_gt_u32 s[46:47], 4, v149
            """)
        else:
            A("s_mov_b64 s[46:47], -1")
        A(f"""
        s_mov_b32 s34, 0x40000
        """)
        def chk(a, b):
            return f"""
            v_cmp_eq_u32 vcc, s35, v{a}
            v_cmp_eq_u32 s[38:39], s35, v{b}
            s_orn2_b64 vcc, vcc, s[46:47]
            s_orn2_b64 s[38:39], s[38:39], s[36:37]
            s_and_b64 vcc, vcc, s[38:39]
            s_cmp_eq_u64 vcc, exec
            s_cbranch_scc1 Lattn_polled
            """
        def ld(a, b):
            return f"""
            buffer_load_dword v{a}, v147, s[8:11], s45 offen sc1
            buffer_load_dword v{b}, v148, s[8:11], s45 offen sc1
            """
        if pp:
            A(ld(150, 151))
            A(f"s_sleep {pp}")
            A("Lattn_poll:")
            A(ld(154, 155))
            A("s_waitcnt vmcnt(2)")
            A(chk(150, 151))
            A(ld(150, 151))
            A("s_waitcnt vmcnt(2)")
            A(chk(154, 155))
            A("s_sub_u32 s34, s34, 1")
            A("s_cbranch_scc0 Lattn_poll")
        else:
            A("Lattn_poll:")
            A(ld(150, 151))
            A("s_waitcnt vmcnt(0)")
            if mprof == 1:
                A("s_cmp_eq_u32 s34, 0x40000")
                A("s_cbranch_scc0 Lattn_np")
                wl_stamp(A, 160, 8)
                A("Lattn_np:")
            A(chk(150, 151))
            A("s_sleep 2")
            A("s_sub_u32 s34, s34, 1")
            A("s_cbranch_scc0 Lattn_poll")
        A(f"""
Lattn_polled:
        """)
        if pp: A("s_nop 0")
        if mprof: wl_stamp(A, 160, 2)
        if mprof == 1:
            A("s_sub_u32 s34, 0x40000, s34")
            A("v_writelane_b32 v160, s34, 9")
        lds_set(A, FLAG + LF_GO, 1, tmp=(146, 149))
        A("s_branch Lattn_go")
        A("Lattn_wgo:")
        lds_spin(A, FLAG + LF_GO, 1, 1, tmp=(146, 147), sleep=1)
        A("Lattn_go:")
        if mprof and not dbg2: wl_stamp(A, 160, 3)
        first_loads()
    A(f"""
    s_waitcnt vmcnt({0 if fused else 3}) lgkmcnt(0)
    """)
    if fused:
        for grp in dma_groups("s25", SLOT):
            for l in grp: A(l)
        if part:
            A("""
            s_cmp_eq_u32 s12, 4
            s_cbranch_scc0 Lattn_noap
            buffer_load_dword v150, v147, s[8:11], s45 offen sc1
Lattn_noap:
            """)
        A(f"v_mov_b32 v{FL}, 1")
        A(f"ds_write_b32 v13, v{FL}")
        lds_spin(A, FLAG + LF_FULL, 1, 8, tmp=(FL, FL + 1), sleep=0, cnt="s34")
        if mprof and not dbg2: wl_stamp(A, 160, 4)
    else:
        A("s_barrier")
    KTr = KT4 if tm else KT
    if tm:
        A(f"""
        v_cndmask_b32 v{QA4}, 0, v{QT}, s[28:29]
        v_cndmask_b32 v{QA4+1}, 0, v{QT+1}, s[28:29]
        v_mov_b32 v{QA4+2}, 0
        v_mov_b32 v{QA4+3}, 0
        v_cndmask_b32 v{QB4}, v{QT}, 0, s[28:29]
        v_cndmask_b32 v{QB4+1}, v{QT+1}, 0, s[28:29]
        v_mov_b32 v{QB4+2}, 0
        v_mov_b32 v{QB4+3}, 0
        v_mov_b32 v{KT4+2}, 0
        v_mov_b32 v{KT4+3}, 0
        """)
    A(f"""
    ds_read_b128 v[{KF[0]}:{KF[0]+3}], v2
    ds_read_b128 v[{KF[1]}:{KF[1]+3}], v2 offset:1280
    ds_read_b64 v[{KTr}:{KTr+1}], v3
    ds_read_b128 v[{V0}:{V0+3}], v4
    s_waitcnt lgkmcnt(0)
    {mf(X0, KF[0], QM, None)}
    {mf(X0+16, KF[1], QM, None)}
    """)
    if tm:
        A(mf(X0, KT4, QA4, X0)); A(mf(X0+16, KT4, QB4, X0+16)); A("s_nop 15")
    else:
        A("s_nop 11"); A(mf2b(X0, KT, QT, X0)); A("s_nop 15"); A("s_nop 7")
    A(f"v_max3_f32 v9, v{X0}, v{X0+1}, v{X0+2}")
    for i in range(3, 31, 2):
        A(f"v_max3_f32 v9, v9, v{X0+i}, v{X0+i+1}")
    A(f"v_max_f32 v9, v9, v{X0+31}")
    A(f"""
    v_mov_b32 v10, v9
    s_nop 1
    v_permlane32_swap_b32 v9, v10
    s_nop 1
    v_max_f32 v9, v9, v10
    """)
    A("v_sub_f32 v14, 0, v9")
    A("v_mov_b32 v15, v14")
    for i in range(16): A(f"v_pk_add_f32 v[{X0+2*i}:{X0+2*i+1}], v[{X0+2*i}:{X0+2*i+1}], v[14:15]")
    for i in range(16): A(f"v_mov_b32 v{C_+i}, v14")
    A(f"""
    ds_read_b128 v[{KF[0]}:{KF[0]+3}], v2 offset:{2*1280}
    ds_read_b128 v[{KF[1]}:{KF[1]+3}], v2 offset:{3*1280}
    ds_read_b64 v[{KTr}:{KTr+1}], v3 offset:{2*1280}
    s_mov_b32 s18, 0
    s_mov_b32 s19, {SLOT}
    s_mov_b32 s27, {2*SLOT}
    s_setprio {pa}
    s_cmp_ge_u32 s12, 4
    s_cbranch_scc0 Lk2_noprio
    s_setprio {pb}
Lk2_noprio:
    """)
    if prof:
        A("s_memtime s[90:91]")
        A("s_waitcnt lgkmcnt(0)")
        A("s_sub_u32 s90, s90, s92")
    A0 = A
    class F:
        def __call__(self, l):
            for x in l.strip("\n").split("\n"):
                ls = x.strip()
                if exp_mode == 2 and ls.startswith("v_mfma"): continue
                if exp_mode == 3 and (ls.startswith("v_exp") or ls.startswith("v_cvt")): continue
                if exp_mode == 4 and (ls.startswith("ds_read_b128") or ls.startswith("ds_read_b64")): continue
                if exp_mode == 5 and ls.startswith("v_mfma_f32_32x32x4"): continue
                if exp_mode == 6 and (ls.startswith("ds_read_b128") or ls.startswith("ds_read_b64") or ls.startswith("v_mfma")): continue
                if exp_mode == 7 and ls.startswith("buffer_load"): continue
                A0(x)
        def label(self, b): return A0.label(b)
    if lstamp: wl_stamp(A, 150, 0)
    if mprof: wl_stamp(A, 160, 5)
    A("Lk2_loop:")
    A = F()
    def check(reg, need_sgpr, tag):
        lab = A.label(tag)
        off = 32 if tag == "free" else 0
        A(f"""
        v_cmp_le_u32 vcc, {need_sgpr}, v{reg}
        s_cmp_eq_u64 vcc, exec
        s_cbranch_scc1 {lab}
        s_mov_b32 s34, 0x40000
        {lab}_s:
        s_sub_u32 s34, s34, 1
        s_cbranch_scc1 {lab}
        s_sleep 1
        ds_read_b32 v{reg}, v12 offset:{off}
        s_waitcnt lgkmcnt(0)
        v_cmp_le_u32 vcc, {need_sgpr}, v{reg}
        s_cmp_eq_u64 vcc, exec
        s_cbranch_scc0 {lab}_s
        {lab}:
        """)
    def tile(sc, first, pr, t):
        sn = X_[(pr + 1) & 1]
        kt = (2*pr + 4) & 7
        E = lambda i: f"v_exp_f32 v{sc+i}, v{sc+i}"
        C = lambda p, a: f"v_cvt_pk_bf16_f32 v{P_+p}, v{sc+a}, v{sc+a+1}"
        pre = []
        if desc == 1 and t % 2 == 0: A(f"s_setprio {3 - t // 2}")
        if desc == 2 and t % 2 == 0: A(f"s_setprio {max(1, 3 - t // 2) if t < 6 else 1}")
        if desc == 3: A(f"s_setprio {3 - (t % 4)}")
        if desc in (4, 5): A(f"s_setprio {3 - 2*(t % 2)}")
        if desc == 6: A(f"s_setprio {[3,3,2,2,1,1,0,0][t]}") if t % 2 == 0 else None
        if desc == 7: A(f"s_setprio {[3,2,1,0,0,1,2,3][t]}")
        if desc == 8: A(f"s_setprio {[3,2,2,1,1,0,0,0][t]}")
        A("s_waitcnt lgkmcnt(0)")
        if t == 0:
            A(f"""
            v_mov_b32 v{FL+1}, s18
            ds_write_b32 v13, v{FL+1} offset:32
            """)
        if t == 2:
            A(f"""
            s_waitcnt vmcnt(0)
            s_add_u32 s31, s18, 2
            v_mov_b32 v{FL+1}, s31
            ds_write_b32 v13, v{FL+1}
            """)
        if t == 4:
            nofull = A.label("nofull")
            A("s_cmp_lt_u32 s18, 7")
            A(f"s_cbranch_scc0 {nofull}")
            A("s_add_u32 s31, s18, 2")
            check(FL + 1, "s31", "full")
            A(f"{nofull}:")
            A("v_add_u32 v2, s19, v5")
            A("v_add_u32 v3, s19, v6")
        if first:
            A(mf(sn, KF[0], QM, C_))
            A(f"ds_read_b128 v[{KF[0]}:{KF[0]+3}], v2 offset:{kt*1280}")
        elif tm:
            A(mf(sn, KT4, QA4, sn))
        else:
            A(mf2b(sn, KT, QT, sn))
            A(f"ds_read_b64 v[{KT}:{KT+1}], v3 offset:{kt*1280}")
        if t == 1: A(f"ds_read_b32 v{FL}, v12 offset:32")
        if t == 3: A(f"ds_read_b32 v{FL+1}, v12")
        for i in range(4): A(E(i))
        A(mf(O_, V1, P_+4, O_))
        A(f"ds_read_b128 v[{V1}:{V1+3}], v4 offset:{t*VT + 2*VH}")
        if t == 7:
            A("v_add_u32 v4, s19, v7")
        dg = []
        if t == 2:
            skip = A.label("k2skip")
            A(f"s_cmp_lt_u32 s18, 6")
            A(f"s_cbranch_scc0 {skip}")
            if fused and part:
                ga = A.label("goall")
                A(f"""
                s_cmp_eq_u32 s18, 0
                s_cbranch_scc0 {ga}
                s_cmp_eq_u32 s12, 4
                s_cbranch_scc0 {ga}_w
                s_mov_b32 s34, 0x40000
                {ga}_p:
                v_cmp_eq_u32 vcc, s35, v150
                s_cmp_eq_u64 vcc, exec
                s_cbranch_scc1 {ga}_s
                buffer_load_dword v150, v147, s[8:11], s45 offen sc1
                s_waitcnt vmcnt(0)
                s_sub_u32 s34, s34, 1
                s_cbranch_scc0 {ga}_p
                {ga}_s:
                v_mov_b32 v150, {FLAG + LF_GOALL}
                v_mov_b32 v151, 1
                ds_write_b32 v150, v151
                s_branch {ga}
                {ga}_w:
                """)
                lds_spin(A, FLAG + LF_GOALL, 1, 1, tmp=(150, 151), sleep=1, cnt="s34")
                A(f"{ga}:")
            check(FL, "s18", "free")
            A("s_add_u32 s30, s27, s25")
            for grp in dma_groups("s30"):
                for l in grp: A(l)
            A(f"{skip}:")
        A(C(0, 0)); A(E(4)); A(C(1, 2))
        for i in (5, 6, 7): A(E(i))
        if desc == 4: A(f"s_setprio {2 - 2*(t % 2)}")
        if first:
            A(mf(sn + 16, KF[1], QM, C_))
            A(f"ds_read_b128 v[{KF[1]}:{KF[1]+3}], v2 offset:{(kt+1)*1280}")
        elif tm:
            A(mf(sn + 16, KT4, QB4, sn + 16))
            A(f"ds_read_b64 v[{KT4}:{KT4+1}], v3 offset:{kt*1280}")
        A(C(2, 4)); A(E(8)); A(C(3, 6)); A(E(9)); A(E(10))
        A(mf(O_, V0, P_, O_))
        A(f"ds_read_b128 v[{V0}:{V0+3}], v4 offset:{((t+1)&7)*VT}")
        for i in (11, 12, 13): A(E(i))
        A(C(4, 8)); A(E(14)); A(C(5, 10)); A(E(15)); A(C(6, 12)); A(C(7, 14))
    for pr in range(4):
        cur = X_[pr & 1]
        tile(cur, True, pr, 2*pr)
        tile(cur + 16, False, pr, 2*pr + 1)
    A = A0
    A(f"""
    s_mov_b32 s19, s27
    s_add_u32 s27, s27, {SLOT}
    s_cmp_ge_u32 s27, {3*SLOT}
    s_cselect_b32 s27, 0, s27
    s_add_u32 s18, s18, 1
    s_cmp_lt_u32 s18, 8
    s_cbranch_scc1 Lk2_loop
    """)
    if lstamp: wl_stamp(A, 150, 1)
    if mprof: wl_stamp(A, 160, 6)
    A(f"""
    s_waitcnt lgkmcnt(0)
    {mf(O_, V1, P_+4, O_)}
    s_mov_b32 s31, 0
    s_nop 15
Lk2_fin:
    v_mov_b32 v9, v{O_+8}
    v_mov_b32 v10, v{O_+8}
    s_nop 1
    v_permlane32_swap_b32 v9, v10
    s_nop 1
    v_mul_f32 v11, 0, v{O_}
    """)
    for i in range(1, 8): A(f"v_fma_f32 v11, v{O_+i}, 0, v11")
    A(f"v_mul_f32 v14, 0, v{O_+8}")
    for i in range(9, 12): A(f"v_fma_f32 v14, v{O_+i}, 0, v14")
    A(f"""
    v_cndmask_b32 v14, 0, v14, s[28:29]
    v_add_f32 v11, v11, v14
    v_add_f32 v11, v11, v10
    v_mov_b32 v15, 0x53800000              ; 2^40
    v_cmp_nlt_f32 vcc, v11, v15            ; !(l < 2^40)
    s_cmp_eq_u32 s31, 0
    s_cbranch_scc0 Lk2_store
    {"" if nofb else "s_cbranch_vccnz Lk2_fallback"}
Lk2_store:
    v_rcp_f32 v10, v10
    s_mul_i32 s21, s15, 40960
    s_add_u32 s21, s21, {OF_OFF}
    v_mov_b32 v11, v10
    """)
    for p in range(6):
        A(f"v_pk_mul_f32 v[{O_+2*p}:{O_+2*p+1}], v[{O_+2*p}:{O_+2*p+1}], v[10:11]")
    for p in range(6):
        A(f"v_cvt_pk_bf16_f32 v{16+p}, v{O_+2*p}, v{O_+2*p+1}")
    A(f"""
    buffer_store_dwordx4 v[16:19], v152, s[8:11], s21 offen sc1
    s_mov_b64 exec, s[28:29]
    buffer_store_dwordx2 v[20:21], v153, s[8:11], s21 offen sc1
    """)
    A("s_mov_b64 exec, -1")
    A("s_waitcnt vmcnt(0)")
    A("s_barrier")
    A(f"""
    s_cmp_eq_u32 s12, 0
    s_cbranch_scc0 Lk2_nopub
    s_mul_i32 s20, s14, {FROW}
    s_lshl_b32 s21, s13, 2
    s_add_u32 s20, s20, s21
    s_add_u32 s20, s20, {OFLAG_OFF}
    """)
    if fused:
        get_tag(A, FLAG + LF_TAG, "s21", tmp=(16, 17))
        A("v_mov_b32 v16, s21")
    else:
        A("v_mov_b32 v16, 1")
    A(f"""
    v_mov_b32 v17, 0
    s_mov_b64 exec, 1
    buffer_store_dword v16, v17, s[8:11], s20 offen sc1
    s_mov_b64 exec, -1
Lk2_nopub:
    """)
    if prof:
        A("s_mov_b64 exec, -1")
        if lstamp: wl_dump(A, 150, 1, 8, 12, 21)
        prof_end(A, 1, 8, 12, tmpv=(16, 17, 18, 19, 20), extra="s90")
    if tl: tl2_record(A, 1, 8, 12)
    if mprof == 2:
        wl_stamp(A, 160, 7)
        dbg_dump_lanes(A, 160, 1, 8, 37, 12, 1)
    elif mprof:
        wl_stamp(A, 160, 7)
        wl_dump(A, 160, 1, 8, 12, 21)
        A("s_mov_b32 s90, 0")
        prof_end(A, 1, 8, 12, tmpv=(16, 17, 18, 19, 20), extra="s90")
    A("s_endpgm")

    s = X0
    A(f"""
Lk2_fallback:
    s_mov_b32 s31, 1
    v_and_b32 v9, 31, v1
    v_lshlrev_b32 v11, 3, v9
    v_add_u32 v11, 1024, v11
    v_mov_b32 v14, 0xff800000
    s_mov_b32 s18, 0
Lk2_fb1:
    s_lshr_b32 s20, s18, 3
    s_mul_i32 s20, s20, {CH}
    s_and_b32 s21, s18, 7
    s_mul_i32 s21, s21, 1280
    s_add_u32 s20, s20, s21
    s_add_u32 s20, s20, s16
    buffer_load_dwordx4 v[{KF[0]}:{KF[0]+3}], v8, s[8:11], s20 offen
    buffer_load_dwordx2 v[{KT}:{KT+1}], v11, s[8:11], s20 offen
    s_waitcnt vmcnt(0)
    {mf(s, KF[0], QM, None)}
    {mf(s+16, KF[0], QM, None)}
    s_nop 11
    {mf2b(s, KT, QT, s)}
    s_nop 15
    s_nop 7
    """)
    for i in range(0, 16, 2):
        A(f"v_max3_f32 v14, v14, v{s+i}, v{s+i+1}")
    A(f"""
    s_add_u32 s18, s18, 1
    s_cmp_lt_u32 s18, 64
    s_cbranch_scc1 Lk2_fb1
    v_mov_b32 v15, v14
    s_nop 1
    v_permlane32_swap_b32 v14, v15
    s_nop 1
    v_max_f32 v14, v14, v15
    """)
    for i in range(16): A(f"v_mov_b32 v{O_+i}, 0")
    A(f"""
    s_mov_b32 s18, 0
Lk2_fb2:
    s_lshr_b32 s20, s18, 3
    s_mul_i32 s20, s20, {CH}
    s_and_b32 s21, s18, 7
    s_mul_i32 s22, s21, {VT}
    s_add_u32 s22, s22, s20
    s_add_u32 s22, s22, s16
    s_mul_i32 s21, s21, 1280
    s_add_u32 s20, s20, s21
    s_add_u32 s20, s20, s16
    buffer_load_dwordx4 v[{KF[0]}:{KF[0]+3}], v8, s[8:11], s20 offen
    buffer_load_dwordx2 v[{KT}:{KT+1}], v11, s[8:11], s20 offen
    buffer_load_dwordx4 v[{V0}:{V0+3}], v7, s[8:11], s22 offen
    buffer_load_dwordx4 v[{V1}:{V1+3}], v7, s[8:11], s22 offen offset:{2*VH}
    s_waitcnt vmcnt(0)
    {mf(s, KF[0], QM, None)}
    {mf(s+16, KF[0], QM, None)}
    s_nop 11
    {mf2b(s, KT, QT, s)}
    s_nop 15
    s_nop 7
    """)
    for i in range(16): A(f"v_sub_f32 v{s+i}, v{s+i}, v14")
    for i in range(16): A(f"v_exp_f32 v{s+i}, v{s+i}")
    A("s_nop 0")
    for i in range(8): A(f"v_cvt_pk_bf16_f32 v{P_+i}, v{s+2*i}, v{s+2*i+1}")
    A(f"""
    s_nop 1
    {mf(O_, V0, P_, O_)}
    {mf(O_, V1, P_+4, O_)}
    s_add_u32 s18, s18, 1
    s_cmp_lt_u32 s18, 64
    s_cbranch_scc1 Lk2_fb2
    s_nop 15
    s_branch Lk2_fin
Lk2_end:
    s_endpgm
    """)
    if shadow: gen_shadow(A, (mprof if mprof else prof), shprio, SH_BASE, FLAG, NA=na, fused=fused, outf=outf, shexp=shexp, v2=shv2, ppo=ppo)
    else: A("Lk2_shadow:\ns_barrier\ns_barrier\ns_endpgm")
    if fused: return A.text()
    return A.text(), kdesc(NAME, 168), f"; @launch kernel={NAME} grid=(256,1,1) block=(768,1,1) lds={LDS_BYTES}"
```

```python
from asm import *
from common import *

ACC_B = 8
ACC_A = 28
WF = [48, 68]
BF = 88
PH = 20480
NPH = 17

def gen_shadow(A, prof, shprio, SH_BASE, FLAG, scl=" sc1", POLL_SLEEP=4, NA=8, fused=False, outf=0, shexp=0, v2=0, ppo=0):
    OUTF = ['', ' sc1', ' nt', ' sc0 sc1'][outf]
    A(f"""
Lk2_shadow:
    """)
    if prof and fused: stamp(A, 10)
    A(f"""
    s_setprio {shprio}
    s_load_dwordx2 s[30:31], s[0:1], 64    ; out
    s_sub_u32 s40, s12, 8                  ; w
    s_lshr_b32 s41, s13, 3
    s_lshl_b32 s44, s14, 2
    s_add_u32 s44, s44, s41                ; rbk
    s_and_b32 s43, s13, 7                  ; cg8
    s_lshl_b32 s46, s44, 2
    s_add_u32 s46, s46, s40                ; T16
    s_mul_i32 s47, s40, 5120
    s_mul_i32 s49, s43, {WF_CG}
    s_add_u32 s49, s49, s47
    s_add_u32 s49, s49, {WF_OFF}
    s_add_u32 s47, s47, {SH_BASE}
    s_mul_i32 s51, s46, {48*1024}
    s_add_u32 s51, s51, {ACT_OFF}
    s_mul_i32 s52, s46, 20480
    s_add_u32 s52, s52, {OF_OFF}
    v_lshlrev_b32 v2, 4, v1                ; lane*16
    v_add_u32 v3, {SH_BASE}, v2
    v_add_u32 v0, {SH_BASE + 3*PH}, v2
    v_and_b32 v4, 3, v1
    v_lshlrev_b32 v4, 2, v4
    v_add_u32 v4, {FLAG + 64}, v4          ; prog[lane&3]
    s_lshl_b32 s53, s40, 2
    s_add_u32 s53, s53, {FLAG + 64}
    v_mov_b32 v5, s53
    s_waitcnt lgkmcnt(0)
    """)
    srd_ws(A, 8, 4, WS_RECORDS)
    srd(A, 24, 30, OUT_BYTES)
    for i in range(40): A(f"v_mov_b32 v{ACC_B+i}, 0")
    if fused:
        A("s_cmp_eq_u32 s40, 0")
        A("s_cbranch_scc0 Lsh_wgo2")
        lds_spin(A, FLAG + LF_RD, 1, 4, tmp=(6, 7), sleep=2)
        get_tag(A, FLAG + LF_TAG, "s62", tmp=(6, 7))
        A(f"""
        s_and_b32 s54, s2, 7
        s_lshr_b32 s55, s2, 3
        s_and_b32 s56, s54, 1
        s_lshl_b32 s56, s56, 3
        s_and_b32 s57, s55, 7
        s_add_u32 s56, s56, s57                ; rb
        s_lshr_b32 s54, s54, 1
        s_lshl_b32 s54, s54, 2
        s_lshr_b32 s55, s55, 3
        s_add_u32 s54, s54, s55                ; cgp
        s_mul_i32 s56, s56, {FROW}
        s_lshl_b32 s54, s54, 2
        s_add_u32 s54, s54, s56
        s_add_u32 s54, s54, {F1B_OFF}
        v_mul_u32_u24 v6, {FREP}, v1
        v_mov_b32 v7, s62
        s_mov_b64 exec, 0xf
        buffer_store_dword v7, v6, s[8:11], s54 offen sc1
        s_mov_b64 exec, -1
        """)
        poll256(A, 8, F1W_OFF, "s62", tmp=(6, 7, 48, 49, 50, 51))
        A(f"""
        s_lshr_b32 s54, s44, 1
        s_mul_i32 s54, s54, {FROW}
        s_lshr_b32 s55, s2, 3
        s_and_b32 s55, s55, 3
        s_mul_i32 s55, s55, {FREP}
        s_add_u32 s54, s54, s55
        s_add_u32 s54, s54, {F1B_OFF}
        v_and_b32 v6, 15, v1
        v_lshlrev_b32 v6, 2, v6
        s_mov_b32 s60, 0x40000
Lsh_pb:
        buffer_load_dword v7, v6, s[8:11], s54 offen sc1
        s_waitcnt vmcnt(0)
        v_cmp_eq_u32 vcc, s62, v7
        s_cmp_eq_u64 vcc, exec
        s_cbranch_scc1 Lsh_pb_ok
        s_sleep 2
        s_sub_u32 s60, s60, 1
        s_cbranch_scc0 Lsh_pb
Lsh_pb_ok:
        """)
        lds_set(A, FLAG + LF_GO2, 1, tmp=(6, 7))
        A("s_branch Lsh_go2")
        A("Lsh_wgo2:")
        lds_spin(A, FLAG + LF_GO2, 1, 1, tmp=(6, 7), sleep=4)
        A("Lsh_go2:")
        if prof: stamp(A, 9)
    else:
        A("s_barrier")
    def issue(q):
        g = []
        if q >= NPH: return g
        sl = q % 4
        for j in range(5):
            g.append([f"s_add_u32 m0, s47, {sl*PH + j*1024}", f"s_add_u32 s55, s49, {q*PH + j*1024}",
                      f"buffer_load_dwordx4 v2, s[8:11], s55 offen lds"])
        if q < 12:
            for k in range(4):
                b = BF + 16*sl + 4*k
                g.append([f"s_add_u32 s55, s51, {(4*q + k)*1024}", f"buffer_load_dwordx4 v[{b}:{b+3}], v2, s[8:11], s55 offen"])
        return g
    def nops(q):
        return 0 if q >= NPH else (9 if q < 12 else 5)
    def emit(g):
        for grp in g:
            for l in grp: A(l)
    def sync(p, n):
        lab = A.label("shs")
        A(f"""
        s_waitcnt vmcnt({n}) lgkmcnt(0)
        v_mov_b32 v6, {p + 1}
        ds_write_b32 v5, v6
        s_mov_b32 s60, 0x40000
        {lab}:
        ds_read_b32 v7, v4
        s_waitcnt lgkmcnt(0)
        v_cmp_le_u32 vcc, {p + 1}, v7
        s_cmp_eq_u64 vcc, exec
        s_cbranch_scc1 {lab}_ok
        s_sleep 2
        s_sub_u32 s60, s60, 1
        s_cbranch_scc0 {lab}
        {lab}_ok:
        """)
    def compute(p, g):
        sl = p % 4
        acc = ACC_B if p < 12 else ACC_A
        base, so = ("v3", sl*PH) if sl < 3 else ("v0", 0)
        def rd(k, fs):
            return [f"ds_read_b128 v[{WF[fs]+4*ct}:{WF[fs]+4*ct+3}], {base} offset:{so + k*5120 + ct*1024}" for ct in range(5)]
        def bfrag(k):
            return (BF + 16*sl + 4*k) if p < 12 else (BF + 4*(4*(p - 12) + k))
        per = (len(g) + 3) // 4
        noread = shexp and p < 12
        if not noread:
            for l in rd(0, 0): A(l)
        for k in range(4):
            if noread: pass
            elif k < 3:
                for l in rd(k + 1, (k + 1) & 1): A(l)
                A("s_waitcnt lgkmcnt(5)")
            else:
                A("s_waitcnt lgkmcnt(0)")
            b = bfrag(k)
            for ct in range(5 if not (shexp == 2 and p < 12) else 3):
                A(f"v_mfma_f32_16x16x32_bf16 v[{acc+4*ct}:{acc+4*ct+3}], v[{WF[k&1]+4*ct}:{WF[k&1]+4*ct+3}], v[{b}:{b+3}], v[{acc+4*ct}:{acc+4*ct+3}]")
            emit(g[k*per:(k+1)*per])
    if not v2:
        for q in range(3): emit(issue(q))
        for p in range(NA):
            if shexp: A(f"s_waitcnt vmcnt({nops(p + 1) + nops(p + 2)})")
            else: sync(p, nops(p + 1) + nops(p + 2))
            compute(p, issue(p + 3))
        if prof: stamp(A, 0)
        A("s_waitcnt lgkmcnt(0)")
        A("s_barrier")
        if prof: stamp(A, 1)
        A("s_setprio 3")
        for p in range(NA, 12):
            A(f"s_waitcnt vmcnt({nops(p + 1) + nops(p + 2)}) lgkmcnt(0)")
            A("s_barrier")
            compute(p, issue(p + 3))
    else:
        AC = 8; ST = [88, 124]
        A(f"""
        s_mul_i32 s54, s43, {WF_CG}
        s_mul_i32 s55, s40, 5120
        s_add_u32 s54, s54, s55
        s_add_u32 s54, s54, {WF_OFF}
        s_lshl_b32 s55, s44, 2
        s_mul_i32 s55, s55, {48*1024}
        s_lshl_b32 s56, s40, 10
        s_add_u32 s55, s55, s56
        s_add_u32 s55, s55, {ACT_OFF}
        """)
        for i in range(80): A(f"v_mov_b32 v{AC+i}, 0")
        def ld(j):
            b = ST[j & 1]
            g = []
            for ct in range(5):
                g.append([f"s_add_u32 s57, s54, {j*4*5120 + ct*1024}", f"buffer_load_dwordx4 v[{b+4*ct}:{b+4*ct+3}], v2, s[8:11], s57 offen"])
            for t in range(4):
                g.append([f"s_add_u32 s57, s55, {j*4*1024 + t*48*1024}", f"buffer_load_dwordx4 v[{b+20+4*t}:{b+20+4*t+3}], v2, s[8:11], s57 offen"])
            return g
        emit(ld(0))
        for j in range(12):
            b = ST[j & 1]
            g = ld(j + 1) if j + 1 < 12 else []
            emit(g)
            A(f"s_waitcnt vmcnt({9 if j + 1 < 12 else 0})")
            for t in range(4):
                for ct in range(5):
                    d = AC + 4*(5*t + ct)
                    A(f"v_mfma_f32_16x16x32_bf16 v[{d}:{d+3}], v[{b+4*ct}:{b+4*ct+3}], v[{b+20+4*t}:{b+20+4*t+3}], v[{d}:{d+3}]")
        if prof: stamp(A, 0)
        A("s_nop 7")
        A(f"s_mul_i32 s56, s40, {PH}")
        A(f"v_add_u32 v6, s56, v3")
        for t in range(4):
            for ct in range(5):
                d = AC + 4*(5*t + ct)
                A(f"ds_write_b128 v6, v[{d}:{d+3}] offset:{(5*t + ct)*1024}")
        def flagsync(val):
            lab = A.label("v2s")
            A(f"""
            s_waitcnt lgkmcnt(0)
            v_mov_b32 v7, {val}
            ds_write_b32 v5, v7
            s_mov_b32 s60, 0x100000
            {lab}:
            ds_read_b32 v7, v4
            s_waitcnt lgkmcnt(0)
            v_cmp_le_u32 vcc, {val}, v7
            s_cmp_eq_u64 vcc, exec
            s_cbranch_scc1 {lab}_ok
            s_sleep 1
            s_sub_u32 s60, s60, 1
            s_cbranch_scc0 {lab}
            {lab}_ok:
            """)
        flagsync(1)
        A(f"s_mul_i32 s56, s40, 5120")
        A(f"v_add_u32 v6, s56, v3")
        A(f"v_add_u32 v7, {3*PH}, v6")
        for p in range(4):
            base = "v6" if p < 3 else "v7"
            off = p*PH if p < 3 else 0
            for ct in range(5):
                A(f"ds_read_b128 v[{88+20*p+4*ct}:{88+20*p+4*ct+3}], {base} offset:{off + ct*1024}")
        A("s_waitcnt lgkmcnt(0)")
        for i in range(20):
            A(f"v_add_f32 v{88+i}, v{88+i}, v{108+i}")
            A(f"v_add_f32 v{128+i}, v{128+i}, v{148+i}")
        for i in range(20):
            A(f"v_add_f32 v{ACC_B+i}, v{88+i}, v{128+i}")
        for i in range(20): A(f"v_mov_b32 v{ACC_A+i}, 0")
        flagsync(2)
        for q in range(12, 16):
            for j in range(5):
                A(f"s_add_u32 m0, s47, {(q % 4)*PH + j*1024}")
                A(f"s_add_u32 s55, s49, {q*PH + j*1024}")
                A(f"buffer_load_dwordx4 v2, s[8:11], s55 offen lds")
        A("s_waitcnt vmcnt(0) lgkmcnt(0)")
        A("s_barrier")
        if prof: stamp(A, 1)
        A("s_setprio 3")
    if prof: stamp(A, 8)
    A(f"""
    s_cmp_eq_u32 s40, 0
    s_cbranch_scc1 Lsh_poller
    """)
    A("s_sub_u32 s54, s40, 1")
    A(f"s_mul_i32 s61, s43, {WF_CG}")
    A(f"s_add_u32 s61, s61, {WF_OFF + (16 if v2 else 15)*PH}")
    ntot = 20 if v2 else 40
    for j in range((ntot + 2) // 3):
        lab = None
        if 3*j + 2 >= ntot:
            lab = A.label("w13")
            A(f"s_add_u32 s55, s54, {3*j}")
            A(f"s_cmp_lt_u32 s55, {ntot}")
            A(f"s_cbranch_scc0 {lab}")
        A(f"s_add_u32 s55, s54, {3*j}")
        A("s_lshl_b32 s55, s55, 10")
        A("s_mov_b32 m0, s55")
        A("s_add_u32 s55, s55, s61")
        A(f"buffer_load_dwordx4 v2, s[8:11], s55 offen lds")
        if lab: A(f"{lab}:")
    A(f"""
    s_branch Lsh_g
Lsh_poller:
    s_mul_i32 s56, s14, {FROW}
    s_add_u32 s56, s56, {OFLAG_OFF}
    v_and_b32 v4, 31, v1
    v_lshlrev_b32 v4, 2, v4
    s_mov_b32 s60, 0x40000
    """)
    TG = 's62' if fused else '1'
    if ppo:
        A(f"""
        buffer_load_dword v166, v4, s[8:11], s56 offen sc1
        s_sleep {ppo}
Lsh_poll:
        buffer_load_dword v167, v4, s[8:11], s56 offen sc1
        s_waitcnt vmcnt(1)
        v_cmp_eq_u32 vcc, {TG}, v166
        s_cmp_eq_u64 vcc, exec
        s_cbranch_scc1 Lsh_g0
        buffer_load_dword v166, v4, s[8:11], s56 offen sc1
        s_waitcnt vmcnt(1)
        v_cmp_eq_u32 vcc, {TG}, v167
        s_cmp_eq_u64 vcc, exec
        s_cbranch_scc1 Lsh_g0
        s_sub_u32 s60, s60, 1
        s_cbranch_scc0 Lsh_poll
Lsh_g0:
        """)
    else:
        A(f"""
Lsh_poll:
        buffer_load_dword v7, v4, s[8:11], s56 offen sc1
        s_waitcnt vmcnt(0)
        v_cmp_eq_u32 vcc, {TG}, v7
        s_cmp_eq_u64 vcc, exec
        s_cbranch_scc1 Lsh_g
        s_sleep {POLL_SLEEP}
        s_sub_u32 s60, s60, 1
        s_cbranch_scc0 Lsh_poll
        """)
    A(f"""
Lsh_g:
    """)
    if prof:
        stamp(A, 7)
    A(f"""
    v_and_b32 v49, 15, v1
    s_lshl_b32 s45, s46, 4
    v_add_u32 v49, s45, v49
    v_lshlrev_b32 v50, 2, v49
    s_mov_b32 s58, {G_OFF}
    buffer_load_dword v6, v50, s[8:11], s58 offen
    v_lshrrev_b32 v48, 4, v1               ; lane>>4
    v_mul_u32_u24 v7, 1280, v49
    v_lshl_add_u32 v5, v48, 3, v7
    """)
    if ppo:
        A("""
        s_cmp_eq_u32 s40, 0
        s_cbranch_scc1 Lsh_nw
        s_waitcnt vmcnt(1) lgkmcnt(0)
Lsh_nw:
        s_barrier
        """)
    else:
        A("s_waitcnt vmcnt(1) lgkmcnt(0)")
        A("s_barrier")
    A(f"""
    """)
    if prof: stamp(A, 2)
    def oload(k):
        return [f"s_add_u32 s55, s52, {k*1024}", f"buffer_load_dwordx4 v[{BF+4*k}:{BF+4*k+3}], v2, s[8:11], s55 offen{scl}"]
    PRE = 8
    for k in range(PRE):
        for l in oload(k): A(l)
    if prof: stamp(A, 3)
    def wrd(ks, fs):
        p = 12 + ks // 4; k = ks % 4
        if v2:
            if p < 15: base, so = "v3", (p % 4)*PH
            elif p == 15: base, so = "v0", 0
            else: base, so = "v2", 0
        elif p < 15: base, so = "v3", (p % 4)*PH
        else: base, so = "v2", (p - 15)*PH
        return [f"ds_read_b128 v[{WF[fs]+4*ct}:{WF[fs]+4*ct+3}], {base} offset:{so + k*5120 + ct*1024}" for ct in range(5)]
    for l in wrd(0, 0): A(l)
    for ks in range(20):
        if ks + PRE < 20:
            for l in oload(ks + PRE): A(l)
        issued = min(20, ks + PRE + 1)
        if ks < 19:
            for l in wrd(ks + 1, (ks + 1) & 1): A(l)
            A(f"s_waitcnt vmcnt({issued - 1 - ks}) lgkmcnt(5)")
        else:
            A("s_waitcnt vmcnt(0) lgkmcnt(0)")
        b = BF + 4*ks
        for ct in range(5):
            A(f"v_mfma_f32_16x16x32_bf16 v[{ACC_A+4*ct}:{ACC_A+4*ct+3}], v[{WF[ks&1]+4*ct}:{WF[ks&1]+4*ct+3}], v[{b}:{b+3}], v[{ACC_A+4*ct}:{ACC_A+4*ct+3}]")
    if prof: stamp(A, 4)
    A("s_nop 7")
    A("s_mul_i32 s48, s43, 160")
    for ct in range(5):
        b = ACC_B + 4*ct; a = ACC_A + 4*ct
        for i in range(4):
            A(f"v_sub_f32 v{a+i}, v{a+i}, v{b+i}")
        for i in range(4):
            A(f"v_fma_f32 v{a+i}, v6, v{a+i}, v{b+i}")
        A(f"v_cvt_pk_bf16_f32 v{48+2*ct}, v{a}, v{a+1}")
        A(f"v_cvt_pk_bf16_f32 v{49+2*ct}, v{a+2}, v{a+3}")
        A(f"buffer_store_dwordx2 v[{48+2*ct}:{49+2*ct}], v5, s[24:27], s48 offen offset:{ct*32}{OUTF}")
    if prof == 2:
        stamp(A, 5)
        A("s_memrealtime s[88:89]")
        A("s_waitcnt lgkmcnt(0)")
        A("s_sub_u32 s88, s88, s94")
        for i, src in enumerate(("s80", "s79", "s70", "s71", "s72", "s75", "s88")):
            A(f"v_writelane_b32 v48, {src}, {i}")
        dbg_dump_lanes(A, 48, 9, 7, 37, 12, 8)
    elif prof:
        stamp(A, 5)
        dump_stamps(A, 1, 8, 12, 14, tmp=50)
        A("s_mov_b64 exec, -1")
        A("s_mov_b32 s90, 0")
        prof_end(A, 1, 8, 12, tmpv=(16, 17, 18, 19, 20), extra="s90")
    A("s_endpgm")
```

```python
S = 2048; D = 640; H = 32; DH = 20; F = 1536
X_BYTES = S * D * 2
WQKV_BYTES = D * 3 * D * 2
WO_BYTES = D * D * 2
W1_BYTES = D * F * 2
W2_BYTES = F * D * 2
B1_BYTES = F * 2
GW_BYTES = D * 2
OUT_BYTES = S * D * 2

QF_OFF = 0
HSQ = 64 * 1280
KV_OFF = 0x280000
VH = 352
VT = 4 * VH
CH = 21504
HSK = 8 * CH
VPART = 8 * 1280
ACT_OFF = 0x800000
OF_OFF = 0xE00000
BP_OFF = 0x1100000
WF_OFF = 0x1100000
WF_CG = 68*5*1024
OFLAG_OFF = 0x17C0000
WOF_OFF = 0x1500000
G_OFF = 0x1400000
WS_RECORDS = 0x2000000

import math
QSCALE = math.log2(math.e) / math.sqrt(DH)
LOG2E = math.log2(math.e)

import struct
def f32bits(x):
    return struct.unpack("<I", struct.pack("<f", x))[0]

FROW = 4352
FREP = 16*FROW + 256
F1A_OFF = 0x1600000
F1B_OFF = 0x1700000
F1W_OFF = 0x17A0000
MEGA_FLAG = 155648
LF_FULL, LF_FREE, LF_PROG, LF_PD, LF_RD, LF_GO, LF_GO2, LF_TAG, LF_HD, LF_F1P, LF_GOALL, LF_ORDY = 0, 32, 64, 80, 96, 116, 120, 124, 128, 144, 160, 164
```

```python
from asm import *
from common import *
from k2_shadow import gen_shadow

NAME = "k2_kernel"
SLOT = 24576
SH_BASE = 3 * SLOT
FLAG = MEGA_FLAG
LDS_BYTES = FLAG + 256

X_ = [16, 48]
P_ = 80
O_ = 88
C_ = 104
QM = 120
QT = 124
KF = [126, 130]
KT = 134
V0 = 136
V1 = 140
FL = 144

def mf(d, a, b, c):
    cs = "0" if c is None else f"v[{c}:{c+15}]"
    return f"v_mfma_f32_32x32x16_bf16 v[{d}:{d+15}], v[{a}:{a+3}], v[{b}:{b+3}], {cs}"
def mf2b(d, a, b, c):
    cs = "0" if c is None else f"v[{c}:{c+31}]"
    return f"v_mfma_f32_32x32x4_2b_bf16 v[{d}:{d+31}], v[{a}:{a+1}], v[{b}:{b+1}], {cs}"

def vslot(A, row, dst, t1):
    A(f"""
    v_mov_b32 v{dst}, v{row}
    v_add_u32 v{t1}, 12, v{row}
    v_cmp_lt_u32 vcc, 3, v{row}
    s_nop 1
    v_cndmask_b32 v{dst}, v{dst}, v{t1}, vcc
    v_subrev_u32 v{t1}, 1, v{row}
    v_cmp_lt_u32 vcc, 9, v{row}
    s_nop 1
    v_cndmask_b32 v{dst}, v{dst}, v{t1}, vcc
    v_subrev_u32 v{t1}, 8, v{row}
    v_cmp_lt_u32 vcc, 11, v{row}
    s_nop 1
    v_cndmask_b32 v{dst}, v{dst}, v{t1}, vcc
    v_subrev_u32 v{t1}, 5, v{row}
    v_cmp_lt_u32 vcc, 15, v{row}
    s_nop 1
    v_cndmask_b32 v{dst}, v{dst}, v{t1}, vcc
    v_cmp_lt_u32 vcc, 19, v{row}
    s_nop 1
    v_cndmask_b32 v{dst}, v{dst}, 8, vcc
    v_cmp_lt_u32 vcc, 20, v{row}
    s_nop 1
    v_cndmask_b32 v{dst}, v{dst}, 15, vcc
    """)

def gen_k2(prof=False, exp_mode=0, shadow=True, shprio=0, pa=1, pb=2, tl=0, nofb=0, lstamp=0, desc=3, na=11, fused=False, mprof=0, dbg2=0, oft=0, outf=0, tm=0, part=0, shexp=0, shv2=0, pp=0, ppo=0, inc=0, psl=8, pdelay=24, osl=4, nrep=4, orep=1, odelay=0, bdelay=0, wdelay=0, lateu=0):
    KT4 = 152; QA4 = 156; QB4 = 164
    A = Asm(10000)
    if not fused:
        A(khead(NAME))
        A(f"""
        s_cmp_ge_u32 s2, 256
        s_cbranch_scc1 Lk2_end
        """)
        if prof: prof_start(A)
        if tl: tl_start(A, 1)
    def ids():
        A(f"""
        s_load_dwordx2 s[4:5], s[0:1], 80
        v_lshrrev_b32 v9, 6, v0
        v_and_b32 v1, 63, v0                   ; lane
        s_and_b32 s20, s2, 7
        v_readfirstlane_b32 s12, v9            ; wave
        s_lshr_b32 s21, s2, 3
        s_and_b32 s22, s21, 3
        s_lshl_b32 s13, s20, 2
        s_add_u32 s13, s13, s22                ; h
        s_lshr_b32 s14, s21, 2                 ; qb
        s_lshl_b32 s15, s14, 3
        s_add_u32 s15, s15, s12                ; T
        """)
    if fused:
        A("Lshadow_entry:")
        ids()
        A("s_branch Lk2_shadow")
        A("Lattn_entry:")
        A("s_setprio 0")
        ids()
    else:
        ids()
        A("s_cmp_ge_u32 s12, 8")
        A("s_cbranch_scc1 Lk2_shadow")
    A(f"""
    s_mul_i32 s16, s13, {HSK}
    s_add_u32 s16, s16, {KV_OFF}
    s_mul_i32 s23, s13, {HSQ}
    s_mul_i32 s24, s15, 1280
    s_add_u32 s23, s23, s24
    s_add_u32 s23, s23, {QF_OFF}
    v_lshlrev_b32 v8, 4, v1                ; lane*16
    v_and_b32 v9, 31, v1
    v_lshrrev_b32 v10, 5, v1               ; hf
    v_lshlrev_b32 v11, 3, v9
    v_add_u32 v11, 1024, v11               ; 1024 + token*8
    s_mul_i32 s25, s12, 3072
    s_add_u32 s17, s16, s25
    """)
    if fused and part:
        A(f"""
        s_add_u32 s44, s17, {8*CH}
        s_mul_i32 s20, s14, {CH if part == 1 else 0}
        s_add_u32 s17, s17, s20
        """)
    A(f"""
    s_waitcnt lgkmcnt(0)
    """)
    srd_ws(A, 8, 4, WS_RECORDS)
    def dma_groups(slot_sgpr, slot_imm=0):
        g = []
        for j in range(3):
            m0 = f"s_add_u32 m0, {slot_sgpr}, {slot_imm + j*1024}"
            g.append([m0, f"s_add_u32 s26, s17, {j*1024}", f"buffer_load_dwordx4 v8, s[8:11], s26 offen lds"])
        if fused and part:
            g.append([f"s_add_u32 s17, s17, {CH}", "s_cmp_ge_u32 s17, s44", f"s_cselect_b32 s26, {8*CH}, 0", "s_sub_u32 s17, s17, s26"])
        else:
            g.append([f"s_add_u32 s17, s17, {CH}"])
        return g
    def first_loads():
        for grp in dma_groups("s25", 0):
            for l in grp: A(l)
        A(f"""
        buffer_load_dwordx4 v[{QM}:{QM+3}], v8, s[8:11], s23 offen
        buffer_load_dwordx2 v[{QT}:{QT+1}], v11, s[8:11], s23 offen
        """)
        if not fused:
            for grp in dma_groups("s25", SLOT):
                for l in grp: A(l)
    if not fused: first_loads()
    A(f"""
    v_cmp_gt_u32 s[28:29], 32, v1          ; lanes < 32
    v_mov_b32 v5, v8
    v_mul_u32_u24 v6, 1280, v10
    v_add_u32 v6, v6, v11
    """)
    A(f"""
    s_and_b32 s20, s13, 1
    s_mov_b32 s21, 0x43120
    s_cmp_eq_u32 s20, 1
    s_cselect_b32 s21, 0x04231, s21        ; odd h: 1,3,2,4,0
    v_lshrrev_b32 v14, 2, v9
    v_lshlrev_b32 v14, 2, v14              ; 4*g
    v_lshrrev_b32 v15, v14, s21
    v_and_b32 v15, 15, v15                 ; j
    v_and_b32 v14, 3, v9
    v_lshl_add_u32 v15, v15, 2, v14        ; dh
    v_cmp_gt_u32 vcc, 20, v9
    s_nop 1
    v_cndmask_b32 v16, v9, v15, vcc
    """)
    vslot(A, 16, 14, 15)
    A(f"""
    s_mul_i32 s21, s13, 5
    v_and_b32 v16, 15, v1
    v_lshlrev_b32 v16, 4, v16              ; token16*16
    v_bfe_u32 v17, v1, 4, 1
    v_mul_u32_u24 v17, 20480, v17
    v_add_u32 v16, v16, v17
    v_lshlrev_b32 v17, 1, v10              ; 2*hf
    v_add_u32 v17, s20, v17
    v_add_u32 v17, s21, v17                ; G0
    v_lshrrev_b32 v18, 3, v17
    v_lshlrev_b32 v18, 10, v18
    v_bfe_u32 v17, v17, 1, 2
    v_lshl_add_u32 v18, v17, 8, v18
    v_add_u32 v152, v18, v16
    s_xor_b32 s20, s20, 1
    s_lshl_b32 s20, s20, 2
    s_add_u32 s20, s20, s21                ; G1
    s_lshr_b32 s21, s20, 3
    s_lshl_b32 s21, s21, 10
    s_bfe_u32 s22, s20, 0x20001
    s_lshl_b32 s22, s22, 8
    s_add_u32 s21, s21, s22
    s_and_b32 s20, s20, 1
    s_lshl_b32 s20, s20, 3
    s_add_u32 s21, s21, s20
    v_add_u32 v153, s21, v16
    v_mul_u32_u24 v7, {VH}, v10
    v_lshl_add_u32 v7, v14, 4, v7
    v_add_u32 v7, {VPART}, v7
    v_mov_b32 v2, v5
    v_mov_b32 v3, v6
    v_mov_b32 v4, v7
    """)
    if not fused:
        A(f"""
        v_lshlrev_b32 v12, 2, v1
        v_add_u32 v12, {FLAG}, v12
        v_mov_b32 v13, 0
        s_cmp_eq_u32 s12, 0
        s_cbranch_scc0 Lk2_noclr
        s_mov_b64 exec, s[28:29]
        ds_write_b32 v12, v13
        s_mov_b64 exec, -1
Lk2_noclr:
        """)
    A(f"""
    v_and_b32 v12, 7, v1
    v_lshlrev_b32 v12, 2, v12
    v_add_u32 v12, {FLAG}, v12             ; v12: full[lane&7] ; +32: free[lane&7]
    s_lshl_b32 s33, s12, 2
    s_add_u32 s33, s33, {FLAG}
    v_mov_b32 v13, s33                     ; v13: own full word ; +32 own free word
    """)
    for i in range(4): A(f"v_mov_b32 v{V1+i}, 0")
    for i in range(4): A(f"v_mov_b32 v{P_+4+i}, 0")
    for i in range(16): A(f"v_mov_b32 v{O_+i}, 0")
    X0 = X_[0]
    if fused:
        if oft:
            A(f"""
            s_cmp_eq_u32 s12, 6
            s_cbranch_scc0 Lattn_nooft
            v_lshrrev_b32 v146, 2, v1
            s_lshl_b32 s20, s14, 4
            v_add_u32 v146, s20, v146              ; T16
            v_mul_u32_u24 v146, 20480, v146
            v_and_b32 v147, 1, v1
            v_lshl_add_u32 v146, v147, 7, v146     ; + line*128
            v_bfe_u32 v147, v1, 1, 1
            s_mul_i32 s20, s13, 5
            """)
            for m in range(3):
                A(f"""
                v_add_u32 v148, {2*m}, v147
                v_min_u32 v148, 4, v148
                v_add_u32 v148, s20, v148              ; G
                v_lshrrev_b32 v149, 3, v148
                v_lshlrev_b32 v149, 10, v149
                v_bfe_u32 v148, v148, 1, 2
                v_lshl_add_u32 v149, v148, 8, v149
                v_add_u32 v149, v149, v146
                s_mov_b32 s21, {OF_OFF}
                buffer_load_dword v150, v149, s[8:11], s21 offen sc1
                """)
            A("Lattn_nooft:")
        A("s_cmp_eq_u32 s12, 5")
        A("s_cbranch_scc0 Lattn_nopub")
        lds_spin(A, FLAG + LF_HD + 12, 1, 1, tmp=(146, 147), sleep=0)
        lds_spin(A, FLAG + LF_PD, 1, 4, tmp=(146, 147), sleep=0)
        get_tag(A, FLAG + LF_TAG, "s35", tmp=(146, 147))
        A(f"""
        s_and_b32 s20, s2, 7
        s_lshr_b32 s21, s2, 3
        s_and_b32 s22, s20, 1
        s_lshl_b32 s22, s22, 3
        s_and_b32 s24, s21, 7
        s_add_u32 s22, s22, s24                ; rb
        s_lshr_b32 s20, s20, 1
        s_lshl_b32 s20, s20, 2
        s_lshr_b32 s21, s21, 3
        s_add_u32 s20, s20, s21                ; cgp
        s_mul_i32 s20, s20, {FROW}
        s_lshl_b32 s22, s22, 2
        s_add_u32 s20, s20, s22
        s_add_u32 s20, s20, {F1A_OFF}
        v_mul_u32_u24 v146, {FREP}, v1
        v_mov_b32 v147, s35
        s_mov_b64 exec, {(1 << nrep) - 1:#x}
        buffer_store_dword v147, v146, s[8:11], s20 offen sc1
        s_mov_b64 exec, -1
        """)
        if mprof == 1:
            wl_stamp(A, 160, 8)
            A("s_waitcnt vmcnt(0)")
            wl_stamp(A, 160, 9)
        A("Lattn_nopub:")
        A("s_cmp_eq_u32 s12, 4")
        A("s_cbranch_scc0 Lattn_wgo")
        get_tag(A, FLAG + LF_TAG, "s35", tmp=(146, 147))
        lds_spin(A, FLAG + LF_PD, 1, 4, tmp=(146, 147), sleep=1)
        if pdelay: A(f"s_sleep {pdelay}")
        if mprof: wl_stamp(A, 160, 1)
        A(f"""
        s_mul_i32 s20, s13, 20
        s_add_u32 s21, s20, 19
        s_lshr_b32 s20, s20, 7
        s_lshr_b32 s21, s21, 7
        v_and_b32 v146, 15, v1
        v_lshlrev_b32 v146, 2, v146
        v_bfe_u32 v147, v1, 4, 1
        v_mov_b32 v148, s20
        v_mov_b32 v149, s21
        v_cmp_eq_u32 vcc, 1, v147
        s_nop 1
        v_cndmask_b32 v148, v148, v149, vcc    ; cb
        v_lshrrev_b32 v147, 5, v1              ; 0: K, 1: V
        v_mul_u32_u24 v147, 5, v147
        v_add_u32 v147, 5, v147
        v_add_u32 v147, v147, v148
        v_mul_u32_u24 v147, {FROW}, v147
        v_add_u32 v147, v147, v146
        v_mul_u32_u24 v148, {FROW}, v148
        v_add_u32 v148, v148, v146
        v_bfe_u32 v149, v1, 1, 3
        v_cmp_eq_u32 s[36:37], s14, v149
        v_cmp_gt_u32 vcc, 32, v1
        s_and_b64 s[36:37], s[36:37], vcc
        s_lshr_b32 s20, s2, 3
        s_and_b32 s20, s20, {nrep - 1}
        s_mul_i32 s20, s20, {FREP}
        s_add_u32 s20, s20, {F1A_OFF}
        s_mov_b32 s45, s20
        """)
        if part:
            A(f"""
            v_and_b32 v149, 15, v1
            s_mul_i32 s21, s14, {2 if part == 1 else 0}
            v_subrev_u32 v149, s21, v149
            v_and_b32 v149, 15, v149
            v_cmp_gt_u32 s[46:47], 4, v149
            """)
        else:
            A("s_mov_b64 s[46:47], -1")
        A(f"""
        s_mov_b32 s34, 0x40000
        """)
        def chk(a, b):
            return f"""
            v_cmp_eq_u32 vcc, s35, v{a}
            v_cmp_eq_u32 s[38:39], s35, v{b}
            s_orn2_b64 vcc, vcc, s[46:47]
            s_orn2_b64 s[38:39], s[38:39], s[36:37]
            s_and_b64 vcc, vcc, s[38:39]
            s_cmp_eq_u64 vcc, exec
            s_cbranch_scc1 Lattn_polled
            """
        def ld(a, b):
            return f"""
            buffer_load_dword v{a}, v147, s[8:11], s45 offen sc1
            buffer_load_dword v{b}, v148, s[8:11], s45 offen sc1
            """
        if pp:
            A(ld(150, 151))
            A(f"s_sleep {pp}")
            A("Lattn_poll:")
            A(ld(154, 155))
            A("s_waitcnt vmcnt(2)")
            A(chk(150, 151))
            A(ld(150, 151))
            A("s_waitcnt vmcnt(2)")
            A(chk(154, 155))
            A("s_sub_u32 s34, s34, 1")
            A("s_cbranch_scc0 Lattn_poll")
        else:
            A("Lattn_poll:")
            A(ld(150, 151))
            A("s_waitcnt vmcnt(0)")
            if mprof == 1:
                A("s_cmp_eq_u32 s34, 0x40000")
                A("s_cbranch_scc0 Lattn_np")
                wl_stamp(A, 160, 8)
                A("Lattn_np:")
            A(chk(150, 151))
            A(f"s_sleep {psl}")
            A("s_sub_u32 s34, s34, 1")
            A("s_cbranch_scc0 Lattn_poll")
        A(f"""
Lattn_polled:
        """)
        if pp: A("s_nop 0")
        if mprof: wl_stamp(A, 160, 2)
        if mprof == 1:
            A("s_sub_u32 s34, 0x40000, s34")
            A("v_writelane_b32 v160, s34, 9")
        lds_set(A, FLAG + LF_GO, 1, tmp=(146, 149))
        A("s_branch Lattn_go")
        A("Lattn_wgo:")
        lds_spin(A, FLAG + LF_GO, 1, 1, tmp=(146, 147), sleep=1)
        A("Lattn_go:")
        if mprof and not dbg2: wl_stamp(A, 160, 3)
        first_loads()
    A(f"""
    s_waitcnt vmcnt({0 if fused else 3}) lgkmcnt(0)
    """)
    if fused:
        for grp in dma_groups("s25", SLOT):
            for l in grp: A(l)
        if part:
            A("""
            s_cmp_eq_u32 s12, 4
            s_cbranch_scc0 Lattn_noap
            buffer_load_dword v150, v147, s[8:11], s45 offen sc1
Lattn_noap:
            """)
        A(f"v_mov_b32 v{FL}, 1")
        A(f"ds_write_b32 v13, v{FL}")
        lds_spin(A, FLAG + LF_FULL, 1, 8, tmp=(FL, FL + 1), sleep=0, cnt="s34")
        if mprof and not dbg2: wl_stamp(A, 160, 4)
    else:
        A("s_barrier")
    KTr = KT4 if tm else KT
    if tm:
        A(f"""
        v_cndmask_b32 v{QA4}, 0, v{QT}, s[28:29]
        v_cndmask_b32 v{QA4+1}, 0, v{QT+1}, s[28:29]
        v_mov_b32 v{QA4+2}, 0
        v_mov_b32 v{QA4+3}, 0
        v_cndmask_b32 v{QB4}, v{QT}, 0, s[28:29]
        v_cndmask_b32 v{QB4+1}, v{QT+1}, 0, s[28:29]
        v_mov_b32 v{QB4+2}, 0
        v_mov_b32 v{QB4+3}, 0
        v_mov_b32 v{KT4+2}, 0
        v_mov_b32 v{KT4+3}, 0
        """)
    A(f"""
    ds_read_b128 v[{KF[0]}:{KF[0]+3}], v2
    ds_read_b128 v[{KF[1]}:{KF[1]+3}], v2 offset:1280
    ds_read_b64 v[{KTr}:{KTr+1}], v3
    ds_read_b128 v[{V0}:{V0+3}], v4
    s_waitcnt lgkmcnt(0)
    {mf(X0, KF[0], QM, None)}
    {mf(X0+16, KF[1], QM, None)}
    """)
    if tm:
        A(mf(X0, KT4, QA4, X0)); A(mf(X0+16, KT4, QB4, X0+16)); A("s_nop 15")
    else:
        A("s_nop 11"); A(mf2b(X0, KT, QT, X0)); A("s_nop 15"); A("s_nop 7")
    A(f"v_max3_f32 v9, v{X0}, v{X0+1}, v{X0+2}")
    for i in range(3, 31, 2):
        A(f"v_max3_f32 v9, v9, v{X0+i}, v{X0+i+1}")
    A(f"v_max_f32 v9, v9, v{X0+31}")
    A(f"""
    v_mov_b32 v10, v9
    s_nop 1
    v_permlane32_swap_b32 v9, v10
    s_nop 1
    v_max_f32 v9, v9, v10
    """)
    A("v_sub_f32 v14, 0, v9")
    A("v_mov_b32 v15, v14")
    for i in range(16): A(f"v_pk_add_f32 v[{X0+2*i}:{X0+2*i+1}], v[{X0+2*i}:{X0+2*i+1}], v[14:15]")
    for i in range(16): A(f"v_mov_b32 v{C_+i}, v14")
    A(f"""
    ds_read_b128 v[{KF[0]}:{KF[0]+3}], v2 offset:{2*1280}
    ds_read_b128 v[{KF[1]}:{KF[1]+3}], v2 offset:{3*1280}
    ds_read_b64 v[{KTr}:{KTr+1}], v3 offset:{2*1280}
    s_mov_b32 s18, 0
    s_mov_b32 s19, {SLOT}
    s_mov_b32 s27, {2*SLOT}
    s_setprio {pa}
    s_cmp_ge_u32 s12, 4
    s_cbranch_scc0 Lk2_noprio
    s_setprio {pb}
Lk2_noprio:
    """)
    if prof:
        A("s_memtime s[90:91]")
        A("s_waitcnt lgkmcnt(0)")
        A("s_sub_u32 s90, s90, s92")
    A0 = A
    class F:
        def __call__(self, l):
            for x in l.strip("\n").split("\n"):
                ls = x.strip()
                if exp_mode == 2 and ls.startswith("v_mfma"): continue
                if exp_mode == 3 and (ls.startswith("v_exp") or ls.startswith("v_cvt")): continue
                if exp_mode == 4 and (ls.startswith("ds_read_b128") or ls.startswith("ds_read_b64")): continue
                if exp_mode == 5 and ls.startswith("v_mfma_f32_32x32x4"): continue
                if exp_mode == 6 and (ls.startswith("ds_read_b128") or ls.startswith("ds_read_b64") or ls.startswith("v_mfma")): continue
                if exp_mode == 7 and ls.startswith("buffer_load"): continue
                A0(x)
        def label(self, b): return A0.label(b)
    if lstamp: wl_stamp(A, 150, 0)
    if mprof: wl_stamp(A, 160, 5)
    A("Lk2_loop:")
    A = F()
    def check(reg, need_sgpr, tag):
        lab = A.label(tag)
        off = 32 if tag == "free" else 0
        A(f"""
        v_cmp_le_u32 vcc, {need_sgpr}, v{reg}
        s_cmp_eq_u64 vcc, exec
        s_cbranch_scc1 {lab}
        s_mov_b32 s34, 0x40000
        {lab}_s:
        s_sub_u32 s34, s34, 1
        s_cbranch_scc1 {lab}
        s_sleep 1
        ds_read_b32 v{reg}, v12 offset:{off}
        s_waitcnt lgkmcnt(0)
        v_cmp_le_u32 vcc, {need_sgpr}, v{reg}
        s_cmp_eq_u64 vcc, exec
        s_cbranch_scc0 {lab}_s
        {lab}:
        """)
    def tile(sc, first, pr, t):
        sn = X_[(pr + 1) & 1]
        kt = (2*pr + 4) & 7
        E = lambda i: f"v_exp_f32 v{sc+i}, v{sc+i}"
        C = lambda p, a: f"v_cvt_pk_bf16_f32 v{P_+p}, v{sc+a}, v{sc+a+1}"
        pre = []
        if desc == 1 and t % 2 == 0: A(f"s_setprio {3 - t // 2}")
        if desc == 2 and t % 2 == 0: A(f"s_setprio {max(1, 3 - t // 2) if t < 6 else 1}")
        if desc == 3: A(f"s_setprio {3 - (t % 4)}")
        if desc in (4, 5): A(f"s_setprio {3 - 2*(t % 2)}")
        if desc == 6: A(f"s_setprio {[3,3,2,2,1,1,0,0][t]}") if t % 2 == 0 else None
        if desc == 7: A(f"s_setprio {[3,2,1,0,0,1,2,3][t]}")
        if desc == 8: A(f"s_setprio {[3,2,2,1,1,0,0,0][t]}")
        A("s_waitcnt lgkmcnt(0)")
        if t == 0:
            A(f"""
            v_mov_b32 v{FL+1}, s18
            ds_write_b32 v13, v{FL+1} offset:32
            """)
        if t == 2:
            A(f"""
            s_waitcnt vmcnt(0)
            s_add_u32 s31, s18, 2
            v_mov_b32 v{FL+1}, s31
            ds_write_b32 v13, v{FL+1}
            """)
        if t == 4:
            nofull = A.label("nofull")
            A("s_cmp_lt_u32 s18, 7")
            A(f"s_cbranch_scc0 {nofull}")
            A("s_add_u32 s31, s18, 2")
            check(FL + 1, "s31", "full")
            A(f"{nofull}:")
            A("v_add_u32 v2, s19, v5")
            A("v_add_u32 v3, s19, v6")
        if first:
            A(mf(sn, KF[0], QM, C_))
            A(f"ds_read_b128 v[{KF[0]}:{KF[0]+3}], v2 offset:{kt*1280}")
        elif tm:
            A(mf(sn, KT4, QA4, sn))
        else:
            A(mf2b(sn, KT, QT, sn))
            A(f"ds_read_b64 v[{KT}:{KT+1}], v3 offset:{kt*1280}")
        if t == 1: A(f"ds_read_b32 v{FL}, v12 offset:32")
        if t == 3: A(f"ds_read_b32 v{FL+1}, v12")
        for i in range(4): A(E(i))
        A(mf(O_, V1, P_+4, O_))
        A(f"ds_read_b128 v[{V1}:{V1+3}], v4 offset:{t*VT + 2*VH}")
        if t == 7:
            A("v_add_u32 v4, s19, v7")
        dg = []
        if t == 2:
            skip = A.label("k2skip")
            A(f"s_cmp_lt_u32 s18, 6")
            A(f"s_cbranch_scc0 {skip}")
            if fused and part:
                ga = A.label("goall")
                A(f"""
                s_cmp_eq_u32 s18, 0
                s_cbranch_scc0 {ga}
                s_cmp_eq_u32 s12, 4
                s_cbranch_scc0 {ga}_w
                s_mov_b32 s34, 0x40000
                {ga}_p:
                v_cmp_eq_u32 vcc, s35, v150
                s_cmp_eq_u64 vcc, exec
                s_cbranch_scc1 {ga}_s
                buffer_load_dword v150, v147, s[8:11], s45 offen sc1
                s_waitcnt vmcnt(0)
                s_sub_u32 s34, s34, 1
                s_cbranch_scc0 {ga}_p
                {ga}_s:
                v_mov_b32 v150, {FLAG + LF_GOALL}
                v_mov_b32 v151, 1
                ds_write_b32 v150, v151
                s_branch {ga}
                {ga}_w:
                """)
                lds_spin(A, FLAG + LF_GOALL, 1, 1, tmp=(150, 151), sleep=1, cnt="s34")
                A(f"{ga}:")
            check(FL, "s18", "free")
            A("s_add_u32 s30, s27, s25")
            for grp in dma_groups("s30"):
                for l in grp: A(l)
            A(f"{skip}:")
        A(C(0, 0)); A(E(4)); A(C(1, 2))
        for i in (5, 6, 7): A(E(i))
        if desc == 4: A(f"s_setprio {2 - 2*(t % 2)}")
        if first:
            A(mf(sn + 16, KF[1], QM, C_))
            A(f"ds_read_b128 v[{KF[1]}:{KF[1]+3}], v2 offset:{(kt+1)*1280}")
        elif tm:
            A(mf(sn + 16, KT4, QB4, sn + 16))
            A(f"ds_read_b64 v[{KT4}:{KT4+1}], v3 offset:{kt*1280}")
        A(C(2, 4)); A(E(8)); A(C(3, 6)); A(E(9)); A(E(10))
        A(mf(O_, V0, P_, O_))
        A(f"ds_read_b128 v[{V0}:{V0+3}], v4 offset:{((t+1)&7)*VT}")
        for i in (11, 12, 13): A(E(i))
        A(C(4, 8)); A(E(14)); A(C(5, 10)); A(E(15)); A(C(6, 12)); A(C(7, 14))
    for pr in range(4):
        cur = X_[pr & 1]
        tile(cur, True, pr, 2*pr)
        tile(cur + 16, False, pr, 2*pr + 1)
    A = A0
    A(f"""
    s_mov_b32 s19, s27
    s_add_u32 s27, s27, {SLOT}
    s_cmp_ge_u32 s27, {3*SLOT}
    s_cselect_b32 s27, 0, s27
    s_add_u32 s18, s18, 1
    s_cmp_lt_u32 s18, 8
    s_cbranch_scc1 Lk2_loop
    """)
    if lstamp: wl_stamp(A, 150, 1)
    if mprof: wl_stamp(A, 160, 6)
    A(f"""
    s_waitcnt lgkmcnt(0)
    {mf(O_, V1, P_+4, O_)}
    s_mov_b32 s31, 0
    s_nop 15
Lk2_fin:
    v_mov_b32 v9, v{O_+8}
    v_mov_b32 v10, v{O_+8}
    s_nop 1
    v_permlane32_swap_b32 v9, v10
    s_nop 1
    v_mul_f32 v11, 0, v{O_}
    """)
    for i in range(1, 8): A(f"v_fma_f32 v11, v{O_+i}, 0, v11")
    A(f"v_mul_f32 v14, 0, v{O_+8}")
    for i in range(9, 12): A(f"v_fma_f32 v14, v{O_+i}, 0, v14")
    A(f"""
    v_cndmask_b32 v14, 0, v14, s[28:29]
    v_add_f32 v11, v11, v14
    v_add_f32 v11, v11, v10
    v_mov_b32 v15, 0x53800000              ; 2^40
    v_cmp_nlt_f32 vcc, v11, v15            ; !(l < 2^40)
    s_cmp_eq_u32 s31, 0
    s_cbranch_scc0 Lk2_store
    {"" if nofb else "s_cbranch_vccnz Lk2_fallback"}
Lk2_store:
    v_rcp_f32 v10, v10
    s_mul_i32 s21, s15, 40960
    s_add_u32 s21, s21, {OF_OFF}
    v_mov_b32 v11, v10
    """)
    for p in range(6):
        A(f"v_pk_mul_f32 v[{O_+2*p}:{O_+2*p+1}], v[{O_+2*p}:{O_+2*p+1}], v[10:11]")
    for p in range(6):
        A(f"v_cvt_pk_bf16_f32 v{16+p}, v{O_+2*p}, v{O_+2*p+1}")
    A(f"""
    buffer_store_dwordx4 v[16:19], v152, s[8:11], s21 offen sc1
    s_mov_b64 exec, s[28:29]
    buffer_store_dwordx2 v[20:21], v153, s[8:11], s21 offen sc1
    """)
    A("s_mov_b64 exec, -1")
    A("s_waitcnt vmcnt(0)")
    A("s_barrier")
    A(f"""
    s_cmp_eq_u32 s12, 0
    s_cbranch_scc0 Lk2_nopub
    s_mul_i32 s20, s14, {FROW}
    s_lshl_b32 s21, s13, 2
    s_add_u32 s20, s20, s21
    s_add_u32 s20, s20, {OFLAG_OFF}
    """)
    if fused:
        get_tag(A, FLAG + LF_TAG, "s21", tmp=(16, 17))
        A("v_mov_b32 v16, s21")
    else:
        A("v_mov_b32 v16, 1")
    A(f"""
    v_mul_u32_u24 v17, {8*FROW}, v1
    s_mov_b64 exec, {(1 << orep) - 1:#x}
    buffer_store_dword v16, v17, s[8:11], s20 offen sc1
    s_mov_b64 exec, -1
Lk2_nopub:
    """)
    if inc:
        A("s_cmp_eq_u32 s12, 1")
        A("s_cbranch_scc0 Lk2_nopoll")
        get_tag(A, FLAG + LF_TAG, "s21", tmp=(16, 17))
        A(f"""
        s_mul_i32 s20, s14, {FROW}
        s_add_u32 s20, s20, {OFLAG_OFF}
        v_and_b32 v16, 31, v1
        v_lshlrev_b32 v16, 2, v16
        v_mov_b32 v18, {FLAG + LF_ORDY}
        s_mov_b32 s34, 0x40000
Lk2_opoll:
        buffer_load_dword v17, v16, s[8:11], s20 offen sc1
        s_waitcnt vmcnt(0)
        v_cmp_eq_u32 vcc, s21, v17
        s_nop 3
        s_mov_b32 s22, vcc_lo
        s_mov_b32 s23, 0
        """)
        for p, m in enumerate((0x7F, 0x1FC0, 0xFF000, 0x3F80000, 0xFE000000)):
            A(f"s_and_b32 s24, s22, {m:#x}")
            A(f"s_cmp_eq_u32 s24, {m:#x}")
            A(f"s_cbranch_scc0 Lk2_ordy")
            A(f"s_add_u32 s23, s23, 1")
        A(f"""
Lk2_ordy:
        v_mov_b32 v19, s23
        ds_write_b32 v18, v19
        s_cmp_eq_u32 s23, 5
        s_cbranch_scc1 Lk2_nopoll
        s_sub_u32 s34, s34, 1
        s_cbranch_scc0 Lk2_opoll
        v_mov_b32 v19, 5
        ds_write_b32 v18, v19
Lk2_nopoll:
        s_waitcnt lgkmcnt(0)
        """)
    if prof:
        A("s_mov_b64 exec, -1")
        if lstamp: wl_dump(A, 150, 1, 8, 12, 21)
        prof_end(A, 1, 8, 12, tmpv=(16, 17, 18, 19, 20), extra="s90")
    if tl: tl2_record(A, 1, 8, 12)
    if mprof == 2:
        wl_stamp(A, 160, 7)
        dbg_dump_lanes(A, 160, 1, 8, 37, 12, 1)
    elif mprof:
        wl_stamp(A, 160, 7)
        wl_dump(A, 160, 1, 8, 12, 21)
        A("s_mov_b32 s90, 0")
        prof_end(A, 1, 8, 12, tmpv=(16, 17, 18, 19, 20), extra="s90")
    A("s_endpgm")

    s = X0
    A(f"""
Lk2_fallback:
    s_mov_b32 s31, 1
    v_and_b32 v9, 31, v1
    v_lshlrev_b32 v11, 3, v9
    v_add_u32 v11, 1024, v11
    v_mov_b32 v14, 0xff800000
    s_mov_b32 s18, 0
Lk2_fb1:
    s_lshr_b32 s20, s18, 3
    s_mul_i32 s20, s20, {CH}
    s_and_b32 s21, s18, 7
    s_mul_i32 s21, s21, 1280
    s_add_u32 s20, s20, s21
    s_add_u32 s20, s20, s16
    buffer_load_dwordx4 v[{KF[0]}:{KF[0]+3}], v8, s[8:11], s20 offen
    buffer_load_dwordx2 v[{KT}:{KT+1}], v11, s[8:11], s20 offen
    s_waitcnt vmcnt(0)
    {mf(s, KF[0], QM, None)}
    {mf(s+16, KF[0], QM, None)}
    s_nop 11
    {mf2b(s, KT, QT, s)}
    s_nop 15
    s_nop 7
    """)
    for i in range(0, 16, 2):
        A(f"v_max3_f32 v14, v14, v{s+i}, v{s+i+1}")
    A(f"""
    s_add_u32 s18, s18, 1
    s_cmp_lt_u32 s18, 64
    s_cbranch_scc1 Lk2_fb1
    v_mov_b32 v15, v14
    s_nop 1
    v_permlane32_swap_b32 v14, v15
    s_nop 1
    v_max_f32 v14, v14, v15
    """)
    for i in range(16): A(f"v_mov_b32 v{O_+i}, 0")
    A(f"""
    s_mov_b32 s18, 0
Lk2_fb2:
    s_lshr_b32 s20, s18, 3
    s_mul_i32 s20, s20, {CH}
    s_and_b32 s21, s18, 7
    s_mul_i32 s22, s21, {VT}
    s_add_u32 s22, s22, s20
    s_add_u32 s22, s22, s16
    s_mul_i32 s21, s21, 1280
    s_add_u32 s20, s20, s21
    s_add_u32 s20, s20, s16
    buffer_load_dwordx4 v[{KF[0]}:{KF[0]+3}], v8, s[8:11], s20 offen
    buffer_load_dwordx2 v[{KT}:{KT+1}], v11, s[8:11], s20 offen
    buffer_load_dwordx4 v[{V0}:{V0+3}], v7, s[8:11], s22 offen
    buffer_load_dwordx4 v[{V1}:{V1+3}], v7, s[8:11], s22 offen offset:{2*VH}
    s_waitcnt vmcnt(0)
    {mf(s, KF[0], QM, None)}
    {mf(s+16, KF[0], QM, None)}
    s_nop 11
    {mf2b(s, KT, QT, s)}
    s_nop 15
    s_nop 7
    """)
    for i in range(16): A(f"v_sub_f32 v{s+i}, v{s+i}, v14")
    for i in range(16): A(f"v_exp_f32 v{s+i}, v{s+i}")
    A("s_nop 0")
    for i in range(8): A(f"v_cvt_pk_bf16_f32 v{P_+i}, v{s+2*i}, v{s+2*i+1}")
    A(f"""
    s_nop 1
    {mf(O_, V0, P_, O_)}
    {mf(O_, V1, P_+4, O_)}
    s_add_u32 s18, s18, 1
    s_cmp_lt_u32 s18, 64
    s_cbranch_scc1 Lk2_fb2
    s_nop 15
    s_branch Lk2_fin
Lk2_end:
    s_endpgm
    """)
    if shadow: gen_shadow(A, (mprof if mprof else prof), shprio, SH_BASE, FLAG, NA=na, fused=fused, outf=outf, shexp=shexp, v2=shv2, ppo=ppo, inc=inc, POLL_SLEEP=osl, orep=orep, odelay=odelay, bdelay=bdelay, wdelay=wdelay, lateu=lateu)
    else: A("Lk2_shadow:\ns_barrier\ns_barrier\ns_endpgm")
    if fused: return A.text()
    return A.text(), kdesc(NAME, 168), f"; @launch kernel={NAME} grid=(256,1,1) block=(768,1,1) lds={LDS_BYTES}"
```

```python
from asm import *
from common import *

ACC_B = 8
ACC_A = 28
WF = [48, 68]
BF = 88
PH = 20480
NPH = 17

def gen_shadow(A, prof, shprio, SH_BASE, FLAG, scl=" sc1", POLL_SLEEP=4, NA=8, fused=False, outf=0, shexp=0, v2=0, ppo=0, inc=0, orep=1, odelay=0, bdelay=0):
    OUTF = ['', ' sc1', ' nt', ' sc0 sc1'][outf]
    A(f"""
Lk2_shadow:
    """)
    if prof and fused: stamp(A, 10)
    A(f"""
    s_setprio {shprio}
    s_load_dwordx2 s[30:31], s[0:1], 64    ; out
    s_sub_u32 s40, s12, 8                  ; w
    s_lshr_b32 s41, s13, 3
    s_lshl_b32 s44, s14, 2
    s_add_u32 s44, s44, s41                ; rbk
    s_and_b32 s43, s13, 7                  ; cg8
    s_lshl_b32 s46, s44, 2
    s_add_u32 s46, s46, s40                ; T16
    s_mul_i32 s47, s40, 5120
    s_mul_i32 s49, s43, {WF_CG}
    s_add_u32 s49, s49, s47
    s_add_u32 s49, s49, {WF_OFF}
    s_add_u32 s47, s47, {SH_BASE}
    s_mul_i32 s51, s46, {48*1024}
    s_add_u32 s51, s51, {ACT_OFF}
    s_mul_i32 s52, s46, 20480
    s_add_u32 s52, s52, {OF_OFF}
    v_lshlrev_b32 v2, 4, v1                ; lane*16
    v_add_u32 v3, {SH_BASE}, v2
    v_add_u32 v0, {SH_BASE + 3*PH}, v2
    v_and_b32 v4, 3, v1
    v_lshlrev_b32 v4, 2, v4
    v_add_u32 v4, {FLAG + 64}, v4          ; prog[lane&3]
    s_lshl_b32 s53, s40, 2
    s_add_u32 s53, s53, {FLAG + 64}
    v_mov_b32 v5, s53
    s_waitcnt lgkmcnt(0)
    """)
    srd_ws(A, 8, 4, WS_RECORDS)
    srd(A, 24, 30, OUT_BYTES)
    for i in range(40): A(f"v_mov_b32 v{ACC_B+i}, 0")
    if fused:
        A("s_cmp_eq_u32 s40, 0")
        A("s_cbranch_scc0 Lsh_wgo2")
        lds_spin(A, FLAG + LF_RD, 1, 4, tmp=(6, 7), sleep=2)
        get_tag(A, FLAG + LF_TAG, "s62", tmp=(6, 7))
        A(f"""
        s_and_b32 s54, s2, 7
        s_lshr_b32 s55, s2, 3
        s_and_b32 s56, s54, 1
        s_lshl_b32 s56, s56, 3
        s_and_b32 s57, s55, 7
        s_add_u32 s56, s56, s57                ; rb
        s_lshr_b32 s54, s54, 1
        s_lshl_b32 s54, s54, 2
        s_lshr_b32 s55, s55, 3
        s_add_u32 s54, s54, s55                ; cgp
        s_mul_i32 s56, s56, {FROW}
        s_lshl_b32 s54, s54, 2
        s_add_u32 s54, s54, s56
        s_add_u32 s54, s54, {F1B_OFF}
        v_mul_u32_u24 v6, {FREP}, v1
        v_mov_b32 v7, s62
        s_mov_b64 exec, 0xf
        buffer_store_dword v7, v6, s[8:11], s54 offen sc1
        s_mov_b64 exec, -1
        """)
        if bdelay: A(f"s_sleep {bdelay}")
        poll256(A, 8, F1W_OFF, "s62", tmp=(6, 7, 48, 49, 50, 51))
        A(f"""
        s_lshr_b32 s54, s44, 1
        s_mul_i32 s54, s54, {FROW}
        s_lshr_b32 s55, s2, 3
        s_and_b32 s55, s55, 3
        s_mul_i32 s55, s55, {FREP}
        s_add_u32 s54, s54, s55
        s_add_u32 s54, s54, {F1B_OFF}
        v_and_b32 v6, 15, v1
        v_lshlrev_b32 v6, 2, v6
        s_mov_b32 s60, 0x40000
Lsh_pb:
        buffer_load_dword v7, v6, s[8:11], s54 offen sc1
        s_waitcnt vmcnt(0)
        v_cmp_eq_u32 vcc, s62, v7
        s_cmp_eq_u64 vcc, exec
        s_cbranch_scc1 Lsh_pb_ok
        s_sleep 2
        s_sub_u32 s60, s60, 1
        s_cbranch_scc0 Lsh_pb
Lsh_pb_ok:
        """)
        lds_set(A, FLAG + LF_GO2, 1, tmp=(6, 7))
        A("s_branch Lsh_go2")
        A("Lsh_wgo2:")
        lds_spin(A, FLAG + LF_GO2, 1, 1, tmp=(6, 7), sleep=4)
        A("Lsh_go2:")
        if prof: stamp(A, 9)
    else:
        A("s_barrier")
    def issue(q):
        g = []
        if q >= NPH: return g
        sl = q % 4
        for j in range(5):
            g.append([f"s_add_u32 m0, s47, {sl*PH + j*1024}", f"s_add_u32 s55, s49, {q*PH + j*1024}",
                      f"buffer_load_dwordx4 v2, s[8:11], s55 offen lds"])
        if q < 12:
            for k in range(4):
                b = BF + 16*sl + 4*k
                g.append([f"s_add_u32 s55, s51, {(4*q + k)*1024}", f"buffer_load_dwordx4 v[{b}:{b+3}], v2, s[8:11], s55 offen"])
        return g
    def nops(q):
        return 0 if q >= NPH else (9 if q < 12 else 5)
    def emit(g):
        for grp in g:
            for l in grp: A(l)
    def sync(p, n):
        lab = A.label("shs")
        A(f"""
        s_waitcnt vmcnt({n}) lgkmcnt(0)
        v_mov_b32 v6, {p + 1}
        ds_write_b32 v5, v6
        s_mov_b32 s60, 0x40000
        {lab}:
        ds_read_b32 v7, v4
        s_waitcnt lgkmcnt(0)
        v_cmp_le_u32 vcc, {p + 1}, v7
        s_cmp_eq_u64 vcc, exec
        s_cbranch_scc1 {lab}_ok
        s_sleep 2
        s_sub_u32 s60, s60, 1
        s_cbranch_scc0 {lab}
        {lab}_ok:
        """)
    def compute(p, g):
        sl = p % 4
        acc = ACC_B if p < 12 else ACC_A
        base, so = ("v3", sl*PH) if sl < 3 else ("v0", 0)
        def rd(k, fs):
            return [f"ds_read_b128 v[{WF[fs]+4*ct}:{WF[fs]+4*ct+3}], {base} offset:{so + k*5120 + ct*1024}" for ct in range(5)]
        def bfrag(k):
            return (BF + 16*sl + 4*k) if p < 12 else (BF + 4*(4*(p - 12) + k))
        per = (len(g) + 3) // 4
        noread = shexp and p < 12
        if not noread:
            for l in rd(0, 0): A(l)
        for k in range(4):
            if noread: pass
            elif k < 3:
                for l in rd(k + 1, (k + 1) & 1): A(l)
                A("s_waitcnt lgkmcnt(5)")
            else:
                A("s_waitcnt lgkmcnt(0)")
            b = bfrag(k)
            for ct in range(5 if not (shexp == 2 and p < 12) else 3):
                A(f"v_mfma_f32_16x16x32_bf16 v[{acc+4*ct}:{acc+4*ct+3}], v[{WF[k&1]+4*ct}:{WF[k&1]+4*ct+3}], v[{b}:{b+3}], v[{acc+4*ct}:{acc+4*ct+3}]")
            emit(g[k*per:(k+1)*per])
    if not v2:
        for q in range(3): emit(issue(q))
        for p in range(NA):
            if shexp: A(f"s_waitcnt vmcnt({nops(p + 1) + nops(p + 2)})")
            else: sync(p, nops(p + 1) + nops(p + 2))
            compute(p, issue(p + 3))
        if prof: stamp(A, 0)
        A("s_waitcnt lgkmcnt(0)")
        A("s_barrier")
        if prof: stamp(A, 1)
        A("s_setprio 3")
        for p in range(NA, 12):
            if inc:
                sync(p, nops(p + 1) + nops(p + 2))
            else:
                A(f"s_waitcnt vmcnt({nops(p + 1) + nops(p + 2)}) lgkmcnt(0)")
                A("s_barrier")
            compute(p, issue(p + 3))
    else:
        AC = 8; ST = [88, 124]
        A(f"""
        s_mul_i32 s54, s43, {WF_CG}
        s_mul_i32 s55, s40, 5120
        s_add_u32 s54, s54, s55
        s_add_u32 s54, s54, {WF_OFF}
        s_lshl_b32 s55, s44, 2
        s_mul_i32 s55, s55, {48*1024}
        s_lshl_b32 s56, s40, 10
        s_add_u32 s55, s55, s56
        s_add_u32 s55, s55, {ACT_OFF}
        """)
        for i in range(80): A(f"v_mov_b32 v{AC+i}, 0")
        def ld(j):
            b = ST[j & 1]
            g = []
            for ct in range(5):
                g.append([f"s_add_u32 s57, s54, {j*4*5120 + ct*1024}", f"buffer_load_dwordx4 v[{b+4*ct}:{b+4*ct+3}], v2, s[8:11], s57 offen"])
            for t in range(4):
                g.append([f"s_add_u32 s57, s55, {j*4*1024 + t*48*1024}", f"buffer_load_dwordx4 v[{b+20+4*t}:{b+20+4*t+3}], v2, s[8:11], s57 offen"])
            return g
        emit(ld(0))
        for j in range(12):
            b = ST[j & 1]
            g = ld(j + 1) if j + 1 < 12 else []
            emit(g)
            A(f"s_waitcnt vmcnt({9 if j + 1 < 12 else 0})")
            for t in range(4):
                for ct in range(5):
                    d = AC + 4*(5*t + ct)
                    A(f"v_mfma_f32_16x16x32_bf16 v[{d}:{d+3}], v[{b+4*ct}:{b+4*ct+3}], v[{b+20+4*t}:{b+20+4*t+3}], v[{d}:{d+3}]")
        if prof: stamp(A, 0)
        A("s_nop 7")
        A(f"s_mul_i32 s56, s40, {PH}")
        A(f"v_add_u32 v6, s56, v3")
        for t in range(4):
            for ct in range(5):
                d = AC + 4*(5*t + ct)
                A(f"ds_write_b128 v6, v[{d}:{d+3}] offset:{(5*t + ct)*1024}")
        def flagsync(val):
            lab = A.label("v2s")
            A(f"""
            s_waitcnt lgkmcnt(0)
            v_mov_b32 v7, {val}
            ds_write_b32 v5, v7
            s_mov_b32 s60, 0x100000
            {lab}:
            ds_read_b32 v7, v4
            s_waitcnt lgkmcnt(0)
            v_cmp_le_u32 vcc, {val}, v7
            s_cmp_eq_u64 vcc, exec
            s_cbranch_scc1 {lab}_ok
            s_sleep 1
            s_sub_u32 s60, s60, 1
            s_cbranch_scc0 {lab}
            {lab}_ok:
            """)
        flagsync(1)
        A(f"s_mul_i32 s56, s40, 5120")
        A(f"v_add_u32 v6, s56, v3")
        A(f"v_add_u32 v7, {3*PH}, v6")
        for p in range(4):
            base = "v6" if p < 3 else "v7"
            off = p*PH if p < 3 else 0
            for ct in range(5):
                A(f"ds_read_b128 v[{88+20*p+4*ct}:{88+20*p+4*ct+3}], {base} offset:{off + ct*1024}")
        A("s_waitcnt lgkmcnt(0)")
        for i in range(20):
            A(f"v_add_f32 v{88+i}, v{88+i}, v{108+i}")
            A(f"v_add_f32 v{128+i}, v{128+i}, v{148+i}")
        for i in range(20):
            A(f"v_add_f32 v{ACC_B+i}, v{88+i}, v{128+i}")
        for i in range(20): A(f"v_mov_b32 v{ACC_A+i}, 0")
        flagsync(2)
        for q in range(12, 16):
            for j in range(5):
                A(f"s_add_u32 m0, s47, {(q % 4)*PH + j*1024}")
                A(f"s_add_u32 s55, s49, {q*PH + j*1024}")
                A(f"buffer_load_dwordx4 v2, s[8:11], s55 offen lds")
        A("s_waitcnt vmcnt(0) lgkmcnt(0)")
        A("s_barrier")
        if prof: stamp(A, 1)
        A("s_setprio 3")
    if not inc:
        if prof: stamp(A, 8)
        A(f"""
        s_cmp_eq_u32 s40, 0
        s_cbranch_scc1 Lsh_poller
        """)
        A("s_sub_u32 s54, s40, 1")
        A(f"s_mul_i32 s61, s43, {WF_CG}")
        A(f"s_add_u32 s61, s61, {WF_OFF + (16 if v2 else 15)*PH}")
        ntot = 20 if v2 else 40
        for j in range((ntot + 2) // 3):
            lab = None
            if 3*j + 2 >= ntot:
                lab = A.label("w13")
                A(f"s_add_u32 s55, s54, {3*j}")
                A(f"s_cmp_lt_u32 s55, {ntot}")
                A(f"s_cbranch_scc0 {lab}")
            A(f"s_add_u32 s55, s54, {3*j}")
            A("s_lshl_b32 s55, s55, 10")
            A("s_mov_b32 m0, s55")
            A("s_add_u32 s55, s55, s61")
            A(f"buffer_load_dwordx4 v2, s[8:11], s55 offen lds")
            if lab: A(f"{lab}:")
        A(f"""
        s_branch Lsh_g
    Lsh_poller:
        s_mul_i32 s56, s14, {FROW}
        s_add_u32 s56, s56, {OFLAG_OFF}
        v_and_b32 v4, 31, v1
        v_lshlrev_b32 v4, 2, v4
        s_mov_b32 s60, 0x40000
        """)
        TG = 's62' if fused else '1'
        if ppo:
            A(f"""
            buffer_load_dword v166, v4, s[8:11], s56 offen sc1
            s_sleep {ppo}
    Lsh_poll:
            buffer_load_dword v167, v4, s[8:11], s56 offen sc1
            s_waitcnt vmcnt(1)
            v_cmp_eq_u32 vcc, {TG}, v166
            s_cmp_eq_u64 vcc, exec
            s_cbranch_scc1 Lsh_g0
            buffer_load_dword v166, v4, s[8:11], s56 offen sc1
            s_waitcnt vmcnt(1)
            v_cmp_eq_u32 vcc, {TG}, v167
            s_cmp_eq_u64 vcc, exec
            s_cbranch_scc1 Lsh_g0
            s_sub_u32 s60, s60, 1
            s_cbranch_scc0 Lsh_poll
    Lsh_g0:
            """)
        else:
            A(f"""
    Lsh_poll:
            buffer_load_dword v7, v4, s[8:11], s56 offen sc1
            s_waitcnt vmcnt(0)
            v_cmp_eq_u32 vcc, {TG}, v7
            s_cmp_eq_u64 vcc, exec
            s_cbranch_scc1 Lsh_g
            s_sleep {POLL_SLEEP}
            s_sub_u32 s60, s60, 1
            s_cbranch_scc0 Lsh_poll
            """)
        A(f"""
    Lsh_g:
        """)
        if prof:
            stamp(A, 7)
        A(f"""
        v_and_b32 v49, 15, v1
        s_lshl_b32 s45, s46, 4
        v_add_u32 v49, s45, v49
        v_lshlrev_b32 v50, 2, v49
        s_mov_b32 s58, {G_OFF}
        buffer_load_dword v6, v50, s[8:11], s58 offen
        v_lshrrev_b32 v48, 4, v1               ; lane>>4
        v_mul_u32_u24 v7, 1280, v49
        v_lshl_add_u32 v5, v48, 3, v7
        """)
        if ppo:
            A("""
            s_cmp_eq_u32 s40, 0
            s_cbranch_scc1 Lsh_nw
            s_waitcnt vmcnt(1) lgkmcnt(0)
    Lsh_nw:
            s_barrier
            """)
        else:
            A("s_waitcnt vmcnt(1) lgkmcnt(0)")
            A("s_barrier")
        A(f"""
        """)
        if prof: stamp(A, 2)
        def oload(k):
            return [f"s_add_u32 s55, s52, {k*1024}", f"buffer_load_dwordx4 v[{BF+4*k}:{BF+4*k+3}], v2, s[8:11], s55 offen{scl}"]
        PRE = 8
        for k in range(PRE):
            for l in oload(k): A(l)
        if prof: stamp(A, 3)
        def wrd(ks, fs):
            p = 12 + ks // 4; k = ks % 4
            if v2:
                if p < 15: base, so = "v3", (p % 4)*PH
                elif p == 15: base, so = "v0", 0
                else: base, so = "v2", 0
            elif p < 15: base, so = "v3", (p % 4)*PH
            else: base, so = "v2", (p - 15)*PH
            return [f"ds_read_b128 v[{WF[fs]+4*ct}:{WF[fs]+4*ct+3}], {base} offset:{so + k*5120 + ct*1024}" for ct in range(5)]
        for l in wrd(0, 0): A(l)
        for ks in range(20):
            if ks + PRE < 20:
                for l in oload(ks + PRE): A(l)
            issued = min(20, ks + PRE + 1)
            if ks < 19:
                for l in wrd(ks + 1, (ks + 1) & 1): A(l)
                A(f"s_waitcnt vmcnt({issued - 1 - ks}) lgkmcnt(5)")
            else:
                A("s_waitcnt vmcnt(0) lgkmcnt(0)")
            b = BF + 4*ks
            for ct in range(5):
                A(f"v_mfma_f32_16x16x32_bf16 v[{ACC_A+4*ct}:{ACC_A+4*ct+3}], v[{WF[ks&1]+4*ct}:{WF[ks&1]+4*ct+3}], v[{b}:{b+3}], v[{ACC_A+4*ct}:{ACC_A+4*ct+3}]")
    else:
        if prof: stamp(A, 8)
        A(f"s_mul_i32 s61, s43, {WF_CG}")
        A(f"s_add_u32 s61, s61, {WF_OFF + 15*PH}")
        for j in range(10):
            A(f"s_add_u32 s55, s40, {4*j}")
            A("s_lshl_b32 s55, s55, 10")
            A("s_mov_b32 m0, s55")
            A("s_add_u32 s55, s55, s61")
            A(f"buffer_load_dwordx4 v2, s[8:11], s55 offen lds")
        A(f"""
        v_and_b32 v49, 15, v1
        s_lshl_b32 s45, s46, 4
        v_add_u32 v49, s45, v49
        v_lshlrev_b32 v50, 2, v49
        s_mov_b32 s58, {G_OFF}
        buffer_load_dword v6, v50, s[8:11], s58 offen
        v_lshrrev_b32 v48, 4, v1
        v_mul_u32_u24 v7, 1280, v49
        v_lshl_add_u32 v51, v48, 3, v7
        v_mov_b32 v1, v51
        """)
        lab = A.label("s13")
        A(f"""
        s_waitcnt vmcnt(1) lgkmcnt(0)
        v_mov_b32 v48, 13
        ds_write_b32 v5, v48
        s_mov_b32 s60, 0x100000
        {lab}:
        ds_read_b32 v48, v4
        s_waitcnt lgkmcnt(0)
        v_cmp_le_u32 vcc, 13, v48
        s_cmp_eq_u64 vcc, exec
        s_cbranch_scc1 {lab}_ok
        s_sub_u32 s60, s60, 1
        s_cbranch_scc0 {lab}
        {lab}_ok:
        """)
        if prof:
            stamp(A, 7); stamp(A, 6)
        def wrd2(ks, fs):
            p = 12 + ks // 4; k = ks % 4
            if p < 15: base, so = "v3", (p % 4)*PH
            else: base, so = "v2", (p - 15)*PH
            return [f"ds_read_b128 v[{WF[fs]+4*ct}:{WF[fs]+4*ct+3}], {base} offset:{so + k*5120 + ct*1024}" for ct in range(5)]
        def ophase(q, vm):
            A(f"s_waitcnt vmcnt({vm})")
            for l in wrd2(4*q, 0): A(l)
            for k in range(4):
                ks = 4*q + k
                if k < 3:
                    for l in wrd2(ks + 1, (k + 1) & 1): A(l)
                    A("s_waitcnt lgkmcnt(5)")
                else:
                    A("s_waitcnt lgkmcnt(0)")
                b = BF + 4*ks
                for ct in range(5):
                    A(f"v_mfma_f32_16x16x32_bf16 v[{ACC_A+4*ct}:{ACC_A+4*ct+3}], v[{WF[k&1]+4*ct}:{WF[k&1]+4*ct+3}], v[{b}:{b+3}], v[{ACC_A+4*ct}:{ACC_A+4*ct+3}]")
        for p in range(5):
            lds_spin(A, FLAG + LF_ORDY, p + 1, 1, tmp=(48, 49), sleep=1, cnt="s60")
            if p == 0 and prof: stamp(A, 2)
            for k in range(4):
                A(f"s_add_u32 s55, s52, {(4*p + k)*1024}")
                A(f"buffer_load_dwordx4 v[{BF+4*(4*p+k)}:{BF+4*(4*p+k)+3}], v2, s[8:11], s55 offen{scl}")
            LAG = inc
            if p >= LAG: ophase(p - LAG, 4*LAG)
        if prof: stamp(A, 3)
        for q in range(5 - inc, 5): ophase(q, 4*(4 - q))
        A("v_mov_b32 v5, v1")
    if prof: stamp(A, 4)
    A("s_nop 7")
    A("s_mul_i32 s48, s43, 160")
    for ct in range(5):
        b = ACC_B + 4*ct; a = ACC_A + 4*ct
        for i in range(4):
            A(f"v_sub_f32 v{a+i}, v{a+i}, v{b+i}")
        for i in range(4):
            A(f"v_fma_f32 v{a+i}, v6, v{a+i}, v{b+i}")
        A(f"v_cvt_pk_bf16_f32 v{48+2*ct}, v{a}, v{a+1}")
        A(f"v_cvt_pk_bf16_f32 v{49+2*ct}, v{a+2}, v{a+3}")
        A(f"buffer_store_dwordx2 v[{48+2*ct}:{49+2*ct}], v5, s[24:27], s48 offen offset:{ct*32}{OUTF}")
    if prof == 2:
        stamp(A, 5)
        A("s_memrealtime s[88:89]")
        A("s_waitcnt lgkmcnt(0)")
        A("s_sub_u32 s88, s88, s94")
        for i, src in enumerate(("s80", "s79", "s70", "s71", "s72", "s75", "s88")):
            A(f"v_writelane_b32 v48, {src}, {i}")
        dbg_dump_lanes(A, 48, 9, 7, 37, 12, 8)
    elif prof:
        stamp(A, 5)
        dump_stamps(A, 1, 8, 12, 14, tmp=50)
        A("s_mov_b64 exec, -1")
        A("s_mov_b32 s90, 0")
        prof_end(A, 1, 8, 12, tmpv=(16, 17, 18, 19, 20), extra="s90")
    A("s_endpgm")
```

```python
from asm import *
from common import *
from k2 import vslot

NAME = "k1_kernel"
SLOT = 45056
XO, WQO, W1O = 0, 16384, 32768
GATE_LDS = 3 * SLOT
UNIT_LDS = 3 * SLOT + 1536
LDS_BYTES = UNIT_LDS + 3*4096


def spf_setup(A):
    A(f"""
    s_and_b32 s41, s2, 7
    s_and_b32 s43, s41, 1                  ; rh
    s_lshr_b32 s44, s41, 1                 ; cq
    s_lshr_b32 s45, s2, 3                  ; i
    s_lshl_b32 s47, s43, 10
    s_lshl_b32 s48, s45, 5
    s_add_u32 s47, s47, s48
    s_mul_i32 s47, s47, 1280               ; (rh*1024 + 32i)*1280
    s_add_u32 s56, s4, s47
    s_addc_u32 s57, s5, 0
    s_lshl_b32 s47, s45, 1
    s_mul_i32 s48, s47, 3840
    s_lshl_b32 s49, s44, 10
    s_add_u32 s48, s48, s49                ; 2i*3840 + cq*1024
    s_add_u32 s58, s6, s48
    s_addc_u32 s59, s7, 0
    s_cmp_eq_u32 s44, 3
    s_cselect_b32 s49, 256, 0
    s_sub_u32 s48, s48, s49
    s_add_u32 s78, s6, s48
    s_addc_u32 s79, s7, 0
    s_mul_i32 s48, s47, 3072
    s_mul_i32 s49, s44, 768
    s_add_u32 s48, s48, s49
    s_add_u32 s86, s8, s48
    s_addc_u32 s87, s9, 0
    """)
def spf_lines(h):
    x = [("s[56:57]", j*1280, 128) for j in range(32)]
    wq = [("s[58:59]" if l < 6 else "s[78:79]", r*3840 + l*128, 64*3840) for r in range(2) for l in range(8)]
    w1 = [("s[86:87]", r*3072 + l*128, 64*3072) for r in range(2) for l in range(6)]
    return (x + wq + w1)[15*h:15*h + 15]
def spf_issue(A, h, st, n):
    for k, (b, off, step) in enumerate(spf_lines(h)[:n]):
        o = off + st*step
        if o < (1 << 20):
            A(f"s_load_dword s{68 + (k % 7)}, {b}, {o:#x}")
        else:
            A(f"s_mov_b32 s49, {o}")
            A(f"s_load_dword s{68 + (k % 7)}, {b}, s49")

def gen_helpers(A, FL, pf, mprof, hprio=0, pfa=0, spf=0, cpf=1, KN=None, nounits=0, constlate=0, lateu=0, ustart=0):
    UL = UNIT_LDS
    spf_n = spf
    def spf(st, first=False):
        if not spf_n or st > 9: return
        lab = A.label("spf")
        A(f"s_cmp_eq_u32 s32, 9")
        A(f"s_cbranch_scc0 {lab}_2")
        spf_issue(A, 1, st, spf_n)
        A(f"s_branch {lab}")
        A(f"{lab}_2:")
        A(f"s_cmp_eq_u32 s32, 10")
        A(f"s_cbranch_scc0 {lab}_3")
        spf_issue(A, 2, st, spf_n)
        A(f"s_branch {lab}")
        A(f"{lab}_3:")
        spf_issue(A, 3, st, spf_n)
        A(f"{lab}:")
    A(f"""
    s_cmp_eq_u32 s32, 8
    s_cbranch_scc1 Lk1_H0
    s_sub_u32 s40, s32, 10
    s_cmp_eq_u32 s32, 9
    s_cselect_b32 s40, 2, s40
    """)
    if cpf:
        A(f"""
        s_cmp_eq_u32 s32, 11
        s_cbranch_scc0 Lk1_nocpf
        s_getpc_b64 s[50:51]
Lk1_pc:
        s_sub_u32 s50, s50, Lk1_pc - {KN}
        s_subb_u32 s51, s51, 0
        s_lshr_b32 s52, s2, 3
        s_mul_i32 s52, s52, (Lcode_end - {KN} + 4095) / 4096
        v_add_u32 v20, s52, v2
        v_min_u32 v20, (Lcode_end - {KN} - 4) / 128, v20
        v_lshlrev_b32 v20, 7, v20
        v_cmp_gt_u32 vcc, (Lcode_end - {KN} + 4095) / 4096, v2
        s_and_saveexec_b64 s[52:53], vcc
        global_load_dword v21, v20, s[50:51]
        s_mov_b64 exec, s[52:53]
Lk1_nocpf:
        """)
    A(f"""
    s_cmp_eq_u32 s32, 10
    s_cbranch_scc0 Lk1_Hn2
    v_lshlrev_b32 v3, 2, v2
    v_add_u32 v3, {FL}, v3
    v_mov_b32 v4, 0
    ds_write_b32 v3, v4
    s_waitcnt lgkmcnt(0)
Lk1_Hn2:
    s_cmp_eq_u32 s32, 9
    s_cbranch_scc0 Lk1_Hn1
    s_load_dwordx2 s[50:51], s[0:1], 72    ; d_debug
    s_waitcnt lgkmcnt(0)
    """)
    srd(A, 52, 50, 256)
    A(f"""
    s_cmp_eq_u32 s2, 0
    s_cbranch_scc0 Lk1_Hn1
    s_memrealtime s[50:51]
    s_waitcnt lgkmcnt(0)
    s_or_b32 s50, s50, 1
    v_mov_b32 v3, s50
    v_mov_b32 v4, 0
    s_mov_b64 exec, 1
    buffer_store_dword v3, v4, s[52:55], 0 offen sc1
    s_mov_b64 exec, -1
Lk1_Hn1:
    """)
    if spf_n: spf_setup(A)
    A(f"""
    ; unit: idx = wg + 256u (< 680): ksg = idx/10, blk = idx%10
    s_lshl_b32 s41, s40, 8
    s_add_u32 s41, s41, s2
    s_mul_i32 s45, s41, 6554
    s_lshr_b32 s45, s45, 16                ; ksg
    s_mul_i32 s47, s45, 10
    s_sub_u32 s47, s41, s47                ; blk
    s_cmp_lt_u32 s45, 48
    s_cselect_b32 s96, s80, s82
    s_cselect_b32 s97, s81, s83
    s_mov_b32 s98, {W2_BYTES}
    s_cselect_b32 s98, s98, {WO_BYTES}
    s_cselect_b32 s100, 0, 48
    s_and_b32 s97, s97, 0xffff
    s_mov_b32 s99, 0x00020000
    s_sub_u32 s100, s45, s100
    s_mul_i32 s100, s100, {32*1280}
    s_lshl_b32 s101, s47, 7
    s_add_u32 s100, s100, s101
    s_lshl_b32 s77, s47, 2                 ; c0
    s_mul_i32 s101, s45, 5120
    s_lshl_b32 s75, s40, 12
    s_add_u32 s75, s75, {UL}
    s_cmp_lt_u32 s41, {0 if nounits else 680}
    s_cselect_b32 s76, 1, 0
    v_lshrrev_b32 v8, 3, v2
    v_mul_u32_u24 v8, 1280, v8
    v_and_b32 v3, 7, v2
    v_lshl_add_u32 v8, v3, 4, v8
    v_lshrrev_b32 v9, 4, v2
    v_bfe_u32 v3, v2, 2, 2
    v_lshl_add_u32 v9, v9, 3, v3
    v_lshlrev_b32 v9, 7, v9
    v_and_b32 v3, 3, v2
    v_lshl_add_u32 v9, v3, 3, v9
    v_add_u32 v9, s75, v9
    v_lshlrev_b32 v10, 4, v2
    s_barrier                              ; Bs0
    """)
    spf(2); spf(3)
    A("s_barrier")
    spf(4)
    def ustart_code():
        A(f"""
        s_cmp_eq_u32 s76, 1
        s_cbranch_scc0 Lk1_nous
        """)
        for j in range(4):
            A(f"s_add_u32 m0, s75, {j*1024}")
            A(f"s_add_u32 s48, s100, {j*8*1280}")
            A(f"buffer_load_dwordx4 v8, s[96:99], s48 offen lds")
        A("Lk1_nous:")
    if ustart == 0: ustart_code()
    A("s_barrier")
    spf(5)
    if ustart == 1: ustart_code()
    A("s_barrier")
    spf(6)
    if ustart == 2: ustart_code()
    A("s_barrier")
    spf(7)
    if ustart == 3: ustart_code()
    A(f"""
    s_cmp_eq_u32 s32, 9
    s_cbranch_scc0 Lk1_notag
    v_mov_b32 v4, 0
    s_mov_b32 s50, 0x40000
Lk1_tagpoll:
    buffer_load_dword v3, v4, s[52:55], 0 offen sc1
    s_waitcnt vmcnt(0)
    v_readfirstlane_b32 s51, v3
    s_nop 3
    s_cmp_lg_u32 s51, 0
    s_cbranch_scc1 Lk1_gottag
    s_sleep 4
    s_sub_u32 s50, s50, 1
    s_cbranch_scc0 Lk1_tagpoll
Lk1_gottag:
    v_mov_b32 v4, {FL + LF_TAG}
    ds_write_b32 v4, v3
    s_waitcnt lgkmcnt(0)
Lk1_notag:
    s_barrier                              ; B_4
    """)
    spf(8)
    A("s_barrier")
    spf(9)
    A(f"""
    s_barrier                              ; B_6
    s_barrier                              ; B_7
    s_cmp_eq_u32 s76, 1
    s_cbranch_scc0 Lk1_nouf
    s_waitcnt vmcnt(0)
    """)
    for cc in range(4):
        A(f"ds_read_b64_tr_b16 v[{20+4*cc}:{21+4*cc}], v9 offset:{cc*32}")
        A(f"ds_read_b64_tr_b16 v[{22+4*cc}:{23+4*cc}], v9 offset:{cc*32 + 512}")
    A("s_waitcnt lgkmcnt(0)")
    for cc in range(4):
        A(f"""
        s_add_u32 s41, s77, {cc}               ; c
        s_mul_i32 s45, s41, 205
        s_lshr_b32 s45, s45, 10                ; cg8 = c/5
        s_mul_i32 s47, s45, 5
        s_sub_u32 s47, s41, s47                ; ct
        s_mul_i32 s45, s45, {WF_CG}
        s_lshl_b32 s47, s47, 10
        s_add_u32 s45, s45, s47
        s_add_u32 s45, s45, s101
        s_add_u32 s45, s45, {WF_OFF}
        buffer_store_dwordx4 v[{20+4*cc}:{23+4*cc}], v10, s[24:27], s45 offen sc1
        """)
    A(f"""
Lk1_nouf:
    s_barrier                              ; B_8
    s_barrier                              ; B_9
    s_barrier                              ; B_10
    s_waitcnt vmcnt(0)
    s_lshl_b32 s41, s40, 2
    s_add_u32 s41, s41, {FL + LF_HD}
    v_mov_b32 v4, s41
    v_mov_b32 v5, 1
    {"" if lateu else "ds_write_b32 v4, v5"}
    s_cmp_eq_u32 s32, 11
    s_cbranch_scc0 Lattn_entry
    """)
    if not lateu:
        lds_spin(A, FL + LF_HD, 1, 4)
        get_tag(A, FL + LF_TAG, "s50")
        publish256(A, 24, F1W_OFF, "s50")
    A("s_branch Lattn_entry")
    A(f"""
Lk1_H0:
    s_setprio {hprio}
    s_cmp_lt_u32 s35, 10
    s_cbranch_scc1 Lk1_noconst
    s_cmp_eq_u32 s35, 15
    s_cbranch_scc1 Lk1_noconst
    s_lshl_b32 s41, s46, 7
    s_add_u32 s42, s41, 19
    s_mul_i32 s42, s42, 3277
    s_lshr_b32 s42, s42, 16                ; h0
    s_add_u32 s43, s41, 127
    s_mul_i32 s43, s43, 3277
    s_lshr_b32 s43, s43, 16                ; h1
    s_min_u32 s43, s43, 31
    v_lshrrev_b32 v11, 5, v2
    v_bfe_u32 v12, v2, 3, 2
    s_lshl_b32 s44, s34, 2
    v_add_u32 v12, s44, v12                ; T
    v_lshrrev_b32 v13, 3, v12
    v_mul_u32_u24 v13, {CH}, v13
    v_and_b32 v12, 7, v12
    v_mul_u32_u24 v12, {VT}, v12
    v_add_u32 v12, v12, v13
    v_bfe_u32 v13, v2, 1, 2
    v_mul_u32_u24 v13, {VH}, v13
    v_add_u32 v12, v12, v13
    v_and_b32 v13, 1, v2
    v_mul_u32_u24 v14, 112, v13
    v_add_u32 v12, v12, v14
    v_add_u32 v12, {KV_OFF + VPART + 128}, v12
    v_cmp_eq_u32 vcc, 0, v13
    v_mov_b32 v14, 0x3f803f80
    s_mov_b32 s45, {HSK}
    v_cndmask_b32 v20, 0, v14, vcc
    v_mov_b32 v21, v20
    v_mov_b32 v22, v20
    v_mov_b32 v23, v20
    """)
    def const_stores():
        for t in range(4):
            lab = A.label("cv")
            A(f"""
            s_add_u32 s47, s88, {2*t}
            v_add_u32 v15, s47, v11                ; head
            v_cmp_ge_u32 vcc, s89, v15
            v_mul_lo_u32 v15, v15, s90
            v_add_u32 v15, v15, v12
            s_and_saveexec_b64 s[50:51], vcc
            s_cbranch_execz {lab}
            buffer_store_dwordx4 v[20:23], v15, s[24:27], 0 offen sc1
            {lab}:
            s_mov_b64 exec, s[50:51]
            """)
    A("""
    s_mov_b32 s88, s42
    s_mov_b32 s89, s43
    s_mov_b32 s90, s45
    s_mov_b32 s91, 1
    """)
    if not constlate: const_stores()
    A("s_branch Lk1_hasconst")
    A(f"""
Lk1_noconst:
    s_mov_b32 s91, 0
Lk1_hasconst:
    """)
    if spf_n: spf_setup(A)
    A(f"""
    s_and_b32 s41, s2, 7
    s_and_b32 s43, s41, 1                  ; rh
    s_lshr_b32 s44, s41, 1                 ; cq
    s_lshr_b32 s45, s2, 3                  ; i
    v_mov_b32 v13, 0x7ffffff0
    s_lshl_b32 s46, s43, 10
    s_lshl_b32 s47, s45, 5
    s_add_u32 s46, s46, s47
    v_add_u32 v3, s46, v2
    v_mul_u32_u24 v3, 1280, v3
    v_cmp_gt_u32 vcc, 32, v2
    s_nop 1
    v_cndmask_b32 v4, v13, v3, vcc
    v_lshrrev_b32 v3, 3, v2
    s_lshl_b32 s47, s45, 1
    v_add_u32 v3, s47, v3
    v_mul_u32_u24 v3, 3840, v3
    v_and_b32 v5, 7, v2
    v_lshlrev_b32 v5, 7, v5
    s_lshl_b32 s48, s44, 10
    v_add_u32 v5, s48, v5
    v_cmp_gt_u32 vcc, 3840, v5
    v_add_u32 v5, v5, v3
    v_cmp_gt_u32 s[50:51], 16, v2
    s_and_b64 vcc, vcc, s[50:51]
    s_nop 1
    v_cndmask_b32 v5, v13, v5, vcc
    v_cmp_lt_u32 vcc, 5, v2
    v_mov_b32 v6, 0
    v_mov_b32 v7, 1
    v_cndmask_b32 v3, v6, v7, vcc
    v_mul_u32_u24 v6, 6, v3
    v_sub_u32 v6, v2, v6
    v_lshlrev_b32 v6, 7, v6
    v_add_u32 v3, s47, v3
    v_mul_u32_u24 v3, 3072, v3
    v_add_u32 v6, v6, v3
    s_mul_i32 s48, s44, 768
    v_add_u32 v6, s48, v6
    v_cmp_gt_u32 vcc, 12, v2
    s_nop 1
    v_cndmask_b32 v6, v13, v6, vcc
    s_barrier                              ; Bs0
    """)
    def PF(st):
        A(f"s_mov_b32 s46, {st*128}")
        A(f"buffer_load_dword v16, v4, s[16:19], s46 offen")
        A(f"s_mov_b32 s47, {st*64*3840}")
        A(f"buffer_load_dword v17, v5, s[60:63], s47 offen")
        A(f"s_mov_b32 s48, {st*64*3072}")
        A(f"buffer_load_dword v18, v6, s[64:67], s48 offen")
    def PFW1(st):
        A(f"s_mov_b32 s48, {st*64*3072}")
        A(f"buffer_load_dword v18, v6, s[64:67], s48 offen")
    if pf == 1:
        for st in range(2, 4 + pfa): PF(st)
    if spf_n:
        spf_issue(A, 0, 2, spf_n); spf_issue(A, 0, 3, spf_n)
    A("s_barrier")
    for k in range(10):
        if pf == 1 and 4 + pfa + k <= 9: PF(4 + pfa + k)
        if pf == 3: PFW1(k)
        if spf_n and 4 + k <= 9: spf_issue(A, 0, 4 + k, spf_n)
        if constlate and k == constlate:
            A("s_cmp_eq_u32 s91, 1")
            A("s_cbranch_scc0 Lk1_nocl")
            const_stores()
            A("Lk1_nocl:")
        A("s_barrier")
    A("s_waitcnt vmcnt(0)")
    if mprof: wl_stamp(A, 160, 0)
    lds_set(A, FL + LF_HD + 12, 1)
    A("s_branch Lattn_entry")

def gen_k1(prof=False, mode=0, pf=2, rot=1, tlb=1, tl=0, sc=0, cpf=1, wfsc=1, fused=None, mprof=0, rtrig=2, cpf2=0, dbg2=0, hprio=0, pfa=0, v5=0, spf=0, rprio=0, pprio=0, nounits=0, lateu=0, ustart=0, constlate=0):
    global SLOT, GATE_LDS, UNIT_LDS
    if fused and v5:
        SLOT = 32768; GATE_LDS = 3*SLOT; UNIT_LDS = GATE_LDS + 1536
    else:
        v5 = 0
    SC = {0: '', 1: ' sc1', 2: ' nt', 3: ' sc0 sc1'}[sc & 3]
    SCQ = SC if sc & 4 else ''
    SCW = ' sc1' if wfsc else ''
    KN = fused if fused else NAME
    FL = MEGA_FLAG
    if fused:
        SC = SCQ = SCW = ' sc1'
        tlb = 0
    ROT = rot
    A0 = Asm()
    class F:
        def __init__(s): s.inloop = False
        def __call__(s, l):
            for x in l.strip("\n").split("\n"):
                xs = x.strip()
                if s.inloop:
                    if mode == 1 and xs.startswith("buffer_load") : continue
                    if mode == 2 and (xs.startswith("v_mfma") or xs.startswith("ds_read")): continue
                    if mode == 3 and xs.startswith("v_mfma"): continue
                    if mode in (4, 6) and xs.startswith("s_barrier"): continue
                    if mode == 6 and xs.startswith("buffer_load"): continue
                    if mode == 5 and xs.startswith("ds_read"): continue
                    if mode == 7 and (xs.startswith("buffer_load") or xs.startswith("ds_read")): continue
                    if mode == 8 and (xs.startswith("buffer_load") or xs.startswith("ds_read") or xs.startswith("s_barrier")): continue
                    if mode == 10 and (xs.startswith("buffer_load") or xs.startswith("ds_read") or xs.startswith("s_barrier") or xs.startswith("s_add_u32 m0") or xs.startswith("s_add_u32 s48") or xs.startswith("s_nop 0") or xs.startswith("v_add_u32")): continue
                if xs.endswith("_loop:"): s.inloop = True
                if xs.startswith("s_cbranch_scc1") and xs.endswith("g_loop"): s.inloop = False
                A0(x)
        def label(s, b): return A0.label(b)
        def text(s): return A0.text()
    A = F()
    A(khead(KN))
    A(f"""
    s_cmp_ge_u32 s2, 256
    s_cbranch_scc1 Lk1_exit
    """)
    if prof or mprof: prof_start(A)
    if tl: tl_start(A, 0)
    if cpf and not fused:
        A(f"""
        s_getpc_b64 s[80:81]
Lk1_pc:
        s_sub_u32 s80, s80, Lk1_pc - {KN}
        s_subb_u32 s81, s81, 0
        s_lshr_b32 s82, s2, 3
        s_mul_i32 s82, s82, (Lcode_end - {KN} + 4095) / 4096
        v_and_b32 v61, 63, v0
        v_add_u32 v61, s82, v61
        v_min_u32 v61, (Lcode_end - {KN} - 4) / 128, v61
        v_lshlrev_b32 v61, 7, v61
        v_lshrrev_b32 v60, 6, v0
        v_and_b32 v59, 63, v0
        v_cmp_gt_u32 vcc, (Lcode_end - {KN} + 4095) / 4096, v59
        v_cmp_eq_u32 s[82:83], 7, v60
        s_and_b64 vcc, vcc, s[82:83]
        s_and_saveexec_b64 s[82:83], vcc
        s_cbranch_execz Lk1_nocpf
        global_load_dword v61, v61, s[80:81]
Lk1_nocpf:
        s_mov_b64 exec, s[82:83]
        """)
    A(f"""
    s_load_dwordx2 s[80:81], s[0:1], 48    ; w2
    s_load_dwordx2 s[82:83], s[0:1], 16    ; wo
    s_load_dwordx4 s[4:7], s[0:1], 0       ; A_x, wqkv
    s_load_dwordx4 s[8:11], s[0:1], 32     ; w1, b1
    s_load_dwordx2 s[12:13], s[0:1], 56    ; gate_w
    s_load_dwordx2 s[14:15], s[0:1], 80    ; ws
    v_lshrrev_b32 v1, 6, v0
    v_and_b32 v2, 63, v0                   ; lane
    s_and_b32 s41, s2, 7                   ; xcd
    v_readfirstlane_b32 s32, v1
    """)
    if fused:
        A("""
        s_nop 3
        s_mov_b32 s85, s32
        s_sub_u32 s42, s32, 4
        s_add_u32 s43, s32, 4
        s_cmp_ge_u32 s32, 8
        s_cselect_b32 s43, s42, s43
        s_cmp_lt_u32 s32, 4
        s_cselect_b32 s32, s32, s43
        """)
    A(f"""
    s_lshr_b32 s42, s2, 3                  ; i
    s_and_b32 s43, s41, 1
    s_lshl_b32 s43, s43, 3
    s_and_b32 s44, s42, 7
    s_add_u32 s34, s43, s44                ; rb
    s_lshr_b32 s43, s41, 1
    s_lshl_b32 s43, s43, 2
    s_lshr_b32 s44, s42, 3
    s_add_u32 s35, s43, s44                ; cgp
    s_mul_i32 s45, s35, 52
    s_lshr_b32 s45, s45, 8                 ; cgp/5
    s_add_u32 s33, s45, 1
    s_mul_i32 s45, s45, 5
    s_sub_u32 s46, s35, s45                ; cbl (0..4)
    s_cmp_eq_u32 s35, 15
    s_cselect_b32 s33, 0, s33
    v_lshrrev_b32 v3, 3, v2
    v_mul_u32_u24 v3, 1280, v3
    v_and_b32 v13, 7, v2
    v_lshrrev_b32 v14, 4, v2               ; lane>>4
    v_xor_b32 v15, v13, v14
    v_lshl_add_u32 v10, v15, 4, v3         ; even u
    v_xor_b32 v15, 4, v15
    v_lshl_add_u32 v11, v15, 4, v3         ; odd u
    s_lshl_b32 s37, s34, 7                 ; rb*128
    """)
    if v5:
        A("""
        s_sub_u32 s41, s32, 4
        s_and_b32 s41, s41, 3
        s_lshl_b32 s42, s41, 12
        s_lshl_b32 s41, s41, 5
        """)
    else:
        A("""
        s_lshl_b32 s41, s32, 4                 ; w*16 rows
        s_lshl_b32 s42, s32, 11
        """)
    A(f"""
    s_add_u32 s37, s37, s41
    s_mul_i32 s37, s37, 1280
    s_lshr_b32 s57, s2, 3                  ; i
    s_and_b32 s78, s57, 7
    s_lshr_b32 s57, s57, 3
    s_lshl_b32 s57, s57, 1
    s_add_u32 s78, s78, s57
    s_mul_i32 s78, s78, {1 if ROT else 0}
    s_mov_b32 s56, 0
    s_mov_b32 s69, 0
    s_mov_b32 s58, s37
    s_mov_b32 s79, 0
    """)
    if ROT == 2:
        A("""
        s_cmp_ge_u32 s78, 10
        s_cselect_b32 s57, 10, 0
        s_sub_u32 s78, s78, s57
        s_mov_b32 s79, s78
        s_mov_b32 s69, s78
        s_lshl_b32 s57, s79, 7
        s_add_u32 s37, s58, s57
        """)
    A(f"""
    s_waitcnt lgkmcnt(0)
    """)
    if prof:
        A("s_memtime s[88:89]")
        A("s_waitcnt lgkmcnt(0)")
        A("s_sub_u32 s87, s88, s92")
    srd(A, 16, 4, X_BYTES)
    srd_ws(A, 24, 14, WS_RECORDS)
    srd(A, 60, 6, WQKV_BYTES)
    srd(A, 64, 8, W1_BYTES)
    if not fused:
        A(f"""
        s_cmp_eq_u32 s32, 7
        s_cbranch_scc0 Lk1_noflag
        s_lshl_b32 s41, s2, 2
        s_add_u32 s41, s41, {OFLAG_OFF}
        v_mov_b32 v3, 0
        s_mov_b64 exec, 1
        buffer_store_dword v3, v3, s[24:27], s41 offen
        s_mov_b64 exec, -1
    Lk1_noflag:
        """)
    if tlb:
        A("s_cmp_eq_u32 s32, 0")
        A("s_cbranch_scc0 Lk1_notouch")
        srd(A, 28, 10, B1_BYTES)
        A("v_mov_b32 v3, 0")
        MB2 = 2 << 20
        touch(A, [(16, "s37"), (60, 0), (60, MB2), (64, 0), (28, 0)] + [(24, k*MB2) for k in range(7)] + [(24, G_OFF)], 3, 1)
        A("Lk1_notouch:")
    A(f"""
    s_cmp_ge_u32 s32, 8
    s_cbranch_scc1 Lk1_H
    s_cmp_ge_u32 s32, 4
    s_cbranch_scc1 Lk1_R
    """)

    def adv_group(ws):
        if ROT == 2:
            g = ["s_add_u32 s79, s79, 1", "s_cmp_eq_u32 s79, 10", "s_cselect_b32 s79, 0, s79", "s_lshl_b32 s57, s79, 7", "s_add_u32 s37, s58, s57"]
        else:
            g = ["s_add_u32 s56, s56, 1", "s_add_u32 s57, s56, s78", "s_sub_u32 s57, s57, 2", "s_and_b32 s57, s57, 7", "s_add_u32 s57, s57, 2",
                 "s_cmp_lt_u32 s56, 2", "s_cselect_b32 s79, s56, s57", "s_lshl_b32 s57, s79, 7", "s_add_u32 s37, s58, s57"]
        if ws:
            g += [f"s_mul_i32 s57, s79, {ws}", "s_add_u32 s38, s59, s57"]
        return g

    def x_dma(slot_sgpr):
        g = []
        for j in range(4 if v5 else 2):
            g.append([f"s_add_u32 m0, {slot_sgpr}, {j*1024}", f"s_add_u32 s48, s37, {j*10240}",
                      f"buffer_load_dwordx4 v{10 + (j & 1)}, s[16:19], s48 offen lds"])
        return g

    def xfrag_addr(rowbase_expr_sgpr):
        A(f"""
        v_and_b32 v3, 31, v2                   ; token
        v_lshrrev_b32 v13, 5, v2               ; hf
        v_bfe_u32 v14, v2, 1, 3
        v_xor_b32 v14, v13, v14
        v_lshlrev_b32 v14, 4, v14
        v_lshl_add_u32 v14, v3, 7, v14
        v_add_u32 v56, {rowbase_expr_sgpr}, v14
        v_xor_b32 v57, 32, v56
        v_xor_b32 v58, 64, v56
        v_xor_b32 v59, 96, v56
        """)

    def set_slot(nw, sgpr):
        out = [f"v_add_u32 v{4+k}, {sgpr}, v{56+k}" for k in range(4)]
        out += [f"v_add_u32 v{8+k}, {sgpr}, v{60+k}" for k in range(nw)]
        return out

    def interleave(ms, others):
        n = len(ms)
        per = (len(others) + n - 1) // n
        k = 0
        for i, m in enumerate(ms):
            A(m)
            for grp in others[k:k+per]:
                for l in grp: A(l)
            k += per

    def kstep(ms, rd, extra, wait=True, skip_last=False):
        if wait: A("s_waitcnt lgkmcnt(0)")
        n = len(ms) - (1 if skip_last else 0)
        A(ms[0])
        for grp in rd:
            for l in grp: A(l)
        slots = max(1, n - 1)
        per = (len(extra) + slots - 1) // slots if extra else 0
        k = 0
        for i in range(1, n):
            A(ms[i])
            for grp in extra[k:k+per]:
                for l in grp: A(l)
            k += per
        for grp in extra[k:]:
            for l in grp: A(l)

    def loop(tag, nown, reads, mfmas, dma_groups, nw, unit=False):
        A(f"s_waitcnt vmcnt({nown})")
        A("s_barrier")
        if dbg2 and nw == 2: wl_stamp(A, 160, 4)
        if prof:
            A("s_memtime s[90:91]")
            A("s_waitcnt lgkmcnt(0)")
            A("s_sub_u32 s90, s90, s92")
        for l in set_slot(nw, "0"): A(l)
        for l in reads(0, 0): A(l)
        A(f"s_mov_b32 s50, {SLOT}")
        A.inloop = True
        g = dma_groups()
        adv = g[-1]; g = g[:-1]
        parts = [[], [], [], []]
        for i, grp in enumerate(g): parts[i * 4 // len(g)].append(grp)
        R = lambda ks, fs: [[l] for l in reads(ks, fs)]
        rot = [["s_mov_b32 s51, s50", f"s_add_u32 s50, s50, {SLOT}", f"s_cmp_ge_u32 s50, {3*SLOT}", "s_cselect_b32 s50, 0, s50",
                "s_add_u32 s52, s51, s42", "s_add_u32 s53, s51, s43"]]
        A(f"s_add_u32 s52, s42, {2*SLOT}")
        A(f"s_add_u32 s53, s43, {2*SLOT}")
        kstep(mfmas(0), R(1, 1), parts[0] + parts[1])
        kstep(mfmas(1), R(2, 0), parts[2])
        kstep(mfmas(0), R(3, 1), parts[3] + [adv] + [["s_mov_b32 s52, s42", "s_mov_b32 s53, s43", "s_mov_b32 s40, 0"]], skip_last=True)
        def section(dma, vm, final=False, ug=None):
            A(mfmas(0)[-1])
            A(f"s_waitcnt vmcnt({vm}) lgkmcnt(0)")
            A("s_barrier")
            if final:
                for m in mfmas(1): A(m)
                return
            rd = R(0, 0)
            rd[0] = set_slot(nw, "s50") + rd[0]
            P_ = parts if dma else [[], [], [], []]
            kstep(mfmas(1), rd, P_[0], wait=False)
            kstep(mfmas(0), R(1, 1), P_[1] + (ug or []))
            kstep(mfmas(1), R(2, 0), P_[2])
            tail = (P_[3] + [adv] if dma else []) + rot
            if dma: tail = tail + [["s_add_u32 s40, s40, 1", "s_cmp_lt_u32 s40, 7"]]
            kstep(mfmas(0), R(3, 1), tail, skip_last=True)
        A(f"L{tag}_loop:")
        section(True, nown)
        A(f"s_cbranch_scc1 L{tag}_loop")
        ug = []
        if unit:
            for j in range(4):
                ug.append([f"s_add_u32 m0, s76, {j*1024}", f"s_add_u32 s48, s100, {j*8*1280}", f"buffer_load_dwordx4 v62, s[96:99], s48 offen lds"])
            A("s_lshl_b32 s76, s32, 12")
            A("s_add_u32 s76, s76, s51")
        section(False, nown, ug=ug)
        section(False, 4 if unit else 0)
        section(False, 4 if unit else 0, final=True)
        A.inloop = False
        A("s_nop 15")
        if prof:
            A("s_memtime s[88:89]")
            A("s_waitcnt lgkmcnt(0)")
            A("s_sub_u32 s91, s88, s92")

    A(f"""
    s_cmp_eq_u32 s33, 0
    s_cbranch_scc1 Lk1_gate
    """)
    if pprio: A(f"s_setprio {pprio}")
    srd(A, 20, 6, WQKV_BYTES)
    A(f"""
    s_mov_b32 s36, 3840
    v_and_b32 v13, 15, v2
    v_lshlrev_b32 v15, 2, v14
    v_xor_b32 v13, v13, v15
    v_mul_u32_u24 v15, 3840, v14
    v_lshl_add_u32 v12, v13, 4, v15
    s_mul_i32 s38, s32, {16*3840}          ; w*16 k-rows
    s_lshl_b32 s41, s35, 8                 ; cgp*128*2
    s_add_u32 s59, s38, s41
    s_mul_i32 s57, s79, {64*3840}
    s_add_u32 s38, s59, s57
    s_lshl_b32 s43, s32, 12
    s_add_u32 s43, s43, {WQO}
    """)
    def p_dma():
        g = [] if v5 else x_dma("s52")
        for j in range(4):
            g.append([f"s_add_u32 m0, s53, {j*1024}",
                      (f"s_add_u32 s48, s38, {j*4*3840}"),
                      f"buffer_load_dwordx4 v12, s[20:23], s48 offen lds"])
        g.append(adv_group(64*3840))
        return g
    def stage_issue(st, dmaf):
        A(f"s_add_u32 s52, s42, {st*SLOT}")
        A(f"s_add_u32 s53, s43, {st*SLOT}")
        for grp in dmaf():
            for l in grp: A(l)
    if prof: wl_stamp(A, 63, 0)
    stage_issue(0, p_dma)
    if dbg2: wl_stamp(A, 160, 2)
    if prof: wl_stamp(A, 63, 1)
    A("s_barrier")
    if dbg2: wl_stamp(A, 160, 3)
    if prof: wl_stamp(A, 63, 2)
    LATE_P = True
    A("s_lshr_b32 s41, s32, 1")
    A("s_lshl_b32 s41, s41, 13")
    xfrag_addr("s41")
    A(f"""
    v_bfe_u32 v14, v2, 2, 2                ; r
    v_lshl_add_u32 v15, v13, 3, v14
    v_lshlrev_b32 v15, 8, v15
    v_bfe_u32 v3, v2, 4, 1
    v_lshl_add_u32 v15, v3, 5, v15
    v_and_b32 v3, 3, v2
    v_lshl_add_u32 v15, v3, 3, v15
    v_add_u32 v15, {WQO}, v15
    s_and_b32 s41, s32, 1
    s_lshl_b32 s41, s41, 1
    v_xor_b32 v3, s41, v14                 ; ct ^ r
    v_lshl_add_u32 v60, v3, 6, v15
    v_xor_b32 v3, 1, v3
    v_lshl_add_u32 v61, v3, 6, v15
    """)
    if prof: wl_stamp(A, 63, 3)
    stage_issue(1, p_dma)
    if prof: wl_stamp(A, 63, 4)
    for i in range(64): A(f"v_mov_b32 v{64+i}, 0")
    def p_reads(ks, fs):
        b = 16 + 16*fs
        return [
            f"ds_read_b128 v[{b}:{b+3}], v{4+ks}",
            f"ds_read_b64_tr_b16 v[{b+8}:{b+9}], v8 offset:{ks*4096}",
            f"ds_read_b64_tr_b16 v[{b+10}:{b+11}], v8 offset:{ks*4096 + 1024}",
            f"ds_read_b128 v[{b+4}:{b+7}], v{4+ks} offset:4096",
            f"ds_read_b64_tr_b16 v[{b+12}:{b+13}], v9 offset:{ks*4096}",
            f"ds_read_b64_tr_b16 v[{b+14}:{b+15}], v9 offset:{ks*4096 + 1024}",
        ]
    def p_mfmas(normal):
        def f(fs):
            b = 16 + 16*fs
            out = []
            for rt in range(2):
                for ct in range(2):
                    d = 64 + 16*(2*rt + ct)
                    x = f"v[{b+4*rt}:{b+4*rt+3}]"; w = f"v[{b+8+4*ct}:{b+8+4*ct+3}]"
                    a_, b_ = (x, w) if normal else (w, x)
                    out.append(f"v_mfma_f32_32x32x16_bf16 v[{d}:{d+15}], {a_}, {b_}, v[{d}:{d+15}]")
            return out
        return f
    A(f"""
    s_lshr_b32 s41, s32, 1
    s_lshl_b32 s41, s41, 1
    s_lshl_b32 s44, s34, 2
    s_add_u32 s44, s44, s41                ; T (rt'=0)
    s_cmp_eq_u32 s33, 3
    s_cbranch_scc1 Lk1_mainV
    s_cmp_eq_u32 s33, 1
    s_cbranch_scc0 Lk1_isK
    s_mul_i32 s68, s44, 1280
    s_add_u32 s68, s68, {QF_OFF}
    s_mov_b32 s49, {HSQ}
    s_mov_b32 s70, {f32bits(QSCALE):#x}
    s_branch Lk1_qk
Lk1_isK:
    s_lshr_b32 s68, s44, 3
    s_mul_i32 s68, s68, {CH}
    s_and_b32 s41, s44, 7
    s_mul_i32 s41, s41, 1280
    s_add_u32 s68, s68, s41
    s_add_u32 s68, s68, {KV_OFF}
    s_mov_b32 s49, {HSK}
    s_mov_b32 s70, 1.0
Lk1_qk:
    s_mov_b32 s71, s70
    s_and_b32 s41, s32, 1
    s_lshl_b32 s41, s41, 4
    s_lshl_b32 s55, s46, 5
    s_add_u32 s55, s55, s41                ; G0 base
    v_lshrrev_b32 v13, 5, v2               ; hf
    v_and_b32 v3, 31, v2                   ; token
    v_lshlrev_b32 v14, 4, v3
    v_lshlrev_b32 v15, 3, v3
    v_add_u32 v15, 1024, v15
    """)
    for sl in range(8):
        d = 48 + sl
        A(f"""
        v_add_u32 v16, {2*sl}, v13
        v_add_u32 v16, s55, v16                ; G
        v_mul_u32_u24 v17, 205, v16
        v_lshrrev_b32 v17, 10, v17             ; h = G/5
        v_mul_u32_u24 v18, 5, v17
        v_sub_u32 v18, v16, v18                ; j
        v_mul_lo_u32 v17, v17, s49             ; h*HS
        v_and_b32 v19, 1, v18
        v_lshlrev_b32 v19, 9, v19              ; (j&1)*512
        v_add_u32 v19, v19, v14
        v_cmp_eq_u32 vcc, 4, v18
        v_cmp_gt_u32 s[72:73], 2, v18
        s_nop 0
        v_cndmask_b32 v19, v19, v15, vcc
        """)
        if sl == 0:
            A(f"""
            v_mov_b32 v20, 10
            v_cndmask_b32 v20, v20, 2, vcc
            v_cndmask_b32 v20, v20, 1, s[72:73]
            """)
        else:
            A(f"""
            v_mov_b32 v20, 0
            v_cndmask_b32 v20, v20, 2, vcc
            v_cndmask_b32 v20, v20, {1 if sl < 7 else 2}, s[72:73]
            """)
        A(f"""
        v_add_u32 v19, v19, v17
        v_add_u32 v{d}, v19, v20
        """)
    loop("k1T", 4 if v5 else 6, p_reads, p_mfmas(False), p_dma, 2)
    if fused: A("s_setprio 3")
    if mprof: wl_stamp(A, 160, 0)
    def pack(sl):
        for rt in range(2):
            r = 64 + 16*(2*rt + (sl >> 2)) + 4*(sl & 3)
            t = 16 + 16*rt + 2*sl
            A(f"""
            v_pk_mul_f32 v[{r}:{r+1}], v[{r}:{r+1}], s[70:71]
            v_pk_mul_f32 v[{r+2}:{r+3}], v[{r+2}:{r+3}], s[70:71]
            v_cvt_pk_bf16_f32 v{t}, v{r}, v{r+1}
            v_cvt_pk_bf16_f32 v{t+1}, v{r+2}, v{r+3}
            """)
    pack(0)
    for sl in range(8):
        if sl < 7: pack(sl + 1)
        lab = A.label("qk")
        A(f"""
        v_and_b32 v56, 3, v{48+sl}
        v_and_b32 v57, -4, v{48+sl}
        """)
        if sl < 7:
            A(f"""
            v_cmp_eq_u32 vcc, 1, v56
            s_nop 1
            s_mov_b64 exec, vcc
            s_cbranch_execz {lab}_a
            buffer_store_dwordx4 v[{16+2*sl}:{19+2*sl}], v57, s[24:27], s68 offen{SCQ}
            buffer_store_dwordx4 v[{32+2*sl}:{35+2*sl}], v57, s[24:27], s68 offen offset:1280{SCQ}
            {lab}_a:
            s_mov_b64 exec, -1
            """)
        A(f"""
        v_cmp_eq_u32 vcc, 2, v56
        s_nop 1
        s_mov_b64 exec, vcc
        s_cbranch_execz {lab}_b
        buffer_store_dwordx2 v[{16+2*sl}:{17+2*sl}], v57, s[24:27], s68 offen{SCQ}
        buffer_store_dwordx2 v[{32+2*sl}:{33+2*sl}], v57, s[24:27], s68 offen offset:1280{SCQ}
        {lab}_b:
        s_mov_b64 exec, -1
        """)
    A("s_branch Lk1_end")
    A("Lk1_mainV:")
    A(f"""
    s_lshr_b32 s68, s44, 3
    s_mul_i32 s68, s68, {CH}
    s_and_b32 s41, s44, 7
    s_mul_i32 s41, s41, {VT}
    s_add_u32 s68, s68, s41
    s_add_u32 s68, s68, {KV_OFF + VPART}
    s_and_b32 s41, s32, 1
    s_lshl_b32 s41, s41, 6
    s_lshl_b32 s55, s46, 7
    s_add_u32 s55, s55, s41
    v_and_b32 v3, 31, v2
    v_lshrrev_b32 v13, 5, v2               ; hf
    v_mul_u32_u24 v14, {VH}, v13
    s_mov_b32 s49, {HSK}
    """)
    for ct in range(2):
        A(f"""
        v_add_u32 v16, {32*ct}, v3
        v_add_u32 v16, s55, v16                ; c
        v_mul_u32_u24 v17, 3277, v16
        v_lshrrev_b32 v17, 16, v17             ; h
        v_mul_u32_u24 v18, 20, v17
        v_sub_u32 v18, v16, v18                ; dh
        v_mul_lo_u32 v17, v17, s49
        v_cmp_eq_u32 s[{72+2*ct}:{73+2*ct}], 0, v18
        """)
        vslot(A, 18, 20, 21)
        A(f"""
        v_lshl_add_u32 v19, v20, 4, v17
        v_add_u32 v{48+ct}, v19, v14
        """)
    loop("k1N", 4 if v5 else 6, p_reads, p_mfmas(True), p_dma, 2)
    if fused: A("s_setprio 3")
    if mprof: wl_stamp(A, 160, 0)
    for ct in range(2):
        for rt in range(2):
            for j in range(2):
                r = 64 + 16*(2*rt + ct) + 8*j
                t = 32 + 4*(2*rt + j)
                for m in range(4):
                    A(f"v_cvt_pk_bf16_f32 v{t+m}, v{r+2*m}, v{r+2*m+1}")
                A(f"buffer_store_dwordx4 v[{t}:{t+3}], v{48+ct}, s[24:27], s68 offen offset:{rt*VT + j*2*VH}{SC}")
    A("s_branch Lk1_end")

    A("Lk1_gate:")
    srd(A, 28, 12, GW_BYTES)
    A(f"""
    s_mul_i32 s41, s32, 320
    s_add_u32 m0, s41, {GATE_LDS}
    v_lshlrev_b32 v12, 4, v2
    v_cmp_gt_u32 vcc, 20, v2
    s_and_saveexec_b64 s[76:77], vcc
    buffer_load_dwordx4 v12, s[28:31], s41 offen lds
    s_mov_b64 exec, s[76:77]
    """)
    def g_dma():
        if v5: return []
        g = x_dma("s52")
        g.append(adv_group(0))
        return g
    for st in range(2):
        A(f"s_add_u32 s52, s42, {st*SLOT}")
        for grp in g_dma():
            for l in grp: A(l)
        if st == 0: A("s_barrier")
    A("s_lshl_b32 s41, s32, 12")
    xfrag_addr("s41")
    A(f"""
    v_lshlrev_b32 v9, 4, v13               ; hf*16
    v_add_u32 v62, {GATE_LDS}, v9
    s_lshl_b32 s57, s69, 7
    v_add_u32 v9, s57, v62
    v_mov_b32 v60, 0
    s_mov_b32 s43, 0
    """)
    for i in range(16): A(f"v_mov_b32 v{64+i}, 0")
    def g_reads(ks, fs):
        b = 16 + 16*fs
        out = [f"ds_read_b128 v[{b}:{b+3}], v{4+ks}", f"ds_read_b128 v[{b+4}:{b+7}], v9 offset:{ks*32}"]
        if ks == 3:
            if ROT == 2:
                out += ["s_add_u32 s69, s69, 1", "s_cmp_eq_u32 s69, 10", "s_cselect_b32 s69, 0, s69", "s_lshl_b32 s57, s69, 7", "v_add_u32 v9, s57, v62"]
            else:
                out += ["s_add_u32 s69, s69, 1", "s_add_u32 s57, s69, s78", "s_sub_u32 s57, s57, 2", "s_and_b32 s57, s57, 7", "s_add_u32 s57, s57, 2",
                        "s_cmp_lt_u32 s69, 2", "s_cselect_b32 s57, s69, s57", "s_lshl_b32 s57, s57, 7", "v_add_u32 v9, s57, v62"]
        return out
    def g_mfmas(fs):
        b = 16 + 16*fs
        return [f"v_mfma_f32_32x32x16_bf16 v[64:79], v[{b+4}:{b+7}], v[{b}:{b+3}], v[64:79]"]
    A(f"s_waitcnt vmcnt({0 if v5 else 2})")
    A("s_barrier")
    A(f"s_add_u32 s52, s42, {2*SLOT}")
    for grp in g_dma():
        for l in grp: A(l)
    if prof:
        A("s_mov_b32 s90, 0")
    for l in set_slot(0, "0"): A(l)
    for l in g_reads(0, 0): A(l)
    A("s_mov_b32 s40, 0")
    A(f"s_mov_b32 s50, {SLOT}")
    A("s_mov_b32 s51, 0")
    A("Lk1g_loop:")
    for ks in range(3):
        fs = ks & 1
        for l in g_reads(ks + 1, fs ^ 1): A(l)
        A("s_waitcnt lgkmcnt(2)")
        for l in g_mfmas(fs): A(l)
    A(f"""
    s_cmp_lt_u32 s40, 8
    s_cbranch_scc1 Lk1g_a
    s_waitcnt vmcnt(0)
Lk1g_a:
    s_waitcnt vmcnt(2) lgkmcnt(0)
    s_barrier
    """)
    for l in set_slot(0, "s50"): A(l)
    for l in g_mfmas(1): A(l)
    for l in g_reads(0, 0): A(l)
    A(f"""
    s_cmp_lt_u32 s40, 7
    s_cbranch_scc0 Lk1g_b
    s_add_u32 s52, s51, s42
    """)
    for grp in g_dma():
        for l in grp: A(l)
    A(f"""
Lk1g_b:
    s_mov_b32 s51, s50
    s_add_u32 s50, s50, {SLOT}
    s_cmp_ge_u32 s50, {3*SLOT}
    s_cselect_b32 s50, 0, s50
    s_add_u32 s40, s40, 1
    s_cmp_lt_u32 s40, 10
    s_cbranch_scc1 Lk1g_loop
    s_waitcnt lgkmcnt(0)
    s_nop 15
    v_mul_f32 v16, {f32bits(-LOG2E):#x}, v64
    v_exp_f32 v16, v16
    s_nop 0
    v_add_f32 v16, 1.0, v16
    v_rcp_f32 v16, v16
    s_lshl_b32 s44, s34, 2
    s_add_u32 s44, s44, s32                ; T
    s_lshl_b32 s44, s44, 7                 ; *32*4 bytes
    s_add_u32 s44, s44, {G_OFF}
    v_lshlrev_b32 v17, 2, v2
    v_cmp_gt_u32 vcc, 32, v2
    s_and_saveexec_b64 s[76:77], vcc
    buffer_store_dword v16, v17, s[24:27], s44 offen{SC}
    s_mov_b64 exec, s[76:77]
    s_branch Lk1_end
    """)

    A("Lk1_R:")
    if rprio: A(f"s_setprio {rprio}")
    if prof:
        A("v_writelane_b32 v61, s87, 8")
        wl_stamp(A, 61, 9)
    srd(A, 20, 8, W1_BYTES)
    srd(A, 28, 10, B1_BYTES)
    A(f"""
    s_sub_u32 s47, s32, 4
    s_mul_i32 s41, s35, 192
    v_lshrrev_b32 v3, 5, v2
    v_lshlrev_b32 v3, 4, v3
    """)
    if prof: wl_stamp(A, 61, 12)
    A(f"""
    buffer_load_dwordx4 v[112:115], v3, s[28:31], s41 offen
    """)
    if prof: wl_stamp(A, 61, 13)
    A(f"""
    buffer_load_dwordx4 v[116:119], v3, s[28:31], s41 offen offset:32
    buffer_load_dwordx4 v[120:123], v3, s[28:31], s41 offen offset:64
    buffer_load_dwordx4 v[124:127], v3, s[28:31], s41 offen offset:96
    buffer_load_dwordx4 v[48:51], v3, s[28:31], s41 offen offset:128
    buffer_load_dwordx4 v[52:55], v3, s[28:31], s41 offen offset:160
    """)
    if prof: wl_stamp(A, 61, 14)
    for j, reg in enumerate((12, 62, 63)):
        A(f"""
        s_mul_i32 s41, s47, 192
        s_add_u32 s41, s41, {64*j}
        v_add_u32 v13, s41, v2                 ; t
        v_mul_u32_u24 v14, 5462, v13
        v_lshrrev_b32 v14, 16, v14             ; t/12
        v_mul_u32_u24 v15, 12, v14
        v_sub_u32 v15, v13, v15
        v_mul_u32_u24 v14, 3072, v14
        v_lshl_add_u32 v{reg}, v15, 4, v14
        """)
    A(f"""
    s_mul_i32 s59, s35, 192
    s_mul_i32 s57, s79, {64*3072}
    s_add_u32 s38, s59, s57
    s_mul_i32 s43, s47, 3072
    s_add_u32 s43, s43, {W1O}
    """)
    if not v5:
        def r_dma():
            g = x_dma("s52")
            for j, reg in enumerate((12, 62, 63)):
                g.append([f"s_add_u32 m0, s53, {j*1024}", "s_nop 0",
                          f"buffer_load_dwordx4 v{reg}, s[20:23], s38 offen lds"])
            g.append(adv_group(64*3072))
            return g
        def r_stage(st):
            A(f"s_add_u32 s52, s42, {st*SLOT}")
            A(f"s_add_u32 s53, s43, {st*SLOT}")
            for grp in r_dma():
                for l in grp: A(l)
        if prof: wl_stamp(A, 61, 0)
        r_stage(0)
        if prof: wl_stamp(A, 61, 1)
        A("s_barrier")
        A("s_lshl_b32 s41, s47, 12")
        xfrag_addr("s41")
        A(f"""
        v_bfe_u32 v14, v2, 2, 2
        v_lshl_add_u32 v15, v13, 3, v14
        v_mul_u32_u24 v15, 192, v15
        v_bfe_u32 v3, v2, 4, 1
        v_lshl_add_u32 v15, v3, 5, v15
        v_and_b32 v3, 3, v2
        v_lshrrev_b32 v1, 1, v3
        v_and_b32 v3, 1, v3
        v_lshl_or_b32 v3, v3, 1, v1
        v_lshl_add_u32 v15, v3, 3, v15
        v_add_u32 v60, {W1O}, v15
        """)
        if prof: wl_stamp(A, 61, 2)
        r_stage(1)
        if prof: wl_stamp(A, 61, 3)
        A("s_waitcnt vmcnt(10)")
        if prof:
            wl_stamp(A, 61, 4)
        bsrc = [112, 116, 120, 124, 48, 52]
        for ct in range(3):
            for half in range(2):
                for m in range(4):
                    src = bsrc[2*ct + half] + m
                    d = 64 + 16*ct + 8*half + 2*m
                    A(f"v_lshlrev_b32 v{d}, 16, v{src}")
                    A(f"v_and_b32 v{d+1}, 0xffff0000, v{src}")
        def r_reads(ks, fs):
            b = 16 + 16*fs
            out = [f"ds_read_b128 v[{b}:{b+3}], v{4+ks}"]
            for ct in range(3):
                out.append(f"ds_read_b64_tr_b16 v[{b+4+4*ct}:{b+5+4*ct}], v8 offset:{ks*16*192 + ct*64}")
                out.append(f"ds_read_b64_tr_b16 v[{b+6+4*ct}:{b+7+4*ct}], v8 offset:{ks*16*192 + 4*192 + ct*64}")
            return out
        def r_mfmas(fs):
            b = 16 + 16*fs
            return [f"v_mfma_f32_32x32x16_bf16 v[{64+16*ct}:{64+16*ct+15}], v[{b+4+4*ct}:{b+7+4*ct}], v[{b}:{b+3}], v[{64+16*ct}:{64+16*ct+15}]" for ct in range(3)]
        loop("k1R", 5, r_reads, r_mfmas, r_dma, 1)
    else:
        def l_stage(dest):
            for grp in x_dma(dest):
                for l in grp: A(l)
            for l in adv_group(0): A(l)
        A("s_mov_b32 s52, s42")
        l_stage("s52")
        A("s_barrier")
        A(f"s_add_u32 s52, s42, {SLOT}")
        l_stage("s52")
        A("s_waitcnt vmcnt(8)")
        bsrc = [112, 116, 120, 124, 48, 52]
        for ct in range(3):
            for half in range(2):
                for m in range(4):
                    src = bsrc[2*ct + half] + m
                    d = 64 + 16*ct + 8*half + 2*m
                    A(f"v_lshlrev_b32 v{d}, 16, v{src}")
                    A(f"v_and_b32 v{d+1}, 0xffff0000, v{src}")
        A("s_waitcnt vmcnt(4)")
        A("s_barrier")
        A(f"s_add_u32 s52, s42, {2*SLOT}")
        l_stage("s52")
        for st in range(10):
            A(f"s_waitcnt vmcnt({4 if st <= 7 else 0})")
            A("s_barrier")
            if st < 7:
                A(f"s_add_u32 s52, s42, {(st % 3)*SLOT}")
                l_stage("s52")
        FS = 28672; FB = 3*24576
        if mprof == 1: stamp(A, 11)
        A(f"""
        s_lshl_b32 s41, s47, 12
        """)
        xfrag_addr("s41")
        A(f"""
        v_bfe_u32 v14, v2, 2, 2
        v_lshl_add_u32 v15, v13, 3, v14
        v_mul_u32_u24 v15, 192, v15
        v_bfe_u32 v3, v2, 4, 1
        v_lshl_add_u32 v15, v3, 5, v15
        v_and_b32 v3, 3, v2
        v_lshrrev_b32 v1, 1, v3
        v_and_b32 v3, 1, v3
        v_lshl_or_b32 v3, v3, 1, v1
        v_lshl_add_u32 v15, v3, 3, v15
        v_add_u32 v60, 16384, v15
        s_mov_b32 s37, s58
        s_mov_b32 s38, s59                     ; W1 soffset
        s_lshl_b32 s42, s47, 12
        s_add_u32 s42, s42, {FB}
        s_mul_i32 s43, s47, 3072
        s_add_u32 s43, s43, {FB + 16384}
        v_and_b32 v61, 3, v2
        v_lshlrev_b32 v61, 2, v61
        v_add_u32 v61, {FL + LF_F1P}, v61
        s_lshl_b32 s41, s47, 2
        s_add_u32 s41, s41, {FL + LF_F1P}
        v_mov_b32 v1, s41
        """)
        def f_groups(slot):
            g = []
            for j in range(4):
                g.append([f"s_add_u32 m0, s42, {slot*FS + j*1024}", f"s_add_u32 s48, s37, {j*10240}",
                          f"buffer_load_dwordx4 v{10 + (j & 1)}, s[16:19], s48 offen lds"])
            for j, reg in enumerate((12, 62, 63)):
                g.append([f"s_add_u32 m0, s43, {slot*FS + j*1024}", "s_nop 0",
                          f"buffer_load_dwordx4 v{reg}, s[20:23], s38 offen lds"])
            g.append(["s_add_u32 s37, s37, 128", f"s_add_u32 s38, s38, {64*3072}"])
            return g
        for st in range(2):
            for grp in f_groups(st):
                for l in grp: A(l)
        def r_reads(ks, fs):
            b = 16 + 16*fs
            out = [f"ds_read_b128 v[{b}:{b+3}], v{4+ks}"]
            for ct in range(3):
                out.append(f"ds_read_b64_tr_b16 v[{b+4+4*ct}:{b+5+4*ct}], v8 offset:{ks*16*192 + ct*64}")
                out.append(f"ds_read_b64_tr_b16 v[{b+6+4*ct}:{b+7+4*ct}], v8 offset:{ks*16*192 + 4*192 + ct*64}")
            return out
        def r_mfmas(fs):
            b = 16 + 16*fs
            return [f"v_mfma_f32_32x32x16_bf16 v[{64+16*ct}:{64+16*ct+15}], v[{b+4+4*ct}:{b+7+4*ct}], v[{b}:{b+3}], v[{64+16*ct}:{64+16*ct+15}]" for ct in range(3)]
        for st in range(10):
            lab = A.label("f1s")
            A(f"""
            s_waitcnt vmcnt({7 if st < 9 else 0}) lgkmcnt(0)
            v_mov_b32 v9, {st + 1}
            ds_write_b32 v1, v9
            s_mov_b32 s99, 0x100000
            {lab}:
            ds_read_b32 v9, v61
            s_waitcnt lgkmcnt(0)
            v_cmp_le_u32 vcc, {st + 1}, v9
            s_cmp_eq_u64 vcc, exec
            s_cbranch_scc1 {lab}_ok
            s_sub_u32 s99, s99, 1
            s_cbranch_scc0 {lab}
            {lab}_ok:
            """)
            if mprof == 1: wl_stamp(A, 127, st)
            for l in set_slot(1, str(FB + (st % 3)*FS)): A(l)
            for l in r_reads(0, 0): A(l)
            g = f_groups((st + 2) % 3) if st + 2 < 10 else []
            per = (len(g) + 2) // 3
            for ks in range(3):
                kstep(r_mfmas(ks & 1), [[l] for l in r_reads(ks + 1, (ks & 1) ^ 1)], g[ks*per:(ks+1)*per])
            kstep(r_mfmas(1), [], [])
        A("s_nop 15")
        if mprof == 1:
            stamp(A, 12)
            wl_dump(A, 127, 0, 24, 85, 9)
    if not fused: A("s_setprio 2")
    A(f"""
    s_lshl_b32 s44, s34, 2
    s_add_u32 s44, s44, s47                ; T
    s_mul_i32 s45, s44, {2*48*1024}
    s_mul_i32 s41, s35, {3*1024}
    s_add_u32 s45, s45, s41
    s_add_u32 s45, s45, {ACT_OFF}
    v_bfe_u32 v13, v2, 4, 1                ; token>>4
    v_mul_u32_u24 v13, {48*1024}, v13
    v_lshrrev_b32 v14, 5, v2               ; hf
    v_lshl_add_u32 v13, v14, 8, v13
    v_and_b32 v14, 15, v2
    v_lshl_add_u32 v13, v14, 4, v13
    s_mov_b32 s54, {f32bits(LOG2E):#x}
    s_mov_b32 s55, s54
    v_mov_b32 v2, 2.0
    v_mov_b32 v3, 2.0
    """)
    def mish8(r, t0):
        for p in range(4):
            A(f"v_pk_mul_f32 v[{t0+2*p}:{t0+2*p+1}], v[{r+2*p}:{r+2*p+1}], s[54:55]")
        for i in range(8):
            A(f"v_exp_f32 v{t0+i}, v{t0+i}")
        for p in range(4):
            A(f"v_pk_add_f32 v[{t0+8+2*p}:{t0+8+2*p+1}], v[{t0+2*p}:{t0+2*p+1}], v[2:3]")
        for p in range(4):
            A(f"v_pk_fma_f32 v[{t0+2*p}:{t0+2*p+1}], v[{t0+2*p}:{t0+2*p+1}], v[{t0+8+2*p}:{t0+8+2*p+1}], v[2:3]")
        for i in range(8):
            A(f"v_rcp_f32 v{t0+i}, v{t0+i}")
        A("s_nop 0")
        for p in range(4):
            A(f"v_pk_fma_f32 v[{t0+2*p}:{t0+2*p+1}], v[{t0+2*p}:{t0+2*p+1}], -2.0, 1.0 op_sel_hi:[1,0,0]")
        for p in range(4):
            A(f"v_pk_mul_f32 v[{r+2*p}:{r+2*p+1}], v[{r+2*p}:{r+2*p+1}], v[{t0+2*p}:{t0+2*p+1}]")
    k = 0
    for ct in range(3):
        for j in range(2):
            r = 64 + 16*ct + 8*j
            mish8(r, 16)
            t = 32 + 4*k; k += 1
            for m in range(4):
                A(f"v_cvt_pk_bf16_f32 v{t+m}, v{r+2*m}, v{r+2*m+1}")
            if not fused:
                A(f"buffer_store_dwordx4 v[{t}:{t+3}], v13, s[24:27], s45 offen offset:{ct*1024 + j*512}{SC}")
    if fused:
        if mprof == 1: stamp(A, 13)
        if rtrig == 2: lds_spin(A, FL + LF_FULL, 1, 8, tmp=(16, 17), sleep=4)
        elif rtrig == 3: lds_spin(A, FL + LF_FULL, 2, 8, tmp=(16, 17), sleep=4)
        elif rtrig == 1: lds_spin(A, FL + LF_GO, 1, 1, tmp=(16, 17), sleep=4)
        else: lds_spin(A, FL + LF_PD, 1, 4, tmp=(16, 17), sleep=4)
        k = 0
        for ct in range(3):
            for j in range(2):
                t = 32 + 4*k; k += 1
                A(f"buffer_store_dwordx4 v[{t}:{t+3}], v13, s[24:27], s45 offen offset:{ct*1024 + j*512}{SC}")
        if lateu:
            UL2 = 3*24576
            A(f"""
            s_mov_b32 s76, 0
            s_cmp_eq_u32 s47, 0
            s_cbranch_scc1 Lk1_lu_skip
            s_sub_u32 s40, s47, 1
            s_lshl_b32 s41, s40, 8
            s_add_u32 s41, s41, s2
            s_mul_i32 s45, s41, 6554
            s_lshr_b32 s45, s45, 16                ; ksg
            s_mul_i32 s43, s45, 10
            s_sub_u32 s43, s41, s43                ; blk
            s_cmp_lt_u32 s45, 48
            s_cselect_b32 s96, s80, s82
            s_cselect_b32 s97, s81, s83
            s_mov_b32 s98, {W2_BYTES}
            s_cselect_b32 s98, s98, {WO_BYTES}
            s_cselect_b32 s100, 0, 48
            s_and_b32 s97, s97, 0xffff
            s_mov_b32 s99, 0x00020000
            s_sub_u32 s100, s45, s100
            s_mul_i32 s100, s100, {32*1280}
            s_lshl_b32 s101, s43, 7
            s_add_u32 s100, s100, s101
            s_lshl_b32 s77, s43, 2                 ; c0
            s_mul_i32 s101, s45, 5120
            s_lshl_b32 s75, s47, 12
            s_add_u32 s75, s75, {UL2}
            s_cmp_lt_u32 s41, 680
            s_cbranch_scc0 Lk1_lu_skip
            s_mov_b32 s76, 1
            v_and_b32 v4, 63, v0
            v_lshrrev_b32 v8, 3, v4
            v_mul_u32_u24 v8, 1280, v8
            v_and_b32 v5, 7, v4
            v_lshl_add_u32 v8, v5, 4, v8
            v_lshrrev_b32 v9, 4, v4
            v_bfe_u32 v5, v4, 2, 2
            v_lshl_add_u32 v9, v9, 3, v5
            v_lshlrev_b32 v9, 7, v9
            v_and_b32 v5, 3, v4
            v_lshl_add_u32 v9, v5, 3, v9
            v_add_u32 v9, s75, v9
            v_lshlrev_b32 v10, 4, v4
            """)
            for j in range(4):
                A(f"s_add_u32 m0, s75, {j*1024}")
                A(f"s_add_u32 s48, s100, {j*8*1280}")
                A(f"buffer_load_dwordx4 v8, s[96:99], s48 offen lds")
            A("Lk1_lu_skip:")
    A("s_branch Lk1_endR" if fused else "s_branch Lk1_end")
    A("Lk1_H:")
    gen_helpers(A, FL, pf, mprof, hprio, pfa, spf, cpf, KN, nounits or lateu, lateu=lateu, ustart=ustart, constlate=constlate)
    if fused:
        A("Lk1_endR:")
        A("s_waitcnt vmcnt(0)")
        A(f"s_sub_u32 s41, s32, 4")
        A("s_lshl_b32 s41, s41, 2")
        A(f"s_add_u32 s41, s41, {FL + LF_RD}")
        A("v_mov_b32 v4, s41")
        A("v_mov_b32 v5, 1")
        A("ds_write_b32 v4, v5")
        if lateu:
            A("""
            s_cmp_eq_u32 s47, 0
            s_cbranch_scc1 Lshadow_entry
            s_cmp_eq_u32 s76, 1
            s_cbranch_scc0 Lk1_lu_done
            """)
            for cc in range(4):
                A(f"ds_read_b64_tr_b16 v[{20+4*cc}:{21+4*cc}], v9 offset:{cc*32}")
                A(f"ds_read_b64_tr_b16 v[{22+4*cc}:{23+4*cc}], v9 offset:{cc*32 + 512}")
            A("s_waitcnt lgkmcnt(0)")
            for cc in range(4):
                A(f"""
                s_add_u32 s41, s77, {cc}
                s_mul_i32 s45, s41, 205
                s_lshr_b32 s45, s45, 10
                s_mul_i32 s43, s45, 5
                s_sub_u32 s43, s41, s43
                s_mul_i32 s45, s45, {WF_CG}
                s_lshl_b32 s43, s43, 10
                s_add_u32 s45, s45, s43
                s_add_u32 s45, s45, s101
                s_add_u32 s45, s45, {WF_OFF}
                buffer_store_dwordx4 v[{20+4*cc}:{23+4*cc}], v10, s[24:27], s45 offen sc1
                """)
            A(f"""
            s_waitcnt vmcnt(0)
Lk1_lu_done:
            s_lshl_b32 s41, s40, 2
            s_add_u32 s41, s41, {FL + LF_HD}
            v_mov_b32 v4, s41
            v_mov_b32 v5, 1
            ds_write_b32 v4, v5
            """)
        A("s_branch Lshadow_entry")
        A("Lk1_end:")
        if mprof: wl_stamp(A, 160, 1)
        A("s_waitcnt vmcnt(0)")
        if mprof and not dbg2: wl_stamp(A, 160, 2)
        A("s_lshl_b32 s41, s32, 2")
        A(f"s_add_u32 s41, s41, {FL + LF_PD}")
        A("v_mov_b32 v4, s41")
        A("v_mov_b32 v5, 1")
        A("ds_write_b32 v4, v5")
        A("s_branch Lattn_entry")
        A("Lk1_exit:")
        A("s_endpgm")
        return A.text()
    A("Lk1_end:")
    if prof:
        A("s_memtime s[88:89]")
        A("s_waitcnt lgkmcnt(0)")
        A("s_sub_u32 s88, s88, s92")
        A("s_cmp_ge_u32 s32, 4")
        A("s_cbranch_scc1 Lk1_dbgR")
        A("v_mov_b32 v61, v63")
        A("Lk1_dbgR:")
        A("v_writelane_b32 v61, s88, 11")
        A("v_writelane_b32 v61, s91, 10")
        A(f"""
        s_lshl_b32 s97, s2, 4
        s_add_u32 s97, s97, s32
        s_lshl_b32 s97, s97, 6
        s_add_u32 s97, s97, {DBG_OFF + 0x100000}
        v_and_b32 v4, 63, v0
        v_lshlrev_b32 v4, 2, v4
        v_cmp_gt_u32 vcc, 16, v0
        v_and_b32 v5, 63, v0
        v_cmp_gt_u32 vcc, 16, v5
        s_and_saveexec_b64 s[56:57], vcc
        buffer_store_dword v61, v4, s[24:27], s97 offen
        s_mov_b64 exec, s[56:57]
        """)
        prof_end(A, 0, 24, 32, tmpv=(4, 5, 6, 7, 8), extra="s90")
    if tl: tl2_record(A, 0, 24, 32)
    A("Lk1_exit:")
    A("s_endpgm")
    return A.text(), kdesc(NAME, 128), f"; @launch kernel={NAME} grid=(256,1,1) block=(576,1,1) lds={LDS_BYTES}"
```

```python
from asm import *
from common import *

ACC_B = 8
ACC_A = 28
WF = [48, 68]
BF = 88
PH = 20480
NPH = 17

def gen_shadow(A, prof, shprio, SH_BASE, FLAG, scl=" sc1", POLL_SLEEP=4, NA=8, fused=False, outf=0, shexp=0, v2=0, ppo=0, inc=0, orep=1, odelay=0, bdelay=0, wdelay=0, lateu=0):
    OUTF = ['', ' sc1', ' nt', ' sc0 sc1'][outf]
    A(f"""
Lk2_shadow:
    """)
    if prof and fused: stamp(A, 10)
    A(f"""
    s_setprio {shprio}
    s_load_dwordx2 s[30:31], s[0:1], 64    ; out
    s_sub_u32 s40, s12, 8                  ; w
    s_lshr_b32 s41, s13, 3
    s_lshl_b32 s44, s14, 2
    s_add_u32 s44, s44, s41                ; rbk
    s_and_b32 s43, s13, 7                  ; cg8
    s_lshl_b32 s46, s44, 2
    s_add_u32 s46, s46, s40                ; T16
    s_mul_i32 s47, s40, 5120
    s_mul_i32 s49, s43, {WF_CG}
    s_add_u32 s49, s49, s47
    s_add_u32 s49, s49, {WF_OFF}
    s_add_u32 s47, s47, {SH_BASE}
    s_mul_i32 s51, s46, {48*1024}
    s_add_u32 s51, s51, {ACT_OFF}
    s_mul_i32 s52, s46, 20480
    s_add_u32 s52, s52, {OF_OFF}
    v_lshlrev_b32 v2, 4, v1                ; lane*16
    v_add_u32 v3, {SH_BASE}, v2
    v_add_u32 v0, {SH_BASE + 3*PH}, v2
    v_and_b32 v4, 3, v1
    v_lshlrev_b32 v4, 2, v4
    v_add_u32 v4, {FLAG + 64}, v4          ; prog[lane&3]
    s_lshl_b32 s53, s40, 2
    s_add_u32 s53, s53, {FLAG + 64}
    v_mov_b32 v5, s53
    s_waitcnt lgkmcnt(0)
    """)
    srd_ws(A, 8, 4, WS_RECORDS)
    srd(A, 24, 30, OUT_BYTES)
    for i in range(40): A(f"v_mov_b32 v{ACC_B+i}, 0")
    if fused:
        A("s_cmp_eq_u32 s40, 0")
        A("s_cbranch_scc0 Lsh_wgo2")
        lds_spin(A, FLAG + LF_RD, 1, 4, tmp=(6, 7), sleep=2)
        get_tag(A, FLAG + LF_TAG, "s62", tmp=(6, 7))
        A(f"""
        s_and_b32 s54, s2, 7
        s_lshr_b32 s55, s2, 3
        s_and_b32 s56, s54, 1
        s_lshl_b32 s56, s56, 3
        s_and_b32 s57, s55, 7
        s_add_u32 s56, s56, s57                ; rb
        s_lshr_b32 s54, s54, 1
        s_lshl_b32 s54, s54, 2
        s_lshr_b32 s55, s55, 3
        s_add_u32 s54, s54, s55                ; cgp
        s_mul_i32 s56, s56, {FROW}
        s_lshl_b32 s54, s54, 2
        s_add_u32 s54, s54, s56
        s_add_u32 s54, s54, {F1B_OFF}
        v_mul_u32_u24 v6, {FREP}, v1
        v_mov_b32 v7, s62
        s_mov_b64 exec, 0xf
        buffer_store_dword v7, v6, s[8:11], s54 offen sc1
        s_mov_b64 exec, -1
        """)
        if lateu:
            lds_spin(A, FLAG + LF_HD, 1, 4, tmp=(6, 7), sleep=2)
            publish256(A, 8, F1W_OFF, "s62", tmp=(6, 7, 48))
        if bdelay: A(f"s_sleep {bdelay}")
        poll256(A, 8, F1W_OFF, "s62", tmp=(6, 7, 48, 49, 50, 51))
        A(f"""
        s_lshr_b32 s54, s44, 1
        s_mul_i32 s54, s54, {FROW}
        s_lshr_b32 s55, s2, 3
        s_and_b32 s55, s55, 3
        s_mul_i32 s55, s55, {FREP}
        s_add_u32 s54, s54, s55
        s_add_u32 s54, s54, {F1B_OFF}
        v_and_b32 v6, 15, v1
        v_lshlrev_b32 v6, 2, v6
        s_mov_b32 s60, 0x40000
Lsh_pb:
        buffer_load_dword v7, v6, s[8:11], s54 offen sc1
        s_waitcnt vmcnt(0)
        v_cmp_eq_u32 vcc, s62, v7
        s_cmp_eq_u64 vcc, exec
        s_cbranch_scc1 Lsh_pb_ok
        s_sleep 2
        s_sub_u32 s60, s60, 1
        s_cbranch_scc0 Lsh_pb
Lsh_pb_ok:
        """)
        lds_set(A, FLAG + LF_GO2, 1, tmp=(6, 7))
        A("s_branch Lsh_go2")
        A("Lsh_wgo2:")
        lds_spin(A, FLAG + LF_GO2, 1, 1, tmp=(6, 7), sleep=4)
        A("Lsh_go2:")
        if prof: stamp(A, 9)
    else:
        A("s_barrier")
    def issue(q):
        g = []
        if q >= NPH: return g
        sl = q % 4
        for j in range(5):
            g.append([f"s_add_u32 m0, s47, {sl*PH + j*1024}", f"s_add_u32 s55, s49, {q*PH + j*1024}",
                      f"buffer_load_dwordx4 v2, s[8:11], s55 offen lds"])
        if q < 12:
            for k in range(4):
                b = BF + 16*sl + 4*k
                g.append([f"s_add_u32 s55, s51, {(4*q + k)*1024}", f"buffer_load_dwordx4 v[{b}:{b+3}], v2, s[8:11], s55 offen"])
        return g
    def nops(q):
        return 0 if q >= NPH else (9 if q < 12 else 5)
    def emit(g):
        for grp in g:
            for l in grp: A(l)
    def sync(p, n):
        lab = A.label("shs")
        A(f"""
        s_waitcnt vmcnt({n}) lgkmcnt(0)
        v_mov_b32 v6, {p + 1}
        ds_write_b32 v5, v6
        s_mov_b32 s60, 0x40000
        {lab}:
        ds_read_b32 v7, v4
        s_waitcnt lgkmcnt(0)
        v_cmp_le_u32 vcc, {p + 1}, v7
        s_cmp_eq_u64 vcc, exec
        s_cbranch_scc1 {lab}_ok
        s_sleep 2
        s_sub_u32 s60, s60, 1
        s_cbranch_scc0 {lab}
        {lab}_ok:
        """)
    def compute(p, g):
        sl = p % 4
        acc = ACC_B if p < 12 else ACC_A
        base, so = ("v3", sl*PH) if sl < 3 else ("v0", 0)
        def rd(k, fs):
            return [f"ds_read_b128 v[{WF[fs]+4*ct}:{WF[fs]+4*ct+3}], {base} offset:{so + k*5120 + ct*1024}" for ct in range(5)]
        def bfrag(k):
            return (BF + 16*sl + 4*k) if p < 12 else (BF + 4*(4*(p - 12) + k))
        per = (len(g) + 3) // 4
        noread = shexp and p < 12
        if not noread:
            for l in rd(0, 0): A(l)
        for k in range(4):
            if noread: pass
            elif k < 3:
                for l in rd(k + 1, (k + 1) & 1): A(l)
                A("s_waitcnt lgkmcnt(5)")
            else:
                A("s_waitcnt lgkmcnt(0)")
            b = bfrag(k)
            for ct in range(5 if not (shexp == 2 and p < 12) else 3):
                A(f"v_mfma_f32_16x16x32_bf16 v[{acc+4*ct}:{acc+4*ct+3}], v[{WF[k&1]+4*ct}:{WF[k&1]+4*ct+3}], v[{b}:{b+3}], v[{acc+4*ct}:{acc+4*ct+3}]")
            emit(g[k*per:(k+1)*per])
    if not v2:
        for q in range(3): emit(issue(q))
        for p in range(NA):
            if shexp: A(f"s_waitcnt vmcnt({nops(p + 1) + nops(p + 2)})")
            else: sync(p, nops(p + 1) + nops(p + 2))
            compute(p, issue(p + 3))
        if prof: stamp(A, 0)
        A("s_waitcnt lgkmcnt(0)")
        A("s_barrier")
        if prof: stamp(A, 1)
        A("s_setprio 3")
        for p in range(NA, 12):
            if inc:
                sync(p, nops(p + 1) + nops(p + 2))
            else:
                A(f"s_waitcnt vmcnt({nops(p + 1) + nops(p + 2)}) lgkmcnt(0)")
                A("s_barrier")
            compute(p, issue(p + 3))
    else:
        AC = 8; ST = [88, 124]
        A(f"""
        s_mul_i32 s54, s43, {WF_CG}
        s_mul_i32 s55, s40, 5120
        s_add_u32 s54, s54, s55
        s_add_u32 s54, s54, {WF_OFF}
        s_lshl_b32 s55, s44, 2
        s_mul_i32 s55, s55, {48*1024}
        s_lshl_b32 s56, s40, 10
        s_add_u32 s55, s55, s56
        s_add_u32 s55, s55, {ACT_OFF}
        """)
        for i in range(80): A(f"v_mov_b32 v{AC+i}, 0")
        def ld(j):
            b = ST[j & 1]
            g = []
            for ct in range(5):
                g.append([f"s_add_u32 s57, s54, {j*4*5120 + ct*1024}", f"buffer_load_dwordx4 v[{b+4*ct}:{b+4*ct+3}], v2, s[8:11], s57 offen"])
            for t in range(4):
                g.append([f"s_add_u32 s57, s55, {j*4*1024 + t*48*1024}", f"buffer_load_dwordx4 v[{b+20+4*t}:{b+20+4*t+3}], v2, s[8:11], s57 offen"])
            return g
        emit(ld(0))
        for j in range(12):
            b = ST[j & 1]
            g = ld(j + 1) if j + 1 < 12 else []
            emit(g)
            A(f"s_waitcnt vmcnt({9 if j + 1 < 12 else 0})")
            for t in range(4):
                for ct in range(5):
                    d = AC + 4*(5*t + ct)
                    A(f"v_mfma_f32_16x16x32_bf16 v[{d}:{d+3}], v[{b+4*ct}:{b+4*ct+3}], v[{b+20+4*t}:{b+20+4*t+3}], v[{d}:{d+3}]")
        if prof: stamp(A, 0)
        A("s_nop 7")
        A(f"s_mul_i32 s56, s40, {PH}")
        A(f"v_add_u32 v6, s56, v3")
        for t in range(4):
            for ct in range(5):
                d = AC + 4*(5*t + ct)
                A(f"ds_write_b128 v6, v[{d}:{d+3}] offset:{(5*t + ct)*1024}")
        def flagsync(val):
            lab = A.label("v2s")
            A(f"""
            s_waitcnt lgkmcnt(0)
            v_mov_b32 v7, {val}
            ds_write_b32 v5, v7
            s_mov_b32 s60, 0x100000
            {lab}:
            ds_read_b32 v7, v4
            s_waitcnt lgkmcnt(0)
            v_cmp_le_u32 vcc, {val}, v7
            s_cmp_eq_u64 vcc, exec
            s_cbranch_scc1 {lab}_ok
            s_sleep 1
            s_sub_u32 s60, s60, 1
            s_cbranch_scc0 {lab}
            {lab}_ok:
            """)
        flagsync(1)
        A(f"s_mul_i32 s56, s40, 5120")
        A(f"v_add_u32 v6, s56, v3")
        A(f"v_add_u32 v7, {3*PH}, v6")
        for p in range(4):
            base = "v6" if p < 3 else "v7"
            off = p*PH if p < 3 else 0
            for ct in range(5):
                A(f"ds_read_b128 v[{88+20*p+4*ct}:{88+20*p+4*ct+3}], {base} offset:{off + ct*1024}")
        A("s_waitcnt lgkmcnt(0)")
        for i in range(20):
            A(f"v_add_f32 v{88+i}, v{88+i}, v{108+i}")
            A(f"v_add_f32 v{128+i}, v{128+i}, v{148+i}")
        for i in range(20):
            A(f"v_add_f32 v{ACC_B+i}, v{88+i}, v{128+i}")
        for i in range(20): A(f"v_mov_b32 v{ACC_A+i}, 0")
        flagsync(2)
        for q in range(12, 16):
            for j in range(5):
                A(f"s_add_u32 m0, s47, {(q % 4)*PH + j*1024}")
                A(f"s_add_u32 s55, s49, {q*PH + j*1024}")
                A(f"buffer_load_dwordx4 v2, s[8:11], s55 offen lds")
        A("s_waitcnt vmcnt(0) lgkmcnt(0)")
        A("s_barrier")
        if prof: stamp(A, 1)
        A("s_setprio 3")
    if not inc:
        if prof: stamp(A, 8)
        A(f"""
        s_cmp_eq_u32 s40, 0
        s_cbranch_scc1 Lsh_poller
        """)
        if wdelay: A(f"s_sleep {wdelay}")
        A("s_sub_u32 s54, s40, 1")
        A(f"s_mul_i32 s61, s43, {WF_CG}")
        A(f"s_add_u32 s61, s61, {WF_OFF + (16 if v2 else 15)*PH}")
        ntot = 20 if v2 else 40
        for j in range((ntot + 2) // 3):
            lab = None
            if 3*j + 2 >= ntot:
                lab = A.label("w13")
                A(f"s_add_u32 s55, s54, {3*j}")
                A(f"s_cmp_lt_u32 s55, {ntot}")
                A(f"s_cbranch_scc0 {lab}")
            A(f"s_add_u32 s55, s54, {3*j}")
            A("s_lshl_b32 s55, s55, 10")
            A("s_mov_b32 m0, s55")
            A("s_add_u32 s55, s55, s61")
            A(f"buffer_load_dwordx4 v2, s[8:11], s55 offen lds")
            if lab: A(f"{lab}:")
        A(f"""
        s_branch Lsh_g
    Lsh_poller:
        s_mul_i32 s56, s14, {FROW}
        s_add_u32 s56, s56, {OFLAG_OFF}
        v_and_b32 v4, 31, v1
        v_lshlrev_b32 v4, 2, v4
        s_mov_b32 s60, 0x40000
        """)
        TG = 's62' if fused else '1'
        if ppo:
            A(f"""
            buffer_load_dword v166, v4, s[8:11], s56 offen sc1
            s_sleep {ppo}
    Lsh_poll:
            buffer_load_dword v167, v4, s[8:11], s56 offen sc1
            s_waitcnt vmcnt(1)
            v_cmp_eq_u32 vcc, {TG}, v166
            s_cmp_eq_u64 vcc, exec
            s_cbranch_scc1 Lsh_g0
            buffer_load_dword v166, v4, s[8:11], s56 offen sc1
            s_waitcnt vmcnt(1)
            v_cmp_eq_u32 vcc, {TG}, v167
            s_cmp_eq_u64 vcc, exec
            s_cbranch_scc1 Lsh_g0
            s_sub_u32 s60, s60, 1
            s_cbranch_scc0 Lsh_poll
    Lsh_g0:
            """)
        else:
            A(f"""
    Lsh_poll:
            buffer_load_dword v7, v4, s[8:11], s56 offen sc1
            s_waitcnt vmcnt(0)
            v_cmp_eq_u32 vcc, {TG}, v7
            s_cmp_eq_u64 vcc, exec
            s_cbranch_scc1 Lsh_g
            s_sleep {POLL_SLEEP}
            s_sub_u32 s60, s60, 1
            s_cbranch_scc0 Lsh_poll
            """)
        A(f"""
    Lsh_g:
        """)
        if prof:
            stamp(A, 7)
        A(f"""
        v_and_b32 v49, 15, v1
        s_lshl_b32 s45, s46, 4
        v_add_u32 v49, s45, v49
        v_lshlrev_b32 v50, 2, v49
        s_mov_b32 s58, {G_OFF}
        buffer_load_dword v6, v50, s[8:11], s58 offen
        v_lshrrev_b32 v48, 4, v1               ; lane>>4
        v_mul_u32_u24 v7, 1280, v49
        v_lshl_add_u32 v5, v48, 3, v7
        """)
        if ppo:
            A("""
            s_cmp_eq_u32 s40, 0
            s_cbranch_scc1 Lsh_nw
            s_waitcnt vmcnt(1) lgkmcnt(0)
    Lsh_nw:
            s_barrier
            """)
        else:
            A("s_waitcnt vmcnt(1) lgkmcnt(0)")
            A("s_barrier")
        A(f"""
        """)
        if prof: stamp(A, 2)
        def oload(k):
            return [f"s_add_u32 s55, s52, {k*1024}", f"buffer_load_dwordx4 v[{BF+4*k}:{BF+4*k+3}], v2, s[8:11], s55 offen{scl}"]
        PRE = 8
        for k in range(PRE):
            for l in oload(k): A(l)
        if prof: stamp(A, 3)
        def wrd(ks, fs):
            p = 12 + ks // 4; k = ks % 4
            if v2:
                if p < 15: base, so = "v3", (p % 4)*PH
                elif p == 15: base, so = "v0", 0
                else: base, so = "v2", 0
            elif p < 15: base, so = "v3", (p % 4)*PH
            else: base, so = "v2", (p - 15)*PH
            return [f"ds_read_b128 v[{WF[fs]+4*ct}:{WF[fs]+4*ct+3}], {base} offset:{so + k*5120 + ct*1024}" for ct in range(5)]
        for l in wrd(0, 0): A(l)
        for ks in range(20):
            if ks + PRE < 20:
                for l in oload(ks + PRE): A(l)
            issued = min(20, ks + PRE + 1)
            if ks < 19:
                for l in wrd(ks + 1, (ks + 1) & 1): A(l)
                A(f"s_waitcnt vmcnt({issued - 1 - ks}) lgkmcnt(5)")
            else:
                A("s_waitcnt vmcnt(0) lgkmcnt(0)")
            b = BF + 4*ks
            for ct in range(5):
                A(f"v_mfma_f32_16x16x32_bf16 v[{ACC_A+4*ct}:{ACC_A+4*ct+3}], v[{WF[ks&1]+4*ct}:{WF[ks&1]+4*ct+3}], v[{b}:{b+3}], v[{ACC_A+4*ct}:{ACC_A+4*ct+3}]")
    else:
        if prof: stamp(A, 8)
        A(f"s_mul_i32 s61, s43, {WF_CG}")
        A(f"s_add_u32 s61, s61, {WF_OFF + 15*PH}")
        for j in range(10):
            A(f"s_add_u32 s55, s40, {4*j}")
            A("s_lshl_b32 s55, s55, 10")
            A("s_mov_b32 m0, s55")
            A("s_add_u32 s55, s55, s61")
            A(f"buffer_load_dwordx4 v2, s[8:11], s55 offen lds")
        A(f"""
        v_and_b32 v49, 15, v1
        s_lshl_b32 s45, s46, 4
        v_add_u32 v49, s45, v49
        v_lshlrev_b32 v50, 2, v49
        s_mov_b32 s58, {G_OFF}
        buffer_load_dword v6, v50, s[8:11], s58 offen
        v_lshrrev_b32 v48, 4, v1
        v_mul_u32_u24 v7, 1280, v49
        v_lshl_add_u32 v51, v48, 3, v7
        v_mov_b32 v1, v51
        """)
        lab = A.label("s13")
        A(f"""
        s_waitcnt vmcnt(1) lgkmcnt(0)
        v_mov_b32 v48, 13
        ds_write_b32 v5, v48
        s_mov_b32 s60, 0x100000
        {lab}:
        ds_read_b32 v48, v4
        s_waitcnt lgkmcnt(0)
        v_cmp_le_u32 vcc, 13, v48
        s_cmp_eq_u64 vcc, exec
        s_cbranch_scc1 {lab}_ok
        s_sub_u32 s60, s60, 1
        s_cbranch_scc0 {lab}
        {lab}_ok:
        """)
        if prof:
            stamp(A, 7); stamp(A, 6)
        def wrd2(ks, fs):
            p = 12 + ks // 4; k = ks % 4
            if p < 15: base, so = "v3", (p % 4)*PH
            else: base, so = "v2", (p - 15)*PH
            return [f"ds_read_b128 v[{WF[fs]+4*ct}:{WF[fs]+4*ct+3}], {base} offset:{so + k*5120 + ct*1024}" for ct in range(5)]
        def ophase(q, vm):
            A(f"s_waitcnt vmcnt({vm})")
            for l in wrd2(4*q, 0): A(l)
            for k in range(4):
                ks = 4*q + k
                if k < 3:
                    for l in wrd2(ks + 1, (k + 1) & 1): A(l)
                    A("s_waitcnt lgkmcnt(5)")
                else:
                    A("s_waitcnt lgkmcnt(0)")
                b = BF + 4*ks
                for ct in range(5):
                    A(f"v_mfma_f32_16x16x32_bf16 v[{ACC_A+4*ct}:{ACC_A+4*ct+3}], v[{WF[k&1]+4*ct}:{WF[k&1]+4*ct+3}], v[{b}:{b+3}], v[{ACC_A+4*ct}:{ACC_A+4*ct+3}]")
        for p in range(5):
            lds_spin(A, FLAG + LF_ORDY, p + 1, 1, tmp=(48, 49), sleep=1, cnt="s60")
            if p == 0 and prof: stamp(A, 2)
            for k in range(4):
                A(f"s_add_u32 s55, s52, {(4*p + k)*1024}")
                A(f"buffer_load_dwordx4 v[{BF+4*(4*p+k)}:{BF+4*(4*p+k)+3}], v2, s[8:11], s55 offen{scl}")
            LAG = inc
            if p >= LAG: ophase(p - LAG, 4*LAG)
        if prof: stamp(A, 3)
        for q in range(5 - inc, 5): ophase(q, 4*(4 - q))
        A("v_mov_b32 v5, v1")
    if prof: stamp(A, 4)
    A("s_nop 7")
    A("s_mul_i32 s48, s43, 160")
    for ct in range(5):
        b = ACC_B + 4*ct; a = ACC_A + 4*ct
        for i in range(4):
            A(f"v_sub_f32 v{a+i}, v{a+i}, v{b+i}")
        for i in range(4):
            A(f"v_fma_f32 v{a+i}, v6, v{a+i}, v{b+i}")
        A(f"v_cvt_pk_bf16_f32 v{48+2*ct}, v{a}, v{a+1}")
        A(f"v_cvt_pk_bf16_f32 v{49+2*ct}, v{a+2}, v{a+3}")
        A(f"buffer_store_dwordx2 v[{48+2*ct}:{49+2*ct}], v5, s[24:27], s48 offen offset:{ct*32}{OUTF}")
    if prof == 2:
        stamp(A, 5)
        A("s_memrealtime s[88:89]")
        A("s_waitcnt lgkmcnt(0)")
        A("s_sub_u32 s88, s88, s94")
        for i, src in enumerate(("s80", "s79", "s70", "s71", "s72", "s75", "s88")):
            A(f"v_writelane_b32 v48, {src}, {i}")
        dbg_dump_lanes(A, 48, 9, 7, 37, 12, 8)
    elif prof:
        stamp(A, 5)
        dump_stamps(A, 1, 8, 12, 14, tmp=50)
        A("s_mov_b64 exec, -1")
        A("s_mov_b32 s90, 0")
        prof_end(A, 1, 8, 12, tmpv=(16, 17, 18, 19, 20), extra="s90")
    A("s_endpgm")
```
